```python
import torch

def _softmax(x, axis=-1):
    return torch.softmax(x, dim=axis)
def _gelu(x):
    return torch.nn.functional.gelu(x, approximate="tanh")
def _silu(x):
    return torch.nn.functional.silu(x)
def _sigmoid(x):
    return torch.sigmoid(x)
def _layernorm(x, axis=-1, eps=1e-5):
    m = x.mean(dim=axis, keepdim=True)
    v = x.var(dim=axis, keepdim=True, unbiased=False)
    return (x - m) / torch.sqrt(v + eps)
def _scatter_add(tgt, idx, src, axis=0):
    return tgt.clone().index_add_(axis, idx, src)
def _segment_sum(src, seg, n):
    out = torch.zeros((n,) + src.shape[1:], dtype=src.dtype)
    return out.index_add_(0, seg, src)
def _pad(x, pw):
    flat = tuple(v for pair in reversed(pw) for v in pair)
    return torch.nn.functional.pad(x, flat)

kernel_name = 'interleave_layers__sliding_block_cached__gqa_block_cached__decode'

def setup_inputs():

    _w = (lambda a: (lambda t: t.to(torch.bfloat16) if t.is_floating_point() else t)(torch.as_tensor(a)))
    def _A_setup():
        B, Sq, D = 2, 1, 640
        Hq, Hkv, Sk, Dh = 32, 32, 4096, 192
        assert Hq % Hkv == 0, (Hq, Hkv)
        return {
            "x": _w((lambda *s: torch.randn(*s, dtype=torch.bfloat16) * 0.1)(B, Sq, D)),
            "k_cache": _w((lambda *s: torch.randn(*s, dtype=torch.bfloat16) * 0.8)(B, Hkv, Sk, Dh)),
            "v_cache": _w((lambda *s: torch.randn(*s, dtype=torch.bfloat16) * 3.2)(B, Hkv, Sk, Dh)),
            "wq": _w((lambda *s: torch.randn(*s, dtype=torch.bfloat16) * 0.8)(D, Hq * Dh) * (D ** -0.5)),
            "wo": _w((lambda *s: torch.randn(*s, dtype=torch.bfloat16) * 3.2)(Hq * Dh, D) * ((Hq * Dh) ** -0.5)),
        }
    _A_in = _A_setup()

    def _B_setup():
        B, Sq, D = 2, 1, 640
        Hq, Hkv, Sk, Dh = 32, 32, 4096, 192
        assert Hq % Hkv == 0, (Hq, Hkv)
        return {
            "x": _w((lambda *s: torch.randn(*s, dtype=torch.bfloat16) * 0.1)(B, Sq, D)),
            "k_cache": _w((lambda *s: torch.randn(*s, dtype=torch.bfloat16) * 1.6)(B, Hkv, Sk, Dh)),
            "v_cache": _w((lambda *s: torch.randn(*s, dtype=torch.bfloat16) * 1.6)(B, Hkv, Sk, Dh)),
            "wq": _w((lambda *s: torch.randn(*s, dtype=torch.bfloat16) * 1.6)(D, Hq * Dh) * (D ** -0.5)),
            "wo": _w((lambda *s: torch.randn(*s, dtype=torch.bfloat16) * 1.6)(Hq * Dh, D) * ((Hq * Dh) ** -0.5)),
        }
    _B_in = _B_setup()

    return {
        "A_x": _A_in["x"],
        "A_k_cache": _A_in["k_cache"],
        "A_v_cache": _A_in["v_cache"],
        "A_wq": _A_in["wq"],
        "A_wo": _A_in["wo"],
        "B_x": _B_in["x"],
        "B_k_cache": _B_in["k_cache"],
        "B_v_cache": _B_in["v_cache"],
        "B_wq": _B_in["wq"],
        "B_wo": _B_in["wo"],
    }

def reference(A_x, A_k_cache, A_v_cache, A_wq, A_wo, B_x, B_k_cache, B_v_cache, B_wq, B_wo):
    def _A_ref(x, k_cache, v_cache, wq, wo):
        B, Sq, D = x.shape
        Hq, Dh = 32, 192
        Hkv, Sk = k_cache.shape[1], k_cache.shape[2]
        W = min(4096, max(256, Sk // 4))
        rep = Hq // Hkv
        q = (lambda x, *d: x.permute(*d))((x @ wq).reshape(B, Sq, Hq, Dh), 0, 2, 1, 3)
        k = (lambda x, n, axis: torch.repeat_interleave(x, n, dim=axis))(k_cache[:, :, Sk - W:, :], rep, axis=1)
        v = (lambda x, n, axis: torch.repeat_interleave(x, n, dim=axis))(v_cache[:, :, Sk - W:, :], rep, axis=1)
        scores = torch.einsum("bhqd,bhkd->bhqk", q, k) * (Dh ** -0.5)
        p = _softmax(scores, axis=-1)
        o = torch.einsum("bhqk,bhkd->bhqd", p, v)
        return (lambda x, *d: x.permute(*d))(o, 0, 2, 1, 3).reshape(B, Sq, Hq * Dh) @ wo

    def _B_ref(x, k_cache, v_cache, wq, wo):
        B, Sq, D = x.shape
        Hq, Dh = 32, 192
        Hkv = k_cache.shape[1]
        rep = Hq // Hkv
        q = (lambda x, *d: x.permute(*d))((x @ wq).reshape(B, Sq, Hq, Dh), 0, 2, 1, 3)
        k = (lambda x, n, axis: torch.repeat_interleave(x, n, dim=axis))(k_cache, rep, axis=1)
        v = (lambda x, n, axis: torch.repeat_interleave(x, n, dim=axis))(v_cache, rep, axis=1)
        scores = torch.einsum("bhqd,bhkd->bhqk", q, k) * (Dh ** -0.5)
        p = _softmax(scores, axis=-1)
        o = torch.einsum("bhqk,bhkd->bhqd", p, v)
        return (lambda x, *d: x.permute(*d))(o, 0, 2, 1, 3).reshape(B, Sq, Hq * Dh) @ wo

    x = A_x
    x = x + _A_ref(_layernorm(x, axis=-1), A_k_cache, A_v_cache, A_wq, A_wo)
    x = x + _B_ref(_layernorm(x, axis=-1), B_k_cache, B_v_cache, B_wq, B_wo)
    x = x + _A_ref(_layernorm(x, axis=-1), A_k_cache, A_v_cache, A_wq, A_wo)
    x = x + _B_ref(_layernorm(x, axis=-1), B_k_cache, B_v_cache, B_wq, B_wo)
    return x
```

```python
import re

TRANS = ("v_exp_f32", "v_log_f32", "v_rcp_f32", "v_rsq_f32", "v_sqrt_f32", "v_sin_f32", "v_cos_f32")
REG_RE = re.compile(r"^(-?)(?:abs\()?([vas])(?:(\d+)|\[(\d+):(\d+)\])\)?$")

def regs_of(tok):
    tok = tok.strip()
    if tok in ("vcc",): return [("s", "vcc")]
    if tok in ("exec",): return [("s", "exec")]
    if tok == "m0": return [("s", "m0")]
    m = REG_RE.match(tok)
    if not m: return []
    k = m.group(2)
    if m.group(3) is not None: return [(k, int(m.group(3)))]
    return [(k, i) for i in range(int(m.group(4)), int(m.group(5)) + 1)]

class Inst:
    def __init__(self, text):
        self.text = text
        t = text.split(None, 1)
        self.op = t[0]
        rest = t[1] if len(t) > 1 else ""
        parts = []; depth = 0; cur = ""
        for ch in rest:
            if ch == "[": depth += 1
            if ch == "]": depth -= 1
            if ch == "," and depth == 0: parts.append(cur); cur = ""
            else: cur += ch
        parts.append(cur)
        self.mods = ""
        last = parts[-1].strip().split(None, 1)
        if last:
            parts[-1] = last[0]
            self.mods = last[1] if len(last) > 1 else ""
        self.ops = [p.strip() for p in parts if p.strip()]
        op = self.op
        self.is_mfma = op.startswith("v_mfma")
        self.is_valu = op.startswith("v_") and not self.is_mfma
        self.is_ds = op.startswith("ds_")
        self.is_vmem = op.startswith(("buffer_", "global_"))
        self.is_smem = op.startswith(("s_load", "s_memrealtime", "s_memtime"))
        self.is_salu = op.startswith("s_") and not self.is_smem
        self.is_dpp = "_dpp" in op
        self.is_trans = op.startswith(TRANS)
        self.is_lds_dma = self.is_vmem and re.search(r"\blds\b", self.mods) is not None
        R = [regs_of(o) for o in self.ops]
        dst = []; src = []
        self.srcC = []; self.srcAB = []; self.data = []
        if self.is_mfma:
            dst = R[0]; self.srcAB = R[1] + R[2]; self.srcC = R[3]; src = self.srcAB + self.srcC
        elif op.startswith("v_permlane") and "swap" in op:
            dst = R[0] + R[1]; src = R[0] + R[1]
        elif op.startswith("v_cmp"):
            dst = R[0]; src = sum(R[1:], [])
        elif op.startswith(("v_add_co", "v_sub_co", "v_addc_co")):
            dst = R[0] + R[1]; src = sum(R[2:], [])
        elif self.is_valu:
            dst = R[0]; src = sum(R[1:], [])
            if op.startswith(("v_fmac", "v_writelane")) or self.is_dpp: src = src + R[0]
            if op.startswith("v_cndmask") and len(self.ops) == 3: src = src + [("s", "vcc")]
        elif self.is_ds:
            if op.startswith("ds_read"): dst = R[0]; src = sum(R[1:], [])
            else: src = sum(R, [])
        elif self.is_vmem:
            if self.is_lds_dma: src = sum(R, []) + [("s", "m0")]
            elif "load" in op: dst = R[0]; src = sum(R[1:], [])
            else:
                src = sum(R, [])
                if "store" in op and ("x4" in op or "x3" in op):
                    self.data = R[0] if op.startswith("buffer") else R[1]
        elif self.is_smem:
            dst = R[0]; src = sum(R[1:], [])
        elif self.is_salu:
            if op.startswith(("s_cmp", "s_cbranch", "s_branch", "s_waitcnt", "s_nop", "s_barrier", "s_sleep", "s_endpgm", "s_setprio")):
                src = sum(R, [])
                if "vcc" in op: src = src + [("s", "vcc")]
            else:
                dst = R[0]; src = sum(R[1:], [])
        self.dst = dst; self.src = src
        self.states = 1
        if op == "s_nop": self.states = int(self.ops[0]) + 1

class Fifo:
    def __init__(self, name, maxn):
        self.name = name; self.ent = []; self.done = 0; self.maxn = maxn
    def push(self, tag=None):
        self.ent.append([tag, True]); return len(self.ent) - 1
    def younger(self, idx):
        return sum(1 for e in self.ent[idx + 1:] if e[1])
    def need(self, idx):
        if idx < self.done: return None
        return min(self.younger(idx), self.maxn)
    def waited(self, n):
        c = 0
        for i in range(len(self.ent) - 1, -1, -1):
            if c >= n:
                self.done = max(self.done, i + 1); return
            if self.ent[i][1]: c += 1
    def outstanding(self):
        return len(self.ent) - self.done
    def last_tag(self, tag):
        for i in range(len(self.ent) - 1, -1, -1):
            if self.ent[i][0] == tag: return i
        raise KeyError(tag)

class Asm:
    def __init__(self):
        self.out = []
        self.vm = Fifo("vmcnt", 63); self.lg = Fifo("lgkmcnt", 15)
        self.pend = {}
        self.smem_pending = False
        self.clock = 0
        self.w_valu = {}; self.w_trans = {}; self.w_mfma = {}; self.r_mfmaC = {}; self.w_sgpr_valu = {}
        self.store_data = {}; self.w_m0 = -99
        self.mfma_dst_full = {}
        self.tail = []
        self.regions = []
        self.nlabel = 0
        self.nbytes = 0
    def label(self, p="L"):
        self.nlabel += 1; return f"{p}{self.nlabel}"
    def raw(self, text): self.out.append(text)
    def comment(self, text): self.out.append("; " + text)
    def _emit(self, ins):
        self.out.append("  " + ins.text); self.clock += ins.states
    def wait(self, vm=None, lg=None):
        parts = []
        if vm is not None: parts.append(f"vmcnt({vm})"); self.vm.waited(vm)
        if lg is not None:
            if self.smem_pending: lg = 0
            parts.append(f"lgkmcnt({lg})"); self.lg.waited(lg)
            if lg == 0: self.smem_pending = False
        if parts: self._emit(Inst("s_waitcnt " + " ".join(parts)))
    def wait_tag(self, tag):
        n = self.vm.need(self.vm.last_tag(tag))
        if n is not None: self.wait(vm=n)
    def pace(self, W):
        if self.vm.outstanding() > W - 1: self.wait(vm=W - 1)
    def I(self, text, tag=None):
        for t in text.split("\n"):
            t = t.strip()
            if t: self._I(t, tag)
    def _I(self, text, tag):
        ins = Inst(text)
        if ins.op == "s_waitcnt": raise ValueError("use wait()")
        vm = None; lg = None
        for r in ins.src + ins.dst:
            if r in self.pend:
                f, idx = self.pend[r]
                n = f.need(idx)
                if n is None: continue
                if f is self.vm: vm = n if vm is None else min(vm, n)
                else: lg = n if lg is None else min(lg, n)
        if vm is not None or lg is not None: self.wait(vm, lg)
        need = 0
        def req(table, regs, d):
            nonlocal need
            for r in regs:
                if r in table: need = max(need, d - (self.clock - table[r]))
        vsrc = [r for r in ins.src if r[0] in "va"]; vdst = [r for r in ins.dst if r[0] in "va"]
        ssrc = [r for r in ins.src if r[0] == "s"]
        if ins.is_dpp or "permlane" in ins.op: req(self.w_valu, vsrc, 2)
        if ins.op.startswith(("v_readlane", "v_readfirstlane")): req(self.w_valu, vsrc, 1)
        if ins.is_valu: req(self.w_trans, vsrc + vdst, 1)
        if ins.is_valu:
            req(self.w_sgpr_valu, ssrc, 4 if ins.op.startswith(("v_readlane", "v_writelane")) else 2)
        if ins.is_vmem: req(self.w_sgpr_valu, ssrc, 5)
        if ins.is_salu and not ins.op.startswith("s_cbranch"): req(self.w_sgpr_valu, ssrc, 1)
        if ins.is_mfma:
            req(self.w_valu, vsrc, 2)
            req(self.w_mfma, ins.srcAB, 8)
            if ins.srcC:
                key = (ins.srcC[0], len(ins.srcC), ins.op)
                for r in ins.srcC:
                    if r in self.w_mfma and self.mfma_dst_full.get(r) != key:
                        need = max(need, 8 - (self.clock - self.w_mfma[r]))
        else:
            if ins.is_valu or ins.is_vmem or ins.is_ds: req(self.w_mfma, vsrc + vdst, 8)
        if ins.is_valu:
            req(self.r_mfmaC, vdst, 3); req(self.store_data, vdst, 2)
        elif vdst: req(self.store_data, vdst, 1)
        if ins.is_lds_dma: need = max(need, 1 - (self.clock - self.w_m0))
        while need > 0:
            k = min(need, 16); self._emit(Inst(f"s_nop {k-1}")); need -= k
        self._emit(ins)
        c = self.clock
        for r in ins.dst: self.pend.pop(r, None)
        if ins.is_valu:
            for r in ins.dst:
                if r[0] == "s": self.w_sgpr_valu[r] = c
                else:
                    self.w_valu[r] = c; self.w_mfma.pop(r, None)
                    if ins.is_trans: self.w_trans[r] = c
                    else: self.w_trans.pop(r, None)
        if ins.is_mfma:
            key = (ins.dst[0], len(ins.dst), ins.op)
            for r in ins.dst: self.w_mfma[r] = c; self.mfma_dst_full[r] = key; self.w_valu.pop(r, None)
            for r in ins.srcC: self.r_mfmaC[r] = c
        if ins.is_salu:
            for r in ins.dst:
                self.w_sgpr_valu.pop(r, None)
                if r == ("s", "m0"): self.w_m0 = c
        for r in ins.data: self.store_data[r] = c
        if ins.is_vmem:
            idx = self.vm.push(tag)
            assert self.vm.outstanding() <= 63, "vmcnt overflow"
            for r in ins.dst: self.pend[r] = (self.vm, idx)
        if ins.is_ds:
            idx = self.lg.push(tag)
            for r in ins.dst: self.pend[r] = (self.lg, idx)
        if ins.is_smem:
            idx = self.lg.push(tag); self.smem_pending = True
            for r in ins.dst: self.pend[r] = (self.lg, idx)
    def either(self, cond_true_text, cond_false_text, tag=None):
        l1 = self.label("Le"); l2 = self.label("Lf")
        mark = len(self.out)
        self._I(cond_true_text, tag)
        text = self.out.pop()
        self.out += [f"  s_cbranch_scc1 {l1}", "  " + cond_false_text, f"  s_branch {l2}", f"{l1}:", text, f"{l2}:"]
    def skip_begin(self, branch):
        l = self.label("Ls")
        self._I(f"{branch} {l}", None)
        snap = [dict(t) for t in self._tables()]
        self.regions.append((l, len(self.vm.ent), len(self.lg.ent), self.vm.done, self.lg.done, self.clock, self.smem_pending, dict(self.pend), snap))
    def skip_end(self):
        l, nv, nl, dv, dl, clk, sp, pend, snap = self.regions.pop()
        for e in self.vm.ent[nv:]: e[1] = False
        for e in self.lg.ent[nl:]: e[1] = False
        self.vm.done = min(self.vm.done, dv); self.lg.done = min(self.lg.done, dl)
        self.smem_pending = self.smem_pending or sp
        for r, v in pend.items(): self.pend.setdefault(r, v)
        d = self.clock - clk
        for t, old in zip(self._tables(), snap):
            for r, c in old.items():
                if c + d > t.get(r, -10**9):
                    t[r] = c + d
                    if t is self.w_mfma: self.mfma_dst_full[r] = None
        if self.w_m0 <= clk: self.w_m0 += d
        self.out.append(f"{l}:")
    def _tables(self):
        return (self.w_valu, self.w_trans, self.w_mfma, self.r_mfmaC, self.w_sgpr_valu, self.store_data)
    def barrier(self):
        if self.lg.outstanding() > 0 or self.smem_pending: self.wait(lg=0)
        self._I("s_barrier", None)
    def text(self):
        return "\n".join(self.out + self.tail) + "\n"
```

```python
import sys, math
from dsl import Asm

NAME = "interleave_layers__sliding_block_cached__gqa_block_cached__decode_kernel"
HEAD = open("interleave_layers__sliding_block_cached__gqa_block_cached__decode.s.ref").read().split("; Override")[0]

KV_BYTES = 2 * 32 * 4096 * 384
BSTR = 32 * 4096 * 384
HSTR = 4096 * 384
W_BYTES = 640 * 6144 * 2
WS_BYTES = 434115584
H1_I, H1_H, H1_S = 524288, 16384, 2048
H2 = 8 * H1_I; H2_I, H2_H, H2_S = 131072, 4096, 512
H3 = H2 + 8 * H2_I; H3_I, H3_S, H3_H = 98304, 12288, 384
DIAG = 8 << 20
WQ = (0, 61440); WO = (30720, 92160)
VS = 122880
EX = 147456
ATT = EX; STAT = EX + 6144; Y = EX + 6208; YSZ = 2816; XROW = Y + 2 * YSZ; ONES = XROW + 1280; QB = ONES + 160; CT = QB + 768
LDS_BYTES = CT + 2048
assert LDS_BYTES <= 163840
sWG, sWave = 2, 3
KA, VA, KB, VB, WS, WT, XO = 4, 8, 12, 16, 20, 24, 28
pX, pKA, pVA, pWQA, pWOA, pKB, pVB, pWQB, pWOB, pOUT, pDBG, pWS = 32, 34, 36, 38, 40, 44, 46, 48, 50, 52, 54, 56
sH, sS, sLocal, sOff, sRetry, sT0, sT1, sT2 = 58, 59, 60, 61, 62, 63, 64, 65
sH1own, sH1grp, sH2own, sH2grp, sH3own, sH3grp, sOffG, sOffP = 66, 67, 68, 69, 70, 71, 72, 73
mODD, mHI8, mHI32, mWOST, mRG1, mRG2, mRG3, m60 = 74, 76, 78, 80, 82, 84, 86, 88
sXcc, sWqRow, sWoRow, sLdsW, sLdsVS = 90, 91, 92, 93, 94
sST = 96; m40 = 98
def sp(n): return f"s[{n}:{n+1}]"
def s4(n): return f"s[{n}:{n+3}]"
def v2(n): return f"v[{n}:{n+1}]"
def v4(n): return f"v[{n}:{n+3}]"
vLane, vKoff, vVoff, vMask = 0, 1, 2, 3
vQ, vACC, vU = 12, 24, 36
vStamp = 55
QUADS = [f"a[{i}:{i+3}]" for i in range(0, 256, 4)] + [f"v[{i}:{i+3}]" for i in range(56, 256, 4)]
SLOT = {}
_names = [("KA", i) for i in range(4)] + [("VA", 0), ("VA", 1)] + [("KB", i) for i in range(16)] + [("VB", i) for i in range(16)]
for i, n in enumerate(_names): SLOT[n] = QUADS[3 * i:3 * i + 3]
assert SLOT[("VB", 15)][2] == "v[252:255]"
vWq0, vWq1, vWo = 252, 253, 254
SCALE = 192 ** -0.5 * math.log2(math.e)
import struct
def f32(x): return "0x%08x" % struct.unpack("<I", struct.pack("<f", x))[0]

class Gen:
    def __init__(self, cfg):
        self.c = cfg; self.a = Asm(); self.items = []; self.pos = 0; self.nstamp = 0
        self.W = cfg.get("W", 7)
    def add_w(self, name, ptr, kind, ty):
        pol = self.c.get("wpol", "nt")
        def mk(k):
            def f():
                a = self.a
                if k == 0:
                    off = sWqRow if kind == "q" else sWoRow
                    a.I(f"s_add_u32 s{WT}, s{ptr}, s{off}\ns_addc_u32 s{WT+1}, s{ptr+1}, 0\ns_sub_u32 s{WT+2}, {W_BYTES}, s{off}")
                base = (WQ if kind == "q" else WO)[ty]
                a.I(f"s_add_u32 m0, s{sLdsW}, {base + 960 * k}")
                if kind == "q": so = 5 * (k // 2) * 12288; vr = vWq1 if k & 1 else vWq0
                else: so = 6 * k * 1280; vr = vWo
                a.I(f"s_mov_b32 s{sOff}, {so}\ns_mov_b64 exec, {sp(m60)}")
                a.I(f"buffer_load_dwordx4 v{vr}, {s4(WT)}, s{sOff} offen {pol} lds", tag=name)
                a.I("s_mov_b64 exec, -1")
            return f
        self.items += [(name, mk(k)) for k in range(8)]
    def add_kv(self, name, b, g):
        srd = {"KA": KA, "VA": VA, "KB": KB, "VB": VB}[name]
        isK = name[0] == "K"; vo = vKoff if isK else vVoff; step = 128 if isK else 256
        pol = self.c.get("kvpol", "nt")
        def mk(c):
            def f():
                a = self.a
                if (name, g) in SLOT:
                    if c == 0: a.I(f"s_mov_b32 s{sOff}, {b * BSTR + g * 3072}")
                    elif self.off_val != (name, b, g): a.I(f"s_mov_b32 s{sOff}, {b * BSTR + g * 3072}")
                    self.off_val = (name, b, g)
                    a.I(f"buffer_load_dwordx4 {SLOT[(name, g)][c]}, v{vo}, {s4(srd)}, s{sOff} offen offset:{step * c} {pol}")
                else:
                    self.off_val = None
                    a.I(f"s_add_u32 m0, s{sLdsVS}, {(g - 2) * 3072 + 1024 * c}\ns_mov_b32 s{sOff}, {b * BSTR + g * 3072 + step * c}")
                    a.I(f"buffer_load_dwordx4 v{vo}, {s4(srd)}, s{sOff} offen {pol} lds", tag=("VS", b, g))
            return f
        self.items += [((name, b, g), mk(c)) for c in range(3)]
    def stream(self, n, paced=True, W=None):
        for _ in range(n):
            if self.pos >= len(self.items): return
            if paced: self.a.pace(W or self.W)
            self.items[self.pos][1](); self.pos += 1
    def stream_to(self, upto, **k): self.stream(max(0, upto - self.pos), **k)
    def index_after(self, name):
        return max(i for i, it in enumerate(self.items) if it[0] == name) + 1
    def check_slot(self, name, b, g):
        assert self.index_after((name, b, g)) <= self.pos, ("not issued", name, b, g, self.pos)
        if b == 0: assert self.index_after((name, 1, g)) - 3 >= self.pos, ("overwritten", name, g)
    def stamp(self):
        if not self.c.get("diag"): return
        a = self.a
        a.I(f"s_memrealtime {sp(sST)}"); a.wait(lg=0)
        a.I(f"v_writelane_b32 v{vStamp}, s{sST}, {self.nstamp}"); self.nstamp += 1
    def publish(self, text, local_ok):
        a = self.a
        if local_ok and self.c.get("local", True):
            a.I(f"s_cmp_lg_u32 s{sLocal}, 0")
            a.either(text.format(pol=""), text.format(pol="sc1"), tag="pub")
        else: a.I(text.format(pol="sc1"), tag="pub")
    def gather(self, loads, regs, tmp, between=None, emask=None):
        a = self.a
        if emask: a.I(f"s_mov_b64 exec, {emask}")
        for t in loads: a.I(t, tag="gat")
        last = len(a.vm.ent) - 1
        if between:
            if emask: a.I("s_mov_b64 exec, -1")
            between()
            if emask: a.I(f"s_mov_b64 exec, {emask}")
        n = a.vm.need(last)
        if n is not None: a.wait(vm=n)
        chk = a.label("Lc"); rt = a.label("Lr")
        a.raw(f"{chk}:")
        r = list(regs)
        if len(r) == 1: cur = r.pop()
        else:
            if len(r) >= 3: a.I(f"v_max3_u32 v{tmp}, v{r[0]}, v{r[1]}, v{r[2]}"); r = r[3:]
            else: a.I(f"v_max_u32 v{tmp}, v{r[0]}, v{r[1]}"); r = []
            while len(r) >= 2: a.I(f"v_max3_u32 v{tmp}, v{tmp}, v{r[0]}, v{r[1]}"); r = r[2:]
            if r: a.I(f"v_max_u32 v{tmp}, v{tmp}, v{r[0]}")
            cur = tmp
        a.I(f"v_cmp_eq_u32 vcc, -1, v{cur}")
        a.I(f"s_cbranch_vccnz {rt}")
        self.retry_block(rt, chk, loads)
    def retry_block(self, rt, chk, loads):
        a = self.a
        a.tail += [f"{rt}:", f"  s_add_u32 s{sRetry}, s{sRetry}, 1", f"  s_cmp_gt_u32 s{sRetry}, {self.c.get('spin', 200000)}",
                   "  s_cbranch_scc1 L_end"]
        if self.c.get("sleep", 1): a.tail += [f"  s_sleep {self.c.get('sleep', 1)}"]
        a.tail += ["  " + t for t in loads] + ["  s_waitcnt vmcnt(0)", f"  s_branch {chk}"]
    def setup(self):
        a = self.a; I = a.I
        I(f"s_cmp_ge_u32 s{sWG}, 256\ns_cbranch_scc1 L_end")
        I(f"s_load_dwordx16 s[32:47], s[0:1], 0\ns_load_dwordx8 s[48:55], s[0:1], 64\ns_load_dwordx2 s[56:57], s[0:1], 96")
        if self.c.get("diag"): I(f"s_memrealtime {sp(sST)}")
        I(f"v_lshrrev_b32 v8, 6, v0\nv_and_b32 v0, 63, v0\nv_readfirstlane_b32 s{sWave}, v8")
        I(f"s_and_b32 s{sT0}, s{sWG}, 7\ns_lshl_b32 s{sT0}, s{sT0}, 2\ns_lshr_b32 s{sT1}, s{sWG}, 3\ns_and_b32 s{sT1}, s{sT1}, 3\ns_add_u32 s{sH}, s{sT0}, s{sT1}\ns_lshr_b32 s{sS}, s{sWG}, 5")
        I(f"v_mul_u32_u24 v8, 43, v0\nv_lshrrev_b32 v8, 10, v8\nv_mul_u32_u24 v9, 24, v8\nv_sub_u32 v9, v0, v9\nv_mul_u32_u24 v8, 0x3000, v8\nv_lshl_add_u32 v{vWq0}, v9, 4, v8")
        I(f"v_add_u32 v10, 60, v0\nv_mul_u32_u24 v8, 43, v10\nv_lshrrev_b32 v8, 10, v8\nv_mul_u32_u24 v9, 24, v8\nv_sub_u32 v9, v10, v9\nv_mul_u32_u24 v8, 0x3000, v8\nv_lshl_add_u32 v{vWq1}, v9, 4, v8")
        I(f"s_mul_i32 s{sT0}, s{sS}, {80 * 12288}\ns_mul_i32 s{sT1}, s{sWave}, {20 * 12288}\ns_add_u32 s{sT0}, s{sT0}, s{sT1}\ns_mul_i32 s{sT1}, s{sH}, 384\ns_add_u32 s{sWqRow}, s{sT0}, s{sT1}")
        I(f"s_mul_i32 s{sT0}, s{sH}, {192 * 1280}\ns_mul_i32 s{sT1}, s{sWave}, {48 * 1280}\ns_add_u32 s{sT0}, s{sT0}, s{sT1}\ns_mul_i32 s{sT1}, s{sS}, 160\ns_add_u32 s{sWoRow}, s{sT0}, s{sT1}")
        I(f"s_mul_i32 s{sLdsW}, s{sWave}, 7680\ns_mov_b32 s{m60}, -1\ns_mov_b32 s{m60+1}, 0x0fffffff\ns_mov_b32 s{WT+3}, 0x20000\ns_mov_b32 s{sRetry}, 0")
        I(f"v_and_b32 v8, 15, v0\nv_lshrrev_b32 v9, 4, v0")
        I(f"v_lshrrev_b32 v10, 1, v8\nv_mul_u32_u24 v10, 384, v10\nv_and_b32 v11, 1, v8\nv_lshl_add_u32 v11, v9, 1, v11\nv_lshl_add_u32 v{vKoff}, v11, 4, v10")
        I(f"v_mul_u32_u24 v10, 768, v9\nv_lshl_add_u32 v{vVoff}, v8, 4, v10")
        a.wait(lg=0)
        if self.c.get("diag"): I(f"v_mov_b32 v{vStamp}, 0\nv_writelane_b32 v{vStamp}, s{sST}, 0"); self.nstamp = 1
        self.stream(8, paced=False)
        I(f"s_mul_i32 s{sT0}, s{sH}, {HSTR}\ns_mul_i32 s{sT1}, s{sS}, {128 * 384}\ns_add_u32 s{sT1}, s{sT1}, s{sT0}\ns_mul_i32 s{sT2}, s{sWave}, {32 * 384}\ns_add_u32 s{sT1}, s{sT1}, s{sT2}\ns_add_u32 s{sT1}, s{sT1}, {3072 * 384}")
        for srd, p in ((KA, pKA), (VA, pVA)):
            I(f"s_add_u32 s{srd}, s{p}, s{sT1}\ns_addc_u32 s{srd+1}, s{p+1}, 0\ns_sub_u32 s{srd+2}, {KV_BYTES}, s{sT1}\ns_mov_b32 s{srd+3}, 0x20000")
        I(f"s_mul_i32 s{sT1}, s{sS}, {512 * 384}\ns_add_u32 s{sT1}, s{sT1}, s{sT0}\ns_mul_i32 s{sT2}, s{sWave}, {128 * 384}\ns_add_u32 s{sT1}, s{sT1}, s{sT2}")
        for srd, p in ((KB, pKB), (VB, pVB)):
            I(f"s_add_u32 s{srd}, s{p}, s{sT1}\ns_addc_u32 s{srd+1}, s{p+1}, 0\ns_sub_u32 s{srd+2}, {KV_BYTES}, s{sT1}\ns_mov_b32 s{srd+3}, 0x20000")
        I(f"s_mul_i32 s{sLdsVS}, s{sWave}, 6144\ns_add_u32 s{sLdsVS}, s{sLdsVS}, {VS}")
        I(f"s_mov_b32 s{XO}, s{pX}\ns_mov_b32 s{XO+1}, s{pX+1}\ns_mov_b32 s{XO+2}, 2560\ns_mov_b32 s{XO+3}, 0x20000\ns_mul_i32 s{sT0}, s{sS}, 160")
        I(f"v_lshlrev_b32 v7, 2, v0\nv_min_u32 v7, 156, v7")
        I(f"buffer_load_dword v12, v7, {s4(XO)}, s{sT0} offen\nbuffer_load_dword v13, v7, {s4(XO)}, s{sT0} offen offset:1280")
        I(f"s_mov_b32 s{WS}, s{pWS}\ns_mov_b32 s{WS+1}, s{pWS+1}\ns_mov_b32 s{WS+2}, {WS_BYTES}\ns_mov_b32 s{WS+3}, 0x20000")
        I(f"s_mul_i32 s{sH1grp}, s{sH}, {H1_H}\ns_mul_i32 s{sT0}, s{sS}, {H1_S}\ns_add_u32 s{sH1own}, s{sH1grp}, s{sT0}")
        I(f"s_mul_i32 s{sH2grp}, s{sH}, {H2_H}\ns_add_u32 s{sH2grp}, s{sH2grp}, {H2}\ns_mul_i32 s{sT0}, s{sS}, {H2_S}\ns_add_u32 s{sH2own}, s{sH2grp}, s{sT0}")
        I(f"s_mul_i32 s{sH3grp}, s{sS}, {H3_S}\ns_add_u32 s{sH3grp}, s{sH3grp}, {H3}\ns_mul_i32 s{sT0}, s{sH}, {H3_H}\ns_add_u32 s{sH3own}, s{sH3grp}, s{sT0}")
        I("v_mov_b32 v16, -1\nv_mov_b32 v17, -1\nv_mov_b32 v18, -1\nv_mov_b32 v19, -1\nv_lshlrev_b32 v14, 4, v0")
        for j in range(2):
            I(f"s_lshl_b32 s{sT2}, s{sWave}, 1\ns_add_u32 s{sT2}, s{sT2}, {j}")
            I(f"s_mul_i32 s{sT0}, s{sT2}, {H1_I}\ns_add_u32 s{sT0}, s{sT0}, s{sH1own}")
            I(f"buffer_store_dwordx4 v[16:19], v14, {s4(WS)}, s{sT0} offen sc1", tag="clr")
            I(f"s_mul_i32 s{sT0}, s{sT2}, {H2_I}\ns_add_u32 s{sT0}, s{sT0}, s{sH2own}\ns_mul_i32 s{sT1}, s{sT2}, {H3_I}\ns_add_u32 s{sT1}, s{sT1}, s{sH3own}\ns_sub_u32 s{sT1}, s{sT1}, 512")
            I(f"v_mov_b32 v15, s{sT0}\nv_mov_b32 v20, s{sT1}\nv_cmp_lt_u32 vcc, 31, v0\nv_cndmask_b32 v15, v15, v20, vcc\nv_add_u32 v15, v15, v14")
            I(f"s_mov_b32 exec_lo, 0x0fffffff\ns_mov_b32 exec_hi, 0x000fffff")
            I(f"buffer_store_dwordx4 v[16:19], v15, {s4(WS)}, 0 offen sc1", tag="clr")
            I("s_mov_b64 exec, -1")
        I(f"s_and_b32 s{sT2}, s{sWave}, 1\ns_mul_i32 s{sT0}, s{sT2}, {H1_I}\ns_add_u32 s{sT0}, s{sT0}, s{sH1own}")
        I(f"buffer_store_dwordx4 v[16:19], v14, {s4(WS)}, s{sT0} offen offset:1024 sc1", tag="clr")
        self.stream(3, paced=False)
        I(f"v_mul_u32_u24 v10, 26, v0\nv_lshrrev_b32 v10, 8, v10\nv_mul_u32_u24 v11, 10, v10\nv_sub_u32 v11, v0, v11\nv_mul_u32_u24 v10, 1280, v10\nv_lshl_add_u32 v{vWo}, v11, 4, v10")
        I("v_and_b32 v10, 1, v0\nv_cmp_eq_u32 vcc, 1, v10\nv_mov_b32 v11, 0xffff\nv_mov_b32 v20, 0xffff0000\nv_cndmask_b32 v11, v11, v20, vcc\nv_bfe_u32 v10, v0, 1, 2")
        for j in range(4): I(f"v_cmp_eq_u32 vcc, {j}, v10\nv_cndmask_b32 v{vMask+j}, 0, v11, vcc")
        for m, lo, hi in ((mODD, 0xaaaaaaaa, 0xaaaaaaaa), (mHI8, 0xff00ff00, 0xff00ff00), (mHI32, 0, 0xffffffff), (mRG1, 0xffff0000, 0), (mRG2, 0, 0xffff), (mRG3, 0, 0xffff0000), (m40, 0xffffffff, 0xff)):
            I(f"s_mov_b32 s{m}, {lo:#x}\ns_mov_b32 s{m+1}, {hi:#x}")
        I(f"s_mov_b32 s{mWOST}, 0xffff\ns_cmp_eq_u32 s{sWave}, 0\ns_cselect_b32 s{mWOST+1}, 0xffff, 0")
        I(f"s_getreg_b32 s{sXcc}, hwreg(HW_REG_XCC_ID, 0, 4)\ns_add_u32 s{sXcc}, s{sXcc}, 1")
        I(f"s_mul_i32 s{sT0}, s{sWave}, 160\ns_add_u32 s{sT0}, s{sT0}, {XROW}\nv_add_u32 v10, s{sT0}, v7\nv_add_u32 v11, {ONES}, v7\nv_mov_b32 v20, 0x3f803f80")
        I("ds_write_b32 v11, v20\nds_write_b32 v10, v12\nds_write_b32 v10, v13 offset:640")
        I(f"s_mov_b32 s{XO}, s{pOUT}\ns_mov_b32 s{XO+1}, s{pOUT+1}")
    def arrive(self):
        a = self.a; I = a.I
        I(f"s_cmp_lg_u32 s{sWave}, 0"); a.skip_begin("s_cbranch_scc1")
        I(f"s_and_b32 s{sT0}, s{sWG}, 3\ns_lshl_b32 s{sT0}, s{sT0}, 3\ns_lshl_b32 s{sT0}, s{sXcc}, s{sT0}\ns_and_b32 s{sT1}, s{sWG}, 0xfc")
        I(f"v_mov_b32 v8, s{sT1}\nv_mov_b32 v9, s{sT0}\ns_mov_b64 exec, 1")
        I(f"global_atomic_add v8, v9, {sp(pDBG)} sc1\ns_mov_b64 exec, -1")
        a.skip_end()
    def handshake(self, between):
        a = self.a; I = a.I
        I("v_lshlrev_b32 v7, 2, v0")
        ld = f"global_load_dword v8, v7, {sp(pDBG)} sc1"
        I(ld); last = len(a.vm.ent) - 1
        between()
        n = a.vm.need(last)
        if n is not None: a.wait(vm=n)
        chk = a.label("Lc"); rt = a.label("Lr")
        a.raw(f"{chk}:")
        I("v_subrev_u32 v9, 0x01010101, v8\nv_not_b32 v10, v8\nv_and_b32 v9, v9, v10\nv_and_b32 v9, 0x80808080, v9\nv_cmp_ne_u32 vcc, 0, v9")
        I(f"s_cbranch_vccnz {rt}")
        self.retry_block(rt, chk, [ld])
        I(f"s_and_b32 s{sT0}, s{sWG}, 3\ns_lshl_b32 s{sT0}, s{sT0}, 3\nv_lshrrev_b32 v8, s{sT0}, v8\nv_and_b32 v8, 0xff, v8")
        I(f"s_bfe_u32 s{sT0}, s{sWG}, 0x30002\nv_and_b32 v9, 7, v0\nv_cmp_eq_u32 {sp(sT1)}, s{sT0}, v9\nv_cmp_ne_u32 vcc, s{sXcc}, v8")
        I(f"s_and_b64 vcc, vcc, {sp(sT1)}\ns_cmp_eq_u64 vcc, 0\ns_cselect_b32 s{sLocal}, 1, 0")
    WQB = [(24, 28, 32), (34, 38, 42), (44, 48, 52)]
    def wq_pre(self, ty):
        a = self.a; I = a.I
        I(f"v_bfe_u32 v7, v0, 2, 2\nv_lshrrev_b32 v54, 4, v0\nv_lshl_add_u32 v8, v54, 3, v7\nv_lshl_add_u32 v7, v54, 2, v7")
        I(f"v_and_b32 v54, 3, v0\nv_lshlrev_b32 v54, 3, v54\ns_mul_i32 s{sT0}, s{sWave}, 96\ns_add_u32 s{sT0}, s{sT0}, {WQ[ty]}\nv_add_u32 v54, s{sT0}, v54")
        I(f"s_movk_i32 s{sT0}, 384\nv_mad_u32_u24 v8, v8, s{sT0}, v54\nv_mad_u32_u24 v7, v7, s{sT0}, v54")
        for T, (b0, b1, b2) in enumerate(self.WQB):
            for t, r in ((0, b0), (1, b1)):
                I(f"ds_read_b64_tr_b16 {v2(r)}, v8 offset:{12288 * t + 32 * T}\nds_read_b64_tr_b16 {v2(r+2)}, v8 offset:{12288 * t + 1536 + 32 * T}")
            I(f"ds_read_b64_tr_b16 {v2(b2)}, v7 offset:{24576 + 32 * T}")
    def wq_main(self, b, L, local_ok=True):
        a = self.a; I = a.I; inst = 4 * b + L; needC = inst < 2
        I(f"s_mul_i32 s{sT0}, s{sWave}, 160\ns_add_u32 s{sT0}, s{sT0}, {XROW + 640 * b}\nv_mov_b32 v7, s{sT0}\nv_mov_b32 v54, {ONES}")
        I(f"v_cndmask_b32 v7, v7, v54, {sp(mODD)}\nv_lshrrev_b32 v54, 4, v0\nv_lshl_add_u32 v22, v54, 4, v7\nv_lshl_add_u32 v23, v54, 3, v7")
        I("ds_read_b128 v[12:15], v22\nds_read_b128 v[16:19], v22 offset:64\nds_read_b64 v[20:21], v23 offset:128")
        I(f"s_lshl_b32 s{sT0}, s{sWave}, 8\nv_lshl_add_u32 v7, v0, 2, s{sT0}\ns_add_u32 s{sOffP}, s{sH1own}, {inst * H1_I}")
        D = [8, 24, 28]
        for T, (b0, b1, b2) in enumerate(self.WQB):
            I(f"v_mfma_f32_16x16x32_bf16 {v4(D[T])}, v[12:15], {v4(b0)}, 0")
            I(f"v_mfma_f32_16x16x32_bf16 {v4(D[T])}, v[16:19], {v4(b1)}, {v4(D[T])}")
        I("v_mfma_f32_16x16x32_bf16 v[34:37], v[12:15], v[12:15], 0\nv_mfma_f32_16x16x32_bf16 v[34:37], v[16:19], v[16:19], v[34:37]")
        for T, (b0, b1, b2) in enumerate(self.WQB):
            I(f"v_mfma_f32_16x16x16_bf16 {v4(D[T])}, v[20:21], {v2(b2)}, {v4(D[T])}")
        I("v_mfma_f32_16x16x16_bf16 v[34:37], v[20:21], v[20:21], v[34:37]")
        for r in range(2 if needC else 1):
            I(f"v_cndmask_b32 v{22+r}, v{8+r}, v{24+r}, {sp(mRG1)}\nv_cndmask_b32 v{22+r}, v{22+r}, v{28+r}, {sp(mRG2)}\nv_cndmask_b32 v{22+r}, v{22+r}, v34, {sp(mRG3)}\nv_min_u32 v{22+r}, -2, v{22+r}")
            self.publish(f"buffer_store_dword v{22+r}, v7, {s4(WS)}, s{sOffP} offen offset:{1024 * r} {{pol}}", local_ok)
    def qg(self, b, L, between=None):
        a = self.a; I = a.I; inst = 4 * b + L; needC = inst < 2; ty = L & 1
        I(f"v_and_b32 v8, 15, v0\nv_lshrrev_b32 v9, 4, v0\nv_lshlrev_b32 v7, 11, v9\nv_lshl_add_u32 v7, v8, 4, v7\ns_lshl_b32 s{sT0}, s{sWave}, 8\nv_add_u32 v7, s{sT0}, v7")
        I(f"v_add_u32 v11, {4 * H1_S}, v7\ns_add_u32 s{sOffG}, s{sH1grp}, {inst * H1_I}")
        loads = [f"buffer_load_dwordx4 v[12:15], v7, {s4(WS)}, s{sOffG} offen sc1", f"buffer_load_dwordx4 v[16:19], v11, {s4(WS)}, s{sOffG} offen sc1"]
        if needC: loads += [f"buffer_load_dwordx4 v[20:23], v7, {s4(WS)}, s{sOffG} offen offset:1024 sc1", f"buffer_load_dwordx4 v[24:27], v11, {s4(WS)}, s{sOffG} offen offset:1024 sc1"]
        def pre():
            I(f"v_and_b32 v10, 1, v9\nv_lshlrev_b32 v10, 1, v10\nv_lshrrev_b32 v28, 1, v9\nv_or_b32 v10, v10, v28\nv_lshl_add_u32 v10, v8, 2, v10")
            I(f"s_mul_i32 s{sT0}, s{sWave}, 96\ns_add_u32 s{sT0}, s{sT0}, {QB + 384 * b}\nv_lshl_add_u32 v10, v10, 1, s{sT0}")
            I(f"s_lshl_b32 s{sT0}, s{sWave}, 8\ns_add_u32 s{sT0}, s{sT0}, {CT + 1024 * ty}\nv_lshl_add_u32 v29, v0, 2, s{sT0}")
            if not needC: I("ds_read_b32 v20, v29")
            if between: between()
        self.gather(loads, range(12, 28 if needC else 20), 28, between=pre)
        def red(r):
            I(f"v_pk_add_f32 {v2(r)}, {v2(r)}, {v2(r+4)}\nv_pk_add_f32 {v2(r+2)}, {v2(r+2)}, {v2(r+6)}")
            I(f"v_permlane32_swap_b32 v{r}, v{r+1}\nv_permlane32_swap_b32 v{r+2}, v{r+3}\nv_add_f32 v{r}, v{r}, v{r+1}\nv_add_f32 v{r+2}, v{r+2}, v{r+3}")
            I(f"v_permlane16_swap_b32 v{r}, v{r+2}\nv_add_f32 v{r}, v{r}, v{r+2}")
        red(12)
        I(f"v_readlane_b32 s{sT0}, v12, 12\nv_readlane_b32 s{sT1}, v12, 44")
        if needC: red(20); I("ds_write_b32 v29, v20")
        I(f"v_mov_b32 v14, {f32(1 / 640)}\nv_mul_f32 v15, s{sT1}, v14\nv_mul_f32 v14, s{sT0}, v14\nv_fma_f32 v14, -v15, v15, v14\nv_max_f32 v14, 0, v14\nv_add_f32 v14, {f32(1e-5)}, v14\nv_rsq_f32 v14, v14")
        I(f"v_fma_f32 v12, -v15, v20, v12\nv_mul_f32 v14, {f32(SCALE)}, v14\nv_mul_f32 v12, v12, v14\nv_cvt_pk_bf16_f32 v12, v12, v12")
        I("s_mov_b32 exec_lo, 0x0fff0fff\ns_mov_b32 exec_hi, 0x0fff0fff\nds_write_b16 v10, v12\ns_mov_b64 exec, -1")
        a.barrier()
    def att(self, b, L, hook1=None, hook2=None, pre_bar=None, guard=False):
        a = self.a; I = a.I; ty = L & 1; G = 16 if ty else 4; Kn = "KB" if ty else "KA"; Vn = "VB" if ty else "VA"
        vM, vL = 52, 53
        I(f"v_and_b32 v7, 1, v0\nv_lshrrev_b32 v8, 4, v0\nv_lshlrev_b32 v8, 5, v8\nv_lshl_add_u32 v7, v7, 4, v8\nv_add_u32 v7, {QB + 384 * b}, v7")
        for t in range(3): I(f"ds_read_b128 {v4(vQ + 4 * t)}, v7 offset:{128 * t}")
        def lds_v(g):
            a.wait_tag(("VS", b, g))
            I(f"v_lshl_add_u32 v54, v0, 4, s{sLdsVS}")
            for c in range(3): I(f"ds_read_b128 {v4(vU + 4 + 4 * c)}, v54 offset:{(g - 2) * 3072 + 1024 * c}")
        early = (not ty) and L == 2
        if early: lds_v(2)
        def D(g): return vACC + 4 * (g % 3)
        for g in range(G + 3):
            K = SLOT[(Kn, g)] if g < G else None
            if K: self.check_slot(Kn, b, g)
            e = g - 2
            if K: I(f"v_mfma_f32_16x16x32_bf16 {v4(D(g))}, {K[0]}, {v4(vQ)}, 0")
            if 0 <= e < G: I(f"v_cndmask_b32 v8, v{D(e)}, v{D(e)+2}, {sp(mHI8)}")
            if K: I(f"v_mfma_f32_16x16x32_bf16 {v4(D(g))}, {K[1]}, {v4(vQ+4)}, {v4(D(g))}")
            if 0 <= e < G: I(f"v_cndmask_b32 v9, v{D(e)+1}, v{D(e)+3}, {sp(mHI8)}")
            if 0 <= e - 1 < G: I(f"v_add_f32_dpp v{vU+e-1}, v10, v10 quad_perm:[1,0,3,2] row_mask:0xf bank_mask:0xf")
            if K: I(f"v_mfma_f32_16x16x32_bf16 {v4(D(g))}, {K[2]}, {v4(vQ+8)}, {v4(D(g))}")
            if 0 <= e < G: I(f"v_cndmask_b32 v10, v8, v9, {sp(mODD)}")
            if hook1 and g < G: hook1(g)
        I(f"v_max3_f32 v{vM}, v{vU}, v{vU+1}, v{vU+2}")
        r = 3
        while r + 1 < G: I(f"v_max3_f32 v{vM}, v{vM}, v{vU+r}, v{vU+r+1}"); r += 2
        if r < G: I(f"v_max_f32 v{vM}, v{vM}, v{vU+r}")
        def allred(v, op):
            I(f"{op}_dpp v{v}, v{v}, v{v} row_ror:8 row_mask:0xf bank_mask:0xf")
            I(f"v_mov_b32 v8, v{v}\nv_permlane16_swap_b32 v{v}, v8\n{op} v{v}, v{v}, v8\nv_mov_b32 v8, v{v}\nv_permlane32_swap_b32 v{v}, v8\n{op} v{v}, v{v}, v8")
        allred(vM, "v_max_f32")
        order = list(range(G)) if ty else [2, 0, 1, 3]
        if not ty and not early: order = [0, 1, 2, 3]
        def prob(g, first):
            I(f"v_sub_f32 v{vU+g}, v{vU+g}, v{vM}\nv_exp_f32 v{vU+g}, v{vU+g}")
        def prob2(g, first):
            I(f"v_mov_b32 v{vL}, v{vU+g}" if first else f"v_add_f32 v{vL}, v{vL}, v{vU+g}")
            I(f"v_cvt_pk_bf16_f32 v{vU+g}, v{vU+g}, v{vU+g}")
        def diag(i, j): I(f"v_and_b32 v{vQ + 4 * (i & 1) + j}, v{vU + order[i]}, v{vMask + j}")
        prob(order[0], True); prob2(order[0], True)
        for j in range(4): diag(0, j)
        prob(order[1], False); prob2(order[1], False)
        for i, g in enumerate(order):
            self.check_slot(Vn, b, g)
            if (Vn, g) in SLOT: V = SLOT[(Vn, g)]
            else:
                if not (early and g == 2) and not (early and g == 3): lds_v(g)
                V = [v4(vU + 4 + 4 * c) for c in range(3)]
            A = v4(vQ + 4 * (i & 1))
            nx = i + 1 < G; nx2 = i + 2 < G
            for c in range(3):
                acc = v4(vACC + 4 * c)
                I(f"v_mfma_f32_16x16x32_bf16 {acc}, {A}, {V[c]}, {acc if i else 0}")
                if c == 0:
                    if nx: diag(i + 1, 0); diag(i + 1, 1)
                    if nx2: prob(order[i + 2], False)
                if c == 1:
                    if nx: diag(i + 1, 2); diag(i + 1, 3)
                if c == 2:
                    if nx2: prob2(order[i + 2], False)
            if early and g == 2: lds_v(3)
            if i == G - 2: allred(vL, "v_add_f32")
            if hook2: hook2(i)
        if guard: a.barrier()
        I(f"v_and_b32 v7, 15, v0\nv_lshlrev_b32 v7, 5, v7\nv_and_b32 v8, 16, v0\nv_add_u32 v7, v7, v8\ns_mul_i32 s{sT0}, s{sWave}, 1536\ns_add_u32 s{sT0}, s{sT0}, {ATT}\nv_add_u32 v7, s{sT0}, v7")
        I(f"s_lshl_b32 s{sT0}, s{sWave}, 2\ns_add_u32 s{sT0}, s{sT0}, {STAT}\nv_mov_b32 v8, s{sT0}\nds_write_b32 v8, v{vM}\nds_write_b32 v8, v{vL} offset:16")
        for c, (lo, hi) in enumerate(((0xffffffff, 0), (0x00ff00ff, 0xff00ff00), (0, 0xffffffff))):
            I(f"s_mov_b32 exec_lo, {lo:#x}\ns_mov_b32 exec_hi, {hi:#x}\nds_write_b128 v7, {v4(vACC + 4 * c)} offset:{512 * c}")
        I("s_mov_b64 exec, -1")
        if pre_bar: pre_bar()
        a.barrier()
        self.combine(b, L)
    def combine(self, b, L):
        a = self.a; I = a.I; inst = 4 * b + L
        I(f"s_cmp_lg_u32 s{sWave}, 0"); a.skip_begin("s_cbranch_scc1")
        I(f"v_mov_b32 v8, {STAT}\nv_lshlrev_b32 v7, 4, v0\nv_add_u32 v7, {ATT}, v7")
        I("ds_read_b128 v[44:47], v8\nds_read_b128 v[48:51], v8 offset:16")
        for i in range(8): I(f"ds_read_b128 {v4(12 + 4 * i)}, v7 offset:{768 * i}")
        I(f"v_lshlrev_b32 v7, 3, v0\ns_add_u32 s{sOffP}, s{sH2own}, {inst * H2_I}")
        I("v_max3_f32 v52, v44, v45, v46\nv_max_f32 v52, v52, v47")
        for w in range(4): I(f"v_sub_f32 v{44+w}, v{44+w}, v52")
        for w in range(4): I(f"v_exp_f32 v{44+w}, v{44+w}")
        I("v_mul_f32 v53, v44, v48\nv_fmac_f32 v53, v45, v49\nv_fmac_f32 v53, v46, v50\nv_fmac_f32 v53, v47, v51")
        for w in range(4):
            r = 12 + 8 * w
            I(f"v_pk_add_f32 {v2(r)}, {v2(r)}, {v2(r+4)}\nv_pk_add_f32 {v2(r+2)}, {v2(r+2)}, {v2(r+6)}")
            f = v2(44 + (w & ~1)); sel = f"op_sel:[0,{w & 1}{{x}}] op_sel_hi:[1,{w & 1}{{y}}]"
            for k in range(2):
                if w == 0: I(f"v_pk_mul_f32 {v2(8 + 2 * k)}, {v2(r + 2 * k)}, {f} " + sel.format(x="", y=""))
                else: I(f"v_pk_fma_f32 {v2(8 + 2 * k)}, {v2(r + 2 * k)}, {f}, {v2(8 + 2 * k)} " + sel.format(x=",0", y=",1"))
        I("v_cvt_pk_bf16_f32 v8, v8, v9\nv_cvt_pk_bf16_f32 v9, v10, v11")
        I(f"v_cndmask_b32 v8, v8, v52, {sp(mRG3)}\nv_cndmask_b32 v9, v9, v53, {sp(mRG3)}\nv_min_u32 v8, -2, v8\nv_min_u32 v9, -2, v9")
        I("s_mov_b32 exec_hi, 0x00ffffff")
        self.publish(f"buffer_store_dwordx2 v[8:9], v7, {s4(WS)}, s{sOffP} offen {{pol}}", True)
        I("s_mov_b64 exec, -1")
        a.skip_end()
    def wo(self, b, L, between=None):
        a = self.a; I = a.I; inst = 4 * b + L; ty = L & 1
        I(f"v_and_b32 v8, 7, v0\nv_lshlrev_b32 v7, 9, v8\nv_bfe_u32 v9, v0, 3, 1\nv_mul_u32_u24 v9, 192, v9\nv_add_u32 v7, v7, v9\nv_lshrrev_b32 v9, 4, v0\nv_lshl_add_u32 v7, v9, 4, v7")
        I(f"v_lshl_add_u32 v8, v9, 2, v8\nv_and_b32 v8, 7, v8\nv_lshlrev_b32 v8, 9, v8\ns_add_u32 s{sOffG}, s{sH2grp}, {inst * H2_I}")
        loads = [f"buffer_load_dwordx2 v[52:53], v8, {s4(WS)}, s{sOffG} offen offset:384 sc1"]
        loads += [f"buffer_load_dwordx4 {v4(12 + 4 * t)}, v7, {s4(WS)}, s{sOffG} offen offset:{64 * t} sc1" for t in range(3)]
        def rd(kk, reg, off):
            I(f"ds_read_b64_tr_b16 {v2(reg)}, v54 offset:{5120 * kk + off}\nds_read_b64_tr_b16 {v2(reg + 2)}, v54 offset:{5120 * kk + 640 + off}")
        def pre():
            I(f"v_bfe_u32 v10, v0, 2, 2\nv_lshl_add_u32 v10, v9, 3, v10\nv_mul_u32_u24 v10, 160, v10\nv_and_b32 v11, 3, v0\nv_lshl_add_u32 v10, v11, 3, v10")
            I(f"s_lshl_b32 s{sT0}, s{sWave}, 5\ns_add_u32 s{sT0}, s{sT0}, {WO[ty]}\nv_add_u32 v54, s{sT0}, v10")
            for kk in range(6): rd(kk, 24 + 4 * kk, 0)
            I(f"v_add_u32 v54, {WO[ty] + 128}, v10")
            if between: between()
        self.gather(loads, [52, 53] + list(range(12, 24)), 9, between=pre)
        def tile(lo, hi, B):
            for i, t in enumerate(B[0]): I(f"v_mfma_f32_16x16x32_bf16 {v4(lo)}, {v4(12 + 4 * t)}, {v4(24 + 4 * t)}, {v4(lo) if i else 0}")
            for i, t in enumerate(B[1]): I(f"v_mfma_f32_16x16x32_bf16 {v4(hi)}, {v4(12 + 4 * t)}, {v4(36 + 4 * t)}, {v4(hi) if i else 0}")
        def fold(lo, hi, out):
            for r in (lo, hi):
                I(f"v_pk_mul_f32 {v2(r)}, {v2(r)}, v[8:9]\nv_pk_fma_f32 {v2(r)}, {v2(r + 2)}, v[10:11], {v2(r)}\nv_add_f32 v{r}, v{r}, v{r + 1}")
            I(f"v_cndmask_b32 v{out}, v{lo}, v{hi}, {sp(mHI32)}")
        tile(48, 24, ((0, 1, 2), (0, 1, 2)))
        for kk in range(1, 6): rd(kk, 24 + 4 * kk, 0)
        I("v_max_f32_dpp v7, v52, v52 row_ror:4 row_mask:0xf bank_mask:0xf\nv_max_f32_dpp v7, v7, v7 row_ror:2 row_mask:0xf bank_mask:0xf\nv_max_f32_dpp v7, v7, v7 row_ror:1 row_mask:0xf bank_mask:0xf")
        I("v_sub_f32 v52, v52, v7\nv_exp_f32 v52, v52\nv_mul_f32 v53, v52, v53")
        I("v_add_f32_dpp v53, v53, v53 row_ror:4 row_mask:0xf bank_mask:0xf\nv_add_f32_dpp v53, v53, v53 row_ror:2 row_mask:0xf bank_mask:0xf\nv_add_f32_dpp v53, v53, v53 row_ror:1 row_mask:0xf bank_mask:0xf")
        I("v_rcp_f32 v53, v53\nv_mul_f32 v52, v52, v53")
        for r in range(4): I(f"v_mov_b32_dpp v{8 + r}, v52 row_newbcast:{r} row_mask:0xf bank_mask:0xf")
        fold(48, 24, 52)
        rd(0, 24, 0)
        tile(48, 28, ((1, 2, 0), (0, 1, 2)))
        I(f"v_and_b32 v7, 15, v0\nv_lshlrev_b32 v7, 2, v7\ns_lshl_b32 s{sT0}, s{sWave}, 6\nv_mov_b32 v54, s{sT0}")
        I(f"v_mov_b32 v53, 256\nv_cndmask_b32 v54, v54, v53, {sp(mHI32)}\nv_add_u32 v7, v7, v54\ns_add_u32 s{sOffP}, s{sH3own}, {inst * H3_I}")
        fold(48, 28, 53)
        I("v_permlane32_swap_b32 v52, v53\nv_add_f32 v52, v52, v53\nv_mov_b32 v53, v52\nv_permlane16_swap_b32 v52, v53\nv_add_f32 v52, v52, v53\nv_min_u32 v52, -2, v52")
        I(f"s_mov_b64 exec, {sp(mWOST)}")
        self.publish(f"buffer_store_dword v52, v7, {s4(WS)}, s{sOffP} offen {{pol}}", False)
        I("s_mov_b64 exec, -1")
    def yg(self, b, L, between=None, pre_bar=None):
        a = self.a; I = a.I; inst = 4 * b + L; Yb = Y + YSZ * b
        I(f"v_mul_u32_u24 v8, 13, v0\nv_lshrrev_b32 v8, 8, v8\nv_mul_u32_u24 v9, 20, v8\nv_sub_u32 v9, v0, v9\nv_mul_u32_u24 v7, {4 * H3_H}, v8\nv_lshl_add_u32 v7, v9, 4, v7")
        I(f"s_mul_i32 s{sT0}, s{sWave}, 320\ns_add_u32 s{sT0}, s{sT0}, {Yb}\nv_add_u32 v7, s{sT0}, v7")
        I(f"s_mul_i32 s{sT0}, s{sWave}, {8 * H3_H - 320}\ns_add_u32 s{sOffG}, s{sH3grp}, s{sT0}\ns_add_u32 s{sOffG}, s{sOffG}, {inst * H3_I - Yb & 0xffffffff}")
        loads = [f"buffer_load_dwordx4 {v4(8 + 4 * j)}, v7, {s4(WS)}, s{sOffG} offen offset:{H3_H * j} sc1" for j in range(4)]
        self.gather(loads, range(8, 24), 54, between=between, emask=sp(m40))
        for k in (0, 2):
            I(f"v_pk_add_f32 {v2(8 + k)}, {v2(8 + k)}, {v2(12 + k)}\nv_pk_add_f32 {v2(16 + k)}, {v2(16 + k)}, {v2(20 + k)}\nv_pk_add_f32 {v2(8 + k)}, {v2(8 + k)}, {v2(16 + k)}")
        I("ds_write_b128 v7, v[8:11]")
        I(f"s_mul_i32 s{sT0}, s{sWave}, 160\ns_add_u32 s{sT0}, s{sT0}, {XROW + 640 * b}\nv_lshl_add_u32 v7, v0, 2, s{sT0}\nv_lshlrev_b32 v22, 3, v0\nv_add_u32 v22, {Yb}, v22")
        I("ds_read_b32 v54, v7")
        I("s_mov_b64 exec, -1")
        if pre_bar: pre_bar()
        a.barrier()
        I("s_mov_b32 exec_hi, 0xff")
        for i in range(8): I(f"ds_read_b64 {v2(8 + 2 * i)}, v22 offset:{320 * (i >> 1) + 4 * H3_H * (i & 1)}")
        for st in (1, 2, 4):
            for i in range(0, 8, 2 * st): I(f"v_pk_add_f32 {v2(8 + 2 * i)}, {v2(8 + 2 * i)}, {v2(8 + 2 * (i + st))}")
        I(f"v_cvt_pk_bf16_f32 v8, v8, v9\nv_lshlrev_b32 v10, 16, v54\nv_and_b32 v11, 0xffff0000, v54\nv_and_b32 v9, 0xffff0000, v8\nv_lshlrev_b32 v8, 16, v8")
        I("v_pk_add_f32 v[8:9], v[8:9], v[10:11]")
        if L == 3 and self.c.get("delta"): I(f"v_add_f32 v8, {f32(self.c['delta'])}, v8\nv_add_f32 v9, {f32(self.c['delta'])}, v9")
        I("v_cvt_pk_bf16_f32 v8, v8, v9")
        if L < 3: I("ds_write_b32 v7, v8")
        else:
            I(f"s_or_b32 s{sT0}, s{sWave}, s{sH}\ns_cmp_lg_u32 s{sT0}, 0"); a.skip_begin("s_cbranch_scc1")
            I(f"s_mul_i32 s{sT0}, s{sS}, 160\nv_lshlrev_b32 v7, 2, v0")
            I(f"buffer_store_dword v8, v7, {s4(XO)}, s{sT0} offen offset:{1280 * b}")
            a.skip_end()
        I("s_mov_b64 exec, -1")
    def chain_idle(self, b, L, burst=(0, 0, 0)):
        a = self.a
        self.wo(b, L, between=lambda: self.stream(burst[0], paced=False))
        self.stamp()
        self.wq_pre((L + 1) & 1)
        a.wait_tag("pub")
        self.yg(b, L, between=lambda: self.stream(burst[1], paced=False))
        self.wq_main(b, L + 1)
        self.stamp()
        self.qg(b, L + 1, between=lambda: self.stream(burst[2], paced=False))
        self.stamp()
    def build(self):
        a = self.a; c = self.c; W = self.W
        self.off_val = None
        self.add_w("wqA", pWQA, "q", 0)
        for g in range(4): self.add_kv("KA", 0, g)
        for g in range(4): self.add_kv("VA", 0, g)
        self.add_w("woA", pWOA, "o", 0); self.add_w("wqB", pWQB, "q", 1)
        for g in range(16): self.add_kv("KB", 0, g)
        self.add_w("woB", pWOB, "o", 1)
        for g in range(16): self.add_kv("VB", 0, g)
        p1 = len(self.items)
        for g in range(4): self.add_kv("KA", 1, g)
        for g in range(4): self.add_kv("VA", 1, g)
        p2 = len(self.items)
        for g in range(16): self.add_kv("KB", 1, g)
        for g in range(16): self.add_kv("VB", 1, g)
        st = self.stream_to; S = lambda n: (lambda: self.stream(n))
        self.setup()
        P = c.get("P1", dict(arr=16, hs=20, qg0=30, wo=58, yg=82, qg1=106))
        st(P["arr"])
        a.wait_tag("wqA"); a.wait_tag("clr"); a.barrier()
        self.arrive()
        self.wq_pre(0); self.wq_main(0, 0, local_ok=False)
        self.wq_pre(0); self.wq_main(1, 0, local_ok=False)
        st(P["hs"]); self.handshake(S(W))
        st(P["qg0"]); self.qg(0, 0, between=S(W))
        self.stamp()
        self.att(0, 0, pre_bar=lambda: (st(self.index_after("woA")), a.wait_tag("woA")))
        self.stamp()
        self.qg(1, 0, between=S(W))
        st(P["wo"]); self.wo(0, 0, between=S(W))
        st(P["yg"]); self.yg(0, 0, between=S(W), pre_bar=lambda: a.wait_tag("wqB"))
        self.wq_pre(1); self.wq_main(0, 1)
        st(P["qg1"]); self.qg(0, 1, between=S(W))
        self.stamp()
        assert self.pos >= self.index_after("woB")
        vb0 = self.index_after("woB")
        self.att(0, 1, hook1=lambda g: self.stream(1) if g % 4 == 3 else None,
                 hook2=lambda i: st(min(p1, vb0 + 3 * (i + 2) + W - 3)), pre_bar=lambda: a.wait_tag("woB"))
        assert self.pos == p1
        self.stamp()
        self.chain_idle(0, 1)
        bu = c.get("burst", (6, 6, 6, 6))
        self.att(0, 2, hook2=lambda i: self.stream(bu[0], paced=False) if i == 0 else None)
        self.stamp()
        self.chain_idle(0, 2, burst=bu[1:])
        st(p2, paced=False)
        n0 = c.get("n0", 9)
        self.att(0, 3, hook1=lambda g: self.stream(3, paced=False) if 3 * g + 3 <= n0 else None,
                 hook2=lambda i: self.stream(1, paced=False) if i % 4 == 3 else None)
        self.stamp()
        P = c.get("P2", dict(wo=24, yg=46, qg=66))
        self.att(1, 0, guard=True, hook2=lambda i: self.stream(2))
        st(p2 + P["wo"]); self.wo(1, 0, between=S(W)); self.wo(0, 3, between=S(W))
        st(p2 + P["yg"]); self.yg(1, 0, between=S(W))
        self.wq_pre(1); self.wq_main(1, 1)
        self.yg(0, 3, between=S(W), pre_bar=None)
        st(p2 + P["qg"]); self.qg(1, 1, between=S(W))
        self.stamp()
        vb1 = p2 + 48
        self.att(1, 1, hook1=lambda g: self.stream(1) if g % 4 == 3 else None,
                 hook2=lambda i: st(min(len(self.items), vb1 + 3 * (i + 2) + W - 3)))
        assert self.pos == len(self.items)
        self.stamp()
        self.chain_idle(1, 1)
        self.att(1, 2)
        self.stamp()
        self.chain_idle(1, 2)
        self.att(1, 3)
        self.stamp()
        self.wo(1, 3)
        self.stamp()
        if not c.get("diag"): a.I(f"s_cmp_lg_u32 s{sH}, 0\ns_cbranch_scc1 L_end")
        a.wait_tag("pub")
        self.yg(1, 3)
        self.stamp()
        if c.get("diag"):
            a.I(f"v_writelane_b32 v{vStamp}, s{sRetry}, 62\nv_writelane_b32 v{vStamp}, s{sLocal}, 63")
            a.I(f"s_lshl_b32 s{sT0}, s{sWG}, 10\ns_lshl_b32 s{sT1}, s{sWave}, 8\ns_add_u32 s{sT0}, s{sT0}, s{sT1}\ns_add_u32 s{sT0}, s{sT0}, {DIAG}\nv_lshlrev_b32 v7, 2, v0")
            a.I(f"buffer_store_dword v{vStamp}, v7, {s4(WS)}, s{sT0} offen")
        a.raw("L_end:"); a.raw("  s_endpgm")
        body = a.text()
        return (HEAD + f"; @launch grid=(256,1,1) block=(256,1,1) lds={LDS_BYTES}\n"
                + f'.amdgcn_target "amdgcn-amd-amdhsa--gfx950"\n.text\n.globl {NAME}\n.p2align 8\n.type {NAME},@function\n{NAME}:\n'
                + body + f'.section .rodata,"a"\n.p2align 6\n.amdhsa_kernel {NAME}\n  .amdhsa_next_free_vgpr 512\n  .amdhsa_next_free_sgpr 102\n'
                + "  .amdhsa_accum_offset 256\n  .amdhsa_group_segment_fixed_size 0\n  .amdhsa_kernarg_size 104\n  .amdhsa_user_sgpr_count 2\n"
                + "  .amdhsa_user_sgpr_kernarg_segment_ptr 1\n  .amdhsa_system_sgpr_workgroup_id_x 1\n.end_amdhsa_kernel\n")

def generate(cfg): return Gen(cfg).build()
if __name__ == "__main__":
    cfg = eval(sys.argv[2]) if len(sys.argv) > 2 else {}
    open(sys.argv[1], "w").write(generate(cfg))
```

```python
import re

TRANS = ("v_exp_f32", "v_log_f32", "v_rcp_f32", "v_rsq_f32", "v_sqrt_f32", "v_sin_f32", "v_cos_f32")
REG_RE = re.compile(r"^(-?)(?:abs\()?([vas])(?:(\d+)|\[(\d+):(\d+)\])\)?$")

def regs_of(tok):
    tok = tok.strip()
    if tok in ("vcc",): return [("s", "vcc")]
    if tok in ("exec",): return [("s", "exec")]
    if tok == "m0": return [("s", "m0")]
    m = REG_RE.match(tok)
    if not m: return []
    k = m.group(2)
    if m.group(3) is not None: return [(k, int(m.group(3)))]
    return [(k, i) for i in range(int(m.group(4)), int(m.group(5)) + 1)]

class Inst:
    def __init__(self, text):
        self.text = text
        t = text.split(None, 1)
        self.op = t[0]
        rest = t[1] if len(t) > 1 else ""
        parts = []; depth = 0; cur = ""
        for ch in rest:
            if ch == "[": depth += 1
            if ch == "]": depth -= 1
            if ch == "," and depth == 0: parts.append(cur); cur = ""
            else: cur += ch
        parts.append(cur)
        self.mods = ""
        last = parts[-1].strip().split(None, 1)
        if last:
            parts[-1] = last[0]
            self.mods = last[1] if len(last) > 1 else ""
        self.ops = [p.strip() for p in parts if p.strip()]
        op = self.op
        self.is_mfma = op.startswith("v_mfma")
        self.is_valu = op.startswith("v_") and not self.is_mfma
        self.is_ds = op.startswith("ds_")
        self.is_vmem = op.startswith(("buffer_", "global_"))
        self.is_smem = op.startswith(("s_load", "s_memrealtime", "s_memtime"))
        self.is_salu = op.startswith("s_") and not self.is_smem
        self.is_dpp = "_dpp" in op
        self.is_trans = op.startswith(TRANS)
        self.is_lds_dma = self.is_vmem and (re.search(r"\blds\b", self.mods) is not None or "_lds_" in op)
        R = [regs_of(o) for o in self.ops]
        dst = []; src = []
        self.srcC = []; self.srcAB = []; self.data = []
        if self.is_mfma:
            dst = R[0]; self.srcAB = R[1] + R[2]; self.srcC = R[3]; src = self.srcAB + self.srcC
        elif op.startswith("v_permlane") and "swap" in op:
            dst = R[0] + R[1]; src = R[0] + R[1]
        elif op.startswith("v_cmp"):
            dst = R[0]; src = sum(R[1:], [])
        elif op.startswith(("v_add_co", "v_sub_co", "v_addc_co")):
            dst = R[0] + R[1]; src = sum(R[2:], [])
        elif self.is_valu:
            dst = R[0]; src = sum(R[1:], [])
            if op.startswith(("v_fmac", "v_writelane")) or self.is_dpp: src = src + R[0]
            if op.startswith("v_cndmask") and len(self.ops) == 3: src = src + [("s", "vcc")]
        elif self.is_ds:
            if op.startswith("ds_read"): dst = R[0]; src = sum(R[1:], [])
            else: src = sum(R, [])
        elif self.is_vmem:
            if self.is_lds_dma: src = sum(R, []) + [("s", "m0")]
            elif "load" in op: dst = R[0]; src = sum(R[1:], [])
            else:
                src = sum(R, [])
                if "store" in op and ("x4" in op or "x3" in op):
                    self.data = R[0] if op.startswith("buffer") else R[1]
        elif self.is_smem:
            dst = R[0]; src = sum(R[1:], [])
        elif self.is_salu:
            if op.startswith(("s_cmp", "s_cbranch", "s_branch", "s_waitcnt", "s_nop", "s_barrier", "s_sleep", "s_endpgm", "s_setprio")):
                src = sum(R, [])
                if "vcc" in op: src = src + [("s", "vcc")]
            else:
                dst = R[0]; src = sum(R[1:], [])
        self.dst = dst; self.src = src
        self.states = 1
        if op == "s_nop": self.states = int(self.ops[0]) + 1

class Fifo:
    def __init__(self, name, maxn):
        self.name = name; self.ent = []; self.done = 0; self.maxn = maxn
    def push(self, tag=None):
        self.ent.append([tag, True]); return len(self.ent) - 1
    def younger(self, idx):
        return sum(1 for e in self.ent[idx + 1:] if e[1])
    def need(self, idx):
        if idx < self.done: return None
        return min(self.younger(idx), self.maxn)
    def waited(self, n):
        c = 0
        for i in range(len(self.ent) - 1, -1, -1):
            if c >= n:
                self.done = max(self.done, i + 1); return
            if self.ent[i][1]: c += 1
    def outstanding(self):
        return len(self.ent) - self.done
    def last_tag(self, tag):
        for i in range(len(self.ent) - 1, -1, -1):
            if self.ent[i][0] == tag: return i
        raise KeyError(tag)

class Asm:
    def __init__(self):
        self.out = []
        self.vm = Fifo("vmcnt", 63); self.lg = Fifo("lgkmcnt", 15)
        self.pend = {}
        self.smem_pending = False
        self.clock = 0
        self.w_valu = {}; self.w_trans = {}; self.w_mfma = {}; self.r_mfmaC = {}; self.w_sgpr_valu = {}
        self.store_data = {}; self.w_m0 = -99
        self.mfma_dst_full = {}
        self.tail = []
        self.regions = []
        self.nlabel = 0
        self.nbytes = 0
        self.exec_full = True; self.scc_live = False; self.cyc = 0
        self.inject = None; self.no_inject = 0; self._in_inject = False
    def label(self, p="L"):
        self.nlabel += 1; return f"{p}{self.nlabel}"
    def raw(self, text): self.out.append(text)
    def comment(self, text): self.out.append("; " + text)
    def _emit(self, ins):
        self.out.append("  " + ins.text); self.clock += ins.states
        op = ins.op
        if ins.is_mfma: self.cyc += 12
        elif op == "s_waitcnt": self.cyc += 70 if "lgkm" in ins.text else 4
        elif op == "s_barrier": self.cyc += 60
        elif ins.is_trans: self.cyc += 8
        elif ins.is_ds: self.cyc += 8
        else: self.cyc += 4.5 * ins.states
        if ins.ops and ins.ops[0] in ("exec", "exec_lo", "exec_hi") and ins.is_salu:
            self.exec_full = ins.text.replace(" ", "") == "s_mov_b64exec,-1"
        if op.startswith("s_cmp"): self.scc_live = True
        elif op.startswith(("s_cbranch_scc", "s_cselect")): self.scc_live = False
    def wait(self, vm=None, lg=None):
        parts = []
        if vm is not None: parts.append(f"vmcnt({vm})"); self.vm.waited(vm)
        if lg is not None:
            if self.smem_pending: lg = 0
            parts.append(f"lgkmcnt({lg})"); self.lg.waited(lg)
            if lg == 0: self.smem_pending = False
        if parts: self._emit(Inst("s_waitcnt " + " ".join(parts)))
    def wait_tag(self, tag):
        n = self.vm.need(self.vm.last_tag(tag))
        if n is not None: self.wait(vm=n)
    def pace(self, W):
        if self.vm.outstanding() > W - 1: self.wait(vm=W - 1)
    def I(self, text, tag=None):
        for t in text.split("\n"):
            t = t.strip()
            if t: self._I(t, tag)
    def _I(self, text, tag):
        ins = Inst(text)
        if ins.op == "s_waitcnt": raise ValueError("use wait()")
        vm = None; lg = None
        for r in ins.src + ins.dst:
            if r in self.pend:
                f, idx = self.pend[r]
                n = f.need(idx)
                if n is None: continue
                if f is self.vm: vm = n if vm is None else min(vm, n)
                else: lg = n if lg is None else min(lg, n)
        if vm is not None or lg is not None: self.wait(vm, lg)
        need = 0
        def req(table, regs, d):
            nonlocal need
            for r in regs:
                if r in table: need = max(need, d - (self.clock - table[r]))
        vsrc = [r for r in ins.src if r[0] in "va"]; vdst = [r for r in ins.dst if r[0] in "va"]
        ssrc = [r for r in ins.src if r[0] == "s"]
        if ins.is_dpp or "permlane" in ins.op: req(self.w_valu, vsrc, 2)
        if ins.op.startswith(("v_readlane", "v_readfirstlane")): req(self.w_valu, vsrc, 1)
        if ins.is_valu: req(self.w_trans, vsrc + vdst, 1)
        if ins.is_valu:
            req(self.w_sgpr_valu, ssrc, 4 if ins.op.startswith(("v_readlane", "v_writelane")) else 2)
        if ins.is_vmem: req(self.w_sgpr_valu, ssrc, 5)
        if ins.is_salu and not ins.op.startswith("s_cbranch"): req(self.w_sgpr_valu, ssrc, 1)
        if ins.is_mfma:
            req(self.w_valu, vsrc, 2)
            req(self.w_mfma, ins.srcAB, 8)
            if ins.srcC:
                key = (ins.srcC[0], len(ins.srcC), ins.op)
                for r in ins.srcC:
                    if r in self.w_mfma and self.mfma_dst_full.get(r) != key:
                        need = max(need, 6 - (self.clock - self.w_mfma[r]))
        else:
            if ins.is_valu or ins.is_vmem or ins.is_ds: req(self.w_mfma, vsrc + vdst, 8)
        if ins.is_valu:
            req(self.r_mfmaC, vdst, 3); req(self.store_data, vdst, 2)
        elif vdst: req(self.store_data, vdst, 1)
        if ins.is_lds_dma: need = max(need, 1 - (self.clock - self.w_m0))
        while need > 0:
            k = min(need, 16); self._emit(Inst(f"s_nop {k-1}")); need -= k
        self._emit(ins)
        c = self.clock
        for r in ins.dst: self.pend.pop(r, None)
        if ins.is_valu:
            for r in ins.dst:
                if r[0] == "s": self.w_sgpr_valu[r] = c
                else:
                    self.w_valu[r] = c; self.w_mfma.pop(r, None)
                    if ins.is_trans: self.w_trans[r] = c
                    else: self.w_trans.pop(r, None)
        if ins.is_mfma:
            key = (ins.dst[0], len(ins.dst), ins.op)
            for r in ins.dst: self.w_mfma[r] = c; self.mfma_dst_full[r] = key; self.w_valu.pop(r, None)
            for r in ins.srcC: self.r_mfmaC[r] = c
        if ins.is_salu:
            for r in ins.dst:
                self.w_sgpr_valu.pop(r, None)
                if r == ("s", "m0"): self.w_m0 = c
        for r in ins.data: self.store_data[r] = c
        if ins.is_vmem:
            idx = self.vm.push(tag)
            assert self.vm.outstanding() <= 63, "vmcnt overflow"
            for r in ins.dst: self.pend[r] = (self.vm, idx)
        if ins.is_ds:
            idx = self.lg.push(tag)
            for r in ins.dst: self.pend[r] = (self.lg, idx)
        if ins.is_smem:
            idx = self.lg.push(tag); self.smem_pending = True
            for r in ins.dst: self.pend[r] = (self.lg, idx)
        if (self.inject and not self._in_inject and not self.no_inject and not self.regions and self.exec_full
                and not self.scc_live and (ins.is_valu or ins.is_mfma or ins.is_ds)):
            self._in_inject = True; self.inject(); self._in_inject = False
    def either(self, cond_true_text, cond_false_text, tag=None):
        l1 = self.label("Le"); l2 = self.label("Lf")
        mark = len(self.out)
        self._I(cond_true_text, tag)
        text = self.out.pop()
        self.scc_live = False
        self.out += [f"  s_cbranch_scc0 {l1}", text, f"{l2}:"]
        self.tail += [f"{l1}:", "  " + cond_false_text, f"  s_branch {l2}"]
    def skip_begin(self, branch):
        l = self.label("Ls")
        self._I(f"{branch} {l}", None)
        snap = [dict(t) for t in self._tables()]
        self.regions.append((l, len(self.vm.ent), len(self.lg.ent), self.vm.done, self.lg.done, self.clock, self.smem_pending, dict(self.pend), snap))
    def skip_end(self):
        l, nv, nl, dv, dl, clk, sp, pend, snap = self.regions.pop()
        for e in self.vm.ent[nv:]: e[1] = False
        for e in self.lg.ent[nl:]: e[1] = False
        self.vm.done = min(self.vm.done, dv); self.lg.done = min(self.lg.done, dl)
        self.smem_pending = self.smem_pending or sp
        for r, v in pend.items(): self.pend.setdefault(r, v)
        d = self.clock - clk
        for t, old in zip(self._tables(), snap):
            for r, c in old.items():
                if c + d > t.get(r, -10**9):
                    t[r] = c + d
                    if t is self.w_mfma: self.mfma_dst_full[r] = None
        if self.w_m0 <= clk: self.w_m0 += d
        self.out.append(f"{l}:")
    def _tables(self):
        return (self.w_valu, self.w_trans, self.w_mfma, self.r_mfmaC, self.w_sgpr_valu, self.store_data)
    def barrier(self):
        if self.lg.outstanding() > 0 or self.smem_pending: self.wait(lg=0)
        if getattr(self, "nobar", 0) and self.inject: return
        self._I("s_barrier", None)
    def text(self):
        return "\n".join(self.out + self.tail) + "\n"
```

```python
import sys, math
from dsl import Asm

NAME = "interleave_layers__sliding_block_cached__gqa_block_cached__decode_kernel"
HEAD = open("interleave_layers__sliding_block_cached__gqa_block_cached__decode.s.ref").read().split("; Override")[0]

KV_BYTES = 2 * 32 * 4096 * 384
BSTR = 32 * 4096 * 384
HSTR = 4096 * 384
W_BYTES = 640 * 6144 * 2
WS_BYTES = 434115584
H1_I, H1_H, H1_S = 524288, 16384, 2048
H2 = 8 * H1_I; H2_I, H2_H, H2_S = 131072, 4096, 512
H3 = H2 + 8 * H2_I; H3_I, H3_S, H3_H = 65536, 8192, 256
DIAG = 8 << 20
WQ = (0, 61440); WO = (30720, 92160)
VS = 122880
EX = 147456
ATT = EX; STAT = EX + 6144; Y = EX + 6208; YSZ = 1280; XROW = Y + 2 * YSZ; ONES = XROW + 1280; QB = ONES + 160; CT = QB + 768
JUNK = CT + 2048
LDS_BYTES = JUNK + 256
assert LDS_BYTES <= 163840
sWG, sWave = 2, 3
KA, VA, KB, VB, WS, WT, XO = 4, 8, 12, 16, 20, 24, 28
pX, pKA, pVA, pWQA, pWOA, pKB, pVB, pWQB, pWOB, pOUT, pDBG, pWS = 32, 34, 36, 38, 40, 44, 46, 48, 50, 52, 54, 56
sH, sS, sLocal, sOff, sRetry, sT0, sT1, sT2 = 58, 59, 60, 61, 62, 63, 64, 65
sH1own, sH1grp, sH2own, sH2grp, sH3own, sH3grp, sOffG, sOffP = 66, 67, 68, 69, 70, 71, 72, 73
mODD, mHI8, mHI32, mWOST, mRG1, mRG2, mRG3, m60 = 74, 76, 78, 80, 82, 84, 86, 88
sXcc, sWqRow, sWoRow, sLdsW, sLdsVS = 90, 91, 92, 93, 94
sST = 96; m40 = 98; mBIT1 = 100; mW3 = 42; mN10 = 32; sW2 = 95; sOffG2 = 35
FS = [36, 38, 40, 44, 46, 48, 50, 52, 54, 56, 24, 26, 88, 90, 92]
def sp(n): return f"s[{n}:{n+1}]"
def s4(n): return f"s[{n}:{n+3}]"
def v2(n): return f"v[{n}:{n+1}]"
def v4(n): return f"v[{n}:{n+3}]"
vLane, vKoff, vVoff, vMask = 0, 1, 2, 3
vQ, vACC, vU = 12, 24, 36
vStamp = 55
QUADS = [f"a[{i}:{i+3}]" for i in range(0, 256, 4)] + [f"v[{i}:{i+3}]" for i in range(56, 256, 4)]
SLOT = {}
_names = [("KA", i) for i in range(4)] + [("VA", 0), ("VA", 1)] + [("KB", i) for i in range(16)] + [("VB", i) for i in range(16)]
for i, n in enumerate(_names): SLOT[n] = QUADS[3 * i:3 * i + 3]
assert SLOT[("VB", 15)][2] == "v[252:255]"
vWq0, vWq1, vWo = 252, 253, 254
SCALE = 192 ** -0.5 * math.log2(math.e)
import struct
def f32(x): return "0x%08x" % struct.unpack("<I", struct.pack("<f", x))[0]

class Gen:
    def __init__(self, cfg):
        self.c = cfg; self.a = Asm(); self.items = []; self.pos = 0; self.nstamp = 0
        self.W = cfg.get("W", 7); self.limit = 10**9; self.last_cyc = 0; self.fine_on = False; self.nfine = 0; self.fnames = []; self.snames = ['start']
    def add_w(self, name, ptr, kind, ty):
        pol = self.c.get("wpol", "nt")
        def mk(k):
            def f():
                a = self.a
                if k == 0:
                    off = sWqRow if kind == "q" else sWoRow
                    a.I(f"s_add_u32 s{WT}, s{ptr}, s{off}\ns_addc_u32 s{WT+1}, s{ptr+1}, 0\ns_sub_u32 s{WT+2}, {W_BYTES}, s{off}")
                base = (WQ if kind == "q" else WO)[ty]
                a.I(f"s_add_u32 m0, s{sLdsW}, {base + 960 * k}")
                if kind == "q": so = 5 * (k // 2) * 12288; vr = vWq1 if k & 1 else vWq0
                else: so = 6 * k * 1280; vr = vWo
                a.I(f"s_mov_b32 s{sOff}, {so}\ns_mov_b64 exec, {sp(m60)}")
                a.I(f"buffer_load_dwordx4 v{vr}, {s4(WT)}, s{sOff} offen {pol} lds", tag=name)
                a.I("s_mov_b64 exec, -1")
            return f
        self.items += [(name, mk(k)) for k in range(8)]
    def add_kv(self, name, b, g):
        srd = {"KA": KA, "VA": VA, "KB": KB, "VB": VB}[name]
        isK = name[0] == "K"; vo = vKoff if isK else vVoff; step = 128 if isK else 256
        pol = self.c.get("kvpol", "nt")
        def mk(c):
            def f():
                a = self.a
                if (name, g) in SLOT:
                    if c == 0: a.I(f"s_mov_b32 s{sOff}, {b * BSTR + g * 3072}")
                    elif self.off_val != (name, b, g): a.I(f"s_mov_b32 s{sOff}, {b * BSTR + g * 3072}")
                    self.off_val = (name, b, g)
                    a.I(f"buffer_load_dwordx4 {SLOT[(name, g)][c]}, v{vo}, {s4(srd)}, s{sOff} offen offset:{step * c} {pol}")
                else:
                    self.off_val = None
                    a.I(f"s_add_u32 m0, s{sLdsVS}, {(g - 2) * 3072 + 1024 * c}\ns_mov_b32 s{sOff}, {b * BSTR + g * 3072 + step * c}")
                    a.I(f"buffer_load_dwordx4 v{vo}, {s4(srd)}, s{sOff} offen {pol} lds", tag=("VS", b, g))
            return f
        self.items += [((name, b, g), mk(c)) for c in range(3)]
    def stream(self, n, paced=True, W=None):
        for _ in range(n):
            if self.pos >= len(self.items): return
            assert self.pos < self.limit, (self.pos, self.limit)
            if paced: self.a.pace(W or self.W)
            sv = self.a._in_inject; self.a._in_inject = True
            self.items[self.pos][1](); self.pos += 1; self.last_cyc = self.a.cyc
            self.a._in_inject = sv
    def injector(self):
        a = self.a
        if self.pos < self.limit and a.cyc - self.last_cyc >= self.c.get("T", 330) and a.vm.outstanding() < self.W + self.c.get("XW", 6):
            self.stream(1, paced=False)
    def stream_to(self, upto, **k): self.stream(max(0, upto - self.pos), **k)
    def index_after(self, name):
        return max(i for i, it in enumerate(self.items) if it[0] == name) + 1
    def fs(self, name):
        if not self.fine_on or self.nfine >= len(FS): return
        self.a.I(f"{'s_memrealtime' if self.c.get('rt') else 's_memtime'} {sp(FS[self.nfine])}"); self.nfine += 1; self.fnames.append(name)
    def check_slot(self, name, b, g):
        assert self.index_after((name, b, g)) <= self.pos, ("not issued", name, b, g, self.pos)
        if b == 0: assert self.index_after((name, 1, g)) - 3 >= self.pos, ("overwritten", name, g)
    def stamp(self, name=''):
        self.snames.append(f'{name}@{self.pos}')
        if not self.c.get("diag") or self.c.get("fine"): return
        if self.c["diag"] == 2 and name not in self.c.get("only", ("p1end", "p2beg", "p2end", "end")): self.snames.pop(); return
        a = self.a
        a.I(f"s_memrealtime {sp(sST)}"); a.wait(lg=0)
        a.I(f"v_writelane_b32 v{vStamp}, s{sST if not self.c.get('rcount') else sRetry}, {self.nstamp}"); self.nstamp += 1
    def publish(self, text, local_ok):
        a = self.a
        if local_ok and self.c.get("local", True):
            a.I(f"s_cmp_lg_u32 s{sLocal}, 0")
            a.either(text.format(pol=""), text.format(pol="sc1"), tag="pub")
        else: a.I(text.format(pol="sc1"), tag="pub")
    def gather(self, loads, regs, tmp, between=None, emask=None):
        a = self.a
        if emask: a.I(f"s_mov_b64 exec, {emask}")
        for t in loads: a.I(t, tag="gat")
        last = len(a.vm.ent) - 1
        if between:
            if emask: a.I("s_mov_b64 exec, -1")
            between()
            if emask: a.I(f"s_mov_b64 exec, {emask}")
        self.fs("issued")
        n = a.vm.need(last)
        if n is not None: a.wait(vm=n)
        chk = a.label("Lc"); rt = a.label("Lr")
        a.raw(f"{chk}:"); a.no_inject += 1
        r = list(regs)
        if len(r) == 1: cur = r.pop()
        else:
            if len(r) >= 3: a.I(f"v_max3_u32 v{tmp}, v{r[0]}, v{r[1]}, v{r[2]}"); r = r[3:]
            else: a.I(f"v_max_u32 v{tmp}, v{r[0]}, v{r[1]}"); r = []
            while len(r) >= 2: a.I(f"v_max3_u32 v{tmp}, v{tmp}, v{r[0]}, v{r[1]}"); r = r[2:]
            if r: a.I(f"v_max_u32 v{tmp}, v{tmp}, v{r[0]}")
            cur = tmp
        a.I(f"v_cmp_eq_u32 vcc, -1, v{cur}")
        a.I(f"s_cbranch_vccnz {rt}")
        self.retry_block(rt, chk, loads); a.no_inject -= 1
        self.fs("valid")
    def retry_block(self, rt, chk, loads):
        a = self.a
        a.tail += [f"{rt}:", f"  s_add_u32 s{sRetry}, s{sRetry}, 1", f"  s_cmp_gt_u32 s{sRetry}, {self.c.get('spin', 200000)}",
                   "  s_cbranch_scc1 L_end"]
        if self.c.get("sleep", 1): a.tail += [f"  s_sleep {self.c.get('sleep', 1)}"]
        a.tail += ["  " + t for t in loads] + ["  s_waitcnt vmcnt(0)", f"  s_branch {chk}"]
    def setup(self):
        a = self.a; I = a.I
        I(f"s_cmp_ge_u32 s{sWG}, 256\ns_cbranch_scc1 L_end")
        I(f"s_load_dwordx16 s[32:47], s[0:1], 0\ns_load_dwordx8 s[48:55], s[0:1], 64\ns_load_dwordx2 s[56:57], s[0:1], 96")
        if self.c.get("diag"): I(f"s_memrealtime {sp(sST)}")
        I(f"v_lshrrev_b32 v8, 6, v0\nv_and_b32 v0, 63, v0\nv_readfirstlane_b32 s{sWave}, v8")
        I(f"s_and_b32 s{sT0}, s{sWG}, 7\ns_lshl_b32 s{sT0}, s{sT0}, 2\ns_lshr_b32 s{sT1}, s{sWG}, 3\ns_and_b32 s{sT1}, s{sT1}, 3\ns_add_u32 s{sH}, s{sT0}, s{sT1}\ns_lshr_b32 s{sS}, s{sWG}, 5")
        I(f"v_mul_u32_u24 v8, 43, v0\nv_lshrrev_b32 v8, 10, v8\nv_mul_u32_u24 v9, 24, v8\nv_sub_u32 v9, v0, v9\nv_mul_u32_u24 v8, 0x3000, v8\nv_lshl_add_u32 v{vWq0}, v9, 4, v8")
        I(f"v_add_u32 v10, 60, v0\nv_mul_u32_u24 v8, 43, v10\nv_lshrrev_b32 v8, 10, v8\nv_mul_u32_u24 v9, 24, v8\nv_sub_u32 v9, v10, v9\nv_mul_u32_u24 v8, 0x3000, v8\nv_lshl_add_u32 v{vWq1}, v9, 4, v8")
        I(f"s_mul_i32 s{sT0}, s{sS}, {80 * 12288}\ns_mul_i32 s{sT1}, s{sWave}, {20 * 12288}\ns_add_u32 s{sT0}, s{sT0}, s{sT1}\ns_mul_i32 s{sT1}, s{sH}, 384\ns_add_u32 s{sWqRow}, s{sT0}, s{sT1}")
        I(f"s_mul_i32 s{sT0}, s{sH}, {192 * 1280}\ns_mul_i32 s{sT1}, s{sWave}, {48 * 1280}\ns_add_u32 s{sT0}, s{sT0}, s{sT1}\ns_mul_i32 s{sT1}, s{sS}, 160\ns_add_u32 s{sWoRow}, s{sT0}, s{sT1}")
        I(f"s_mul_i32 s{sLdsW}, s{sWave}, 7680\ns_mov_b32 s{m60}, -1\ns_mov_b32 s{m60+1}, 0x0fffffff\ns_mov_b32 s{WT+3}, 0x20000\ns_mov_b32 s{sRetry}, 0")
        I(f"v_and_b32 v8, 15, v0\nv_lshrrev_b32 v9, 4, v0")
        I(f"v_lshrrev_b32 v10, 1, v8\nv_mul_u32_u24 v10, 384, v10\nv_and_b32 v11, 1, v8\nv_lshl_add_u32 v11, v9, 1, v11\nv_lshl_add_u32 v{vKoff}, v11, 4, v10")
        I(f"v_mul_u32_u24 v10, 768, v9\nv_lshl_add_u32 v{vVoff}, v8, 4, v10")
        I(f"s_mul_i32 s{sT0}, s{sH}, {HSTR}\ns_mul_i32 s{sT1}, s{sS}, {128 * 384}\ns_add_u32 s{sT1}, s{sT1}, s{sT0}\ns_mul_i32 s{sT2}, s{sWave}, {32 * 384}\ns_add_u32 s{sT1}, s{sT1}, s{sT2}\ns_add_u32 s{sOffG}, s{sT1}, {3072 * 384}")
        I(f"s_mul_i32 s{sT1}, s{sS}, {512 * 384}\ns_add_u32 s{sT1}, s{sT1}, s{sT0}\ns_mul_i32 s{sT2}, s{sWave}, {128 * 384}\ns_add_u32 s{sOffP}, s{sT1}, s{sT2}")
        I(f"s_mul_i32 s{sLdsVS}, s{sWave}, 6144\ns_add_u32 s{sLdsVS}, s{sLdsVS}, {VS}")
        I(f"s_mov_b32 s{XO+2}, 2560\ns_mov_b32 s{XO+3}, 0x20000\ns_mul_i32 s{sT0}, s{sS}, 160\nv_lshlrev_b32 v7, 2, v0\nv_min_u32 v7, 156, v7")
        for srd, o in ((KA, sOffG), (VA, sOffG), (KB, sOffP), (VB, sOffP)): I(f"s_sub_u32 s{srd+2}, {KV_BYTES}, s{o}\ns_mov_b32 s{srd+3}, 0x20000")
        a.wait(lg=0)
        if self.c.get("diag"): I(f"v_mov_b32 v{vStamp}, 0\nv_writelane_b32 v{vStamp}, s{sST}, 0"); self.nstamp = 1
        if self.c.get("st0"): self.stamp("end")
        if self.c.get("tlb"): self.tlb_touch()
        I(f"s_mov_b32 s{XO}, s{pX}\ns_mov_b32 s{XO+1}, s{pX+1}")
        I(f"buffer_load_dword v12, v7, {s4(XO)}, s{sT0} offen\nbuffer_load_dword v13, v7, {s4(XO)}, s{sT0} offen offset:1280")
        if self.c.get("st0") == 2: self.stamp("end")
        self.stream(8, paced=False)
        if self.c.get("st0") == 2: self.stamp("end")
        for srd, p, o in ((KA, pKA, sOffG), (VA, pVA, sOffG), (KB, pKB, sOffP), (VB, pVB, sOffP)):
            I(f"s_add_u32 s{srd}, s{p}, s{o}\ns_addc_u32 s{srd+1}, s{p+1}, 0")
        self.stream(self.c.get("I0", 6), paced=False)
        if self.c.get("st0") == 2: self.stamp("end")
        I(f"s_mov_b32 s{WS}, s{pWS}\ns_mov_b32 s{WS+1}, s{pWS+1}\ns_mov_b32 s{WS+2}, {WS_BYTES}\ns_mov_b32 s{WS+3}, 0x20000")
        I(f"s_mul_i32 s{sH1grp}, s{sH}, {H1_H}\ns_mul_i32 s{sT0}, s{sS}, {H1_S}\ns_add_u32 s{sH1own}, s{sH1grp}, s{sT0}")
        I(f"s_mul_i32 s{sH2grp}, s{sH}, {H2_H}\ns_add_u32 s{sH2grp}, s{sH2grp}, {H2}\ns_mul_i32 s{sT0}, s{sS}, {H2_S}\ns_add_u32 s{sH2own}, s{sH2grp}, s{sT0}")
        I(f"s_mul_i32 s{sH3grp}, s{sS}, {H3_S}\ns_add_u32 s{sH3grp}, s{sH3grp}, {H3}\ns_mul_i32 s{sT0}, s{sH}, {H3_H}\ns_add_u32 s{sH3own}, s{sH3grp}, s{sT0}")
        I("v_mov_b32 v16, -1\nv_mov_b32 v17, -1\nv_mov_b32 v18, -1\nv_mov_b32 v19, -1\nv_lshlrev_b32 v14, 4, v0")
        for j in range(0 if self.c.get("noclr") else 2):
            I(f"s_lshl_b32 s{sT2}, s{sWave}, 1\ns_add_u32 s{sT2}, s{sT2}, {j}")
            I(f"s_mul_i32 s{sT0}, s{sT2}, {H1_I}\ns_add_u32 s{sT0}, s{sT0}, s{sH1own}")
            I(f"buffer_store_dwordx4 v[16:19], v14, {s4(WS)}, s{sT0} offen sc1", tag="clr")
            I(f"s_mul_i32 s{sT0}, s{sT2}, {H2_I}\ns_add_u32 s{sT0}, s{sT0}, s{sH2own}\ns_mul_i32 s{sT1}, s{sT2}, {H3_I}\ns_add_u32 s{sT1}, s{sT1}, s{sH3own}\ns_sub_u32 s{sT1}, s{sT1}, 512")
            I(f"v_mov_b32 v15, s{sT0}\nv_mov_b32 v20, s{sT1}\nv_cmp_lt_u32 vcc, 31, v0\nv_cndmask_b32 v15, v15, v20, vcc\nv_add_u32 v15, v15, v14")
            I(f"s_mov_b32 exec_hi, 0x00000fff")
            I(f"buffer_store_dwordx4 v[16:19], v15, {s4(WS)}, 0 offen sc1", tag="clr")
            I("s_mov_b64 exec, -1")
        I(f"s_and_b32 s{sT2}, s{sWave}, 1\ns_mul_i32 s{sT0}, s{sT2}, {H1_I}\ns_add_u32 s{sT0}, s{sT0}, s{sH1own}")
        I(f"buffer_store_dwordx4 v[16:19], v14, {s4(WS)}, s{sT0} offen offset:1024 sc1", tag="clr")
        if self.c.get("st0") == 2: self.stamp("end")
        self.stream(self.c.get('I1', 6), paced=False)
        if self.c.get("st0"):
            self.stamp("end")
            n = len(a.vm.ent)
            for k in (1, 2, 3, 10, 11, 16, 21, n): a.wait(vm=n - k); self.stamp("end")
        if self.c.get("cpf") == 1: self.code_prefetch("L_pf0", "L_pf9")
        I(f"v_mul_u32_u24 v10, 26, v0\nv_lshrrev_b32 v10, 8, v10\nv_mul_u32_u24 v11, 10, v10\nv_sub_u32 v11, v0, v11\nv_mul_u32_u24 v10, 1280, v10\nv_lshl_add_u32 v{vWo}, v11, 4, v10")
        I("v_and_b32 v10, 1, v0\nv_cmp_eq_u32 vcc, 1, v10\nv_mov_b32 v11, 0xffff\nv_mov_b32 v20, 0xffff0000\nv_cndmask_b32 v11, v11, v20, vcc\nv_bfe_u32 v10, v0, 1, 2")
        for j in range(4): I(f"v_cmp_eq_u32 vcc, {j}, v10\nv_cndmask_b32 v{vMask+j}, 0, v11, vcc")
        for m, lo, hi in ((mODD, 0xaaaaaaaa, 0xaaaaaaaa), (mHI8, 0xff00ff00, 0xff00ff00), (mRG1, 0xffff0000, 0), (mRG2, 0, 0xffff), (mRG3, 0, 0xffff0000), (m40, 0xffffffff, 0xff), (mWOST, 0x5555, 0x5555), (mN10, 0x03ff03ff, 0x03ff03ff), (mHI32, 0, 0xffffffff), (mBIT1, 0xcccccccc, 0xcccccccc)):
            I(f"s_mov_b32 s{m}, {lo:#x}\ns_mov_b32 s{m+1}, {hi:#x}")
        I(f"s_cmp_eq_u32 s{sWave}, 3\ns_cselect_b64 {sp(mW3)}, -1, 0\ns_min_u32 s{sW2}, s{sWave}, 2")
        I(f"s_getreg_b32 s{sXcc}, hwreg(HW_REG_XCC_ID, 0, 4)\ns_add_u32 s{sXcc}, s{sXcc}, 1")
        I(f"s_mul_i32 s{sT0}, s{sWave}, 160\ns_add_u32 s{sT0}, s{sT0}, {XROW}\nv_add_u32 v10, s{sT0}, v7\nv_add_u32 v11, {ONES}, v7\nv_mov_b32 v20, 0x3f803f80")
        I("ds_write_b32 v11, v20\nds_write_b32 v10, v12\nds_write_b32 v10, v13 offset:640")
        I(f"s_mov_b32 s{XO}, s{pOUT}\ns_mov_b32 s{XO+1}, s{pOUT+1}")
    def tlb_touch(self):
        a = self.a; I = a.I
        ent = []
        for p, o, span in ((pWQA, sWqRow, 20 * 12288), (pKA, sOffG, 12288), (pVA, sOffG, 12288), (pWOA, sWoRow, 48 * 1280), (pWQB, sWqRow, 20 * 12288),
                           (pKB, sOffP, 49152), (pWOB, sWoRow, 48 * 1280), (pVB, sOffP, 49152)):
            for b in range(2 if o in (sOffG, sOffP) else 1): ent.append((p, o, b * BSTR))
        if self.c["tlb"] > 1:
            ent += [(pWS, None, 0), (pWS, None, 2 << 20), (pWS, None, 4 << 20), (pDBG, None, 0), (pOUT, None, 0)]
        for i, (p, o, c) in enumerate(ent):
            if o is None: I(f"s_add_u32 s{sT1}, s{p}, {c}\ns_addc_u32 s{sT2}, s{p+1}, 0")
            else:
                I(f"s_add_u32 s{sT1}, s{p}, s{o}\ns_addc_u32 s{sT2}, s{p+1}, 0")
                if c: I(f"s_add_u32 s{sT1}, s{sT1}, {c}\ns_addc_u32 s{sT2}, s{sT2}, 0")
            if i == 0: I(f"v_mov_b32 v14, s{sT1}\nv_mov_b32 v15, s{sT2}")
            else: I(f"v_writelane_b32 v14, s{sT1}, {i}\nv_writelane_b32 v15, s{sT2}, {i}")
        I(f"s_mov_b64 exec, {(1 << len(ent)) - 1}\nglobal_load_dword v250, v[14:15], off nt\ns_mov_b64 exec, -1")
    def code_prefetch(self, lo, hi):
        a = self.a; I = a.I
        l = a.label("Lp")
        I(f"s_getpc_b64 {sp(sT1)}"); a.raw(f"{l}:")
        I(f"s_add_u32 s{sT1}, s{sT1}, {lo}-{l}\ns_addc_u32 s{sT2}, s{sT2}, 0")
        I(f"s_lshr_b32 s{sT0}, s{sWG}, 3\ns_lshl_b32 s{sT0}, s{sT0}, 2\ns_add_u32 s{sT0}, s{sT0}, s{sWave}\ns_lshl_b32 s{sT0}, s{sT0}, 13")
        I(f"v_lshl_add_u32 v30, v0, 7, s{sT0}\nv_cmp_gt_u32 vcc, {hi}-{lo}, v30\ns_mov_b32 m0, {JUNK}")
        I("s_and_b64 exec, vcc, -1"); a.skip_begin("s_cbranch_execz")
        I(f"global_load_lds_dword v30, {sp(sT1)}")
        a.skip_end()
        I("s_mov_b64 exec, -1")
    def arrive(self):
        a = self.a; I = a.I
        I(f"s_cmp_lg_u32 s{sWave}, 0"); a.skip_begin("s_cbranch_scc1")
        I(f"s_and_b32 s{sT0}, s{sWG}, 3\ns_lshl_b32 s{sT0}, s{sT0}, 3\ns_lshl_b32 s{sT0}, s{sXcc}, s{sT0}\ns_and_b32 s{sT1}, s{sWG}, 0xfc")
        I(f"v_mov_b32 v8, s{sT1}\nv_mov_b32 v9, s{sT0}\ns_mov_b64 exec, 1")
        I(f"global_atomic_add v8, v9, {sp(pDBG)} sc1\ns_mov_b64 exec, -1")
        a.skip_end()
    def handshake(self, between):
        a = self.a; I = a.I
        I("v_lshlrev_b32 v7, 2, v0")
        ld = f"global_load_dword v8, v7, {sp(pDBG)} sc1"
        I(ld); last = len(a.vm.ent) - 1
        between()
        n = a.vm.need(last)
        if n is not None: a.wait(vm=n)
        chk = a.label("Lc"); rt = a.label("Lr")
        a.raw(f"{chk}:"); a.no_inject += 1
        I("v_subrev_u32 v9, 0x01010101, v8\nv_not_b32 v10, v8\nv_and_b32 v9, v9, v10\nv_and_b32 v9, 0x80808080, v9\nv_cmp_ne_u32 vcc, 0, v9")
        I(f"s_cbranch_vccnz {rt}")
        self.retry_block(rt, chk, [ld]); a.no_inject -= 1
        I(f"s_and_b32 s{sT0}, s{sWG}, 3\ns_lshl_b32 s{sT0}, s{sT0}, 3\nv_lshrrev_b32 v8, s{sT0}, v8\nv_and_b32 v8, 0xff, v8")
        I(f"s_bfe_u32 s{sT0}, s{sWG}, 0x30002\nv_and_b32 v9, 7, v0\nv_cmp_eq_u32 {sp(sT1)}, s{sT0}, v9\nv_cmp_ne_u32 vcc, s{sXcc}, v8")
        I(f"s_and_b64 vcc, vcc, {sp(sT1)}\ns_cmp_eq_u64 vcc, 0\ns_cselect_b32 s{sLocal}, 1, 0")
    WQB = [(24, 28, 32), (34, 38, 42), (44, 48, 52)]
    def wq_pre(self, ty):
        a = self.a; I = a.I
        I(f"v_bfe_u32 v7, v0, 2, 2\nv_lshrrev_b32 v9, 4, v0\nv_lshl_add_u32 v8, v9, 3, v7\nv_lshl_add_u32 v7, v9, 2, v7")
        I(f"v_and_b32 v9, 3, v0\nv_lshlrev_b32 v9, 3, v9\ns_mul_i32 s{sT0}, s{sWave}, 96\ns_add_u32 s{sT0}, s{sT0}, {WQ[ty]}\nv_add_u32 v9, s{sT0}, v9")
        I(f"s_movk_i32 s{sT0}, 384\nv_mad_u32_u24 v8, v8, s{sT0}, v9\nv_mad_u32_u24 v7, v7, s{sT0}, v9")
        for T, (b0, b1, b2) in enumerate(self.WQB):
            for t, r in ((0, b0), (1, b1)):
                I(f"ds_read_b64_tr_b16 {v2(r)}, v8 offset:{12288 * t + 32 * T}\nds_read_b64_tr_b16 {v2(r+2)}, v8 offset:{12288 * t + 1536 + 32 * T}")
            I(f"ds_read_b64_tr_b16 {v2(b2)}, v7 offset:{24576 + 32 * T}")
    def wq_addr(self, b, L):
        I = self.a.I
        I(f"s_mul_i32 s{sT0}, s{sWave}, 160\ns_add_u32 s{sT0}, s{sT0}, {XROW + 640 * b}\nv_mov_b32 v22, s{sT0}\nv_mov_b32 v23, {ONES}")
        I(f"v_cndmask_b32 v23, v22, v23, {sp(mODD)}\nv_lshrrev_b32 v21, 4, v0\nv_lshl_add_u32 v22, v21, 4, v23\nv_lshl_add_u32 v23, v21, 3, v23")
    def wq_main(self, b, L, local_ok=True, hoisted=False, hoist=False):
        a = self.a; I = a.I; inst = 4 * b + L; needC = inst < 2
        if not hoisted: self.wq_addr(b, L)
        I("ds_read_b128 v[12:15], v22\nds_read_b128 v[16:19], v22 offset:64\nds_read_b64 v[20:21], v23 offset:128")
        I(f"s_lshl_b32 s{sT0}, s{sWave}, 8\nv_lshl_add_u32 v54, v0, 2, s{sT0}\ns_add_u32 s{sOffP}, s{sH1own}, {inst * H1_I}")
        if hoist: self.qg_addr(b, L)
        D = [8, 24, 28]
        for T, (b0, b1, b2) in enumerate(self.WQB):
            I(f"v_mfma_f32_16x16x32_bf16 {v4(D[T])}, v[12:15], {v4(b0)}, 0")
            I(f"v_mfma_f32_16x16x32_bf16 {v4(D[T])}, v[16:19], {v4(b1)}, {v4(D[T])}")
        I("v_mfma_f32_16x16x32_bf16 v[34:37], v[12:15], v[12:15], 0\nv_mfma_f32_16x16x32_bf16 v[34:37], v[16:19], v[16:19], v[34:37]")
        for T, (b0, b1, b2) in enumerate(self.WQB):
            I(f"v_mfma_f32_16x16x16_bf16 {v4(D[T])}, v[20:21], {v2(b2)}, {v4(D[T])}")
        I("v_mfma_f32_16x16x16_bf16 v[34:37], v[20:21], v[20:21], v[34:37]")
        for r in range(2 if needC else 1):
            I(f"v_cndmask_b32 v{22+r}, v{8+r}, v{24+r}, {sp(mRG1)}\nv_cndmask_b32 v{22+r}, v{22+r}, v{28+r}, {sp(mRG2)}\nv_cndmask_b32 v{22+r}, v{22+r}, v34, {sp(mRG3)}\nv_min_u32 v{22+r}, -2, v{22+r}")
            self.publish(f"buffer_store_dword v{22+r}, v54, {s4(WS)}, s{sOffP} offen offset:{1024 * r} {{pol}}", local_ok)
    def qg_addr(self, b, L):
        I = self.a.I
        I(f"v_and_b32 v23, 15, v0\nv_lshrrev_b32 v7, 4, v0\nv_lshlrev_b32 v7, 11, v7\nv_lshl_add_u32 v7, v23, 4, v7\ns_lshl_b32 s{sT0}, s{sWave}, 8")
        I(f"s_add_u32 s{sOffG}, s{sH1grp}, s{sT0}\ns_add_u32 s{sOffG}, s{sOffG}, {(4 * b + L) * H1_I}\ns_add_u32 s{sOffG2}, s{sOffG}, {4 * H1_S}")
    def qg(self, b, L, between=None, hoisted=False):
        a = self.a; I = a.I; inst = 4 * b + L; needC = inst < 2; ty = L & 1
        if not hoisted: self.qg_addr(b, L)
        loads = [f"buffer_load_dwordx4 v[12:15], v7, {s4(WS)}, s{sOffG} offen sc1", f"buffer_load_dwordx4 v[16:19], v7, {s4(WS)}, s{sOffG2} offen sc1"]
        if needC: loads += [f"buffer_load_dwordx4 v[20:23], v7, {s4(WS)}, s{sOffG} offen offset:1024 sc1", f"buffer_load_dwordx4 v[24:27], v7, {s4(WS)}, s{sOffG2} offen offset:1024 sc1"]
        def pre():
            I(f"v_and_b32 v8, 15, v0\nv_lshrrev_b32 v9, 4, v0\nv_and_b32 v10, 1, v9\nv_lshlrev_b32 v10, 1, v10\nv_lshrrev_b32 v28, 1, v9\nv_or_b32 v10, v10, v28\nv_lshl_add_u32 v10, v8, 2, v10")
            I(f"s_mul_i32 s{sT0}, s{sWave}, 96\ns_add_u32 s{sT0}, s{sT0}, {QB + 384 * b}\nv_lshl_add_u32 v10, v10, 1, s{sT0}")
            I(f"s_lshl_b32 s{sT0}, s{sWave}, 8\ns_add_u32 s{sT0}, s{sT0}, {CT + 1024 * ty}\nv_lshl_add_u32 v29, v0, 2, s{sT0}")
            if not needC: I("ds_read_b32 v20, v29")
            self.q_addr(b)
            I(f"v_mov_b32 v11, {f32(1 / 640)}")
            if between: between()
        self.gather(loads, range(12, 28 if needC else 20), 28, between=pre)
        def red(r):
            I(f"v_pk_add_f32 {v2(r)}, {v2(r)}, {v2(r+4)}\nv_pk_add_f32 {v2(r+2)}, {v2(r+2)}, {v2(r+6)}")
            I(f"v_permlane32_swap_b32 v{r}, v{r+1}\nv_permlane32_swap_b32 v{r+2}, v{r+3}\nv_add_f32 v{r}, v{r}, v{r+1}\nv_add_f32 v{r+2}, v{r+2}, v{r+3}")
            I(f"v_permlane16_swap_b32 v{r}, v{r+2}\nv_add_f32 v{r}, v{r}, v{r+2}")
        red(12)
        I(f"v_readlane_b32 s{sT0}, v12, 12\nv_readlane_b32 s{sT1}, v12, 44")
        if needC: red(20); I("ds_write_b32 v29, v20")
        I(f"v_mul_f32 v15, s{sT1}, v11\nv_mul_f32 v14, s{sT0}, v11\nv_fma_f32 v14, -v15, v15, v14\nv_max_f32 v14, 0, v14\nv_add_f32 v14, {f32(1e-5)}, v14\nv_rsq_f32 v14, v14")
        I(f"v_fma_f32 v12, -v15, v20, v12\nv_mul_f32 v14, {f32(SCALE)}, v14\nv_mul_f32 v12, v12, v14\nv_cvt_pk_bf16_f32 v12, v12, v12")
        I("s_mov_b32 exec_lo, 0x0fff0fff\ns_mov_b32 exec_hi, 0x0fff0fff\nds_write_b16 v10, v12\ns_mov_b64 exec, -1")
        a.barrier()
    def q_addr(self, b):
        self.a.I(f"v_and_b32 v30, 1, v0\nv_lshrrev_b32 v31, 4, v0\nv_lshlrev_b32 v31, 5, v31\nv_lshl_add_u32 v30, v30, 4, v31\nv_add_u32 v30, {QB + 384 * b}, v30")
    def att(self, b, L, hook1=None, hook2=None, pre_bar=None, guard=False, hoist=False, qaddr=False):
        a = self.a; I = a.I; ty = L & 1; G = 16 if ty else 4; Kn = "KB" if ty else "KA"; Vn = "VB" if ty else "VA"
        vM, vL = 52, 53
        if not qaddr: self.q_addr(b)
        for t in range(3): I(f"ds_read_b128 {v4(vQ + 4 * t)}, v30 offset:{128 * t}")
        def lds_v(g):
            a.wait_tag(("VS", b, g))
            I(f"v_lshl_add_u32 v54, v0, 4, s{sLdsVS}")
            for c in range(3): I(f"ds_read_b128 {v4(vU + 4 + 4 * c)}, v54 offset:{(g - 2) * 3072 + 1024 * c}")
        early = (not ty) and L == 2
        if early: lds_v(2)
        def D(g): return vACC + 4 * (g % 3)
        for g in range(G + 3):
            K = SLOT[(Kn, g)] if g < G else None
            if K: self.check_slot(Kn, b, g)
            e = g - 2
            if K: I(f"v_mfma_f32_16x16x32_bf16 {v4(D(g))}, {K[0]}, {v4(vQ)}, 0")
            if 0 <= e < G: I(f"v_cndmask_b32 v8, v{D(e)}, v{D(e)+2}, {sp(mHI8)}")
            if K: I(f"v_mfma_f32_16x16x32_bf16 {v4(D(g))}, {K[1]}, {v4(vQ+4)}, {v4(D(g))}")
            if 0 <= e < G: I(f"v_cndmask_b32 v9, v{D(e)+1}, v{D(e)+3}, {sp(mHI8)}")
            if 0 <= e - 1 < G: I(f"v_add_f32_dpp v{vU+e-1}, v10, v10 quad_perm:[1,0,3,2] row_mask:0xf bank_mask:0xf")
            if K: I(f"v_mfma_f32_16x16x32_bf16 {v4(D(g))}, {K[2]}, {v4(vQ+8)}, {v4(D(g))}")
            if 0 <= e < G: I(f"v_cndmask_b32 v10, v8, v9, {sp(mODD)}")
            if hook1 and g < G: hook1(g)
        I(f"v_max3_f32 v{vM}, v{vU}, v{vU+1}, v{vU+2}")
        r = 3
        while r + 1 < G: I(f"v_max3_f32 v{vM}, v{vM}, v{vU+r}, v{vU+r+1}"); r += 2
        if r < G: I(f"v_max_f32 v{vM}, v{vM}, v{vU+r}")
        def allred(v, op):
            I(f"{op}_dpp v{v}, v{v}, v{v} row_ror:8 row_mask:0xf bank_mask:0xf")
            I(f"v_mov_b32 v8, v{v}\nv_permlane16_swap_b32 v{v}, v8\n{op} v{v}, v{v}, v8\nv_mov_b32 v8, v{v}\nv_permlane32_swap_b32 v{v}, v8\n{op} v{v}, v{v}, v8")
        allred(vM, "v_max_f32")
        order = list(range(G)) if ty else [2, 0, 1, 3]
        if not ty and not early: order = [0, 1, 2, 3]
        def prob(g, first):
            I(f"v_sub_f32 v{vU+g}, v{vU+g}, v{vM}\nv_exp_f32 v{vU+g}, v{vU+g}")
        def prob2(g, first):
            I(f"v_mov_b32 v{vL}, v{vU+g}" if first else f"v_add_f32 v{vL}, v{vL}, v{vU+g}")
            I(f"v_cvt_pk_bf16_f32 v{vU+g}, v{vU+g}, v{vU+g}")
        def diag(i, j): I(f"v_and_b32 v{vQ + 4 * (i & 1) + j}, v{vU + order[i]}, v{vMask + j}")
        prob(order[0], True); prob2(order[0], True)
        for j in range(4): diag(0, j)
        prob(order[1], False); prob2(order[1], False)
        for i, g in enumerate(order):
            self.check_slot(Vn, b, g)
            if (Vn, g) in SLOT: V = SLOT[(Vn, g)]
            else:
                if not (early and g == 2) and not (early and g == 3): lds_v(g)
                V = [v4(vU + 4 + 4 * c) for c in range(3)]
            A = v4(vQ + 4 * (i & 1))
            nx = i + 1 < G; nx2 = i + 2 < G
            for c in range(3):
                acc = v4(vACC + 4 * c)
                I(f"v_mfma_f32_16x16x32_bf16 {acc}, {A}, {V[c]}, {acc if i else 0}")
                if c == 0:
                    if nx: diag(i + 1, 0); diag(i + 1, 1)
                    if nx2: prob(order[i + 2], False)
                if c == 1:
                    if nx: diag(i + 1, 2); diag(i + 1, 3)
                if c == 2:
                    if nx2: prob2(order[i + 2], False)
            if early and g == 2: lds_v(3)
            if i == G - 2: allred(vL, "v_add_f32")
            if hook2: hook2(i)
        if guard: a.barrier()
        inst = 4 * b + L
        I(f"v_and_b32 v54, 15, v0\nv_lshlrev_b32 v54, 5, v54\nv_and_b32 v8, 16, v0\ns_mul_i32 s{sT0}, s{sWave}, 1536\ns_add_u32 s{sT0}, s{sT0}, {ATT}\nv_add3_u32 v54, v54, v8, s{sT0}")
        I(f"s_lshl_b32 s{sT0}, s{sWave}, 2\ns_add_u32 s{sT0}, s{sT0}, {STAT}\nv_mov_b32 v8, s{sT0}\nds_write_b32 v8, v{vM}\nds_write_b32 v8, v{vL} offset:16")
        for c, (lo, hi) in enumerate(((0xffffffff, 0), (0x00ff00ff, 0xff00ff00), (0, 0xffffffff))):
            I(f"s_mov_b32 exec_lo, {lo:#x}\ns_mov_b32 exec_hi, {hi:#x}\nds_write_b128 v54, {v4(vACC + 4 * c)} offset:{512 * c}")
        I("s_mov_b64 exec, -1")
        I(f"v_mov_b32 v9, {STAT}\ns_lshl_b32 s{sT0}, s{sWave}, 8\ns_add_u32 s{sT0}, s{sT0}, {ATT}\nv_lshl_add_u32 v10, v0, 2, s{sT0}")
        I(f"s_lshl_b32 s{sT0}, s{sWave}, 7\nv_lshl_add_u32 v11, v0, 1, s{sT0}\ns_add_u32 s{sOffP}, s{sH2own}, {inst * H2_I}")
        if hoist: self.wo_addr(b, L)
        if pre_bar: pre_bar()
        self.fs("att_end")
        a.barrier()
        self.combine(b, L)
        self.fs("pub2")
    def combine(self, b, L):
        a = self.a; I = a.I; inst = 4 * b + L
        I("ds_read_b128 v[44:47], v9\nds_read_b128 v[48:51], v9 offset:16")
        for i in range(8): I(f"ds_read_b32 v{12 + i}, v10 offset:{768 * i}")
        I("v_max3_f32 v52, v44, v45, v46\nv_max_f32 v52, v52, v47")
        for w in range(4): I(f"v_sub_f32 v{44+w}, v{44+w}, v52")
        for w in range(4): I(f"v_exp_f32 v{44+w}, v{44+w}")
        for w in range(4): I(f"v_add_f32 v{12 + 2 * w}, v{12 + 2 * w}, v{13 + 2 * w}")
        I("v_mul_f32 v20, v44, v12\nv_fmac_f32 v20, v45, v14\nv_fmac_f32 v20, v46, v16\nv_fmac_f32 v20, v47, v18")
        I("v_mul_f32 v53, v44, v48\nv_fmac_f32 v53, v45, v49")
        I("v_mov_b32_dpp v21, v20 quad_perm:[1,1,3,3] row_mask:0xf bank_mask:0xf")
        I("v_fmac_f32 v53, v46, v50\nv_fmac_f32 v53, v47, v51\nv_cvt_pk_bf16_f32 v20, v20, v21")
        I(f"v_cndmask_b32 v52, v52, v53, {sp(mBIT1)}\nv_cndmask_b32 v20, v20, v52, {sp(mW3)}\nv_min_u32 v20, -2, v20")
        I(f"s_not_b64 exec, {sp(mODD)}")
        self.publish(f"buffer_store_dword v20, v11, {s4(WS)}, s{sOffP} offen {{pol}}", True)
        I("s_mov_b64 exec, -1")
    def wo_addr(self, b, L):
        I = self.a.I
        I(f"v_bfe_u32 v8, v0, 1, 3\nv_lshrrev_b32 v22, 4, v0\nv_and_b32 v7, 1, v0\nv_lshl_add_u32 v7, v22, 1, v7\nv_lshlrev_b32 v7, 4, v7\nv_lshl_add_u32 v7, v8, 9, v7")
        I(f"v_lshl_add_u32 v8, v22, 1, v8\nv_and_b32 v8, 7, v8\nv_lshlrev_b32 v8, 9, v8\ns_add_u32 s{sOffG}, s{sH2grp}, {(4 * b + L) * H2_I}")
    def wo(self, b, L, between=None, hoisted=False, hoist=False):
        a = self.a; I = a.I; inst = 4 * b + L; ty = L & 1
        if not hoisted: self.wo_addr(b, L)
        loads = [f"buffer_load_dwordx2 v[52:53], v8, {s4(WS)}, s{sOffG} offen offset:384 sc1"]
        loads += [f"buffer_load_dwordx4 {v4(12 + 4 * t)}, v7, {s4(WS)}, s{sOffG} offen offset:{128 * t} sc1" for t in range(3)]
        S = [24, 28, 32, 36, 40, 44]
        def rd(kk, reg, tile):
            o = 10240 * (kk >> 1) + 1280 * (kk & 1) + 32 * tile
            I(f"ds_read_b64_tr_b16 {v2(reg)}, v10 offset:{o}\nds_read_b64_tr_b16 {v2(reg + 2)}, v10 offset:{o + 640}")
        def pre():
            I(f"v_bfe_u32 v10, v0, 2, 2\nv_and_b32 v11, 48, v0\nv_add_u32 v10, v10, v11\nv_mul_u32_u24 v10, 160, v10\nv_and_b32 v11, 3, v0\nv_lshl_add_u32 v10, v11, 3, v10")
            I(f"s_lshl_b32 s{sT0}, s{sW2}, 6\ns_add_u32 s{sT1}, s{sT0}, {WO[ty]}\nv_add_u32 v10, s{sT1}, v10")
            for kk in range(6): rd(kk, S[kk], 0)
            I(f"v_and_b32 v11, 15, v0\nv_lshlrev_b32 v11, 1, v11\nv_and_b32 v9, 32, v0\nv_add3_u32 v11, v11, v9, s{sT0}\ns_add_u32 s{sOffP}, s{sH3own}, {inst * H3_I}")
            if hoist: self.yg_addr()
            if between: between()
        self.gather(loads, [52, 53] + list(range(12, 24)), 9, between=pre)
        def mm(D, t, B, first): I(f"v_mfma_f32_16x16x32_bf16 {v4(D)}, {v4(12 + 4 * t)}, {v4(B)}, {0 if first else v4(D)}")
        dpp = lambda op, d, x, ctl: I(f"{op}_dpp v{d}, v{x}, v{x} {ctl} row_mask:0xf bank_mask:0xf")
        D0, D1 = 48, 24
        def fold(out):
            I(f"v_add_f32 v{D0}, v{D0}, v{D1 + 1}\nv_add_f32 v{D0 + 2}, v{D0 + 2}, v{D1 + 3}\nv_mul_f32 v{out}, v7, v{D0}\nv_fmac_f32 v{out}, v8, v{D0 + 2}")
        mm(D0, 0, S[0], True); dpp("v_max_f32", 9, 52, "row_ror:8")
        mm(D0, 1, S[2], False); rd(0, S[2], 1); dpp("v_max_f32", 9, 9, "row_ror:4")
        mm(D0, 2, S[4], False); rd(2, S[4], 1); dpp("v_max_f32", 9, 9, "row_ror:2")
        mm(D1, 0, S[1], True); I("v_sub_f32 v52, v52, v9\nv_exp_f32 v52, v52"); rd(4, S[1], 1); I("v_mul_f32 v53, v52, v53")
        mm(D1, 1, S[3], False); rd(1, S[3], 1); dpp("v_add_f32", 53, 53, "row_ror:8")
        mm(D1, 2, S[5], False); rd(3, S[5], 1); dpp("v_add_f32", 53, 53, "row_ror:4")
        dpp("v_add_f32", 53, 53, "row_ror:2")
        I("v_rcp_f32 v53, v53\nv_mul_f32 v52, v52, v53")
        I("v_mov_b32_dpp v7, v52 row_newbcast:0 row_mask:0xf bank_mask:0xf\nv_mov_b32_dpp v8, v52 row_newbcast:2 row_mask:0xf bank_mask:0xf")
        fold(52)
        mm(D0, 0, S[2], True); rd(5, S[2], 1)
        mm(D0, 1, S[4], False); mm(D0, 2, S[1], False)
        mm(D1, 0, S[3], True); mm(D1, 1, S[5], False); mm(D1, 2, S[2], False)
        fold(53)
        I("v_permlane32_swap_b32 v52, v53\nv_add_f32 v52, v52, v53\nv_mov_b32 v53, v52\nv_permlane16_swap_b32 v52, v53\nv_add_f32 v52, v52, v53")
        I("v_mov_b32_dpp v53, v52 quad_perm:[1,1,3,3] row_mask:0xf bank_mask:0xf\nv_cvt_pk_bf16_f32 v52, v52, v53\nv_min_u32 v52, -2, v52")
        I(f"s_mov_b64 exec, {sp(mWOST)}")
        self.publish(f"buffer_store_dword v52, v11, {s4(WS)}, s{sOffP} offen {{pol}}", False)
        I("s_mov_b64 exec, -1")
    def yg_addr(self):
        self.a.I(f"v_lshrrev_b32 v54, 4, v0\nv_lshlrev_b32 v54, 8, v54\nv_and_b32 v9, 15, v0\nv_lshl_add_u32 v54, v9, 4, v54")
    def yg_pre(self, b, L):
        I = self.a.I
        I(f"s_lshl_b32 s{sT0}, s{sWave}, 11\ns_add_u32 s{sOffG}, s{sH3grp}, s{sT0}\ns_add_u32 s{sOffG}, s{sOffG}, {(4 * b + L) * H3_I}")
        for j in range(4): I(f"v_and_b32 v{16 + j}, 0x3f803f80, v{vMask + j}")
    def yg(self, b, L, between=None, pre_bar=None, hoisted=False):
        a = self.a; I = a.I; inst = 4 * b + L; Yb = Y + YSZ * b
        if not hoisted: self.yg_addr(); self.yg_pre(b, L)
        loads = [f"buffer_load_dwordx4 {v4(8 + 4 * j)}, v54, {s4(WS)}, s{sOffG} offen offset:{4 * H3_H * j} sc1" for j in range(2)]
        self.gather(loads, range(8, 16), 7, between=between, emask=sp(mN10))
        I("s_mov_b64 exec, -1")
        I("v_mfma_f32_16x16x32_bf16 v[20:23], v[16:19], v[8:11], 0\nv_mfma_f32_16x16x32_bf16 v[20:23], v[16:19], v[12:15], v[20:23]")
        I(f"v_and_b32 v7, 15, v0\nv_lshlrev_b32 v7, 5, v7\nv_and_b32 v54, 16, v0\ns_mul_i32 s{sT0}, s{sWave}, 320\ns_add_u32 s{sT0}, s{sT0}, {Yb}\nv_add3_u32 v7, v7, v54, s{sT0}")
        I(f"s_mov_b32 exec_lo, s{mN10}\ns_mov_b32 exec_hi, 0\nds_write_b128 v7, v[20:23]\ns_mov_b64 exec, -1")
        I(f"s_mul_i32 s{sT0}, s{sWave}, 160\ns_add_u32 s{sT0}, s{sT0}, {XROW + 640 * b}\nv_lshl_add_u32 v7, v0, 2, s{sT0}\nds_read_b32 v54, v7")
        I(f"v_lshlrev_b32 v14, 3, v0\nv_add_u32 v14, {Yb}, v14")
        if L < 3: self.wq_addr(b, L + 1)
        if pre_bar: pre_bar()
        a.barrier()
        I("s_mov_b32 exec_hi, 0xff")
        for i in range(4): I(f"ds_read_b64 {v2(8 + 2 * i)}, v14 offset:{320 * i}")
        I("v_lshlrev_b32 v16, 16, v54\nv_and_b32 v17, 0xffff0000, v54")
        I("v_pk_add_f32 v[8:9], v[8:9], v[10:11]\nv_pk_add_f32 v[12:13], v[12:13], v[14:15]\nv_pk_add_f32 v[8:9], v[8:9], v[12:13]")
        I("v_cvt_pk_bf16_f32 v8, v8, v9\nv_and_b32 v9, 0xffff0000, v8\nv_lshlrev_b32 v8, 16, v8\nv_pk_add_f32 v[8:9], v[8:9], v[16:17]\nv_cvt_pk_bf16_f32 v8, v8, v9")
        if L < 3: I("ds_write_b32 v7, v8")
        else:
            I(f"s_or_b32 s{sT0}, s{sWave}, s{sH}\ns_cmp_lg_u32 s{sT0}, 0"); a.skip_begin("s_cbranch_scc1")
            I(f"s_mul_i32 s{sT0}, s{sS}, 160\nv_lshlrev_b32 v7, 2, v0")
            I(f"buffer_store_dword v8, v7, {s4(XO)}, s{sT0} offen offset:{1280 * b}")
            a.skip_end()
        I("s_mov_b64 exec, -1")
    def touch(self, b, L):
        if not self.c.get("touch", 0): return
        a = self.a; I = a.I
        I(f"s_lshl_b32 s{sT0}, s{sWave}, 7\nv_lshl_add_u32 v30, v0, 1, s{sT0}\nv_and_b32 v30, -4, v30\ns_add_u32 s{sT1}, s{sH2own}, {(4 * b + L) * H2_I}\ns_mov_b32 m0, {JUNK}")
        I(f"buffer_load_dword v30, {s4(WS)}, s{sT1} offen sc1 lds")
        if L < 3:
            I(f"v_lshlrev_b32 v30, 1, v30\ns_add_u32 s{sT1}, s{sH1own}, {(4 * b + L + 1) * H1_I}")
            I(f"buffer_load_dword v30, {s4(WS)}, s{sT1} offen sc1 lds")
    def chain_idle(self, b, L, burst=(0, 0, 0)):
        a = self.a
        self.wo(b, L, between=lambda: self.stream(burst[0], paced=False), hoisted=True, hoist=True)
        self.stamp(f"wo{b}{L}")
        self.fs("pub3")
        if L < 3: self.wq_pre((L + 1) & 1)
        elif not self.c.get("diag"): a.I(f"s_cmp_lg_u32 s{sH}, 0\ns_cbranch_scc1 L_end")
        self.yg_pre(b, L)
        a.wait_tag("pub"); a.barrier()
        self.yg(b, L, between=lambda: self.stream(burst[1], paced=False), hoisted=True)
        self.fs("xrow")
        if L == 3: return
        self.wq_main(b, L + 1, hoisted=True, hoist=True)
        self.fs("pub1")
        self.stamp(f"wq{b}{L+1}")
        self.qg(b, L + 1, between=lambda: self.stream(burst[2], paced=False), hoisted=True)
        self.stamp(f"qg{b}{L+1}")
    def build(self):
        a = self.a; c = self.c; W = self.W
        self.off_val = None
        self.add_w("wqA", pWQA, "q", 0)
        for g in range(4): self.add_kv("KA", 0, g)
        for g in range(4): self.add_kv("VA", 0, g)
        self.add_w("woA", pWOA, "o", 0); self.add_w("wqB", pWQB, "q", 1)
        for g in range(16): self.add_kv("KB", 0, g)
        self.add_w("woB", pWOB, "o", 1)
        for g in range(16): self.add_kv("VB", 0, g)
        p1 = len(self.items)
        for g in range(4): self.add_kv("KA", 1, g)
        for g in range(4): self.add_kv("VA", 1, g)
        p2 = len(self.items)
        for g in range(16): self.add_kv("KB", 1, g)
        for g in range(16): self.add_kv("VB", 1, g)
        st = self.stream_to; S = lambda n: (lambda: self.stream(n))
        self.limit = p1
        self.setup()
        if c.get("inject", 1): a.inject = self.injector
        if c.get("streamonly"):
            self.limit = 10**9; a.inject = None
            for upto in c["streamonly"]:
                st(upto); a.wait(vm=0) if c.get("drain") else None; self.stamp("end")
            a.wait(vm=0); self.stamp("end")
            return self.finish()
        P = c.get("P1", dict(arr=24, hs=36, qg0=44, wo=76, yg=104, qg1=130))
        a.raw("L_pf0:")
        self.stamp("setup")
        st(P["arr"])
        self.stamp("arr")
        a.wait_tag("wqA"); a.wait_tag("clr"); a.barrier()
        self.arrive()
        self.wq_pre(0); self.wq_main(0, 0, local_ok=False)
        self.wq_pre(0); self.wq_main(1, 0, local_ok=False)
        self.stamp("wq")
        st(P["hs"]); self.handshake(S(W))
        self.stamp("hs")
        st(P["qg0"]); self.qg(0, 0, between=S(W))
        self.stamp()
        self.att(0, 0, pre_bar=lambda: (st(self.index_after("woA")), a.wait_tag("woA")))
        self.stamp()
        self.qg(1, 0, between=S(W))
        self.stamp("qg10")
        st(P["wo"]); self.wo(0, 0, between=S(W))
        self.stamp("wo00")
        st(P["yg"]); self.yg(0, 0, between=S(W), pre_bar=lambda: a.wait_tag("wqB"))
        self.stamp("yg00")
        self.wq_pre(1); self.wq_main(0, 1, hoisted=True)
        if c.get("cpf") == 2: self.code_prefetch("L_pf1", "L_pf2")
        st(P["qg1"]); self.qg(0, 1, between=S(W))
        a.raw("L_pf1:")
        self.stamp()
        assert self.pos >= self.index_after("woB")
        vb0 = self.index_after("woB")
        self.att(0, 1, hook1=lambda g: self.stream(1) if g % 4 == 3 else None,
                 hook2=lambda i: st(min(p1, vb0 + 3 * (i + 2) + W - 3)), pre_bar=lambda: a.wait_tag("woB"), hoist=True, qaddr=True)
        assert self.pos == p1
        a.inject = None; self.limit = p2
        self.stamp("p1end")
        self.chain_idle(0, 1)
        bu = c.get("burst", (6, 6, 6, 6))
        self.att(0, 2, hook2=lambda i: self.stream(bu[0], paced=False) if i == 0 else None, hoist=True, qaddr=True)
        self.stamp()
        self.chain_idle(0, 2, burst=bu[1:])
        st(p2, paced=False)
        self.stamp("p2beg")
        self.limit = len(self.items)
        n0 = c.get("n0", 9)
        self.att(0, 3, hook1=lambda g: self.stream(3, paced=False) if 3 * g + 3 <= n0 else None,
                 hook2=lambda i: self.stream(1, paced=False) if i % 4 == 3 else None, qaddr=True)
        self.stamp()
        a.raw("L_pf2:")
        P = c.get("P2", dict(wo=34, yg=58, qg=80))
        if c.get("inject", 1): a.inject = self.injector
        self.att(1, 0, guard=True, hook2=lambda i: self.stream(2))
        st(p2 + P["wo"]); self.wo(1, 0, between=S(W)); self.wo(0, 3, between=S(W))
        st(p2 + P["yg"]); self.yg(1, 0, between=S(W))
        self.wq_pre(1); self.wq_main(1, 1, hoisted=True)
        self.yg(0, 3, between=S(W), pre_bar=None)
        if c.get("cpf") == 2: self.code_prefetch("L_pf3", "L_pf9")
        st(p2 + P["qg"]); self.qg(1, 1, between=S(W))
        a.raw("L_pf3:")
        self.stamp()
        vb1 = p2 + 48
        self.att(1, 1, hook1=lambda g: self.stream(1) if g % 4 == 3 else None,
                 hook2=lambda i: st(min(len(self.items), vb1 + 3 * (i + 2) + W - 3)), hoist=True, qaddr=True)
        assert self.pos == len(self.items)
        a.inject = None
        self.stamp("p2end")
        self.chain_idle(1, 1)
        self.fine_on = c.get("fine") == 1
        self.fs("q_ready")
        self.att(1, 2, hoist=True, qaddr=True)
        self.stamp("att12")
        self.chain_idle(1, 2)
        self.fs("q_ready")
        if c.get("fine") == 2: self.fine_on = True; self.fs("q_ready")
        self.att(1, 3, hoist=True, qaddr=True)
        self.stamp("att13")
        self.chain_idle(1, 3)
        self.fs("end")
        self.stamp("end")
        return self.finish()
    def finish(self):
        a = self.a; c = self.c
        if c.get("fine"):
            a.wait(lg=0)
            for i in range(self.nfine): a.I(f"v_writelane_b32 v{vStamp}, s{FS[i]}, {i}")
            print("fine stamps:", self.fnames)
        if c.get("diag"):
            a.I(f"v_writelane_b32 v{vStamp}, s{sRetry}, 62\nv_writelane_b32 v{vStamp}, s{sLocal}, 63")
            a.I(f"s_lshl_b32 s{sT0}, s{sWG}, 10\ns_lshl_b32 s{sT1}, s{sWave}, 8\ns_add_u32 s{sT0}, s{sT0}, s{sT1}\ns_add_u32 s{sT0}, s{sT0}, {DIAG}\nv_lshlrev_b32 v7, 2, v0")
            a.I(f"buffer_store_dword v{vStamp}, v7, {s4(WS)}, s{sT0} offen")
        if c.get("diag") and not c.get("fine"): print("stamps:", " ".join(self.snames))
        a.raw("L_end:"); a.raw("  s_endpgm")
        a.tail.append("L_pf9:\n  s_endpgm")
        body = a.text()
        return (HEAD + f"; @launch grid=(256,1,1) block=(256,1,1) lds={LDS_BYTES}\n"
                + f'.amdgcn_target "amdgcn-amd-amdhsa--gfx950"\n.text\n.globl {NAME}\n.p2align 8\n.type {NAME},@function\n{NAME}:\n'
                + body + f'.section .rodata,"a"\n.p2align 6\n.amdhsa_kernel {NAME}\n  .amdhsa_next_free_vgpr 512\n  .amdhsa_next_free_sgpr 102\n'
                + "  .amdhsa_accum_offset 256\n  .amdhsa_group_segment_fixed_size 0\n  .amdhsa_kernarg_size 104\n  .amdhsa_user_sgpr_count 2\n"
                + "  .amdhsa_user_sgpr_kernarg_segment_ptr 1\n  .amdhsa_system_sgpr_workgroup_id_x 1\n.end_amdhsa_kernel\n")

def generate(cfg): return Gen(cfg).build()
if __name__ == "__main__":
    cfg = eval(sys.argv[2]) if len(sys.argv) > 2 else {}
    open(sys.argv[1], "w").write(generate(cfg))
```

```python
import sys, math
from dsl import Asm

NAME = "interleave_layers__sliding_block_cached__gqa_block_cached__decode_kernel"
HEAD = open("interleave_layers__sliding_block_cached__gqa_block_cached__decode.s.ref").read().split("; Override")[0]

KV_BYTES = 2 * 32 * 4096 * 384
BSTR = 32 * 4096 * 384
HSTR = 4096 * 384
W_BYTES = 640 * 6144 * 2
WS_BYTES = 434115584
H1_I, H1_H, H1_S = 524288, 16384, 2048
H2 = 8 * H1_I; H2_I, H2_H, H2_S = 131072, 4096, 512
H3 = H2 + 8 * H2_I; H3_I, H3_S, H3_H = 65536, 8192, 256
DIAG = 8 << 20
WQ = (0, 61440); WO = (30720, 92160)
VS = 122880
EX = 147456
ATT = EX; STAT = EX + 6144; Y = EX + 6208; YSZ = 1280; XROW = Y + 2 * YSZ; ONES = XROW + 1280; QB = ONES + 160; CT = QB + 768
JUNK = CT + 2048
LDS_BYTES = JUNK + 256
assert LDS_BYTES <= 163840
sWG, sWave = 2, 3
KA, VA, KB, VB, WS, WT, XO = 4, 8, 12, 16, 20, 24, 28
pX, pKA, pVA, pWQA, pWOA, pKB, pVB, pWQB, pWOB, pOUT, pDBG, pWS = 32, 34, 36, 38, 40, 44, 46, 48, 50, 52, 54, 56
sH, sS, sLocal, sOff, sRetry, sT0, sT1, sT2 = 58, 59, 60, 61, 62, 63, 64, 65
sH1own, sH1grp, sH2own, sH2grp, sH3own, sH3grp, sOffG, sOffP = 66, 67, 68, 69, 70, 71, 72, 73
mODD, mHI8, mHI32, mWOST, mRG1, mRG2, mRG3, m60 = 74, 76, 78, 80, 82, 84, 86, 88
sXcc, sWqRow, sWoRow, sLdsW, sLdsVS = 90, 91, 92, 93, 94
sST = 96; m40 = 98; mBIT1 = 100; mW3 = 42; mN10 = 32; sW2 = 95; sOffG2 = 35; sClr = 60
FS = [36, 38, 40, 44, 46, 48, 50, 52, 54, 56, 24, 26, 88, 90, 92]
def sp(n): return f"s[{n}:{n+1}]"
def s4(n): return f"s[{n}:{n+3}]"
def v2(n): return f"v[{n}:{n+1}]"
def v4(n): return f"v[{n}:{n+3}]"
vLane, vKoff, vVoff, vMask = 0, 1, 2, 3
vQ, vACC, vU = 12, 24, 36
vStamp = 55
QUADS = [f"a[{i}:{i+3}]" for i in range(0, 256, 4)] + [f"v[{i}:{i+3}]" for i in range(56, 256, 4)]
SLOT = {}
_names = [("KA", i) for i in range(4)] + [("VA", 0), ("VA", 1)] + [("KB", i) for i in range(16)] + [("VB", i) for i in range(16)]
for i, n in enumerate(_names): SLOT[n] = QUADS[3 * i:3 * i + 3]
assert SLOT[("VB", 15)][2] == "v[252:255]"
vWq0, vWq1, vWo = 252, 253, 254
SCALE = 192 ** -0.5 * math.log2(math.e)
import struct
def f32(x): return "0x%08x" % struct.unpack("<I", struct.pack("<f", x))[0]

class Gen:
    def __init__(self, cfg):
        self.c = cfg; self.a = Asm(); self.items = []; self.pos = 0; self.nstamp = 0
        self.W = cfg.get("W", 10); self.limit = 10**9; self.last_cyc = 0; self.fine_on = False; self.nfine = 0; self.fnames = []; self.snames = ['start']
    def add_w(self, name, ptr, kind, ty):
        pol = self.c.get("wpol", "nt")
        def mk(k):
            def f():
                a = self.a
                if k == 0:
                    off = sWqRow if kind == "q" else sWoRow
                    a.I(f"s_add_u32 s{WT}, s{ptr}, s{off}\ns_addc_u32 s{WT+1}, s{ptr+1}, 0\ns_sub_u32 s{WT+2}, {W_BYTES}, s{off}")
                base = (WQ if kind == "q" else WO)[ty]
                a.I(f"s_add_u32 m0, s{sLdsW}, {base + 960 * k}")
                if kind == "q": so = 5 * (k // 2) * 12288; vr = vWq1 if k & 1 else vWq0
                else: so = 6 * k * 1280; vr = vWo
                a.I(f"s_mov_b32 s{sOff}, {so}\ns_mov_b64 exec, {sp(m60)}")
                a.I(f"buffer_load_dwordx4 v{vr}, {s4(WT)}, s{sOff} offen {pol} lds", tag=name)
                a.I("s_mov_b64 exec, -1")
            return f
        self.items += [(name, mk(k)) for k in range(8)]
    def add_kv(self, name, b, g):
        srd = {"KA": KA, "VA": VA, "KB": KB, "VB": VB}[name]
        isK = name[0] == "K"; vo = vKoff if isK else vVoff; step = 128 if isK else 256
        pol = self.c.get("kvpol", "nt")
        def mk(c):
            def f():
                a = self.a
                if (name, g) in SLOT:
                    if c == 0: a.I(f"s_mov_b32 s{sOff}, {b * BSTR + g * 3072}")
                    elif self.off_val != (name, b, g): a.I(f"s_mov_b32 s{sOff}, {b * BSTR + g * 3072}")
                    self.off_val = (name, b, g)
                    a.I(f"buffer_load_dwordx4 {SLOT[(name, g)][c]}, v{vo}, {s4(srd)}, s{sOff} offen offset:{step * c} {pol}")
                else:
                    self.off_val = None
                    a.I(f"s_add_u32 m0, s{sLdsVS}, {(g - 2) * 3072 + 1024 * c}\ns_mov_b32 s{sOff}, {b * BSTR + g * 3072 + step * c}")
                    a.I(f"buffer_load_dwordx4 v{vo}, {s4(srd)}, s{sOff} offen {pol} lds", tag=("VS", b, g))
            return f
        self.items += [((name, b, g), mk(c)) for c in range(3)]
    def stream(self, n, paced=True, W=None):
        for _ in range(n):
            if self.pos >= len(self.items): return
            assert self.pos < self.limit, (self.pos, self.limit)
            if paced: self.a.pace(W or self.W)
            sv = self.a._in_inject; self.a._in_inject = True
            self.items[self.pos][1](); self.pos += 1; self.last_cyc = self.a.cyc
            if self.c.get("diag") == 3 and self.pos % 8 == 0 and self.pos > 8: self.stamp("pos")
            self.a._in_inject = sv
    def injector(self):
        a = self.a
        if self.pos < self.limit and a.cyc - self.last_cyc >= self.c.get("T", 330) and a.vm.outstanding() < self.W + self.c.get("XW", 6):
            self.stream(1, paced=False)
    def stream_to(self, upto, **k): self.stream(max(0, upto - self.pos), **k)
    def index_after(self, name):
        return max(i for i, it in enumerate(self.items) if it[0] == name) + 1
    def fs(self, name):
        if not self.fine_on or self.nfine >= len(FS): return
        self.a.I(f"{'s_memrealtime' if self.c.get('rt') else 's_memtime'} {sp(FS[self.nfine])}"); self.nfine += 1; self.fnames.append(name)
    def check_slot(self, name, b, g):
        assert self.index_after((name, b, g)) <= self.pos, ("not issued", name, b, g, self.pos)
        if b == 0: assert self.index_after((name, 1, g)) - 3 >= self.pos, ("overwritten", name, g)
    def stamp(self, name=''):
        self.snames.append(f'{name}@{self.pos}')
        if not self.c.get("diag") or self.c.get("fine"): return
        if self.c["diag"] == 3 and name not in ("pos", "end"): self.snames.pop(); return
        if self.c["diag"] == 2 and name not in self.c.get("only", ("p1end", "p2beg", "p2end", "end")): self.snames.pop(); return
        a = self.a
        a.I(f"s_memrealtime {sp(sST)}"); a.wait(lg=0)
        a.I(f"v_writelane_b32 v{vStamp}, s{sST if not self.c.get('rcount') else sRetry}, {self.nstamp}"); self.nstamp += 1
    def publish(self, text, local_ok):
        a = self.a
        if local_ok and self.c.get("local", True):
            a.I(f"s_cmp_lg_u32 s{sLocal}, 0")
            a.either(text.format(pol=""), text.format(pol="sc1"), tag="pub")
        else: a.I(text.format(pol="sc1"), tag="pub")
    def gather(self, loads, regs, tmp, between=None, emask=None, sleep=None):
        a = self.a
        if emask: a.I(f"s_mov_b64 exec, {emask}")
        for t in loads: a.I(t, tag="gat")
        last = len(a.vm.ent) - 1
        if between:
            if emask: a.I("s_mov_b64 exec, -1")
            between()
            if emask: a.I(f"s_mov_b64 exec, {emask}")
        self.fs("issued")
        n = a.vm.need(last)
        if n is not None: a.wait(vm=n)
        chk = a.label("Lc"); rt = a.label("Lr")
        a.raw(f"{chk}:"); a.no_inject += 1
        r = list(regs)
        if len(r) == 1: cur = r.pop()
        else:
            if len(r) >= 3: a.I(f"v_max3_u32 v{tmp}, v{r[0]}, v{r[1]}, v{r[2]}"); r = r[3:]
            else: a.I(f"v_max_u32 v{tmp}, v{r[0]}, v{r[1]}"); r = []
            while len(r) >= 2: a.I(f"v_max3_u32 v{tmp}, v{tmp}, v{r[0]}, v{r[1]}"); r = r[2:]
            if r: a.I(f"v_max_u32 v{tmp}, v{tmp}, v{r[0]}")
            cur = tmp
        a.I(f"v_cmp_eq_u32 vcc, -1, v{cur}")
        if not (self.c.get("novalid") and a.inject): a.I(f"s_cbranch_vccnz {rt}")
        self.retry_block(rt, chk, loads, sleep); a.no_inject -= 1
        self.fs("valid")
    def lsleep(self): return None if self.a.inject else self.c.get('lsleep', 1)
    def retry_block(self, rt, chk, loads, sleep=None):
        a = self.a
        a.tail += [f"{rt}:", f"  s_add_u32 s{sRetry}, s{sRetry}, 1", f"  s_cmp_gt_u32 s{sRetry}, {self.c.get('spin', 200000)}",
                   "  s_cbranch_scc1 L_end"]
        if sleep is None: sleep = self.c.get("sleep", 1)
        if sleep: a.tail += [f"  s_sleep {sleep}"]
        a.tail += ["  " + t for t in loads] + ["  s_waitcnt vmcnt(0)", f"  s_branch {chk}"]
    def setup(self):
        a = self.a; I = a.I
        I(f"s_cmp_ge_u32 s{sWG}, 256\ns_cbranch_scc1 L_end")
        I(f"s_load_dwordx16 s[32:47], s[0:1], 0\ns_load_dwordx8 s[48:55], s[0:1], 64\ns_load_dwordx2 s[56:57], s[0:1], 96")
        if self.c.get("diag"): I(f"s_memrealtime {sp(sST)}")
        I(f"v_lshrrev_b32 v8, 6, v0\nv_and_b32 v0, 63, v0\nv_readfirstlane_b32 s{sWave}, v8")
        I(f"s_and_b32 s{sT0}, s{sWG}, 7\ns_lshl_b32 s{sT0}, s{sT0}, 2\ns_lshr_b32 s{sT1}, s{sWG}, 3\ns_and_b32 s{sT1}, s{sT1}, 3\ns_add_u32 s{sH}, s{sT0}, s{sT1}\ns_lshr_b32 s{sS}, s{sWG}, 5")
        I(f"v_mul_u32_u24 v8, 43, v0\nv_lshrrev_b32 v8, 10, v8\nv_mul_u32_u24 v9, 24, v8\nv_sub_u32 v9, v0, v9\nv_mul_u32_u24 v8, 0x3000, v8\nv_lshl_add_u32 v{vWq0}, v9, 4, v8")
        I(f"v_add_u32 v10, 60, v0\nv_mul_u32_u24 v8, 43, v10\nv_lshrrev_b32 v8, 10, v8\nv_mul_u32_u24 v9, 24, v8\nv_sub_u32 v9, v10, v9\nv_mul_u32_u24 v8, 0x3000, v8\nv_lshl_add_u32 v{vWq1}, v9, 4, v8")
        I(f"s_mul_i32 s{sT0}, s{sS}, {80 * 12288}\ns_mul_i32 s{sT1}, s{sWave}, {20 * 12288}\ns_add_u32 s{sT0}, s{sT0}, s{sT1}\ns_mul_i32 s{sT1}, s{sH}, 384\ns_add_u32 s{sWqRow}, s{sT0}, s{sT1}")
        I(f"s_mul_i32 s{sT0}, s{sH}, {192 * 1280}\ns_mul_i32 s{sT1}, s{sWave}, {48 * 1280}\ns_add_u32 s{sT0}, s{sT0}, s{sT1}\ns_mul_i32 s{sT1}, s{sS}, 160\ns_add_u32 s{sWoRow}, s{sT0}, s{sT1}")
        I(f"s_mul_i32 s{sLdsW}, s{sWave}, 7680\ns_mov_b32 s{m60}, -1\ns_mov_b32 s{m60+1}, 0x0fffffff\ns_mov_b32 s{WT+3}, 0x20000\ns_mov_b32 s{sRetry}, 0")
        I(f"v_and_b32 v8, 15, v0\nv_lshrrev_b32 v9, 4, v0")
        I(f"v_lshrrev_b32 v10, 1, v8\nv_mul_u32_u24 v10, 384, v10\nv_and_b32 v11, 1, v8\nv_lshl_add_u32 v11, v9, 1, v11\nv_lshl_add_u32 v{vKoff}, v11, 4, v10")
        I(f"v_mul_u32_u24 v10, 768, v9\nv_lshl_add_u32 v{vVoff}, v8, 4, v10")
        I(f"s_mul_i32 s{sT0}, s{sH}, {HSTR}\ns_mul_i32 s{sT1}, s{sS}, {128 * 384}\ns_add_u32 s{sT1}, s{sT1}, s{sT0}\ns_mul_i32 s{sT2}, s{sWave}, {32 * 384}\ns_add_u32 s{sT1}, s{sT1}, s{sT2}\ns_add_u32 s{sOffG}, s{sT1}, {3072 * 384}")
        I(f"s_mul_i32 s{sT1}, s{sS}, {512 * 384}\ns_add_u32 s{sT1}, s{sT1}, s{sT0}\ns_mul_i32 s{sT2}, s{sWave}, {128 * 384}\ns_add_u32 s{sOffP}, s{sT1}, s{sT2}")
        I(f"s_mul_i32 s{sLdsVS}, s{sWave}, 6144\ns_add_u32 s{sLdsVS}, s{sLdsVS}, {VS}")
        I(f"s_mov_b32 s{XO+2}, 2560\ns_mov_b32 s{XO+3}, 0x20000\ns_mul_i32 s{sT0}, s{sS}, 160\nv_lshlrev_b32 v7, 2, v0\nv_min_u32 v7, 156, v7")
        for srd, o in ((KA, sOffG), (VA, sOffG), (KB, sOffP), (VB, sOffP)): I(f"s_sub_u32 s{srd+2}, {KV_BYTES}, s{o}\ns_mov_b32 s{srd+3}, 0x20000")
        I(f"s_mov_b32 s{WS+2}, {WS_BYTES}\ns_mov_b32 s{WS+3}, 0x20000")
        I(f"s_mul_i32 s{sH1grp}, s{sH}, {H1_H}\ns_mul_i32 s{sT1}, s{sS}, {H1_S}\ns_add_u32 s{sH1own}, s{sH1grp}, s{sT1}")
        I(f"s_mul_i32 s{sH2grp}, s{sH}, {H2_H}\ns_add_u32 s{sH2grp}, s{sH2grp}, {H2}\ns_mul_i32 s{sT1}, s{sS}, {H2_S}\ns_add_u32 s{sH2own}, s{sH2grp}, s{sT1}")
        I(f"s_mul_i32 s{sH3grp}, s{sS}, {H3_S}\ns_add_u32 s{sH3grp}, s{sH3grp}, {H3}\ns_mul_i32 s{sT1}, s{sH}, {H3_H}\ns_add_u32 s{sH3own}, s{sH3grp}, s{sT1}")
        self.clear_prep([("P", 0), ("C", 0), ("P", 4), ("S", 0)])
        a.wait(lg=0)
        I(f"s_mov_b32 s{WS}, s{pWS}\ns_mov_b32 s{WS+1}, s{pWS+1}")
        if self.c.get("clr0", 1): self.clear_issue("clr")
        if self.c.get("diag"): I(f"v_mov_b32 v{vStamp}, 0\nv_writelane_b32 v{vStamp}, s{sST}, 0"); self.nstamp = 1
        if self.c.get("st0"): self.stamp("end")
        if self.c.get("tlb"): self.tlb_touch()
        I(f"s_mov_b32 s{XO}, s{pX}\ns_mov_b32 s{XO+1}, s{pX+1}")
        I(f"buffer_load_dword v12, v7, {s4(XO)}, s{sT0} offen\nbuffer_load_dword v13, v7, {s4(XO)}, s{sT0} offen offset:1280")
        if self.c.get("st0") == 2: self.stamp("end")
        self.stream(8, paced=False)
        if not self.c.get("clr0", 1): self.clear_issue("clr")
        if self.c.get("st0") == 2: self.stamp("end")
        for srd, p, o in ((KA, pKA, sOffG), (VA, pVA, sOffG), (KB, pKB, sOffP), (VB, pVB, sOffP)):
            I(f"s_add_u32 s{srd}, s{p}, s{o}\ns_addc_u32 s{srd+1}, s{p+1}, 0")
        self.stream(self.c.get("I0", 6), paced=False)
        if self.c.get("st0") == 2: self.stamp("end")
        if self.c.get("st0") == 2: self.stamp("end")
        self.stream(self.c.get('I1', 6), paced=False)
        if self.c.get("st0"):
            self.stamp("end")
            n = len(a.vm.ent)
            for k in (1, 2, 3, 10, 11, 16, 21, n): a.wait(vm=n - k); self.stamp("end")
        if self.c.get("cpf") == 1: self.code_prefetch("L_pf0", "L_pf9")
        I(f"v_mul_u32_u24 v10, 26, v0\nv_lshrrev_b32 v10, 8, v10\nv_mul_u32_u24 v11, 10, v10\nv_sub_u32 v11, v0, v11\nv_mul_u32_u24 v10, 1280, v10\nv_lshl_add_u32 v{vWo}, v11, 4, v10")
        I("v_and_b32 v10, 1, v0\nv_cmp_eq_u32 vcc, 1, v10\nv_mov_b32 v11, 0xffff\nv_mov_b32 v20, 0xffff0000\nv_cndmask_b32 v11, v11, v20, vcc\nv_bfe_u32 v10, v0, 1, 2")
        for j in range(4): I(f"v_cmp_eq_u32 vcc, {j}, v10\nv_cndmask_b32 v{vMask+j}, 0, v11, vcc")
        for m, lo, hi in ((mODD, 0xaaaaaaaa, 0xaaaaaaaa), (mHI8, 0xff00ff00, 0xff00ff00), (mRG1, 0xffff0000, 0), (mRG2, 0, 0xffff), (mRG3, 0, 0xffff0000), (m40, 0xffffffff, 0xff), (mWOST, 0x5555, 0x5555), (mN10, 0x03ff03ff, 0x03ff03ff), (mHI32, 0, 0xffffffff), (mBIT1, 0xcccccccc, 0xcccccccc)):
            I(f"s_mov_b32 s{m}, {lo:#x}\ns_mov_b32 s{m+1}, {hi:#x}")
        I(f"s_cmp_eq_u32 s{sWave}, 3\ns_cselect_b64 {sp(mW3)}, -1, 0\ns_min_u32 s{sW2}, s{sWave}, 2")
        I(f"s_getreg_b32 s{sXcc}, hwreg(HW_REG_XCC_ID, 0, 4)\ns_add_u32 s{sXcc}, s{sXcc}, 1")
        I(f"s_mul_i32 s{sT0}, s{sWave}, 160\ns_add_u32 s{sT0}, s{sT0}, {XROW}\nv_add_u32 v10, s{sT0}, v7\nv_add_u32 v11, {ONES}, v7\nv_mov_b32 v20, 0x3f803f80")
        I("ds_write_b32 v11, v20\nds_write_b32 v10, v12\nds_write_b32 v10, v13 offset:640")
        I(f"s_mov_b32 s{XO}, s{pOUT}\ns_mov_b32 s{XO+1}, s{pOUT+1}")
    def clear_prep(self, jobs):
        I = self.a.I
        I("v_mov_b32 v16, -1\nv_mov_b32 v17, -1\nv_mov_b32 v18, -1\nv_mov_b32 v19, -1\nv_lshlrev_b32 v14, 4, v0")
        for w, (k, inst) in enumerate(jobs):
            if k == "S": lo = (sH2own, inst * H2_I); hi = (sH3own, inst * H3_I - 512); eh = 0xfff
            else: lo = hi = (sH1own, inst * H1_I + (1024 if k == "C" else 0)); eh = -1
            if w == 0:
                I(f"s_add_u32 s{sT1}, s{lo[0]}, {lo[1] & 0xffffffff}\ns_add_u32 s{sT2}, s{hi[0]}, {hi[1] & 0xffffffff}\ns_mov_b32 s{sClr}, {eh}")
            else:
                I(f"s_add_u32 s{sOff}, s{lo[0]}, {lo[1] & 0xffffffff}\ns_cmp_eq_u32 s{sWave}, {w}\ns_cselect_b32 s{sT1}, s{sOff}, s{sT1}")
                I(f"s_add_u32 s{sOff}, s{hi[0]}, {hi[1] & 0xffffffff}\ns_cmp_eq_u32 s{sWave}, {w}\ns_cselect_b32 s{sT2}, s{sOff}, s{sT2}\ns_cselect_b32 s{sClr}, {eh}, s{sClr}")
        self.off_val = None
        I(f"v_mov_b32 v15, s{sT1}\nv_mov_b32 v20, s{sT2}\nv_cmp_lt_u32 vcc, 31, v0\nv_cndmask_b32 v15, v15, v20, vcc\nv_add_u32 v15, v15, v14")
    def clear_issue(self, tag):
        I = self.a.I
        I(f"s_mov_b32 exec_hi, s{sClr}")
        I(f"buffer_store_dwordx4 v[16:19], v15, {s4(WS)}, 0 offen sc1", tag=tag)
        I("s_mov_b64 exec, -1")
    def tlb_touch(self):
        a = self.a; I = a.I
        ent = []
        for p, o, span in ((pWQA, sWqRow, 20 * 12288), (pKA, sOffG, 12288), (pVA, sOffG, 12288), (pWOA, sWoRow, 48 * 1280), (pWQB, sWqRow, 20 * 12288),
                           (pKB, sOffP, 49152), (pWOB, sWoRow, 48 * 1280), (pVB, sOffP, 49152)):
            for b in range(2 if o in (sOffG, sOffP) else 1): ent.append((p, o, b * BSTR))
        if self.c["tlb"] > 1:
            ent += [(pWS, None, 0), (pWS, None, 2 << 20), (pWS, None, 4 << 20), (pDBG, None, 0), (pOUT, None, 0)]
        for i, (p, o, c) in enumerate(ent):
            if o is None: I(f"s_add_u32 s{sT1}, s{p}, {c}\ns_addc_u32 s{sT2}, s{p+1}, 0")
            else:
                I(f"s_add_u32 s{sT1}, s{p}, s{o}\ns_addc_u32 s{sT2}, s{p+1}, 0")
                if c: I(f"s_add_u32 s{sT1}, s{sT1}, {c}\ns_addc_u32 s{sT2}, s{sT2}, 0")
            if i == 0: I(f"v_mov_b32 v14, s{sT1}\nv_mov_b32 v15, s{sT2}")
            else: I(f"v_writelane_b32 v14, s{sT1}, {i}\nv_writelane_b32 v15, s{sT2}, {i}")
        I(f"s_mov_b64 exec, {(1 << len(ent)) - 1}\nglobal_load_dword v250, v[14:15], off nt\ns_mov_b64 exec, -1")
    def code_prefetch(self, lo, hi):
        a = self.a; I = a.I
        l = a.label("Lp")
        I(f"s_getpc_b64 {sp(sT1)}"); a.raw(f"{l}:")
        I(f"s_add_u32 s{sT1}, s{sT1}, {lo}-{l}\ns_addc_u32 s{sT2}, s{sT2}, 0")
        I(f"s_lshr_b32 s{sT0}, s{sWG}, 3\ns_lshl_b32 s{sT0}, s{sT0}, 2\ns_add_u32 s{sT0}, s{sT0}, s{sWave}\ns_lshl_b32 s{sT0}, s{sT0}, 13")
        I(f"v_lshl_add_u32 v30, v0, 7, s{sT0}\nv_cmp_gt_u32 vcc, {hi}-{lo}, v30\ns_mov_b32 m0, {JUNK}")
        I("s_and_b64 exec, vcc, -1"); a.skip_begin("s_cbranch_execz")
        I(f"global_load_lds_dword v30, {sp(sT1)}")
        a.skip_end()
        I("s_mov_b64 exec, -1")
    def arrive(self):
        a = self.a; I = a.I
        I(f"s_cmp_lg_u32 s{sWave}, 0"); a.skip_begin("s_cbranch_scc1")
        I(f"s_and_b32 s{sT0}, s{sWG}, 3\ns_lshl_b32 s{sT0}, s{sT0}, 3\ns_lshl_b32 s{sT0}, s{sXcc}, s{sT0}\ns_and_b32 s{sT1}, s{sWG}, 0xfc")
        I(f"v_mov_b32 v8, s{sT1}\nv_mov_b32 v9, s{sT0}\ns_mov_b64 exec, 1")
        I(f"global_atomic_add v8, v9, {sp(pDBG)} sc1\ns_mov_b64 exec, -1")
        a.skip_end()
    def handshake(self, between):
        a = self.a; I = a.I
        I("v_lshlrev_b32 v7, 2, v0")
        ld = f"global_load_dword v8, v7, {sp(pDBG)} sc1"
        I(ld); last = len(a.vm.ent) - 1
        between()
        n = a.vm.need(last)
        if n is not None: a.wait(vm=n)
        chk = a.label("Lc"); rt = a.label("Lr")
        a.raw(f"{chk}:"); a.no_inject += 1
        I("v_subrev_u32 v9, 0x01010101, v8\nv_not_b32 v10, v8\nv_and_b32 v9, v9, v10\nv_and_b32 v9, 0x80808080, v9\nv_cmp_ne_u32 vcc, 0, v9")
        I(f"s_cbranch_vccnz {rt}")
        self.retry_block(rt, chk, [ld]); a.no_inject -= 1
        I(f"s_and_b32 s{sT0}, s{sWG}, 3\ns_lshl_b32 s{sT0}, s{sT0}, 3\nv_lshrrev_b32 v8, s{sT0}, v8\nv_and_b32 v8, 0xff, v8")
        I(f"s_bfe_u32 s{sT0}, s{sWG}, 0x30002\nv_and_b32 v9, 7, v0\nv_cmp_eq_u32 {sp(sT1)}, s{sT0}, v9\nv_cmp_ne_u32 vcc, s{sXcc}, v8")
        I(f"s_and_b64 vcc, vcc, {sp(sT1)}\ns_cmp_eq_u64 vcc, 0\ns_cselect_b32 s{sLocal}, 1, 0")
    WQB = [(24, 28, 32), (34, 38, 42), (44, 48, 52)]
    def wq_pre(self, ty):
        a = self.a; I = a.I
        I(f"v_bfe_u32 v7, v0, 2, 2\nv_lshrrev_b32 v9, 4, v0\nv_lshl_add_u32 v8, v9, 3, v7\nv_lshl_add_u32 v7, v9, 2, v7")
        I(f"v_and_b32 v9, 3, v0\nv_lshlrev_b32 v9, 3, v9\ns_mul_i32 s{sT0}, s{sWave}, 96\ns_add_u32 s{sT0}, s{sT0}, {WQ[ty]}\nv_add_u32 v9, s{sT0}, v9")
        I(f"s_movk_i32 s{sT0}, 384\nv_mad_u32_u24 v8, v8, s{sT0}, v9\nv_mad_u32_u24 v7, v7, s{sT0}, v9")
        for T, (b0, b1, b2) in enumerate(self.WQB):
            for t, r in ((0, b0), (1, b1)):
                I(f"ds_read_b64_tr_b16 {v2(r)}, v8 offset:{12288 * t + 32 * T}\nds_read_b64_tr_b16 {v2(r+2)}, v8 offset:{12288 * t + 1536 + 32 * T}")
            I(f"ds_read_b64_tr_b16 {v2(b2)}, v7 offset:{24576 + 32 * T}")
    def wq_addr(self, b, L):
        I = self.a.I
        I(f"s_mul_i32 s{sT0}, s{sWave}, 160\ns_add_u32 s{sT0}, s{sT0}, {XROW + 640 * b}\nv_mov_b32 v22, s{sT0}\nv_mov_b32 v23, {ONES}")
        I(f"v_cndmask_b32 v23, v22, v23, {sp(mODD)}\nv_lshrrev_b32 v21, 4, v0\nv_lshl_add_u32 v22, v21, 4, v23\nv_lshl_add_u32 v23, v21, 3, v23")
    def wq_main(self, b, L, local_ok=True, hoisted=False, hoist=False):
        a = self.a; I = a.I; inst = 4 * b + L; needC = inst < 2
        if not hoisted: self.wq_addr(b, L)
        I("ds_read_b128 v[12:15], v22\nds_read_b128 v[16:19], v22 offset:64\nds_read_b64 v[20:21], v23 offset:128")
        I(f"s_lshl_b32 s{sT0}, s{sWave}, 8\nv_lshl_add_u32 v54, v0, 2, s{sT0}\ns_add_u32 s{sOffP}, s{sH1own}, {inst * H1_I}")
        if hoist: self.qg_addr(b, L)
        D = [8, 24, 28]
        for T, (b0, b1, b2) in enumerate(self.WQB):
            I(f"v_mfma_f32_16x16x32_bf16 {v4(D[T])}, v[12:15], {v4(b0)}, 0")
            I(f"v_mfma_f32_16x16x32_bf16 {v4(D[T])}, v[16:19], {v4(b1)}, {v4(D[T])}")
        I("v_mfma_f32_16x16x32_bf16 v[34:37], v[12:15], v[12:15], 0\nv_mfma_f32_16x16x32_bf16 v[34:37], v[16:19], v[16:19], v[34:37]")
        for T, (b0, b1, b2) in enumerate(self.WQB):
            I(f"v_mfma_f32_16x16x16_bf16 {v4(D[T])}, v[20:21], {v2(b2)}, {v4(D[T])}")
        I("v_mfma_f32_16x16x16_bf16 v[34:37], v[20:21], v[20:21], v[34:37]")
        for r in range(2 if needC else 1):
            I(f"v_cndmask_b32 v{22+r}, v{8+r}, v{24+r}, {sp(mRG1)}\nv_cndmask_b32 v{22+r}, v{22+r}, v{28+r}, {sp(mRG2)}\nv_cndmask_b32 v{22+r}, v{22+r}, v34, {sp(mRG3)}\nv_min_u32 v{22+r}, -2, v{22+r}")
            self.publish(f"buffer_store_dword v{22+r}, v54, {s4(WS)}, s{sOffP} offen offset:{1024 * r} {{pol}}", local_ok)
    def qg_addr(self, b, L):
        I = self.a.I
        I(f"v_and_b32 v23, 15, v0\nv_lshrrev_b32 v7, 4, v0\nv_lshlrev_b32 v7, 11, v7\nv_lshl_add_u32 v7, v23, 4, v7\ns_lshl_b32 s{sT0}, s{sWave}, 8")
        I(f"s_add_u32 s{sOffG}, s{sH1grp}, s{sT0}\ns_add_u32 s{sOffG}, s{sOffG}, {(4 * b + L) * H1_I}\ns_add_u32 s{sOffG2}, s{sOffG}, {4 * H1_S}")
    def qg(self, b, L, between=None, hoisted=False):
        a = self.a; I = a.I; inst = 4 * b + L; needC = inst < 2; ty = L & 1
        if not hoisted: self.qg_addr(b, L)
        loads = [f"buffer_load_dwordx4 v[12:15], v7, {s4(WS)}, s{sOffG} offen sc1", f"buffer_load_dwordx4 v[16:19], v7, {s4(WS)}, s{sOffG2} offen sc1"]
        if needC: loads += [f"buffer_load_dwordx4 v[20:23], v7, {s4(WS)}, s{sOffG} offen offset:1024 sc1", f"buffer_load_dwordx4 v[24:27], v7, {s4(WS)}, s{sOffG2} offen offset:1024 sc1"]
        def pre():
            I(f"v_and_b32 v8, 15, v0\nv_lshrrev_b32 v9, 4, v0\nv_and_b32 v10, 1, v9\nv_lshlrev_b32 v10, 1, v10\nv_lshrrev_b32 v28, 1, v9\nv_or_b32 v10, v10, v28\nv_lshl_add_u32 v10, v8, 2, v10")
            I(f"s_mul_i32 s{sT0}, s{sWave}, 96\ns_add_u32 s{sT0}, s{sT0}, {QB + 384 * b}\nv_lshl_add_u32 v10, v10, 1, s{sT0}")
            I(f"s_lshl_b32 s{sT0}, s{sWave}, 8\ns_add_u32 s{sT0}, s{sT0}, {CT + 1024 * ty}\nv_lshl_add_u32 v29, v0, 2, s{sT0}")
            if not needC: I("ds_read_b32 v20, v29")
            self.q_addr(b)
            I(f"v_mov_b32 v11, {f32(1 / 640)}")
            if between: between()
        self.gather(loads, range(12, 28 if needC else 20), 28, between=pre, sleep=self.lsleep())
        def red(r):
            I(f"v_pk_add_f32 {v2(r)}, {v2(r)}, {v2(r+4)}\nv_pk_add_f32 {v2(r+2)}, {v2(r+2)}, {v2(r+6)}")
            I(f"v_permlane32_swap_b32 v{r}, v{r+1}\nv_permlane32_swap_b32 v{r+2}, v{r+3}\nv_add_f32 v{r}, v{r}, v{r+1}\nv_add_f32 v{r+2}, v{r+2}, v{r+3}")
            I(f"v_permlane16_swap_b32 v{r}, v{r+2}\nv_add_f32 v{r}, v{r}, v{r+2}")
        red(12)
        I(f"v_readlane_b32 s{sT0}, v12, 12\nv_readlane_b32 s{sT1}, v12, 44")
        if needC: red(20); I("ds_write_b32 v29, v20")
        I(f"v_mul_f32 v15, s{sT1}, v11\nv_mul_f32 v14, s{sT0}, v11\nv_fma_f32 v14, -v15, v15, v14\nv_max_f32 v14, 0, v14\nv_add_f32 v14, {f32(1e-5)}, v14\nv_rsq_f32 v14, v14")
        I(f"v_fma_f32 v12, -v15, v20, v12\nv_mul_f32 v14, {f32(SCALE)}, v14\nv_mul_f32 v12, v12, v14\nv_cvt_pk_bf16_f32 v12, v12, v12")
        I("s_mov_b32 exec_lo, 0x0fff0fff\ns_mov_b32 exec_hi, 0x0fff0fff\nds_write_b16 v10, v12\ns_mov_b64 exec, -1")
        a.barrier()
    def q_addr(self, b):
        self.a.I(f"v_and_b32 v30, 1, v0\nv_lshrrev_b32 v31, 4, v0\nv_lshlrev_b32 v31, 5, v31\nv_lshl_add_u32 v30, v30, 4, v31\nv_add_u32 v30, {QB + 384 * b}, v30")
    def att(self, b, L, hook1=None, hook2=None, pre_bar=None, guard=False, hoist=False, qaddr=False):
        a = self.a; I = a.I; ty = L & 1; G = 16 if ty else 4; Kn = "KB" if ty else "KA"; Vn = "VB" if ty else "VA"
        vM, vL = 52, 53
        if not qaddr: self.q_addr(b)
        for t in range(3): I(f"ds_read_b128 {v4(vQ + 4 * t)}, v30 offset:{128 * t}")
        def lds_v(g):
            a.wait_tag(("VS", b, g))
            I(f"v_lshl_add_u32 v54, v0, 4, s{sLdsVS}")
            for c in range(3): I(f"ds_read_b128 {v4(vU + 4 + 4 * c)}, v54 offset:{(g - 2) * 3072 + 1024 * c}")
        early = (not ty) and L == 2
        if early: lds_v(2)
        def D(g): return vACC + 4 * (g % 3)
        for g in range(G + 3):
            K = SLOT[(Kn, g)] if g < G else None
            if K: self.check_slot(Kn, b, g)
            e = g - 2
            if K: I(f"v_mfma_f32_16x16x32_bf16 {v4(D(g))}, {K[0]}, {v4(vQ)}, 0")
            if 0 <= e < G: I(f"v_cndmask_b32 v8, v{D(e)}, v{D(e)+2}, {sp(mHI8)}")
            if K: I(f"v_mfma_f32_16x16x32_bf16 {v4(D(g))}, {K[1]}, {v4(vQ+4)}, {v4(D(g))}")
            if 0 <= e < G: I(f"v_cndmask_b32 v9, v{D(e)+1}, v{D(e)+3}, {sp(mHI8)}")
            if 0 <= e - 1 < G: I(f"v_add_f32_dpp v{vU+e-1}, v10, v10 quad_perm:[1,0,3,2] row_mask:0xf bank_mask:0xf")
            if K: I(f"v_mfma_f32_16x16x32_bf16 {v4(D(g))}, {K[2]}, {v4(vQ+8)}, {v4(D(g))}")
            if 0 <= e < G: I(f"v_cndmask_b32 v10, v8, v9, {sp(mODD)}")
            if hook1 and g < G: hook1(g)
        I(f"v_max3_f32 v{vM}, v{vU}, v{vU+1}, v{vU+2}")
        r = 3
        while r + 1 < G: I(f"v_max3_f32 v{vM}, v{vM}, v{vU+r}, v{vU+r+1}"); r += 2
        if r < G: I(f"v_max_f32 v{vM}, v{vM}, v{vU+r}")
        def allred(v, op):
            I(f"{op}_dpp v{v}, v{v}, v{v} row_ror:8 row_mask:0xf bank_mask:0xf")
            I(f"v_mov_b32 v8, v{v}\nv_permlane16_swap_b32 v{v}, v8\n{op} v{v}, v{v}, v8\nv_mov_b32 v8, v{v}\nv_permlane32_swap_b32 v{v}, v8\n{op} v{v}, v{v}, v8")
        allred(vM, "v_max_f32")
        order = list(range(G)) if ty else [2, 0, 1, 3]
        if not ty and not early: order = [0, 1, 2, 3]
        def prob(g, first):
            I(f"v_sub_f32 v{vU+g}, v{vU+g}, v{vM}\nv_exp_f32 v{vU+g}, v{vU+g}")
        def prob2(g, first):
            I(f"v_mov_b32 v{vL}, v{vU+g}" if first else f"v_add_f32 v{vL}, v{vL}, v{vU+g}")
            I(f"v_cvt_pk_bf16_f32 v{vU+g}, v{vU+g}, v{vU+g}")
        def diag(i, j): I(f"v_and_b32 v{vQ + 4 * (i & 1) + j}, v{vU + order[i]}, v{vMask + j}")
        prob(order[0], True); prob2(order[0], True)
        for j in range(4): diag(0, j)
        prob(order[1], False); prob2(order[1], False)
        for i, g in enumerate(order):
            self.check_slot(Vn, b, g)
            if (Vn, g) in SLOT: V = SLOT[(Vn, g)]
            else:
                if not (early and g == 2) and not (early and g == 3): lds_v(g)
                V = [v4(vU + 4 + 4 * c) for c in range(3)]
            A = v4(vQ + 4 * (i & 1))
            nx = i + 1 < G; nx2 = i + 2 < G
            for c in range(3):
                acc = v4(vACC + 4 * c)
                I(f"v_mfma_f32_16x16x32_bf16 {acc}, {A}, {V[c]}, {acc if i else 0}")
                if c == 0:
                    if nx: diag(i + 1, 0); diag(i + 1, 1)
                    if nx2: prob(order[i + 2], False)
                if c == 1:
                    if nx: diag(i + 1, 2); diag(i + 1, 3)
                if c == 2:
                    if nx2: prob2(order[i + 2], False)
            if early and g == 2: lds_v(3)
            if i == G - 2: allred(vL, "v_add_f32")
            if hook2: hook2(i)
        if guard: a.barrier()
        inst = 4 * b + L
        I(f"v_and_b32 v54, 15, v0\nv_lshlrev_b32 v54, 5, v54\nv_and_b32 v8, 16, v0\ns_mul_i32 s{sT0}, s{sWave}, 1536\ns_add_u32 s{sT0}, s{sT0}, {ATT}\nv_add3_u32 v54, v54, v8, s{sT0}")
        I(f"s_lshl_b32 s{sT0}, s{sWave}, 2\ns_add_u32 s{sT0}, s{sT0}, {STAT}\nv_mov_b32 v8, s{sT0}\nds_write_b32 v8, v{vM}\nds_write_b32 v8, v{vL} offset:16")
        for c, (lo, hi) in enumerate(((0xffffffff, 0), (0x00ff00ff, 0xff00ff00), (0, 0xffffffff))):
            I(f"s_mov_b32 exec_lo, {lo:#x}\ns_mov_b32 exec_hi, {hi:#x}\nds_write_b128 v54, {v4(vACC + 4 * c)} offset:{512 * c}")
        I("s_mov_b64 exec, -1")
        I(f"v_mov_b32 v9, {STAT}\ns_lshl_b32 s{sT0}, s{sWave}, 8\ns_add_u32 s{sT0}, s{sT0}, {ATT}\nv_lshl_add_u32 v10, v0, 2, s{sT0}")
        I(f"s_lshl_b32 s{sT0}, s{sWave}, 7\nv_lshl_add_u32 v11, v0, 1, s{sT0}\ns_add_u32 s{sOffP}, s{sH2own}, {inst * H2_I}")
        if hoist: self.wo_addr(b, L)
        if pre_bar: pre_bar()
        self.fs("att_end")
        a.barrier()
        self.combine(b, L)
        self.fs("pub2")
    def combine(self, b, L):
        a = self.a; I = a.I; inst = 4 * b + L
        I("ds_read_b128 v[44:47], v9\nds_read_b128 v[48:51], v9 offset:16")
        for i in range(8): I(f"ds_read_b32 v{12 + i}, v10 offset:{768 * i}")
        I("v_max3_f32 v52, v44, v45, v46\nv_max_f32 v52, v52, v47")
        for w in range(4): I(f"v_sub_f32 v{44+w}, v{44+w}, v52")
        for w in range(4): I(f"v_exp_f32 v{44+w}, v{44+w}")
        for w in range(4): I(f"v_add_f32 v{12 + 2 * w}, v{12 + 2 * w}, v{13 + 2 * w}")
        I("v_mul_f32 v20, v44, v12\nv_fmac_f32 v20, v45, v14\nv_fmac_f32 v20, v46, v16\nv_fmac_f32 v20, v47, v18")
        I("v_mul_f32 v53, v44, v48\nv_fmac_f32 v53, v45, v49")
        I("v_mov_b32_dpp v21, v20 quad_perm:[1,1,3,3] row_mask:0xf bank_mask:0xf")
        I("v_fmac_f32 v53, v46, v50\nv_fmac_f32 v53, v47, v51\nv_cvt_pk_bf16_f32 v20, v20, v21")
        I(f"v_cndmask_b32 v52, v52, v53, {sp(mBIT1)}\nv_cndmask_b32 v20, v20, v52, {sp(mW3)}\nv_min_u32 v20, -2, v20")
        I(f"s_not_b64 exec, {sp(mODD)}")
        self.publish(f"buffer_store_dword v20, v11, {s4(WS)}, s{sOffP} offen {{pol}}", True)
        I("s_mov_b64 exec, -1")
    def wo_addr(self, b, L):
        I = self.a.I
        I(f"v_bfe_u32 v8, v0, 1, 3\nv_lshrrev_b32 v22, 4, v0\nv_and_b32 v7, 1, v0\nv_lshl_add_u32 v7, v22, 1, v7\nv_lshlrev_b32 v7, 4, v7\nv_lshl_add_u32 v7, v8, 9, v7")
        I(f"v_lshl_add_u32 v8, v22, 1, v8\nv_and_b32 v8, 7, v8\nv_lshlrev_b32 v8, 9, v8\ns_add_u32 s{sOffG}, s{sH2grp}, {(4 * b + L) * H2_I}")
    def wo(self, b, L, between=None, hoisted=False, hoist=False):
        a = self.a; I = a.I; inst = 4 * b + L; ty = L & 1
        if not hoisted: self.wo_addr(b, L)
        loads = [f"buffer_load_dwordx2 v[52:53], v8, {s4(WS)}, s{sOffG} offen offset:384 sc1"]
        loads += [f"buffer_load_dwordx4 {v4(12 + 4 * t)}, v7, {s4(WS)}, s{sOffG} offen offset:{128 * t} sc1" for t in range(3)]
        S = [24, 28, 32, 36, 40, 44]
        def rd(kk, reg, tile):
            o = 10240 * (kk >> 1) + 1280 * (kk & 1) + 32 * tile
            I(f"ds_read_b64_tr_b16 {v2(reg)}, v10 offset:{o}\nds_read_b64_tr_b16 {v2(reg + 2)}, v10 offset:{o + 640}")
        def pre():
            I(f"v_bfe_u32 v10, v0, 2, 2\nv_and_b32 v11, 48, v0\nv_add_u32 v10, v10, v11\nv_mul_u32_u24 v10, 160, v10\nv_and_b32 v11, 3, v0\nv_lshl_add_u32 v10, v11, 3, v10")
            I(f"s_lshl_b32 s{sT0}, s{sW2}, 6\ns_add_u32 s{sT1}, s{sT0}, {WO[ty]}\nv_add_u32 v10, s{sT1}, v10")
            for kk in range(6): rd(kk, S[kk], 0)
            I(f"v_and_b32 v11, 15, v0\nv_lshlrev_b32 v11, 1, v11\nv_and_b32 v9, 32, v0\nv_add3_u32 v11, v11, v9, s{sT0}\ns_add_u32 s{sOffP}, s{sH3own}, {inst * H3_I}")
            if hoist: self.yg_addr()
            if between: between()
        self.gather(loads, [52, 53] + list(range(12, 24)), 9, between=pre, sleep=self.lsleep())
        def mm(D, t, B, first): I(f"v_mfma_f32_16x16x32_bf16 {v4(D)}, {v4(12 + 4 * t)}, {v4(B)}, {0 if first else v4(D)}")
        dpp = lambda op, d, x, ctl: I(f"{op}_dpp v{d}, v{x}, v{x} {ctl} row_mask:0xf bank_mask:0xf")
        D0, D1 = 48, 24
        def fold(out):
            I(f"v_add_f32 v{D0}, v{D0}, v{D1 + 1}\nv_add_f32 v{D0 + 2}, v{D0 + 2}, v{D1 + 3}\nv_mul_f32 v{out}, v7, v{D0}\nv_fmac_f32 v{out}, v8, v{D0 + 2}")
        mm(D0, 0, S[0], True); dpp("v_max_f32", 9, 52, "row_ror:8")
        mm(D0, 1, S[2], False); rd(0, S[2], 1); dpp("v_max_f32", 9, 9, "row_ror:4")
        mm(D0, 2, S[4], False); rd(2, S[4], 1); dpp("v_max_f32", 9, 9, "row_ror:2")
        mm(D1, 0, S[1], True); I("v_sub_f32 v52, v52, v9\nv_exp_f32 v52, v52"); rd(4, S[1], 1); I("v_mul_f32 v53, v52, v53")
        mm(D1, 1, S[3], False); rd(1, S[3], 1); dpp("v_add_f32", 53, 53, "row_ror:8")
        mm(D1, 2, S[5], False); rd(3, S[5], 1); dpp("v_add_f32", 53, 53, "row_ror:4")
        dpp("v_add_f32", 53, 53, "row_ror:2")
        I("v_rcp_f32 v53, v53\nv_mul_f32 v52, v52, v53")
        I("v_mov_b32_dpp v7, v52 row_newbcast:0 row_mask:0xf bank_mask:0xf\nv_mov_b32_dpp v8, v52 row_newbcast:2 row_mask:0xf bank_mask:0xf")
        fold(52)
        mm(D0, 0, S[2], True); rd(5, S[2], 1)
        mm(D0, 1, S[4], False); mm(D0, 2, S[1], False)
        mm(D1, 0, S[3], True); mm(D1, 1, S[5], False); mm(D1, 2, S[2], False)
        fold(53)
        I("v_permlane32_swap_b32 v52, v53\nv_add_f32 v52, v52, v53\nv_mov_b32 v53, v52\nv_permlane16_swap_b32 v52, v53\nv_add_f32 v52, v52, v53")
        I("v_mov_b32_dpp v53, v52 quad_perm:[1,1,3,3] row_mask:0xf bank_mask:0xf\nv_cvt_pk_bf16_f32 v52, v52, v53\nv_min_u32 v52, -2, v52")
        I(f"s_mov_b64 exec, {sp(mWOST)}")
        self.publish(f"buffer_store_dword v52, v11, {s4(WS)}, s{sOffP} offen {{pol}}", False)
        I("s_mov_b64 exec, -1")
    def yg_addr(self):
        self.a.I(f"v_lshrrev_b32 v54, 4, v0\nv_lshlrev_b32 v54, 8, v54\nv_and_b32 v9, 15, v0\nv_lshl_add_u32 v54, v9, 4, v54")
    def yg_pre(self, b, L):
        I = self.a.I
        I(f"s_lshl_b32 s{sT0}, s{sWave}, 11\ns_add_u32 s{sOffG}, s{sH3grp}, s{sT0}\ns_add_u32 s{sOffG}, s{sOffG}, {(4 * b + L) * H3_I}")
        for j in range(4): I(f"v_and_b32 v{16 + j}, 0x3f803f80, v{vMask + j}")
    def yg(self, b, L, between=None, pre_bar=None, hoisted=False):
        a = self.a; I = a.I; inst = 4 * b + L; Yb = Y + YSZ * b
        if not hoisted: self.yg_addr(); self.yg_pre(b, L)
        loads = [f"buffer_load_dwordx4 {v4(8 + 4 * j)}, v54, {s4(WS)}, s{sOffG} offen offset:{4 * H3_H * j} sc1" for j in range(2)]
        self.gather(loads, range(8, 16), 7, between=between, emask=sp(mN10))
        I("s_mov_b64 exec, -1")
        I("v_mfma_f32_16x16x32_bf16 v[20:23], v[16:19], v[8:11], 0\nv_mfma_f32_16x16x32_bf16 v[20:23], v[16:19], v[12:15], v[20:23]")
        I(f"v_and_b32 v7, 15, v0\nv_lshlrev_b32 v7, 5, v7\nv_and_b32 v54, 16, v0\ns_mul_i32 s{sT0}, s{sWave}, 320\ns_add_u32 s{sT0}, s{sT0}, {Yb}\nv_add3_u32 v7, v7, v54, s{sT0}")
        I(f"s_mov_b32 exec_lo, s{mN10}\ns_mov_b32 exec_hi, 0\nds_write_b128 v7, v[20:23]\ns_mov_b64 exec, -1")
        I(f"s_mul_i32 s{sT0}, s{sWave}, 160\ns_add_u32 s{sT0}, s{sT0}, {XROW + 640 * b}\nv_lshl_add_u32 v7, v0, 2, s{sT0}\nds_read_b32 v54, v7")
        I(f"v_lshlrev_b32 v14, 3, v0\nv_add_u32 v14, {Yb}, v14")
        if L < 3: self.wq_addr(b, L + 1)
        if pre_bar: pre_bar()
        a.barrier()
        I("s_mov_b32 exec_hi, 0xff")
        for i in range(4): I(f"ds_read_b64 {v2(8 + 2 * i)}, v14 offset:{320 * i}")
        I("v_lshlrev_b32 v16, 16, v54\nv_and_b32 v17, 0xffff0000, v54")
        I("v_pk_add_f32 v[8:9], v[8:9], v[10:11]\nv_pk_add_f32 v[12:13], v[12:13], v[14:15]\nv_pk_add_f32 v[8:9], v[8:9], v[12:13]")
        I("v_cvt_pk_bf16_f32 v8, v8, v9\nv_and_b32 v9, 0xffff0000, v8\nv_lshlrev_b32 v8, 16, v8\nv_pk_add_f32 v[8:9], v[8:9], v[16:17]\nv_cvt_pk_bf16_f32 v8, v8, v9")
        if L < 3: I("ds_write_b32 v7, v8")
        else:
            I(f"s_cmp_lg_u32 s{sWave}, 0"); a.skip_begin("s_cbranch_scc1")
            I(f"s_mul_i32 s{sT0}, s{sS}, 160\nv_lshlrev_b32 v7, 2, v0")
            I(f"buffer_store_dword v8, v7, {s4(XO)}, s{sT0} offen offset:{1280 * b}")
            a.skip_end()
        I("s_mov_b64 exec, -1")
    def touch(self, b, L):
        if not self.c.get("touch", 0): return
        a = self.a; I = a.I
        I(f"s_lshl_b32 s{sT0}, s{sWave}, 7\nv_lshl_add_u32 v30, v0, 1, s{sT0}\nv_and_b32 v30, -4, v30\ns_add_u32 s{sT1}, s{sH2own}, {(4 * b + L) * H2_I}\ns_mov_b32 m0, {JUNK}")
        I(f"buffer_load_dword v30, {s4(WS)}, s{sT1} offen sc1 lds")
        if L < 3:
            I(f"v_lshlrev_b32 v30, 1, v30\ns_add_u32 s{sT1}, s{sH1own}, {(4 * b + L + 1) * H1_I}")
            I(f"buffer_load_dword v30, {s4(WS)}, s{sT1} offen sc1 lds")
    def chain_idle(self, b, L, burst=(0, 0, 0)):
        a = self.a
        self.wo(b, L, between=lambda: self.stream(burst[0], paced=False), hoisted=True, hoist=True)
        self.stamp(f"wo{b}{L}")
        self.fs("pub3")
        late = self.c.get("late", 2)
        if L == 3:
            a.I(f"s_cmp_eq_u32 s{sH}, 1\ns_cbranch_scc1 L_out0")
            a.I(f"s_cmp_lg_u32 s{sH}, 0\ns_cbranch_scc1 L_fin")
        if L < 3 and not late: self.wq_pre((L + 1) & 1)
        if late < 2: self.yg_pre(b, L)
        a.wait_tag("pub"); a.barrier()
        if L < 3 and late: self.wq_pre((L + 1) & 1)
        if late >= 2: self.yg_pre(b, L)
        if late >= 3: a.wait(lg=0)
        self.yg(b, L, between=lambda: self.stream(burst[1], paced=False), hoisted=True)
        self.fs("xrow")
        if L == 3: return
        self.wq_main(b, L + 1, hoisted=True, hoist=True)
        self.fs("pub1")
        self.stamp(f"wq{b}{L+1}")
        self.qg(b, L + 1, between=lambda: self.stream(burst[2], paced=False), hoisted=True)
        self.stamp(f"qg{b}{L+1}")
    def build(self):
        a = self.a; c = self.c; W = self.W; WE = c.get("WE", W); HE = c.get("HE", 4)
        self.off_val = None
        self.add_w("wqA", pWQA, "q", 0)
        for g in range(4): self.add_kv("KA", 0, g)
        for g in range(4): self.add_kv("VA", 0, g)
        self.add_w("woA", pWOA, "o", 0); self.add_w("wqB", pWQB, "q", 1)
        for g in range(16): self.add_kv("KB", 0, g)
        self.add_w("woB", pWOB, "o", 1)
        for g in range(16): self.add_kv("VB", 0, g)
        p1 = len(self.items)
        for g in range(4): self.add_kv("KA", 1, g)
        for g in range(4): self.add_kv("VA", 1, g)
        p2 = len(self.items)
        for g in range(16): self.add_kv("KB", 1, g)
        for g in range(16): self.add_kv("VB", 1, g)
        st = self.stream_to; S = lambda n: (lambda: self.stream(n))
        self.limit = p1; a.nobar = c.get('nobar', 0)
        self.setup()
        if c.get("inject", 1): a.inject = self.injector
        if c.get("streamonly"):
            self.limit = 10**9; a.inject = None
            for upto in c["streamonly"]:
                if isinstance(upto, tuple): st(upto[0], W=upto[1])
                else: st(upto)
                self.stamp("end")
            a.wait(vm=0); self.stamp("end")
            return self.finish()
        P = c.get("P1", dict(arr=24, hs=36, qg0=44, wo=76, yg=104, qg1=130))
        a.raw("L_pf0:")
        self.stamp("setup")
        a.wait_tag("clr"); a.barrier()
        self.arrive()
        st(P["arr"])
        self.stamp("arr")
        a.wait_tag("wqA"); a.barrier()
        self.wq_pre(0); self.wq_main(0, 0, local_ok=False)
        self.wq_pre(0); self.wq_main(1, 0, local_ok=False)
        self.stamp("wq")
        for jobs in ([("P", 1), ("C", 1), ("P", 2), ("S", 1)], [("P", 3), ("P", 5), ("P", 6), ("P", 7)], [("S", 2), ("S", 3), ("S", 4), ("S", 5)], [("S", 6), ("S", 7), ("S", 6), ("S", 7)]):
            self.clear_prep(jobs); self.clear_issue("clr2"); self.stream(2)
        st(P["hs"]); self.handshake(S(W))
        self.stamp("hs")
        st(P["qg0"]); self.qg(0, 0, between=S(W))
        self.stamp()
        self.att(0, 0, pre_bar=lambda: (st(self.index_after("woA")), a.wait_tag("woA"), a.wait_tag("clr2")))
        self.stamp()
        self.qg(1, 0, between=S(W))
        self.stamp("qg10")
        st(P["wo"]); self.wo(0, 0, between=S(W))
        self.stamp("wo00")
        st(P["yg"]); self.yg(0, 0, between=S(W), pre_bar=lambda: a.wait_tag("wqB"))
        self.stamp("yg00")
        self.wq_pre(1); self.wq_main(0, 1, hoisted=True)
        if c.get("cpf") == 2: self.code_prefetch("L_pf1", "L_pf2")
        st(P["qg1"]); self.qg(0, 1, between=lambda: self.stream(min(WE, p1 - self.pos), W=WE))
        a.raw("L_pf1:")
        self.stamp()
        assert self.pos >= self.index_after("woB")
        vb0 = self.index_after("woB")
        self.att(0, 1, hook1=lambda g: self.stream(min(1, p1 - self.pos), W=WE) if g % HE == HE - 1 else None,
                 hook2=lambda i: st(min(p1, vb0 + 3 * (i + 2) + WE - 3), W=WE), pre_bar=lambda: a.wait_tag("woB"), hoist=True, qaddr=True)
        assert self.pos == p1
        a.inject = None; self.limit = p2
        self.stamp("p1end")
        self.chain_idle(0, 1)
        bu = c.get("burst", (6, 6, 6, 6))
        self.att(0, 2, hook2=lambda i: self.stream(bu[0], paced=False) if i == 0 else None, hoist=True, qaddr=True)
        self.stamp()
        self.chain_idle(0, 2, burst=bu[1:])
        st(p2, paced=False)
        self.stamp("p2beg")
        self.limit = len(self.items)
        n0 = c.get("n0", 9)
        self.att(0, 3, hook1=lambda g: self.stream(3, paced=False) if 3 * g + 3 <= n0 else None,
                 hook2=lambda i: self.stream(1, paced=False) if i % 4 == 3 else None, qaddr=True)
        self.stamp("att03")
        a.raw("L_pf2:")
        P = c.get("P2", dict(wo=30, yg=60, qg=78))
        if c.get("inject", 1): a.inject = self.injector
        self.att(1, 0, guard=True, hook2=lambda i: self.stream(2))
        self.stamp("att10")
        st(p2 + P["wo"]); self.stamp("a"); self.wo(1, 0, between=S(W)); self.stamp("wo10"); self.wo(0, 3, between=S(W)); self.stamp("wo03")
        st(p2 + P["yg"]); self.stamp("b"); self.yg(1, 0, between=S(W)); self.stamp("yg10")
        self.wq_pre(1); self.wq_main(1, 1, hoisted=True)
        if c.get("cpf") == 2: self.code_prefetch("L_pf3", "L_pf9")
        st(p2 + P["qg"]); self.stamp("c"); self.qg(1, 1, between=lambda: self.stream(WE, W=WE))
        a.raw("L_pf3:")
        self.stamp("qg11")
        vb1 = p2 + 48
        self.att(1, 1, hook1=lambda g: self.stream(1, W=WE) if g % HE == HE - 1 else None,
                 hook2=lambda i: st(min(len(self.items), vb1 + 3 * (i + 2) + WE - 3), W=WE), hoist=True, qaddr=True)
        assert self.pos == len(self.items)
        a.inject = None
        self.stamp("p2end")
        self.chain_idle(1, 1)
        self.fine_on = c.get("fine") == 1
        self.fs("q_ready")
        self.att(1, 2, hoist=True, qaddr=True)
        self.stamp("att12")
        self.chain_idle(1, 2)
        self.fs("q_ready")
        if c.get("fine") == 2: self.fine_on = True; self.fs("q_ready")
        self.att(1, 3, hoist=True, qaddr=True)
        self.stamp("att13")
        self.chain_idle(1, 3)
        a.I("s_branch L_fin"); a.raw("L_out0:"); a.I("s_nop 7"); a.wait(vm=0, lg=0)
        self.yg(0, 3)
        a.raw("L_fin:"); a.I("s_nop 7")
        self.fs("end")
        self.stamp("end")
        return self.finish()
    def finish(self):
        a = self.a; c = self.c
        if c.get("fine"):
            a.wait(lg=0)
            for i in range(self.nfine): a.I(f"v_writelane_b32 v{vStamp}, s{FS[i]}, {i}")
            print("fine stamps:", self.fnames)
        if c.get("diag"):
            a.I(f"v_writelane_b32 v{vStamp}, s{sRetry}, 62\nv_writelane_b32 v{vStamp}, s{sLocal}, 63")
            a.I(f"s_lshl_b32 s{sT0}, s{sWG}, 10\ns_lshl_b32 s{sT1}, s{sWave}, 8\ns_add_u32 s{sT0}, s{sT0}, s{sT1}\ns_add_u32 s{sT0}, s{sT0}, {DIAG}\nv_lshlrev_b32 v7, 2, v0")
            a.I(f"buffer_store_dword v{vStamp}, v7, {s4(WS)}, s{sT0} offen")
        if c.get("diag") and not c.get("fine"): print("stamps:", " ".join(self.snames))
        a.raw("L_end:"); a.raw("  s_endpgm")
        a.tail.append("L_pf9:\n  s_endpgm")
        body = a.text()
        return (HEAD + f"; @launch grid=(256,1,1) block=(256,1,1) lds={LDS_BYTES}\n"
                + f'.amdgcn_target "amdgcn-amd-amdhsa--gfx950"\n.text\n.globl {NAME}\n.p2align 8\n.type {NAME},@function\n{NAME}:\n'
                + body + f'.section .rodata,"a"\n.p2align 6\n.amdhsa_kernel {NAME}\n  .amdhsa_next_free_vgpr 512\n  .amdhsa_next_free_sgpr 102\n'
                + "  .amdhsa_accum_offset 256\n  .amdhsa_group_segment_fixed_size 0\n  .amdhsa_kernarg_size 104\n  .amdhsa_user_sgpr_count 2\n"
                + "  .amdhsa_user_sgpr_kernarg_segment_ptr 1\n  .amdhsa_system_sgpr_workgroup_id_x 1\n.end_amdhsa_kernel\n")

def generate(cfg): return Gen(cfg).build()
if __name__ == "__main__":
    cfg = eval(sys.argv[2]) if len(sys.argv) > 2 else {}
    open(sys.argv[1], "w").write(generate(cfg))
```

```python
import sys, math
from dsl import Asm

NAME = "interleave_layers__sliding_block_cached__gqa_block_cached__decode_kernel"
HEAD = open("interleave_layers__sliding_block_cached__gqa_block_cached__decode.s.ref").read().split("; Override")[0]

KV_BYTES = 2 * 32 * 4096 * 384
BSTR = 32 * 4096 * 384
HSTR = 4096 * 384
W_BYTES = 640 * 6144 * 2
WS_BYTES = 434115584
H1_I, H1_H, H1_S = 524288, 16384, 2048
H2 = 8 * H1_I; H2_I, H2_H, H2_S = 131072, 4096, 512
H3 = H2 + 8 * H2_I; H3_I, H3_S, H3_H = 65536, 8192, 256
DIAG = 8 << 20
WQ = (0, 61440); WO = (30720, 92160)
VS = 122880
EX = 147456
ATT = EX; STAT = EX + 6144; Y = EX + 6208; YSZ = 1280; XROW = Y + 2 * YSZ; ONES = XROW + 1280; QB = ONES + 160; CT = QB + 768
JUNK = CT + 2048
LDS_BYTES = JUNK + 256
assert LDS_BYTES <= 163840
sWG, sWave = 2, 3
KA, VA, KB, VB, WS, WT, XO = 4, 8, 12, 16, 20, 24, 28
pX, pKA, pVA, pWQA, pWOA, pKB, pVB, pWQB, pWOB, pOUT, pDBG, pWS = 32, 34, 36, 38, 40, 44, 46, 48, 50, 52, 54, 56
sH, sS, sLocal, sOff, sRetry, sT0, sT1, sT2 = 58, 59, 60, 61, 62, 63, 64, 65
sH1own, sH1grp, sH2own, sH2grp, sH3own, sH3grp, sOffG, sOffP = 66, 67, 68, 69, 70, 71, 72, 73
mODD, mHI8, mHI32, mWOST, mRG1, mRG2, mRG3, m60 = 74, 76, 78, 80, 82, 84, 86, 88
sXcc, sWqRow, sWoRow, sLdsW, sLdsVS = 90, 91, 92, 93, 94
sST = 96; m40 = 98; mBIT1 = 100; mW3 = 42; mN10 = 32; sW2 = 95; sOffG2 = 35; sClr = 0; sM = 34; mL63 = 36
FS = [38, 40, 44, 46, 48, 50, 52, 54, 56, 24, 26, 88, 90, 92]
def sp(n): return f"s[{n}:{n+1}]"
def s4(n): return f"s[{n}:{n+3}]"
def v2(n): return f"v[{n}:{n+1}]"
def v4(n): return f"v[{n}:{n+3}]"
vLane, vKoff, vVoff, vMask = 0, 1, 2, 3
vQ, vACC, vU = 12, 24, 36
vStamp = 55
QUADS = [f"a[{i}:{i+3}]" for i in range(0, 256, 4)] + [f"v[{i}:{i+3}]" for i in range(56, 256, 4)]
SLOT = {}
_names = [("KA", i) for i in range(4)] + [("VA", 0), ("VA", 1)] + [("KB", i) for i in range(16)] + [("VB", i) for i in range(16)]
for i, n in enumerate(_names): SLOT[n] = QUADS[3 * i:3 * i + 3]
assert SLOT[("VB", 15)][2] == "v[252:255]"
vWq0, vWq1, vWo = 252, 253, 254
SCALE = 192 ** -0.5 * math.log2(math.e)
import struct
def f32(x): return "0x%08x" % struct.unpack("<I", struct.pack("<f", x))[0]

class Gen:
    def __init__(self, cfg):
        self.c = cfg; self.a = Asm(); self.items = []; self.pos = 0; self.nstamp = 0
        self.W = cfg.get("W", 10); self.limit = 10**9; self.last_cyc = 0; self.fine_on = False; self.nfine = 0; self.fnames = []; self.snames = ['start']
    def add_w(self, name, ptr, kind, ty):
        pol = self.c.get("wpol", "nt")
        def mk(k):
            def f():
                a = self.a
                if k == 0:
                    off = sWqRow if kind == "q" else sWoRow
                    a.I(f"s_add_u32 s{WT}, s{ptr}, s{off}\ns_addc_u32 s{WT+1}, s{ptr+1}, 0\ns_sub_u32 s{WT+2}, {W_BYTES}, s{off}")
                base = (WQ if kind == "q" else WO)[ty]
                a.I(f"s_add_u32 m0, s{sLdsW}, {base + 960 * k}")
                if kind == "q": so = 5 * (k // 2) * 12288; vr = vWq1 if k & 1 else vWq0
                else: so = 6 * k * 1280; vr = vWo
                a.I(f"s_mov_b32 s{sOff}, {so}\ns_mov_b64 exec, {sp(m60)}")
                a.I(f"buffer_load_dwordx4 v{vr}, {s4(WT)}, s{sOff} offen {pol} lds", tag=name)
                a.I("s_mov_b64 exec, -1")
            return f
        self.items += [(name, mk(k)) for k in range(8)]
    def add_kv(self, name, b, g):
        srd = {"KA": KA, "VA": VA, "KB": KB, "VB": VB}[name]
        isK = name[0] == "K"; vo = vKoff if isK else vVoff; step = 128 if isK else 256
        pol = self.c.get("kvpol", "nt")
        def mk(c):
            def f():
                a = self.a
                if (name, g) in SLOT:
                    if c == 0: a.I(f"s_mov_b32 s{sOff}, {b * BSTR + g * 3072}")
                    elif self.off_val != (name, b, g): a.I(f"s_mov_b32 s{sOff}, {b * BSTR + g * 3072}")
                    self.off_val = (name, b, g)
                    a.I(f"buffer_load_dwordx4 {SLOT[(name, g)][c]}, v{vo}, {s4(srd)}, s{sOff} offen offset:{step * c} {pol}")
                else:
                    self.off_val = None
                    a.I(f"s_add_u32 m0, s{sLdsVS}, {(g - 2) * 3072 + 1024 * c}\ns_mov_b32 s{sOff}, {b * BSTR + g * 3072 + step * c}")
                    a.I(f"buffer_load_dwordx4 v{vo}, {s4(srd)}, s{sOff} offen {pol} lds", tag=("VS", b, g))
            return f
        self.items += [((name, b, g), mk(c)) for c in range(3)]
    def stream(self, n, paced=True, W=None):
        for _ in range(n):
            if self.pos >= len(self.items): return
            assert self.pos < self.limit, (self.pos, self.limit)
            if paced: self.a.pace(W or self.W)
            sv = self.a._in_inject; self.a._in_inject = True
            self.items[self.pos][1](); self.pos += 1; self.last_cyc = self.a.cyc
            if self.c.get("diag") == 3 and self.pos % 8 == 0 and self.pos > 8: self.stamp("pos")
            self.a._in_inject = sv
    def injector(self):
        a = self.a
        if self.pos < self.limit and a.cyc - self.last_cyc >= self.c.get("T", 330) and a.vm.outstanding() < self.W + self.c.get("XW", 6):
            self.stream(1, paced=False)
    def stream_to(self, upto, **k): self.stream(max(0, upto - self.pos), **k)
    def index_after(self, name):
        return max(i for i, it in enumerate(self.items) if it[0] == name) + 1
    def fs(self, name):
        if not self.fine_on or self.nfine >= len(FS): return
        self.a.I(f"{'s_memrealtime' if self.c.get('rt') else 's_memtime'} {sp(FS[self.nfine])}"); self.nfine += 1; self.fnames.append(name)
    def check_slot(self, name, b, g):
        assert self.index_after((name, b, g)) <= self.pos, ("not issued", name, b, g, self.pos)
        if b == 0: assert self.index_after((name, 1, g)) - 3 >= self.pos, ("overwritten", name, g)
    def stamp(self, name=''):
        self.snames.append(f'{name}@{self.pos}')
        if not self.c.get("diag") or self.c.get("fine"): return
        if self.c["diag"] == 3 and name not in ("pos", "end"): self.snames.pop(); return
        if self.c["diag"] == 2 and name not in self.c.get("only", ("p1end", "p2beg", "p2end", "end")): self.snames.pop(); return
        a = self.a
        a.I(f"s_memrealtime {sp(sST)}"); a.wait(lg=0)
        a.I(f"v_writelane_b32 v{vStamp}, s{sST if not self.c.get('rcount') else sRetry}, {self.nstamp}"); self.nstamp += 1
    def publish(self, text, local_ok, tag="pub"):
        a = self.a
        if local_ok and self.c.get("local", True):
            a.I(f"s_cmp_lg_u32 s{sLocal}, 0")
            a.either(text.format(pol=""), text.format(pol="sc1"), tag=tag)
        else: a.I(text.format(pol="sc1"), tag=tag)
    def gather(self, loads, regs, tmp, between=None, emask=None, sleep=None, first=False, spec=()):
        a = self.a
        if first and between: between(); between = None
        if emask: loads = [f"s_mov_b64 exec, {emask}"] + loads + ["s_mov_b64 exec, -1"]
        for t in loads: a.I(t, tag="gat")
        last = len(a.vm.ent) - 1
        if between: between()
        self.fs("issued")
        n = a.vm.need(last)
        if n is not None: a.wait(vm=n)
        chk = a.label("Lc"); rt = a.label("Lr")
        a.raw(f"{chk}:"); a.no_inject += 1
        r = list(regs); ops = []
        ops.append(f"v_max3_u32 v{tmp}, v{r[0]}, v{r[1]}, v{r[2]}"); r = r[3:]
        while len(r) >= 2: ops.append(f"v_max3_u32 v{tmp}, v{tmp}, v{r[0]}, v{r[1]}"); r = r[2:]
        if r: ops.append(f"v_max_u32 v{tmp}, v{tmp}, v{r[0]}")
        ops.append(f"v_cmp_eq_u32 vcc, -1, v{tmp}")
        spec = list(spec)
        k = -(-len(ops) // max(1, len(spec)))
        while ops or spec:
            if spec: a.I(spec.pop(0))
            for t in ops[:k]: a.I(t)
            ops = ops[k:]
        if not (self.c.get("novalid") and a.inject): a.I(f"s_cbranch_vccnz {rt}")
        self.retry_block(rt, chk, loads, sleep); a.no_inject -= 1
        self.fs("valid")
    def lsleep(self): return None if self.a.inject else self.c.get('lsleep', 1)
    def retry_block(self, rt, chk, loads, sleep=None):
        a = self.a
        a.tail += [f"{rt}:", f"  s_add_u32 s{sRetry}, s{sRetry}, 1", f"  s_cmp_gt_u32 s{sRetry}, {self.c.get('spin', 200000)}",
                   "  s_cbranch_scc1 L_end"]
        if sleep is None: sleep = self.c.get("sleep", 1)
        if sleep: a.tail += [f"  s_sleep {sleep}"]
        a.tail += ["  s_nop 7"] + ["  " + t for t in loads] + ["  s_waitcnt vmcnt(0)", f"  s_branch {chk}"]
    def setup(self):
        a = self.a; I = a.I
        I(f"s_cmp_ge_u32 s{sWG}, 256\ns_cbranch_scc1 L_end")
        I(f"s_load_dwordx16 s[32:47], s[0:1], 0\ns_load_dwordx8 s[48:55], s[0:1], 64\ns_load_dwordx2 s[56:57], s[0:1], 96")
        if self.c.get("diag"): I(f"s_memrealtime {sp(sST)}")
        I(f"v_lshrrev_b32 v8, 6, v0\nv_and_b32 v0, 63, v0\nv_readfirstlane_b32 s{sWave}, v8")
        I(f"s_and_b32 s{sT0}, s{sWG}, 7\ns_lshl_b32 s{sT0}, s{sT0}, 2\ns_lshr_b32 s{sT1}, s{sWG}, 3\ns_and_b32 s{sT1}, s{sT1}, 3\ns_add_u32 s{sH}, s{sT0}, s{sT1}\ns_lshr_b32 s{sS}, s{sWG}, 5")
        I(f"v_mul_u32_u24 v8, 43, v0\nv_lshrrev_b32 v8, 10, v8\nv_mul_u32_u24 v9, 24, v8\nv_sub_u32 v9, v0, v9\nv_mul_u32_u24 v8, 0x3000, v8\nv_lshl_add_u32 v{vWq0}, v9, 4, v8")
        I(f"v_add_u32 v10, 60, v0\nv_mul_u32_u24 v8, 43, v10\nv_lshrrev_b32 v8, 10, v8\nv_mul_u32_u24 v9, 24, v8\nv_sub_u32 v9, v10, v9\nv_mul_u32_u24 v8, 0x3000, v8\nv_lshl_add_u32 v{vWq1}, v9, 4, v8")
        I(f"s_mul_i32 s{sT0}, s{sS}, {80 * 12288}\ns_mul_i32 s{sT1}, s{sWave}, {20 * 12288}\ns_add_u32 s{sT0}, s{sT0}, s{sT1}\ns_mul_i32 s{sT1}, s{sH}, 384\ns_add_u32 s{sWqRow}, s{sT0}, s{sT1}")
        I(f"s_mul_i32 s{sT0}, s{sH}, {192 * 1280}\ns_mul_i32 s{sT1}, s{sWave}, {48 * 1280}\ns_add_u32 s{sT0}, s{sT0}, s{sT1}\ns_mul_i32 s{sT1}, s{sS}, 160\ns_add_u32 s{sWoRow}, s{sT0}, s{sT1}")
        I(f"s_mul_i32 s{sLdsW}, s{sWave}, 7680\ns_mov_b32 s{m60}, -1\ns_mov_b32 s{m60+1}, 0x0fffffff\ns_mov_b32 s{WT+3}, 0x20000\ns_mov_b32 s{sRetry}, 0")
        I(f"v_and_b32 v8, 15, v0\nv_lshrrev_b32 v9, 4, v0")
        I(f"v_lshrrev_b32 v10, 1, v8\nv_mul_u32_u24 v10, 384, v10\nv_and_b32 v11, 1, v8\nv_lshl_add_u32 v11, v9, 1, v11\nv_lshl_add_u32 v{vKoff}, v11, 4, v10")
        I(f"v_mul_u32_u24 v10, 768, v9\nv_lshl_add_u32 v{vVoff}, v8, 4, v10")
        I(f"s_mul_i32 s{sT0}, s{sH}, {HSTR}\ns_mul_i32 s{sT1}, s{sS}, {128 * 384}\ns_add_u32 s{sT1}, s{sT1}, s{sT0}\ns_mul_i32 s{sT2}, s{sWave}, {32 * 384}\ns_add_u32 s{sT1}, s{sT1}, s{sT2}\ns_add_u32 s{sOffG}, s{sT1}, {3072 * 384}")
        I(f"s_mul_i32 s{sT1}, s{sS}, {512 * 384}\ns_add_u32 s{sT1}, s{sT1}, s{sT0}\ns_mul_i32 s{sT2}, s{sWave}, {128 * 384}\ns_add_u32 s{sOffP}, s{sT1}, s{sT2}")
        I(f"s_mul_i32 s{sLdsVS}, s{sWave}, 6144\ns_add_u32 s{sLdsVS}, s{sLdsVS}, {VS}")
        I(f"s_mov_b32 s{XO+2}, 2560\ns_mov_b32 s{XO+3}, 0x20000\ns_mul_i32 s{sT0}, s{sS}, 160\nv_lshlrev_b32 v7, 2, v0\nv_min_u32 v7, 156, v7")
        for srd, o in ((KA, sOffG), (VA, sOffG), (KB, sOffP), (VB, sOffP)): I(f"s_sub_u32 s{srd+2}, {KV_BYTES}, s{o}\ns_mov_b32 s{srd+3}, 0x20000")
        I(f"s_mov_b32 s{WS+2}, {WS_BYTES}\ns_mov_b32 s{WS+3}, 0x20000")
        I(f"s_mul_i32 s{sH1grp}, s{sH}, {H1_H}\ns_mul_i32 s{sT1}, s{sS}, {H1_S}\ns_add_u32 s{sH1own}, s{sH1grp}, s{sT1}")
        I(f"s_mul_i32 s{sH2grp}, s{sH}, {H2_H}\ns_add_u32 s{sH2grp}, s{sH2grp}, {H2}\ns_mul_i32 s{sT1}, s{sS}, {H2_S}\ns_add_u32 s{sH2own}, s{sH2grp}, s{sT1}")
        I(f"s_mul_i32 s{sH3grp}, s{sS}, {H3_S}\ns_add_u32 s{sH3grp}, s{sH3grp}, {H3}\ns_mul_i32 s{sT1}, s{sH}, {H3_H}\ns_add_u32 s{sH3own}, s{sH3grp}, s{sT1}")
        self.clear_prep([[("P", 0)], [("C", 0)], [("P", 4)], [("2", 0), ("3", 0)]])
        a.wait(lg=0)
        I(f"s_mov_b32 s{WS}, s{pWS}\ns_mov_b32 s{WS+1}, s{pWS+1}")
        if self.c.get("clr0", 1): self.clear_issue("clr")
        if self.c.get("diag"): I(f"v_mov_b32 v{vStamp}, 0\nv_writelane_b32 v{vStamp}, s{sST}, 0"); self.nstamp = 1
        if self.c.get("st0"): self.stamp("end")
        if self.c.get("tlb"): self.tlb_touch()
        I(f"s_mov_b32 s{XO}, s{pX}\ns_mov_b32 s{XO+1}, s{pX+1}")
        I(f"buffer_load_dword v12, v7, {s4(XO)}, s{sT0} offen\nbuffer_load_dword v13, v7, {s4(XO)}, s{sT0} offen offset:1280")
        if self.c.get("st0") == 2: self.stamp("end")
        self.stream(8, paced=False)
        if not self.c.get("clr0", 1): self.clear_issue("clr")
        if self.c.get("st0") == 2: self.stamp("end")
        for srd, p, o in ((KA, pKA, sOffG), (VA, pVA, sOffG), (KB, pKB, sOffP), (VB, pVB, sOffP)):
            I(f"s_add_u32 s{srd}, s{p}, s{o}\ns_addc_u32 s{srd+1}, s{p+1}, 0")
        self.stream(self.c.get("I0", 6), paced=False)
        if self.c.get("st0") == 2: self.stamp("end")
        if self.c.get("st0") == 2: self.stamp("end")
        self.stream(self.c.get('I1', 6), paced=False)
        if self.c.get("st0"):
            self.stamp("end")
            n = len(a.vm.ent)
            for k in (1, 2, 3, 10, 11, 16, 21, n): a.wait(vm=n - k); self.stamp("end")
        if self.c.get("cpf") == 1: self.code_prefetch("L_pf0", "L_pf9")
        I(f"v_mul_u32_u24 v10, 26, v0\nv_lshrrev_b32 v10, 8, v10\nv_mul_u32_u24 v11, 10, v10\nv_sub_u32 v11, v0, v11\nv_mul_u32_u24 v10, 1280, v10\nv_lshl_add_u32 v{vWo}, v11, 4, v10")
        I("v_and_b32 v10, 1, v0\nv_cmp_eq_u32 vcc, 1, v10\nv_mov_b32 v11, 0xffff\nv_mov_b32 v20, 0xffff0000\nv_cndmask_b32 v11, v11, v20, vcc\nv_bfe_u32 v10, v0, 1, 2")
        for j in range(4): I(f"v_cmp_eq_u32 vcc, {j}, v10\nv_cndmask_b32 v{vMask+j}, 0, v11, vcc")
        for m, lo, hi in ((mODD, 0xaaaaaaaa, 0xaaaaaaaa), (mHI8, 0xff00ff00, 0xff00ff00), (mRG1, 0xffff0000, 0), (mRG2, 0, 0xffff), (mRG3, 0, 0xffff0000), (m40, 0xffffffff, 0xff), (mWOST, 0x5555, 0x5555), (mN10, 0x03ff03ff, 0x03ff03ff), (mHI32, 0, 0xffffffff), (mBIT1, 0xcccccccc, 0xcccccccc), (mL63, 0, 0x80000000)):
            I(f"s_mov_b32 s{m}, {lo:#x}\ns_mov_b32 s{m+1}, {hi:#x}")
        I(f"s_cmp_eq_u32 s{sWave}, 3\ns_cselect_b64 {sp(mW3)}, -1, 0\ns_min_u32 s{sW2}, s{sWave}, 2")
        I(f"s_getreg_b32 s{sXcc}, hwreg(HW_REG_XCC_ID, 0, 4)\ns_add_u32 s{sXcc}, s{sXcc}, 1")
        I(f"s_mul_i32 s{sT0}, s{sWave}, 160\ns_add_u32 s{sT0}, s{sT0}, {XROW}\nv_add_u32 v10, s{sT0}, v7\nv_add_u32 v11, {ONES}, v7\nv_mov_b32 v20, 0x3f803f80")
        I("ds_write_b32 v11, v20\nds_write_b32 v10, v12\nds_write_b32 v10, v13 offset:640")
        I(f"s_mov_b32 s{XO}, s{pOUT}\ns_mov_b32 s{XO+1}, s{pOUT+1}")
    def clear_prep(self, jobs):
        I = self.a.I
        I("v_mov_b32 v16, -1\nv_mov_b32 v17, -1\nv_mov_b32 v18, -1\nv_mov_b32 v19, -1\nv_lshlrev_b32 v14, 4, v0")
        def seg(k, inst, hi):
            if k in "PC": return sH1own, inst * H1_I + (1024 if k == "C" else 0), -1
            if k == "2": return sH2own, inst * H2_I - 512 * hi, -1
            return sH3own, inst * H3_I - 512 * hi, 0xfff
        for w, job in enumerate(jobs):
            lo = seg(*job[0], 0); hi = seg(*job[-1], 1)
            for (r, o, m), dst, md in ((lo, sT1, sClr), (hi, sT2, sClr + 1)):
                if w == 0: I(f"s_add_u32 s{dst}, s{r}, {o & 0xffffffff}\ns_mov_b32 s{md}, {m}")
                else: I(f"s_add_u32 s{sOff}, s{r}, {o & 0xffffffff}\ns_cmp_eq_u32 s{sWave}, {w}\ns_cselect_b32 s{dst}, s{sOff}, s{dst}\ns_cselect_b32 s{md}, {m}, s{md}")
        self.off_val = None
        I(f"v_mov_b32 v15, s{sT1}\nv_mov_b32 v20, s{sT2}\nv_cmp_lt_u32 vcc, 31, v0\nv_cndmask_b32 v15, v15, v20, vcc\nv_add_u32 v15, v15, v14")
    def clear_issue(self, tag, local_ok=False):
        I = self.a.I
        I(f"s_mov_b64 exec, {sp(sClr)}")
        self.publish(f"buffer_store_dwordx4 v[16:19], v15, {s4(WS)}, 0 offen {{pol}}", local_ok, tag=tag)
        I("s_mov_b64 exec, -1")
    def tlb_touch(self):
        a = self.a; I = a.I
        ent = []
        for p, o, span in ((pWQA, sWqRow, 20 * 12288), (pKA, sOffG, 12288), (pVA, sOffG, 12288), (pWOA, sWoRow, 48 * 1280), (pWQB, sWqRow, 20 * 12288),
                           (pKB, sOffP, 49152), (pWOB, sWoRow, 48 * 1280), (pVB, sOffP, 49152)):
            for b in range(2 if o in (sOffG, sOffP) else 1): ent.append((p, o, b * BSTR))
        if self.c["tlb"] > 1:
            ent += [(pWS, None, 0), (pWS, None, 2 << 20), (pWS, None, 4 << 20), (pDBG, None, 0), (pOUT, None, 0)]
        for i, (p, o, c) in enumerate(ent):
            if o is None: I(f"s_add_u32 s{sT1}, s{p}, {c}\ns_addc_u32 s{sT2}, s{p+1}, 0")
            else:
                I(f"s_add_u32 s{sT1}, s{p}, s{o}\ns_addc_u32 s{sT2}, s{p+1}, 0")
                if c: I(f"s_add_u32 s{sT1}, s{sT1}, {c}\ns_addc_u32 s{sT2}, s{sT2}, 0")
            if i == 0: I(f"v_mov_b32 v14, s{sT1}\nv_mov_b32 v15, s{sT2}")
            else: I(f"v_writelane_b32 v14, s{sT1}, {i}\nv_writelane_b32 v15, s{sT2}, {i}")
        I(f"s_mov_b64 exec, {(1 << len(ent)) - 1}\nglobal_load_dword v250, v[14:15], off nt\ns_mov_b64 exec, -1")
    def code_prefetch(self, lo, hi):
        a = self.a; I = a.I
        l = a.label("Lp")
        I(f"s_getpc_b64 {sp(sT1)}"); a.raw(f"{l}:")
        I(f"s_add_u32 s{sT1}, s{sT1}, {lo}-{l}\ns_addc_u32 s{sT2}, s{sT2}, 0")
        I(f"s_lshr_b32 s{sT0}, s{sWG}, 3\ns_lshl_b32 s{sT0}, s{sT0}, 2\ns_add_u32 s{sT0}, s{sT0}, s{sWave}\ns_lshl_b32 s{sT0}, s{sT0}, 13")
        I(f"v_lshl_add_u32 v30, v0, 7, s{sT0}\nv_cmp_gt_u32 vcc, {hi}-{lo}, v30\ns_mov_b32 m0, {JUNK}")
        I("s_and_b64 exec, vcc, -1"); a.skip_begin("s_cbranch_execz")
        I(f"global_load_lds_dword v30, {sp(sT1)}")
        a.skip_end()
        I("s_mov_b64 exec, -1")
    def arrive(self):
        a = self.a; I = a.I
        I(f"s_cmp_lg_u32 s{sWave}, 0"); a.skip_begin("s_cbranch_scc1")
        I(f"s_and_b32 s{sT0}, s{sWG}, 3\ns_lshl_b32 s{sT0}, s{sT0}, 3\ns_lshl_b32 s{sT0}, s{sXcc}, s{sT0}\ns_and_b32 s{sT1}, s{sWG}, 0xfc")
        I(f"v_mov_b32 v8, s{sT1}\nv_mov_b32 v9, s{sT0}\ns_mov_b64 exec, 1")
        I(f"global_atomic_add v8, v9, {sp(pDBG)} sc1\ns_mov_b64 exec, -1")
        a.skip_end()
    def handshake(self, between):
        a = self.a; I = a.I
        I("v_lshlrev_b32 v7, 2, v0")
        ld = f"global_load_dword v8, v7, {sp(pDBG)} sc1"
        I(ld); last = len(a.vm.ent) - 1
        between()
        n = a.vm.need(last)
        if n is not None: a.wait(vm=n)
        chk = a.label("Lc"); rt = a.label("Lr")
        a.raw(f"{chk}:"); a.no_inject += 1
        I("v_subrev_u32 v9, 0x01010101, v8\nv_not_b32 v10, v8\nv_and_b32 v9, v9, v10\nv_and_b32 v9, 0x80808080, v9\nv_cmp_ne_u32 vcc, 0, v9")
        I(f"s_cbranch_vccnz {rt}")
        self.retry_block(rt, chk, [ld]); a.no_inject -= 1
        I(f"s_and_b32 s{sT0}, s{sWG}, 3\ns_lshl_b32 s{sT0}, s{sT0}, 3\nv_lshrrev_b32 v8, s{sT0}, v8\nv_and_b32 v8, 0xff, v8")
        I(f"s_bfe_u32 s{sT0}, s{sWG}, 0x30002\nv_and_b32 v9, 7, v0\nv_cmp_eq_u32 {sp(sT1)}, s{sT0}, v9\nv_cmp_ne_u32 vcc, s{sXcc}, v8")
        I(f"s_and_b64 vcc, vcc, {sp(sT1)}\ns_cmp_eq_u64 vcc, 0\ns_cselect_b32 s{sLocal}, 1, 0")
    WQB = [(24, 28, 32), (34, 38, 42), (44, 48, 52)]
    def wq_pre(self, ty):
        a = self.a; I = a.I
        I(f"v_bfe_u32 v7, v0, 2, 2\nv_lshrrev_b32 v9, 4, v0\nv_lshl_add_u32 v8, v9, 3, v7\nv_lshl_add_u32 v7, v9, 2, v7")
        I(f"v_and_b32 v9, 3, v0\nv_lshlrev_b32 v9, 3, v9\ns_mul_i32 s{sT0}, s{sWave}, 96\ns_add_u32 s{sT0}, s{sT0}, {WQ[ty]}\nv_add_u32 v9, s{sT0}, v9")
        I(f"s_movk_i32 s{sT0}, 384\nv_mad_u32_u24 v8, v8, s{sT0}, v9\nv_mad_u32_u24 v7, v7, s{sT0}, v9")
        for T, (b0, b1, b2) in enumerate(self.WQB):
            for t, r in ((0, b0), (1, b1)):
                I(f"ds_read_b64_tr_b16 {v2(r)}, v8 offset:{12288 * t + 32 * T}\nds_read_b64_tr_b16 {v2(r+2)}, v8 offset:{12288 * t + 1536 + 32 * T}")
            I(f"ds_read_b64_tr_b16 {v2(b2)}, v7 offset:{24576 + 32 * T}")
    def wq_addr(self, b, L):
        I = self.a.I
        I(f"s_mul_i32 s{sT0}, s{sWave}, 160\ns_add_u32 s{sT0}, s{sT0}, {XROW + 640 * b}\nv_mov_b32 v22, s{sT0}\nv_mov_b32 v23, {ONES}")
        I(f"v_cndmask_b32 v23, v22, v23, {sp(mODD)}\nv_lshrrev_b32 v21, 4, v0\nv_lshl_add_u32 v22, v21, 4, v23\nv_lshl_add_u32 v23, v21, 3, v23")
    def wq_main(self, b, L, local_ok=True, hoisted=False, hoist=False):
        a = self.a; I = a.I; inst = 4 * b + L; needC = inst < 2
        if not hoisted: self.wq_addr(b, L)
        I("ds_read_b128 v[12:15], v22\nds_read_b128 v[16:19], v22 offset:64\nds_read_b64 v[20:21], v23 offset:128")
        I(f"s_lshl_b32 s{sT0}, s{sWave}, 8\nv_lshl_add_u32 v54, v0, 2, s{sT0}\ns_add_u32 s{sOffP}, s{sH1own}, {inst * H1_I}")
        if hoist: self.qg_addr(b, L)
        D = [8, 24, 28]
        for T, (b0, b1, b2) in enumerate(self.WQB):
            I(f"v_mfma_f32_16x16x32_bf16 {v4(D[T])}, v[12:15], {v4(b0)}, 0")
            I(f"v_mfma_f32_16x16x32_bf16 {v4(D[T])}, v[16:19], {v4(b1)}, {v4(D[T])}")
        I("v_mfma_f32_16x16x32_bf16 v[34:37], v[12:15], v[12:15], 0\nv_mfma_f32_16x16x32_bf16 v[34:37], v[16:19], v[16:19], v[34:37]")
        for T, (b0, b1, b2) in enumerate(self.WQB):
            I(f"v_mfma_f32_16x16x16_bf16 {v4(D[T])}, v[20:21], {v2(b2)}, {v4(D[T])}")
        I("v_mfma_f32_16x16x16_bf16 v[34:37], v[20:21], v[20:21], v[34:37]")
        for r in range(2 if needC else 1):
            I(f"v_cndmask_b32 v{22+r}, v{8+r}, v{24+r}, {sp(mRG1)}\nv_cndmask_b32 v{22+r}, v{22+r}, v{28+r}, {sp(mRG2)}\nv_cndmask_b32 v{22+r}, v{22+r}, v34, {sp(mRG3)}\nv_min_u32 v{22+r}, -2, v{22+r}")
            self.publish(f"buffer_store_dword v{22+r}, v54, {s4(WS)}, s{sOffP} offen offset:{1024 * r} {{pol}}", local_ok)
    def qg_addr(self, b, L):
        I = self.a.I
        I(f"v_and_b32 v23, 15, v0\nv_lshrrev_b32 v7, 4, v0\nv_lshlrev_b32 v7, 11, v7\nv_lshl_add_u32 v7, v23, 4, v7\ns_lshl_b32 s{sT0}, s{sWave}, 8")
        I(f"s_add_u32 s{sOffG}, s{sH1grp}, s{sT0}\ns_add_u32 s{sOffG}, s{sOffG}, {(4 * b + L) * H1_I}\ns_add_u32 s{sOffG2}, s{sOffG}, {4 * H1_S}")
    def qg(self, b, L, between=None, hoisted=False, after=None):
        a = self.a; I = a.I; inst = 4 * b + L; needC = inst < 2; ty = L & 1
        if not hoisted: self.qg_addr(b, L)
        loads = [f"buffer_load_dwordx4 v[12:15], v7, {s4(WS)}, s{sOffG} offen sc1", f"buffer_load_dwordx4 v[16:19], v7, {s4(WS)}, s{sOffG2} offen sc1"]
        if needC: loads += [f"buffer_load_dwordx4 v[20:23], v7, {s4(WS)}, s{sOffG} offen offset:1024 sc1", f"buffer_load_dwordx4 v[24:27], v7, {s4(WS)}, s{sOffG2} offen offset:1024 sc1"]
        def pre():
            I(f"v_and_b32 v8, 15, v0\nv_lshrrev_b32 v9, 4, v0\nv_and_b32 v10, 1, v9\nv_lshlrev_b32 v10, 1, v10\nv_lshrrev_b32 v28, 1, v9\nv_or_b32 v10, v10, v28\nv_lshl_add_u32 v10, v8, 2, v10")
            I(f"s_mul_i32 s{sT0}, s{sWave}, 96\ns_add_u32 s{sT0}, s{sT0}, {QB + 384 * b}\nv_lshl_add_u32 v10, v10, 1, s{sT0}")
            I(f"s_lshl_b32 s{sT0}, s{sWave}, 8\ns_add_u32 s{sT0}, s{sT0}, {CT + 1024 * ty}\nv_lshl_add_u32 v29, v0, 2, s{sT0}")
            if not needC: I("ds_read_b32 v20, v29")
            self.q_addr(b)
            I(f"v_mov_b32 v11, {f32(1 / (640 * SCALE))}\nv_mov_b32 v8, {f32(1 / (640 * SCALE * SCALE))}\nv_mov_b32 v9, {f32(1e-5 / (SCALE * SCALE))}")
            if between: between()
        self.gather(loads, range(12, 28 if needC else 20), 28, between=pre, sleep=self.lsleep(), first=hoisted and self.c.get('first', 3) & 2)
        if after: after()
        def red(r):
            I(f"v_pk_add_f32 {v2(r)}, {v2(r)}, {v2(r+4)}\nv_pk_add_f32 {v2(r+2)}, {v2(r+2)}, {v2(r+6)}")
            I(f"v_permlane32_swap_b32 v{r}, v{r+1}\nv_permlane32_swap_b32 v{r+2}, v{r+3}\nv_add_f32 v{r}, v{r}, v{r+1}\nv_add_f32 v{r+2}, v{r+2}, v{r+3}")
            I(f"v_permlane16_swap_b32 v{r}, v{r+2}\nv_add_f32 v{r}, v{r}, v{r+2}")
        red(12)
        I(f"v_readlane_b32 s{sT0}, v12, 12\nv_readlane_b32 s{sT1}, v12, 44")
        if needC: red(20); I(f"v_mul_f32 v20, {f32(SCALE)}, v20\nds_write_b32 v29, v20")
        I(f"s_mov_b32 exec_lo, 0x0fff0fff\ns_mov_b32 exec_hi, 0x0fff0fff")
        I(f"v_mul_f32 v15, s{sT1}, v11\nv_fma_f32 v14, s{sT0}, v8, v9\nv_fma_f32 v14, -v15, v15, v14\nv_max_f32 v14, v9, v14\nv_rsq_f32 v14, v14")
        I(f"v_fma_f32 v12, -v15, v20, v12\nv_mul_f32 v12, v12, v14\nv_cvt_pk_bf16_f32 v12, v12, v12")
        I("ds_write_b16 v10, v12\ns_mov_b64 exec, -1")
        a.barrier()
    def q_addr(self, b):
        self.a.I(f"v_and_b32 v30, 1, v0\nv_lshrrev_b32 v31, 4, v0\nv_lshlrev_b32 v31, 5, v31\nv_lshl_add_u32 v30, v30, 4, v31\nv_add_u32 v30, {QB + 384 * b}, v30")
    def att(self, b, L, hook1=None, hook2=None, hookm=None, pre_bar=None, guard=False, hoist=False, qaddr=False):
        a = self.a; I = a.I; ty = L & 1; G = 16 if ty else 4; Kn = "KB" if ty else "KA"; Vn = "VB" if ty else "VA"
        vM, vL = 52, 53
        if not qaddr: self.q_addr(b)
        for t in range(3): I(f"ds_read_b128 {v4(vQ + 4 * t)}, v30 offset:{128 * t}")
        def lds_v(g):
            a.wait_tag(("VS", b, g))
            I(f"v_lshl_add_u32 v54, v0, 4, s{sLdsVS}")
            for c in range(3): I(f"ds_read_b128 {v4(vU + 4 + 4 * c)}, v54 offset:{(g - 2) * 3072 + 1024 * c}")
        early = (not ty) and L == 2
        if early: lds_v(2)
        def D(g): return vACC + 4 * (g % 3)
        dm = "row_mask:0xf"
        for g in range(G + 2):
            K = SLOT[(Kn, g)] if g < G else None
            if K: self.check_slot(Kn, b, g)
            e = g - 2
            if K: I(f"v_mfma_f32_16x16x32_bf16 {v4(D(g))}, {K[0]}, {v4(vQ)}, 0")
            if K: I(f"v_mfma_f32_16x16x32_bf16 {v4(D(g))}, {K[1]}, {v4(vQ+4)}, {v4(D(g))}")
            if 0 <= e < G: I(f"v_add_f32_dpp v{vU+e}, v{D(e)}, v{D(e)+1} quad_perm:[0,0,2,2] {dm} bank_mask:0x3")
            if K: I(f"v_mfma_f32_16x16x32_bf16 {v4(D(g))}, {K[2]}, {v4(vQ+8)}, {v4(D(g))}")
            if g == G:
                I(f"s_lshl_b32 s{sT0}, s{sWave}, 2\ns_add_u32 s{sT0}, s{sT0}, {STAT}\nv_mov_b32 v7, s{sT0}")
            if g == G + 1: I(f"v_max3_f32 v{vM}, v{vU}, v{vU+1}, v{vU+2}\ns_nop 0")
            if hook1 and g < G: hook1(g)
            if 0 <= e < G: I(f"v_add_f32_dpp v{vU+e}, v{D(e)+2}, v{D(e)+3} quad_perm:[0,0,2,2] {dm} bank_mask:0xc")
        if hookm: hookm()
        r = 3
        while r + 1 < G: I(f"v_max3_f32 v{vM}, v{vM}, v{vU+r}, v{vU+r+1}"); r += 2
        if r < G: I(f"v_max_f32 v{vM}, v{vM}, v{vU+r}")
        red = ("row_ror:8 row_mask:0xf", "row_bcast:15 row_mask:0xa", "row_bcast:31 row_mask:0xc")
        for x in red: I(f"v_max_f32_dpp v{vM}, v{vM}, v{vM} {x} bank_mask:0xf")
        I(f"v_readlane_b32 s{sM}, v{vM}, 63")
        order = list(range(G)) if ty else [2, 0, 1, 3]
        if not ty and not early: order = [0, 1, 2, 3]
        def prob(g): I(f"v_subrev_f32 v{vU+g}, s{sM}, v{vU+g}\nv_exp_f32 v{vU+g}, v{vU+g}")
        def prob2(g, first=False):
            I(f"v_mov_b32 v{vL}, v{vU+g}" if first else f"v_add_f32 v{vL}, v{vL}, v{vU+g}")
            I(f"v_cvt_pk_bf16_f32 v{vU+g}, v{vU+g}, v{vU+g}")
        def diag(i, j): I(f"v_and_b32_dpp v{vQ + 4 * (i & 1) + j}, v{vU + order[i]}, v{vMask + j} quad_perm:[1,1,3,3] {dm} bank_mask:0xf")
        g0, g1 = vU + order[0], vU + order[1]
        I(f"v_subrev_f32 v{g0}, s{sM}, v{g0}\nv_subrev_f32 v{g1}, s{sM}, v{g1}\nv_exp_f32 v{g0}, v{g0}\nv_exp_f32 v{g1}, v{g1}")
        I(f"v_cvt_pk_bf16_f32 v8, v{g0}, v{g0}\nv_add_f32 v{vL}, v{g0}, v{g1}\nv_cvt_pk_bf16_f32 v{g1}, v{g1}, v{g1}")
        for j in range(4): I(f"v_and_b32_dpp v{vQ + j}, v8, v{vMask + j} quad_perm:[1,1,3,3] {dm} bank_mask:0xf")
        if guard: a.barrier()
        lred = []
        for i, g in enumerate(order):
            self.check_slot(Vn, b, g)
            if (Vn, g) in SLOT: V = SLOT[(Vn, g)]
            else:
                if not early: lds_v(g)
                V = [v4(vU + 4 + 4 * c) for c in range(3)]
            A = v4(vQ + 4 * (i & 1))
            nx = i + 1 < G; nx2 = i + 2 < G
            if i == G - 2: lred = [f"v_add_f32_dpp v{vL}, v{vL}, v{vL} {x} bank_mask:0xf" for x in red]
            if i == 0: I(f"v_mov_b32 v{vM}, s{sM}")
            for c in range(3):
                acc = v4(vACC + 4 * c)
                I(f"v_mfma_f32_16x16x32_bf16 {acc}, {A}, {V[c]}, {acc if i else 0}")
                if c == 0:
                    if nx: diag(i + 1, 0); diag(i + 1, 1)
                    if nx2: prob(order[i + 2])
                if c == 1:
                    if nx: diag(i + 1, 2); diag(i + 1, 3)
                if c == 2:
                    if nx2: prob2(order[i + 2])
                if lred: I(lred.pop(0))
                if i == 0 and c == 1: I(f"ds_write_b32 v7, v{vM}")
                if i == G - 1 and c == 0: I(f"s_mov_b64 exec, {sp(mL63)}\nds_write_b32 v7, v{vL} offset:16\ns_mov_b64 exec, -1")
            if early and g == 2: lds_v(3)
            if hook2: hook2(i)
        inst = 4 * b + L
        I(f"v_and_b32 v54, 15, v0\nv_lshlrev_b32 v54, 5, v54\nv_and_b32 v8, 16, v0\ns_mul_i32 s{sT0}, s{sWave}, 1536\ns_add_u32 s{sT0}, s{sT0}, {ATT}\nv_add3_u32 v54, v54, v8, s{sT0}")
        for c, (lo, hi) in enumerate(((0xffffffff, 0), (0x00ff00ff, 0xff00ff00), (0, 0xffffffff))):
            I(f"s_mov_b32 exec_lo, {lo:#x}\ns_mov_b32 exec_hi, {hi:#x}\nds_write_b128 v54, {v4(vACC + 4 * c)} offset:{512 * c}")
        I("s_mov_b64 exec, -1")
        I(f"v_mov_b32 v9, {STAT}\ns_lshl_b32 s{sT0}, s{sWave}, 8\ns_add_u32 s{sT0}, s{sT0}, {ATT}\nv_lshl_add_u32 v10, v0, 2, s{sT0}")
        I(f"s_lshl_b32 s{sT0}, s{sWave}, 7\nv_lshl_add_u32 v11, v0, 1, s{sT0}\ns_add_u32 s{sOffP}, s{sH2own}, {inst * H2_I}")
        if hoist: self.wo_addr(b, L)
        if pre_bar: pre_bar()
        self.fs("att_end")
        a.barrier()
        self.combine(b, L)
        self.fs("pub2")
    def combine(self, b, L):
        a = self.a; I = a.I; inst = 4 * b + L
        I("ds_read_b128 v[44:47], v9\nds_read_b128 v[48:51], v9 offset:16")
        for i in range(0, 8, 2): I(f"ds_read2st64_b32 {v2(12 + i)}, v10 offset0:{3 * i} offset1:{3 * i + 3}")
        I("v_max3_f32 v52, v44, v45, v46\nv_max_f32 v52, v52, v47")
        for w in range(4): I(f"v_sub_f32 v{44+w}, v{44+w}, v52")
        for w in range(4): I(f"v_exp_f32 v{44+w}, v{44+w}")
        for w in range(4): I(f"v_add_f32 v{12 + 2 * w}, v{12 + 2 * w}, v{13 + 2 * w}")
        I("v_mul_f32 v20, v44, v12\nv_fmac_f32 v20, v45, v14\nv_fmac_f32 v20, v46, v16\nv_fmac_f32 v20, v47, v18")
        I("v_mul_f32 v53, v44, v48\nv_fmac_f32 v53, v45, v49")
        I("v_mov_b32_dpp v21, v20 quad_perm:[1,1,3,3] row_mask:0xf bank_mask:0xf")
        I("v_fmac_f32 v53, v46, v50\nv_fmac_f32 v53, v47, v51\nv_cvt_pk_bf16_f32 v20, v20, v21")
        I(f"v_cndmask_b32 v52, v52, v53, {sp(mBIT1)}\nv_cndmask_b32 v20, v20, v52, {sp(mW3)}\nv_min_u32 v20, -2, v20")
        I(f"s_not_b64 exec, {sp(mODD)}")
        self.publish(f"buffer_store_dword v20, v11, {s4(WS)}, s{sOffP} offen {{pol}}", True)
        I("s_mov_b64 exec, -1")
    def wo_addr(self, b, L):
        I = self.a.I
        I(f"v_bfe_u32 v8, v0, 1, 3\nv_lshrrev_b32 v22, 4, v0\nv_and_b32 v7, 1, v0\nv_lshl_add_u32 v7, v22, 1, v7\nv_lshlrev_b32 v7, 4, v7\nv_lshl_add_u32 v7, v8, 9, v7")
        I(f"v_lshl_add_u32 v8, v22, 1, v8\nv_and_b32 v8, 7, v8\nv_lshlrev_b32 v8, 9, v8\ns_add_u32 s{sOffG}, s{sH2grp}, {(4 * b + L) * H2_I}")
    def wo(self, b, L, between=None, hoisted=False, hoist=False, after=None):
        a = self.a; I = a.I; inst = 4 * b + L; ty = L & 1
        if not hoisted: self.wo_addr(b, L)
        loads = [f"buffer_load_dwordx2 v[52:53], v8, {s4(WS)}, s{sOffG} offen offset:384 sc1"]
        loads += [f"buffer_load_dwordx4 {v4(12 + 4 * t)}, v7, {s4(WS)}, s{sOffG} offen offset:{128 * t} sc1" for t in range(3)]
        S = [24, 28, 32, 36, 40, 44]
        def rd(kk, reg, tile):
            o = 10240 * (kk >> 1) + 1280 * (kk & 1) + 32 * tile
            I(f"ds_read_b64_tr_b16 {v2(reg)}, v10 offset:{o}\nds_read_b64_tr_b16 {v2(reg + 2)}, v10 offset:{o + 640}")
        def pre():
            I(f"v_bfe_u32 v10, v0, 2, 2\nv_and_b32 v11, 48, v0\nv_add_u32 v10, v10, v11\nv_mul_u32_u24 v10, 160, v10\nv_and_b32 v11, 3, v0\nv_lshl_add_u32 v10, v11, 3, v10")
            I(f"s_lshl_b32 s{sT0}, s{sW2}, 6\ns_add_u32 s{sT1}, s{sT0}, {WO[ty]}\nv_add_u32 v10, s{sT1}, v10")
            for kk in range(6): rd(kk, S[kk], 0)
            I(f"v_and_b32 v11, 15, v0\nv_lshlrev_b32 v11, 1, v11\nv_and_b32 v9, 32, v0\nv_add3_u32 v11, v11, v9, s{sT0}\ns_add_u32 s{sOffP}, s{sH3own}, {inst * H3_I}")
            if hoist: self.yg_addr()
            if between: between()
        D0, D1 = 48, 24
        mt = lambda D, t, B, first: f"v_mfma_f32_16x16x32_bf16 {v4(D)}, {v4(12 + 4 * t)}, {v4(B)}, {0 if first else v4(D)}"
        def mm(*k): I(mt(*k))
        self.gather(loads, [52, 53] + list(range(12, 24)), 9, between=pre, sleep=self.lsleep(), first=hoisted and self.c.get('first', 3) & 1,
                    spec=[mt(D0, 0, S[0], True), mt(D0, 1, S[2], False), mt(D0, 2, S[4], False)])
        if after: after()
        dpp = lambda op, d, x, ctl: I(f"{op}_dpp v{d}, v{x}, v{x} {ctl} row_mask:0xf bank_mask:0xf")
        def fold(out):
            I(f"v_add_f32 v{D0}, v{D0}, v{D1 + 1}\nv_add_f32 v{D0 + 2}, v{D0 + 2}, v{D1 + 3}\nv_mul_f32 v{out}, v7, v{D0}\nv_fmac_f32 v{out}, v8, v{D0 + 2}")
        dpp("v_max_f32", 9, 52, "row_ror:8")
        mm(D1, 0, S[1], True); rd(0, S[2], 1); dpp("v_max_f32", 9, 9, "row_ror:4")
        mm(D1, 1, S[3], False); rd(2, S[4], 1); dpp("v_max_f32", 9, 9, "row_ror:2")
        mm(D1, 2, S[5], False); I("v_sub_f32 v52, v52, v9\nv_exp_f32 v52, v52"); rd(4, S[1], 1); I("v_mul_f32 v53, v52, v53")
        rd(1, S[3], 1); dpp("v_add_f32", 53, 53, "row_ror:8")
        rd(3, S[5], 1); dpp("v_add_f32", 53, 53, "row_ror:4")
        I(f"v_add_f32 v{D0}, v{D0}, v{D1 + 1}\nv_add_f32 v{D0 + 2}, v{D0 + 2}, v{D1 + 3}")
        dpp("v_add_f32", 53, 53, "row_ror:2")
        I(f"v_mov_b32 v7, v{D0}\nv_mov_b32 v8, v{D0 + 2}\nv_rcp_f32 v53, v53")
        mm(D0, 0, S[2], True); rd(5, S[2], 1)
        I("v_mul_f32 v9, v52, v53")
        mm(D0, 1, S[4], False); mm(D0, 2, S[1], False)
        I("v_mul_f32_dpp v52, v9, v7 row_newbcast:0 row_mask:0xf bank_mask:0xf")
        mm(D1, 0, S[3], True)
        I("v_mov_b32_dpp v7, v9 row_newbcast:0 row_mask:0xf bank_mask:0xf")
        mm(D1, 1, S[5], False)
        I("v_fmac_f32_dpp v52, v9, v8 row_newbcast:2 row_mask:0xf bank_mask:0xf")
        mm(D1, 2, S[2], False)
        I("v_mov_b32_dpp v8, v9 row_newbcast:2 row_mask:0xf bank_mask:0xf")
        fold(53)
        I("v_permlane32_swap_b32 v52, v53\nv_add_f32 v52, v52, v53\nv_mov_b32 v53, v52\nv_permlane16_swap_b32 v52, v53\nv_add_f32 v52, v52, v53")
        I("v_mov_b32_dpp v53, v52 quad_perm:[1,1,3,3] row_mask:0xf bank_mask:0xf\nv_cvt_pk_bf16_f32 v52, v52, v53\nv_min_u32 v52, -2, v52")
        I(f"s_mov_b64 exec, {sp(mWOST)}")
        self.publish(f"buffer_store_dword v52, v11, {s4(WS)}, s{sOffP} offen {{pol}}", False)
        I("s_mov_b64 exec, -1")
    def yg_addr(self):
        self.a.I(f"v_lshrrev_b32 v54, 4, v0\nv_lshlrev_b32 v54, 8, v54\nv_and_b32 v9, 15, v0\nv_lshl_add_u32 v54, v9, 4, v54")
    def yg_pre(self, b, L):
        I = self.a.I
        I(f"s_lshl_b32 s{sT0}, s{sWave}, 11\ns_add_u32 s{sOffG}, s{sH3grp}, s{sT0}\ns_add_u32 s{sOffG}, s{sOffG}, {(4 * b + L) * H3_I}")
        for j in range(4): I(f"v_and_b32 v{16 + j}, 0x3f803f80, v{vMask + j}")
        for j in range(8): I(f"v_mov_b32 v{8 + j}, 0")
    def yg(self, b, L, between=None, pre_bar=None, hoisted=False, after=None):
        a = self.a; I = a.I; inst = 4 * b + L; Yb = Y + YSZ * b
        if not hoisted: self.yg_addr(); self.yg_pre(b, L)
        loads = [f"buffer_load_dwordx4 {v4(8 + 4 * j)}, v54, {s4(WS)}, s{sOffG} offen offset:{4 * H3_H * j} sc1" for j in range(2)]
        self.gather(loads, range(8, 16), 7, between=between, emask=sp(mN10),
                    spec=["v_mfma_f32_16x16x32_bf16 v[20:23], v[16:19], v[8:11], 0", "v_mfma_f32_16x16x32_bf16 v[20:23], v[16:19], v[12:15], v[20:23]"])
        if after: after()
        I(f"v_and_b32 v7, 15, v0\nv_lshlrev_b32 v7, 5, v7\nv_and_b32 v54, 16, v0\ns_mul_i32 s{sT0}, s{sWave}, 320\ns_add_u32 s{sT0}, s{sT0}, {Yb}\nv_add3_u32 v7, v7, v54, s{sT0}")
        I(f"s_mov_b32 exec_lo, s{mN10}\ns_mov_b32 exec_hi, 0\nds_write_b128 v7, v[20:23]\ns_mov_b64 exec, -1")
        I(f"s_mul_i32 s{sT0}, s{sWave}, 160\ns_add_u32 s{sT0}, s{sT0}, {XROW + 640 * b}\nv_lshl_add_u32 v7, v0, 2, s{sT0}\nds_read_b32 v54, v7")
        I(f"v_lshlrev_b32 v14, 3, v0\nv_add_u32 v14, {Yb}, v14")
        if L < 3: self.wq_addr(b, L + 1)
        if pre_bar: pre_bar()
        a.barrier()
        I("s_mov_b32 exec_hi, 0xff")
        I("ds_read2_b64 v[8:11], v14 offset0:0 offset1:40\nds_read2_b64 v[12:15], v14 offset0:80 offset1:120")
        I("v_lshlrev_b32 v16, 16, v54\nv_and_b32 v17, 0xffff0000, v54")
        I("v_pk_add_f32 v[8:9], v[8:9], v[10:11]\nv_pk_add_f32 v[12:13], v[12:13], v[14:15]\nv_pk_add_f32 v[8:9], v[8:9], v[12:13]")
        I("v_cvt_pk_bf16_f32 v8, v8, v9\nv_and_b32 v9, 0xffff0000, v8\nv_lshlrev_b32 v8, 16, v8\nv_pk_add_f32 v[8:9], v[8:9], v[16:17]\nv_cvt_pk_bf16_f32 v8, v8, v9")
        if L < 3: I("ds_write_b32 v7, v8")
        else:
            I(f"s_cmp_lg_u32 s{sWave}, 0"); a.skip_begin("s_cbranch_scc1")
            I(f"s_mul_i32 s{sT0}, s{sS}, 160\nv_lshlrev_b32 v7, 2, v0")
            I(f"buffer_store_dword v8, v7, {s4(XO)}, s{sT0} offen offset:{1280 * b}")
            a.skip_end()
        I("s_mov_b64 exec, -1")
    def touch(self, b, L):
        if not self.c.get("touch", 0): return
        a = self.a; I = a.I
        I(f"s_lshl_b32 s{sT0}, s{sWave}, 7\nv_lshl_add_u32 v31, v0, 1, s{sT0}\nv_and_b32 v31, -4, v31\ns_add_u32 s{sT1}, s{sH2own}, {(4 * b + L) * H2_I}\ns_mov_b32 m0, {JUNK}")
        I(f"buffer_load_dword v31, {s4(WS)}, s{sT1} offen sc1 lds")
        if L < 3:
            I(f"v_lshlrev_b32 v31, 1, v31\ns_add_u32 s{sT1}, s{sH1own}, {(4 * b + L + 1) * H1_I}")
            I(f"buffer_load_dword v31, {s4(WS)}, s{sT1} offen sc1 lds")
    def chain_idle(self, b, L, burst=(0, 0, 0), sh=(0, 0, 0, 0)):
        a = self.a; U = lambda n: (lambda: self.stream(n, paced=False))
        self.wo(b, L, between=U(burst[0]), hoisted=True, hoist=True, after=U(sh[0]))
        self.stream(sh[1], paced=False)
        self.stamp(f"wo{b}{L}")
        self.fs("pub3")
        late = self.c.get("late", 2)
        if L == 3:
            a.I(f"s_cmp_eq_u32 s{sH}, 1\ns_cbranch_scc1 L_out0")
            a.I(f"s_cmp_lg_u32 s{sH}, 0\ns_cbranch_scc1 L_fin")
        if L < 3 and not late: self.wq_pre((L + 1) & 1)
        if late < 2: self.yg_pre(b, L)
        a.wait_tag("pub"); a.barrier()
        if L < 3 and late: self.wq_pre((L + 1) & 1)
        if late >= 2: self.yg_pre(b, L)
        self.yg(b, L, between=U(burst[1]), hoisted=True, after=U(sh[2]))
        self.fs("xrow")
        if L == 3: return
        self.wq_main(b, L + 1, hoisted=True, hoist=True)
        self.fs("pub1")
        self.stamp(f"wq{b}{L+1}")
        self.qg(b, L + 1, between=U(burst[2]), hoisted=True, after=lambda: (self.touch(b, L + 1), self.stream(sh[3], paced=False)))
        self.stamp(f"qg{b}{L+1}")
    def build(self):
        a = self.a; c = self.c; W = self.W; WE = c.get("WE", W); HE = c.get("HE", 4)
        self.off_val = None
        self.add_w("wqA", pWQA, "q", 0)
        for g in range(4): self.add_kv("KA", 0, g)
        for g in range(4): self.add_kv("VA", 0, g)
        self.add_w("woA", pWOA, "o", 0); self.add_w("wqB", pWQB, "q", 1)
        for g in range(16): self.add_kv("KB", 0, g)
        self.add_w("woB", pWOB, "o", 1)
        for g in range(16): self.add_kv("VB", 0, g)
        p1 = len(self.items)
        for g in range(4): self.add_kv("KA", 1, g)
        for g in range(4): self.add_kv("VA", 1, g)
        p2 = len(self.items)
        for g in range(16): self.add_kv("KB", 1, g)
        for g in range(16): self.add_kv("VB", 1, g)
        st = self.stream_to; S = lambda n: (lambda: self.stream(n))
        self.limit = p1; a.nobar = c.get('nobar', 0)
        self.setup()
        if c.get("inject", 1): a.inject = self.injector
        if c.get("streamonly"):
            self.limit = 10**9; a.inject = None
            for upto in c["streamonly"]:
                if isinstance(upto, tuple): st(upto[0], W=upto[1])
                else: st(upto)
                self.stamp("end")
            a.wait(vm=0); self.stamp("end")
            return self.finish()
        P = c.get("P1", dict(arr=24, hs=36, qg0=44, wo=76, yg=104, qg1=130))
        a.raw("L_pf0:")
        self.stamp("setup")
        a.wait_tag("clr"); a.barrier()
        self.arrive()
        st(P["arr"])
        self.stamp("arr")
        a.wait_tag("wqA"); a.barrier()
        self.wq_pre(0); self.wq_main(0, 0, local_ok=False)
        self.wq_pre(0); self.wq_main(1, 0, local_ok=False)
        self.stamp("wq")
        st(P["hs"]); self.handshake(S(W))
        P_ = lambda i: [("P", i)]
        for jobs, loc in (([P_(1), [("C", 1)], P_(2), P_(3)], 1), ([P_(5), P_(6), P_(7), [("2", 1), ("2", 2)]], 1),
                          ([[("2", 3), ("2", 4)], [("2", 5), ("2", 6)], [("2", 7), ("2", 7)], [("2", 7), ("2", 7)]], 1),
                          ([[("3", 1), ("3", 2)], [("3", 3), ("3", 4)], [("3", 5), ("3", 6)], [("3", 7), ("3", 7)]], 0)):
            self.clear_prep(jobs); self.clear_issue("clr2", local_ok=loc and c.get("lclr", 0)); self.stream(1)
        self.stamp("hs")
        st(P["qg0"]); self.qg(0, 0, between=S(W))
        self.stamp()
        self.att(0, 0, pre_bar=lambda: (st(self.index_after("woA")), a.wait_tag("woA"), a.wait_tag("clr2")))
        self.stamp()
        self.qg(1, 0, between=S(W))
        self.stamp("qg10")
        st(P["wo"]); self.wo(0, 0, between=S(W))
        self.stamp("wo00")
        st(P["yg"]); self.yg(0, 0, between=S(W), pre_bar=lambda: a.wait_tag("wqB"))
        self.stamp("yg00")
        self.wq_pre(1); self.wq_main(0, 1, hoisted=True)
        if c.get("cpf") == 2: self.code_prefetch("L_pf1", "L_pf2")
        st(P["qg1"]); self.qg(0, 1, between=lambda: self.stream(min(WE, p1 - self.pos), W=WE))
        a.raw("L_pf1:")
        self.stamp()
        assert self.pos >= self.index_after("woB")
        vb0 = self.index_after("woB")
        self.att(0, 1, hook1=lambda g: self.stream(min(1, p1 - self.pos), W=WE) if g % HE == HE - 1 else None,
                 hook2=lambda i: st(min(p1, vb0 + 3 * (i + 2) + WE - 3), W=WE), pre_bar=lambda: a.wait_tag("woB"), hoist=True, qaddr=True)
        assert self.pos == p1
        a.inject = None; self.limit = p2
        self.stamp("p1end")
        self.chain_idle(0, 1)
        bu = c.get("burst", (6, 0, 0, 0)); sh = c.get("sh", (0, 6, 3, 9))
        self.att(0, 2, hookm=lambda: self.stream(bu[0], paced=False), hoist=True, qaddr=True)
        self.stamp("att02")
        self.chain_idle(0, 2, burst=bu[1:], sh=sh)
        self.stamp("p2beg")
        self.limit = len(self.items)
        n0 = c.get("n0", 12); h2 = c.get("h2", 2); q0 = self.pos
        def hook03(g):
            self.stream(max(0, min(3, q0 + n0 - self.pos, p2 + 3 * g + 3 - self.pos)), paced=False)
        self.att(0, 3, hook1=hook03, hook2=lambda i: self.stream(1, paced=False) if i % h2 == h2 - 1 else None, qaddr=True)
        self.stamp("att03")
        a.raw("L_pf2:")
        P = c.get("P2", dict(att=8, wo=34, yg=62, qg=80))
        if c.get("inject", 1): a.inject = self.injector
        st(p2 + P.get("att", 0))
        self.att(1, 0, guard=True, hook2=lambda i: self.stream(2))
        self.stamp("att10")
        st(p2 + P["wo"]); self.stamp("a"); self.wo(1, 0, between=S(W)); self.stamp("wo10"); self.wo(0, 3, between=S(W)); self.stamp("wo03")
        st(p2 + P["yg"]); self.stamp("b"); self.yg(1, 0, between=S(W)); self.stamp("yg10")
        self.wq_pre(1); self.wq_main(1, 1, hoisted=True)
        if c.get("cpf") == 2: self.code_prefetch("L_pf3", "L_pf9")
        st(p2 + P["qg"]); self.stamp("c"); self.qg(1, 1, between=lambda: self.stream(WE, W=WE))
        a.raw("L_pf3:")
        self.stamp("qg11")
        vb1 = p2 + 48
        self.att(1, 1, hook1=lambda g: self.stream(1, W=WE) if g % HE == HE - 1 else None,
                 hook2=lambda i: st(min(len(self.items), vb1 + 3 * (i + 2) + WE - 3), W=WE), hoist=True, qaddr=True)
        assert self.pos == len(self.items)
        a.inject = None
        self.stamp("p2end")
        self.chain_idle(1, 1)
        self.fine_on = c.get("fine") == 1
        self.fs("q_ready")
        self.att(1, 2, hoist=True, qaddr=True)
        self.stamp("att12")
        self.chain_idle(1, 2)
        self.fs("q_ready")
        if c.get("fine") == 2: self.fine_on = True; self.fs("q_ready")
        self.att(1, 3, hoist=True, qaddr=True)
        self.stamp("att13")
        self.chain_idle(1, 3)
        a.I("s_branch L_fin"); a.raw("L_out0:"); a.I("s_nop 7"); a.wait(vm=0, lg=0)
        self.yg(0, 3)
        a.raw("L_fin:"); a.I("s_nop 7")
        self.fs("end")
        self.stamp("end")
        return self.finish()
    def finish(self):
        a = self.a; c = self.c
        if c.get("fine"):
            a.wait(lg=0)
            for i in range(self.nfine): a.I(f"v_writelane_b32 v{vStamp}, s{FS[i]}, {i}")
            print("fine stamps:", self.fnames)
        if c.get("diag"):
            a.I("s_sleep 100")
            a.I(f"v_writelane_b32 v{vStamp}, s{sRetry}, 62\nv_writelane_b32 v{vStamp}, s{sLocal}, 63")
            a.I(f"s_lshl_b32 s{sT0}, s{sWG}, 10\ns_lshl_b32 s{sT1}, s{sWave}, 8\ns_add_u32 s{sT0}, s{sT0}, s{sT1}\ns_add_u32 s{sT0}, s{sT0}, {DIAG}\nv_lshlrev_b32 v7, 2, v0")
            a.I(f"buffer_store_dword v{vStamp}, v7, {s4(WS)}, s{sT0} offen")
        if c.get("diag") and not c.get("fine"): print("stamps:", " ".join(self.snames))
        a.raw("L_end:"); a.raw("  s_endpgm")
        a.tail.append("L_pf9:\n  s_endpgm")
        body = a.text()
        return (HEAD + f"; @launch grid=(256,1,1) block=(256,1,1) lds={LDS_BYTES}\n"
                + f'.amdgcn_target "amdgcn-amd-amdhsa--gfx950"\n.text\n.globl {NAME}\n.p2align 8\n.type {NAME},@function\n{NAME}:\n'
                + body + f'.section .rodata,"a"\n.p2align 6\n.amdhsa_kernel {NAME}\n  .amdhsa_next_free_vgpr 512\n  .amdhsa_next_free_sgpr 102\n'
                + "  .amdhsa_accum_offset 256\n  .amdhsa_group_segment_fixed_size 0\n  .amdhsa_kernarg_size 104\n  .amdhsa_user_sgpr_count 2\n"
                + "  .amdhsa_user_sgpr_kernarg_segment_ptr 1\n  .amdhsa_system_sgpr_workgroup_id_x 1\n.end_amdhsa_kernel\n")

def generate(cfg): return Gen(cfg).build()
if __name__ == "__main__":
    cfg = eval(sys.argv[2]) if len(sys.argv) > 2 else {}
    open(sys.argv[1], "w").write(generate(cfg))
```

```python
import sys, math
from dsl import Asm

NAME = "interleave_layers__sliding_block_cached__gqa_block_cached__decode_kernel"
HEAD = open("interleave_layers__sliding_block_cached__gqa_block_cached__decode.s.ref").read().split("; Override")[0]

KV_BYTES = 2 * 32 * 4096 * 384
BSTR = 32 * 4096 * 384
HSTR = 4096 * 384
W_BYTES = 640 * 6144 * 2
WS_BYTES = 434115584
H1_I, H1_H, H1_S = 524288, 16384, 2048
H2 = 8 * H1_I; H2_I, H2_H, H2_S = 131072, 4096, 512
H3 = H2 + 8 * H2_I; H3_I, H3_S, H3_H = 65536, 8192, 256
DIAG = 8 << 20
WQ = (0, 61440); WO = (30720, 92160)
VS = 122880
EX = 147456
ATT = EX; STAT = EX + 6144; Y = EX + 6208; YSZ = 1280; XROW = Y + 2 * YSZ; ONES = XROW + 1280; QB = ONES + 160; CT = QB + 768
JUNK = CT + 2048
LDS_BYTES = JUNK + 256
assert LDS_BYTES <= 163840
sWG, sWave = 2, 3
KA, VA, KB, VB, WS, WT, XO = 4, 8, 12, 16, 20, 24, 28
pX, pKA, pVA, pWQA, pWOA, pKB, pVB, pWQB, pWOB, pOUT, pDBG, pWS = 32, 34, 36, 38, 40, 44, 46, 48, 50, 52, 54, 56
sH, sS, sLocal, sOff, sRetry, sT0, sT1, sT2 = 58, 59, 60, 61, 62, 63, 64, 65
sH1own, sH1grp, sH2own, sH2grp, sH3own, sH3grp, sOffG, sOffP = 66, 67, 68, 69, 70, 71, 72, 73
mODD, mHI8, mHI32, mWOST, mRG1, mRG2, mRG3, m60 = 74, 76, 78, 80, 82, 84, 86, 88
sXcc, sWqRow, sWoRow, sLdsW, sLdsVS = 90, 91, 92, 93, 94
sST = 96; m40 = 98; mBIT1 = 100; mW3 = 42; mN10 = 32; sW2 = 95; sOffG2 = 35; sClr = 0; sM = 34; mL63 = 36
FS = [38, 40, 44, 46, 48, 50, 52, 54, 56, 24, 26, 88, 90, 92]
def sp(n): return f"s[{n}:{n+1}]"
def s4(n): return f"s[{n}:{n+3}]"
def v2(n): return f"v[{n}:{n+1}]"
def v4(n): return f"v[{n}:{n+3}]"
vLane, vKoff, vVoff, vMask = 0, 1, 2, 3
vQ, vACC, vU = 12, 24, 36
vStamp = 55
QUADS = [f"a[{i}:{i+3}]" for i in range(0, 256, 4)] + [f"v[{i}:{i+3}]" for i in range(56, 256, 4)]
SLOT = {}
_names = [("KA", i) for i in range(4)] + [("VA", 0), ("VA", 1)] + [("KB", i) for i in range(16)] + [("VB", i) for i in range(16)]
for i, n in enumerate(_names): SLOT[n] = QUADS[3 * i:3 * i + 3]
assert SLOT[("VB", 15)][2] == "v[252:255]"
vWq0, vWq1, vWo = 252, 253, 254
SCALE = 192 ** -0.5 * math.log2(math.e)
import struct
def f32(x): return "0x%08x" % struct.unpack("<I", struct.pack("<f", x))[0]

class Gen:
    def __init__(self, cfg):
        self.c = cfg; self.a = Asm(); self.items = []; self.pos = 0; self.nstamp = 0
        self.W = cfg.get("W", 10); self.limit = 10**9; self.last_cyc = 0; self.fine_on = False; self.nfine = 0; self.fnames = []; self.snames = ['start']
    def add_w(self, name, ptr, kind, ty):
        pol = self.c.get("wpol", "nt")
        def mk(k):
            def f():
                a = self.a
                if k == 0:
                    off = sWqRow if kind == "q" else sWoRow
                    a.I(f"s_add_u32 s{WT}, s{ptr}, s{off}\ns_addc_u32 s{WT+1}, s{ptr+1}, 0\ns_sub_u32 s{WT+2}, {W_BYTES}, s{off}")
                base = (WQ if kind == "q" else WO)[ty]
                a.I(f"s_add_u32 m0, s{sLdsW}, {base + 960 * k}")
                if kind == "q": so = 5 * (k // 2) * 12288; vr = vWq1 if k & 1 else vWq0
                else: so = 6 * k * 1280; vr = vWo
                a.I(f"s_mov_b32 s{sOff}, {so}\ns_mov_b64 exec, {sp(m60)}")
                a.I(f"buffer_load_dwordx4 v{vr}, {s4(WT)}, s{sOff} offen {pol} lds", tag=name)
                a.I("s_mov_b64 exec, -1")
            return f
        self.items += [(name, mk(k)) for k in range(8)]
    def add_kv(self, name, b, g):
        srd = {"KA": KA, "VA": VA, "KB": KB, "VB": VB}[name]
        isK = name[0] == "K"; vo = vKoff if isK else vVoff; step = 128 if isK else 256
        pol = self.c.get("kvpol", "nt")
        def mk(c):
            def f():
                a = self.a
                if (name, g) in SLOT:
                    if c == 0: a.I(f"s_mov_b32 s{sOff}, {b * BSTR + g * 3072}")
                    elif self.off_val != (name, b, g): a.I(f"s_mov_b32 s{sOff}, {b * BSTR + g * 3072}")
                    self.off_val = (name, b, g)
                    a.I(f"buffer_load_dwordx4 {SLOT[(name, g)][c]}, v{vo}, {s4(srd)}, s{sOff} offen offset:{step * c} {pol}")
                else:
                    self.off_val = None
                    a.I(f"s_add_u32 m0, s{sLdsVS}, {(g - 2) * 3072 + 1024 * c}\ns_mov_b32 s{sOff}, {b * BSTR + g * 3072 + step * c}")
                    a.I(f"buffer_load_dwordx4 v{vo}, {s4(srd)}, s{sOff} offen {pol} lds", tag=("VS", b, g))
            return f
        self.items += [((name, b, g), mk(c)) for c in range(3)]
    def stream(self, n, paced=True, W=None):
        for _ in range(n):
            if self.pos >= len(self.items): return
            assert self.pos < self.limit, (self.pos, self.limit)
            if paced: self.a.pace(W or self.W)
            sv = self.a._in_inject; self.a._in_inject = True
            self.items[self.pos][1](); self.pos += 1; self.last_cyc = self.a.cyc
            if self.c.get("diag") == 3 and self.pos % 8 == 0 and self.pos > 8: self.stamp("pos")
            self.a._in_inject = sv
    def injector(self):
        a = self.a
        if self.pos < self.limit and a.cyc - self.last_cyc >= self.c.get("T", 330) and a.vm.outstanding() < self.W + self.c.get("XW", 6):
            self.stream(1, paced=False)
    def stream_to(self, upto, **k): self.stream(max(0, upto - self.pos), **k)
    def index_after(self, name):
        return max(i for i, it in enumerate(self.items) if it[0] == name) + 1
    def fs(self, name):
        if not self.fine_on or self.nfine >= len(FS): return
        self.a.I(f"{'s_memrealtime' if self.c.get('rt') else 's_memtime'} {sp(FS[self.nfine])}"); self.nfine += 1; self.fnames.append(name)
    def check_slot(self, name, b, g):
        assert self.index_after((name, b, g)) <= self.pos, ("not issued", name, b, g, self.pos)
        if b == 0: assert self.index_after((name, 1, g)) - 3 >= self.pos, ("overwritten", name, g)
    def stamp(self, name=''):
        self.snames.append(f'{name}@{self.pos}')
        if not self.c.get("diag") or self.c.get("fine"): return
        if self.c["diag"] == 3 and name not in ("pos", "end"): self.snames.pop(); return
        if self.c["diag"] == 2 and name not in self.c.get("only", ("p1end", "p2beg", "p2end", "end")): self.snames.pop(); return
        a = self.a
        a.I(f"s_memrealtime {sp(sST)}"); a.wait(lg=0)
        a.I(f"v_writelane_b32 v{vStamp}, s{sST if not self.c.get('rcount') else sRetry}, {self.nstamp}"); self.nstamp += 1
    def publish(self, text, local_ok, tag="pub"):
        a = self.a
        if local_ok and self.c.get("local", True):
            a.I(f"s_cmp_lg_u32 s{sLocal}, 0")
            a.either(text.format(pol=""), text.format(pol="sc1"), tag=tag)
        else: a.I(text.format(pol="sc1"), tag=tag)
    def gather(self, loads, regs, tmp, between=None, emask=None, sleep=None, first=False, spec=()):
        a = self.a
        if first and between: between(); between = None
        if emask: loads = [f"s_mov_b64 exec, {emask}"] + loads + ["s_mov_b64 exec, -1"]
        for t in loads: a.I(t, tag="gat")
        last = len(a.vm.ent) - 1
        if between: between()
        self.fs("issued")
        n = a.vm.need(last)
        if n is not None: a.wait(vm=n)
        chk = a.label("Lc"); rt = a.label("Lr")
        a.raw(f"{chk}:"); a.no_inject += 1
        r = list(regs); ops = []
        ops.append(f"v_max3_u32 v{tmp}, v{r[0]}, v{r[1]}, v{r[2]}"); r = r[3:]
        while len(r) >= 2: ops.append(f"v_max3_u32 v{tmp}, v{tmp}, v{r[0]}, v{r[1]}"); r = r[2:]
        if r: ops.append(f"v_max_u32 v{tmp}, v{tmp}, v{r[0]}")
        ops.append(f"v_cmp_eq_u32 vcc, -1, v{tmp}")
        spec = list(spec)
        k = -(-len(ops) // max(1, len(spec)))
        while ops or spec:
            if spec: a.I(spec.pop(0))
            for t in ops[:k]: a.I(t)
            ops = ops[k:]
        if not (self.c.get("novalid") and a.inject): a.I(f"s_cbranch_vccnz {rt}")
        self.retry_block(rt, chk, loads, sleep); a.no_inject -= 1
        self.fs("valid")
    def lsleep(self): return None if self.a.inject else self.c.get('lsleep', 1)
    def retry_block(self, rt, chk, loads, sleep=None):
        a = self.a
        a.tail += [f"{rt}:", f"  s_add_u32 s{sRetry}, s{sRetry}, 1", f"  s_cmp_gt_u32 s{sRetry}, {self.c.get('spin', 200000)}",
                   "  s_cbranch_scc1 L_end"]
        if sleep is None: sleep = self.c.get("sleep", 1)
        if sleep: a.tail += [f"  s_sleep {sleep}"]
        a.tail += ["  s_nop 7"] + ["  " + t for t in loads] + ["  s_waitcnt vmcnt(0)", f"  s_branch {chk}"]
    def setup(self):
        a = self.a; I = a.I
        I(f"s_cmp_ge_u32 s{sWG}, 256\ns_cbranch_scc1 L_end")
        I(f"s_load_dwordx16 s[32:47], s[0:1], 0\ns_load_dwordx8 s[48:55], s[0:1], 64\ns_load_dwordx2 s[56:57], s[0:1], 96")
        if self.c.get("diag") or self.c.get("hold"): I(f"s_memrealtime {sp(sST)}")
        I(f"v_lshrrev_b32 v8, 6, v0\nv_and_b32 v0, 63, v0\nv_readfirstlane_b32 s{sWave}, v8")
        I(f"s_and_b32 s{sT0}, s{sWG}, 7\ns_lshl_b32 s{sT0}, s{sT0}, 2\ns_lshr_b32 s{sT1}, s{sWG}, 3\ns_and_b32 s{sT1}, s{sT1}, 3\ns_add_u32 s{sH}, s{sT0}, s{sT1}\ns_lshr_b32 s{sS}, s{sWG}, 5")
        I(f"v_mul_u32_u24 v8, 43, v0\nv_lshrrev_b32 v8, 10, v8\nv_mul_u32_u24 v9, 24, v8\nv_sub_u32 v9, v0, v9\nv_mul_u32_u24 v8, 0x3000, v8\nv_lshl_add_u32 v{vWq0}, v9, 4, v8")
        I(f"v_add_u32 v10, 60, v0\nv_mul_u32_u24 v8, 43, v10\nv_lshrrev_b32 v8, 10, v8\nv_mul_u32_u24 v9, 24, v8\nv_sub_u32 v9, v10, v9\nv_mul_u32_u24 v8, 0x3000, v8\nv_lshl_add_u32 v{vWq1}, v9, 4, v8")
        I(f"s_mul_i32 s{sT0}, s{sS}, {80 * 12288}\ns_mul_i32 s{sT1}, s{sWave}, {20 * 12288}\ns_add_u32 s{sT0}, s{sT0}, s{sT1}\ns_mul_i32 s{sT1}, s{sH}, 384\ns_add_u32 s{sWqRow}, s{sT0}, s{sT1}")
        I(f"s_mul_i32 s{sT0}, s{sH}, {192 * 1280}\ns_mul_i32 s{sT1}, s{sWave}, {48 * 1280}\ns_add_u32 s{sT0}, s{sT0}, s{sT1}\ns_mul_i32 s{sT1}, s{sS}, 160\ns_add_u32 s{sWoRow}, s{sT0}, s{sT1}")
        I(f"s_mul_i32 s{sLdsW}, s{sWave}, 7680\ns_mov_b32 s{m60}, -1\ns_mov_b32 s{m60+1}, 0x0fffffff\ns_mov_b32 s{WT+3}, 0x20000\ns_mov_b32 s{sRetry}, 0")
        I(f"v_and_b32 v8, 15, v0\nv_lshrrev_b32 v9, 4, v0")
        I(f"v_lshrrev_b32 v10, 1, v8\nv_mul_u32_u24 v10, 384, v10\nv_and_b32 v11, 1, v8\nv_lshl_add_u32 v11, v9, 1, v11\nv_lshl_add_u32 v{vKoff}, v11, 4, v10")
        I(f"v_mul_u32_u24 v10, 768, v9\nv_lshl_add_u32 v{vVoff}, v8, 4, v10")
        I(f"s_mul_i32 s{sT0}, s{sH}, {HSTR}\ns_mul_i32 s{sT1}, s{sS}, {128 * 384}\ns_add_u32 s{sT1}, s{sT1}, s{sT0}\ns_mul_i32 s{sT2}, s{sWave}, {32 * 384}\ns_add_u32 s{sT1}, s{sT1}, s{sT2}\ns_add_u32 s{sOffG}, s{sT1}, {3072 * 384}")
        I(f"s_mul_i32 s{sT1}, s{sS}, {512 * 384}\ns_add_u32 s{sT1}, s{sT1}, s{sT0}\ns_mul_i32 s{sT2}, s{sWave}, {128 * 384}\ns_add_u32 s{sOffP}, s{sT1}, s{sT2}")
        I(f"s_mul_i32 s{sLdsVS}, s{sWave}, 6144\ns_add_u32 s{sLdsVS}, s{sLdsVS}, {VS}")
        I(f"s_mov_b32 s{XO+2}, 2560\ns_mov_b32 s{XO+3}, 0x20000\ns_mul_i32 s{sT0}, s{sS}, 160\nv_lshlrev_b32 v7, 2, v0\nv_min_u32 v7, 156, v7")
        for srd, o in ((KA, sOffG), (VA, sOffG), (KB, sOffP), (VB, sOffP)): I(f"s_sub_u32 s{srd+2}, {KV_BYTES}, s{o}\ns_mov_b32 s{srd+3}, 0x20000")
        I(f"s_mov_b32 s{WS+2}, {WS_BYTES}\ns_mov_b32 s{WS+3}, 0x20000")
        I(f"s_mul_i32 s{sH1grp}, s{sH}, {H1_H}\ns_mul_i32 s{sT1}, s{sS}, {H1_S}\ns_add_u32 s{sH1own}, s{sH1grp}, s{sT1}")
        I(f"s_mul_i32 s{sH2grp}, s{sH}, {H2_H}\ns_add_u32 s{sH2grp}, s{sH2grp}, {H2}\ns_mul_i32 s{sT1}, s{sS}, {H2_S}\ns_add_u32 s{sH2own}, s{sH2grp}, s{sT1}")
        I(f"s_mul_i32 s{sH3grp}, s{sS}, {H3_S}\ns_add_u32 s{sH3grp}, s{sH3grp}, {H3}\ns_mul_i32 s{sT1}, s{sH}, {H3_H}\ns_add_u32 s{sH3own}, s{sH3grp}, s{sT1}")
        self.clear_prep([[("P", 0)], [("C", 0)], [("P", 4)], [("2", 0), ("3", 0)]])
        a.wait(lg=0)
        I(f"s_mov_b32 s{WS}, s{pWS}\ns_mov_b32 s{WS+1}, s{pWS+1}")
        if self.c.get("clr0", 1): self.clear_issue("clr")
        if self.c.get("diag"): I(f"v_mov_b32 v{vStamp}, 0\nv_writelane_b32 v{vStamp}, s{sST}, 0"); self.nstamp = 1
        if self.c.get("st0"): self.stamp("end")
        if self.c.get("tlb"): self.tlb_touch()
        I(f"s_mov_b32 s{XO}, s{pX}\ns_mov_b32 s{XO+1}, s{pX+1}")
        I(f"buffer_load_dword v12, v7, {s4(XO)}, s{sT0} offen\nbuffer_load_dword v13, v7, {s4(XO)}, s{sT0} offen offset:1280")
        if self.c.get("st0") == 2: self.stamp("end")
        self.stream(8, paced=False)
        if not self.c.get("clr0", 1): self.clear_issue("clr")
        if self.c.get("st0") == 2: self.stamp("end")
        for srd, p, o in ((KA, pKA, sOffG), (VA, pVA, sOffG), (KB, pKB, sOffP), (VB, pVB, sOffP)):
            I(f"s_add_u32 s{srd}, s{p}, s{o}\ns_addc_u32 s{srd+1}, s{p+1}, 0")
        self.stream(self.c.get("I0", 6), paced=False)
        if self.c.get("st0") == 2: self.stamp("end")
        if self.c.get("st0") == 2: self.stamp("end")
        self.stream(self.c.get('I1', 6), paced=False)
        if self.c.get("st0"):
            self.stamp("end")
            n = len(a.vm.ent)
            for k in (1, 2, 3, 10, 11, 16, 21, n): a.wait(vm=n - k); self.stamp("end")
        if self.c.get("cpf") == 1: self.code_prefetch("L_pf0", "L_pf9")
        I(f"v_mul_u32_u24 v10, 26, v0\nv_lshrrev_b32 v10, 8, v10\nv_mul_u32_u24 v11, 10, v10\nv_sub_u32 v11, v0, v11\nv_mul_u32_u24 v10, 1280, v10\nv_lshl_add_u32 v{vWo}, v11, 4, v10")
        I("v_and_b32 v10, 1, v0\nv_cmp_eq_u32 vcc, 1, v10\nv_mov_b32 v11, 0xffff\nv_mov_b32 v20, 0xffff0000\nv_cndmask_b32 v11, v11, v20, vcc\nv_bfe_u32 v10, v0, 1, 2")
        for j in range(4): I(f"v_cmp_eq_u32 vcc, {j}, v10\nv_cndmask_b32 v{vMask+j}, 0, v11, vcc")
        for m, lo, hi in ((mODD, 0xaaaaaaaa, 0xaaaaaaaa), (mHI8, 0xff00ff00, 0xff00ff00), (mRG1, 0xffff0000, 0), (mRG2, 0, 0xffff), (mRG3, 0, 0xffff0000), (m40, 0xffffffff, 0xff), (mWOST, 0x5555, 0x5555), (mN10, 0x03ff03ff, 0x03ff03ff), (mHI32, 0, 0xffffffff), (mBIT1, 0xcccccccc, 0xcccccccc), (mL63, 0, 0x80000000)):
            I(f"s_mov_b32 s{m}, {lo:#x}\ns_mov_b32 s{m+1}, {hi:#x}")
        I(f"s_cmp_eq_u32 s{sWave}, 3\ns_cselect_b64 {sp(mW3)}, -1, 0\ns_min_u32 s{sW2}, s{sWave}, 2")
        I(f"s_getreg_b32 s{sXcc}, hwreg(HW_REG_XCC_ID, 0, 4)\ns_add_u32 s{sXcc}, s{sXcc}, 1")
        I(f"s_mul_i32 s{sT0}, s{sWave}, 160\ns_add_u32 s{sT0}, s{sT0}, {XROW}\nv_add_u32 v10, s{sT0}, v7\nv_add_u32 v11, {ONES}, v7\nv_mov_b32 v20, 0x3f803f80")
        I("ds_write_b32 v11, v20\nds_write_b32 v10, v12\nds_write_b32 v10, v13 offset:640")
        I(f"s_mov_b32 s{XO}, s{pOUT}\ns_mov_b32 s{XO+1}, s{pOUT+1}")
    def clear_prep(self, jobs):
        I = self.a.I
        I("v_mov_b32 v16, -1\nv_mov_b32 v17, -1\nv_mov_b32 v18, -1\nv_mov_b32 v19, -1\nv_lshlrev_b32 v14, 4, v0")
        def seg(k, inst, hi):
            if k in "PC": return sH1own, inst * H1_I + (1024 if k == "C" else 0), -1
            if k == "2": return sH2own, inst * H2_I - 512 * hi, -1
            return sH3own, inst * H3_I - 512 * hi, 0xfff
        for w, job in enumerate(jobs):
            lo = seg(*job[0], 0); hi = seg(*job[-1], 1)
            for (r, o, m), dst, md in ((lo, sT1, sClr), (hi, sT2, sClr + 1)):
                if w == 0: I(f"s_add_u32 s{dst}, s{r}, {o & 0xffffffff}\ns_mov_b32 s{md}, {m}")
                else: I(f"s_add_u32 s{sOff}, s{r}, {o & 0xffffffff}\ns_cmp_eq_u32 s{sWave}, {w}\ns_cselect_b32 s{dst}, s{sOff}, s{dst}\ns_cselect_b32 s{md}, {m}, s{md}")
        self.off_val = None
        I(f"v_mov_b32 v15, s{sT1}\nv_mov_b32 v20, s{sT2}\nv_cmp_lt_u32 vcc, 31, v0\nv_cndmask_b32 v15, v15, v20, vcc\nv_add_u32 v15, v15, v14")
    def clear_issue(self, tag, local_ok=False):
        I = self.a.I
        I(f"s_mov_b64 exec, {sp(sClr)}")
        self.publish(f"buffer_store_dwordx4 v[16:19], v15, {s4(WS)}, 0 offen {{pol}}", local_ok, tag=tag)
        I("s_mov_b64 exec, -1")
    def tlb_touch(self):
        a = self.a; I = a.I
        ent = []
        for p, o, span in ((pWQA, sWqRow, 20 * 12288), (pKA, sOffG, 12288), (pVA, sOffG, 12288), (pWOA, sWoRow, 48 * 1280), (pWQB, sWqRow, 20 * 12288),
                           (pKB, sOffP, 49152), (pWOB, sWoRow, 48 * 1280), (pVB, sOffP, 49152)):
            for b in range(2 if o in (sOffG, sOffP) else 1): ent.append((p, o, b * BSTR))
        if self.c["tlb"] > 1:
            ent += [(pWS, None, 0), (pWS, None, 2 << 20), (pWS, None, 4 << 20), (pDBG, None, 0), (pOUT, None, 0)]
        for i, (p, o, c) in enumerate(ent):
            if o is None: I(f"s_add_u32 s{sT1}, s{p}, {c}\ns_addc_u32 s{sT2}, s{p+1}, 0")
            else:
                I(f"s_add_u32 s{sT1}, s{p}, s{o}\ns_addc_u32 s{sT2}, s{p+1}, 0")
                if c: I(f"s_add_u32 s{sT1}, s{sT1}, {c}\ns_addc_u32 s{sT2}, s{sT2}, 0")
            if i == 0: I(f"v_mov_b32 v14, s{sT1}\nv_mov_b32 v15, s{sT2}")
            else: I(f"v_writelane_b32 v14, s{sT1}, {i}\nv_writelane_b32 v15, s{sT2}, {i}")
        I(f"s_mov_b64 exec, {(1 << len(ent)) - 1}\nglobal_load_dword v250, v[14:15], off nt\ns_mov_b64 exec, -1")
    def code_prefetch(self, lo, hi):
        a = self.a; I = a.I
        l = a.label("Lp")
        I(f"s_getpc_b64 {sp(sT1)}"); a.raw(f"{l}:")
        I(f"s_add_u32 s{sT1}, s{sT1}, {lo}-{l}\ns_addc_u32 s{sT2}, s{sT2}, 0")
        I(f"s_lshr_b32 s{sT0}, s{sWG}, 3\ns_lshl_b32 s{sT0}, s{sT0}, 2\ns_add_u32 s{sT0}, s{sT0}, s{sWave}\ns_lshl_b32 s{sT0}, s{sT0}, 13")
        I(f"v_lshl_add_u32 v30, v0, 7, s{sT0}\nv_cmp_gt_u32 vcc, {hi}-{lo}, v30\ns_mov_b32 m0, {JUNK}")
        I("s_and_b64 exec, vcc, -1"); a.skip_begin("s_cbranch_execz")
        I(f"global_load_lds_dword v30, {sp(sT1)}")
        a.skip_end()
        I("s_mov_b64 exec, -1")
    def arrive(self):
        a = self.a; I = a.I
        I(f"s_cmp_lg_u32 s{sWave}, 0"); a.skip_begin("s_cbranch_scc1")
        I(f"s_and_b32 s{sT0}, s{sWG}, 3\ns_lshl_b32 s{sT0}, s{sT0}, 3\ns_lshl_b32 s{sT0}, s{sXcc}, s{sT0}\ns_and_b32 s{sT1}, s{sWG}, 0xfc")
        I(f"v_mov_b32 v8, s{sT1}\nv_mov_b32 v9, s{sT0}\ns_mov_b64 exec, 1")
        I(f"global_atomic_add v8, v9, {sp(pDBG)} sc1\ns_mov_b64 exec, -1")
        a.skip_end()
    def handshake(self, between):
        a = self.a; I = a.I
        I("v_lshlrev_b32 v7, 2, v0")
        ld = f"global_load_dword v8, v7, {sp(pDBG)} sc1"
        I(ld); last = len(a.vm.ent) - 1
        between()
        n = a.vm.need(last)
        if n is not None: a.wait(vm=n)
        chk = a.label("Lc"); rt = a.label("Lr")
        a.raw(f"{chk}:"); a.no_inject += 1
        I("v_subrev_u32 v9, 0x01010101, v8\nv_not_b32 v10, v8\nv_and_b32 v9, v9, v10\nv_and_b32 v9, 0x80808080, v9\nv_cmp_ne_u32 vcc, 0, v9")
        I(f"s_cbranch_vccnz {rt}")
        self.retry_block(rt, chk, [ld]); a.no_inject -= 1
        I(f"s_and_b32 s{sT0}, s{sWG}, 3\ns_lshl_b32 s{sT0}, s{sT0}, 3\nv_lshrrev_b32 v8, s{sT0}, v8\nv_and_b32 v8, 0xff, v8")
        I(f"s_bfe_u32 s{sT0}, s{sWG}, 0x30002\nv_and_b32 v9, 7, v0\nv_cmp_eq_u32 {sp(sT1)}, s{sT0}, v9\nv_cmp_ne_u32 vcc, s{sXcc}, v8")
        I(f"s_and_b64 vcc, vcc, {sp(sT1)}\ns_cmp_eq_u64 vcc, 0\ns_cselect_b32 s{sLocal}, 1, 0")
    WQB = [(24, 28, 32), (34, 38, 42), (44, 48, 52)]
    def wq_pre(self, ty):
        a = self.a; I = a.I
        I(f"v_bfe_u32 v7, v0, 2, 2\nv_lshrrev_b32 v9, 4, v0\nv_lshl_add_u32 v8, v9, 3, v7\nv_lshl_add_u32 v7, v9, 2, v7")
        I(f"v_and_b32 v9, 3, v0\nv_lshlrev_b32 v9, 3, v9\ns_mul_i32 s{sT0}, s{sWave}, 96\ns_add_u32 s{sT0}, s{sT0}, {WQ[ty]}\nv_add_u32 v9, s{sT0}, v9")
        I(f"s_movk_i32 s{sT0}, 384\nv_mad_u32_u24 v8, v8, s{sT0}, v9\nv_mad_u32_u24 v7, v7, s{sT0}, v9")
        for T, (b0, b1, b2) in enumerate(self.WQB):
            for t, r in ((0, b0), (1, b1)):
                I(f"ds_read_b64_tr_b16 {v2(r)}, v8 offset:{12288 * t + 32 * T}\nds_read_b64_tr_b16 {v2(r+2)}, v8 offset:{12288 * t + 1536 + 32 * T}")
            I(f"ds_read_b64_tr_b16 {v2(b2)}, v7 offset:{24576 + 32 * T}")
    def wq_addr(self, b, L):
        I = self.a.I
        I(f"s_mul_i32 s{sT0}, s{sWave}, 160\ns_add_u32 s{sT0}, s{sT0}, {XROW + 640 * b}\nv_mov_b32 v22, s{sT0}\nv_mov_b32 v23, {ONES}")
        I(f"v_cndmask_b32 v23, v22, v23, {sp(mODD)}\nv_lshrrev_b32 v21, 4, v0\nv_lshl_add_u32 v22, v21, 4, v23\nv_lshl_add_u32 v23, v21, 3, v23")
    def wq_main(self, b, L, local_ok=True, hoisted=False, hoist=False):
        a = self.a; I = a.I; inst = 4 * b + L; needC = inst < 2
        if not hoisted: self.wq_addr(b, L)
        I("ds_read_b128 v[12:15], v22\nds_read_b128 v[16:19], v22 offset:64\nds_read_b64 v[20:21], v23 offset:128")
        I(f"s_lshl_b32 s{sT0}, s{sWave}, 8\nv_lshl_add_u32 v54, v0, 2, s{sT0}\ns_add_u32 s{sOffP}, s{sH1own}, {inst * H1_I}")
        if hoist: self.qg_addr(b, L)
        D = [8, 24, 28]
        for T, (b0, b1, b2) in enumerate(self.WQB):
            I(f"v_mfma_f32_16x16x32_bf16 {v4(D[T])}, v[12:15], {v4(b0)}, 0")
            I(f"v_mfma_f32_16x16x32_bf16 {v4(D[T])}, v[16:19], {v4(b1)}, {v4(D[T])}")
        I("v_mfma_f32_16x16x32_bf16 v[34:37], v[12:15], v[12:15], 0\nv_mfma_f32_16x16x32_bf16 v[34:37], v[16:19], v[16:19], v[34:37]")
        for T, (b0, b1, b2) in enumerate(self.WQB):
            I(f"v_mfma_f32_16x16x16_bf16 {v4(D[T])}, v[20:21], {v2(b2)}, {v4(D[T])}")
        I("v_mfma_f32_16x16x16_bf16 v[34:37], v[20:21], v[20:21], v[34:37]")
        for r in range(2 if needC else 1):
            I(f"v_cndmask_b32 v{22+r}, v{8+r}, v{24+r}, {sp(mRG1)}\nv_cndmask_b32 v{22+r}, v{22+r}, v{28+r}, {sp(mRG2)}\nv_cndmask_b32 v{22+r}, v{22+r}, v34, {sp(mRG3)}\nv_min_u32 v{22+r}, -2, v{22+r}")
            self.publish(f"buffer_store_dword v{22+r}, v54, {s4(WS)}, s{sOffP} offen offset:{1024 * r} {{pol}}", local_ok)
    def qg_addr(self, b, L):
        I = self.a.I
        I(f"v_and_b32 v23, 15, v0\nv_lshrrev_b32 v7, 4, v0\nv_lshlrev_b32 v7, 11, v7\nv_lshl_add_u32 v7, v23, 4, v7\ns_lshl_b32 s{sT0}, s{sWave}, 8")
        I(f"s_add_u32 s{sOffG}, s{sH1grp}, s{sT0}\ns_add_u32 s{sOffG}, s{sOffG}, {(4 * b + L) * H1_I}\ns_add_u32 s{sOffG2}, s{sOffG}, {4 * H1_S}")
    def qg(self, b, L, between=None, hoisted=False, after=None):
        a = self.a; I = a.I; inst = 4 * b + L; needC = inst < 2; ty = L & 1
        if not hoisted: self.qg_addr(b, L)
        loads = [f"buffer_load_dwordx4 v[12:15], v7, {s4(WS)}, s{sOffG} offen sc1", f"buffer_load_dwordx4 v[16:19], v7, {s4(WS)}, s{sOffG2} offen sc1"]
        if needC: loads += [f"buffer_load_dwordx4 v[20:23], v7, {s4(WS)}, s{sOffG} offen offset:1024 sc1", f"buffer_load_dwordx4 v[24:27], v7, {s4(WS)}, s{sOffG2} offen offset:1024 sc1"]
        def pre():
            I(f"v_and_b32 v8, 15, v0\nv_lshrrev_b32 v9, 4, v0\nv_and_b32 v10, 1, v9\nv_lshlrev_b32 v10, 1, v10\nv_lshrrev_b32 v28, 1, v9\nv_or_b32 v10, v10, v28\nv_lshl_add_u32 v10, v8, 2, v10")
            I(f"s_mul_i32 s{sT0}, s{sWave}, 96\ns_add_u32 s{sT0}, s{sT0}, {QB + 384 * b}\nv_lshl_add_u32 v10, v10, 1, s{sT0}")
            I(f"s_lshl_b32 s{sT0}, s{sWave}, 8\ns_add_u32 s{sT0}, s{sT0}, {CT + 1024 * ty}\nv_lshl_add_u32 v29, v0, 2, s{sT0}")
            if not needC: I("ds_read_b32 v20, v29")
            self.q_addr(b)
            I(f"v_mov_b32 v11, {f32(1 / (640 * SCALE))}\nv_mov_b32 v8, {f32(1 / (640 * SCALE * SCALE))}\nv_mov_b32 v9, {f32(1e-5 / (SCALE * SCALE))}")
            if between: between()
        self.gather(loads, range(12, 28 if needC else 20), 28, between=pre, sleep=self.lsleep(), first=hoisted and self.c.get('first', 3) & 2)
        if after: after()
        def red(r):
            I(f"v_pk_add_f32 {v2(r)}, {v2(r)}, {v2(r+4)}\nv_pk_add_f32 {v2(r+2)}, {v2(r+2)}, {v2(r+6)}")
            I(f"v_permlane32_swap_b32 v{r}, v{r+1}\nv_permlane32_swap_b32 v{r+2}, v{r+3}\nv_add_f32 v{r}, v{r}, v{r+1}\nv_add_f32 v{r+2}, v{r+2}, v{r+3}")
            I(f"v_permlane16_swap_b32 v{r}, v{r+2}\nv_add_f32 v{r}, v{r}, v{r+2}")
        red(12)
        I(f"v_readlane_b32 s{sT0}, v12, 12\nv_readlane_b32 s{sT1}, v12, 44")
        if needC: red(20); I(f"v_mul_f32 v20, {f32(SCALE)}, v20\nds_write_b32 v29, v20")
        I(f"s_mov_b32 exec_lo, 0x0fff0fff\ns_mov_b32 exec_hi, 0x0fff0fff")
        I(f"v_mul_f32 v15, s{sT1}, v11\nv_fma_f32 v14, s{sT0}, v8, v9\nv_fma_f32 v14, -v15, v15, v14\nv_max_f32 v14, v9, v14\nv_rsq_f32 v14, v14")
        I(f"v_fma_f32 v12, -v15, v20, v12\nv_mul_f32 v12, v12, v14\nv_cvt_pk_bf16_f32 v12, v12, v12")
        I("ds_write_b16 v10, v12\ns_mov_b64 exec, -1")
        a.barrier()
    def q_addr(self, b):
        self.a.I(f"v_and_b32 v30, 1, v0\nv_lshrrev_b32 v31, 4, v0\nv_lshlrev_b32 v31, 5, v31\nv_lshl_add_u32 v30, v30, 4, v31\nv_add_u32 v30, {QB + 384 * b}, v30")
    def att(self, b, L, hook1=None, hook2=None, hookm=None, pre_bar=None, guard=False, hoist=False, qaddr=False):
        a = self.a; I = a.I; ty = L & 1; G = 16 if ty else 4; Kn = "KB" if ty else "KA"; Vn = "VB" if ty else "VA"
        vM, vL = 52, 53
        if not qaddr: self.q_addr(b)
        for t in range(3): I(f"ds_read_b128 {v4(vQ + 4 * t)}, v30 offset:{128 * t}")
        def lds_v(g):
            a.wait_tag(("VS", b, g))
            I(f"v_lshl_add_u32 v54, v0, 4, s{sLdsVS}")
            for c in range(3): I(f"ds_read_b128 {v4(vU + 4 + 4 * c)}, v54 offset:{(g - 2) * 3072 + 1024 * c}")
        early = (not ty) and L == 2
        if early: lds_v(2)
        def D(g): return vACC + 4 * (g % 3)
        dm = "row_mask:0xf"
        for g in range(G + 2):
            K = SLOT[(Kn, g)] if g < G else None
            if K: self.check_slot(Kn, b, g)
            e = g - 2
            if K: I(f"v_mfma_f32_16x16x32_bf16 {v4(D(g))}, {K[0]}, {v4(vQ)}, 0")
            if K: I(f"v_mfma_f32_16x16x32_bf16 {v4(D(g))}, {K[1]}, {v4(vQ+4)}, {v4(D(g))}")
            if 0 <= e < G: I(f"v_add_f32_dpp v{vU+e}, v{D(e)}, v{D(e)+1} quad_perm:[0,0,2,2] {dm} bank_mask:0x3")
            if K: I(f"v_mfma_f32_16x16x32_bf16 {v4(D(g))}, {K[2]}, {v4(vQ+8)}, {v4(D(g))}")
            if g == G:
                I(f"s_lshl_b32 s{sT0}, s{sWave}, 2\ns_add_u32 s{sT0}, s{sT0}, {STAT}\nv_mov_b32 v7, s{sT0}")
            if g == G + 1: I(f"v_max3_f32 v{vM}, v{vU}, v{vU+1}, v{vU+2}\ns_nop 0")
            if hook1 and g < G: hook1(g)
            if 0 <= e < G: I(f"v_add_f32_dpp v{vU+e}, v{D(e)+2}, v{D(e)+3} quad_perm:[0,0,2,2] {dm} bank_mask:0xc")
        if hookm: hookm()
        r = 3
        while r + 1 < G: I(f"v_max3_f32 v{vM}, v{vM}, v{vU+r}, v{vU+r+1}"); r += 2
        if r < G: I(f"v_max_f32 v{vM}, v{vM}, v{vU+r}")
        red = ("row_ror:8 row_mask:0xf", "row_bcast:15 row_mask:0xa", "row_bcast:31 row_mask:0xc")
        for x in red: I(f"v_max_f32_dpp v{vM}, v{vM}, v{vM} {x} bank_mask:0xf")
        I(f"v_readlane_b32 s{sM}, v{vM}, 63")
        order = list(range(G)) if ty else [2, 0, 1, 3]
        if not ty and not early: order = [0, 1, 2, 3]
        def prob(g): I(f"v_subrev_f32 v{vU+g}, s{sM}, v{vU+g}\nv_exp_f32 v{vU+g}, v{vU+g}")
        def prob2(g, first=False):
            I(f"v_mov_b32 v{vL}, v{vU+g}" if first else f"v_add_f32 v{vL}, v{vL}, v{vU+g}")
            I(f"v_cvt_pk_bf16_f32 v{vU+g}, v{vU+g}, v{vU+g}")
        def diag(i, j): I(f"v_and_b32_dpp v{vQ + 4 * (i & 1) + j}, v{vU + order[i]}, v{vMask + j} quad_perm:[1,1,3,3] {dm} bank_mask:0xf")
        g0, g1 = vU + order[0], vU + order[1]
        I(f"v_subrev_f32 v{g0}, s{sM}, v{g0}\nv_subrev_f32 v{g1}, s{sM}, v{g1}\nv_exp_f32 v{g0}, v{g0}\nv_exp_f32 v{g1}, v{g1}")
        I(f"v_cvt_pk_bf16_f32 v8, v{g0}, v{g0}\nv_add_f32 v{vL}, v{g0}, v{g1}\nv_cvt_pk_bf16_f32 v{g1}, v{g1}, v{g1}")
        for j in range(4): I(f"v_and_b32_dpp v{vQ + j}, v8, v{vMask + j} quad_perm:[1,1,3,3] {dm} bank_mask:0xf")
        if guard: a.barrier()
        lred = []
        for i, g in enumerate(order):
            self.check_slot(Vn, b, g)
            if (Vn, g) in SLOT: V = SLOT[(Vn, g)]
            else:
                if not early: lds_v(g)
                V = [v4(vU + 4 + 4 * c) for c in range(3)]
            A = v4(vQ + 4 * (i & 1))
            nx = i + 1 < G; nx2 = i + 2 < G
            if i == G - 2: lred = [f"v_add_f32_dpp v{vL}, v{vL}, v{vL} {x} bank_mask:0xf" for x in red]
            if i == 0: I(f"v_mov_b32 v{vM}, s{sM}")
            for c in range(3):
                acc = v4(vACC + 4 * c)
                I(f"v_mfma_f32_16x16x32_bf16 {acc}, {A}, {V[c]}, {acc if i else 0}")
                if c == 0:
                    if nx: diag(i + 1, 0); diag(i + 1, 1)
                    if nx2: prob(order[i + 2])
                if c == 1:
                    if nx: diag(i + 1, 2); diag(i + 1, 3)
                if c == 2:
                    if nx2: prob2(order[i + 2])
                if lred: I(lred.pop(0))
                if i == 0 and c == 1: I(f"ds_write_b32 v7, v{vM}")
                if i == G - 1 and c == 0: I(f"s_mov_b64 exec, {sp(mL63)}\nds_write_b32 v7, v{vL} offset:16\ns_mov_b64 exec, -1")
            if early and g == 2: lds_v(3)
            if hook2: hook2(i)
        inst = 4 * b + L
        I(f"v_and_b32 v54, 15, v0\nv_lshlrev_b32 v54, 5, v54\nv_and_b32 v8, 16, v0\ns_mul_i32 s{sT0}, s{sWave}, 1536\ns_add_u32 s{sT0}, s{sT0}, {ATT}\nv_add3_u32 v54, v54, v8, s{sT0}")
        for c, (lo, hi) in enumerate(((0xffffffff, 0), (0x00ff00ff, 0xff00ff00), (0, 0xffffffff))):
            I(f"s_mov_b32 exec_lo, {lo:#x}\ns_mov_b32 exec_hi, {hi:#x}\nds_write_b128 v54, {v4(vACC + 4 * c)} offset:{512 * c}")
        I("s_mov_b64 exec, -1")
        I(f"v_mov_b32 v9, {STAT}\ns_lshl_b32 s{sT0}, s{sWave}, 8\ns_add_u32 s{sT0}, s{sT0}, {ATT}\nv_lshl_add_u32 v10, v0, 2, s{sT0}")
        I(f"s_lshl_b32 s{sT0}, s{sWave}, 7\nv_lshl_add_u32 v11, v0, 1, s{sT0}\ns_add_u32 s{sOffP}, s{sH2own}, {inst * H2_I}")
        if hoist: self.wo_addr(b, L)
        if pre_bar: pre_bar()
        self.fs("att_end")
        a.barrier()
        self.combine(b, L)
        self.fs("pub2")
    def combine(self, b, L):
        a = self.a; I = a.I; inst = 4 * b + L
        I("ds_read_b128 v[44:47], v9\nds_read_b128 v[48:51], v9 offset:16")
        for i in range(0, 8, 2): I(f"ds_read2st64_b32 {v2(12 + i)}, v10 offset0:{3 * i} offset1:{3 * i + 3}")
        I("v_max3_f32 v52, v44, v45, v46\nv_max_f32 v52, v52, v47")
        for w in range(4): I(f"v_sub_f32 v{44+w}, v{44+w}, v52")
        for w in range(4): I(f"v_exp_f32 v{44+w}, v{44+w}")
        for w in range(4): I(f"v_add_f32 v{12 + 2 * w}, v{12 + 2 * w}, v{13 + 2 * w}")
        I("v_mul_f32 v20, v44, v12\nv_fmac_f32 v20, v45, v14\nv_fmac_f32 v20, v46, v16\nv_fmac_f32 v20, v47, v18")
        I("v_mul_f32 v53, v44, v48\nv_fmac_f32 v53, v45, v49")
        I("v_mov_b32_dpp v21, v20 quad_perm:[1,1,3,3] row_mask:0xf bank_mask:0xf")
        I("v_fmac_f32 v53, v46, v50\nv_fmac_f32 v53, v47, v51\nv_cvt_pk_bf16_f32 v20, v20, v21")
        I(f"v_cndmask_b32 v52, v52, v53, {sp(mBIT1)}\nv_cndmask_b32 v20, v20, v52, {sp(mW3)}\nv_min_u32 v20, -2, v20")
        I(f"s_not_b64 exec, {sp(mODD)}")
        self.publish(f"buffer_store_dword v20, v11, {s4(WS)}, s{sOffP} offen {{pol}}", True)
        I("s_mov_b64 exec, -1")
    def wo_addr(self, b, L):
        I = self.a.I
        I(f"v_bfe_u32 v8, v0, 1, 3\nv_lshrrev_b32 v22, 4, v0\nv_and_b32 v7, 1, v0\nv_lshl_add_u32 v7, v22, 1, v7\nv_lshlrev_b32 v7, 4, v7\nv_lshl_add_u32 v7, v8, 9, v7")
        I(f"v_lshl_add_u32 v8, v22, 1, v8\nv_and_b32 v8, 7, v8\nv_lshlrev_b32 v8, 9, v8\ns_add_u32 s{sOffG}, s{sH2grp}, {(4 * b + L) * H2_I}")
    def wo(self, b, L, between=None, hoisted=False, hoist=False, after=None):
        a = self.a; I = a.I; inst = 4 * b + L; ty = L & 1
        if not hoisted: self.wo_addr(b, L)
        loads = [f"buffer_load_dwordx2 v[52:53], v8, {s4(WS)}, s{sOffG} offen offset:384 sc1"]
        loads += [f"buffer_load_dwordx4 {v4(12 + 4 * t)}, v7, {s4(WS)}, s{sOffG} offen offset:{128 * t} sc1" for t in range(3)]
        S = [24, 28, 32, 36, 40, 44]
        def rd(kk, reg, tile):
            o = 10240 * (kk >> 1) + 1280 * (kk & 1) + 32 * tile
            I(f"ds_read_b64_tr_b16 {v2(reg)}, v10 offset:{o}\nds_read_b64_tr_b16 {v2(reg + 2)}, v10 offset:{o + 640}")
        def pre():
            I(f"v_bfe_u32 v10, v0, 2, 2\nv_and_b32 v11, 48, v0\nv_add_u32 v10, v10, v11\nv_mul_u32_u24 v10, 160, v10\nv_and_b32 v11, 3, v0\nv_lshl_add_u32 v10, v11, 3, v10")
            I(f"s_lshl_b32 s{sT0}, s{sW2}, 6\ns_add_u32 s{sT1}, s{sT0}, {WO[ty]}\nv_add_u32 v10, s{sT1}, v10")
            for kk in range(6): rd(kk, S[kk], 0)
            I(f"v_and_b32 v11, 15, v0\nv_lshlrev_b32 v11, 1, v11\nv_and_b32 v9, 32, v0\nv_add3_u32 v11, v11, v9, s{sT0}\ns_add_u32 s{sOffP}, s{sH3own}, {inst * H3_I}")
            if hoist: self.yg_addr()
            if between: between()
        D0, D1 = 48, 24
        mt = lambda D, t, B, first: f"v_mfma_f32_16x16x32_bf16 {v4(D)}, {v4(12 + 4 * t)}, {v4(B)}, {0 if first else v4(D)}"
        def mm(*k): I(mt(*k))
        self.gather(loads, [52, 53] + list(range(12, 24)), 9, between=pre, sleep=self.lsleep(), first=hoisted and self.c.get('first', 3) & 1,
                    spec=[mt(D0, 0, S[0], True), mt(D0, 1, S[2], False), mt(D0, 2, S[4], False)])
        if after: after()
        dpp = lambda op, d, x, ctl: I(f"{op}_dpp v{d}, v{x}, v{x} {ctl} row_mask:0xf bank_mask:0xf")
        def fold(out):
            I(f"v_add_f32 v{D0}, v{D0}, v{D1 + 1}\nv_add_f32 v{D0 + 2}, v{D0 + 2}, v{D1 + 3}\nv_mul_f32 v{out}, v7, v{D0}\nv_fmac_f32 v{out}, v8, v{D0 + 2}")
        dpp("v_max_f32", 9, 52, "row_ror:8")
        mm(D1, 0, S[1], True); rd(0, S[2], 1); dpp("v_max_f32", 9, 9, "row_ror:4")
        mm(D1, 1, S[3], False); rd(2, S[4], 1); dpp("v_max_f32", 9, 9, "row_ror:2")
        mm(D1, 2, S[5], False); I("v_sub_f32 v52, v52, v9\nv_exp_f32 v52, v52"); rd(4, S[1], 1); I("v_mul_f32 v53, v52, v53")
        rd(1, S[3], 1); dpp("v_add_f32", 53, 53, "row_ror:8")
        rd(3, S[5], 1); dpp("v_add_f32", 53, 53, "row_ror:4")
        I(f"v_add_f32 v{D0}, v{D0}, v{D1 + 1}\nv_add_f32 v{D0 + 2}, v{D0 + 2}, v{D1 + 3}")
        dpp("v_add_f32", 53, 53, "row_ror:2")
        I(f"v_mov_b32 v7, v{D0}\nv_mov_b32 v8, v{D0 + 2}\nv_rcp_f32 v53, v53")
        mm(D0, 0, S[2], True); rd(5, S[2], 1)
        I("v_mul_f32 v9, v52, v53")
        mm(D0, 1, S[4], False); mm(D0, 2, S[1], False)
        I("v_mul_f32_dpp v52, v9, v7 row_newbcast:0 row_mask:0xf bank_mask:0xf")
        mm(D1, 0, S[3], True)
        I("v_mov_b32_dpp v7, v9 row_newbcast:0 row_mask:0xf bank_mask:0xf")
        mm(D1, 1, S[5], False)
        I("v_fmac_f32_dpp v52, v9, v8 row_newbcast:2 row_mask:0xf bank_mask:0xf")
        mm(D1, 2, S[2], False)
        I("v_mov_b32_dpp v8, v9 row_newbcast:2 row_mask:0xf bank_mask:0xf")
        fold(53)
        I("v_permlane32_swap_b32 v52, v53\nv_add_f32 v52, v52, v53\nv_mov_b32 v53, v52\nv_permlane16_swap_b32 v52, v53\nv_add_f32 v52, v52, v53")
        I("v_mov_b32_dpp v53, v52 quad_perm:[1,1,3,3] row_mask:0xf bank_mask:0xf\nv_cvt_pk_bf16_f32 v52, v52, v53\nv_min_u32 v52, -2, v52")
        I(f"s_mov_b64 exec, {sp(mWOST)}")
        self.publish(f"buffer_store_dword v52, v11, {s4(WS)}, s{sOffP} offen {{pol}}", False)
        I("s_mov_b64 exec, -1")
    def yg_addr(self):
        self.a.I(f"v_lshrrev_b32 v54, 4, v0\nv_lshlrev_b32 v54, 8, v54\nv_and_b32 v9, 15, v0\nv_lshl_add_u32 v54, v9, 4, v54")
    def yg_pre(self, b, L):
        I = self.a.I
        I(f"s_lshl_b32 s{sT0}, s{sWave}, 11\ns_add_u32 s{sOffG}, s{sH3grp}, s{sT0}\ns_add_u32 s{sOffG}, s{sOffG}, {(4 * b + L) * H3_I}")
        for j in range(4): I(f"v_and_b32 v{16 + j}, 0x3f803f80, v{vMask + j}")
        for j in range(8): I(f"v_mov_b32 v{8 + j}, 0")
    def yg(self, b, L, between=None, pre_bar=None, hoisted=False, after=None):
        a = self.a; I = a.I; inst = 4 * b + L; Yb = Y + YSZ * b
        if not hoisted: self.yg_addr(); self.yg_pre(b, L)
        loads = [f"buffer_load_dwordx4 {v4(8 + 4 * j)}, v54, {s4(WS)}, s{sOffG} offen offset:{4 * H3_H * j} sc1" for j in range(2)]
        self.gather(loads, range(8, 16), 7, between=between, emask=sp(mN10),
                    spec=["v_mfma_f32_16x16x32_bf16 v[20:23], v[16:19], v[8:11], 0", "v_mfma_f32_16x16x32_bf16 v[20:23], v[16:19], v[12:15], v[20:23]"])
        if after: after()
        I(f"v_and_b32 v7, 15, v0\nv_lshlrev_b32 v7, 5, v7\nv_and_b32 v54, 16, v0\ns_mul_i32 s{sT0}, s{sWave}, 320\ns_add_u32 s{sT0}, s{sT0}, {Yb}\nv_add3_u32 v7, v7, v54, s{sT0}")
        I(f"s_mov_b32 exec_lo, s{mN10}\ns_mov_b32 exec_hi, 0\nds_write_b128 v7, v[20:23]\ns_mov_b64 exec, -1")
        I(f"s_mul_i32 s{sT0}, s{sWave}, 160\ns_add_u32 s{sT0}, s{sT0}, {XROW + 640 * b}\nv_lshl_add_u32 v7, v0, 2, s{sT0}\nds_read_b32 v54, v7")
        I(f"v_lshlrev_b32 v14, 3, v0\nv_add_u32 v14, {Yb}, v14")
        if L < 3: self.wq_addr(b, L + 1)
        if pre_bar: pre_bar()
        a.barrier()
        I("s_mov_b32 exec_hi, 0xff")
        I("ds_read2_b64 v[8:11], v14 offset0:0 offset1:40\nds_read2_b64 v[12:15], v14 offset0:80 offset1:120")
        I("v_lshlrev_b32 v16, 16, v54\nv_and_b32 v17, 0xffff0000, v54")
        I("v_pk_add_f32 v[8:9], v[8:9], v[10:11]\nv_pk_add_f32 v[12:13], v[12:13], v[14:15]\nv_pk_add_f32 v[8:9], v[8:9], v[12:13]")
        I("v_cvt_pk_bf16_f32 v8, v8, v9\nv_and_b32 v9, 0xffff0000, v8\nv_lshlrev_b32 v8, 16, v8\nv_pk_add_f32 v[8:9], v[8:9], v[16:17]\nv_cvt_pk_bf16_f32 v8, v8, v9")
        if L < 3: I("ds_write_b32 v7, v8")
        else:
            I(f"s_cmp_lg_u32 s{sWave}, 0"); a.skip_begin("s_cbranch_scc1")
            I(f"s_mul_i32 s{sT0}, s{sS}, 160\nv_lshlrev_b32 v7, 2, v0")
            I(f"buffer_store_dword v8, v7, {s4(XO)}, s{sT0} offen offset:{1280 * b}")
            a.skip_end()
        I("s_mov_b64 exec, -1")
    def touch(self, b, L):
        if not self.c.get("touch", 0): return
        a = self.a; I = a.I
        I(f"s_lshl_b32 s{sT0}, s{sWave}, 7\nv_lshl_add_u32 v31, v0, 1, s{sT0}\nv_and_b32 v31, -4, v31\ns_add_u32 s{sT1}, s{sH2own}, {(4 * b + L) * H2_I}\ns_mov_b32 m0, {JUNK}")
        I(f"buffer_load_dword v31, {s4(WS)}, s{sT1} offen sc1 lds")
        if L < 3:
            I(f"v_lshlrev_b32 v31, 1, v31\ns_add_u32 s{sT1}, s{sH1own}, {(4 * b + L + 1) * H1_I}")
            I(f"buffer_load_dword v31, {s4(WS)}, s{sT1} offen sc1 lds")
    def chain_idle(self, b, L, burst=(0, 0, 0), sh=(0, 0, 0, 0)):
        a = self.a; U = lambda n: (lambda: self.stream(n, paced=False))
        self.wo(b, L, between=U(burst[0]), hoisted=True, hoist=True, after=U(sh[0]))
        self.stream(sh[1], paced=False)
        self.stamp(f"wo{b}{L}")
        self.fs("pub3")
        late = self.c.get("late", 2)
        if L == 3:
            a.I(f"s_cmp_eq_u32 s{sH}, 1\ns_cbranch_scc1 L_out0")
            a.I(f"s_cmp_lg_u32 s{sH}, 0\ns_cbranch_scc1 L_fin")
        if L < 3 and not late: self.wq_pre((L + 1) & 1)
        if late < 2: self.yg_pre(b, L)
        a.wait_tag("pub"); a.barrier()
        if L < 3 and late: self.wq_pre((L + 1) & 1)
        if late >= 2: self.yg_pre(b, L)
        self.yg(b, L, between=U(burst[1]), hoisted=True, after=U(sh[2]))
        self.fs("xrow")
        if L == 3: return
        self.wq_main(b, L + 1, hoisted=True, hoist=True)
        self.fs("pub1")
        self.stamp(f"wq{b}{L+1}")
        self.qg(b, L + 1, between=U(burst[2]), hoisted=True, after=lambda: (self.touch(b, L + 1), self.stream(sh[3], paced=False)))
        self.stamp(f"qg{b}{L+1}")
    def build(self):
        a = self.a; c = self.c; W = self.W; WE = c.get("WE", W); HE = c.get("HE", 4)
        self.off_val = None
        self.add_w("wqA", pWQA, "q", 0)
        for g in range(4): self.add_kv("KA", 0, g)
        for g in range(4): self.add_kv("VA", 0, g)
        self.add_w("woA", pWOA, "o", 0); self.add_w("wqB", pWQB, "q", 1)
        for g in range(16): self.add_kv("KB", 0, g)
        self.add_w("woB", pWOB, "o", 1)
        for g in range(16): self.add_kv("VB", 0, g)
        p1 = len(self.items)
        for g in range(4): self.add_kv("KA", 1, g)
        for g in range(4): self.add_kv("VA", 1, g)
        p2 = len(self.items)
        for g in range(16): self.add_kv("KB", 1, g)
        for g in range(16): self.add_kv("VB", 1, g)
        st = self.stream_to; S = lambda n: (lambda: self.stream(n))
        self.limit = p1; a.nobar = c.get('nobar', 0)
        self.setup()
        if c.get("inject", 1): a.inject = self.injector
        if c.get("streamonly"):
            self.limit = 10**9; a.inject = None
            for upto in c["streamonly"]:
                if isinstance(upto, tuple): st(upto[0], W=upto[1])
                else: st(upto)
                self.stamp("end")
            a.wait(vm=0); self.stamp("end")
            return self.finish()
        P = c.get("P1", dict(arr=24, hs=36, qg0=44, wo=76, yg=104, qg1=130))
        a.raw("L_pf0:")
        self.stamp("setup")
        a.wait_tag("clr"); a.barrier()
        self.arrive()
        st(P["arr"])
        self.stamp("arr")
        a.wait_tag("wqA"); a.barrier()
        self.wq_pre(0); self.wq_main(0, 0, local_ok=False)
        self.wq_pre(0); self.wq_main(1, 0, local_ok=False)
        self.stamp("wq")
        st(P["hs"]); self.handshake(S(W))
        P_ = lambda i: [("P", i)]
        for jobs, loc in (([P_(1), [("C", 1)], P_(2), P_(3)], 1), ([P_(5), P_(6), P_(7), [("2", 1), ("2", 2)]], 1),
                          ([[("2", 3), ("2", 4)], [("2", 5), ("2", 6)], [("2", 7), ("2", 7)], [("2", 7), ("2", 7)]], 1),
                          ([[("3", 1), ("3", 2)], [("3", 3), ("3", 4)], [("3", 5), ("3", 6)], [("3", 7), ("3", 7)]], 0)):
            self.clear_prep(jobs); self.clear_issue("clr2", local_ok=loc and c.get("lclr", 0)); self.stream(1)
        self.stamp("hs")
        st(P["qg0"]); self.qg(0, 0, between=S(W))
        self.stamp()
        self.att(0, 0, pre_bar=lambda: (st(self.index_after("woA")), a.wait_tag("woA"), a.wait_tag("clr2")))
        self.stamp()
        self.qg(1, 0, between=S(W))
        self.stamp("qg10")
        st(P["wo"]); self.wo(0, 0, between=S(W))
        self.stamp("wo00")
        st(P["yg"]); self.yg(0, 0, between=S(W), pre_bar=lambda: a.wait_tag("wqB"))
        self.stamp("yg00")
        self.wq_pre(1); self.wq_main(0, 1, hoisted=True)
        if c.get("cpf") == 2: self.code_prefetch("L_pf1", "L_pf2")
        st(P["qg1"]); self.qg(0, 1, between=lambda: self.stream(min(WE, p1 - self.pos), W=WE))
        a.raw("L_pf1:")
        self.stamp()
        assert self.pos >= self.index_after("woB")
        vb0 = self.index_after("woB")
        self.att(0, 1, hook1=lambda g: self.stream(min(1, p1 - self.pos), W=WE) if g % HE == HE - 1 else None,
                 hook2=lambda i: st(min(p1, vb0 + 3 * (i + 2) + WE - 3), W=WE), pre_bar=lambda: a.wait_tag("woB"), hoist=True, qaddr=True)
        assert self.pos == p1
        a.inject = None; self.limit = p2
        self.stamp("p1end")
        self.chain_idle(0, 1)
        bu = c.get("burst", (6, 0, 0, 0)); sh = c.get("sh", (0, 6, 3, 9))
        self.att(0, 2, hookm=lambda: self.stream(bu[0], paced=False), hoist=True, qaddr=True)
        self.stamp("att02")
        self.chain_idle(0, 2, burst=bu[1:], sh=sh)
        self.stamp("p2beg")
        self.limit = len(self.items)
        n0 = c.get("n0", 12); h2 = c.get("h2", 2); q0 = self.pos
        def hook03(g):
            self.stream(max(0, min(3, q0 + n0 - self.pos, p2 + 3 * g + 3 - self.pos)), paced=False)
        self.att(0, 3, hook1=hook03, hook2=lambda i: self.stream(1, paced=False) if i % h2 == h2 - 1 else None, qaddr=True)
        self.stamp("att03")
        a.raw("L_pf2:")
        P = c.get("P2", dict(att=8, wo=34, yg=62, qg=80))
        if c.get("inject", 1): a.inject = self.injector
        st(p2 + P.get("att", 0))
        self.att(1, 0, guard=True, hook2=lambda i: self.stream(2))
        self.stamp("att10")
        st(p2 + P["wo"]); self.stamp("a"); self.wo(1, 0, between=S(W)); self.stamp("wo10"); self.wo(0, 3, between=S(W)); self.stamp("wo03")
        st(p2 + P["yg"]); self.stamp("b"); self.yg(1, 0, between=S(W)); self.stamp("yg10")
        self.wq_pre(1); self.wq_main(1, 1, hoisted=True)
        if c.get("cpf") == 2: self.code_prefetch("L_pf3", "L_pf9")
        st(p2 + P["qg"]); self.stamp("c"); self.qg(1, 1, between=lambda: self.stream(WE, W=WE))
        a.raw("L_pf3:")
        self.stamp("qg11")
        vb1 = p2 + 48
        self.att(1, 1, hook1=lambda g: self.stream(1, W=WE) if g % HE == HE - 1 else None,
                 hook2=lambda i: st(min(len(self.items), vb1 + 3 * (i + 2) + WE - 3), W=WE), hoist=True, qaddr=True)
        assert self.pos == len(self.items)
        a.inject = None
        self.stamp("p2end")
        self.chain_idle(1, 1)
        self.fine_on = c.get("fine") == 1
        self.fs("q_ready")
        self.att(1, 2, hoist=True, qaddr=True)
        self.stamp("att12")
        self.chain_idle(1, 2)
        self.fs("q_ready")
        if c.get("fine") == 2: self.fine_on = True; self.fs("q_ready")
        self.att(1, 3, hoist=True, qaddr=True)
        self.stamp("att13")
        self.chain_idle(1, 3)
        a.I("s_branch L_fin"); a.raw("L_out0:"); a.I("s_nop 7"); a.wait(vm=0, lg=0)
        self.yg(0, 3)
        a.raw("L_fin:"); a.I("s_nop 7")
        if c.get("hold"):
            a.raw("L_hold:"); a.I(f"s_memrealtime s[38:39]"); a.wait(lg=0)
            a.I(f"s_sub_u32 s38, s38, s{sST}\ns_cmp_lt_u32 s38, {c['hold']}\ns_cbranch_scc1 L_hold")
        self.fs("end")
        self.stamp("end")
        return self.finish()
    def finish(self):
        a = self.a; c = self.c
        if c.get("fine"):
            a.wait(lg=0)
            for i in range(self.nfine): a.I(f"v_writelane_b32 v{vStamp}, s{FS[i]}, {i}")
            print("fine stamps:", self.fnames)
        if c.get("diag"):
            a.I("s_sleep 100")
            a.I(f"v_writelane_b32 v{vStamp}, s{sRetry}, 62\nv_writelane_b32 v{vStamp}, s{sLocal}, 63")
            a.I(f"s_lshl_b32 s{sT0}, s{sWG}, 10\ns_lshl_b32 s{sT1}, s{sWave}, 8\ns_add_u32 s{sT0}, s{sT0}, s{sT1}\ns_add_u32 s{sT0}, s{sT0}, {DIAG}\nv_lshlrev_b32 v7, 2, v0")
            a.I(f"buffer_store_dword v{vStamp}, v7, {s4(WS)}, s{sT0} offen")
        if c.get("diag") and not c.get("fine"): print("stamps:", " ".join(self.snames))
        a.raw("L_end:"); a.raw("  s_endpgm")
        a.tail.append("L_pf9:\n  s_endpgm")
        body = a.text()
        return (HEAD + f"; @launch grid=(256,1,1) block=(256,1,1) lds={LDS_BYTES}\n"
                + f'.amdgcn_target "amdgcn-amd-amdhsa--gfx950"\n.text\n.globl {NAME}\n.p2align 8\n.type {NAME},@function\n{NAME}:\n'
                + body + f'.section .rodata,"a"\n.p2align 6\n.amdhsa_kernel {NAME}\n  .amdhsa_next_free_vgpr 512\n  .amdhsa_next_free_sgpr 102\n'
                + "  .amdhsa_accum_offset 256\n  .amdhsa_group_segment_fixed_size 0\n  .amdhsa_kernarg_size 104\n  .amdhsa_user_sgpr_count 2\n"
                + "  .amdhsa_user_sgpr_kernarg_segment_ptr 1\n  .amdhsa_system_sgpr_workgroup_id_x 1\n.end_amdhsa_kernel\n")

def generate(cfg): return Gen(cfg).build()
if __name__ == "__main__":
    cfg = eval(sys.argv[2]) if len(sys.argv) > 2 else {}
    open(sys.argv[1], "w").write(generate(cfg))
```

```python
import sys, math
from dsl import Asm

NAME = "interleave_layers__sliding_block_cached__gqa_block_cached__decode_kernel"
HEAD = open("interleave_layers__sliding_block_cached__gqa_block_cached__decode.s.ref").read().split("; Override")[0]

KV_BYTES = 2 * 32 * 4096 * 384
BSTR = 32 * 4096 * 384
HSTR = 4096 * 384
W_BYTES = 640 * 6144 * 2
WS_BYTES = 434115584
H1_I, H1_H, H1_S = 524288, 16384, 2048
H2 = 8 * H1_I; H2_I, H2_H, H2_S = 131072, 4096, 512
H3 = H2 + 8 * H2_I; H3_I, H3_S, H3_H = 65536, 8192, 256
DIAG = 8 << 20
WQ = (0, 61440); WO = (30720, 92160)
VS = 122880
EX = 147456
ATT = EX; STAT = EX + 6144; Y = EX + 6208; YSZ = 1280; XROW = Y + 2 * YSZ; ONES = XROW + 1280; QB = ONES + 160; CT = QB + 768
JUNK = CT + 2048
LDS_BYTES = JUNK + 256
assert LDS_BYTES <= 163840
sWG, sWave = 2, 3
KA, VA, KB, VB, WS, WT, XO = 4, 8, 12, 16, 20, 24, 28
pX, pKA, pVA, pWQA, pWOA, pKB, pVB, pWQB, pWOB, pOUT, pDBG, pWS = 32, 34, 36, 38, 40, 44, 46, 48, 50, 52, 54, 56
sH, sS, sLocal, sOff, sRetry, sT0, sT1, sT2 = 58, 59, 60, 61, 62, 63, 64, 65
sH1own, sH1grp, sH2own, sH2grp, sH3own, sH3grp, sOffG, sOffP = 66, 67, 68, 69, 70, 71, 72, 73
mODD, mHI8, mHI32, mWOST, mRG1, mRG2, mRG3, m60 = 74, 76, 78, 80, 82, 84, 86, 88
sXcc, sWqRow, sWoRow, sLdsW, sLdsVS = 90, 91, 92, 93, 94
sST = 96; m40 = 98; mBIT1 = 100; mW3 = 42; mN10 = 32; sW2 = 95; sOffG2 = 35; sClr = 0; sM = 34; sOffW = 76; mL63 = 36
FS = [38, 40, 44, 46, 48, 50, 52, 54, 56, 24, 26, 88, 90, 92]
def sp(n): return f"s[{n}:{n+1}]"
def s4(n): return f"s[{n}:{n+3}]"
def v2(n): return f"v[{n}:{n+1}]"
def v4(n): return f"v[{n}:{n+3}]"
vLane, vKoff, vVoff, vMask = 0, 1, 2, 3
vQ, vACC, vU = 12, 24, 36
vStamp = 55
QUADS = [f"a[{i}:{i+3}]" for i in range(0, 256, 4)] + [f"v[{i}:{i+3}]" for i in range(56, 256, 4)]
SLOT = {}
_names = [("KA", i) for i in range(4)] + [("VA", 0), ("VA", 1)] + [("KB", i) for i in range(16)] + [("VB", i) for i in range(16)]
for i, n in enumerate(_names): SLOT[n] = QUADS[3 * i:3 * i + 3]
assert SLOT[("VB", 15)][2] == "v[252:255]"
vWq0, vWq1, vWo = 252, 253, 254
SCALE = 192 ** -0.5 * math.log2(math.e)
import struct
def f32(x): return "0x%08x" % struct.unpack("<I", struct.pack("<f", x))[0]

class Gen:
    def __init__(self, cfg):
        self.c = cfg; self.a = Asm(); self.items = []; self.pos = 0; self.nstamp = 0
        self.W = cfg.get("W", 10); self.limit = 10**9; self.inl = False; self.boost = 0; self.last_cyc = 0; self.fine_on = False; self.nfine = 0; self.fnames = []; self.snames = ['start']
    def add_w(self, name, ptr, kind, ty):
        pol = self.c.get("wpol", "nt")
        def mk(k):
            def f():
                a = self.a
                if k == 0:
                    off = sWqRow if kind == "q" else sWoRow
                    a.I(f"s_add_u32 s{WT}, s{ptr}, s{off}\ns_addc_u32 s{WT+1}, s{ptr+1}, 0\ns_sub_u32 s{WT+2}, {W_BYTES}, s{off}")
                base = (WQ if kind == "q" else WO)[ty]
                a.I(f"s_add_u32 m0, s{sLdsW}, {base + 960 * k}")
                if kind == "q": so = 5 * (k // 2) * 12288; vr = vWq1 if k & 1 else vWq0
                else: so = 6 * k * 1280; vr = vWo
                a.I(f"s_mov_b32 s{sOff}, {so}\ns_mov_b64 exec, {sp(m60)}")
                a.I(f"buffer_load_dwordx4 v{vr}, {s4(WT)}, s{sOff} offen {pol} lds", tag=name)
                a.I("s_mov_b64 exec, -1")
            return f
        self.items += [(name, mk(k)) for k in range(8)]
    def add_kv(self, name, b, g):
        srd = {"KA": KA, "VA": VA, "KB": KB, "VB": VB}[name]
        isK = name[0] == "K"; vo = vKoff if isK else vVoff; step = 128 if isK else 256
        pol = self.c.get("kvpol", "nt")
        def mk(c):
            def f():
                a = self.a
                if (name, g) in SLOT:
                    if c == 0: a.I(f"s_mov_b32 s{sOff}, {b * BSTR + g * 3072}")
                    elif self.off_val != (name, b, g): a.I(f"s_mov_b32 s{sOff}, {b * BSTR + g * 3072}")
                    self.off_val = (name, b, g)
                    a.I(f"buffer_load_dwordx4 {SLOT[(name, g)][c]}, v{vo}, {s4(srd)}, s{sOff} offen offset:{step * c} {pol}")
                else:
                    self.off_val = None
                    a.I(f"s_add_u32 m0, s{sLdsVS}, {(g - 2) * 3072 + 1024 * c}\ns_mov_b32 s{sOff}, {b * BSTR + g * 3072 + step * c}")
                    a.I(f"buffer_load_dwordx4 v{vo}, {s4(srd)}, s{sOff} offen {pol} lds", tag=("VS", b, g))
            return f
        self.items += [((name, b, g), mk(c)) for c in range(3)]
    def stream(self, n, paced=True, W=None):
        for _ in range(n):
            if self.pos >= len(self.items): return
            assert self.pos < self.limit, (self.pos, self.limit)
            if paced: self.a.pace((W or self.W) + (self.c.get("B", 0) if self.pos < self.boost else 0))
            sv = self.a._in_inject; self.a._in_inject = True
            self.items[self.pos][1](); self.pos += 1; self.last_cyc = self.a.cyc
            if self.c.get("diag") == 3 and self.pos % 5 == 0 and self.pos > 10: self.stamp("pos")
            self.a._in_inject = sv
    def injector(self):
        a = self.a
        if self.pos < self.limit and a.cyc - self.last_cyc >= self.c.get("T", 330) and a.vm.outstanding() < self.W + self.c.get("XW", 6) + (self.c.get("B", 0) if self.pos < self.boost else 0):
            self.stream(1, paced=False)
    def stream_to(self, upto, **k): self.stream(max(0, upto - self.pos), **k)
    def index_after(self, name):
        return max(i for i, it in enumerate(self.items) if it[0] == name) + 1
    def fs(self, name):
        if not self.fine_on or self.nfine >= len(FS): return
        self.a.I(f"{'s_memrealtime' if self.c.get('rt') else 's_memtime'} {sp(FS[self.nfine])}"); self.nfine += 1; self.fnames.append(name)
    def check_slot(self, name, b, g):
        assert self.index_after((name, b, g)) <= self.pos, ("not issued", name, b, g, self.pos)
        if b == 0: assert self.index_after((name, 1, g)) - 3 >= self.pos, ("overwritten", name, g)
    def stamp(self, name=''):
        if self.c.get("holdat") == name:
            self.a.I("s_memrealtime s[98:99]"); self.a.wait(lg=0)
        self.snames.append(f'{name}@{self.pos}')
        if not self.c.get("diag") or self.c.get("fine"): return
        if self.c["diag"] == 3 and name not in ("pos", "end"): self.snames.pop(); return
        if self.c["diag"] == 2 and name not in self.c.get("only", ("p1end", "p2beg", "p2end", "end")): self.snames.pop(); return
        a = self.a
        a.I(f"s_memrealtime {sp(sST)}"); a.wait(lg=0)
        a.I(f"v_writelane_b32 v{vStamp}, s{sST if not self.c.get('rcount') else sRetry}, {self.nstamp}"); self.nstamp += 1
    def publish(self, text, local_ok, tag="pub"):
        a = self.a
        if local_ok and self.c.get("local", True):
            a.I(f"s_cmp_lg_u32 s{sLocal}, 0")
            a.either(text.format(pol=""), text.format(pol="sc1"), tag=tag)
        else: a.I(text.format(pol="sc1"), tag=tag); self.boost = self.pos + self.c.get("KB", 14)
    def gather(self, loads, regs, tmp, between=None, emask=None, sleep=None, first=False, spec=()):
        a = self.a
        if first and between: between(); between = None
        if emask: loads = [f"s_mov_b64 exec, {emask}"] + loads + ["s_mov_b64 exec, -1"]
        for t in loads: a.I(t, tag="gat")
        last = len(a.vm.ent) - 1
        if emask or self.c.get("BG"): self.boost = self.pos + self.c.get("KB", 14)
        if between: between()
        self.fs("issued")
        n = a.vm.need(last)
        if n is not None: a.wait(vm=n)
        chk = a.label("Lc"); rt = a.label("Lr")
        a.raw(f"{chk}:"); a.no_inject += 1
        r = list(regs); ops = []
        ops.append(f"v_max3_u32 v{tmp}, v{r[0]}, v{r[1]}, v{r[2]}"); r = r[3:]
        while len(r) >= 2: ops.append(f"v_max3_u32 v{tmp}, v{tmp}, v{r[0]}, v{r[1]}"); r = r[2:]
        if r: ops.append(f"v_max_u32 v{tmp}, v{tmp}, v{r[0]}")
        ops.append(f"v_cmp_eq_u32 vcc, -1, v{tmp}")
        spec = list(spec)
        k = -(-len(ops) // max(1, len(spec)))
        while ops or spec:
            if spec: a.I(spec.pop(0))
            for t in ops[:k]: a.I(t)
            ops = ops[k:]
        self.inl = self.c.get("inl", 0) and not a.inject
        if not (self.c.get("novalid") and a.inject): a.I(f"s_cbranch_vccz {rt}k" if self.inl else f"s_cbranch_vccnz {rt}")
        if self.c.get("narrow", 3) & (2 if emask else 1):
            loads = ["s_mov_b64 exec, vcc"] + [t for t in loads if not t.startswith("s_mov")] + ["s_mov_b64 exec, -1"]
        self.retry_block(rt, chk, loads, sleep); a.no_inject -= 1
        self.fs("valid")
    def lsleep(self): return None if self.a.inject else self.c.get('lsleep', 1)
    def retry_block(self, rt, chk, loads, sleep=None):
        a = self.a
        if sleep is None: sleep = self.c.get("sleep", 1)
        blk = ([f"  s_sleep {sleep}"] if sleep else []) + ["  " + t for t in loads]
        blk += [f"  s_add_u32 s{sRetry}, s{sRetry}, 1", f"  s_cmp_gt_u32 s{sRetry}, {self.c.get('spin', 200000)}", "  s_cbranch_scc1 L_end",
                "  s_waitcnt vmcnt(0)", f"  s_branch {chk}"]
        if self.inl: a.out += blk + [f"{rt}k:"]
        else: a.tail += [f"{rt}:"] + blk
        self.inl = False
    def setup(self):
        a = self.a; I = a.I
        I(f"s_cmp_ge_u32 s{sWG}, 256\ns_cbranch_scc1 L_end")
        I(f"s_load_dwordx16 s[32:47], s[0:1], 0\ns_load_dwordx8 s[48:55], s[0:1], 64\ns_load_dwordx2 s[56:57], s[0:1], 96")
        if self.c.get("diag") or self.c.get("hold"): I(f"s_memrealtime {sp(sST)}")
        I(f"v_lshrrev_b32 v8, 6, v0\nv_and_b32 v0, 63, v0\nv_readfirstlane_b32 s{sWave}, v8")
        I(f"s_and_b32 s{sT0}, s{sWG}, 7\ns_lshl_b32 s{sT0}, s{sT0}, 2\ns_lshr_b32 s{sT1}, s{sWG}, 3\ns_and_b32 s{sT1}, s{sT1}, 3\ns_add_u32 s{sH}, s{sT0}, s{sT1}\ns_lshr_b32 s{sS}, s{sWG}, 5")
        I(f"v_mul_u32_u24 v8, 43, v0\nv_lshrrev_b32 v8, 10, v8\nv_mul_u32_u24 v9, 24, v8\nv_sub_u32 v9, v0, v9\nv_mul_u32_u24 v8, 0x3000, v8\nv_lshl_add_u32 v{vWq0}, v9, 4, v8")
        I(f"v_add_u32 v10, 60, v0\nv_mul_u32_u24 v8, 43, v10\nv_lshrrev_b32 v8, 10, v8\nv_mul_u32_u24 v9, 24, v8\nv_sub_u32 v9, v10, v9\nv_mul_u32_u24 v8, 0x3000, v8\nv_lshl_add_u32 v{vWq1}, v9, 4, v8")
        I(f"s_mul_i32 s{sT0}, s{sS}, {80 * 12288}\ns_mul_i32 s{sT1}, s{sWave}, {20 * 12288}\ns_add_u32 s{sT0}, s{sT0}, s{sT1}\ns_mul_i32 s{sT1}, s{sH}, 384\ns_add_u32 s{sWqRow}, s{sT0}, s{sT1}")
        I(f"s_mul_i32 s{sT0}, s{sH}, {192 * 1280}\ns_mul_i32 s{sT1}, s{sWave}, {48 * 1280}\ns_add_u32 s{sT0}, s{sT0}, s{sT1}\ns_mul_i32 s{sT1}, s{sS}, 160\ns_add_u32 s{sWoRow}, s{sT0}, s{sT1}")
        I(f"s_mul_i32 s{sLdsW}, s{sWave}, 7680\ns_mov_b32 s{m60}, -1\ns_mov_b32 s{m60+1}, 0x0fffffff\ns_mov_b32 s{WT+3}, 0x20000\ns_mov_b32 s{sRetry}, 0")
        I(f"v_and_b32 v8, 15, v0\nv_lshrrev_b32 v9, 4, v0")
        I(f"v_lshrrev_b32 v10, 1, v8\nv_mul_u32_u24 v10, 384, v10\nv_and_b32 v11, 1, v8\nv_lshl_add_u32 v11, v9, 1, v11\nv_lshl_add_u32 v{vKoff}, v11, 4, v10")
        I(f"v_mul_u32_u24 v10, 768, v9\nv_lshl_add_u32 v{vVoff}, v8, 4, v10")
        I(f"s_mul_i32 s{sT0}, s{sH}, {HSTR}\ns_mul_i32 s{sT1}, s{sS}, {128 * 384}\ns_add_u32 s{sT1}, s{sT1}, s{sT0}\ns_mul_i32 s{sT2}, s{sWave}, {32 * 384}\ns_add_u32 s{sT1}, s{sT1}, s{sT2}\ns_add_u32 s{sOffG}, s{sT1}, {3072 * 384}")
        I(f"s_mul_i32 s{sT1}, s{sS}, {512 * 384}\ns_add_u32 s{sT1}, s{sT1}, s{sT0}\ns_mul_i32 s{sT2}, s{sWave}, {128 * 384}\ns_add_u32 s{sOffP}, s{sT1}, s{sT2}")
        I(f"s_mul_i32 s{sLdsVS}, s{sWave}, 6144\ns_add_u32 s{sLdsVS}, s{sLdsVS}, {VS}")
        I(f"s_mov_b32 s{XO+2}, 2560\ns_mov_b32 s{XO+3}, 0x20000\ns_mul_i32 s{sT0}, s{sS}, 160\nv_lshlrev_b32 v7, 2, v0\nv_min_u32 v7, 156, v7")
        for srd, o in ((KA, sOffG), (VA, sOffG), (KB, sOffP), (VB, sOffP)): I(f"s_sub_u32 s{srd+2}, {KV_BYTES}, s{o}\ns_mov_b32 s{srd+3}, 0x20000")
        I(f"s_mov_b32 s{WS+2}, {WS_BYTES}\ns_mov_b32 s{WS+3}, 0x20000")
        I(f"s_mul_i32 s{sH1grp}, s{sH}, {H1_H}\ns_mul_i32 s{sT1}, s{sS}, {H1_S}\ns_add_u32 s{sH1own}, s{sH1grp}, s{sT1}")
        I(f"s_mul_i32 s{sH2grp}, s{sH}, {H2_H}\ns_add_u32 s{sH2grp}, s{sH2grp}, {H2}\ns_mul_i32 s{sT1}, s{sS}, {H2_S}\ns_add_u32 s{sH2own}, s{sH2grp}, s{sT1}")
        I(f"s_mul_i32 s{sH3grp}, s{sS}, {H3_S}\ns_add_u32 s{sH3grp}, s{sH3grp}, {H3}\ns_mul_i32 s{sT1}, s{sH}, {H3_H}\ns_add_u32 s{sH3own}, s{sH3grp}, s{sT1}")
        self.clear_prep([[("P", 0)], [("C", 0)], [("P", 4)], [("2", 0), ("3", 0)]])
        a.wait(lg=0)
        if self.c.get("diag"): I(f"v_mov_b32 v{vStamp}, 0\nv_writelane_b32 v{vStamp}, s{sST}, 0"); self.nstamp = 1
        def srds(l):
            for srd, p, o in l: I(f"s_add_u32 s{srd}, s{p}, s{o}\ns_addc_u32 s{srd+1}, s{p+1}, 0")
        def small():
            I(f"s_mov_b32 s{WS}, s{pWS}\ns_mov_b32 s{WS+1}, s{pWS+1}\ns_mov_b32 s{XO}, s{pX}\ns_mov_b32 s{XO+1}, s{pX+1}")
            self.clear_issue("clr")
            I(f"buffer_load_dword v12, v7, {s4(XO)}, s{sT0} offen\nbuffer_load_dword v13, v7, {s4(XO)}, s{sT0} offen offset:1280")
        n0, n1 = self.c.get("I", (12, 28))
        srds([(KA, pKA, sOffG)])
        self.stream(min(n0, 12), paced=False)
        srds([(VA, pVA, sOffG), (KB, pKB, sOffP), (VB, pVB, sOffP)])
        self.stream_to(n0, paced=False)
        small()
        self.stream_to(n1, paced=False)
        if self.c.get("st0"):
            self.stamp("end")
            n = len(a.vm.ent)
            for k in (1, 3, 6, 9, 12, 15, 18, n): a.wait(vm=n - k); self.stamp("end")
        if self.c.get("cpf") == 1: self.code_prefetch("L_pf0", "L_pf9")
        I(f"v_mul_u32_u24 v10, 26, v0\nv_lshrrev_b32 v10, 8, v10\nv_mul_u32_u24 v11, 10, v10\nv_sub_u32 v11, v0, v11\nv_mul_u32_u24 v10, 1280, v10\nv_lshl_add_u32 v{vWo}, v11, 4, v10")
        I("v_and_b32 v10, 1, v0\nv_cmp_eq_u32 vcc, 1, v10\nv_mov_b32 v11, 0xffff\nv_mov_b32 v20, 0xffff0000\nv_cndmask_b32 v11, v11, v20, vcc\nv_bfe_u32 v10, v0, 1, 2")
        for j in range(4): I(f"v_cmp_eq_u32 vcc, {j}, v10\nv_cndmask_b32 v{vMask+j}, 0, v11, vcc")
        for m, lo, hi in ((mODD, 0xaaaaaaaa, 0xaaaaaaaa), (mRG1, 0xffff0000, 0), (mRG2, 0, 0xffff), (mRG3, 0, 0xffff0000), (mWOST, 0x5555, 0x5555), (mN10, 0x03ff03ff, 0x03ff03ff), (mBIT1, 0xcccccccc, 0xcccccccc), (mL63, 0, 0x80000000)):
            I(f"s_mov_b32 s{m}, {lo:#x}\ns_mov_b32 s{m+1}, {hi:#x}")
        I(f"s_cmp_eq_u32 s{sWave}, 3\ns_cselect_b64 {sp(mW3)}, -1, 0\ns_min_u32 s{sW2}, s{sWave}, 2")
        I(f"s_getreg_b32 s{sXcc}, hwreg(HW_REG_XCC_ID, 0, 4)\ns_add_u32 s{sXcc}, s{sXcc}, 1")
        I(f"s_mul_i32 s{sT0}, s{sWave}, 160\ns_add_u32 s{sT0}, s{sT0}, {XROW}\nv_add_u32 v10, s{sT0}, v7\nv_add_u32 v11, {ONES}, v7\nv_mov_b32 v20, 0x3f803f80")
        I("ds_write_b32 v11, v20\nds_write_b32 v10, v12\nds_write_b32 v10, v13 offset:640")
        I(f"s_mov_b32 s{XO}, s{pOUT}\ns_mov_b32 s{XO+1}, s{pOUT+1}")
    def clear_prep(self, jobs):
        I = self.a.I
        I("v_mov_b32 v16, -1\nv_mov_b32 v17, -1\nv_mov_b32 v18, -1\nv_mov_b32 v19, -1\nv_lshlrev_b32 v14, 4, v0")
        def seg(k, inst, hi):
            if k in "PC": return sH1own, inst * H1_I + (1024 if k == "C" else 0), -1
            if k == "2": return sH2own, inst * H2_I - 512 * hi, -1
            return sH3own, inst * H3_I - 512 * hi, 0xfff
        for w, job in enumerate(jobs):
            lo = seg(*job[0], 0); hi = seg(*job[-1], 1)
            for (r, o, m), dst, md in ((lo, sT1, sClr), (hi, sT2, sClr + 1)):
                if w == 0: I(f"s_add_u32 s{dst}, s{r}, {o & 0xffffffff}\ns_mov_b32 s{md}, {m}")
                else: I(f"s_add_u32 s{sOff}, s{r}, {o & 0xffffffff}\ns_cmp_eq_u32 s{sWave}, {w}\ns_cselect_b32 s{dst}, s{sOff}, s{dst}\ns_cselect_b32 s{md}, {m}, s{md}")
        self.off_val = None
        I(f"v_mov_b32 v15, s{sT1}\nv_mov_b32 v20, s{sT2}\nv_cmp_lt_u32 vcc, 31, v0\nv_cndmask_b32 v15, v15, v20, vcc\nv_add_u32 v15, v15, v14")
    def clear_issue(self, tag, local_ok=False):
        I = self.a.I
        I(f"s_mov_b64 exec, {sp(sClr)}")
        self.publish(f"buffer_store_dwordx4 v[16:19], v15, {s4(WS)}, 0 offen {{pol}}", local_ok, tag=tag)
        I("s_mov_b64 exec, -1")
    def tlb_touch(self):
        a = self.a; I = a.I
        ent = []
        for p, o, span in ((pWQA, sWqRow, 20 * 12288), (pKA, sOffG, 12288), (pVA, sOffG, 12288), (pWOA, sWoRow, 48 * 1280), (pWQB, sWqRow, 20 * 12288),
                           (pKB, sOffP, 49152), (pWOB, sWoRow, 48 * 1280), (pVB, sOffP, 49152)):
            for b in range(2 if o in (sOffG, sOffP) else 1): ent.append((p, o, b * BSTR))
        if self.c["tlb"] > 1:
            ent += [(pWS, None, 0), (pWS, None, 2 << 20), (pWS, None, 4 << 20), (pDBG, None, 0), (pOUT, None, 0)]
        for i, (p, o, c) in enumerate(ent):
            if o is None: I(f"s_add_u32 s{sT1}, s{p}, {c}\ns_addc_u32 s{sT2}, s{p+1}, 0")
            else:
                I(f"s_add_u32 s{sT1}, s{p}, s{o}\ns_addc_u32 s{sT2}, s{p+1}, 0")
                if c: I(f"s_add_u32 s{sT1}, s{sT1}, {c}\ns_addc_u32 s{sT2}, s{sT2}, 0")
            if i == 0: I(f"v_mov_b32 v14, s{sT1}\nv_mov_b32 v15, s{sT2}")
            else: I(f"v_writelane_b32 v14, s{sT1}, {i}\nv_writelane_b32 v15, s{sT2}, {i}")
        I(f"s_mov_b64 exec, {(1 << len(ent)) - 1}\nglobal_load_dword v250, v[14:15], off nt\ns_mov_b64 exec, -1")
    def code_prefetch(self, lo, hi):
        a = self.a; I = a.I
        l = a.label("Lp")
        I(f"s_getpc_b64 {sp(sT1)}"); a.raw(f"{l}:")
        I(f"s_add_u32 s{sT1}, s{sT1}, {lo}-{l}\ns_addc_u32 s{sT2}, s{sT2}, 0")
        I(f"s_lshr_b32 s{sT0}, s{sWG}, 3\ns_lshl_b32 s{sT0}, s{sT0}, 2\ns_add_u32 s{sT0}, s{sT0}, s{sWave}\ns_lshl_b32 s{sT0}, s{sT0}, 13")
        I(f"v_lshl_add_u32 v30, v0, 7, s{sT0}\nv_cmp_gt_u32 vcc, {hi}-{lo}, v30\ns_mov_b32 m0, {JUNK}")
        I("s_and_b64 exec, vcc, -1"); a.skip_begin("s_cbranch_execz")
        I(f"global_load_lds_dword v30, {sp(sT1)}")
        a.skip_end()
        I("s_mov_b64 exec, -1")
    def arrive(self):
        a = self.a; I = a.I
        I(f"s_cmp_lg_u32 s{sWave}, 0"); a.skip_begin("s_cbranch_scc1")
        I(f"s_and_b32 s{sT0}, s{sWG}, 3\ns_lshl_b32 s{sT0}, s{sT0}, 3\ns_lshl_b32 s{sT0}, s{sXcc}, s{sT0}\ns_and_b32 s{sT1}, s{sWG}, 0xfc")
        I(f"v_mov_b32 v8, s{sT1}\nv_mov_b32 v9, s{sT0}\ns_mov_b64 exec, 1")
        I(f"global_atomic_add v8, v9, {sp(pDBG)} sc1\ns_mov_b64 exec, -1")
        a.skip_end()
    def handshake(self, between):
        a = self.a; I = a.I
        I("v_lshlrev_b32 v7, 2, v0")
        ld = f"global_load_dword v8, v7, {sp(pDBG)} sc1"
        I(ld); last = len(a.vm.ent) - 1
        between()
        n = a.vm.need(last)
        if n is not None: a.wait(vm=n)
        chk = a.label("Lc"); rt = a.label("Lr")
        a.raw(f"{chk}:"); a.no_inject += 1
        I("v_subrev_u32 v9, 0x01010101, v8\nv_not_b32 v10, v8\nv_and_b32 v9, v9, v10\nv_and_b32 v9, 0x80808080, v9\nv_cmp_ne_u32 vcc, 0, v9")
        I(f"s_cbranch_vccnz {rt}")
        self.retry_block(rt, chk, [ld]); a.no_inject -= 1
        I(f"s_and_b32 s{sT0}, s{sWG}, 3\ns_lshl_b32 s{sT0}, s{sT0}, 3\nv_lshrrev_b32 v8, s{sT0}, v8\nv_and_b32 v8, 0xff, v8")
        I(f"s_bfe_u32 s{sT0}, s{sWG}, 0x30002\nv_and_b32 v9, 7, v0\nv_cmp_eq_u32 {sp(sT1)}, s{sT0}, v9\nv_cmp_ne_u32 vcc, s{sXcc}, v8")
        I(f"s_and_b64 vcc, vcc, {sp(sT1)}\ns_cmp_eq_u64 vcc, 0\ns_cselect_b32 s{sLocal}, 1, 0")
    WQB = [(24, 28, 32), (34, 38, 42), (44, 48, 52)]
    def wq_pre(self, ty):
        a = self.a; I = a.I
        I(f"v_bfe_u32 v7, v0, 2, 2\nv_lshrrev_b32 v9, 4, v0\nv_lshl_add_u32 v8, v9, 3, v7\nv_lshl_add_u32 v7, v9, 2, v7")
        I(f"v_and_b32 v9, 3, v0\nv_lshlrev_b32 v9, 3, v9\ns_mul_i32 s{sT0}, s{sWave}, 96\ns_add_u32 s{sT0}, s{sT0}, {WQ[ty]}\nv_add_u32 v9, s{sT0}, v9")
        I(f"s_movk_i32 s{sT0}, 384\nv_mad_u32_u24 v8, v8, s{sT0}, v9\nv_mad_u32_u24 v7, v7, s{sT0}, v9")
        for T, (b0, b1, b2) in enumerate(self.WQB):
            for t, r in ((0, b0), (1, b1)):
                I(f"ds_read_b64_tr_b16 {v2(r)}, v8 offset:{12288 * t + 32 * T}\nds_read_b64_tr_b16 {v2(r+2)}, v8 offset:{12288 * t + 1536 + 32 * T}")
            I(f"ds_read_b64_tr_b16 {v2(b2)}, v7 offset:{24576 + 32 * T}")
    def wq_addr(self, b, L):
        I = self.a.I
        I(f"s_mul_i32 s{sT0}, s{sWave}, 160\ns_add_u32 s{sT0}, s{sT0}, {XROW + 640 * b}\nv_mov_b32 v22, s{sT0}\nv_mov_b32 v23, {ONES}")
        I(f"v_cndmask_b32 v23, v22, v23, {sp(mODD)}\nv_lshrrev_b32 v21, 4, v0\nv_lshl_add_u32 v22, v21, 4, v23\nv_lshl_add_u32 v23, v21, 3, v23")
    def wq_main(self, b, L, local_ok=True, hoisted=False, hoist=False):
        a = self.a; I = a.I; inst = 4 * b + L; needC = inst < 2
        if not hoisted: self.wq_addr(b, L)
        I("ds_read_b128 v[12:15], v22\nds_read_b128 v[16:19], v22 offset:64\nds_read_b64 v[20:21], v23 offset:128")
        I(f"s_lshl_b32 s{sT0}, s{sWave}, 8\nv_lshl_add_u32 v7, v0, 2, s{sT0}\ns_add_u32 s{sOffP}, s{sH1own}, {inst * H1_I}")
        if hoist: self.qg_addr(b, L)
        D = [8, 24, 28]
        for T, (b0, b1, b2) in enumerate(self.WQB):
            I(f"v_mfma_f32_16x16x32_bf16 {v4(D[T])}, v[12:15], {v4(b0)}, 0")
            I(f"v_mfma_f32_16x16x32_bf16 {v4(D[T])}, v[16:19], {v4(b1)}, {v4(D[T])}")
        I("v_mfma_f32_16x16x32_bf16 v[34:37], v[12:15], v[12:15], 0\nv_mfma_f32_16x16x32_bf16 v[34:37], v[16:19], v[16:19], v[34:37]")
        for T, (b0, b1, b2) in enumerate(self.WQB):
            I(f"v_mfma_f32_16x16x16_bf16 {v4(D[T])}, v[20:21], {v2(b2)}, {v4(D[T])}")
        I("v_mfma_f32_16x16x16_bf16 v[34:37], v[20:21], v[20:21], v[34:37]")
        for r in range(2 if needC else 1):
            I(f"v_cndmask_b32 v{22+r}, v{8+r}, v{24+r}, {sp(mRG1)}\nv_cndmask_b32 v{22+r}, v{22+r}, v{28+r}, {sp(mRG2)}\nv_cndmask_b32 v{22+r}, v{22+r}, v34, {sp(mRG3)}\nv_min_u32 v{22+r}, -2, v{22+r}")
            self.publish(f"buffer_store_dword v{22+r}, v7, {s4(WS)}, s{sOffP} offen offset:{1024 * r} {{pol}}", local_ok)
    def qg_addr(self, b, L):
        I = self.a.I
        I(f"v_and_b32 v23, 15, v0\nv_lshrrev_b32 v54, 4, v0\nv_lshlrev_b32 v54, 11, v54\nv_lshl_add_u32 v54, v23, 4, v54\ns_lshl_b32 s{sT0}, s{sWave}, 8")
        I(f"s_add_u32 s{sOffG}, s{sH1grp}, s{sT0}\ns_add_u32 s{sOffG}, s{sOffG}, {(4 * b + L) * H1_I}\ns_add_u32 s{sOffG2}, s{sOffG}, {4 * H1_S}")
    def qg(self, b, L, between=None, hoisted=False, after=None, tail=False):
        a = self.a; I = a.I; inst = 4 * b + L; needC = inst < 2; ty = L & 1
        if not hoisted: self.qg_addr(b, L)
        loads = [f"buffer_load_dwordx4 v[12:15], v54, {s4(WS)}, s{sOffG} offen sc1", f"buffer_load_dwordx4 v[16:19], v54, {s4(WS)}, s{sOffG2} offen sc1"]
        if needC: loads += [f"buffer_load_dwordx4 v[20:23], v54, {s4(WS)}, s{sOffG} offen offset:1024 sc1", f"buffer_load_dwordx4 v[24:27], v54, {s4(WS)}, s{sOffG2} offen offset:1024 sc1"]
        def pre():
            I(f"v_and_b32 v32, 15, v0\nv_lshrrev_b32 v33, 4, v0\nv_and_b32 v34, 1, v33\nv_lshlrev_b32 v34, 1, v34\nv_lshrrev_b32 v28, 1, v33\nv_or_b32 v34, v34, v28\nv_lshl_add_u32 v34, v32, 2, v34")
            I(f"s_mul_i32 s{sT0}, s{sWave}, 96\ns_add_u32 s{sT0}, s{sT0}, {QB + 384 * b}\nv_lshl_add_u32 v34, v34, 1, s{sT0}")
            I(f"s_lshl_b32 s{sT0}, s{sWave}, 8\ns_add_u32 s{sT0}, s{sT0}, {CT + 1024 * ty}\nv_lshl_add_u32 v29, v0, 2, s{sT0}")
            if not needC: I("ds_read_b32 v20, v29")
            self.q_addr(b)
            I(f"v_mov_b32 v35, {f32(1 / (640 * SCALE))}\nv_mov_b32 v32, {f32(1 / (640 * SCALE * SCALE))}\nv_mov_b32 v33, {f32(1e-5 / (SCALE * SCALE))}")
        first = hoisted and self.c.get('first', 3) & 2
        if first: pre()
        def shadow():
            if not first: pre()
            if tail and self.c.get("tq", 0): self.tail_addr(b, L)
            if between: between()
        self.gather(loads, range(12, 28 if needC else 20), 28, between=shadow, sleep=self.lsleep())
        if after: after()
        def red(r):
            I(f"v_pk_add_f32 {v2(r)}, {v2(r)}, {v2(r+4)}\nv_pk_add_f32 {v2(r+2)}, {v2(r+2)}, {v2(r+6)}")
            I(f"v_permlane32_swap_b32 v{r}, v{r+1}\nv_permlane32_swap_b32 v{r+2}, v{r+3}\nv_add_f32 v{r}, v{r}, v{r+1}\nv_add_f32 v{r+2}, v{r+2}, v{r+3}")
            I(f"v_permlane16_swap_b32 v{r}, v{r+2}\nv_add_f32 v{r}, v{r}, v{r+2}")
        red(12)
        I(f"v_readlane_b32 s{sT0}, v12, 12\nv_readlane_b32 s{sT1}, v12, 44")
        if needC: red(20); I(f"v_mul_f32 v20, {f32(SCALE)}, v20\nds_write_b32 v29, v20")
        I(f"s_mov_b32 exec_lo, 0x0fff0fff\ns_mov_b32 exec_hi, 0x0fff0fff")
        I(f"v_mul_f32 v15, s{sT1}, v35\nv_fma_f32 v14, s{sT0}, v32, v33\nv_fma_f32 v14, -v15, v15, v14\nv_max_f32 v14, v33, v14\nv_rsq_f32 v14, v14")
        I(f"v_fma_f32 v12, -v15, v20, v12\nv_mul_f32 v12, v12, v14\nv_cvt_pk_bf16_f32 v12, v12, v12")
        I("ds_write_b16 v34, v12\ns_mov_b64 exec, -1")
        a.barrier()
    def tail_addr(self, b, L):
        I = self.a.I; inst = 4 * b + L
        I(f"v_and_b32 v50, 15, v0\nv_lshlrev_b32 v50, 5, v50\nv_and_b32 v51, 16, v0\ns_mul_i32 s{sT0}, s{sWave}, 1536\ns_add_u32 s{sT0}, s{sT0}, {ATT}\nv_add3_u32 v50, v50, v51, s{sT0}")
        I(f"s_lshl_b32 s{sT0}, s{sWave}, 2\ns_add_u32 s{sT0}, s{sT0}, {STAT}\nv_mov_b32 v51, s{sT0}")
        self.wo_addr(b, L)
        I(f"v_mov_b32 v9, {STAT}\ns_lshl_b32 s{sT0}, s{sWave}, 8\ns_add_u32 s{sT0}, s{sT0}, {ATT}\nv_lshl_add_u32 v10, v0, 2, s{sT0}")
        I(f"s_lshl_b32 s{sT0}, s{sWave}, 7\nv_lshl_add_u32 v11, v0, 1, s{sT0}\ns_add_u32 s{sOffP}, s{sH2own}, {inst * H2_I}")
    def q_addr(self, b):
        self.a.I(f"v_and_b32 v30, 1, v0\nv_lshrrev_b32 v31, 4, v0\nv_lshlrev_b32 v31, 5, v31\nv_lshl_add_u32 v30, v30, 4, v31\nv_add_u32 v30, {QB + 384 * b}, v30")
    def att(self, b, L, hook1=None, hook2=None, hookm=None, pre_bar=None, guard=False, hoist=False, qaddr=False):
        a = self.a; I = a.I; ty = L & 1; G = 16 if ty else 4; Kn = "KB" if ty else "KA"; Vn = "VB" if ty else "VA"
        vM, vL = 52, 53
        if not qaddr: self.q_addr(b)
        for t in range(3): I(f"ds_read_b128 {v4(vQ + 4 * t)}, v30 offset:{128 * t}")
        def lds_v(g):
            a.wait_tag(("VS", b, g))
            I(f"v_lshl_add_u32 v54, v0, 4, s{sLdsVS}")
            for c in range(3): I(f"ds_read_b128 {v4(vU + 2 + 4 * c)}, v54 offset:{(g - 2) * 3072 + 1024 * c}")
        early = (not ty) and L == 2
        if early: lds_v(2)
        if not (qaddr and self.c.get("tq", 0)): self.tail_addr(b, L)
        def D(g): return vACC + 4 * (g % 3)
        dm = "row_mask:0xf"; NP = G // 2
        order = list(range(G)) if ty else ([2, 0, 1, 3] if early else [0, 1, 2, 3])
        at = {g: i for i, g in enumerate(order)}
        U = lambda g: vU + at[g] // 2
        bank = lambda g, hi: (1 << (at[g] & 1)) << (2 * hi)
        for g in range(G + 2):
            K = SLOT[(Kn, g)] if g < G else None
            if K: self.check_slot(Kn, b, g)
            e = g - 2
            if K: I(f"v_mfma_f32_16x16x32_bf16 {v4(D(g))}, {K[0]}, {v4(vQ)}, 0")
            if g == 1 and self.c.get("fa"): self.fs("g1")
            if K: I(f"v_mfma_f32_16x16x32_bf16 {v4(D(g))}, {K[1]}, {v4(vQ+4)}, {v4(D(g))}")
            if 0 <= e < G: I(f"v_add_f32_dpp v{U(e)}, v{D(e)}, v{D(e)+1} quad_perm:[0,0,2,2] {dm} bank_mask:{bank(e, 0):#x}")
            if K: I(f"v_mfma_f32_16x16x32_bf16 {v4(D(g))}, {K[2]}, {v4(vQ+8)}, {v4(D(g))}")
            if g == G + 1 and NP > 3: I(f"v_max3_f32 v{vM}, v{vU}, v{vU+1}, v{vU+2}\nv_max3_f32 v{vM}, v{vM}, v{vU+3}, v{vU+4}")
            if hook1 and g < G: hook1(g)
            if 0 <= e < G: I(f"v_add_f32_dpp v{U(e)}, v{D(e)+2}, v{D(e)+3} quad_perm:[0,0,2,2] {dm} bank_mask:{bank(e, 1):#x}")
        if self.c.get("fa"): self.fs("p1")
        if hookm: hookm()
        if NP > 3: I(f"v_max3_f32 v{vM}, v{vM}, v{vU+5}, v{vU+6}\nv_max_f32 v{vM}, v{vM}, v{vU+7}")
        else: I(f"v_max_f32 v{vM}, v{vU}, v{vU+1}")
        red = ("row_ror:8 row_mask:0xf", "row_ror:4 row_mask:0xf", "row_bcast:15 row_mask:0xa", "row_bcast:31 row_mask:0xc")
        for x in red: I(f"v_max_f32_dpp v{vM}, v{vM}, v{vM} {x} bank_mask:0xf")
        I(f"v_readlane_b32 s{sM}, v{vM}, 63")
        def prob(p): return [f"v_subrev_f32 v{vU+p}, s{sM}, v{vU+p}", f"v_exp_f32 v{vU+p}, v{vU+p}",
                             f"v_mov_b32 v{vL}, v{vU+p}" if p == 0 else f"v_add_f32 v{vL}, v{vL}, v{vU+p}",
                             f"v_cvt_pk_bf16_f32 v{vU+p}, v{vU+p}, v{vU+p}",
                             f"v_mov_b32_dpp v{vU+p}, v{vU+p} quad_perm:[1,1,3,3] {dm} bank_mask:0xf"]
        def diag(i, j):
            d = vQ + 4 * (i & 1) + j; u = vU + i // 2
            if (j >> 1) == (i & 1): I(f"v_and_b32 v{d}, v{u}, v{vMask + j}")
            else: I(f"v_and_b32_dpp v{d}, v{u}, v{vMask + j} {'row_shl:4' if i & 1 else 'row_shr:4'} {dm} bank_mask:0xf bound_ctrl:0")
        p0 = prob(0); p1 = prob(1)
        for t in (p0[0], p0[1], p1[0], p0[3 - 1], p0[3], p1[1], f"v_mov_b32 v{vM}, s{sM}", p0[4]): I(t)
        pend = p1[2:]
        for j in (0, 1): diag(0, j)
        I(pend.pop(0))
        for j in (2, 3): diag(0, j)
        if guard: a.barrier()
        if self.c.get("fa"): self.fs("p2start")
        lred = []
        for i, g in enumerate(order):
            self.check_slot(Vn, b, g)
            if (Vn, g) in SLOT: V = SLOT[(Vn, g)]
            else:
                if not early: lds_v(g)
                V = [v4(vU + 2 + 4 * c) for c in range(3)]
            A = v4(vQ + 4 * (i & 1))
            nx = i + 1 < G
            if (i & 1) == 1 and i // 2 + 2 < NP: assert not pend; pend = prob(i // 2 + 2)
            if i == G - 2: assert not pend; lred = [f"v_add_f32_dpp v{vL}, v{vL}, v{vL} {x} bank_mask:0xf" for x in red]
            for c in range(3):
                acc = v4(vACC + 4 * c)
                I(f"v_mfma_f32_16x16x32_bf16 {acc}, {A}, {V[c]}, {acc if i else 0}")
                if nx and c < 2: diag(i + 1, 2 * c + 0 if (i + 1) & 1 == 0 else (2 * c + 2) % 4); diag(i + 1, 2 * c + 1 if (i + 1) & 1 == 0 else (2 * c + 3) % 4)
                if pend: I(pend.pop(0))
                if lred: I(lred.pop(0))
                if i == 0 and c == 1: I(f"ds_write_b32 v51, v{vM}")
                if i == G - 1 and c == 1: I(f"s_mov_b64 exec, {sp(mL63)}\nds_write_b32 v51, v{vL} offset:16\ns_mov_b64 exec, -1")
            if early and g == 2: lds_v(3)
            if hook2: hook2(i)
        if self.c.get("fa"): self.fs("p2end")
        for c, (lo, hi) in enumerate(((0xffffffff, 0), (0x00ff00ff, 0xff00ff00), (0, 0xffffffff))):
            I(f"s_mov_b32 exec_lo, {lo:#x}\ns_mov_b32 exec_hi, {hi:#x}\nds_write_b128 v50, {v4(vACC + 4 * c)} offset:{512 * c}")
        I("s_mov_b64 exec, -1")
        if pre_bar: pre_bar()
        self.fs("att_end")
        a.barrier()
        self.combine(b, L)
        self.fs("pub2")
    def combine(self, b, L):
        a = self.a; I = a.I; inst = 4 * b + L
        I("ds_read_b128 v[44:47], v9\nds_read_b128 v[48:51], v9 offset:16")
        for i in range(0, 8, 2): I(f"ds_read2st64_b32 {v2(12 + i)}, v10 offset0:{3 * i} offset1:{3 * i + 3}")
        I("v_max3_f32 v52, v44, v45, v46\nv_max_f32 v52, v52, v47")
        for w in range(4): I(f"v_sub_f32 v{44+w}, v{44+w}, v52")
        for w in range(4): I(f"v_exp_f32 v{44+w}, v{44+w}")
        for w in range(4): I(f"v_add_f32 v{12 + 2 * w}, v{12 + 2 * w}, v{13 + 2 * w}")
        I("v_mul_f32 v20, v44, v12\nv_fmac_f32 v20, v45, v14\nv_fmac_f32 v20, v46, v16\nv_fmac_f32 v20, v47, v18")
        I("v_mul_f32 v53, v44, v48\nv_fmac_f32 v53, v45, v49")
        I("v_mov_b32_dpp v21, v20 quad_perm:[1,1,3,3] row_mask:0xf bank_mask:0xf")
        I("v_fmac_f32 v53, v46, v50\nv_fmac_f32 v53, v47, v51\nv_cvt_pk_bf16_f32 v20, v20, v21")
        I(f"v_cndmask_b32 v52, v52, v53, {sp(mBIT1)}\nv_cndmask_b32 v20, v20, v52, {sp(mW3)}\nv_min_u32 v20, -2, v20")
        I(f"s_not_b64 exec, {sp(mODD)}")
        self.publish(f"buffer_store_dword v20, v11, {s4(WS)}, s{sOffP} offen {{pol}}", True)
        I("s_mov_b64 exec, -1")
    def wo_addr(self, b, L):
        I = self.a.I
        I(f"v_bfe_u32 v8, v0, 1, 3\nv_lshrrev_b32 v9, 4, v0\nv_and_b32 v7, 1, v0\nv_lshl_add_u32 v7, v9, 1, v7\nv_lshlrev_b32 v7, 4, v7\nv_lshl_add_u32 v7, v8, 9, v7")
        I(f"v_lshl_add_u32 v8, v9, 1, v8\nv_and_b32 v8, 7, v8\nv_lshlrev_b32 v8, 9, v8\ns_add_u32 s{sOffW}, s{sH2grp}, {(4 * b + L) * H2_I}")
    def wo(self, b, L, between=None, hoisted=False, hoist=False, after=None):
        a = self.a; I = a.I; inst = 4 * b + L; ty = L & 1
        if not hoisted: self.wo_addr(b, L)
        loads = [f"buffer_load_dwordx2 v[52:53], v8, {s4(WS)}, s{sOffW} offen offset:384 sc1"]
        loads += [f"buffer_load_dwordx4 {v4(12 + 4 * t)}, v7, {s4(WS)}, s{sOffW} offen offset:{128 * t} sc1" for t in range(3)]
        S = [24, 28, 32, 36, 40, 44]
        def rd(kk, reg, tile):
            o = 10240 * (kk >> 1) + 1280 * (kk & 1) + 32 * tile
            I(f"ds_read_b64_tr_b16 {v2(reg)}, v10 offset:{o}\nds_read_b64_tr_b16 {v2(reg + 2)}, v10 offset:{o + 640}")
        def pre():
            I(f"v_bfe_u32 v10, v0, 2, 2\nv_and_b32 v11, 48, v0\nv_add_u32 v10, v10, v11\nv_mul_u32_u24 v10, 160, v10\nv_and_b32 v11, 3, v0\nv_lshl_add_u32 v10, v11, 3, v10")
            I(f"s_lshl_b32 s{sT0}, s{sW2}, 6\ns_add_u32 s{sT1}, s{sT0}, {WO[ty]}\nv_add_u32 v10, s{sT1}, v10")
            for kk in range(6): rd(kk, S[kk], 0)
            I(f"v_and_b32 v11, 15, v0\nv_lshlrev_b32 v11, 1, v11\nv_and_b32 v9, 32, v0\nv_add3_u32 v11, v11, v9, s{sT0}\ns_add_u32 s{sOffP}, s{sH3own}, {inst * H3_I}")
            if hoist: self.yg_addr()
            if between: between()
        D0, D1 = 48, 24
        mt = lambda D, t, B, first: f"v_mfma_f32_16x16x32_bf16 {v4(D)}, {v4(12 + 4 * t)}, {v4(B)}, {0 if first else v4(D)}"
        def mm(*k): I(mt(*k))
        self.gather(loads, [52, 53] + list(range(12, 24)), 9, between=pre, sleep=self.lsleep(), first=hoisted and self.c.get('first', 3) & 1,
                    spec=[mt(D0, 0, S[0], True), mt(D0, 1, S[2], False), mt(D0, 2, S[4], False)])
        if after: after()
        dpp = lambda op, d, x, ctl: I(f"{op}_dpp v{d}, v{x}, v{x} {ctl} row_mask:0xf bank_mask:0xf")
        def fold(out):
            I(f"v_add_f32 v{D0}, v{D0}, v{D1 + 1}\nv_add_f32 v{D0 + 2}, v{D0 + 2}, v{D1 + 3}\nv_mul_f32 v{out}, v7, v{D0}\nv_fmac_f32 v{out}, v8, v{D0 + 2}")
        dpp("v_max_f32", 9, 52, "row_ror:8")
        mm(D1, 0, S[1], True); rd(0, S[2], 1); dpp("v_max_f32", 9, 9, "row_ror:4")
        mm(D1, 1, S[3], False); rd(2, S[4], 1); dpp("v_max_f32", 9, 9, "row_ror:2")
        mm(D1, 2, S[5], False); I("v_sub_f32 v52, v52, v9\nv_exp_f32 v52, v52"); rd(4, S[1], 1); I("v_mul_f32 v53, v52, v53")
        rd(1, S[3], 1); dpp("v_add_f32", 53, 53, "row_ror:8")
        rd(3, S[5], 1); dpp("v_add_f32", 53, 53, "row_ror:4")
        I(f"v_add_f32 v{D0}, v{D0}, v{D1 + 1}\nv_add_f32 v{D0 + 2}, v{D0 + 2}, v{D1 + 3}")
        dpp("v_add_f32", 53, 53, "row_ror:2")
        I(f"v_mov_b32 v7, v{D0}\nv_mov_b32 v8, v{D0 + 2}\nv_rcp_f32 v53, v53")
        mm(D0, 0, S[2], True); rd(5, S[2], 1)
        I("v_mul_f32 v9, v52, v53")
        mm(D0, 1, S[4], False); mm(D0, 2, S[1], False)
        I("v_mul_f32_dpp v52, v9, v7 row_newbcast:0 row_mask:0xf bank_mask:0xf")
        mm(D1, 0, S[3], True)
        I("v_mov_b32_dpp v7, v9 row_newbcast:0 row_mask:0xf bank_mask:0xf")
        mm(D1, 1, S[5], False)
        I("v_fmac_f32_dpp v52, v9, v8 row_newbcast:2 row_mask:0xf bank_mask:0xf")
        mm(D1, 2, S[2], False)
        I("v_mov_b32_dpp v8, v9 row_newbcast:2 row_mask:0xf bank_mask:0xf")
        fold(53)
        I("v_permlane32_swap_b32 v52, v53\nv_add_f32 v52, v52, v53\nv_mov_b32 v53, v52\nv_permlane16_swap_b32 v52, v53\nv_add_f32 v52, v52, v53")
        I("v_mov_b32_dpp v53, v52 quad_perm:[1,1,3,3] row_mask:0xf bank_mask:0xf\nv_cvt_pk_bf16_f32 v52, v52, v53\nv_min_u32 v52, -2, v52")
        I(f"s_mov_b64 exec, {sp(mWOST)}")
        self.publish(f"buffer_store_dword v52, v11, {s4(WS)}, s{sOffP} offen {{pol}}", False)
        I("s_mov_b64 exec, -1")
    def yg_addr(self):
        self.a.I(f"v_lshrrev_b32 v54, 4, v0\nv_lshlrev_b32 v54, 8, v54\nv_and_b32 v9, 15, v0\nv_lshl_add_u32 v54, v9, 4, v54")
    def yg_pre(self, b, L):
        I = self.a.I
        I(f"s_lshl_b32 s{sT0}, s{sWave}, 11\ns_add_u32 s{sOffG}, s{sH3grp}, s{sT0}\ns_add_u32 s{sOffG}, s{sOffG}, {(4 * b + L) * H3_I}")
        for j in range(4): I(f"v_and_b32 v{16 + j}, 0x3f803f80, v{vMask + j}")
        for j in range(8): I(f"v_mov_b32 v{8 + j}, 0")
    def yg(self, b, L, between=None, pre_bar=None, hoisted=False, after=None):
        a = self.a; I = a.I; inst = 4 * b + L; Yb = Y + YSZ * b
        if not hoisted: self.yg_addr(); self.yg_pre(b, L)
        loads = [f"buffer_load_dwordx4 {v4(8 + 4 * j)}, v54, {s4(WS)}, s{sOffG} offen offset:{4 * H3_H * j} sc1" for j in range(2)]
        self.gather(loads, range(8, 16), 7, between=between, emask=sp(mN10),
                    spec=["v_mfma_f32_16x16x32_bf16 v[20:23], v[16:19], v[8:11], 0", "v_mfma_f32_16x16x32_bf16 v[20:23], v[16:19], v[12:15], v[20:23]"])
        if after: after()
        I(f"v_and_b32 v7, 15, v0\nv_lshlrev_b32 v7, 5, v7\nv_and_b32 v54, 16, v0\ns_mul_i32 s{sT0}, s{sWave}, 320\ns_add_u32 s{sT0}, s{sT0}, {Yb}\nv_add3_u32 v7, v7, v54, s{sT0}")
        I(f"s_mov_b32 exec_lo, s{mN10}\ns_mov_b32 exec_hi, 0\nds_write_b128 v7, v[20:23]\ns_mov_b64 exec, -1")
        I(f"s_mul_i32 s{sT0}, s{sWave}, 160\ns_add_u32 s{sT0}, s{sT0}, {XROW + 640 * b}\nv_lshl_add_u32 v7, v0, 2, s{sT0}\nds_read_b32 v54, v7")
        I(f"v_lshlrev_b32 v14, 3, v0\nv_add_u32 v14, {Yb}, v14")
        if L < 3: self.wq_addr(b, L + 1)
        if pre_bar: pre_bar()
        a.barrier()
        I("s_mov_b32 exec_hi, 0xff")
        I("ds_read2_b64 v[8:11], v14 offset0:0 offset1:40\nds_read2_b64 v[12:15], v14 offset0:80 offset1:120")
        I("v_lshlrev_b32 v16, 16, v54\nv_and_b32 v17, 0xffff0000, v54")
        I("v_pk_add_f32 v[8:9], v[8:9], v[10:11]\nv_pk_add_f32 v[12:13], v[12:13], v[14:15]\nv_pk_add_f32 v[8:9], v[8:9], v[12:13]")
        I("v_cvt_pk_bf16_f32 v8, v8, v9\nv_and_b32 v9, 0xffff0000, v8\nv_lshlrev_b32 v8, 16, v8\nv_pk_add_f32 v[8:9], v[8:9], v[16:17]\nv_cvt_pk_bf16_f32 v8, v8, v9")
        if L < 3: I("ds_write_b32 v7, v8")
        else:
            I(f"s_cmp_lg_u32 s{sWave}, 0"); a.skip_begin("s_cbranch_scc1")
            I(f"s_mul_i32 s{sT0}, s{sS}, 160\nv_lshlrev_b32 v7, 2, v0")
            I(f"buffer_store_dword v8, v7, {s4(XO)}, s{sT0} offen offset:{1280 * b}")
            a.skip_end()
        I("s_mov_b64 exec, -1")
    def touch(self, b, L, lvl=1):
        if self.c.get("touch", 3) < lvl: return
        a = self.a; I = a.I
        I(f"s_lshl_b32 s{sT0}, s{sWave}, 7\nv_lshl_add_u32 v31, v0, 1, s{sT0}\nv_and_b32 v31, -4, v31\ns_add_u32 s{sT1}, s{sH2own}, {(4 * b + L) * H2_I}\ns_mov_b32 m0, {JUNK}")
        I(f"buffer_load_dword v31, {s4(WS)}, s{sT1} offen sc1 lds")
        if L < 3:
            I(f"v_lshlrev_b32 v31, 1, v31\ns_add_u32 s{sT1}, s{sH1own}, {(4 * b + L + 1) * H1_I}")
            I(f"buffer_load_dword v31, {s4(WS)}, s{sT1} offen sc1 lds")
    def chain_idle(self, b, L, burst=(0, 0, 0), sh=(0, 0, 0, 0)):
        a = self.a; U = lambda n: (lambda: self.stream(n, paced=False))
        if self.c.get("skip3", 1):
            a.I(f"s_cmp_eq_u32 s{sWave}, 3"); a.skip_begin("s_cbranch_scc1")
            self.wo(b, L, hoisted=True)
            a.skip_end()
            self.yg_addr()
            self.stream(sh[0] + sh[1], paced=False)
        else:
            self.wo(b, L, between=U(burst[0]), hoisted=True, hoist=True, after=U(sh[0]))
            self.stream(sh[1], paced=False)
        self.stamp(f"wo{b}{L}")
        self.fs("pub3")
        late = self.c.get("late", 1)
        if L == 3:
            a.I(f"s_cmp_eq_u32 s{sH}, 1\ns_cbranch_scc1 L_out0")
            a.I(f"s_cmp_lg_u32 s{sH}, 0\ns_cbranch_scc1 L_fin")
        dfr = self.deferred; self.deferred = []
        pub = a.vm.last_tag("pub")
        for jobs in dfr: self.clear_prep(jobs); self.clear_issue("clr3")
        if L < 3 and not late: self.wq_pre((L + 1) & 1)
        if late < 2: self.yg_pre(b, L)
        a.wait_tag("pub"); a.barrier()
        if L < 3 and late: self.wq_pre((L + 1) & 1)
        if late >= 2: self.yg_pre(b, L)
        self.yg(b, L, between=U(burst[1]), hoisted=True, after=U(sh[2]), pre_bar=(lambda: a.wait_tag("clr3")) if dfr else None)
        self.fs("xrow")
        if L == 3: return
        self.wq_main(b, L + 1, hoisted=True, hoist=True)
        self.fs("pub1")
        self.stamp(f"wq{b}{L+1}")
        self.qg(b, L + 1, between=U(burst[2]), hoisted=True, tail=True, after=lambda: (self.touch(b, L + 1) if self.c.get("touch", 3) != 3 or (b, L) == (0, 1) else None, self.stream(sh[3], paced=False)))
        self.stamp(f"qg{b}{L+1}")
    def build(self):
        a = self.a; c = self.c; W = self.W; WE = c.get("WE", W); HE = c.get("HE", 4)
        self.off_val = None
        for x in c.get("order", "kvw"):
            if x == "w": self.add_w("wqA", pWQA, "q", 0)
            else:
                for g in range(4): self.add_kv("KA" if x == "k" else "VA", 0, g)
        self.add_w("woA", pWOA, "o", 0); self.add_w("wqB", pWQB, "q", 1)
        for g in range(16): self.add_kv("KB", 0, g)
        self.add_w("woB", pWOB, "o", 1)
        for g in range(16): self.add_kv("VB", 0, g)
        p1 = len(self.items)
        for g in range(4): self.add_kv("KA", 1, g)
        for g in range(4): self.add_kv("VA", 1, g)
        p2 = len(self.items)
        for g in range(16): self.add_kv("KB", 1, g)
        for g in range(16): self.add_kv("VB", 1, g)
        st = self.stream_to; S = lambda n: (lambda: self.stream(n))
        self.limit = p1; a.nobar = c.get('nobar', 0)
        self.setup()
        if c.get("inject", 1): a.inject = self.injector
        if c.get("streamonly"):
            self.limit = 10**9; self.inl = False; self.boost = 0; a.inject = None
            for upto in c["streamonly"]:
                if isinstance(upto, tuple): st(upto[0], W=upto[1])
                else: st(upto)
                self.stamp("end")
            a.wait(vm=0); self.stamp("end")
            return self.finish()
        P = c.get("P1", dict(arr=24, hs=36, qg0=44, wo=76, yg=104, qg1=130))
        for _ in range(c.get("pad", 0)): a.I("s_nop 0")
        a.raw("L_pf0:")
        self.stamp("setup")
        a.wait_tag("clr"); a.barrier()
        self.arrive()
        st(max(P["arr"], self.index_after("wqA") + 4))
        self.stamp("arr")
        a.wait_tag("wqA"); a.barrier()
        self.wq_pre(0); self.wq_main(0, 0, local_ok=False)
        self.wq_pre(0); self.wq_main(1, 0, local_ok=False)
        self.stamp("wq")
        st(P["hs"]); self.handshake(S(W))
        P_ = lambda i: [("P", i)]
        now = [[P_(1), [("C", 1)], P_(2), [("2", 1), ("3", 1)]], [[("3", 2), ("3", 3)], [("3", 4), ("3", 5)], [("3", 6), ("3", 7)], [("3", 6), ("3", 7)]]]
        self.deferred = [[P_(3), P_(5), P_(6), P_(7)], [[("2", 2), ("2", 3)], [("2", 4), ("2", 5)], [("2", 6), ("2", 7)], [("2", 6), ("2", 7)]]]
        if not c.get("defer", 1): now += self.deferred; self.deferred = []
        for jobs in now:
            self.clear_prep(jobs); self.clear_issue("clr2"); self.stream(1)
        self.stamp("hs")
        st(P["qg0"]); self.qg(0, 0, between=S(W))
        self.stamp()
        self.att(0, 0, pre_bar=lambda: (st(self.index_after("woA")), a.wait_tag("woA"), a.wait_tag("clr2")))
        self.stamp()
        self.qg(1, 0, between=S(W))
        self.stamp("qg10")
        st(P["wo"]); self.wo(0, 0, between=S(W))
        self.stamp("wo00")
        st(P["yg"]); self.yg(0, 0, between=S(W), pre_bar=lambda: a.wait_tag("wqB"))
        self.stamp("yg00")
        self.wq_pre(1); self.wq_main(0, 1, hoisted=True)
        if c.get("cpf") == 2: self.code_prefetch("L_pf1", "L_pf2")
        st(P["qg1"]); self.touch(0, 1, 2) if c.get('touch') == 2 else None; self.qg(0, 1, tail=True, between=lambda: self.stream(min(WE, p1 - self.pos), W=WE))
        a.raw("L_pf1:")
        self.stamp()
        assert self.pos >= self.index_after("woB")
        vb0 = self.index_after("woB")
        self.att(0, 1, hook1=lambda g: self.stream(min(1, p1 - self.pos), W=WE) if g % HE == HE - 1 else None,
                 hook2=lambda i: st(min(p1, vb0 + 3 * (i + 2) + WE - 3), W=WE), pre_bar=lambda: a.wait_tag("woB"), hoist=True, qaddr=True)
        assert self.pos == p1
        a.inject = None; self.limit = p2
        self.stamp("p1end")
        self.chain_idle(0, 1)
        bu = c.get("burst", (3, 0, 0, 0)); sh = c.get("sh", (2, 4, 3, 12))
        self.att(0, 2, hookm=lambda: self.stream(bu[0], paced=False), hoist=True, qaddr=True)
        self.stamp("att02")
        self.chain_idle(0, 2, burst=bu[1:], sh=sh)
        self.stamp("p2beg")
        self.limit = len(self.items)
        n0 = c.get("n0", 12); h2 = c.get("h2", 2); q0 = self.pos
        def hook03(g):
            self.stream(max(0, min(3, q0 + n0 - self.pos, p2 + 3 * g + 3 - self.pos)), paced=False)
        self.att(0, 3, hook1=hook03, hook2=lambda i: self.stream(1, paced=False) if i % h2 == h2 - 1 else None, qaddr=True)
        self.stamp("att03")
        a.raw("L_pf2:")
        P = c.get("P2", dict(att=8, wo=34, yg=62, qg=80))
        if c.get("inject", 1): a.inject = self.injector
        st(p2 + P.get("att", 0))
        self.att(1, 0, guard=True, hook2=lambda i: self.stream(2))
        self.stamp("att10")
        st(p2 + P["wo"]); self.stamp("a"); self.wo(1, 0, between=S(W)); self.stamp("wo10"); self.wo(0, 3, between=S(W)); self.stamp("wo03")
        st(p2 + P["yg"]); self.stamp("b"); self.yg(1, 0, between=S(W)); self.stamp("yg10")
        self.wq_pre(1); self.wq_main(1, 1, hoisted=True)
        if c.get("cpf") == 2: self.code_prefetch("L_pf3", "L_pf9")
        st(p2 + P["qg"]); self.stamp("c"); self.touch(1, 1, 2) if c.get('touch') == 2 else None; self.qg(1, 1, tail=True, between=lambda: self.stream(WE, W=WE))
        a.raw("L_pf3:")
        self.stamp("qg11")
        vb1 = p2 + 48
        self.att(1, 1, hook1=lambda g: self.stream(1, W=WE) if g % HE == HE - 1 else None,
                 hook2=lambda i: st(min(len(self.items), vb1 + 3 * (i + 2) + WE - 3), W=WE), hoist=True, qaddr=True)
        assert self.pos == len(self.items)
        a.inject = None
        self.stamp("p2end")
        self.chain_idle(1, 1)
        self.fine_on = c.get("fine") == 1
        self.fs("q_ready")
        self.att(1, 2, hoist=True, qaddr=True)
        self.stamp("att12")
        self.chain_idle(1, 2)
        self.fs("q_ready")
        if c.get("fine") == 2: self.fine_on = True; self.fs("q_ready")
        self.att(1, 3, hoist=True, qaddr=True)
        self.stamp("att13")
        self.chain_idle(1, 3)
        a.I("s_branch L_fin"); a.raw("L_out0:"); a.I("s_nop 7"); a.wait(vm=0, lg=0)
        self.yg(0, 3)
        a.raw("L_fin:"); a.I("s_nop 7")
        if c.get("hold"):
            a.raw("L_hold:"); a.I(f"s_memrealtime s[38:39]"); a.wait(lg=0)
            a.I(f"s_sub_u32 s38, s38, s{98 if c.get('holdat') else sST}\ns_cmp_lt_u32 s38, {c['hold']}\ns_cbranch_scc1 L_hold")
        self.fs("end")
        self.stamp("end")
        return self.finish()
    def finish(self):
        a = self.a; c = self.c
        if c.get("fine"):
            a.wait(lg=0)
            for i in range(self.nfine): a.I(f"v_writelane_b32 v{vStamp}, s{FS[i]}, {i}")
            print("fine stamps:", self.fnames)
        if c.get("diag"):
            a.I("s_sleep 100")
            a.I(f"v_writelane_b32 v{vStamp}, s{sRetry}, 62\nv_writelane_b32 v{vStamp}, s{sLocal}, 63")
            a.I(f"s_lshl_b32 s{sT0}, s{sWG}, 10\ns_lshl_b32 s{sT1}, s{sWave}, 8\ns_add_u32 s{sT0}, s{sT0}, s{sT1}\ns_add_u32 s{sT0}, s{sT0}, {DIAG}\nv_lshlrev_b32 v7, 2, v0")
            a.I(f"buffer_store_dword v{vStamp}, v7, {s4(WS)}, s{sT0} offen")
        if c.get("diag") and not c.get("fine"): print("stamps:", " ".join(self.snames))
        a.raw("L_end:"); a.raw("  s_endpgm")
        a.tail.append("L_pf9:\n  s_endpgm")
        body = a.text()
        return (HEAD + f"; @launch grid=(256,1,1) block=(256,1,1) lds={LDS_BYTES}\n"
                + f'.amdgcn_target "amdgcn-amd-amdhsa--gfx950"\n.text\n.globl {NAME}\n.p2align 8\n.type {NAME},@function\n{NAME}:\n'
                + body + f'.section .rodata,"a"\n.p2align 6\n.amdhsa_kernel {NAME}\n  .amdhsa_next_free_vgpr 512\n  .amdhsa_next_free_sgpr 102\n'
                + "  .amdhsa_accum_offset 256\n  .amdhsa_group_segment_fixed_size 0\n  .amdhsa_kernarg_size 104\n  .amdhsa_user_sgpr_count 2\n"
                + "  .amdhsa_user_sgpr_kernarg_segment_ptr 1\n  .amdhsa_system_sgpr_workgroup_id_x 1\n.end_amdhsa_kernel\n")

def generate(cfg): return Gen(cfg).build()
if __name__ == "__main__":
    cfg = eval(sys.argv[2]) if len(sys.argv) > 2 else {}
    open(sys.argv[1], "w").write(generate(cfg))
```

```python
import re

TRANS = ("v_exp_f32", "v_log_f32", "v_rcp_f32", "v_rsq_f32", "v_sqrt_f32", "v_sin_f32", "v_cos_f32")
REG_RE = re.compile(r"^(-?)(?:abs\()?([vas])(?:(\d+)|\[(\d+):(\d+)\])\)?$")

def regs_of(tok):
    tok = tok.strip()
    if tok in ("vcc",): return [("s", "vcc")]
    if tok in ("exec",): return [("s", "exec")]
    if tok == "m0": return [("s", "m0")]
    m = REG_RE.match(tok)
    if not m: return []
    k = m.group(2)
    if m.group(3) is not None: return [(k, int(m.group(3)))]
    return [(k, i) for i in range(int(m.group(4)), int(m.group(5)) + 1)]

class Inst:
    def __init__(self, text):
        self.text = text
        t = text.split(None, 1)
        self.op = t[0]
        rest = t[1] if len(t) > 1 else ""
        parts = []; depth = 0; cur = ""
        for ch in rest:
            if ch == "[": depth += 1
            if ch == "]": depth -= 1
            if ch == "," and depth == 0: parts.append(cur); cur = ""
            else: cur += ch
        parts.append(cur)
        self.mods = ""
        last = parts[-1].strip().split(None, 1)
        if last:
            parts[-1] = last[0]
            self.mods = last[1] if len(last) > 1 else ""
        self.ops = [p.strip() for p in parts if p.strip()]
        op = self.op
        self.is_mfma = op.startswith("v_mfma")
        self.is_valu = op.startswith("v_") and not self.is_mfma
        self.is_ds = op.startswith("ds_")
        self.is_vmem = op.startswith(("buffer_", "global_"))
        self.is_smem = op.startswith(("s_load", "s_memrealtime", "s_memtime"))
        self.is_salu = op.startswith("s_") and not self.is_smem
        self.is_dpp = "_dpp" in op
        self.is_trans = op.startswith(TRANS)
        self.is_lds_dma = self.is_vmem and (re.search(r"\blds\b", self.mods) is not None or "_lds_" in op)
        R = [regs_of(o) for o in self.ops]
        dst = []; src = []
        self.srcC = []; self.srcAB = []; self.data = []
        if self.is_mfma:
            dst = R[0]; self.srcAB = R[1] + R[2]; self.srcC = R[3]; src = self.srcAB + self.srcC
        elif op.startswith("v_permlane") and "swap" in op:
            dst = R[0] + R[1]; src = R[0] + R[1]
        elif op.startswith("v_cmp"):
            dst = R[0]; src = sum(R[1:], [])
        elif op.startswith(("v_add_co", "v_sub_co", "v_addc_co")):
            dst = R[0] + R[1]; src = sum(R[2:], [])
        elif self.is_valu:
            dst = R[0]; src = sum(R[1:], [])
            if op.startswith(("v_fmac", "v_writelane")) or self.is_dpp: src = src + R[0]
            if op.startswith("v_cndmask") and len(self.ops) == 3: src = src + [("s", "vcc")]
        elif self.is_ds:
            if op.startswith("ds_read"): dst = R[0]; src = sum(R[1:], [])
            else: src = sum(R, [])
        elif self.is_vmem:
            if self.is_lds_dma: src = sum(R, []) + [("s", "m0")]
            elif "load" in op: dst = R[0]; src = sum(R[1:], [])
            else:
                src = sum(R, [])
                if "store" in op and ("x4" in op or "x3" in op):
                    self.data = R[0] if op.startswith("buffer") else R[1]
        elif self.is_smem:
            dst = R[0]; src = sum(R[1:], [])
        elif self.is_salu:
            if op.startswith(("s_cmp", "s_cbranch", "s_branch", "s_waitcnt", "s_nop", "s_barrier", "s_sleep", "s_endpgm", "s_setprio")):
                src = sum(R, [])
                if "vcc" in op: src = src + [("s", "vcc")]
            else:
                dst = R[0]; src = sum(R[1:], [])
        self.dst = dst; self.src = src
        self.states = 1
        if op == "s_nop": self.states = int(self.ops[0]) + 1

class Fifo:
    def __init__(self, name, maxn):
        self.name = name; self.ent = []; self.done = 0; self.maxn = maxn
    def push(self, tag=None):
        self.ent.append([tag, True]); return len(self.ent) - 1
    def younger(self, idx):
        return sum(1 for e in self.ent[idx + 1:] if e[1])
    def need(self, idx):
        if idx < self.done: return None
        return min(self.younger(idx), self.maxn)
    def waited(self, n):
        c = 0
        for i in range(len(self.ent) - 1, -1, -1):
            if c >= n:
                self.done = max(self.done, i + 1); return
            if self.ent[i][1]: c += 1
    def outstanding(self):
        return len(self.ent) - self.done
    def last_tag(self, tag):
        for i in range(len(self.ent) - 1, -1, -1):
            if self.ent[i][0] == tag: return i
        raise KeyError(tag)

class Asm:
    def __init__(self):
        self.out = []
        self.vm = Fifo("vmcnt", 63); self.lg = Fifo("lgkmcnt", 15)
        self.pend = {}
        self.smem_pending = False
        self.clock = 0
        self.w_valu = {}; self.w_trans = {}; self.w_mfma = {}; self.r_mfmaC = {}; self.w_sgpr_valu = {}
        self.store_data = {}; self.w_m0 = -99
        self.mfma_dst_full = {}
        self.tail = []
        self.regions = []
        self.nlabel = 0
        self.nbytes = 0
        self.exec_full = True; self.scc_live = False; self.cyc = 0
        self.fill = []; self._in_fill = False
        self.inject = None; self.no_inject = 0; self._in_inject = False
    def label(self, p="L"):
        self.nlabel += 1; return f"{p}{self.nlabel}"
    def raw(self, text): self.out.append(text)
    def comment(self, text): self.out.append("; " + text)
    def _emit(self, ins):
        self.out.append("  " + ins.text); self.clock += ins.states
        op = ins.op
        if ins.is_mfma: self.cyc += 12
        elif op == "s_waitcnt": self.cyc += 70 if "lgkm" in ins.text else 4
        elif op == "s_barrier": self.cyc += 60
        elif ins.is_trans: self.cyc += 8
        elif ins.is_ds: self.cyc += 8
        else: self.cyc += 4.5 * ins.states
        if ins.ops and ins.ops[0] in ("exec", "exec_lo", "exec_hi") and ins.is_salu:
            self.exec_full = ins.text.replace(" ", "") == "s_mov_b64exec,-1"
        if op.startswith("s_cmp"): self.scc_live = True
        elif op.startswith(("s_cbranch_scc", "s_cselect")): self.scc_live = False
    def wait(self, vm=None, lg=None):
        parts = []
        if vm is not None: parts.append(f"vmcnt({vm})"); self.vm.waited(vm)
        if lg is not None:
            if self.smem_pending: lg = 0
            parts.append(f"lgkmcnt({lg})"); self.lg.waited(lg)
            if lg == 0: self.smem_pending = False
        if parts: self._emit(Inst("s_waitcnt " + " ".join(parts)))
    def wait_tag(self, tag):
        n = self.vm.need(self.vm.last_tag(tag))
        if n is not None: self.wait(vm=n)
    def pace(self, W):
        if self.vm.outstanding() > W - 1: self.wait(vm=W - 1)
    def I(self, text, tag=None):
        for t in text.split("\n"):
            t = t.strip()
            if t: self._I(t, tag)
    def _I(self, text, tag):
        ins = Inst(text)
        if ins.op == "s_waitcnt": raise ValueError("use wait()")
        vm = None; lg = None
        for r in ins.src + ins.dst:
            if r in self.pend:
                f, idx = self.pend[r]
                n = f.need(idx)
                if n is None: continue
                if f is self.vm: vm = n if vm is None else min(vm, n)
                else: lg = n if lg is None else min(lg, n)
        if vm is not None or lg is not None: self.wait(vm, lg)
        need = 0
        def req(table, regs, d):
            nonlocal need
            for r in regs:
                if r in table: need = max(need, d - (self.clock - table[r]))
        vsrc = [r for r in ins.src if r[0] in "va"]; vdst = [r for r in ins.dst if r[0] in "va"]
        ssrc = [r for r in ins.src if r[0] == "s"]
        if ins.is_dpp or "permlane" in ins.op: req(self.w_valu, vsrc, 2)
        if ins.op.startswith(("v_readlane", "v_readfirstlane")): req(self.w_valu, vsrc, 1)
        if ins.is_valu: req(self.w_trans, vsrc + vdst, 1)
        if ins.is_valu:
            req(self.w_sgpr_valu, ssrc, 4 if ins.op.startswith(("v_readlane", "v_writelane")) else 2)
        if ins.is_vmem: req(self.w_sgpr_valu, ssrc, 5)
        if ins.is_salu and not ins.op.startswith("s_cbranch"): req(self.w_sgpr_valu, ssrc, 1)
        if ins.is_mfma:
            req(self.w_valu, vsrc, 2)
            req(self.w_mfma, ins.srcAB, 8)
            if ins.srcC:
                key = (ins.srcC[0], len(ins.srcC), ins.op)
                for r in ins.srcC:
                    if r in self.w_mfma and self.mfma_dst_full.get(r) != key:
                        need = max(need, 6 - (self.clock - self.w_mfma[r]))
        else:
            if ins.is_valu or ins.is_vmem or ins.is_ds: req(self.w_mfma, vsrc + vdst, 8)
        if ins.is_valu:
            req(self.r_mfmaC, vdst, 3); req(self.store_data, vdst, 2)
        elif vdst: req(self.store_data, vdst, 1)
        if ins.is_lds_dma: need = max(need, 1 - (self.clock - self.w_m0))
        while need > 0 and self.fill and not self._in_fill and self.exec_full and not self.scc_live and not self.no_inject:
            c0 = self.clock; self.drain(1); need -= self.clock - c0
        while need > 0:
            k = min(need, 16); self._emit(Inst(f"s_nop {k-1}")); need -= k
        self._emit(ins)
        c = self.clock
        for r in ins.dst: self.pend.pop(r, None)
        if ins.is_valu:
            for r in ins.dst:
                if r[0] == "s": self.w_sgpr_valu[r] = c
                else:
                    self.w_valu[r] = c; self.w_mfma.pop(r, None)
                    if ins.is_trans: self.w_trans[r] = c
                    else: self.w_trans.pop(r, None)
        if ins.is_mfma:
            key = (ins.dst[0], len(ins.dst), ins.op)
            for r in ins.dst: self.w_mfma[r] = c; self.mfma_dst_full[r] = key; self.w_valu.pop(r, None)
            for r in ins.srcC: self.r_mfmaC[r] = c
        if ins.is_salu:
            for r in ins.dst:
                self.w_sgpr_valu.pop(r, None)
                if r == ("s", "m0"): self.w_m0 = c
        for r in ins.data: self.store_data[r] = c
        if ins.is_vmem:
            idx = self.vm.push(tag)
            assert self.vm.outstanding() <= 63, "vmcnt overflow"
            for r in ins.dst: self.pend[r] = (self.vm, idx)
        if ins.is_ds:
            idx = self.lg.push(tag)
            for r in ins.dst: self.pend[r] = (self.lg, idx)
        if ins.is_smem:
            idx = self.lg.push(tag); self.smem_pending = True
            for r in ins.dst: self.pend[r] = (self.lg, idx)
        if (self.inject and not self._in_inject and not self.no_inject and not self.regions and self.exec_full
                and not self.scc_live and (ins.is_valu or ins.is_mfma or ins.is_ds)):
            self._in_inject = True; self.inject(); self._in_inject = False
    def either(self, cond_true_text, cond_false_text, tag=None):
        l1 = self.label("Le"); l2 = self.label("Lf")
        mark = len(self.out)
        self._I(cond_true_text, tag)
        text = self.out.pop()
        self.scc_live = False
        self.out += [f"  s_cbranch_scc0 {l1}", text, f"{l2}:"]
        self.tail += [f"{l1}:", "  " + cond_false_text, f"  s_branch {l2}"]
    def skip_begin(self, branch):
        l = self.label("Ls")
        self._I(f"{branch} {l}", None)
        snap = [dict(t) for t in self._tables()]
        self.regions.append((l, len(self.vm.ent), len(self.lg.ent), self.vm.done, self.lg.done, self.clock, self.smem_pending, dict(self.pend), snap))
    def skip_end(self):
        l, nv, nl, dv, dl, clk, sp, pend, snap = self.regions.pop()
        for e in self.vm.ent[nv:]: e[1] = False
        for e in self.lg.ent[nl:]: e[1] = False
        self.vm.done = min(self.vm.done, dv); self.lg.done = min(self.lg.done, dl)
        self.smem_pending = self.smem_pending or sp
        for r, v in pend.items(): self.pend.setdefault(r, v)
        d = self.clock - clk
        for t, old in zip(self._tables(), snap):
            for r, c in old.items():
                if c + d > t.get(r, -10**9):
                    t[r] = c + d
                    if t is self.w_mfma: self.mfma_dst_full[r] = None
        if self.w_m0 <= clk: self.w_m0 += d
        self.out.append(f"{l}:")
    def _tables(self):
        return (self.w_valu, self.w_trans, self.w_mfma, self.r_mfmaC, self.w_sgpr_valu, self.store_data)
    def drain(self, n=10**9):
        sv = (self._in_fill, self._in_inject); self._in_fill = self._in_inject = True
        while n > 0 and self.fill: self._I(self.fill.pop(0), None); n -= 1
        self._in_fill, self._in_inject = sv
    def queue(self, fn):
        got = []; sv = self.I
        self.I = lambda text, tag=None: got.extend(t.strip() for t in text.split("\n") if t.strip())
        fn(); self.I = sv
        self.fill += got
    def barrier(self):
        if self.lg.outstanding() > 0 or self.smem_pending: self.wait(lg=0)
        if getattr(self, "nobar", 0) and self.inject: return
        self._I("s_barrier", None)
    def text(self):
        return "\n".join(self.out + self.tail) + "\n"
```

```python
import sys, math
from dsl import Asm

NAME = "interleave_layers__sliding_block_cached__gqa_block_cached__decode_kernel"
HEAD = open("interleave_layers__sliding_block_cached__gqa_block_cached__decode.s.ref").read().split("; Override")[0]

KV_BYTES = 2 * 32 * 4096 * 384
BSTR = 32 * 4096 * 384
HSTR = 4096 * 384
W_BYTES = 640 * 6144 * 2
WS_BYTES = 434115584
H1_I, H1_H, H1_S = 524288, 16384, 2048
H2 = 8 * H1_I; H2_I, H2_H, H2_S = 131072, 4096, 512
H3 = H2 + 8 * H2_I; H3_I, H3_S, H3_H = 65536, 8192, 256
DIAG = 8 << 20
WQ = (0, 61440); WO = (30720, 92160)
VS = 122880
EX = 147456
ATT = EX; STAT = EX + 6144; Y = EX + 6208; YSZ = 1280; XROW = Y + 2 * YSZ; ONES = XROW + 1280; QB = ONES + 160; CT = QB + 768
JUNK = CT + 2048
LDS_BYTES = JUNK + 256
assert LDS_BYTES <= 163840
sWG, sWave = 2, 3
KA, VA, KB, VB, WS, WT, XO = 4, 8, 12, 16, 20, 24, 28
pX, pKA, pVA, pWQA, pWOA, pKB, pVB, pWQB, pWOB, pOUT, pDBG, pWS = 32, 34, 36, 38, 40, 44, 46, 48, 50, 52, 54, 56
sH, sS, sLocal, sOff, sRetry, sT0, sT1, sT2 = 58, 59, 60, 61, 62, 63, 64, 65
sH1own, sH1grp, sH2own, sH2grp, sH3own, sH3grp, sOffG, sOffP = 66, 67, 68, 69, 70, 71, 72, 73
mODD, mHI8, mHI32, mWOST, mRG1, mRG2, mRG3, m60 = 74, 76, 78, 80, 82, 84, 86, 88
sXcc, sWqRow, sWoRow, sLdsW, sLdsVS = 90, 91, 92, 93, 94
sST = 96; m40 = 98; mBIT1 = 100; mW3 = 42; mN10 = 32; sW2 = 95; sOffG2 = 35; sClr = 0; sM = 34; sOffW = 76; sRet = 78; mL63 = 36
FS = [38, 40, 44, 46, 48, 50, 52, 54, 56, 24, 26, 88, 90, 92]
def sp(n): return f"s[{n}:{n+1}]"
def s4(n): return f"s[{n}:{n+3}]"
def v2(n): return f"v[{n}:{n+1}]"
def v4(n): return f"v[{n}:{n+3}]"
vLane, vKoff, vVoff, vMask = 0, 1, 2, 3
vQ, vACC, vU = 12, 24, 36
vStamp = 55
QUADS = [f"a[{i}:{i+3}]" for i in range(0, 256, 4)] + [f"v[{i}:{i+3}]" for i in range(56, 256, 4)]
SLOT = {}
_names = [("KA", i) for i in range(4)] + [("VA", 0), ("VA", 1)] + [("KB", i) for i in range(16)] + [("VB", i) for i in range(16)]
for i, n in enumerate(_names): SLOT[n] = QUADS[3 * i:3 * i + 3]
assert SLOT[("VB", 15)][2] == "v[252:255]"
vWq0, vWq1, vWo = 252, 253, 254
SCALE = 192 ** -0.5 * math.log2(math.e)
import struct
def f32(x): return "0x%08x" % struct.unpack("<I", struct.pack("<f", x))[0]

class Gen:
    def __init__(self, cfg):
        self.c = cfg; self.a = Asm(); self.items = []; self.pos = 0; self.nstamp = 0
        self.W = cfg.get("W", 10); self.limit = 10**9; self.npage = 0; self.hot = []; self.inl = False; self.boost = 0; self.last_cyc = 0; self.fine_on = False; self.nfine = 0; self.fnames = []; self.snames = ['start']
    def add_w(self, name, ptr, kind, ty):
        pol = self.c.get("wpol", "nt")
        def mk(k):
            def f():
                a = self.a
                if k == 0:
                    off = sWqRow if kind == "q" else sWoRow
                    a.I(f"s_add_u32 s{WT}, s{ptr}, s{off}\ns_addc_u32 s{WT+1}, s{ptr+1}, 0\ns_sub_u32 s{WT+2}, {W_BYTES}, s{off}")
                base = (WQ if kind == "q" else WO)[ty]
                a.I(f"s_add_u32 m0, s{sLdsW}, {base + 960 * k}")
                if kind == "q": so = 5 * (k // 2) * 12288; vr = vWq1 if k & 1 else vWq0
                else: so = 6 * k * 1280; vr = vWo
                a.I(f"s_mov_b32 s{sOff}, {so}\ns_mov_b64 exec, {sp(m60)}")
                a.I(f"buffer_load_dwordx4 v{vr}, {s4(WT)}, s{sOff} offen {pol} lds", tag=name)
                a.I("s_mov_b64 exec, -1")
            return f
        self.items += [(name, mk(k)) for k in range(8)]
    def add_kv(self, name, b, g):
        srd = {"KA": KA, "VA": VA, "KB": KB, "VB": VB}[name]
        isK = name[0] == "K"; vo = vKoff if isK else vVoff; step = 128 if isK else 256
        pol = self.c.get("kvpol", "nt")
        def mk(c):
            def f():
                a = self.a
                if (name, g) in SLOT:
                    if c == 0: a.I(f"s_mov_b32 s{sOff}, {b * BSTR + g * 3072}")
                    elif self.off_val != (name, b, g): a.I(f"s_mov_b32 s{sOff}, {b * BSTR + g * 3072}")
                    self.off_val = (name, b, g)
                    a.I(f"buffer_load_dwordx4 {SLOT[(name, g)][c]}, v{vo}, {s4(srd)}, s{sOff} offen offset:{step * c} {pol}")
                else:
                    self.off_val = None
                    a.I(f"s_add_u32 m0, s{sLdsVS}, {(g - 2) * 3072 + 1024 * c}\ns_mov_b32 s{sOff}, {b * BSTR + g * 3072 + step * c}")
                    a.I(f"buffer_load_dwordx4 v{vo}, {s4(srd)}, s{sOff} offen {pol} lds", tag=("VS", b, g))
            return f
        self.items += [((name, b, g), mk(c)) for c in range(3)]
    def stream(self, n, paced=True, W=None):
        for _ in range(n):
            if self.pos >= len(self.items): return
            assert self.pos < self.limit, (self.pos, self.limit)
            if paced: self.a.pace((W or self.W) + (self.c.get("B", 0) if self.pos < self.boost else 0))
            sv = self.a._in_inject; self.a._in_inject = True
            self.items[self.pos][1](); self.pos += 1; self.last_cyc = self.a.cyc
            if self.c.get("diag") == 3 and self.pos % 5 == 0 and self.pos > 10: self.stamp("pos")
            self.a._in_inject = sv
    def injector(self):
        a = self.a
        if self.pos < self.limit and a.cyc - self.last_cyc >= self.c.get("T", 330) and a.vm.outstanding() < self.W + self.c.get("XW", 6) + (self.c.get("B", 0) if self.pos < self.boost else 0):
            self.stream(1, paced=False)
    def stream_to(self, upto, **k): self.stream(max(0, upto - self.pos), **k)
    def index_after(self, name):
        return max(i for i, it in enumerate(self.items) if it[0] == name) + 1
    def fs(self, name):
        if not self.fine_on or self.nfine >= len(FS): return
        self.a.I(f"{'s_memrealtime' if self.c.get('rt') else 's_memtime'} {sp(FS[self.nfine])}"); self.nfine += 1; self.fnames.append(name)
    def page(self):
        if not self.c.get("pages", 1): return
        k = self.npage; self.npage += 1
        self.a.I(f"s_branch Lpg{k}"); self.a.raw(f".p2align 12\nLst{k}:\n  s_setpc_b64 {sp(sRet)}\nLpg{k}:")
    def warm(self, ks):
        if not (self.c.get("pages", 1) and self.c.get("warm", 1)): return
        a = self.a
        a.I(f"s_cmp_lg_u32 s{sWave}, 3"); a.skip_begin("s_cbranch_scc1")
        for k in ks: a.I(f"s_call_b64 {sp(sRet)}, Lst{k}")
        a.skip_end()
    def check_slot(self, name, b, g):
        assert self.index_after((name, b, g)) <= self.pos, ("not issued", name, b, g, self.pos)
        if b == 0: assert self.index_after((name, 1, g)) - 3 >= self.pos, ("overwritten", name, g)
    def stamp(self, name=''):
        if self.c.get("marks"): self.a.raw(f"M_{name}_{len(self.snames)}:")
        if self.c.get("holdat") == name:
            self.a.I("s_memrealtime s[98:99]"); self.a.wait(lg=0)
        self.snames.append(f'{name}@{self.pos}')
        if not self.c.get("diag") or self.c.get("fine"): return
        if self.c["diag"] == 3 and name not in ("pos", "end"): self.snames.pop(); return
        if self.c["diag"] == 2 and name not in self.c.get("only", ("p1end", "p2beg", "p2end", "end")): self.snames.pop(); return
        a = self.a
        a.I(f"s_memrealtime {sp(sST)}"); a.wait(lg=0)
        a.I(f"v_writelane_b32 v{vStamp}, s{sST if not self.c.get('rcount') else sRetry}, {self.nstamp}"); self.nstamp += 1
    def publish(self, text, local_ok, tag="pub"):
        a = self.a
        if local_ok and self.c.get("local", True):
            a.I(f"s_cmp_lg_u32 s{sLocal}, 0")
            a.either(text.format(pol=""), text.format(pol="sc1"), tag=tag)
        else: a.I(text.format(pol="sc1"), tag=tag); self.boost = self.pos + self.c.get("KB", 14)
    def gather(self, loads, regs, tmp, between=None, emask=None, sleep=None, first=False, spec=()):
        a = self.a
        if first and between: between(); between = None
        if emask: loads = [f"s_mov_b64 exec, {emask}"] + loads + ["s_mov_b64 exec, -1"]
        for t in loads: a.I(t, tag="gat")
        last = len(a.vm.ent) - 1
        if emask or self.c.get("BG"): self.boost = self.pos + self.c.get("KB", 14)
        if between: between()
        self.fs("issued")
        n = a.vm.need(last)
        if n is not None: a.wait(vm=n)
        chk = a.label("Lc"); rt = a.label("Lr")
        a.raw(f"{chk}:"); a.no_inject += 1
        r = list(regs); ops = []
        ops.append(f"v_max3_u32 v{tmp}, v{r[0]}, v{r[1]}, v{r[2]}"); r = r[3:]
        while len(r) >= 2: ops.append(f"v_max3_u32 v{tmp}, v{tmp}, v{r[0]}, v{r[1]}"); r = r[2:]
        if r: ops.append(f"v_max_u32 v{tmp}, v{tmp}, v{r[0]}")
        ops.append(f"v_cmp_eq_u32 vcc, -1, v{tmp}")
        spec = list(spec)
        k = -(-len(ops) // max(1, len(spec)))
        while ops or spec:
            if spec: a.I(spec.pop(0))
            for t in ops[:k]: a.I(t)
            ops = ops[k:]
        self.inl = self.c.get("inl", 0) and not a.inject
        if not (self.c.get("novalid") and a.inject): a.I(f"s_cbranch_vccz {rt}k" if self.inl else f"s_cbranch_vccnz {rt}")
        if self.c.get("narrow", 3) & (2 if emask else 1):
            loads = ["s_mov_b64 exec, vcc"] + [t for t in loads if not t.startswith("s_mov")] + ["s_mov_b64 exec, -1"]
        self.retry_block(rt, chk, loads, sleep); a.no_inject -= 1
        self.fs("valid")
    def lsleep(self): return None if self.a.inject else self.c.get('lsleep', 1)
    def retry_block(self, rt, chk, loads, sleep=None):
        a = self.a
        if sleep is None: sleep = self.c.get("sleep", 1)
        blk = ([f"  s_sleep {sleep}"] if sleep else []) + ["  " + t for t in loads]
        blk += [f"  s_add_u32 s{sRetry}, s{sRetry}, 1", f"  s_cmp_gt_u32 s{sRetry}, {self.c.get('spin', 200000)}", "  s_cbranch_scc1 L_end",
                "  s_waitcnt vmcnt(0)", f"  s_branch {chk}"]
        if self.inl: a.out += blk + [f"{rt}k:"]
        elif a.inject: a.tail += [f"{rt}:"] + blk
        else: self.hot += [f"{rt}:"] + blk
        self.inl = False
    def setup(self):
        a = self.a; I = a.I
        I(f"s_cmp_ge_u32 s{sWG}, 256\ns_cbranch_scc1 L_end")
        I(f"s_load_dwordx16 s[32:47], s[0:1], 0\ns_load_dwordx8 s[48:55], s[0:1], 64\ns_load_dwordx2 s[56:57], s[0:1], 96")
        if self.c.get("diag") or self.c.get("hold"): I(f"s_memrealtime {sp(sST)}")
        I(f"v_lshrrev_b32 v8, 6, v0\nv_and_b32 v0, 63, v0\nv_readfirstlane_b32 s{sWave}, v8")
        I(f"s_and_b32 s{sT0}, s{sWG}, 7\ns_lshl_b32 s{sT0}, s{sT0}, 2\ns_lshr_b32 s{sT1}, s{sWG}, 3\ns_and_b32 s{sT1}, s{sT1}, 3\ns_add_u32 s{sH}, s{sT0}, s{sT1}\ns_lshr_b32 s{sS}, s{sWG}, 5")
        I(f"v_mul_u32_u24 v8, 43, v0\nv_lshrrev_b32 v8, 10, v8\nv_mul_u32_u24 v9, 24, v8\nv_sub_u32 v9, v0, v9\nv_mul_u32_u24 v8, 0x3000, v8\nv_lshl_add_u32 v{vWq0}, v9, 4, v8")
        I(f"v_add_u32 v10, 60, v0\nv_mul_u32_u24 v8, 43, v10\nv_lshrrev_b32 v8, 10, v8\nv_mul_u32_u24 v9, 24, v8\nv_sub_u32 v9, v10, v9\nv_mul_u32_u24 v8, 0x3000, v8\nv_lshl_add_u32 v{vWq1}, v9, 4, v8")
        I(f"s_mul_i32 s{sT0}, s{sS}, {80 * 12288}\ns_mul_i32 s{sT1}, s{sWave}, {20 * 12288}\ns_add_u32 s{sT0}, s{sT0}, s{sT1}\ns_mul_i32 s{sT1}, s{sH}, 384\ns_add_u32 s{sWqRow}, s{sT0}, s{sT1}")
        I(f"s_mul_i32 s{sT0}, s{sH}, {192 * 1280}\ns_mul_i32 s{sT1}, s{sWave}, {48 * 1280}\ns_add_u32 s{sT0}, s{sT0}, s{sT1}\ns_mul_i32 s{sT1}, s{sS}, 160\ns_add_u32 s{sWoRow}, s{sT0}, s{sT1}")
        I(f"s_mul_i32 s{sLdsW}, s{sWave}, 7680\ns_mov_b32 s{m60}, -1\ns_mov_b32 s{m60+1}, 0x0fffffff\ns_mov_b32 s{WT+3}, 0x20000\ns_mov_b32 s{sRetry}, 0")
        I(f"v_and_b32 v8, 15, v0\nv_lshrrev_b32 v9, 4, v0")
        I(f"v_lshrrev_b32 v10, 1, v8\nv_mul_u32_u24 v10, 384, v10\nv_and_b32 v11, 1, v8\nv_lshl_add_u32 v11, v9, 1, v11\nv_lshl_add_u32 v{vKoff}, v11, 4, v10")
        I(f"v_mul_u32_u24 v10, 768, v9\nv_lshl_add_u32 v{vVoff}, v8, 4, v10")
        I(f"s_mul_i32 s{sT0}, s{sH}, {HSTR}\ns_mul_i32 s{sT1}, s{sS}, {128 * 384}\ns_add_u32 s{sT1}, s{sT1}, s{sT0}\ns_mul_i32 s{sT2}, s{sWave}, {32 * 384}\ns_add_u32 s{sT1}, s{sT1}, s{sT2}\ns_add_u32 s{sOffG}, s{sT1}, {3072 * 384}")
        I(f"s_mul_i32 s{sT1}, s{sS}, {512 * 384}\ns_add_u32 s{sT1}, s{sT1}, s{sT0}\ns_mul_i32 s{sT2}, s{sWave}, {128 * 384}\ns_add_u32 s{sOffP}, s{sT1}, s{sT2}")
        I(f"s_mul_i32 s{sLdsVS}, s{sWave}, 6144\ns_add_u32 s{sLdsVS}, s{sLdsVS}, {VS}")
        I(f"s_mov_b32 s{XO+2}, 2560\ns_mov_b32 s{XO+3}, 0x20000\ns_mul_i32 s{sT0}, s{sS}, 160\nv_lshlrev_b32 v7, 2, v0\nv_min_u32 v7, 156, v7")
        for srd, o in ((KA, sOffG), (VA, sOffG), (KB, sOffP), (VB, sOffP)): I(f"s_sub_u32 s{srd+2}, {KV_BYTES}, s{o}\ns_mov_b32 s{srd+3}, 0x20000")
        I(f"s_mov_b32 s{WS+2}, {WS_BYTES}\ns_mov_b32 s{WS+3}, 0x20000")
        I(f"s_mul_i32 s{sH1grp}, s{sH}, {H1_H}\ns_mul_i32 s{sT1}, s{sS}, {H1_S}\ns_add_u32 s{sH1own}, s{sH1grp}, s{sT1}")
        I(f"s_mul_i32 s{sH2grp}, s{sH}, {H2_H}\ns_add_u32 s{sH2grp}, s{sH2grp}, {H2}\ns_mul_i32 s{sT1}, s{sS}, {H2_S}\ns_add_u32 s{sH2own}, s{sH2grp}, s{sT1}")
        I(f"s_mul_i32 s{sH3grp}, s{sS}, {H3_S}\ns_add_u32 s{sH3grp}, s{sH3grp}, {H3}\ns_mul_i32 s{sT1}, s{sH}, {H3_H}\ns_add_u32 s{sH3own}, s{sH3grp}, s{sT1}")
        self.clear_prep([[("P", 0)], [("C", 0)], [("P", 4)], [("2", 0), ("3", 0)]])
        a.wait(lg=0)
        if self.c.get("diag"): I(f"v_mov_b32 v{vStamp}, 0\nv_writelane_b32 v{vStamp}, s{sST}, 0"); self.nstamp = 1
        def srds(l):
            for srd, p, o in l: I(f"s_add_u32 s{srd}, s{p}, s{o}\ns_addc_u32 s{srd+1}, s{p+1}, 0")
        def small():
            I(f"s_mov_b32 s{WS}, s{pWS}\ns_mov_b32 s{WS+1}, s{pWS+1}\ns_mov_b32 s{XO}, s{pX}\ns_mov_b32 s{XO+1}, s{pX+1}")
            self.clear_issue("clr")
            I(f"buffer_load_dword v12, v7, {s4(XO)}, s{sT0} offen\nbuffer_load_dword v13, v7, {s4(XO)}, s{sT0} offen offset:1280")
        n0, n1 = self.c.get("I", (12, 28))
        srds([(KA, pKA, sOffG)])
        self.stream(min(n0, 12), paced=False)
        srds([(VA, pVA, sOffG), (KB, pKB, sOffP), (VB, pVB, sOffP)])
        self.stream_to(n0, paced=False)
        small()
        self.stream_to(n1, paced=False)
        if self.c.get("st0"):
            self.stamp("end")
            n = len(a.vm.ent)
            for k in (1, 3, 6, 9, 12, 15, 18, n): a.wait(vm=n - k); self.stamp("end")
        if self.c.get("cpf") == 1: self.code_prefetch("L_pf0", "L_pf9")
        I(f"v_mul_u32_u24 v10, 26, v0\nv_lshrrev_b32 v10, 8, v10\nv_mul_u32_u24 v11, 10, v10\nv_sub_u32 v11, v0, v11\nv_mul_u32_u24 v10, 1280, v10\nv_lshl_add_u32 v{vWo}, v11, 4, v10")
        I("v_and_b32 v10, 1, v0\nv_cmp_eq_u32 vcc, 1, v10\nv_mov_b32 v11, 0xffff\nv_mov_b32 v20, 0xffff0000\nv_cndmask_b32 v11, v11, v20, vcc\nv_bfe_u32 v10, v0, 1, 2")
        for j in range(4): I(f"v_cmp_eq_u32 vcc, {j}, v10\nv_cndmask_b32 v{vMask+j}, 0, v11, vcc")
        for m, lo, hi in ((mODD, 0xaaaaaaaa, 0xaaaaaaaa), (mRG1, 0xffff0000, 0), (mRG2, 0, 0xffff), (mRG3, 0, 0xffff0000), (mWOST, 0x5555, 0x5555), (mN10, 0x03ff03ff, 0x03ff03ff), (mBIT1, 0xcccccccc, 0xcccccccc), (mL63, 0, 0x80000000)):
            I(f"s_mov_b32 s{m}, {lo:#x}\ns_mov_b32 s{m+1}, {hi:#x}")
        I(f"s_cmp_eq_u32 s{sWave}, 3\ns_cselect_b64 {sp(mW3)}, -1, 0\ns_min_u32 s{sW2}, s{sWave}, 2")
        I(f"s_getreg_b32 s{sXcc}, hwreg(HW_REG_XCC_ID, 0, 4)\ns_add_u32 s{sXcc}, s{sXcc}, 1")
        I(f"s_mul_i32 s{sT0}, s{sWave}, 160\ns_add_u32 s{sT0}, s{sT0}, {XROW}\nv_add_u32 v10, s{sT0}, v7\nv_add_u32 v11, {ONES}, v7\nv_mov_b32 v20, 0x3f803f80")
        I("ds_write_b32 v11, v20\nds_write_b32 v10, v12\nds_write_b32 v10, v13 offset:640")
        I(f"s_mov_b32 s{XO}, s{pOUT}\ns_mov_b32 s{XO+1}, s{pOUT+1}")
    def clear_prep(self, jobs):
        I = self.a.I
        I("v_mov_b32 v16, -1\nv_mov_b32 v17, -1\nv_mov_b32 v18, -1\nv_mov_b32 v19, -1\nv_lshlrev_b32 v14, 4, v0")
        def seg(k, inst, hi):
            if k in "PC": return sH1own, inst * H1_I + (1024 if k == "C" else 0), -1
            if k == "2": return sH2own, inst * H2_I - 512 * hi, -1
            return sH3own, inst * H3_I - 512 * hi, 0xfff
        for w, job in enumerate(jobs):
            lo = seg(*job[0], 0); hi = seg(*job[-1], 1)
            for (r, o, m), dst, md in ((lo, sT1, sClr), (hi, sT2, sClr + 1)):
                if w == 0: I(f"s_add_u32 s{dst}, s{r}, {o & 0xffffffff}\ns_mov_b32 s{md}, {m}")
                else: I(f"s_add_u32 s{sOff}, s{r}, {o & 0xffffffff}\ns_cmp_eq_u32 s{sWave}, {w}\ns_cselect_b32 s{dst}, s{sOff}, s{dst}\ns_cselect_b32 s{md}, {m}, s{md}")
        self.off_val = None
        I(f"v_mov_b32 v15, s{sT1}\nv_mov_b32 v20, s{sT2}\nv_cmp_lt_u32 vcc, 31, v0\nv_cndmask_b32 v15, v15, v20, vcc\nv_add_u32 v15, v15, v14")
    def clear_issue(self, tag, local_ok=False):
        I = self.a.I
        I(f"s_mov_b64 exec, {sp(sClr)}")
        self.publish(f"buffer_store_dwordx4 v[16:19], v15, {s4(WS)}, 0 offen {{pol}}", local_ok, tag=tag)
        I("s_mov_b64 exec, -1")
    def tlb_touch(self):
        a = self.a; I = a.I
        ent = []
        for p, o, span in ((pWQA, sWqRow, 20 * 12288), (pKA, sOffG, 12288), (pVA, sOffG, 12288), (pWOA, sWoRow, 48 * 1280), (pWQB, sWqRow, 20 * 12288),
                           (pKB, sOffP, 49152), (pWOB, sWoRow, 48 * 1280), (pVB, sOffP, 49152)):
            for b in range(2 if o in (sOffG, sOffP) else 1): ent.append((p, o, b * BSTR))
        if self.c["tlb"] > 1:
            ent += [(pWS, None, 0), (pWS, None, 2 << 20), (pWS, None, 4 << 20), (pDBG, None, 0), (pOUT, None, 0)]
        for i, (p, o, c) in enumerate(ent):
            if o is None: I(f"s_add_u32 s{sT1}, s{p}, {c}\ns_addc_u32 s{sT2}, s{p+1}, 0")
            else:
                I(f"s_add_u32 s{sT1}, s{p}, s{o}\ns_addc_u32 s{sT2}, s{p+1}, 0")
                if c: I(f"s_add_u32 s{sT1}, s{sT1}, {c}\ns_addc_u32 s{sT2}, s{sT2}, 0")
            if i == 0: I(f"v_mov_b32 v14, s{sT1}\nv_mov_b32 v15, s{sT2}")
            else: I(f"v_writelane_b32 v14, s{sT1}, {i}\nv_writelane_b32 v15, s{sT2}, {i}")
        I(f"s_mov_b64 exec, {(1 << len(ent)) - 1}\nglobal_load_dword v250, v[14:15], off nt\ns_mov_b64 exec, -1")
    def code_prefetch(self, lo, hi):
        a = self.a; I = a.I
        l = a.label("Lp")
        I(f"s_getpc_b64 {sp(sT1)}"); a.raw(f"{l}:")
        I(f"s_add_u32 s{sT1}, s{sT1}, {lo}-{l}\ns_addc_u32 s{sT2}, s{sT2}, 0")
        I(f"s_lshr_b32 s{sT0}, s{sWG}, 3\ns_lshl_b32 s{sT0}, s{sT0}, 2\ns_add_u32 s{sT0}, s{sT0}, s{sWave}\ns_lshl_b32 s{sT0}, s{sT0}, 13")
        I(f"v_lshl_add_u32 v30, v0, 7, s{sT0}\nv_cmp_gt_u32 vcc, {hi}-{lo}, v30\ns_mov_b32 m0, {JUNK}")
        I("s_and_b64 exec, vcc, -1"); a.skip_begin("s_cbranch_execz")
        I(f"global_load_lds_dword v30, {sp(sT1)}")
        a.skip_end()
        I("s_mov_b64 exec, -1")
    def arrive(self):
        a = self.a; I = a.I
        I(f"s_cmp_lg_u32 s{sWave}, 0"); a.skip_begin("s_cbranch_scc1")
        I(f"s_and_b32 s{sT0}, s{sWG}, 3\ns_lshl_b32 s{sT0}, s{sT0}, 3\ns_lshl_b32 s{sT0}, s{sXcc}, s{sT0}\ns_and_b32 s{sT1}, s{sWG}, 0xfc")
        I(f"v_mov_b32 v8, s{sT1}\nv_mov_b32 v9, s{sT0}\ns_mov_b64 exec, 1")
        I(f"global_atomic_add v8, v9, {sp(pDBG)} sc1\ns_mov_b64 exec, -1")
        a.skip_end()
    def handshake(self, between):
        a = self.a; I = a.I
        I("v_lshlrev_b32 v7, 2, v0")
        ld = f"global_load_dword v8, v7, {sp(pDBG)} sc1"
        I(ld); last = len(a.vm.ent) - 1
        between()
        n = a.vm.need(last)
        if n is not None: a.wait(vm=n)
        chk = a.label("Lc"); rt = a.label("Lr")
        a.raw(f"{chk}:"); a.no_inject += 1
        I("v_subrev_u32 v9, 0x01010101, v8\nv_not_b32 v10, v8\nv_and_b32 v9, v9, v10\nv_and_b32 v9, 0x80808080, v9\nv_cmp_ne_u32 vcc, 0, v9")
        I(f"s_cbranch_vccnz {rt}")
        self.retry_block(rt, chk, [ld]); a.no_inject -= 1
        I(f"s_and_b32 s{sT0}, s{sWG}, 3\ns_lshl_b32 s{sT0}, s{sT0}, 3\nv_lshrrev_b32 v8, s{sT0}, v8\nv_and_b32 v8, 0xff, v8")
        I(f"s_bfe_u32 s{sT0}, s{sWG}, 0x30002\nv_and_b32 v9, 7, v0\nv_cmp_eq_u32 {sp(sT1)}, s{sT0}, v9\nv_cmp_ne_u32 vcc, s{sXcc}, v8")
        I(f"s_and_b64 vcc, vcc, {sp(sT1)}\ns_cmp_eq_u64 vcc, 0\ns_cselect_b32 s{sLocal}, 1, 0")
    WQB = [(24, 28, 32), (34, 38, 42), (44, 48, 52)]
    def wq_pre(self, ty):
        a = self.a; I = a.I
        I(f"v_bfe_u32 v7, v0, 2, 2\nv_lshrrev_b32 v9, 4, v0\nv_lshl_add_u32 v8, v9, 3, v7\nv_lshl_add_u32 v7, v9, 2, v7")
        I(f"v_and_b32 v9, 3, v0\nv_lshlrev_b32 v9, 3, v9\ns_mul_i32 s{sT0}, s{sWave}, 96\ns_add_u32 s{sT0}, s{sT0}, {WQ[ty]}\nv_add_u32 v9, s{sT0}, v9")
        I(f"s_movk_i32 s{sT0}, 384\nv_mad_u32_u24 v8, v8, s{sT0}, v9\nv_mad_u32_u24 v7, v7, s{sT0}, v9")
        for T, (b0, b1, b2) in enumerate(self.WQB):
            for t, r in ((0, b0), (1, b1)):
                I(f"ds_read_b64_tr_b16 {v2(r)}, v8 offset:{12288 * t + 32 * T}\nds_read_b64_tr_b16 {v2(r+2)}, v8 offset:{12288 * t + 1536 + 32 * T}")
            I(f"ds_read_b64_tr_b16 {v2(b2)}, v7 offset:{24576 + 32 * T}")
    def wq_addr(self, b, L):
        I = self.a.I
        I(f"s_mul_i32 s{sT0}, s{sWave}, 160\ns_add_u32 s{sT0}, s{sT0}, {XROW + 640 * b}\nv_mov_b32 v22, s{sT0}\nv_mov_b32 v23, {ONES}")
        I(f"v_cndmask_b32 v23, v22, v23, {sp(mODD)}\nv_lshrrev_b32 v21, 4, v0\nv_lshl_add_u32 v22, v21, 4, v23\nv_lshl_add_u32 v23, v21, 3, v23")
    def wq_main(self, b, L, local_ok=True, hoisted=False, hoist=False):
        a = self.a; I = a.I; inst = 4 * b + L; needC = inst < 2
        if not hoisted: self.wq_addr(b, L)
        I("ds_read_b128 v[12:15], v22\nds_read_b128 v[16:19], v22 offset:64\nds_read_b64 v[20:21], v23 offset:128")
        I(f"s_lshl_b32 s{sT0}, s{sWave}, 8\nv_lshl_add_u32 v7, v0, 2, s{sT0}\ns_add_u32 s{sOffP}, s{sH1own}, {inst * H1_I}")
        if hoist: self.qg_addr(b, L)
        D = [8, 24, 28]
        for T, (b0, b1, b2) in enumerate(self.WQB):
            I(f"v_mfma_f32_16x16x32_bf16 {v4(D[T])}, v[12:15], {v4(b0)}, 0")
            I(f"v_mfma_f32_16x16x32_bf16 {v4(D[T])}, v[16:19], {v4(b1)}, {v4(D[T])}")
        I("v_mfma_f32_16x16x32_bf16 v[34:37], v[12:15], v[12:15], 0\nv_mfma_f32_16x16x32_bf16 v[34:37], v[16:19], v[16:19], v[34:37]")
        for T, (b0, b1, b2) in enumerate(self.WQB):
            I(f"v_mfma_f32_16x16x16_bf16 {v4(D[T])}, v[20:21], {v2(b2)}, {v4(D[T])}")
        I("v_mfma_f32_16x16x16_bf16 v[34:37], v[20:21], v[20:21], v[34:37]")
        for r in range(2 if needC else 1):
            I(f"v_cndmask_b32 v{22+r}, v{8+r}, v{24+r}, {sp(mRG1)}\nv_cndmask_b32 v{22+r}, v{22+r}, v{28+r}, {sp(mRG2)}\nv_cndmask_b32 v{22+r}, v{22+r}, v34, {sp(mRG3)}\nv_min_u32 v{22+r}, -2, v{22+r}")
            self.publish(f"buffer_store_dword v{22+r}, v7, {s4(WS)}, s{sOffP} offen offset:{1024 * r} {{pol}}", local_ok)
    def qg_addr(self, b, L):
        I = self.a.I
        I(f"v_and_b32 v23, 15, v0\nv_lshrrev_b32 v54, 4, v0\nv_lshlrev_b32 v54, 11, v54\nv_lshl_add_u32 v54, v23, 4, v54\ns_lshl_b32 s{sT0}, s{sWave}, 8")
        I(f"s_add_u32 s{sOffG}, s{sH1grp}, s{sT0}\ns_add_u32 s{sOffG}, s{sOffG}, {(4 * b + L) * H1_I}\ns_add_u32 s{sOffG2}, s{sOffG}, {4 * H1_S}")
    def qg(self, b, L, between=None, hoisted=False, after=None, tail=False):
        a = self.a; I = a.I; inst = 4 * b + L; needC = inst < 2; ty = L & 1
        if not hoisted: self.qg_addr(b, L)
        loads = [f"buffer_load_dwordx4 v[12:15], v54, {s4(WS)}, s{sOffG} offen sc1", f"buffer_load_dwordx4 v[16:19], v54, {s4(WS)}, s{sOffG2} offen sc1"]
        if needC: loads += [f"buffer_load_dwordx4 v[20:23], v54, {s4(WS)}, s{sOffG} offen offset:1024 sc1", f"buffer_load_dwordx4 v[24:27], v54, {s4(WS)}, s{sOffG2} offen offset:1024 sc1"]
        def pre():
            I(f"v_and_b32 v32, 15, v0\nv_lshrrev_b32 v33, 4, v0\nv_and_b32 v34, 1, v33\nv_lshlrev_b32 v34, 1, v34\nv_lshrrev_b32 v28, 1, v33\nv_or_b32 v34, v34, v28\nv_lshl_add_u32 v34, v32, 2, v34")
            I(f"s_mul_i32 s{sT0}, s{sWave}, 96\ns_add_u32 s{sT0}, s{sT0}, {QB + 384 * b}\nv_lshl_add_u32 v34, v34, 1, s{sT0}")
            I(f"s_lshl_b32 s{sT0}, s{sWave}, 8\ns_add_u32 s{sT0}, s{sT0}, {CT + 1024 * ty}\nv_lshl_add_u32 v29, v0, 2, s{sT0}")
            if not needC: I("ds_read_b32 v20, v29")
            self.q_addr(b)
            I(f"v_mov_b32 v35, {f32(1 / (640 * SCALE))}\nv_mov_b32 v32, {f32(1 / (640 * SCALE * SCALE))}\nv_mov_b32 v33, {f32(1e-5 / (SCALE * SCALE))}")
        first = hoisted and self.c.get('first', 3) & 2
        if first: pre()
        def shadow():
            if not first: pre()
            if tail and self.c.get("tq", 0): self.tail_addr(b, L)
            if between: between()
        self.gather(loads, range(12, 28 if needC else 20), 28, between=shadow, sleep=self.lsleep())
        if after: after()
        def red(r):
            I(f"v_pk_add_f32 {v2(r)}, {v2(r)}, {v2(r+4)}\nv_pk_add_f32 {v2(r+2)}, {v2(r+2)}, {v2(r+6)}")
            I(f"v_permlane32_swap_b32 v{r}, v{r+1}\nv_permlane32_swap_b32 v{r+2}, v{r+3}\nv_add_f32 v{r}, v{r}, v{r+1}\nv_add_f32 v{r+2}, v{r+2}, v{r+3}")
            I(f"v_permlane16_swap_b32 v{r}, v{r+2}\nv_add_f32 v{r}, v{r}, v{r+2}")
        red(12)
        I(f"v_readlane_b32 s{sT0}, v12, 12\nv_readlane_b32 s{sT1}, v12, 44")
        if needC: red(20); I(f"v_mul_f32 v20, {f32(SCALE)}, v20\nds_write_b32 v29, v20")
        I(f"s_mov_b32 exec_lo, 0x0fff0fff\ns_mov_b32 exec_hi, 0x0fff0fff")
        I(f"v_mul_f32 v15, s{sT1}, v35\nv_fma_f32 v14, s{sT0}, v32, v33\nv_fma_f32 v14, -v15, v15, v14\nv_max_f32 v14, v33, v14\nv_rsq_f32 v14, v14")
        I(f"v_fma_f32 v12, -v15, v20, v12\nv_mul_f32 v12, v12, v14\nv_cvt_pk_bf16_f32 v12, v12, v12")
        I("ds_write_b16 v34, v12\ns_mov_b64 exec, -1")
        a.barrier()
    def tail_addr(self, b, L):
        I = self.a.I; inst = 4 * b + L
        I(f"v_and_b32 v50, 15, v0\nv_lshlrev_b32 v50, 5, v50\nv_and_b32 v51, 16, v0\ns_mul_i32 s{sT0}, s{sWave}, 1536\ns_add_u32 s{sT0}, s{sT0}, {ATT}\nv_add3_u32 v50, v50, v51, s{sT0}")
        I(f"s_lshl_b32 s{sT0}, s{sWave}, 2\ns_add_u32 s{sT0}, s{sT0}, {STAT}\nv_mov_b32 v51, s{sT0}")
        self.wo_addr(b, L)
        I(f"v_mov_b32 v9, {STAT}\ns_lshl_b32 s{sT0}, s{sWave}, 8\ns_add_u32 s{sT0}, s{sT0}, {ATT}\nv_lshl_add_u32 v10, v0, 2, s{sT0}")
        I(f"s_lshl_b32 s{sT0}, s{sWave}, 7\nv_lshl_add_u32 v11, v0, 1, s{sT0}\ns_add_u32 s{sOffP}, s{sH2own}, {inst * H2_I}")
    def q_addr(self, b):
        self.a.I(f"v_and_b32 v30, 1, v0\nv_lshrrev_b32 v31, 4, v0\nv_lshlrev_b32 v31, 5, v31\nv_lshl_add_u32 v30, v30, 4, v31\nv_add_u32 v30, {QB + 384 * b}, v30")
    def att(self, b, L, hook1=None, hook2=None, hookm=None, pre_bar=None, guard=False, hoist=False, qaddr=False):
        a = self.a; I = a.I; ty = L & 1; G = 16 if ty else 4; Kn = "KB" if ty else "KA"; Vn = "VB" if ty else "VA"
        vM, vL = 52, 53
        if not qaddr: self.q_addr(b)
        for t in range(3): I(f"ds_read_b128 {v4(vQ + 4 * t)}, v30 offset:{128 * t}")
        def lds_v(g):
            a.wait_tag(("VS", b, g))
            I(f"v_lshl_add_u32 v54, v0, 4, s{sLdsVS}")
            for c in range(3): I(f"ds_read_b128 {v4(vU + 2 + 4 * c)}, v54 offset:{(g - 2) * 3072 + 1024 * c}")
        early = (not ty) and L == 2
        if early: lds_v(2)
        if not (qaddr and self.c.get("tq", 0)):
            if self.c.get("fill", 1): a.queue(lambda: self.tail_addr(b, L)); a.drain(self.c.get("fill0", 8))
            else: self.tail_addr(b, L)
        def D(g): return vACC + 4 * (g % 3)
        dm = "row_mask:0xf"; NP = G // 2
        order = list(range(G)) if ty else ([2, 0, 1, 3] if early else [0, 1, 2, 3])
        at = {g: i for i, g in enumerate(order)}
        U = lambda g: vU + at[g] // 2
        bank = lambda g, hi: (1 << (at[g] & 1)) << (2 * hi)
        for g in range(G + 2):
            K = SLOT[(Kn, g)] if g < G else None
            if K: self.check_slot(Kn, b, g)
            e = g - 2
            if K: I(f"v_mfma_f32_16x16x32_bf16 {v4(D(g))}, {K[0]}, {v4(vQ)}, 0")
            if g == 1 and self.c.get("fa"): self.fs("g1")
            if K: a.drain(2)
            if K: I(f"v_mfma_f32_16x16x32_bf16 {v4(D(g))}, {K[1]}, {v4(vQ+4)}, {v4(D(g))}")
            if K and e < 0: a.drain(2)
            if 0 <= e < G: I(f"v_add_f32_dpp v{U(e)}, v{D(e)}, v{D(e)+1} quad_perm:[0,0,2,2] {dm} bank_mask:{bank(e, 0):#x}")
            if K: I(f"v_mfma_f32_16x16x32_bf16 {v4(D(g))}, {K[2]}, {v4(vQ+8)}, {v4(D(g))}")
            if g == G + 1 and NP > 3: I(f"v_max3_f32 v{vM}, v{vU}, v{vU+1}, v{vU+2}\nv_max3_f32 v{vM}, v{vM}, v{vU+3}, v{vU+4}")
            if K and e < 0: a.drain(2)
            if hook1 and g < G: hook1(g)
            if 0 <= e < G: I(f"v_add_f32_dpp v{U(e)}, v{D(e)+2}, v{D(e)+3} quad_perm:[0,0,2,2] {dm} bank_mask:{bank(e, 1):#x}")
        if self.c.get("fa"): self.fs("p1")
        if hookm: hookm()
        if NP > 3: I(f"v_max3_f32 v{vM}, v{vM}, v{vU+5}, v{vU+6}\nv_max_f32 v{vM}, v{vM}, v{vU+7}")
        else: I(f"v_max_f32 v{vM}, v{vU}, v{vU+1}")
        red = ("row_ror:8 row_mask:0xf", "row_ror:4 row_mask:0xf", "row_bcast:15 row_mask:0xa", "row_bcast:31 row_mask:0xc")
        for x in red: I(f"v_max_f32_dpp v{vM}, v{vM}, v{vM} {x} bank_mask:0xf")
        I(f"v_readlane_b32 s{sM}, v{vM}, 63")
        def prob(p): return [f"v_subrev_f32 v{vU+p}, s{sM}, v{vU+p}", f"v_exp_f32 v{vU+p}, v{vU+p}",
                             f"v_mov_b32 v{vL}, v{vU+p}" if p == 0 else f"v_add_f32 v{vL}, v{vL}, v{vU+p}",
                             f"v_cvt_pk_bf16_f32 v{vU+p}, v{vU+p}, v{vU+p}",
                             f"v_mov_b32_dpp v{vU+p}, v{vU+p} quad_perm:[1,1,3,3] {dm} bank_mask:0xf"]
        def diag(i, j):
            d = vQ + 4 * (i & 1) + j; u = vU + i // 2
            if (j >> 1) == (i & 1): I(f"v_and_b32 v{d}, v{u}, v{vMask + j}")
            else: I(f"v_and_b32_dpp v{d}, v{u}, v{vMask + j} {'row_shl:4' if i & 1 else 'row_shr:4'} {dm} bank_mask:0xf bound_ctrl:0")
        a.drain()
        p0 = prob(0); p1 = prob(1)
        for t in (p0[0], p0[1], p1[0], p0[3 - 1], p0[3], p1[1], f"v_mov_b32 v{vM}, s{sM}", p0[4]): I(t)
        pend = p1[2:]
        for j in (0, 1): diag(0, j)
        I(pend.pop(0))
        for j in (2, 3): diag(0, j)
        if guard: a.barrier()
        if self.c.get("fa"): self.fs("p2start")
        lred = []
        for i, g in enumerate(order):
            self.check_slot(Vn, b, g)
            if (Vn, g) in SLOT: V = SLOT[(Vn, g)]
            else:
                if not early: lds_v(g)
                V = [v4(vU + 2 + 4 * c) for c in range(3)]
            A = v4(vQ + 4 * (i & 1))
            nx = i + 1 < G
            if (i & 1) == 1 and i // 2 + 2 < NP: assert not pend; pend = prob(i // 2 + 2)
            if i == G - 2: assert not pend; lred = [f"v_add_f32_dpp v{vL}, v{vL}, v{vL} {x} bank_mask:0xf" for x in red]
            for c in range(3):
                acc = v4(vACC + 4 * c)
                I(f"v_mfma_f32_16x16x32_bf16 {acc}, {A}, {V[c]}, {acc if i else 0}")
                if nx and c < 2: diag(i + 1, 2 * c + 0 if (i + 1) & 1 == 0 else (2 * c + 2) % 4); diag(i + 1, 2 * c + 1 if (i + 1) & 1 == 0 else (2 * c + 3) % 4)
                if pend: I(pend.pop(0))
                if lred: I(lred.pop(0))
                if i == 0 and c == 1: I(f"ds_write_b32 v51, v{vM}")
                if i == G - 1 and c == 1: I(f"s_mov_b64 exec, {sp(mL63)}\nds_write_b32 v51, v{vL} offset:16\ns_mov_b64 exec, -1")
            if early and g == 2: lds_v(3)
            if hook2: hook2(i)
        if self.c.get("fa"): self.fs("p2end")
        for c, (lo, hi) in enumerate(((0xffffffff, 0), (0x00ff00ff, 0xff00ff00), (0, 0xffffffff))):
            I(f"s_mov_b32 exec_lo, {lo:#x}\ns_mov_b32 exec_hi, {hi:#x}\nds_write_b128 v50, {v4(vACC + 4 * c)} offset:{512 * c}")
        I("s_mov_b64 exec, -1")
        if pre_bar: pre_bar()
        self.fs("att_end")
        a.barrier()
        self.combine(b, L)
        self.fs("pub2")
    def combine(self, b, L):
        a = self.a; I = a.I; inst = 4 * b + L
        I("ds_read_b128 v[44:47], v9\nds_read_b128 v[48:51], v9 offset:16")
        for i in range(0, 8, 2): I(f"ds_read2st64_b32 {v2(12 + i)}, v10 offset0:{3 * i} offset1:{3 * i + 3}")
        I("v_max3_f32 v52, v44, v45, v46\nv_max_f32 v52, v52, v47")
        for w in range(4): I(f"v_sub_f32 v{44+w}, v{44+w}, v52")
        for w in range(4): I(f"v_exp_f32 v{44+w}, v{44+w}")
        for w in range(4): I(f"v_add_f32 v{12 + 2 * w}, v{12 + 2 * w}, v{13 + 2 * w}")
        I("v_mul_f32 v20, v44, v12\nv_fmac_f32 v20, v45, v14\nv_fmac_f32 v20, v46, v16\nv_fmac_f32 v20, v47, v18")
        I("v_mul_f32 v53, v44, v48\nv_fmac_f32 v53, v45, v49")
        I("v_mov_b32_dpp v21, v20 quad_perm:[1,1,3,3] row_mask:0xf bank_mask:0xf")
        I("v_fmac_f32 v53, v46, v50\nv_fmac_f32 v53, v47, v51\nv_cvt_pk_bf16_f32 v20, v20, v21")
        I(f"v_cndmask_b32 v52, v52, v53, {sp(mBIT1)}\nv_cndmask_b32 v20, v20, v52, {sp(mW3)}\nv_min_u32 v20, -2, v20")
        I(f"s_not_b64 exec, {sp(mODD)}")
        self.publish(f"buffer_store_dword v20, v11, {s4(WS)}, s{sOffP} offen {{pol}}", True)
        I("s_mov_b64 exec, -1")
    def wo_addr(self, b, L):
        I = self.a.I
        I(f"v_bfe_u32 v8, v0, 1, 3\nv_lshrrev_b32 v9, 4, v0\nv_and_b32 v7, 1, v0\nv_lshl_add_u32 v7, v9, 1, v7\nv_lshlrev_b32 v7, 4, v7\nv_lshl_add_u32 v7, v8, 9, v7")
        I(f"v_lshl_add_u32 v8, v9, 1, v8\nv_and_b32 v8, 7, v8\nv_lshlrev_b32 v8, 9, v8\ns_add_u32 s{sOffW}, s{sH2grp}, {(4 * b + L) * H2_I}")
    def wo(self, b, L, between=None, hoisted=False, hoist=False, after=None):
        a = self.a; I = a.I; inst = 4 * b + L; ty = L & 1
        if not hoisted: self.wo_addr(b, L)
        loads = [f"buffer_load_dwordx2 v[52:53], v8, {s4(WS)}, s{sOffW} offen offset:384 sc1"]
        loads += [f"buffer_load_dwordx4 {v4(12 + 4 * t)}, v7, {s4(WS)}, s{sOffW} offen offset:{128 * t} sc1" for t in range(3)]
        S = [24, 28, 32, 36, 40, 44]
        def rd(kk, reg, tile):
            o = 10240 * (kk >> 1) + 1280 * (kk & 1) + 32 * tile
            I(f"ds_read_b64_tr_b16 {v2(reg)}, v10 offset:{o}\nds_read_b64_tr_b16 {v2(reg + 2)}, v10 offset:{o + 640}")
        def pre():
            I(f"v_bfe_u32 v10, v0, 2, 2\nv_and_b32 v11, 48, v0\nv_add_u32 v10, v10, v11\nv_mul_u32_u24 v10, 160, v10\nv_and_b32 v11, 3, v0\nv_lshl_add_u32 v10, v11, 3, v10")
            I(f"s_lshl_b32 s{sT0}, s{sW2}, 6\ns_add_u32 s{sT1}, s{sT0}, {WO[ty]}\nv_add_u32 v10, s{sT1}, v10")
            for kk in range(6): rd(kk, S[kk], 0)
            I(f"v_and_b32 v11, 15, v0\nv_lshlrev_b32 v11, 1, v11\nv_and_b32 v9, 32, v0\nv_add3_u32 v11, v11, v9, s{sT0}\ns_add_u32 s{sOffP}, s{sH3own}, {inst * H3_I}")
            if hoist: self.yg_addr()
            if between: between()
        D0, D1 = 48, 24
        mt = lambda D, t, B, first: f"v_mfma_f32_16x16x32_bf16 {v4(D)}, {v4(12 + 4 * t)}, {v4(B)}, {0 if first else v4(D)}"
        def mm(*k): I(mt(*k))
        self.gather(loads, [52, 53] + list(range(12, 24)), 9, between=pre, sleep=self.lsleep(), first=hoisted and self.c.get('first', 3) & 1,
                    spec=[mt(D0, 0, S[0], True), mt(D0, 1, S[2], False), mt(D0, 2, S[4], False)])
        if after: after()
        dpp = lambda op, d, x, ctl: I(f"{op}_dpp v{d}, v{x}, v{x} {ctl} row_mask:0xf bank_mask:0xf")
        def fold(out):
            I(f"v_add_f32 v{D0}, v{D0}, v{D1 + 1}\nv_add_f32 v{D0 + 2}, v{D0 + 2}, v{D1 + 3}\nv_mul_f32 v{out}, v7, v{D0}\nv_fmac_f32 v{out}, v8, v{D0 + 2}")
        dpp("v_max_f32", 9, 52, "row_ror:8")
        mm(D1, 0, S[1], True); rd(0, S[2], 1); dpp("v_max_f32", 9, 9, "row_ror:4")
        mm(D1, 1, S[3], False); rd(2, S[4], 1); dpp("v_max_f32", 9, 9, "row_ror:2")
        mm(D1, 2, S[5], False); I("v_sub_f32 v52, v52, v9\nv_exp_f32 v52, v52"); rd(4, S[1], 1); I("v_mul_f32 v53, v52, v53")
        rd(1, S[3], 1); dpp("v_add_f32", 53, 53, "row_ror:8")
        rd(3, S[5], 1); dpp("v_add_f32", 53, 53, "row_ror:4")
        I(f"v_add_f32 v{D0}, v{D0}, v{D1 + 1}\nv_add_f32 v{D0 + 2}, v{D0 + 2}, v{D1 + 3}")
        dpp("v_add_f32", 53, 53, "row_ror:2")
        I(f"v_mov_b32 v7, v{D0}\nv_mov_b32 v8, v{D0 + 2}\nv_rcp_f32 v53, v53")
        mm(D0, 0, S[2], True); rd(5, S[2], 1)
        I("v_mul_f32 v9, v52, v53")
        mm(D0, 1, S[4], False); mm(D0, 2, S[1], False)
        I("v_mul_f32_dpp v52, v9, v7 row_newbcast:0 row_mask:0xf bank_mask:0xf")
        mm(D1, 0, S[3], True)
        I("v_mov_b32_dpp v7, v9 row_newbcast:0 row_mask:0xf bank_mask:0xf")
        mm(D1, 1, S[5], False)
        I("v_fmac_f32_dpp v52, v9, v8 row_newbcast:2 row_mask:0xf bank_mask:0xf")
        mm(D1, 2, S[2], False)
        I("v_mov_b32_dpp v8, v9 row_newbcast:2 row_mask:0xf bank_mask:0xf")
        fold(53)
        I("v_permlane32_swap_b32 v52, v53\nv_add_f32 v52, v52, v53\nv_mov_b32 v53, v52\nv_permlane16_swap_b32 v52, v53\nv_add_f32 v52, v52, v53")
        I("v_mov_b32_dpp v53, v52 quad_perm:[1,1,3,3] row_mask:0xf bank_mask:0xf\nv_cvt_pk_bf16_f32 v52, v52, v53\nv_min_u32 v52, -2, v52")
        I(f"s_mov_b64 exec, {sp(mWOST)}")
        self.publish(f"buffer_store_dword v52, v11, {s4(WS)}, s{sOffP} offen {{pol}}", False)
        I("s_mov_b64 exec, -1")
    def yg_addr(self):
        self.a.I(f"v_lshrrev_b32 v54, 4, v0\nv_lshlrev_b32 v54, 8, v54\nv_and_b32 v9, 15, v0\nv_lshl_add_u32 v54, v9, 4, v54")
    def yg_pre(self, b, L):
        I = self.a.I
        I(f"s_lshl_b32 s{sT0}, s{sWave}, 11\ns_add_u32 s{sOffG}, s{sH3grp}, s{sT0}\ns_add_u32 s{sOffG}, s{sOffG}, {(4 * b + L) * H3_I}")
        for j in range(4): I(f"v_and_b32 v{16 + j}, 0x3f803f80, v{vMask + j}")
        for j in range(8): I(f"v_mov_b32 v{8 + j}, 0")
    def yg(self, b, L, between=None, pre_bar=None, hoisted=False, after=None):
        a = self.a; I = a.I; inst = 4 * b + L; Yb = Y + YSZ * b
        if not hoisted: self.yg_addr(); self.yg_pre(b, L)
        loads = [f"buffer_load_dwordx4 {v4(8 + 4 * j)}, v54, {s4(WS)}, s{sOffG} offen offset:{4 * H3_H * j} sc1" for j in range(2)]
        self.gather(loads, range(8, 16), 7, between=between, emask=sp(mN10),
                    spec=["v_mfma_f32_16x16x32_bf16 v[20:23], v[16:19], v[8:11], 0", "v_mfma_f32_16x16x32_bf16 v[20:23], v[16:19], v[12:15], v[20:23]"])
        if after: after()
        I(f"v_and_b32 v7, 15, v0\nv_lshlrev_b32 v7, 5, v7\nv_and_b32 v54, 16, v0\ns_mul_i32 s{sT0}, s{sWave}, 320\ns_add_u32 s{sT0}, s{sT0}, {Yb}\nv_add3_u32 v7, v7, v54, s{sT0}")
        I(f"s_mov_b32 exec_lo, s{mN10}\ns_mov_b32 exec_hi, 0\nds_write_b128 v7, v[20:23]\ns_mov_b64 exec, -1")
        I(f"s_mul_i32 s{sT0}, s{sWave}, 160\ns_add_u32 s{sT0}, s{sT0}, {XROW + 640 * b}\nv_lshl_add_u32 v7, v0, 2, s{sT0}\nds_read_b32 v54, v7")
        I(f"v_lshlrev_b32 v14, 3, v0\nv_add_u32 v14, {Yb}, v14")
        if L < 3: self.wq_addr(b, L + 1)
        if pre_bar: pre_bar()
        a.barrier()
        I("s_mov_b32 exec_hi, 0xff")
        I("ds_read2_b64 v[8:11], v14 offset0:0 offset1:40\nds_read2_b64 v[12:15], v14 offset0:80 offset1:120")
        I("v_lshlrev_b32 v16, 16, v54\nv_and_b32 v17, 0xffff0000, v54")
        I("v_pk_add_f32 v[8:9], v[8:9], v[10:11]\nv_pk_add_f32 v[12:13], v[12:13], v[14:15]\nv_pk_add_f32 v[8:9], v[8:9], v[12:13]")
        I("v_cvt_pk_bf16_f32 v8, v8, v9\nv_and_b32 v9, 0xffff0000, v8\nv_lshlrev_b32 v8, 16, v8\nv_pk_add_f32 v[8:9], v[8:9], v[16:17]\nv_cvt_pk_bf16_f32 v8, v8, v9")
        if L < 3: I("ds_write_b32 v7, v8")
        else:
            I(f"s_cmp_lg_u32 s{sWave}, 0"); a.skip_begin("s_cbranch_scc1")
            I(f"s_mul_i32 s{sT0}, s{sS}, 160\nv_lshlrev_b32 v7, 2, v0")
            I(f"buffer_store_dword v8, v7, {s4(XO)}, s{sT0} offen offset:{1280 * b}")
            a.skip_end()
        I("s_mov_b64 exec, -1")
    def touch(self, b, L, lvl=1):
        if self.c.get("touch", 3) < lvl: return
        a = self.a; I = a.I
        I(f"s_lshl_b32 s{sT0}, s{sWave}, 7\nv_lshl_add_u32 v31, v0, 1, s{sT0}\nv_and_b32 v31, -4, v31\ns_add_u32 s{sT1}, s{sH2own}, {(4 * b + L) * H2_I}\ns_mov_b32 m0, {JUNK}")
        I(f"buffer_load_dword v31, {s4(WS)}, s{sT1} offen sc1 lds")
        if L < 3:
            I(f"v_lshlrev_b32 v31, 1, v31\ns_add_u32 s{sT1}, s{sH1own}, {(4 * b + L + 1) * H1_I}")
            I(f"buffer_load_dword v31, {s4(WS)}, s{sT1} offen sc1 lds")
    def chain_idle(self, b, L, burst=(0, 0, 0), sh=(0, 0, 0, 0)):
        a = self.a; U = lambda n: (lambda: self.stream(n, paced=False))
        if self.c.get("skip3", 1):
            a.I(f"s_cmp_eq_u32 s{sWave}, 3"); a.skip_begin("s_cbranch_scc1")
            self.wo(b, L, hoisted=True)
            a.skip_end()
            self.yg_addr()
            self.stream(sh[0] + sh[1], paced=False)
        else:
            self.wo(b, L, between=U(burst[0]), hoisted=True, hoist=True, after=U(sh[0]))
            self.stream(sh[1], paced=False)
        self.stamp(f"wo{b}{L}")
        self.fs("pub3")
        late = self.c.get("late", 1)
        if L == 3:
            a.I(f"s_cmp_eq_u32 s{sH}, 1\ns_cbranch_scc1 L_out0")
            a.I(f"s_cmp_lg_u32 s{sH}, 0\ns_cbranch_scc1 L_fin")
            self.page()
        dfr = self.deferred; self.deferred = []
        pub = a.vm.last_tag("pub")
        for jobs in dfr: self.clear_prep(jobs); self.clear_issue("clr3")
        if L < 3 and not late: self.wq_pre((L + 1) & 1)
        if late < 2: self.yg_pre(b, L)
        a.wait_tag("pub"); a.barrier()
        if L < 3 and late: self.wq_pre((L + 1) & 1)
        if late >= 2: self.yg_pre(b, L)
        self.yg(b, L, between=lambda: (self.stream(burst[1], paced=False), self.page() if L < 3 else None), hoisted=True, after=U(sh[2]), pre_bar=(lambda: a.wait_tag("clr3")) if dfr else None)
        self.fs("xrow")
        if L == 3: return
        self.wq_main(b, L + 1, hoisted=True, hoist=True)
        self.fs("pub1")
        self.stamp(f"wq{b}{L+1}")
        self.qg(b, L + 1, between=U(burst[2]), hoisted=True, tail=True, after=lambda: (self.touch(b, L + 1) if self.c.get("touch", 3) != 3 or (b, L) == (0, 1) else None, self.stream(sh[3], paced=False)))
        self.stamp(f"qg{b}{L+1}")
    def build(self):
        a = self.a; c = self.c; W = self.W; WE = c.get("WE", W); HE = c.get("HE", 4); PG = c.get("PG", 0)
        self.off_val = None
        for x in c.get("order", "kvw"):
            if x == "w": self.add_w("wqA", pWQA, "q", 0)
            else:
                for g in range(4): self.add_kv("KA" if x == "k" else "VA", 0, g)
        self.add_w("woA", pWOA, "o", 0); self.add_w("wqB", pWQB, "q", 1)
        for g in range(16): self.add_kv("KB", 0, g)
        self.add_w("woB", pWOB, "o", 1)
        for g in range(16): self.add_kv("VB", 0, g)
        p1 = len(self.items)
        for g in range(4): self.add_kv("KA", 1, g)
        for g in range(4): self.add_kv("VA", 1, g)
        p2 = len(self.items)
        for g in range(16): self.add_kv("KB", 1, g)
        for g in range(16): self.add_kv("VB", 1, g)
        st = self.stream_to; S = lambda n: (lambda: self.stream(n))
        self.limit = p1; a.nobar = c.get('nobar', 0)
        self.setup()
        if c.get("inject", 1): a.inject = self.injector
        if c.get("streamonly"):
            self.limit = 10**9; self.npage = 0; self.hot = []; self.inl = False; self.boost = 0; a.inject = None
            for upto in c["streamonly"]:
                if isinstance(upto, tuple): st(upto[0], W=upto[1])
                else: st(upto)
                self.stamp("end")
            a.wait(vm=0); self.stamp("end")
            return self.finish()
        P = c.get("P1", dict(arr=24, hs=36, qg0=44, wo=76, yg=104, qg1=130))
        for _ in range(c.get("pad", 0)): a.I("s_nop 0")
        a.raw("L_pf0:")
        self.stamp("setup")
        a.wait_tag("clr"); a.barrier()
        self.arrive()
        st(max(P["arr"], self.index_after("wqA") + 4))
        self.stamp("arr")
        a.wait_tag("wqA"); a.barrier()
        self.wq_pre(0); self.wq_main(0, 0, local_ok=False)
        self.wq_pre(0); self.wq_main(1, 0, local_ok=False)
        self.stamp("wq")
        st(P["hs"]); self.handshake(S(W))
        P_ = lambda i: [("P", i)]
        now = [[P_(1), [("C", 1)], P_(2), [("2", 1), ("3", 1)]], [[("3", 2), ("3", 3)], [("3", 4), ("3", 5)], [("3", 6), ("3", 7)], [("3", 6), ("3", 7)]]]
        self.deferred = [[P_(3), P_(5), P_(6), P_(7)], [[("2", 2), ("2", 3)], [("2", 4), ("2", 5)], [("2", 6), ("2", 7)], [("2", 6), ("2", 7)]]]
        if not c.get("defer", 1): now += self.deferred; self.deferred = []
        for jobs in now:
            self.clear_prep(jobs); self.clear_issue("clr2"); self.stream(1)
        self.stamp("hs")
        st(P["qg0"]); self.qg(0, 0, between=S(W))
        self.stamp()
        self.att(0, 0, pre_bar=lambda: (st(self.index_after("woA")), a.wait_tag("woA"), a.wait_tag("clr2")))
        self.stamp()
        self.qg(1, 0, between=S(W))
        self.stamp("qg10")
        st(P["wo"]); self.wo(0, 0, between=S(W))
        self.stamp("wo00")
        st(P["yg"]); self.yg(0, 0, between=S(W), pre_bar=lambda: a.wait_tag("wqB"))
        self.stamp("yg00")
        self.wq_pre(1); self.wq_main(0, 1, hoisted=True)
        self.stream(3, paced=False); self.warm([0, 1, 2, "R"])
        if c.get("cpf") == 2: self.code_prefetch("L_pf1", "L_pf2")
        st(P["qg1"]); self.touch(0, 1, 2) if c.get('touch') == 2 else None; self.qg(0, 1, tail=True, between=lambda: self.stream(min(WE, p1 - self.pos), W=WE))
        a.raw("L_pf1:")
        self.stamp()
        assert self.pos >= self.index_after("woB")
        vb0 = self.index_after("woB")
        self.att(0, 1, hook1=lambda g: self.stream(min(1, p1 - self.pos), W=WE) if g % HE == HE - 1 else None,
                 hook2=lambda i: (st(min(p1, vb0 + 3 * (i + 2) + WE - 3), W=WE), self.page() if i == PG else None), pre_bar=lambda: a.wait_tag("woB"), hoist=True, qaddr=True)
        assert self.pos == p1
        a.inject = None; self.limit = p2
        self.stamp("p1end")
        self.chain_idle(0, 1)
        bu = c.get("burst", (3, 0, 0, 0)); sh = c.get("sh", (2, 4, 3, 12))
        self.att(0, 2, hookm=lambda: self.stream(bu[0], paced=False), hoist=True, qaddr=True)
        self.stamp("att02")
        self.chain_idle(0, 2, burst=bu[1:], sh=sh)
        self.stamp("p2beg")
        self.limit = len(self.items)
        n0 = c.get("n0", 12); h2 = c.get("h2", 2); q0 = self.pos
        def hook03(g):
            self.stream(max(0, min(3, q0 + n0 - self.pos, p2 + 3 * g + 3 - self.pos)), paced=False)
        self.att(0, 3, hook1=hook03, hook2=lambda i: self.stream(1, paced=False) if i % h2 == h2 - 1 else None, qaddr=True)
        self.stamp("att03")
        a.raw("L_pf2:")
        P = c.get("P2", dict(att=8, wo=34, yg=62, qg=80))
        if c.get("inject", 1): a.inject = self.injector
        st(p2 + P.get("att", 0))
        self.att(1, 0, guard=True, hook2=lambda i: self.stream(2))
        self.stamp("att10")
        st(p2 + P["wo"]); self.stamp("a"); self.wo(1, 0, between=S(W)); self.stamp("wo10"); self.wo(0, 3, between=S(W)); self.stamp("wo03")
        st(p2 + P["yg"]); self.stamp("b"); self.yg(1, 0, between=S(W)); self.stamp("yg10")
        self.wq_pre(1); self.wq_main(1, 1, hoisted=True)
        self.stream(3, paced=False); self.warm([3, 4, 5, 6])
        if c.get("cpf") == 2: self.code_prefetch("L_pf3", "L_pf9")
        st(p2 + P["qg"]); self.stamp("c"); self.touch(1, 1, 2) if c.get('touch') == 2 else None; self.qg(1, 1, tail=True, between=lambda: self.stream(WE, W=WE))
        a.raw("L_pf3:")
        self.stamp("qg11")
        vb1 = p2 + 48
        self.att(1, 1, hook1=lambda g: self.stream(1, W=WE) if g % HE == HE - 1 else None,
                 hook2=lambda i: (st(min(len(self.items), vb1 + 3 * (i + 2) + WE - 3), W=WE), self.page() if i == PG else None), hoist=True, qaddr=True)
        assert self.pos == len(self.items)
        a.inject = None
        self.stamp("p2end")
        self.chain_idle(1, 1)
        self.fine_on = c.get("fine") == 1
        self.fs("q_ready")
        self.att(1, 2, hoist=True, qaddr=True)
        self.stamp("att12")
        self.chain_idle(1, 2)
        self.fs("q_ready")
        if c.get("fine") == 2: self.fine_on = True; self.fs("q_ready")
        self.att(1, 3, hoist=True, qaddr=True)
        self.stamp("att13")
        self.chain_idle(1, 3)
        a.I("s_branch L_fin"); a.raw("L_out0:"); a.I("s_nop 7"); a.wait(vm=0, lg=0)
        self.yg(0, 3)
        a.raw("L_fin:"); a.I("s_nop 7")
        if c.get("hold"):
            a.raw("L_hold:"); a.I(f"s_memrealtime s[38:39]"); a.wait(lg=0)
            a.I(f"s_sub_u32 s38, s38, s{98 if c.get('holdat') else sST}\ns_cmp_lt_u32 s38, {c['hold']}\ns_cbranch_scc1 L_hold")
        self.fs("end")
        self.stamp("end")
        return self.finish()
    def finish(self):
        a = self.a; c = self.c
        if c.get("fine"):
            a.wait(lg=0)
            for i in range(self.nfine): a.I(f"v_writelane_b32 v{vStamp}, s{FS[i]}, {i}")
            print("fine stamps:", self.fnames)
        if c.get("diag"):
            a.I("s_sleep 100")
            a.I(f"v_writelane_b32 v{vStamp}, s{sRetry}, 62\nv_writelane_b32 v{vStamp}, s{sLocal}, 63")
            a.I(f"s_lshl_b32 s{sT0}, s{sWG}, 10\ns_lshl_b32 s{sT1}, s{sWave}, 8\ns_add_u32 s{sT0}, s{sT0}, s{sT1}\ns_add_u32 s{sT0}, s{sT0}, {DIAG}\nv_lshlrev_b32 v7, 2, v0")
            a.I(f"buffer_store_dword v{vStamp}, v7, {s4(WS)}, s{sT0} offen")
        if c.get("diag") and not c.get("fine"): print("stamps:", " ".join(self.snames))
        a.raw("L_end:"); a.raw("  s_endpgm")
        if c.get("pages", 1): self.hot = [f".p2align {c.get('hotal', 12)}\nLstR:\n  s_setpc_b64 {sp(sRet)}"] + self.hot
        a.tail = self.hot + a.tail
        a.tail.append("L_pf9:\n  s_endpgm")
        body = a.text()
        return (HEAD + f"; @launch grid=(256,1,1) block=(256,1,1) lds={LDS_BYTES}\n"
                + f'.amdgcn_target "amdgcn-amd-amdhsa--gfx950"\n.text\n.globl {NAME}\n.p2align 8\n.type {NAME},@function\n{NAME}:\n'
                + body + f'.section .rodata,"a"\n.p2align 6\n.amdhsa_kernel {NAME}\n  .amdhsa_next_free_vgpr 512\n  .amdhsa_next_free_sgpr 102\n'
                + "  .amdhsa_accum_offset 256\n  .amdhsa_group_segment_fixed_size 0\n  .amdhsa_kernarg_size 104\n  .amdhsa_user_sgpr_count 2\n"
                + "  .amdhsa_user_sgpr_kernarg_segment_ptr 1\n  .amdhsa_system_sgpr_workgroup_id_x 1\n.end_amdhsa_kernel\n")

def generate(cfg): return Gen(cfg).build()
if __name__ == "__main__":
    cfg = eval(sys.argv[2]) if len(sys.argv) > 2 else {}
    open(sys.argv[1], "w").write(generate(cfg))
```

```python
import sys, math
from dsl import Asm

NAME = "interleave_layers__sliding_block_cached__gqa_block_cached__decode_kernel"
HEAD = open("interleave_layers__sliding_block_cached__gqa_block_cached__decode.s.ref").read().split("; Override")[0]

KV_BYTES = 2 * 32 * 4096 * 384
BSTR = 32 * 4096 * 384
HSTR = 4096 * 384
W_BYTES = 640 * 6144 * 2
WS_BYTES = 434115584
H1_I, H1_H, H1_S = 524288, 16384, 2048
H2 = 8 * H1_I; H2_I, H2_H, H2_S = 131072, 4096, 512
H3 = H2 + 8 * H2_I; H3_I, H3_S, H3_H = 65536, 8192, 256
DIAG = 64 << 20
WQ = (0, 61440); WO = (30720, 92160)
VS = 122880
EX = 147456
ATT = EX; STAT = EX + 6144; Y = EX + 6208; YSZ = 1280; XROW = Y + 2 * YSZ; ONES = XROW + 1280; QB = ONES + 160; CT = QB + 768
JUNK = CT + 2048
LDS_BYTES = JUNK + 256
assert LDS_BYTES <= 163840
sWG, sWave = 2, 3
KA, VA, KB, VB, WS, WT, XO = 4, 8, 12, 16, 20, 24, 28
pX, pKA, pVA, pWQA, pWOA, pKB, pVB, pWQB, pWOB, pOUT, pDBG, pWS = 32, 34, 36, 38, 40, 44, 46, 48, 50, 52, 54, 56
sH, sS, sLocal, sOff, sRetry, sT0, sT1, sT2 = 58, 59, 60, 61, 62, 63, 64, 65
sH1own, sH1grp, sH2own, sH2grp, sH3own, sH3grp, sOffG, sOffP = 66, 67, 68, 69, 70, 71, 72, 73
mODD, mHI8, mHI32, mWOST, mRG1, mRG2, mRG3, m60 = 74, 76, 78, 80, 82, 84, 86, 88
sXcc, sWqRow, sWoRow, sLdsW, sLdsVS = 90, 91, 92, 93, 94
sST = 96; m40 = 98; mBIT1 = 100; mW3 = 42; mN10 = 32; sW2 = 95; sOffG2 = 35; sClr = 0; sM = 34; sOffW = 76; sRet = 78; mL63 = 36
FS = [38, 40, 44, 46, 48, 50, 52, 54, 56, 24, 26, 88, 90, 92]
def sp(n): return f"s[{n}:{n+1}]"
def s4(n): return f"s[{n}:{n+3}]"
def v2(n): return f"v[{n}:{n+1}]"
def v4(n): return f"v[{n}:{n+3}]"
vLane, vKoff, vVoff, vMask = 0, 1, 2, 3
vQ, vACC, vU = 12, 24, 36
vStamp = 55
QUADS = [f"a[{i}:{i+3}]" for i in range(0, 256, 4)] + [f"v[{i}:{i+3}]" for i in range(56, 256, 4)]
SLOT = {}
_names = [("KA", i) for i in range(4)] + [("VA", 0), ("VA", 1)] + [("KB", i) for i in range(16)] + [("VB", i) for i in range(16)]
for i, n in enumerate(_names): SLOT[n] = QUADS[3 * i:3 * i + 3]
assert SLOT[("VB", 15)][2] == "v[252:255]"
vWq0, vWq1, vWo = 252, 253, 254
SCALE = 192 ** -0.5 * math.log2(math.e)
import struct
def f32(x): return "0x%08x" % struct.unpack("<I", struct.pack("<f", x))[0]

class Gen:
    def __init__(self, cfg):
        self.c = cfg; self.a = Asm(); self.items = []; self.pos = 0; self.nstamp = 0
        self.W = cfg.get("W", 10); self.limit = 10**9; self.npage = 0; self.hot = []; self.inl = False; self.boost = 0; self.last_cyc = 0; self.fine_on = False; self.nfine = 0; self.fnames = []; self.snames = ['start']
    def add_w(self, name, ptr, kind, ty):
        pol = self.c.get("wpol", "nt")
        def mk(k):
            def f():
                a = self.a
                if k == 0:
                    off = sWqRow if kind == "q" else sWoRow
                    a.I(f"s_add_u32 s{WT}, s{ptr}, s{off}\ns_addc_u32 s{WT+1}, s{ptr+1}, 0\ns_sub_u32 s{WT+2}, {W_BYTES}, s{off}")
                base = (WQ if kind == "q" else WO)[ty]
                a.I(f"s_add_u32 m0, s{sLdsW}, {base + 960 * k}")
                if kind == "q": so = 5 * (k // 2) * 12288; vr = vWq1 if k & 1 else vWq0
                else: so = 6 * k * 1280; vr = vWo
                a.I(f"s_mov_b32 s{sOff}, {so}\ns_mov_b64 exec, {sp(m60)}")
                a.I(f"buffer_load_dwordx4 v{vr}, {s4(WT)}, s{sOff} offen {pol} lds", tag=name)
                a.I("s_mov_b64 exec, -1")
            return f
        self.items += [(name, mk(k)) for k in range(8)]
    def add_kv(self, name, b, g):
        srd = {"KA": KA, "VA": VA, "KB": KB, "VB": VB}[name]
        isK = name[0] == "K"; vo = vKoff if isK else vVoff; step = 128 if isK else 256
        pol = self.c.get("kvpol", "nt")
        def mk(c):
            def f():
                a = self.a
                if (name, g) in SLOT:
                    if c == 0: a.I(f"s_mov_b32 s{sOff}, {b * BSTR + g * 3072}")
                    elif self.off_val != (name, b, g): a.I(f"s_mov_b32 s{sOff}, {b * BSTR + g * 3072}")
                    self.off_val = (name, b, g)
                    a.I(f"buffer_load_dwordx4 {SLOT[(name, g)][c]}, v{vo}, {s4(srd)}, s{sOff} offen offset:{step * c} {pol}")
                else:
                    self.off_val = None
                    a.I(f"s_add_u32 m0, s{sLdsVS}, {(g - 2) * 3072 + 1024 * c}\ns_mov_b32 s{sOff}, {b * BSTR + g * 3072 + step * c}")
                    a.I(f"buffer_load_dwordx4 v{vo}, {s4(srd)}, s{sOff} offen {pol} lds", tag=("VS", b, g))
            return f
        self.items += [((name, b, g), mk(c)) for c in range(3)]
    def stream(self, n, paced=True, W=None):
        for _ in range(n):
            if self.pos >= len(self.items): return
            assert self.pos < self.limit, (self.pos, self.limit)
            if paced: self.a.pace((W or self.W) + (self.c.get("B", 0) if self.pos < self.boost else 0))
            sv = self.a._in_inject; self.a._in_inject = True
            self.items[self.pos][1](); self.pos += 1; self.last_cyc = self.a.cyc
            if self.c.get("diag") == 3 and self.pos % 5 == 0 and self.pos > 10: self.stamp("pos")
            self.a._in_inject = sv
    def injector(self):
        a = self.a
        if self.pos < self.limit and a.cyc - self.last_cyc >= self.c.get("T", 330) and a.vm.outstanding() < self.W + self.c.get("XW", 6) + (self.c.get("B", 0) if self.pos < self.boost else 0):
            self.stream(1, paced=False)
    def stream_to(self, upto, **k): self.stream(max(0, upto - self.pos), **k)
    def index_after(self, name):
        return max(i for i, it in enumerate(self.items) if it[0] == name) + 1
    def fs(self, name):
        if not self.fine_on or self.nfine >= len(FS): return
        self.a.I(f"{'s_memrealtime' if self.c.get('rt') else 's_memtime'} {sp(FS[self.nfine])}"); self.nfine += 1; self.fnames.append(name)
    def page(self):
        if not self.c.get("pages", 1): return
        k = self.npage; self.npage += 1
        self.a.I(f"s_branch Lpg{k}"); self.a.raw(f".p2align 12\nLst{k}:\n  s_setpc_b64 {sp(sRet)}\nLpg{k}:")
    def warm(self, ks):
        if not (self.c.get("pages", 1) and self.c.get("warm", 1)): return
        a = self.a
        a.I(f"s_cmp_lg_u32 s{sWave}, 3"); a.skip_begin("s_cbranch_scc1")
        for k in ks: a.I(f"s_call_b64 {sp(sRet)}, Lst{k}")
        a.skip_end()
    def check_slot(self, name, b, g):
        assert self.index_after((name, b, g)) <= self.pos, ("not issued", name, b, g, self.pos)
        if b == 0: assert self.index_after((name, 1, g)) - 3 >= self.pos, ("overwritten", name, g)
    def stamp(self, name=''):
        if self.c.get("marks"): self.a.raw(f"M_{name}_{len(self.snames)}:")
        if self.c.get("holdat") == name:
            self.a.I("s_memrealtime s[98:99]"); self.a.wait(lg=0)
        self.snames.append(f'{name}@{self.pos}')
        if not self.c.get("diag") or self.c.get("fine"): return
        if self.c["diag"] == 3 and name not in ("pos", "end"): self.snames.pop(); return
        if self.c["diag"] == 2 and name not in self.c.get("only", ("p1end", "p2beg", "p2end", "end")): self.snames.pop(); return
        a = self.a
        a.I(f"s_memrealtime {sp(sST)}"); a.wait(lg=0)
        a.I(f"v_writelane_b32 v{vStamp}, s{sST if not self.c.get('rcount') else sRetry}, {self.nstamp}"); self.nstamp += 1
    def publish(self, text, local_ok, tag="pub"):
        a = self.a
        if local_ok and self.c.get("local", True):
            a.I(f"s_cmp_lg_u32 s{sLocal}, 0")
            a.either(text.format(pol=""), text.format(pol="sc1"), tag=tag)
        else: a.I(text.format(pol="sc1"), tag=tag); self.boost = self.pos + self.c.get("KB", 14)
    def gather(self, loads, regs, tmp, between=None, emask=None, sleep=None, first=False, spec=()):
        a = self.a
        if first and between: between(); between = None
        if emask: loads = [f"s_mov_b64 exec, {emask}"] + loads + ["s_mov_b64 exec, -1"]
        for t in loads: a.I(t, tag="gat")
        last = len(a.vm.ent) - 1
        if emask or self.c.get("BG"): self.boost = self.pos + self.c.get("KB", 14)
        if between: between()
        self.fs("issued")
        n = a.vm.need(last)
        if n is not None: a.wait(vm=n)
        chk = a.label("Lc"); rt = a.label("Lr")
        a.raw(f"{chk}:"); a.no_inject += 1
        r = list(regs); ops = []
        ops.append(f"v_max3_u32 v{tmp}, v{r[0]}, v{r[1]}, v{r[2]}"); r = r[3:]
        while len(r) >= 2: ops.append(f"v_max3_u32 v{tmp}, v{tmp}, v{r[0]}, v{r[1]}"); r = r[2:]
        if r: ops.append(f"v_max_u32 v{tmp}, v{tmp}, v{r[0]}")
        ops.append(f"v_cmp_eq_u32 vcc, -1, v{tmp}")
        spec = list(spec)
        k = -(-len(ops) // max(1, len(spec)))
        while ops or spec:
            if spec: a.I(spec.pop(0))
            for t in ops[:k]: a.I(t)
            ops = ops[k:]
        self.inl = self.c.get("inl", 0) and not a.inject
        if not (self.c.get("novalid") and a.inject): a.I(f"s_cbranch_vccz {rt}k" if self.inl else f"s_cbranch_vccnz {rt}")
        if self.c.get("narrow", 3) & (2 if emask else 1):
            loads = ["s_mov_b64 exec, vcc"] + [t for t in loads if not t.startswith("s_mov")] + ["s_mov_b64 exec, -1"]
        self.retry_block(rt, chk, loads, sleep); a.no_inject -= 1
        self.fs("valid")
    def lsleep(self): return None if self.a.inject else self.c.get('lsleep', 0)
    def retry_block(self, rt, chk, loads, sleep=None):
        a = self.a
        if sleep is None: sleep = self.c.get("sleep", 0)
        blk = ([f"  s_sleep {sleep}"] if sleep else []) + ["  " + t for t in loads]
        blk += [f"  s_add_u32 s{sRetry}, s{sRetry}, 1", f"  s_cmp_gt_u32 s{sRetry}, {self.c.get('spin', 2000000)}", "  s_cbranch_scc1 L_end",
                "  s_waitcnt vmcnt(0)", f"  s_branch {chk}"]
        if self.inl: a.out += blk + [f"{rt}k:"]
        elif a.inject: a.tail += [f"{rt}:"] + blk
        else: self.hot += [f"{rt}:"] + blk
        self.inl = False
    def setup(self):
        a = self.a; I = a.I
        I(f"s_cmp_ge_u32 s{sWG}, 256\ns_cbranch_scc1 L_end")
        I(f"s_load_dwordx16 s[32:47], s[0:1], 0\ns_load_dwordx8 s[48:55], s[0:1], 64\ns_load_dwordx2 s[56:57], s[0:1], 96")
        if self.c.get("diag") or self.c.get("hold"): I(f"s_memrealtime {sp(sST)}")
        I(f"v_lshrrev_b32 v8, 6, v0\nv_and_b32 v0, 63, v0\nv_readfirstlane_b32 s{sWave}, v8")
        I(f"s_and_b32 s{sT0}, s{sWG}, 7\ns_lshl_b32 s{sT0}, s{sT0}, 2\ns_lshr_b32 s{sT1}, s{sWG}, 3\ns_and_b32 s{sT1}, s{sT1}, 3\ns_add_u32 s{sH}, s{sT0}, s{sT1}\ns_lshr_b32 s{sS}, s{sWG}, 5")
        I(f"v_mul_u32_u24 v8, 43, v0\nv_lshrrev_b32 v8, 10, v8\nv_mul_u32_u24 v9, 24, v8\nv_sub_u32 v9, v0, v9\nv_mul_u32_u24 v8, 0x3000, v8\nv_lshl_add_u32 v{vWq0}, v9, 4, v8")
        I(f"v_add_u32 v10, 60, v0\nv_mul_u32_u24 v8, 43, v10\nv_lshrrev_b32 v8, 10, v8\nv_mul_u32_u24 v9, 24, v8\nv_sub_u32 v9, v10, v9\nv_mul_u32_u24 v8, 0x3000, v8\nv_lshl_add_u32 v{vWq1}, v9, 4, v8")
        I(f"s_mul_i32 s{sT0}, s{sS}, {80 * 12288}\ns_mul_i32 s{sT1}, s{sWave}, {20 * 12288}\ns_add_u32 s{sT0}, s{sT0}, s{sT1}\ns_mul_i32 s{sT1}, s{sH}, 384\ns_add_u32 s{sWqRow}, s{sT0}, s{sT1}")
        I(f"s_mul_i32 s{sT0}, s{sH}, {192 * 1280}\ns_mul_i32 s{sT1}, s{sWave}, {48 * 1280}\ns_add_u32 s{sT0}, s{sT0}, s{sT1}\ns_mul_i32 s{sT1}, s{sS}, 160\ns_add_u32 s{sWoRow}, s{sT0}, s{sT1}")
        I(f"s_mul_i32 s{sLdsW}, s{sWave}, 7680\ns_mov_b32 s{m60}, -1\ns_mov_b32 s{m60+1}, 0x0fffffff\ns_mov_b32 s{WT+3}, 0x20000\ns_mov_b32 s{sRetry}, 0")
        I(f"v_and_b32 v8, 15, v0\nv_lshrrev_b32 v9, 4, v0")
        I(f"v_lshrrev_b32 v10, 1, v8\nv_mul_u32_u24 v10, 384, v10\nv_and_b32 v11, 1, v8\nv_lshl_add_u32 v11, v9, 1, v11\nv_lshl_add_u32 v{vKoff}, v11, 4, v10")
        I(f"v_mul_u32_u24 v10, 768, v9\nv_lshl_add_u32 v{vVoff}, v8, 4, v10")
        I(f"s_mul_i32 s{sT0}, s{sH}, {HSTR}\ns_mul_i32 s{sT1}, s{sS}, {128 * 384}\ns_add_u32 s{sT1}, s{sT1}, s{sT0}\ns_mul_i32 s{sT2}, s{sWave}, {32 * 384}\ns_add_u32 s{sT1}, s{sT1}, s{sT2}\ns_add_u32 s{sOffG}, s{sT1}, {3072 * 384}")
        I(f"s_mul_i32 s{sT1}, s{sS}, {512 * 384}\ns_add_u32 s{sT1}, s{sT1}, s{sT0}\ns_mul_i32 s{sT2}, s{sWave}, {128 * 384}\ns_add_u32 s{sOffP}, s{sT1}, s{sT2}")
        I(f"s_mul_i32 s{sLdsVS}, s{sWave}, 6144\ns_add_u32 s{sLdsVS}, s{sLdsVS}, {VS}")
        I(f"s_mov_b32 s{XO+2}, 2560\ns_mov_b32 s{XO+3}, 0x20000\ns_mul_i32 s{sT0}, s{sS}, 160\nv_lshlrev_b32 v7, 2, v0\nv_min_u32 v7, 156, v7")
        for srd, o in ((KA, sOffG), (VA, sOffG), (KB, sOffP), (VB, sOffP)): I(f"s_sub_u32 s{srd+2}, {KV_BYTES}, s{o}\ns_mov_b32 s{srd+3}, 0x20000")
        I(f"s_mov_b32 s{WS+2}, {WS_BYTES}\ns_mov_b32 s{WS+3}, 0x20000")
        I(f"s_mul_i32 s{sH1grp}, s{sH}, {H1_H}\ns_mul_i32 s{sT1}, s{sS}, {H1_S}\ns_add_u32 s{sH1own}, s{sH1grp}, s{sT1}")
        I(f"s_mul_i32 s{sH2grp}, s{sH}, {H2_H}\ns_add_u32 s{sH2grp}, s{sH2grp}, {H2}\ns_mul_i32 s{sT1}, s{sS}, {H2_S}\ns_add_u32 s{sH2own}, s{sH2grp}, s{sT1}")
        I(f"s_mul_i32 s{sH3grp}, s{sS}, {H3_S}\ns_add_u32 s{sH3grp}, s{sH3grp}, {H3}\ns_mul_i32 s{sT1}, s{sH}, {H3_H}\ns_add_u32 s{sH3own}, s{sH3grp}, s{sT1}")
        self.clear_prep([[("P", 0)], [("C", 0)], [("P", 4)], [("2", 0), ("3", 0)]])
        a.wait(lg=0)
        if self.c.get("diag"): I(f"v_mov_b32 v{vStamp}, 0\nv_writelane_b32 v{vStamp}, s{sST}, 0"); self.nstamp = 1
        def srds(l):
            for srd, p, o in l: I(f"s_add_u32 s{srd}, s{p}, s{o}\ns_addc_u32 s{srd+1}, s{p+1}, 0")
        def small():
            I(f"s_mov_b32 s{WS}, s{pWS}\ns_mov_b32 s{WS+1}, s{pWS+1}\ns_mov_b32 s{XO}, s{pX}\ns_mov_b32 s{XO+1}, s{pX+1}")
            self.clear_issue("clr")
            I(f"buffer_load_dword v12, v7, {s4(XO)}, s{sT0} offen\nbuffer_load_dword v13, v7, {s4(XO)}, s{sT0} offen offset:1280")
        n0, n1 = self.c.get("I", (12, 28))
        srds([(KA, pKA, sOffG)])
        self.stream(min(n0, 12), paced=False)
        srds([(VA, pVA, sOffG), (KB, pKB, sOffP), (VB, pVB, sOffP)])
        self.stream_to(n0, paced=False)
        small()
        self.stream_to(n1, paced=False)
        if self.c.get("st0"):
            self.stamp("end")
            n = len(a.vm.ent)
            for k in (1, 3, 6, 9, 12, 15, 18, n): a.wait(vm=n - k); self.stamp("end")
        if self.c.get("cpf") == 1: self.code_prefetch("L_pf0", "L_pf9")
        I(f"v_mul_u32_u24 v10, 26, v0\nv_lshrrev_b32 v10, 8, v10\nv_mul_u32_u24 v11, 10, v10\nv_sub_u32 v11, v0, v11\nv_mul_u32_u24 v10, 1280, v10\nv_lshl_add_u32 v{vWo}, v11, 4, v10")
        I("v_and_b32 v10, 1, v0\nv_cmp_eq_u32 vcc, 1, v10\nv_mov_b32 v11, 0xffff\nv_mov_b32 v20, 0xffff0000\nv_cndmask_b32 v11, v11, v20, vcc\nv_bfe_u32 v10, v0, 1, 2")
        for j in range(4): I(f"v_cmp_eq_u32 vcc, {j}, v10\nv_cndmask_b32 v{vMask+j}, 0, v11, vcc")
        for m, lo, hi in ((mODD, 0xaaaaaaaa, 0xaaaaaaaa), (mRG1, 0xffff0000, 0), (mRG2, 0, 0xffff), (mRG3, 0, 0xffff0000), (mWOST, 0x5555, 0x5555), (mN10, 0x03ff03ff, 0x03ff03ff), (mBIT1, 0xcccccccc, 0xcccccccc), (mL63, 0, 0x80000000)):
            I(f"s_mov_b32 s{m}, {lo:#x}\ns_mov_b32 s{m+1}, {hi:#x}")
        I(f"s_cmp_eq_u32 s{sWave}, 3\ns_cselect_b64 {sp(mW3)}, -1, 0\ns_min_u32 s{sW2}, s{sWave}, 2")
        I(f"s_getreg_b32 s{sXcc}, hwreg(HW_REG_XCC_ID, 0, 4)\ns_add_u32 s{sXcc}, s{sXcc}, 1")
        I(f"s_mul_i32 s{sT0}, s{sWave}, 160\ns_add_u32 s{sT0}, s{sT0}, {XROW}\nv_add_u32 v10, s{sT0}, v7\nv_add_u32 v11, {ONES}, v7\nv_mov_b32 v20, 0x3f803f80")
        I("ds_write_b32 v11, v20\nds_write_b32 v10, v12\nds_write_b32 v10, v13 offset:640")
        I(f"s_mov_b32 s{XO}, s{pOUT}\ns_mov_b32 s{XO+1}, s{pOUT+1}")
    def clear_prep(self, jobs):
        I = self.a.I
        I("v_mov_b32 v16, -1\nv_mov_b32 v17, -1\nv_mov_b32 v18, -1\nv_mov_b32 v19, -1\nv_lshlrev_b32 v14, 4, v0")
        def seg(k, inst, hi):
            if k in "PC": return sH1own, inst * H1_I + (1024 if k == "C" else 0), -1
            if k == "2": return sH2own, inst * H2_I - 512 * hi, -1
            return sH3own, inst * H3_I - 512 * hi, 0xfff
        for w, job in enumerate(jobs):
            lo = seg(*job[0], 0); hi = seg(*job[-1], 1)
            for (r, o, m), dst, md in ((lo, sT1, sClr), (hi, sT2, sClr + 1)):
                if w == 0: I(f"s_add_u32 s{dst}, s{r}, {o & 0xffffffff}\ns_mov_b32 s{md}, {m}")
                else: I(f"s_add_u32 s{sOff}, s{r}, {o & 0xffffffff}\ns_cmp_eq_u32 s{sWave}, {w}\ns_cselect_b32 s{dst}, s{sOff}, s{dst}\ns_cselect_b32 s{md}, {m}, s{md}")
        self.off_val = None
        I(f"v_mov_b32 v15, s{sT1}\nv_mov_b32 v20, s{sT2}\nv_cmp_lt_u32 vcc, 31, v0\nv_cndmask_b32 v15, v15, v20, vcc\nv_add_u32 v15, v15, v14")
    def clear_issue(self, tag, local_ok=False):
        I = self.a.I
        I(f"s_mov_b64 exec, {sp(sClr)}")
        self.publish(f"buffer_store_dwordx4 v[16:19], v15, {s4(WS)}, 0 offen {{pol}}", local_ok, tag=tag)
        I("s_mov_b64 exec, -1")
    def tlb_touch(self):
        a = self.a; I = a.I
        ent = []
        for p, o, span in ((pWQA, sWqRow, 20 * 12288), (pKA, sOffG, 12288), (pVA, sOffG, 12288), (pWOA, sWoRow, 48 * 1280), (pWQB, sWqRow, 20 * 12288),
                           (pKB, sOffP, 49152), (pWOB, sWoRow, 48 * 1280), (pVB, sOffP, 49152)):
            for b in range(2 if o in (sOffG, sOffP) else 1): ent.append((p, o, b * BSTR))
        if self.c["tlb"] > 1:
            ent += [(pWS, None, 0), (pWS, None, 2 << 20), (pWS, None, 4 << 20), (pDBG, None, 0), (pOUT, None, 0)]
        for i, (p, o, c) in enumerate(ent):
            if o is None: I(f"s_add_u32 s{sT1}, s{p}, {c}\ns_addc_u32 s{sT2}, s{p+1}, 0")
            else:
                I(f"s_add_u32 s{sT1}, s{p}, s{o}\ns_addc_u32 s{sT2}, s{p+1}, 0")
                if c: I(f"s_add_u32 s{sT1}, s{sT1}, {c}\ns_addc_u32 s{sT2}, s{sT2}, 0")
            if i == 0: I(f"v_mov_b32 v14, s{sT1}\nv_mov_b32 v15, s{sT2}")
            else: I(f"v_writelane_b32 v14, s{sT1}, {i}\nv_writelane_b32 v15, s{sT2}, {i}")
        I(f"s_mov_b64 exec, {(1 << len(ent)) - 1}\nglobal_load_dword v250, v[14:15], off nt\ns_mov_b64 exec, -1")
    def code_prefetch(self, lo, hi):
        a = self.a; I = a.I
        l = a.label("Lp")
        I(f"s_getpc_b64 {sp(sT1)}"); a.raw(f"{l}:")
        I(f"s_add_u32 s{sT1}, s{sT1}, {lo}-{l}\ns_addc_u32 s{sT2}, s{sT2}, 0")
        I(f"s_lshr_b32 s{sT0}, s{sWG}, 3\ns_lshl_b32 s{sT0}, s{sT0}, 2\ns_add_u32 s{sT0}, s{sT0}, s{sWave}\ns_lshl_b32 s{sT0}, s{sT0}, 13")
        I(f"v_lshl_add_u32 v30, v0, 7, s{sT0}\nv_cmp_gt_u32 vcc, {hi}-{lo}, v30\ns_mov_b32 m0, {JUNK}")
        I("s_and_b64 exec, vcc, -1"); a.skip_begin("s_cbranch_execz")
        I(f"global_load_lds_dword v30, {sp(sT1)}")
        a.skip_end()
        I("s_mov_b64 exec, -1")
    def arrive(self):
        a = self.a; I = a.I
        I(f"s_cmp_lg_u32 s{sWave}, 0"); a.skip_begin("s_cbranch_scc1")
        I(f"s_and_b32 s{sT0}, s{sWG}, 3\ns_lshl_b32 s{sT0}, s{sT0}, 3\ns_lshl_b32 s{sT0}, s{sXcc}, s{sT0}\ns_and_b32 s{sT1}, s{sWG}, 0xfc")
        I(f"v_mov_b32 v8, s{sT1}\nv_mov_b32 v9, s{sT0}\ns_mov_b64 exec, 1")
        I(f"global_atomic_add v8, v9, {sp(pDBG)} sc1\ns_mov_b64 exec, -1")
        a.skip_end()
    def handshake(self, between):
        a = self.a; I = a.I
        I("v_lshlrev_b32 v7, 2, v0")
        ld = f"global_load_dword v8, v7, {sp(pDBG)} sc1"
        I(ld); last = len(a.vm.ent) - 1
        between()
        n = a.vm.need(last)
        if n is not None: a.wait(vm=n)
        chk = a.label("Lc"); rt = a.label("Lr")
        a.raw(f"{chk}:"); a.no_inject += 1
        I("v_subrev_u32 v9, 0x01010101, v8\nv_not_b32 v10, v8\nv_and_b32 v9, v9, v10\nv_and_b32 v9, 0x80808080, v9\nv_cmp_ne_u32 vcc, 0, v9")
        I(f"s_cbranch_vccnz {rt}")
        self.retry_block(rt, chk, [ld]); a.no_inject -= 1
        I(f"s_and_b32 s{sT0}, s{sWG}, 3\ns_lshl_b32 s{sT0}, s{sT0}, 3\nv_lshrrev_b32 v8, s{sT0}, v8\nv_and_b32 v8, 0xff, v8")
        I(f"s_bfe_u32 s{sT0}, s{sWG}, 0x30002\nv_and_b32 v9, 7, v0\nv_cmp_eq_u32 {sp(sT1)}, s{sT0}, v9\nv_cmp_ne_u32 vcc, s{sXcc}, v8")
        I(f"s_and_b64 vcc, vcc, {sp(sT1)}\ns_cmp_eq_u64 vcc, 0\ns_cselect_b32 s{sLocal}, 1, 0")
    WQB = [(24, 28, 32), (34, 38, 42), (44, 48, 52)]
    def wq_pre(self, ty):
        a = self.a; I = a.I
        I(f"v_bfe_u32 v7, v0, 2, 2\nv_lshrrev_b32 v9, 4, v0\nv_lshl_add_u32 v8, v9, 3, v7\nv_lshl_add_u32 v7, v9, 2, v7")
        I(f"v_and_b32 v9, 3, v0\nv_lshlrev_b32 v9, 3, v9\ns_mul_i32 s{sT0}, s{sWave}, 96\ns_add_u32 s{sT0}, s{sT0}, {WQ[ty]}\nv_add_u32 v9, s{sT0}, v9")
        I(f"s_movk_i32 s{sT0}, 384\nv_mad_u32_u24 v8, v8, s{sT0}, v9\nv_mad_u32_u24 v7, v7, s{sT0}, v9")
        for T, (b0, b1, b2) in enumerate(self.WQB):
            for t, r in ((0, b0), (1, b1)):
                I(f"ds_read_b64_tr_b16 {v2(r)}, v8 offset:{12288 * t + 32 * T}\nds_read_b64_tr_b16 {v2(r+2)}, v8 offset:{12288 * t + 1536 + 32 * T}")
            I(f"ds_read_b64_tr_b16 {v2(b2)}, v7 offset:{24576 + 32 * T}")
    def wq_addr(self, b, L):
        I = self.a.I
        I(f"s_mul_i32 s{sT0}, s{sWave}, 160\ns_add_u32 s{sT0}, s{sT0}, {XROW + 640 * b}\nv_mov_b32 v22, s{sT0}\nv_mov_b32 v23, {ONES}")
        I(f"v_cndmask_b32 v23, v22, v23, {sp(mODD)}\nv_lshrrev_b32 v21, 4, v0\nv_lshl_add_u32 v22, v21, 4, v23\nv_lshl_add_u32 v23, v21, 3, v23")
    def wq_main(self, b, L, local_ok=True, hoisted=False, hoist=False):
        a = self.a; I = a.I; inst = 4 * b + L; needC = inst < 2
        if not hoisted: self.wq_addr(b, L)
        I("ds_read_b128 v[12:15], v22\nds_read_b128 v[16:19], v22 offset:64\nds_read_b64 v[20:21], v23 offset:128")
        I(f"s_lshl_b32 s{sT0}, s{sWave}, 8\nv_lshl_add_u32 v7, v0, 2, s{sT0}\ns_add_u32 s{sOffP}, s{sH1own}, {inst * H1_I}")
        if hoist: self.qg_addr(b, L)
        D = [8, 24, 28]
        for T, (b0, b1, b2) in enumerate(self.WQB):
            I(f"v_mfma_f32_16x16x32_bf16 {v4(D[T])}, v[12:15], {v4(b0)}, 0")
            I(f"v_mfma_f32_16x16x32_bf16 {v4(D[T])}, v[16:19], {v4(b1)}, {v4(D[T])}")
        I("v_mfma_f32_16x16x32_bf16 v[34:37], v[12:15], v[12:15], 0\nv_mfma_f32_16x16x32_bf16 v[34:37], v[16:19], v[16:19], v[34:37]")
        for T, (b0, b1, b2) in enumerate(self.WQB):
            I(f"v_mfma_f32_16x16x16_bf16 {v4(D[T])}, v[20:21], {v2(b2)}, {v4(D[T])}")
        I("v_mfma_f32_16x16x16_bf16 v[34:37], v[20:21], v[20:21], v[34:37]")
        for r in range(2 if needC else 1):
            I(f"v_cndmask_b32 v{22+r}, v{8+r}, v{24+r}, {sp(mRG1)}\nv_cndmask_b32 v{22+r}, v{22+r}, v{28+r}, {sp(mRG2)}\nv_cndmask_b32 v{22+r}, v{22+r}, v34, {sp(mRG3)}\nv_min_u32 v{22+r}, -2, v{22+r}")
            self.publish(f"buffer_store_dword v{22+r}, v7, {s4(WS)}, s{sOffP} offen offset:{1024 * r} {{pol}}", local_ok)
    def qg_addr(self, b, L):
        I = self.a.I
        I(f"v_and_b32 v23, 15, v0\nv_lshrrev_b32 v54, 4, v0\nv_mul_u32_u24 v54, {H1_S}, v54\nv_lshl_add_u32 v54, v23, 4, v54\ns_lshl_b32 s{sT0}, s{sWave}, 8")
        I(f"s_add_u32 s{sOffG}, s{sH1grp}, s{sT0}\ns_add_u32 s{sOffG}, s{sOffG}, {(4 * b + L) * H1_I}\ns_add_u32 s{sOffG2}, s{sOffG}, {4 * H1_S}")
    def qg(self, b, L, between=None, hoisted=False, after=None, tail=False):
        a = self.a; I = a.I; inst = 4 * b + L; needC = inst < 2; ty = L & 1
        if not hoisted: self.qg_addr(b, L)
        loads = [f"buffer_load_dwordx4 v[12:15], v54, {s4(WS)}, s{sOffG} offen sc1", f"buffer_load_dwordx4 v[16:19], v54, {s4(WS)}, s{sOffG2} offen sc1"]
        if needC: loads += [f"buffer_load_dwordx4 v[20:23], v54, {s4(WS)}, s{sOffG} offen offset:1024 sc1", f"buffer_load_dwordx4 v[24:27], v54, {s4(WS)}, s{sOffG2} offen offset:1024 sc1"]
        def pre():
            I(f"v_and_b32 v32, 15, v0\nv_lshrrev_b32 v33, 4, v0\nv_and_b32 v34, 1, v33\nv_lshlrev_b32 v34, 1, v34\nv_lshrrev_b32 v28, 1, v33\nv_or_b32 v34, v34, v28\nv_lshl_add_u32 v34, v32, 2, v34")
            I(f"s_mul_i32 s{sT0}, s{sWave}, 96\ns_add_u32 s{sT0}, s{sT0}, {QB + 384 * b}\nv_lshl_add_u32 v34, v34, 1, s{sT0}")
            I(f"s_lshl_b32 s{sT0}, s{sWave}, 8\ns_add_u32 s{sT0}, s{sT0}, {CT + 1024 * ty}\nv_lshl_add_u32 v29, v0, 2, s{sT0}")
            if not needC: I("ds_read_b32 v20, v29")
            self.q_addr(b)
            I(f"v_mov_b32 v35, {f32(1 / (640 * SCALE))}\nv_mov_b32 v32, {f32(1 / (640 * SCALE * SCALE))}\nv_mov_b32 v33, {f32(1e-5 / (SCALE * SCALE))}")
        first = hoisted and self.c.get('first', 3) & 2
        if first: pre()
        def shadow():
            if not first: pre()
            if tail and self.c.get("tq", 0): self.tail_addr(b, L)
            if between: between()
        self.gather(loads, range(12, 28 if needC else 20), 28, between=shadow, sleep=self.lsleep())
        if after: after()
        def red(r):
            I(f"v_pk_add_f32 {v2(r)}, {v2(r)}, {v2(r+4)}\nv_pk_add_f32 {v2(r+2)}, {v2(r+2)}, {v2(r+6)}")
            I(f"v_permlane32_swap_b32 v{r}, v{r+1}\nv_permlane32_swap_b32 v{r+2}, v{r+3}\nv_add_f32 v{r}, v{r}, v{r+1}\nv_add_f32 v{r+2}, v{r+2}, v{r+3}")
            I(f"v_permlane16_swap_b32 v{r}, v{r+2}\nv_add_f32 v{r}, v{r}, v{r+2}")
        red(12)
        I(f"v_readlane_b32 s{sT0}, v12, 12\nv_readlane_b32 s{sT1}, v12, 44")
        if needC: red(20); I(f"v_mul_f32 v20, {f32(SCALE)}, v20\nds_write_b32 v29, v20")
        I(f"s_mov_b32 exec_lo, 0x0fff0fff\ns_mov_b32 exec_hi, 0x0fff0fff")
        I(f"v_mul_f32 v15, s{sT1}, v35\nv_fma_f32 v14, s{sT0}, v32, v33\nv_fma_f32 v14, -v15, v15, v14\nv_max_f32 v14, v33, v14\nv_rsq_f32 v14, v14")
        I(f"v_fma_f32 v12, -v15, v20, v12\nv_mul_f32 v12, v12, v14\nv_cvt_pk_bf16_f32 v12, v12, v12")
        I("ds_write_b16 v34, v12\ns_mov_b64 exec, -1")
        a.barrier()
    def tail_addr(self, b, L):
        I = self.a.I; inst = 4 * b + L
        I(f"v_and_b32 v50, 15, v0\nv_lshlrev_b32 v50, 5, v50\nv_and_b32 v51, 16, v0\ns_mul_i32 s{sT0}, s{sWave}, 1536\ns_add_u32 s{sT0}, s{sT0}, {ATT}\nv_add3_u32 v50, v50, v51, s{sT0}")
        I(f"s_lshl_b32 s{sT0}, s{sWave}, 2\ns_add_u32 s{sT0}, s{sT0}, {STAT}\nv_mov_b32 v51, s{sT0}")
        self.wo_addr(b, L)
        I(f"v_mov_b32 v9, {STAT}\ns_lshl_b32 s{sT0}, s{sWave}, 8\ns_add_u32 s{sT0}, s{sT0}, {ATT}\nv_lshl_add_u32 v10, v0, 2, s{sT0}")
        I(f"s_lshl_b32 s{sT0}, s{sWave}, 7\nv_lshl_add_u32 v11, v0, 1, s{sT0}\ns_add_u32 s{sOffP}, s{sH2own}, {inst * H2_I}")
    def q_addr(self, b):
        self.a.I(f"v_and_b32 v30, 1, v0\nv_lshrrev_b32 v31, 4, v0\nv_lshlrev_b32 v31, 5, v31\nv_lshl_add_u32 v30, v30, 4, v31\nv_add_u32 v30, {QB + 384 * b}, v30")
    def att(self, b, L, hook1=None, hook2=None, hookm=None, pre_bar=None, guard=False, hoist=False, qaddr=False):
        a = self.a; I = a.I; ty = L & 1; G = 16 if ty else 4; Kn = "KB" if ty else "KA"; Vn = "VB" if ty else "VA"
        vM, vL = 52, 53
        if not qaddr: self.q_addr(b)
        for t in range(3): I(f"ds_read_b128 {v4(vQ + 4 * t)}, v30 offset:{128 * t}")
        def lds_v(g):
            a.wait_tag(("VS", b, g))
            I(f"v_lshl_add_u32 v54, v0, 4, s{sLdsVS}")
            for c in range(3): I(f"ds_read_b128 {v4(vU + 2 + 4 * c)}, v54 offset:{(g - 2) * 3072 + 1024 * c}")
        early = (not ty) and L == 2
        if early: lds_v(2)
        if not (qaddr and self.c.get("tq", 0)):
            if self.c.get("fill", 1): a.queue(lambda: self.tail_addr(b, L)); a.drain(self.c.get("fill0", 8))
            else: self.tail_addr(b, L)
        def D(g): return vACC + 4 * (g % 3)
        dm = "row_mask:0xf"; NP = G // 2
        order = list(range(G)) if ty else ([2, 0, 1, 3] if early else [0, 1, 2, 3])
        at = {g: i for i, g in enumerate(order)}
        U = lambda g: vU + at[g] // 2
        bank = lambda g, hi: (1 << (at[g] & 1)) << (2 * hi)
        for g in range(G + 2):
            K = SLOT[(Kn, g)] if g < G else None
            if K: self.check_slot(Kn, b, g)
            e = g - 2
            if K: I(f"v_mfma_f32_16x16x32_bf16 {v4(D(g))}, {K[0]}, {v4(vQ)}, 0")
            if g == 1 and self.c.get("fa"): self.fs("g1")
            if K: a.drain(2)
            if K: I(f"v_mfma_f32_16x16x32_bf16 {v4(D(g))}, {K[1]}, {v4(vQ+4)}, {v4(D(g))}")
            if K and e < 0: a.drain(2)
            if 0 <= e < G: I(f"v_add_f32_dpp v{U(e)}, v{D(e)}, v{D(e)+1} quad_perm:[0,0,2,2] {dm} bank_mask:{bank(e, 0):#x}")
            if K: I(f"v_mfma_f32_16x16x32_bf16 {v4(D(g))}, {K[2]}, {v4(vQ+8)}, {v4(D(g))}")
            if g == G + 1 and NP > 3: I(f"v_max3_f32 v{vM}, v{vU}, v{vU+1}, v{vU+2}\nv_max3_f32 v{vM}, v{vM}, v{vU+3}, v{vU+4}")
            if K and e < 0: a.drain(2)
            if hook1 and g < G: hook1(g)
            if 0 <= e < G: I(f"v_add_f32_dpp v{U(e)}, v{D(e)+2}, v{D(e)+3} quad_perm:[0,0,2,2] {dm} bank_mask:{bank(e, 1):#x}")
        if self.c.get("fa"): self.fs("p1")
        if hookm: hookm()
        if NP > 3: I(f"v_max3_f32 v{vM}, v{vM}, v{vU+5}, v{vU+6}\nv_max_f32 v{vM}, v{vM}, v{vU+7}")
        else: I(f"v_max_f32 v{vM}, v{vU}, v{vU+1}")
        red = ("row_ror:8 row_mask:0xf", "row_ror:4 row_mask:0xf", "row_bcast:15 row_mask:0xa", "row_bcast:31 row_mask:0xc")
        for x in red: I(f"v_max_f32_dpp v{vM}, v{vM}, v{vM} {x} bank_mask:0xf")
        I(f"v_readlane_b32 s{sM}, v{vM}, 63")
        def prob(p): return [f"v_subrev_f32 v{vU+p}, s{sM}, v{vU+p}", f"v_exp_f32 v{vU+p}, v{vU+p}",
                             f"v_mov_b32 v{vL}, v{vU+p}" if p == 0 else f"v_add_f32 v{vL}, v{vL}, v{vU+p}",
                             f"v_cvt_pk_bf16_f32 v{vU+p}, v{vU+p}, v{vU+p}",
                             f"v_mov_b32_dpp v{vU+p}, v{vU+p} quad_perm:[1,1,3,3] {dm} bank_mask:0xf"]
        def diag(i, j):
            d = vQ + 4 * (i & 1) + j; u = vU + i // 2
            if (j >> 1) == (i & 1): I(f"v_and_b32 v{d}, v{u}, v{vMask + j}")
            else: I(f"v_and_b32_dpp v{d}, v{u}, v{vMask + j} {'row_shl:4' if i & 1 else 'row_shr:4'} {dm} bank_mask:0xf bound_ctrl:0")
        a.drain()
        p0 = prob(0); p1 = prob(1)
        for t in (p0[0], p0[1], p1[0], p0[3 - 1], p0[3], p1[1], f"v_mov_b32 v{vM}, s{sM}", p0[4]): I(t)
        pend = p1[2:]
        for j in (0, 1): diag(0, j)
        I(pend.pop(0))
        for j in (2, 3): diag(0, j)
        if guard: a.barrier()
        if self.c.get("fa"): self.fs("p2start")
        lred = []
        for i, g in enumerate(order):
            self.check_slot(Vn, b, g)
            if (Vn, g) in SLOT: V = SLOT[(Vn, g)]
            else:
                if not early: lds_v(g)
                V = [v4(vU + 2 + 4 * c) for c in range(3)]
            A = v4(vQ + 4 * (i & 1))
            nx = i + 1 < G
            if (i & 1) == 1 and i // 2 + 2 < NP: assert not pend; pend = prob(i // 2 + 2)
            if i == G - 2: assert not pend; lred = [f"v_add_f32_dpp v{vL}, v{vL}, v{vL} {x} bank_mask:0xf" for x in red]
            for c in range(3):
                acc = v4(vACC + 4 * c)
                I(f"v_mfma_f32_16x16x32_bf16 {acc}, {A}, {V[c]}, {acc if i else 0}")
                if nx and c < 2: diag(i + 1, 2 * c + 0 if (i + 1) & 1 == 0 else (2 * c + 2) % 4); diag(i + 1, 2 * c + 1 if (i + 1) & 1 == 0 else (2 * c + 3) % 4)
                if pend: I(pend.pop(0))
                if lred: I(lred.pop(0))
                if i == 0 and c == 1: I(f"ds_write_b32 v51, v{vM}")
                if i == G - 1 and c == 1: I(f"s_mov_b64 exec, {sp(mL63)}\nds_write_b32 v51, v{vL} offset:16\ns_mov_b64 exec, -1")
            if early and g == 2: lds_v(3)
            if hook2: hook2(i)
        if self.c.get("fa"): self.fs("p2end")
        for c, (lo, hi) in enumerate(((0xffffffff, 0), (0x00ff00ff, 0xff00ff00), (0, 0xffffffff))):
            I(f"s_mov_b32 exec_lo, {lo:#x}\ns_mov_b32 exec_hi, {hi:#x}\nds_write_b128 v50, {v4(vACC + 4 * c)} offset:{512 * c}")
        I("s_mov_b64 exec, -1")
        if pre_bar: pre_bar()
        self.fs("att_end")
        a.barrier()
        self.combine(b, L)
        self.fs("pub2")
    def combine(self, b, L):
        a = self.a; I = a.I; inst = 4 * b + L
        I("ds_read_b128 v[44:47], v9\nds_read_b128 v[48:51], v9 offset:16")
        for i in range(0, 8, 2): I(f"ds_read2st64_b32 {v2(12 + i)}, v10 offset0:{3 * i} offset1:{3 * i + 3}")
        I("v_max3_f32 v52, v44, v45, v46\nv_max_f32 v52, v52, v47")
        for w in range(4): I(f"v_sub_f32 v{44+w}, v{44+w}, v52")
        for w in range(4): I(f"v_exp_f32 v{44+w}, v{44+w}")
        for w in range(4): I(f"v_add_f32 v{12 + 2 * w}, v{12 + 2 * w}, v{13 + 2 * w}")
        I("v_mul_f32 v20, v44, v12\nv_fmac_f32 v20, v45, v14\nv_fmac_f32 v20, v46, v16\nv_fmac_f32 v20, v47, v18")
        I("v_mul_f32 v53, v44, v48\nv_fmac_f32 v53, v45, v49")
        I("v_mov_b32_dpp v21, v20 quad_perm:[1,1,3,3] row_mask:0xf bank_mask:0xf")
        I("v_fmac_f32 v53, v46, v50\nv_fmac_f32 v53, v47, v51\nv_cvt_pk_bf16_f32 v20, v20, v21")
        I(f"v_cndmask_b32 v52, v52, v53, {sp(mBIT1)}\nv_cndmask_b32 v20, v20, v52, {sp(mW3)}\nv_min_u32 v20, -2, v20")
        I(f"s_not_b64 exec, {sp(mODD)}")
        self.publish(f"buffer_store_dword v20, v11, {s4(WS)}, s{sOffP} offen {{pol}}", True)
        I("s_mov_b64 exec, -1")
    def wo_addr(self, b, L):
        I = self.a.I
        I(f"v_bfe_u32 v8, v0, 1, 3\nv_lshrrev_b32 v9, 4, v0\nv_and_b32 v7, 1, v0\nv_lshl_add_u32 v7, v9, 1, v7\nv_lshlrev_b32 v7, 4, v7\ns_movk_i32 s{sT0}, {H2_S}\nv_mad_u32_u24 v7, v8, s{sT0}, v7")
        I(f"v_lshl_add_u32 v8, v9, 1, v8\nv_and_b32 v8, 7, v8\nv_mul_u32_u24 v8, {H2_S}, v8\ns_add_u32 s{sOffW}, s{sH2grp}, {(4 * b + L) * H2_I}")
    def wo(self, b, L, between=None, hoisted=False, hoist=False, after=None):
        a = self.a; I = a.I; inst = 4 * b + L; ty = L & 1
        if not hoisted: self.wo_addr(b, L)
        loads = [f"buffer_load_dwordx2 v[52:53], v8, {s4(WS)}, s{sOffW} offen offset:384 sc1"]
        loads += [f"buffer_load_dwordx4 {v4(12 + 4 * t)}, v7, {s4(WS)}, s{sOffW} offen offset:{128 * t} sc1" for t in range(3)]
        S = [24, 28, 32, 36, 40, 44]
        def rd(kk, reg, tile):
            o = 10240 * (kk >> 1) + 1280 * (kk & 1) + 32 * tile
            I(f"ds_read_b64_tr_b16 {v2(reg)}, v10 offset:{o}\nds_read_b64_tr_b16 {v2(reg + 2)}, v10 offset:{o + 640}")
        def pre():
            I(f"v_bfe_u32 v10, v0, 2, 2\nv_and_b32 v11, 48, v0\nv_add_u32 v10, v10, v11\nv_mul_u32_u24 v10, 160, v10\nv_and_b32 v11, 3, v0\nv_lshl_add_u32 v10, v11, 3, v10")
            I(f"s_lshl_b32 s{sT0}, s{sW2}, 6\ns_add_u32 s{sT1}, s{sT0}, {WO[ty]}\nv_add_u32 v10, s{sT1}, v10")
            for kk in range(6): rd(kk, S[kk], 0)
            I(f"v_and_b32 v11, 15, v0\nv_lshlrev_b32 v11, 1, v11\nv_and_b32 v9, 32, v0\nv_add3_u32 v11, v11, v9, s{sT0}\ns_add_u32 s{sOffP}, s{sH3own}, {inst * H3_I}")
            if hoist: self.yg_addr()
            if between: between()
        D0, D1 = 48, 24
        mt = lambda D, t, B, first: f"v_mfma_f32_16x16x32_bf16 {v4(D)}, {v4(12 + 4 * t)}, {v4(B)}, {0 if first else v4(D)}"
        def mm(*k): I(mt(*k))
        self.gather(loads, [52, 53] + list(range(12, 24)), 9, between=pre, sleep=self.lsleep(), first=hoisted and self.c.get('first', 3) & 1,
                    spec=[mt(D0, 0, S[0], True), mt(D0, 1, S[2], False), mt(D0, 2, S[4], False)])
        if after: after()
        dpp = lambda op, d, x, ctl: I(f"{op}_dpp v{d}, v{x}, v{x} {ctl} row_mask:0xf bank_mask:0xf")
        def fold(out):
            I(f"v_add_f32 v{D0}, v{D0}, v{D1 + 1}\nv_add_f32 v{D0 + 2}, v{D0 + 2}, v{D1 + 3}\nv_mul_f32 v{out}, v7, v{D0}\nv_fmac_f32 v{out}, v8, v{D0 + 2}")
        dpp("v_max_f32", 9, 52, "row_ror:8")
        mm(D1, 0, S[1], True); rd(0, S[2], 1); dpp("v_max_f32", 9, 9, "row_ror:4")
        mm(D1, 1, S[3], False); rd(2, S[4], 1); dpp("v_max_f32", 9, 9, "row_ror:2")
        mm(D1, 2, S[5], False); I("v_sub_f32 v52, v52, v9\nv_exp_f32 v52, v52"); rd(4, S[1], 1); I("v_mul_f32 v53, v52, v53")
        rd(1, S[3], 1); dpp("v_add_f32", 53, 53, "row_ror:8")
        rd(3, S[5], 1); dpp("v_add_f32", 53, 53, "row_ror:4")
        I(f"v_add_f32 v{D0}, v{D0}, v{D1 + 1}\nv_add_f32 v{D0 + 2}, v{D0 + 2}, v{D1 + 3}")
        dpp("v_add_f32", 53, 53, "row_ror:2")
        I(f"v_mov_b32 v7, v{D0}\nv_mov_b32 v8, v{D0 + 2}\nv_rcp_f32 v53, v53")
        mm(D0, 0, S[2], True); rd(5, S[2], 1)
        I("v_mul_f32 v9, v52, v53")
        mm(D0, 1, S[4], False); mm(D0, 2, S[1], False)
        I("v_mul_f32_dpp v52, v9, v7 row_newbcast:0 row_mask:0xf bank_mask:0xf")
        mm(D1, 0, S[3], True)
        I("v_mov_b32_dpp v7, v9 row_newbcast:0 row_mask:0xf bank_mask:0xf")
        mm(D1, 1, S[5], False)
        I("v_fmac_f32_dpp v52, v9, v8 row_newbcast:2 row_mask:0xf bank_mask:0xf")
        mm(D1, 2, S[2], False)
        I("v_mov_b32_dpp v8, v9 row_newbcast:2 row_mask:0xf bank_mask:0xf")
        fold(53)
        I("v_permlane32_swap_b32 v52, v53\nv_add_f32 v52, v52, v53\nv_mov_b32 v53, v52\nv_permlane16_swap_b32 v52, v53\nv_add_f32 v52, v52, v53")
        I("v_mov_b32_dpp v53, v52 quad_perm:[1,1,3,3] row_mask:0xf bank_mask:0xf\nv_cvt_pk_bf16_f32 v52, v52, v53\nv_min_u32 v52, -2, v52")
        I(f"s_mov_b64 exec, {sp(mWOST)}")
        self.publish(f"buffer_store_dword v52, v11, {s4(WS)}, s{sOffP} offen {{pol}}", False)
        I("s_mov_b64 exec, -1")
    def yg_addr(self):
        self.a.I(f"v_lshrrev_b32 v54, 4, v0\nv_mul_u32_u24 v54, {H3_H}, v54\nv_and_b32 v9, 15, v0\nv_lshl_add_u32 v54, v9, 4, v54")
    def yg_pre(self, b, L):
        I = self.a.I
        I(f"s_mul_i32 s{sT0}, s{sWave}, {8 * H3_H}\ns_add_u32 s{sOffG}, s{sH3grp}, s{sT0}\ns_add_u32 s{sOffG}, s{sOffG}, {(4 * b + L) * H3_I}\ns_add_u32 s{sOffG2}, s{sOffG}, {4 * H3_H}")
        for j in range(4): I(f"v_and_b32 v{16 + j}, 0x3f803f80, v{vMask + j}")
        for j in range(8): I(f"v_mov_b32 v{8 + j}, 0")
    def yg(self, b, L, between=None, pre_bar=None, hoisted=False, after=None):
        a = self.a; I = a.I; inst = 4 * b + L; Yb = Y + YSZ * b
        if not hoisted: self.yg_addr(); self.yg_pre(b, L)
        loads = [f"buffer_load_dwordx4 {v4(8 + 4 * j)}, v54, {s4(WS)}, s{(sOffG, sOffG2)[j]} offen sc1" for j in range(2)]
        self.gather(loads, range(8, 16), 7, between=between, emask=sp(mN10),
                    spec=["v_mfma_f32_16x16x32_bf16 v[20:23], v[16:19], v[8:11], 0", "v_mfma_f32_16x16x32_bf16 v[20:23], v[16:19], v[12:15], v[20:23]"])
        if after: after()
        I(f"v_and_b32 v7, 15, v0\nv_lshlrev_b32 v7, 5, v7\nv_and_b32 v54, 16, v0\ns_mul_i32 s{sT0}, s{sWave}, 320\ns_add_u32 s{sT0}, s{sT0}, {Yb}\nv_add3_u32 v7, v7, v54, s{sT0}")
        I(f"s_mov_b32 exec_lo, s{mN10}\ns_mov_b32 exec_hi, 0\nds_write_b128 v7, v[20:23]\ns_mov_b64 exec, -1")
        I(f"s_mul_i32 s{sT0}, s{sWave}, 160\ns_add_u32 s{sT0}, s{sT0}, {XROW + 640 * b}\nv_lshl_add_u32 v7, v0, 2, s{sT0}\nds_read_b32 v54, v7")
        I(f"v_lshlrev_b32 v14, 3, v0\nv_add_u32 v14, {Yb}, v14")
        if L < 3: self.wq_addr(b, L + 1)
        if pre_bar: pre_bar()
        a.barrier()
        I("s_mov_b32 exec_hi, 0xff")
        I("ds_read2_b64 v[8:11], v14 offset0:0 offset1:40\nds_read2_b64 v[12:15], v14 offset0:80 offset1:120")
        I("v_lshlrev_b32 v16, 16, v54\nv_and_b32 v17, 0xffff0000, v54")
        I("v_pk_add_f32 v[8:9], v[8:9], v[10:11]\nv_pk_add_f32 v[12:13], v[12:13], v[14:15]\nv_pk_add_f32 v[8:9], v[8:9], v[12:13]")
        I("v_cvt_pk_bf16_f32 v8, v8, v9\nv_and_b32 v9, 0xffff0000, v8\nv_lshlrev_b32 v8, 16, v8\nv_pk_add_f32 v[8:9], v[8:9], v[16:17]\nv_cvt_pk_bf16_f32 v8, v8, v9")
        if L < 3: I("ds_write_b32 v7, v8")
        else:
            I(f"s_cmp_lg_u32 s{sWave}, 0"); a.skip_begin("s_cbranch_scc1")
            I(f"s_mul_i32 s{sT0}, s{sS}, 160\nv_lshlrev_b32 v7, 2, v0")
            I(f"buffer_store_dword v8, v7, {s4(XO)}, s{sT0} offen offset:{1280 * b}")
            a.skip_end()
        I("s_mov_b64 exec, -1")
    def touch(self, b, L, lvl=1):
        if self.c.get("touch", 0) < lvl: return
        a = self.a; I = a.I
        I(f"s_lshl_b32 s{sT0}, s{sWave}, 7\nv_lshl_add_u32 v31, v0, 1, s{sT0}\nv_and_b32 v31, -4, v31\ns_add_u32 s{sT1}, s{sH2own}, {(4 * b + L) * H2_I}\ns_mov_b32 m0, {JUNK}")
        I(f"buffer_load_dword v31, {s4(WS)}, s{sT1} offen sc1 lds")
        if L < 3:
            I(f"v_lshlrev_b32 v31, 1, v31\ns_add_u32 s{sT1}, s{sH1own}, {(4 * b + L + 1) * H1_I}")
            I(f"buffer_load_dword v31, {s4(WS)}, s{sT1} offen sc1 lds")
    def chain_idle(self, b, L, burst=(0, 0, 0), sh=(0, 0, 0, 0)):
        a = self.a; U = lambda n: (lambda: self.stream(n, paced=False))
        if self.c.get("skip3", 1):
            a.I(f"s_cmp_eq_u32 s{sWave}, 3"); a.skip_begin("s_cbranch_scc1")
            self.wo(b, L, hoisted=True)
            a.skip_end()
            self.yg_addr()
            self.stream(sh[0] + sh[1], paced=False)
        else:
            self.wo(b, L, between=U(burst[0]), hoisted=True, hoist=True, after=U(sh[0]))
            self.stream(sh[1], paced=False)
        self.stamp(f"wo{b}{L}")
        self.fs("pub3")
        late = self.c.get("late", 2)
        if L == 3:
            a.I(f"s_cmp_eq_u32 s{sH}, 1\ns_cbranch_scc1 L_out0")
            a.I(f"s_cmp_lg_u32 s{sH}, 0\ns_cbranch_scc1 L_fin")
            self.page()
        dfr = self.deferred; self.deferred = []
        pub = a.vm.last_tag("pub")
        for jobs in dfr: self.clear_prep(jobs); self.clear_issue("clr3")
        if L < 3 and not late: self.wq_pre((L + 1) & 1)
        if late < 2: self.yg_pre(b, L)
        a.wait_tag("pub"); a.barrier()
        if L < 3 and late: self.wq_pre((L + 1) & 1)
        if late >= 2: self.yg_pre(b, L)
        self.yg(b, L, between=lambda: (self.stream(burst[1], paced=False), self.page() if L < 3 else None), hoisted=True, after=U(sh[2]), pre_bar=(lambda: a.wait_tag("clr3")) if dfr else None)
        self.fs("xrow")
        if L == 3: return
        self.wq_main(b, L + 1, hoisted=True, hoist=True)
        self.fs("pub1")
        self.stamp(f"wq{b}{L+1}")
        self.qg(b, L + 1, between=U(burst[2]), hoisted=True, tail=True, after=lambda: (self.touch(b, L + 1) if self.c.get("touch", 3) != 3 or (b, L) == (0, 1) else None, self.stream(sh[3], paced=False)))
        self.stamp(f"qg{b}{L+1}")
    def build(self):
        a = self.a; c = self.c; W = self.W; WE = c.get("WE", W); HE = c.get("HE", 4); PG = c.get("PG", 0)
        self.off_val = None
        for x in c.get("order", "kvw"):
            if x == "w": self.add_w("wqA", pWQA, "q", 0)
            else:
                for g in range(4): self.add_kv("KA" if x == "k" else "VA", 0, g)
        self.add_w("woA", pWOA, "o", 0); self.add_w("wqB", pWQB, "q", 1)
        for g in range(16): self.add_kv("KB", 0, g)
        self.add_w("woB", pWOB, "o", 1)
        for g in range(16): self.add_kv("VB", 0, g)
        p1 = len(self.items)
        for g in range(4): self.add_kv("KA", 1, g)
        for g in range(4): self.add_kv("VA", 1, g)
        p2 = len(self.items)
        for g in range(16): self.add_kv("KB", 1, g)
        for g in range(16): self.add_kv("VB", 1, g)
        st = self.stream_to; S = lambda n: (lambda: self.stream(n))
        self.limit = p1; a.nobar = c.get('nobar', 0)
        self.setup()
        if c.get("inject", 1): a.inject = self.injector
        if c.get("streamonly"):
            self.limit = 10**9; self.npage = 0; self.hot = []; self.inl = False; self.boost = 0; a.inject = None
            for upto in c["streamonly"]:
                if isinstance(upto, tuple): st(upto[0], W=upto[1])
                else: st(upto)
                self.stamp("end")
            a.wait(vm=0); self.stamp("end")
            return self.finish()
        P = c.get("P1", dict(arr=24, hs=36, qg0=44, wo=76, yg=104, qg1=130))
        for _ in range(c.get("pad", 0)): a.I("s_nop 0")
        a.raw("L_pf0:")
        self.stamp("setup")
        a.wait_tag("clr"); a.barrier()
        self.arrive()
        st(max(P["arr"], self.index_after("wqA") + 4))
        self.stamp("arr")
        a.wait_tag("wqA"); a.barrier()
        self.wq_pre(0); self.wq_main(0, 0, local_ok=False)
        self.wq_pre(0); self.wq_main(1, 0, local_ok=False)
        self.stamp("wq")
        st(P["hs"]); self.handshake(S(W))
        P_ = lambda i: [("P", i)]
        now = [[P_(1), [("C", 1)], P_(2), [("2", 1), ("3", 1)]], [[("3", 2), ("3", 3)], [("3", 4), ("3", 5)], [("3", 6), ("3", 7)], [("3", 6), ("3", 7)]]]
        self.deferred = [[P_(3), P_(5), P_(6), P_(7)], [[("2", 2), ("2", 3)], [("2", 4), ("2", 5)], [("2", 6), ("2", 7)], [("2", 6), ("2", 7)]]]
        if not c.get("defer", 1): now += self.deferred; self.deferred = []
        for jobs in now:
            self.clear_prep(jobs); self.clear_issue("clr2"); self.stream(1)
        self.stamp("hs")
        st(P["qg0"]); self.qg(0, 0, between=S(W))
        self.stamp()
        self.att(0, 0, pre_bar=lambda: (st(self.index_after("woA")), a.wait_tag("woA"), a.wait_tag("clr2")))
        self.stamp()
        self.qg(1, 0, between=S(W))
        self.stamp("qg10")
        st(P["wo"]); self.wo(0, 0, between=S(W))
        self.stamp("wo00")
        st(P["yg"]); self.yg(0, 0, between=S(W), pre_bar=lambda: a.wait_tag("wqB"))
        self.stamp("yg00")
        self.wq_pre(1); self.wq_main(0, 1, hoisted=True)
        self.stream(3, paced=False); self.warm([0, 1, 2, "R"])
        if c.get("cpf") == 2: self.code_prefetch("L_pf1", "L_pf2")
        st(P["qg1"]); self.touch(0, 1, 2) if c.get('touch') == 2 else None; self.qg(0, 1, tail=True, between=lambda: self.stream(min(WE, p1 - self.pos), W=WE))
        a.raw("L_pf1:")
        self.stamp()
        assert self.pos >= self.index_after("woB")
        vb0 = self.index_after("woB")
        self.att(0, 1, hook1=lambda g: self.stream(min(1, p1 - self.pos), W=WE) if g % HE == HE - 1 else None,
                 hook2=lambda i: (st(min(p1, vb0 + 3 * (i + 2) + WE - 3), W=WE), self.page() if i == PG else None), pre_bar=lambda: a.wait_tag("woB"), hoist=True, qaddr=True)
        assert self.pos == p1
        a.inject = None; self.limit = p2
        self.stamp("p1end")
        self.chain_idle(0, 1)
        bu = c.get("burst", (6, 0, 0, 0)); sh = c.get("sh", (0, 9, 3, 6))
        self.att(0, 2, hookm=lambda: self.stream(bu[0], paced=False), hoist=True, qaddr=True)
        self.stamp("att02")
        self.chain_idle(0, 2, burst=bu[1:], sh=sh)
        self.stamp("p2beg")
        self.limit = len(self.items)
        n0 = c.get("n0", 9); h2 = c.get("h2", 2); q0 = self.pos
        def hook03(g):
            self.stream(max(0, min(3, q0 + n0 - self.pos, p2 + 3 * g + 3 - self.pos)), paced=False)
        self.att(0, 3, hook1=hook03, hook2=lambda i: self.stream(1, paced=False) if i % h2 == h2 - 1 else None, qaddr=True)
        self.stamp("att03")
        a.raw("L_pf2:")
        P = c.get("P2", dict(att=8, wo=34, yg=62, qg=80))
        if c.get("inject", 1): a.inject = self.injector
        st(p2 + P.get("att", 0))
        self.att(1, 0, guard=True, hook2=lambda i: self.stream(2))
        self.stamp("att10")
        st(p2 + P["wo"]); self.stamp("a"); self.wo(1, 0, between=S(W)); self.stamp("wo10"); self.wo(0, 3, between=S(W)); self.stamp("wo03")
        st(p2 + P["yg"]); self.stamp("b"); self.yg(1, 0, between=S(W)); self.stamp("yg10")
        self.wq_pre(1); self.wq_main(1, 1, hoisted=True)
        self.stream(3, paced=False); self.warm([3, 4, 5, 6])
        if c.get("cpf") == 2: self.code_prefetch("L_pf3", "L_pf9")
        st(p2 + P["qg"]); self.stamp("c"); self.touch(1, 1, 2) if c.get('touch') == 2 else None; self.qg(1, 1, tail=True, between=lambda: self.stream(WE, W=WE))
        a.raw("L_pf3:")
        self.stamp("qg11")
        vb1 = p2 + 48
        self.att(1, 1, hook1=lambda g: self.stream(1, W=WE) if g % HE == HE - 1 else None,
                 hook2=lambda i: (st(min(len(self.items), vb1 + 3 * (i + 2) + WE - 3), W=WE), self.page() if i == PG else None), hoist=True, qaddr=True)
        assert self.pos == len(self.items)
        a.inject = None
        self.stamp("p2end")
        self.chain_idle(1, 1)
        self.fine_on = c.get("fine") == 1
        self.fs("q_ready")
        self.att(1, 2, hoist=True, qaddr=True)
        self.stamp("att12")
        self.chain_idle(1, 2)
        self.fs("q_ready")
        if c.get("fine") == 2: self.fine_on = True; self.fs("q_ready")
        self.att(1, 3, hoist=True, qaddr=True)
        self.stamp("att13")
        self.chain_idle(1, 3)
        a.I("s_branch L_fin"); a.raw("L_out0:"); a.I("s_nop 7"); a.wait(vm=0, lg=0)
        self.yg(0, 3)
        a.raw("L_fin:"); a.I("s_nop 7")
        if c.get("hold"):
            a.raw("L_hold:"); a.I(f"s_memrealtime s[38:39]"); a.wait(lg=0)
            a.I(f"s_sub_u32 s38, s38, s{98 if c.get('holdat') else sST}\ns_cmp_lt_u32 s38, {c['hold']}\ns_cbranch_scc1 L_hold")
        self.fs("end")
        self.stamp("end")
        return self.finish()
    def finish(self):
        a = self.a; c = self.c
        if c.get("fine"):
            a.wait(lg=0)
            for i in range(self.nfine): a.I(f"v_writelane_b32 v{vStamp}, s{FS[i]}, {i}")
            print("fine stamps:", self.fnames)
        if c.get("diag"):
            a.I("s_sleep 100")
            a.I(f"v_writelane_b32 v{vStamp}, s{sRetry}, 62\nv_writelane_b32 v{vStamp}, s{sLocal}, 63")
            a.I(f"s_lshl_b32 s{sT0}, s{sWG}, 10\ns_lshl_b32 s{sT1}, s{sWave}, 8\ns_add_u32 s{sT0}, s{sT0}, s{sT1}\ns_add_u32 s{sT0}, s{sT0}, {DIAG}\nv_lshlrev_b32 v7, 2, v0")
            a.I(f"buffer_store_dword v{vStamp}, v7, {s4(WS)}, s{sT0} offen")
        if c.get("diag") and not c.get("fine"): print("stamps:", " ".join(self.snames))
        a.raw("L_end:"); a.raw("  s_endpgm")
        if c.get("pages", 1): self.hot = [f".p2align {c.get('hotal', 12)}\nLstR:\n  s_setpc_b64 {sp(sRet)}"] + self.hot
        a.tail = self.hot + a.tail
        a.tail.append("L_pf9:\n  s_endpgm")
        body = a.text()
        return (HEAD + f"; @launch grid=(256,1,1) block=(256,1,1) lds={LDS_BYTES}\n"
                + f'.amdgcn_target "amdgcn-amd-amdhsa--gfx950"\n.text\n.globl {NAME}\n.p2align 8\n.type {NAME},@function\n{NAME}:\n'
                + body + f'.section .rodata,"a"\n.p2align 6\n.amdhsa_kernel {NAME}\n  .amdhsa_next_free_vgpr 512\n  .amdhsa_next_free_sgpr 102\n'
                + "  .amdhsa_accum_offset 256\n  .amdhsa_group_segment_fixed_size 0\n  .amdhsa_kernarg_size 104\n  .amdhsa_user_sgpr_count 2\n"
                + "  .amdhsa_user_sgpr_kernarg_segment_ptr 1\n  .amdhsa_system_sgpr_workgroup_id_x 1\n.end_amdhsa_kernel\n")

def generate(cfg):
    global H1_I, H1_H, H1_S, H2, H2_I, H2_H, H2_S, H3, H3_I, H3_S, H3_H
    H1_S = cfg.get("H1S", 2048); H1_H = cfg.get("H1H", 8 * H1_S); H1_I = 32 * H1_H
    H2_S = cfg.get("H2S", 512); H2_H = cfg.get("H2H", 8 * H2_S); H2_I = 32 * H2_H; H2 = cfg.get("H2B", 8 * H1_I); assert H2 >= 8 * H1_I
    H3_H = cfg.get("H3H", 512); H3_S = cfg.get("H3S", 32 * H3_H); H3_I = cfg.get("H3I", max(8 * H3_S, 32 * H3_H)); H3 = cfg.get("H3B", H2 + 8 * H2_I); assert H3 >= H2 + 8 * H2_I
    assert H3 + 8 * H3_I <= DIAG
    return Gen(cfg).build()
if __name__ == "__main__":
    cfg = eval(sys.argv[2]) if len(sys.argv) > 2 else {}
    open(sys.argv[1], "w").write(generate(cfg))
```

```python
import sys, math
from dsl import Asm

NAME = "interleave_layers__sliding_block_cached__gqa_block_cached__decode_kernel"
HEAD = open("interleave_layers__sliding_block_cached__gqa_block_cached__decode.s.ref").read().split("; Override")[0]

KV_BYTES = 2 * 32 * 4096 * 384
BSTR = 32 * 4096 * 384
HSTR = 4096 * 384
W_BYTES = 640 * 6144 * 2
WS_BYTES = 434115584
H1_I, H1_H, H1_S = 524288, 16384, 2048
H2 = 8 * H1_I; H2_I, H2_H, H2_S = 131072, 4096, 512
H3 = H2 + 8 * H2_I; H3_I, H3_S, H3_H = 65536, 8192, 256
DIAG = 64 << 20
WQ = (0, 61440); WO = (30720, 92160)
VS = 122880
EX = 147456
ATT = EX; STAT = EX + 6144; Y = EX + 6208; YSZ = 1280; XROW = Y + 2 * YSZ; ONES = XROW + 1280; QB = ONES + 160; CT = QB + 768
JUNK = CT + 2048
LDS_BYTES = JUNK + 256
assert LDS_BYTES <= 163840
sWG, sWave = 2, 3
KA, VA, KB, VB, WS, WT, XO = 4, 8, 12, 16, 20, 24, 28
pX, pKA, pVA, pWQA, pWOA, pKB, pVB, pWQB, pWOB, pOUT, pDBG, pWS = 32, 34, 36, 38, 40, 44, 46, 48, 50, 52, 54, 56
sH, sS, sLocal, sOff, sRetry, sT0, sT1, sT2 = 58, 59, 60, 61, 62, 63, 64, 65
sH1own, sH1grp, sH2own, sH2grp, sH3own, sH3grp, sOffG, sOffP = 66, 67, 68, 69, 70, 71, 72, 73
mODD, mHI8, mHI32, mWOST, mRG1, mRG2, mRG3, m60 = 74, 76, 78, 80, 82, 84, 86, 88
sXcc, sWqRow, sWoRow, sLdsW, sLdsVS = 90, 91, 92, 93, 94
sST = 96; m40 = 98; mBIT1 = 100; mW3 = 42; mN10 = 32; sW2 = 95; sOffG2 = 35; sClr = 0; sM = 34; sOffW = 76; sRet = 78; sPub2 = 44; sXROWw, sYw, sQw, sCTw, sATTw, sSTATw, sCOMBw = 45, 56, 57, 38, 39, 54, 55; sH1c = 77; mQ13 = 98; mPub1 = 52; mPub2 = 46; mL63 = 36
FS = [40, 48, 50, 24, 26, 88, 90, 92]
def sp(n): return f"s[{n}:{n+1}]"
def s4(n): return f"s[{n}:{n+3}]"
def v2(n): return f"v[{n}:{n+1}]"
def v4(n): return f"v[{n}:{n+3}]"
vLane, vKoff, vVoff, vMask = 0, 1, 2, 3
vQ, vACC, vU = 12, 24, 36
vStamp = 55
QUADS = [f"a[{i}:{i+3}]" for i in range(0, 256, 4)] + [f"v[{i}:{i+3}]" for i in range(56, 256, 4)]
SLOT = {}
_names = [("KA", i) for i in range(4)] + [("VA", 0), ("VA", 1)] + [("KB", i) for i in range(16)] + [("VB", i) for i in range(16)]
for i, n in enumerate(_names): SLOT[n] = QUADS[3 * i:3 * i + 3]
assert SLOT[("VB", 15)][2] == "v[252:255]"
vWq0, vWq1, vWo = 252, 253, 254
SCALE = 192 ** -0.5 * math.log2(math.e)
import struct
def f32(x): return "0x%08x" % struct.unpack("<I", struct.pack("<f", x))[0]

DOC = "; Four decode layers (A, B, A, B) in one persistent launch, one workgroup per CU (4 waves x 512 registers, 157 KiB LDS).\n;  workgroup w: head h = 4*(w&7) + ((w>>3)&3), slice s = w>>5. It owns 1/8 of head h's cache positions for both batch rows,\n"

def c1(inst): return COMPACT1 and inst >= 2

class Gen:
    def __init__(self, cfg):
        self.c = cfg; self.a = Asm(); self.items = []; self.pos = 0; self.nstamp = 0
        self.W = cfg.get("W", 10); self.limit = 10**9; self.npage = 0; self.hot = []; self.inl = False; self.boost = 0; self.last_cyc = 0; self.fine_on = False; self.nfine = 0; self.fnames = []; self.snames = ['start']
    def add_w(self, name, ptr, kind, ty, late=False):
        pol = self.c.get("wpol", "nt")
        def mk(k):
            def f():
                a = self.a
                if k == 0:
                    off = sWqRow if kind == "q" else sWoRow
                    a.I(f"s_add_u32 s{WT}, s{ptr}, s{off}\ns_addc_u32 s{WT+1}, s{ptr+1}, 0\ns_sub_u32 s{WT+2}, {W_BYTES}, s{off}")
                    if late: a.I("v_mul_u32_u24 v54, 26, v0\nv_lshrrev_b32 v54, 8, v54\nv_mul_u32_u24 v54, 1120, v54\nv_lshl_add_u32 v54, v0, 4, v54")
                base = (WQ if kind == "q" else WO)[ty]
                a.I(f"s_add_u32 m0, s{sLdsW}, {base + 960 * k}")
                if kind == "q": so = 5 * (k // 2) * 12288; vr = vWq1 if k & 1 else vWq0
                else: so = 6 * k * 1280; vr = 54 if late else vWo
                a.I(f"s_mov_b32 s{sOff}, {so}\ns_mov_b64 exec, {sp(m60)}")
                a.I(f"buffer_load_dwordx4 v{vr}, {s4(WT)}, s{sOff} offen {pol} lds", tag=name)
                a.I("s_mov_b64 exec, -1")
            return f
        self.items += [(name, mk(k)) for k in range(8)]
    def add_kv(self, name, b, g):
        srd = {"KA": KA, "VA": VA, "KB": KB, "VB": VB}[name]
        isK = name[0] == "K"; vo = vKoff if isK else vVoff; step = 128 if isK else 256
        pol = self.c.get("kvpol", "nt")
        def mk(c):
            def f():
                a = self.a
                if (name, g) in SLOT:
                    if c == 0: a.I(f"s_mov_b32 s{sOff}, {b * BSTR + g * 3072}")
                    elif self.off_val != (name, b, g): a.I(f"s_mov_b32 s{sOff}, {b * BSTR + g * 3072}")
                    self.off_val = (name, b, g)
                    a.I(f"buffer_load_dwordx4 {SLOT[(name, g)][c]}, v{vo}, {s4(srd)}, s{sOff} offen offset:{step * c} {pol}")
                else:
                    self.off_val = None
                    a.I(f"s_add_u32 m0, s{sLdsVS}, {(g - 2) * 3072 + 1024 * c}\ns_mov_b32 s{sOff}, {b * BSTR + g * 3072 + step * c}")
                    a.I(f"buffer_load_dwordx4 v{vo}, {s4(srd)}, s{sOff} offen {pol} lds", tag=("VS", b, g))
            return f
        self.items += [((name, b, g), mk(c)) for c in range(3)]
    def stream(self, n, paced=True, W=None):
        for _ in range(n):
            if self.pos >= len(self.items): return
            assert self.pos < self.limit, (self.pos, self.limit)
            if paced: self.a.pace((W or self.W) + (self.c.get("B", 0) if self.pos < self.boost else 0))
            sv = self.a._in_inject; self.a._in_inject = True
            self.items[self.pos][1](); self.pos += 1; self.last_cyc = self.a.cyc
            if self.c.get("diag") == 3 and self.pos % 5 == 0 and self.pos > 10: self.stamp("pos")
            self.a._in_inject = sv
    def prefetch(self, n):
        a = self.a
        for _ in range(n):
            if not self.pfq: return
            srd, off = self.pfq.pop(0)
            a.I(f"v_lshlrev_b32 v{self.pfreg}, {self.c.get('pfs', 6)}, v0\ns_mov_b32 m0, {JUNK}\ns_mov_b32 s{sOff}, {BSTR + off}")
            a.I(f"buffer_load_dword v{self.pfreg}, {s4(srd)}, s{sOff} offen {self.c.get('pfpol', '')} lds")
            self.off_val = None
    def injector(self):
        a = self.a
        if self.pos < self.limit and a.cyc - self.last_cyc >= self.c.get("T", 330) and a.vm.outstanding() < self.W + self.c.get("XW", 6) + (self.c.get("B", 0) if self.pos < self.boost else 0):
            self.stream(1, paced=False)
    def stream_to(self, upto, **k): self.stream(max(0, upto - self.pos), **k)
    def index_after(self, name):
        return max(i for i, it in enumerate(self.items) if it[0] == name) + 1
    def fs(self, name):
        if not self.fine_on or self.nfine >= len(FS): return
        self.a.I(f"{'s_memrealtime' if self.c.get('rt') else 's_memtime'} {sp(FS[self.nfine])}"); self.nfine += 1; self.fnames.append(name)
    def page(self):
        if not self.c.get("pages", 1): return
        k = self.npage; self.npage += 1
        self.a.I(f"s_branch Lpg{k}"); self.a.raw(f".p2align 12\nLst{k}:\n  s_setpc_b64 {sp(sRet)}\nLpg{k}:")
    def warm(self, ks):
        if not (self.c.get("pages", 1) and self.c.get("warm", 1)): return
        a = self.a
        a.I(f"s_cmp_lg_u32 s{sWave}, 3"); a.skip_begin("s_cbranch_scc1")
        for k in ks: a.I(f"s_call_b64 {sp(sRet)}, Lst{k}")
        a.skip_end()
    def check_slot(self, name, b, g):
        assert self.index_after((name, b, g)) <= self.pos, ("not issued", name, b, g, self.pos)
        if b == 0: assert self.index_after((name, 1, g)) - 3 >= self.pos, ("overwritten", name, g)
    def stamp(self, name=''):
        if self.c.get("marks"): self.a.raw(f"M_{name}_{len(self.snames)}:")
        if self.c.get("holdat") == name:
            self.a.I("s_memrealtime s[98:99]"); self.a.wait(lg=0)
        self.snames.append(f'{name}@{self.pos}')
        if not self.c.get("diag") or self.c.get("fine"): return
        if self.c["diag"] == 3 and name not in ("pos", "end"): self.snames.pop(); return
        if self.c["diag"] == 2 and name not in self.c.get("only", ("p1end", "p2beg", "p2end", "end")): self.snames.pop(); return
        a = self.a
        a.I(f"s_memrealtime {sp(sST)}"); a.wait(lg=0)
        a.I(f"v_writelane_b32 v{vStamp}, s{sST if not self.c.get('rcount') else sRetry}, {self.nstamp}"); self.nstamp += 1
    def publish(self, text, local_ok, tag="pub"):
        a = self.a
        if local_ok and self.c.get("local", True):
            a.I(f"s_cmp_lg_u32 s{sLocal}, 0")
            a.either(text.format(pol=""), text.format(pol="sc1"), tag=tag)
        else: a.I(text.format(pol="sc1"), tag=tag); self.boost = self.pos + self.c.get("KB", 14)
    def gather(self, loads, regs, tmp, between=None, emask=None, sleep=None, first=False, spec=(), vmask=False):
        a = self.a
        if first and between: between(); between = None
        if emask: loads = [f"s_mov_b64 exec, {emask}"] + loads + ["s_mov_b64 exec, -1"]
        for t in loads: a.I(t, tag="gat")
        last = len(a.vm.ent) - 1
        if emask or self.c.get("BG"): self.boost = self.pos + self.c.get("KB", 14)
        if between: between()
        self.fs("issued")
        n = a.vm.need(last)
        if n is not None: a.wait(vm=n)
        chk = a.label("Lc"); rt = a.label("Lr")
        a.raw(f"{chk}:"); a.no_inject += 1
        r = list(regs); ops = []
        ops.append(f"v_max3_u32 v{tmp}, v{r[0]}, v{r[1]}, v{r[2]}"); r = r[3:]
        while len(r) >= 2: ops.append(f"v_max3_u32 v{tmp}, v{tmp}, v{r[0]}, v{r[1]}"); r = r[2:]
        if r: ops.append(f"v_max_u32 v{tmp}, v{tmp}, v{r[0]}")
        ops.append(f"v_cmp_eq_u32 vcc, -1, v{tmp}")
        spec = list(spec)
        k = -(-len(ops) // max(1, len(spec)))
        while ops or spec:
            if spec: a.I(spec.pop(0))
            for t in ops[:k]: a.I(t)
            ops = ops[k:]
        if vmask: a.I(f"s_and_b64 vcc, vcc, {emask}")
        self.inl = self.c.get("inl", 0) and not a.inject
        if not (self.c.get("novalid") and a.inject): a.I(f"s_cbranch_vccz {rt}k" if self.inl else f"s_cbranch_vccnz {rt}")
        if self.c.get("narrow", 3) & (2 if emask else 1):
            loads = ["s_mov_b64 exec, vcc"] + [t for t in loads if not t.startswith("s_mov")] + ["s_mov_b64 exec, -1"]
        self.retry_block(rt, chk, loads, sleep); a.no_inject -= 1
        self.fs("valid")
    def lsleep(self): return None if self.a.inject else self.c.get('lsleep', 0)
    def retry_block(self, rt, chk, loads, sleep=None):
        a = self.a
        if sleep is None: sleep = self.c.get("sleep", 0)
        blk = ([f"  s_sleep {sleep}"] if sleep else []) + ["  " + t for t in loads]
        blk += [f"  s_add_u32 s{sRetry}, s{sRetry}, 1", f"  s_cmp_gt_u32 s{sRetry}, {self.c.get('spin', 2000000)}", "  s_cbranch_scc1 L_end",
                "  s_waitcnt vmcnt(0)", f"  s_branch {chk}"]
        if self.inl: a.out += blk + [f"{rt}k:"]
        elif a.inject: a.tail += [f"{rt}:"] + blk
        else: self.hot += [f"{rt}:"] + blk
        self.inl = False
    def setup(self):
        a = self.a; I = a.I
        I(f"s_cmp_ge_u32 s{sWG}, 256\ns_cbranch_scc1 L_end")
        I(f"s_load_dwordx16 s[32:47], s[0:1], 0\ns_load_dwordx8 s[48:55], s[0:1], 64\ns_load_dwordx2 s[56:57], s[0:1], 96")
        if self.c.get("diag") or self.c.get("hold"): I(f"s_memrealtime {sp(sST)}")
        I(f"v_lshrrev_b32 v8, 6, v0\nv_and_b32 v0, 63, v0\nv_readfirstlane_b32 s{sWave}, v8")
        I(f"s_and_b32 s{sT0}, s{sWG}, 7\ns_lshl_b32 s{sT0}, s{sT0}, 2\ns_lshr_b32 s{sT1}, s{sWG}, 3\ns_and_b32 s{sT1}, s{sT1}, 3\ns_add_u32 s{sH}, s{sT0}, s{sT1}\ns_lshr_b32 s{sS}, s{sWG}, 5")
        I(f"v_mul_u32_u24 v8, 43, v0\nv_lshrrev_b32 v8, 10, v8\nv_mul_u32_u24 v9, 24, v8\nv_sub_u32 v9, v0, v9\nv_mul_u32_u24 v8, 0x3000, v8\nv_lshl_add_u32 v{vWq0}, v9, 4, v8")
        I(f"v_add_u32 v10, 60, v0\nv_mul_u32_u24 v8, 43, v10\nv_lshrrev_b32 v8, 10, v8\nv_mul_u32_u24 v9, 24, v8\nv_sub_u32 v9, v10, v9\nv_mul_u32_u24 v8, 0x3000, v8\nv_lshl_add_u32 v{vWq1}, v9, 4, v8")
        I(f"s_mul_i32 s{sT0}, s{sS}, {80 * 12288}\ns_mul_i32 s{sT1}, s{sWave}, {20 * 12288}\ns_add_u32 s{sT0}, s{sT0}, s{sT1}\ns_mul_i32 s{sT1}, s{sH}, 384\ns_add_u32 s{sWqRow}, s{sT0}, s{sT1}")
        I(f"s_mul_i32 s{sT0}, s{sH}, {192 * 1280}\ns_mul_i32 s{sT1}, s{sWave}, {48 * 1280}\ns_add_u32 s{sT0}, s{sT0}, s{sT1}\ns_mul_i32 s{sT1}, s{sS}, 160\ns_add_u32 s{sWoRow}, s{sT0}, s{sT1}")
        I(f"s_mul_i32 s{sLdsW}, s{sWave}, 7680\ns_mov_b32 s{m60}, -1\ns_mov_b32 s{m60+1}, 0x0fffffff\ns_mov_b32 s{WT+3}, 0x20000\ns_mov_b32 s{sRetry}, 0")
        I(f"v_and_b32 v8, 15, v0\nv_lshrrev_b32 v9, 4, v0")
        I(f"v_lshrrev_b32 v10, 1, v8\nv_mul_u32_u24 v10, 384, v10\nv_and_b32 v11, 1, v8\nv_lshl_add_u32 v11, v9, 1, v11\nv_lshl_add_u32 v{vKoff}, v11, 4, v10")
        I(f"v_mul_u32_u24 v10, 768, v9\nv_lshl_add_u32 v{vVoff}, v8, 4, v10")
        I(f"s_mul_i32 s{sT0}, s{sH}, {HSTR}\ns_mul_i32 s{sT1}, s{sS}, {128 * 384}\ns_add_u32 s{sT1}, s{sT1}, s{sT0}\ns_mul_i32 s{sT2}, s{sWave}, {32 * 384}\ns_add_u32 s{sT1}, s{sT1}, s{sT2}\ns_add_u32 s{sOffG}, s{sT1}, {3072 * 384}")
        I(f"s_mul_i32 s{sT1}, s{sS}, {512 * 384}\ns_add_u32 s{sT1}, s{sT1}, s{sT0}\ns_mul_i32 s{sT2}, s{sWave}, {128 * 384}\ns_add_u32 s{sOffP}, s{sT1}, s{sT2}")
        I(f"s_mul_i32 s{sLdsVS}, s{sWave}, 6144\ns_add_u32 s{sLdsVS}, s{sLdsVS}, {VS}")
        I(f"s_mov_b32 s{XO+2}, 2560\ns_mov_b32 s{XO+3}, 0x20000\ns_mul_i32 s{sT0}, s{sS}, 160\nv_lshlrev_b32 v7, 2, v0\nv_min_u32 v7, 156, v7")
        for srd, o in ((KA, sOffG), (VA, sOffG), (KB, sOffP), (VB, sOffP)): I(f"s_sub_u32 s{srd+2}, {KV_BYTES}, s{o}\ns_mov_b32 s{srd+3}, 0x20000")
        I(f"s_mov_b32 s{WS+2}, {WS_BYTES}\ns_mov_b32 s{WS+3}, 0x20000")
        I(f"s_mul_i32 s{sH1grp}, s{sH}, {H1_H}\ns_mul_i32 s{sT1}, s{sS}, {H1_S}\ns_add_u32 s{sH1own}, s{sH1grp}, s{sT1}\ns_mul_i32 s{sT1}, s{sS}, 768\ns_add_u32 s{sH1c}, s{sH1grp}, s{sT1}")
        I(f"s_mul_i32 s{sH2grp}, s{sH}, {H2_H}\ns_add_u32 s{sH2grp}, s{sH2grp}, {H2}\ns_mul_i32 s{sT1}, s{sS}, {H2_S}\ns_add_u32 s{sH2own}, s{sH2grp}, s{sT1}")
        I(f"s_mul_i32 s{sH3grp}, s{sS}, {H3_S}\ns_add_u32 s{sH3grp}, s{sH3grp}, {H3}\ns_mul_i32 s{sT1}, s{sH}, {H3_H}\ns_add_u32 s{sH3own}, s{sH3grp}, s{sT1}")
        self.clear_prep([[("P", 0)], [("C", 0)], [("P", 4)], [("2", 0), ("3", 0)]])
        a.wait(lg=0)
        if self.c.get("diag"): I(f"v_mov_b32 v{vStamp}, 0\nv_writelane_b32 v{vStamp}, s{sST}, 0"); self.nstamp = 1
        def srds(l):
            for srd, p, o in l: I(f"s_add_u32 s{srd}, s{p}, s{o}\ns_addc_u32 s{srd+1}, s{p+1}, 0")
        def small():
            I(f"s_mov_b32 s{WS}, s{pWS}\ns_mov_b32 s{WS+1}, s{pWS+1}\ns_mov_b32 s{XO}, s{pX}\ns_mov_b32 s{XO+1}, s{pX+1}")
            self.clear_issue("clr")
            I(f"buffer_load_dword v12, v7, {s4(XO)}, s{sT0} offen\nbuffer_load_dword v13, v7, {s4(XO)}, s{sT0} offen offset:1280")
        n0, n1 = self.c.get("I", (12, 28))
        srds([(KA, pKA, sOffG)])
        self.stream(min(n0, 12), paced=False)
        srds([(VA, pVA, sOffG), (KB, pKB, sOffP), (VB, pVB, sOffP)])
        self.stream_to(n0, paced=False)
        small()
        self.stream_to(n1, paced=False)
        if self.c.get("st0"):
            self.stamp("end")
            n = len(a.vm.ent)
            for k in (1, 3, 6, 9, 12, 15, 18, n): a.wait(vm=n - k); self.stamp("end")
        if self.c.get("cpf") == 1: self.code_prefetch("L_pf0", "L_pf9")
        I(f"v_mul_u32_u24 v10, 26, v0\nv_lshrrev_b32 v10, 8, v10\nv_mul_u32_u24 v11, 10, v10\nv_sub_u32 v11, v0, v11\nv_mul_u32_u24 v10, 1280, v10\nv_lshl_add_u32 v{vWo}, v11, 4, v10")
        I("v_and_b32 v10, 1, v0\nv_cmp_eq_u32 vcc, 1, v10\nv_mov_b32 v11, 0xffff\nv_mov_b32 v20, 0xffff0000\nv_cndmask_b32 v11, v11, v20, vcc\nv_bfe_u32 v10, v0, 1, 2")
        for j in range(4): I(f"v_cmp_eq_u32 vcc, {j}, v10\nv_cndmask_b32 v{vMask+j}, 0, v11, vcc")
        for m, lo, hi in ((mODD, 0xaaaaaaaa, 0xaaaaaaaa), (mRG1, 0xffff0000, 0), (mRG2, 0, 0xffff), (mRG3, 0, 0xffff0000), (mWOST, 0x5555, 0x5555), (mN10, 0x03ff03ff, 0x03ff03ff), (mBIT1, 0xcccccccc, 0xcccccccc), (mL63, 0, 0x80000000), (mQ13, 0x1fff1fff, 0x1fff1fff)):
            I(f"s_mov_b32 s{m}, {lo:#x}\ns_mov_b32 s{m+1}, {hi:#x}")
        I(f"s_cmp_eq_u32 s{sWave}, 3\ns_cselect_b64 {sp(mW3)}, -1, 0\ns_min_u32 s{sW2}, s{sWave}, 2")
        if H2_S == 384:
            I(f"s_mul_i32 s{sT0}, s{sS}, -368\ns_add_u32 s{sT0}, s{sT0}, 3072\ns_lshl_b32 s{sPub2}, s{sWave}, 7\ns_cmp_eq_u32 s{sWave}, 3\ns_cselect_b32 s{sPub2}, s{sT0}, s{sPub2}")
            I(f"s_mov_b32 s{mPub2}, 0x55555555\ns_cselect_b32 s{mPub2+1}, 0, s{mPub2}\ns_cselect_b32 s{mPub2}, 0x55, s{mPub2}")
        if H3_H == 160: I(f"s_cmp_lt_u32 s{sWave}, 2\ns_cselect_b32 s{mWOST+1}, 0x5555, 0")
        I(f"s_getreg_b32 s{sXcc}, hwreg(HW_REG_XCC_ID, 0, 4)\ns_add_u32 s{sXcc}, s{sXcc}, 1")
        for r, m, base in ((sXROWw, 160, XROW), (sYw, 320, Y), (sQw, 96, QB)): I(f"s_mul_i32 s{r}, s{sWave}, {m}\ns_add_u32 s{r}, s{r}, {base}")
        I(f"v_add_u32 v10, s{sXROWw}, v7\nv_add_u32 v11, {ONES}, v7\nv_mov_b32 v20, 0x3f803f80")
        I("ds_write_b32 v11, v20\nds_write_b32 v10, v12\nds_write_b32 v10, v13 offset:640")
        I(f"s_mov_b32 s{XO}, s{pOUT}\ns_mov_b32 s{XO+1}, s{pOUT+1}")
        I(f"s_mov_b32 s{mPub1}, -1\ns_cmp_eq_u32 s{sWave}, 0\ns_cselect_b32 s{mPub1+1}, 0xfffff, 0\ns_or_b32 s{mPub1+1}, s{mPub1+1}, 0xffff")
    def clear_prep(self, jobs):
        I = self.a.I
        I("v_mov_b32 v16, -1\nv_mov_b32 v17, -1\nv_mov_b32 v18, -1\nv_mov_b32 v19, -1\nv_lshlrev_b32 v14, 4, v0")
        def seg(k, inst, hi):
            if k == "P" and c1(inst): return sH1c, inst * H1_I, (0x1ffff if hi else -1)
            if k in "PC": return sH1own, inst * H1_I + (1024 if k == "C" else 0), -1
            if k == "2": return sH2own, inst * H2_I - 512 * hi, (0x1ffffff if H2_S == 384 else -1)
            return sH3own, inst * H3_I - 512 * hi, (0x3ff if H3_H == 160 else 0xfff)
        for w, job in enumerate(jobs):
            lo = seg(*job[0], 0); hi = seg(*job[-1], 1)
            for (r, o, m), dst, md in ((lo, sT1, sClr), (hi, sT2, sClr + 1)):
                if w == 0: I(f"s_add_u32 s{dst}, s{r}, {o & 0xffffffff}\ns_mov_b32 s{md}, {m}")
                else: I(f"s_add_u32 s{sOff}, s{r}, {o & 0xffffffff}\ns_cmp_eq_u32 s{sWave}, {w}\ns_cselect_b32 s{dst}, s{sOff}, s{dst}\ns_cselect_b32 s{md}, {m}, s{md}")
        self.off_val = None
        I(f"v_mov_b32 v15, s{sT1}\nv_mov_b32 v20, s{sT2}\nv_cmp_lt_u32 vcc, 31, v0\nv_cndmask_b32 v15, v15, v20, vcc\nv_add_u32 v15, v15, v14")
        if any(k == "P" and c1(i) for job in jobs for k, i in job):
            I(f"s_mov_b32 s{sT1}, 0\ns_mov_b32 s{sT2}, 0")
            for w, job in enumerate(jobs):
                if job[0][0] == "P" and c1(job[0][1]): I(f"s_cmp_eq_u32 s{sWave}, {w}\ns_cselect_b32 s{sT2}, 0x10000, s{sT2}")
            self.off_val = None; self.a.no_inject += 1
            I(f"s_mul_i32 s{sOff}, s{sS}, -752\ns_add_u32 s{sOff}, s{sOff}, {6144 - 768}\nv_add_u32 v20, s{sOff}, v15\nv_cndmask_b32 v15, v15, v20, {sp(sT1)}")
            self.a.no_inject -= 1
        if H2_S == 384 and any(k == "2" for job in jobs for k, _ in job):
            I(f"s_mov_b32 s{sT1}, 0\ns_mov_b32 s{sT2}, 0")
            for w, job in enumerate(jobs):
                for (k, _), dst in ((job[0], sT1), (job[-1], sT2)):
                    if k == "2": I(f"s_cmp_eq_u32 s{sWave}, {w}\ns_cselect_b32 s{dst}, 0x1000000, s{dst}")
            self.off_val = None; self.a.no_inject += 1
            I(f"s_mul_i32 s{sOff}, s{sS}, -368\ns_add_u32 s{sOff}, s{sOff}, {3072 - 384}\nv_add_u32 v20, s{sOff}, v15\nv_cndmask_b32 v15, v15, v20, {sp(sT1)}")
            self.a.no_inject -= 1
    def clear_issue(self, tag, local_ok=False):
        I = self.a.I
        I(f"s_mov_b64 exec, {sp(sClr)}")
        self.publish(f"buffer_store_dwordx4 v[16:19], v15, {s4(WS)}, 0 offen {{pol}}", local_ok, tag=tag)
        I("s_mov_b64 exec, -1")
    def tlb_touch(self):
        a = self.a; I = a.I
        ent = []
        for p, o, span in ((pWQA, sWqRow, 20 * 12288), (pKA, sOffG, 12288), (pVA, sOffG, 12288), (pWOA, sWoRow, 48 * 1280), (pWQB, sWqRow, 20 * 12288),
                           (pKB, sOffP, 49152), (pWOB, sWoRow, 48 * 1280), (pVB, sOffP, 49152)):
            for b in range(2 if o in (sOffG, sOffP) else 1): ent.append((p, o, b * BSTR))
        if self.c["tlb"] > 1:
            ent += [(pWS, None, 0), (pWS, None, 2 << 20), (pWS, None, 4 << 20), (pDBG, None, 0), (pOUT, None, 0)]
        for i, (p, o, c) in enumerate(ent):
            if o is None: I(f"s_add_u32 s{sT1}, s{p}, {c}\ns_addc_u32 s{sT2}, s{p+1}, 0")
            else:
                I(f"s_add_u32 s{sT1}, s{p}, s{o}\ns_addc_u32 s{sT2}, s{p+1}, 0")
                if c: I(f"s_add_u32 s{sT1}, s{sT1}, {c}\ns_addc_u32 s{sT2}, s{sT2}, 0")
            if i == 0: I(f"v_mov_b32 v14, s{sT1}\nv_mov_b32 v15, s{sT2}")
            else: I(f"v_writelane_b32 v14, s{sT1}, {i}\nv_writelane_b32 v15, s{sT2}, {i}")
        I(f"s_mov_b64 exec, {(1 << len(ent)) - 1}\nglobal_load_dword v250, v[14:15], off nt\ns_mov_b64 exec, -1")
    def code_prefetch(self, lo, hi):
        a = self.a; I = a.I
        l = a.label("Lp")
        I(f"s_getpc_b64 {sp(sT1)}"); a.raw(f"{l}:")
        I(f"s_add_u32 s{sT1}, s{sT1}, {lo}-{l}\ns_addc_u32 s{sT2}, s{sT2}, 0")
        I(f"s_lshr_b32 s{sT0}, s{sWG}, 3\ns_lshl_b32 s{sT0}, s{sT0}, 2\ns_add_u32 s{sT0}, s{sT0}, s{sWave}\ns_lshl_b32 s{sT0}, s{sT0}, 13")
        I(f"v_lshl_add_u32 v30, v0, 7, s{sT0}\nv_cmp_gt_u32 vcc, {hi}-{lo}, v30\ns_mov_b32 m0, {JUNK}")
        I("s_and_b64 exec, vcc, -1"); a.skip_begin("s_cbranch_execz")
        I(f"global_load_lds_dword v30, {sp(sT1)}")
        a.skip_end()
        I("s_mov_b64 exec, -1")
    def arrive(self):
        a = self.a; I = a.I
        I(f"s_cmp_lg_u32 s{sWave}, 0"); a.skip_begin("s_cbranch_scc1")
        I(f"s_and_b32 s{sT0}, s{sWG}, 3\ns_lshl_b32 s{sT0}, s{sT0}, 3\ns_lshl_b32 s{sT0}, s{sXcc}, s{sT0}\ns_and_b32 s{sT1}, s{sWG}, 0xfc")
        I(f"v_mov_b32 v8, s{sT1}\nv_mov_b32 v9, s{sT0}\ns_mov_b64 exec, 1")
        I(f"global_atomic_add v8, v9, {sp(pDBG)} sc1\ns_mov_b64 exec, -1")
        a.skip_end()
    def handshake(self, between):
        a = self.a; I = a.I
        I("v_lshlrev_b32 v7, 2, v0")
        ld = f"global_load_dword v8, v7, {sp(pDBG)} sc1"
        I(ld); last = len(a.vm.ent) - 1
        between()
        n = a.vm.need(last)
        if n is not None: a.wait(vm=n)
        chk = a.label("Lc"); rt = a.label("Lr")
        a.raw(f"{chk}:"); a.no_inject += 1
        I("v_subrev_u32 v9, 0x01010101, v8\nv_not_b32 v10, v8\nv_and_b32 v9, v9, v10\nv_and_b32 v9, 0x80808080, v9\nv_cmp_ne_u32 vcc, 0, v9")
        I(f"s_cbranch_vccnz {rt}")
        self.retry_block(rt, chk, [ld]); a.no_inject -= 1
        I(f"s_and_b32 s{sT0}, s{sWG}, 3\ns_lshl_b32 s{sT0}, s{sT0}, 3\nv_lshrrev_b32 v8, s{sT0}, v8\nv_and_b32 v8, 0xff, v8")
        I(f"s_bfe_u32 s{sT0}, s{sWG}, 0x30002\nv_and_b32 v9, 7, v0\nv_cmp_eq_u32 {sp(sT1)}, s{sT0}, v9\nv_cmp_ne_u32 vcc, s{sXcc}, v8")
        I(f"s_and_b64 vcc, vcc, {sp(sT1)}\ns_cmp_eq_u64 vcc, 0\ns_cselect_b32 s{sLocal}, 1, 0")
    WQB = [(24, 28, 32), (34, 38, 42), (44, 48, 52)]
    def wq_pre(self, ty):
        a = self.a; I = a.I
        I(f"v_bfe_u32 v7, v0, 2, 2\nv_lshrrev_b32 v9, 4, v0\nv_lshl_add_u32 v8, v9, 3, v7\nv_lshl_add_u32 v7, v9, 2, v7")
        I(f"v_and_b32 v9, 3, v0\nv_lshlrev_b32 v9, 3, v9\ns_mul_i32 s{sT0}, s{sWave}, 96\ns_add_u32 s{sT0}, s{sT0}, {WQ[ty]}\nv_add_u32 v9, s{sT0}, v9")
        I(f"s_movk_i32 s{sT0}, 384\nv_mad_u32_u24 v8, v8, s{sT0}, v9\nv_mad_u32_u24 v7, v7, s{sT0}, v9")
        for T, (b0, b1, b2) in enumerate(self.WQB):
            for t, r in ((0, b0), (1, b1)):
                I(f"ds_read_b64_tr_b16 {v2(r)}, v8 offset:{12288 * t + 32 * T}\nds_read_b64_tr_b16 {v2(r+2)}, v8 offset:{12288 * t + 1536 + 32 * T}")
            I(f"ds_read_b64_tr_b16 {v2(b2)}, v7 offset:{24576 + 32 * T}")
    def wq_addr(self, b, L):
        I = self.a.I
        I(f"v_mov_b32 v22, s{sXROWw}\nv_mov_b32 v23, {ONES - 640 * b}")
        I(f"v_cndmask_b32 v23, v22, v23, {sp(mODD)}\nv_lshrrev_b32 v21, 4, v0\nv_lshl_add_u32 v22, v21, 4, v23\nv_lshl_add_u32 v23, v21, 3, v23")
    def wq_main(self, b, L, local_ok=True, hoisted=False, hoist=False):
        a = self.a; a.comment(f"---- row {b} layer {L}: q projection partial"); I = a.I; inst = 4 * b + L; needC = inst < 2
        if not hoisted: self.wq_addr(b, L)
        I(f"ds_read_b128 v[12:15], v22 offset:{640 * b}\nds_read_b128 v[16:19], v22 offset:{640 * b + 64}\nds_read_b64 v[20:21], v23 offset:{640 * b + 128}")
        if c1(inst):
            I(f"s_mul_i32 s{sT0}, s{sWave}, 192\nv_lshl_add_u32 v7, v0, 2, s{sT0}\ns_mul_i32 s{sT0}, s{sS}, -752\ns_add_u32 s{sT0}, s{sT0}, {6144 - 192}\nv_lshl_add_u32 v23, v0, 2, s{sT0}")
            I(f"v_cndmask_b32 v7, v7, v23, {sp(mRG3)}\ns_add_u32 s{sOffP}, s{sH1c}, {inst * H1_I}")
        else: I(f"s_lshl_b32 s{sT0}, s{sWave}, 8\nv_lshl_add_u32 v7, v0, 2, s{sT0}\ns_add_u32 s{sOffP}, s{sH1own}, {inst * H1_I}")
        if hoist: self.qg_addr(b, L)
        D = [8, 24, 28]
        for T, (b0, b1, b2) in enumerate(self.WQB):
            I(f"v_mfma_f32_16x16x32_bf16 {v4(D[T])}, v[12:15], {v4(b0)}, 0")
            I(f"v_mfma_f32_16x16x32_bf16 {v4(D[T])}, v[16:19], {v4(b1)}, {v4(D[T])}")
        I("v_mfma_f32_16x16x32_bf16 v[34:37], v[12:15], v[12:15], 0\nv_mfma_f32_16x16x32_bf16 v[34:37], v[16:19], v[16:19], v[34:37]")
        for T, (b0, b1, b2) in enumerate(self.WQB):
            I(f"v_mfma_f32_16x16x16_bf16 {v4(D[T])}, v[20:21], {v2(b2)}, {v4(D[T])}")
        I("v_mfma_f32_16x16x16_bf16 v[34:37], v[20:21], v[20:21], v[34:37]")
        for r in range(2 if needC else 1):
            I(f"v_cndmask_b32 v{22+r}, v{8+r}, v{24+r}, {sp(mRG1)}\nv_cndmask_b32 v{22+r}, v{22+r}, v{28+r}, {sp(mRG2)}\nv_cndmask_b32 v{22+r}, v{22+r}, v34, {sp(mRG3)}\nv_min_u32 v{22+r}, -2, v{22+r}")
            if c1(inst): I(f"s_mov_b64 exec, {sp(mPub1)}")
            self.publish(f"buffer_store_dword v{22+r}, v7, {s4(WS)}, s{sOffP} offen offset:{1024 * r} {{pol}}", local_ok)
            if c1(inst): I("s_mov_b64 exec, -1")
    def qg_addr(self, b, L):
        I = self.a.I
        if c1(4 * b + L):
            I(f"v_and_b32 v23, 15, v0\nv_lshrrev_b32 v54, 4, v0\nv_mul_u32_u24 v54, 768, v54\nv_lshl_add_u32 v54, v23, 4, v54\ns_mul_i32 s{sT0}, s{sWave}, 192\nv_add_u32 v54, s{sT0}, v54")
            I(f"s_add_u32 s{sOffG}, s{sH1grp}, {(4 * b + L) * H1_I}")
            return
        I(f"v_and_b32 v23, 15, v0\nv_lshrrev_b32 v54, 4, v0\nv_mul_u32_u24 v54, {H1_S}, v54\nv_lshl_add_u32 v54, v23, 4, v54\ns_lshl_b32 s{sT0}, s{sWave}, 8")
        I(f"s_add_u32 s{sOffG}, s{sH1grp}, s{sT0}\ns_add_u32 s{sOffG}, s{sOffG}, {(4 * b + L) * H1_I}\ns_add_u32 s{sOffG2}, s{sOffG}, {4 * H1_S}")
    def qg(self, b, L, between=None, hoisted=False, after=None, tail=False):
        a = self.a; a.comment(f"---- row {b} layer {L}: gather q partials, LayerNorm scale"); I = a.I; inst = 4 * b + L; needC = inst < 2; ty = L & 1
        if not hoisted: self.qg_addr(b, L)
        loads = [f"buffer_load_dwordx4 v[12:15], v54, {s4(WS)}, s{sOffG} offen sc1", f"buffer_load_dwordx4 v[16:19], v54, {s4(WS)}, s{sOffG2} offen sc1"]
        cc = c1(inst)
        if cc: loads = [f"buffer_load_dwordx4 v[12:15], v54, {s4(WS)}, s{sOffG} offen sc1", f"buffer_load_dwordx4 v[16:19], v36, {s4(WS)}, s{sOffG} offen sc1"]
        def addr2():
            I(f"v_add_u32 v36, 3072, v54\nv_and_b32 v37, 48, v0\nv_add_u32 v37, 6144, v37\ns_mov_b32 vcc_lo, 0x10001000\ns_mov_b32 vcc_hi, 0x10001000")
            I("v_cndmask_b32 v54, v54, v37, vcc\nv_add_u32 v37, 64, v37\nv_cndmask_b32 v36, v36, v37, vcc")
        if needC: loads += [f"buffer_load_dwordx4 v[20:23], v54, {s4(WS)}, s{sOffG} offen offset:1024 sc1", f"buffer_load_dwordx4 v[24:27], v54, {s4(WS)}, s{sOffG2} offen offset:1024 sc1"]
        def pre():
            I(f"v_and_b32 v32, 15, v0\nv_lshrrev_b32 v33, 4, v0\nv_and_b32 v34, 1, v33\nv_lshlrev_b32 v34, 1, v34\nv_lshrrev_b32 v28, 1, v33\nv_or_b32 v34, v34, v28\nv_lshl_add_u32 v34, v32, 2, v34")
            I(f"v_lshl_add_u32 v34, v34, 1, s{sQw}\nv_lshl_add_u32 v29, v0, 2, s{sCTw}")
            if not needC: I(f"ds_read_b32 v20, v29 offset:{1024 * ty}")
            self.q_addr(b)
            I(f"v_mov_b32 v35, {f32(1 / (640 * SCALE))}\nv_mov_b32 v32, {f32(1 / (640 * SCALE * SCALE))}\nv_mov_b32 v33, {f32(1e-5 / (SCALE * SCALE))}")
        first = hoisted and self.c.get('first', 3) & 2
        if cc: addr2()
        if first: pre()
        def shadow():
            if not first: pre()
            if tail and self.c.get("tq", 0): self.tail_addr(b, L)
            if between: between()
        self.gather(loads, range(12, 28 if needC else 20), 28, between=shadow, sleep=self.lsleep(), emask=sp(mQ13) if cc else None, vmask=cc)
        if after: after()
        def red(r):
            I(f"v_pk_add_f32 {v2(r)}, {v2(r)}, {v2(r+4)}\nv_pk_add_f32 {v2(r+2)}, {v2(r+2)}, {v2(r+6)}")
            I(f"v_permlane32_swap_b32 v{r}, v{r+1}\nv_permlane32_swap_b32 v{r+2}, v{r+3}\nv_add_f32 v{r}, v{r}, v{r+1}\nv_add_f32 v{r+2}, v{r+2}, v{r+3}")
            I(f"v_permlane16_swap_b32 v{r}, v{r+2}\nv_add_f32 v{r}, v{r}, v{r+2}")
        red(12)
        I(f"v_readlane_b32 s{sT0}, v12, 12\nv_readlane_b32 s{sT1}, v12, 44")
        if needC: red(20); I(f"v_mul_f32 v20, {f32(SCALE)}, v20\nds_write_b32 v29, v20 offset:{1024 * ty}")
        I(f"s_mov_b32 exec_lo, 0x0fff0fff\ns_mov_b32 exec_hi, 0x0fff0fff")
        I(f"v_mul_f32 v15, s{sT1}, v35\nv_fma_f32 v14, s{sT0}, v32, v33\nv_fma_f32 v14, -v15, v15, v14\nv_max_f32 v14, v33, v14\nv_rsq_f32 v14, v14")
        I(f"v_fma_f32 v12, -v15, v20, v12\nv_mul_f32 v12, v12, v14\nv_cvt_pk_bf16_f32 v12, v12, v12")
        I(f"ds_write_b16 v34, v12 offset:{384 * b}\ns_mov_b64 exec, -1")
        a.barrier()
    def tail_addr(self, b, L):
        I = self.a.I; inst = 4 * b + L
        I(f"v_and_b32 v50, 15, v0\nv_lshlrev_b32 v50, 5, v50\nv_and_b32 v51, 16, v0\nv_add3_u32 v50, v50, v51, s{sATTw}\nv_mov_b32 v51, s{sSTATw}")
        self.wo_addr(b, L)
        I(f"v_mov_b32 v9, {STAT}\nv_lshl_add_u32 v10, v0, 2, s{sCOMBw}")
        if H2_S == 384: I(f"v_lshl_add_u32 v11, v0, 1, s{sPub2}\ns_add_u32 s{sOffP}, s{sH2own}, {inst * H2_I}")
        else: I(f"s_lshl_b32 s{sT0}, s{sWave}, 7\nv_lshl_add_u32 v11, v0, 1, s{sT0}\ns_add_u32 s{sOffP}, s{sH2own}, {inst * H2_I}")
    def q_addr(self, b):
        self.a.I(f"v_and_b32 v30, 1, v0\nv_lshrrev_b32 v31, 4, v0\nv_lshlrev_b32 v31, 5, v31\nv_lshl_add_u32 v30, v30, 4, v31\nv_add_u32 v30, {QB + 384 * b}, v30")
    def att(self, b, L, hook1=None, hook2=None, hookm=None, pre_bar=None, guard=False, hoist=False, qaddr=False):
        a = self.a; a.comment(f"---- row {b} layer {L}: attention"); I = a.I; ty = L & 1; G = 16 if ty else 4; Kn = "KB" if ty else "KA"; Vn = "VB" if ty else "VA"
        vM, vL = 52, 53
        if not qaddr: self.q_addr(b)
        for t in range(3): I(f"ds_read_b128 {v4(vQ + 4 * t)}, v30 offset:{128 * t}")
        def lds_v(g):
            a.wait_tag(("VS", b, g))
            I(f"v_lshl_add_u32 v54, v0, 4, s{sLdsVS}")
            for c in range(3): I(f"ds_read_b128 {v4(vU + 2 + 4 * c)}, v54 offset:{(g - 2) * 3072 + 1024 * c}")
        early = (not ty) and L == 2
        if early: lds_v(2)
        if not (qaddr and self.c.get("tq", 0)):
            if self.c.get("fill", 1): a.queue(lambda: self.tail_addr(b, L)); a.drain(self.c.get("fill0", 8))
            else: self.tail_addr(b, L)
        def D(g): return vACC + 4 * (g % 3)
        dm = "row_mask:0xf"; NP = G // 2
        order = list(range(G)) if ty else ([2, 0, 1, 3] if early else [0, 1, 2, 3])
        at = {g: i for i, g in enumerate(order)}
        U = lambda g: vU + at[g] // 2
        bank = lambda g, hi: (1 << (at[g] & 1)) << (2 * hi)
        for g in range(G + 2):
            K = SLOT[(Kn, g)] if g < G else None
            if K: self.check_slot(Kn, b, g)
            e = g - 2
            if K: I(f"v_mfma_f32_16x16x32_bf16 {v4(D(g))}, {K[0]}, {v4(vQ)}, 0")
            if g == 1 and self.c.get("fa"): self.fs("g1")
            if K: a.drain(2)
            if K: I(f"v_mfma_f32_16x16x32_bf16 {v4(D(g))}, {K[1]}, {v4(vQ+4)}, {v4(D(g))}")
            if K and e < 0: a.drain(2)
            if 0 <= e < G: I(f"v_add_f32_dpp v{U(e)}, v{D(e)}, v{D(e)+1} quad_perm:[0,0,2,2] {dm} bank_mask:{bank(e, 0):#x}")
            if K: I(f"v_mfma_f32_16x16x32_bf16 {v4(D(g))}, {K[2]}, {v4(vQ+8)}, {v4(D(g))}")
            if g == G + 1 and NP > 3: I(f"v_max3_f32 v{vM}, v{vU}, v{vU+1}, v{vU+2}\nv_max3_f32 v{vM}, v{vM}, v{vU+3}, v{vU+4}")
            if K and e < 0: a.drain(2)
            if hook1 and g < G: hook1(g)
            if 0 <= e < G: I(f"v_add_f32_dpp v{U(e)}, v{D(e)+2}, v{D(e)+3} quad_perm:[0,0,2,2] {dm} bank_mask:{bank(e, 1):#x}")
        if self.c.get("fa"): self.fs("p1")
        if hookm: hookm()
        if NP > 3: I(f"v_max3_f32 v{vM}, v{vM}, v{vU+5}, v{vU+6}\nv_max_f32 v{vM}, v{vM}, v{vU+7}")
        else: I(f"v_max_f32 v{vM}, v{vU}, v{vU+1}")
        red = ("row_ror:8 row_mask:0xf", "row_ror:4 row_mask:0xf", "row_bcast:15 row_mask:0xa", "row_bcast:31 row_mask:0xc")
        for x in red: I(f"v_max_f32_dpp v{vM}, v{vM}, v{vM} {x} bank_mask:0xf")
        I(f"v_readlane_b32 s{sM}, v{vM}, 63")
        def prob(p): return [f"v_subrev_f32 v{vU+p}, s{sM}, v{vU+p}", f"v_exp_f32 v{vU+p}, v{vU+p}",
                             f"v_mov_b32 v{vL}, v{vU+p}" if p == 0 else f"v_add_f32 v{vL}, v{vL}, v{vU+p}",
                             f"v_cvt_pk_bf16_f32 v{vU+p}, v{vU+p}, v{vU+p}",
                             f"v_mov_b32_dpp v{vU+p}, v{vU+p} quad_perm:[1,1,3,3] {dm} bank_mask:0xf"]
        def diag(i, j):
            d = vQ + 4 * (i & 1) + j; u = vU + i // 2
            if (j >> 1) == (i & 1): I(f"v_and_b32 v{d}, v{u}, v{vMask + j}")
            else: I(f"v_and_b32_dpp v{d}, v{u}, v{vMask + j} {'row_shl:4' if i & 1 else 'row_shr:4'} {dm} bank_mask:0xf bound_ctrl:0")
        a.drain()
        p0 = prob(0); p1 = prob(1)
        for t in (p0[0], p0[1], p1[0], p0[3 - 1], p0[3], p1[1], f"v_mov_b32 v{vM}, s{sM}", p0[4]): I(t)
        pend = p1[2:]
        for j in (0, 1): diag(0, j)
        I(pend.pop(0))
        for j in (2, 3): diag(0, j)
        if guard: a.barrier()
        if self.c.get("fa"): self.fs("p2start")
        lred = []
        for i, g in enumerate(order):
            self.check_slot(Vn, b, g)
            if (Vn, g) in SLOT: V = SLOT[(Vn, g)]
            else:
                if not early: lds_v(g)
                V = [v4(vU + 2 + 4 * c) for c in range(3)]
            A = v4(vQ + 4 * (i & 1))
            nx = i + 1 < G
            if (i & 1) == 1 and i // 2 + 2 < NP: assert not pend; pend = prob(i // 2 + 2)
            if i == G - 2: assert not pend; lred = [f"v_add_f32_dpp v{vL}, v{vL}, v{vL} {x} bank_mask:0xf" for x in red]
            for c in range(3):
                acc = v4(vACC + 4 * c)
                I(f"v_mfma_f32_16x16x32_bf16 {acc}, {A}, {V[c]}, {acc if i else 0}")
                if nx and c < 2: diag(i + 1, 2 * c + 0 if (i + 1) & 1 == 0 else (2 * c + 2) % 4); diag(i + 1, 2 * c + 1 if (i + 1) & 1 == 0 else (2 * c + 3) % 4)
                if pend: I(pend.pop(0))
                if lred: I(lred.pop(0))
                if i == 0 and c == 1: I(f"ds_write_b32 v51, v{vM}")
                if i == G - 1 and c == 1: I(f"s_mov_b64 exec, {sp(mL63)}\nds_write_b32 v51, v{vL} offset:16\ns_mov_b64 exec, -1")
            if early and g == 2: lds_v(3)
            if hook2: hook2(i)
        if self.c.get("fa"): self.fs("p2end")
        for c, (lo, hi) in enumerate(((0xffffffff, 0), (0x00ff00ff, 0xff00ff00), (0, 0xffffffff))):
            I(f"s_mov_b32 exec_lo, {lo:#x}\ns_mov_b32 exec_hi, {hi:#x}\nds_write_b128 v50, {v4(vACC + 4 * c)} offset:{512 * c}")
        I("s_mov_b64 exec, -1")
        if pre_bar: pre_bar()
        self.fs("att_end")
        a.barrier()
        self.combine(b, L)
        self.fs("pub2")
    def combine(self, b, L):
        a = self.a; I = a.I; inst = 4 * b + L; a.comment("merge the four waves' partials and publish")
        I("ds_read_b128 v[44:47], v9\nds_read_b128 v[48:51], v9 offset:16")
        for i in range(0, 8, 2): I(f"ds_read2st64_b32 {v2(12 + i)}, v10 offset0:{3 * i} offset1:{3 * i + 3}")
        I("v_max3_f32 v52, v44, v45, v46\nv_max_f32 v52, v52, v47")
        for w in range(4): I(f"v_sub_f32 v{44+w}, v{44+w}, v52")
        for w in range(4): I(f"v_exp_f32 v{44+w}, v{44+w}")
        for w in range(4): I(f"v_add_f32 v{12 + 2 * w}, v{12 + 2 * w}, v{13 + 2 * w}")
        I("v_mul_f32 v20, v44, v12\nv_fmac_f32 v20, v45, v14\nv_fmac_f32 v20, v46, v16\nv_fmac_f32 v20, v47, v18")
        I("v_mul_f32 v53, v44, v48\nv_fmac_f32 v53, v45, v49")
        I("v_mov_b32_dpp v21, v20 quad_perm:[1,1,3,3] row_mask:0xf bank_mask:0xf")
        I("v_fmac_f32 v53, v46, v50\nv_fmac_f32 v53, v47, v51\nv_cvt_pk_bf16_f32 v20, v20, v21")
        I(f"v_cndmask_b32 v52, v52, v53, {sp(mBIT1)}\nv_cndmask_b32 v20, v20, v52, {sp(mW3)}\nv_min_u32 v20, -2, v20")
        I(f"s_mov_b64 exec, {sp(mPub2)}" if H2_S == 384 else f"s_not_b64 exec, {sp(mODD)}")
        self.publish(f"buffer_store_dword v20, v11, {s4(WS)}, s{sOffP} offen {{pol}}", True)
        I("s_mov_b64 exec, -1")
    def wo_addr(self, b, L):
        I = self.a.I
        I(f"v_bfe_u32 v8, v0, 1, 3\nv_lshrrev_b32 v9, 4, v0\nv_and_b32 v7, 1, v0\nv_lshl_add_u32 v7, v9, 1, v7\nv_lshlrev_b32 v7, 4, v7\ns_movk_i32 s{sT0}, {H2_S}\nv_mad_u32_u24 v7, v8, s{sT0}, v7")
        I(f"v_lshl_add_u32 v8, v9, 1, v8\nv_and_b32 v8, 7, v8\nv_mul_u32_u24 v8, {16 if H2_S == 384 else H2_S}, v8\ns_add_u32 s{sOffW}, s{sH2grp}, {(4 * b + L) * H2_I}")
    def wo(self, b, L, between=None, hoisted=False, hoist=False, after=None):
        a = self.a; a.comment(f"---- row {b} layer {L}: gather attention partials, output projection partial"); I = a.I; inst = 4 * b + L; ty = L & 1
        if not hoisted: self.wo_addr(b, L)
        loads = [f"buffer_load_dwordx2 v[52:53], v8, {s4(WS)}, s{sOffW} offen offset:{3072 if H2_S == 384 else 384} sc1"]
        loads += [f"buffer_load_dwordx4 {v4(12 + 4 * t)}, v7, {s4(WS)}, s{sOffW} offen offset:{128 * t} sc1" for t in range(3)]
        S = [24, 28, 32, 36, 40, 44]
        def rd(kk, reg, tile):
            o = 10240 * (kk >> 1) + 1280 * (kk & 1) + 32 * tile
            I(f"ds_read_b64_tr_b16 {v2(reg)}, v10 offset:{o}\nds_read_b64_tr_b16 {v2(reg + 2)}, v10 offset:{o + 640}")
        def pre():
            I(f"v_bfe_u32 v10, v0, 2, 2\nv_and_b32 v11, 48, v0\nv_add_u32 v10, v10, v11\nv_mul_u32_u24 v10, 160, v10\nv_and_b32 v11, 3, v0\nv_lshl_add_u32 v10, v11, 3, v10")
            I(f"s_lshl_b32 s{sT0}, s{sW2}, 6\ns_add_u32 s{sT1}, s{sT0}, {WO[ty]}\nv_add_u32 v10, s{sT1}, v10")
            for kk in range(6): rd(kk, S[kk], 0)
            I(f"v_and_b32 v11, 15, v0\nv_lshlrev_b32 v11, 1, v11\nv_and_b32 v9, 32, v0\nv_add3_u32 v11, v11, v9, s{sT0}\ns_add_u32 s{sOffP}, s{sH3own}, {inst * H3_I}")
            if hoist: self.yg_addr()
            if between: between()
        D0, D1 = 48, 24
        mt = lambda D, t, B, first: f"v_mfma_f32_16x16x32_bf16 {v4(D)}, {v4(12 + 4 * t)}, {v4(B)}, {0 if first else v4(D)}"
        def mm(*k): I(mt(*k))
        self.gather(loads, [52, 53] + list(range(12, 24)), 9, between=pre, sleep=self.lsleep(), first=hoisted and self.c.get('first', 3) & 1,
                    spec=[mt(D0, 0, S[0], True), mt(D0, 1, S[2], False), mt(D0, 2, S[4], False)])
        if after: after()
        dpp = lambda op, d, x, ctl: I(f"{op}_dpp v{d}, v{x}, v{x} {ctl} row_mask:0xf bank_mask:0xf")
        def fold(out):
            I(f"v_add_f32 v{D0}, v{D0}, v{D1 + 1}\nv_add_f32 v{D0 + 2}, v{D0 + 2}, v{D1 + 3}\nv_mul_f32 v{out}, v7, v{D0}\nv_fmac_f32 v{out}, v8, v{D0 + 2}")
        dpp("v_max_f32", 9, 52, "row_ror:8")
        mm(D1, 0, S[1], True); rd(0, S[2], 1); dpp("v_max_f32", 9, 9, "row_ror:4")
        mm(D1, 1, S[3], False); rd(2, S[4], 1); dpp("v_max_f32", 9, 9, "row_ror:2")
        mm(D1, 2, S[5], False); I("v_sub_f32 v52, v52, v9\nv_exp_f32 v52, v52"); rd(4, S[1], 1); I("v_mul_f32 v53, v52, v53")
        rd(1, S[3], 1); dpp("v_add_f32", 53, 53, "row_ror:8")
        rd(3, S[5], 1); dpp("v_add_f32", 53, 53, "row_ror:4")
        I(f"v_add_f32 v{D0}, v{D0}, v{D1 + 1}\nv_add_f32 v{D0 + 2}, v{D0 + 2}, v{D1 + 3}")
        dpp("v_add_f32", 53, 53, "row_ror:2")
        I(f"v_mov_b32 v7, v{D0}\nv_mov_b32 v8, v{D0 + 2}\nv_rcp_f32 v53, v53")
        mm(D0, 0, S[2], True); rd(5, S[2], 1)
        I("v_mul_f32 v9, v52, v53")
        mm(D0, 1, S[4], False); mm(D0, 2, S[1], False)
        I("v_mul_f32_dpp v52, v9, v7 row_newbcast:0 row_mask:0xf bank_mask:0xf")
        mm(D1, 0, S[3], True)
        I("v_mov_b32_dpp v7, v9 row_newbcast:0 row_mask:0xf bank_mask:0xf")
        mm(D1, 1, S[5], False)
        I("v_fmac_f32_dpp v52, v9, v8 row_newbcast:2 row_mask:0xf bank_mask:0xf")
        mm(D1, 2, S[2], False)
        I("v_mov_b32_dpp v8, v9 row_newbcast:2 row_mask:0xf bank_mask:0xf")
        fold(53)
        I("v_permlane32_swap_b32 v52, v53\nv_add_f32 v52, v52, v53\nv_mov_b32 v53, v52\nv_permlane16_swap_b32 v52, v53\nv_add_f32 v52, v52, v53")
        I("v_mov_b32_dpp v53, v52 quad_perm:[1,1,3,3] row_mask:0xf bank_mask:0xf\nv_cvt_pk_bf16_f32 v52, v52, v53\nv_min_u32 v52, -2, v52")
        I(f"s_mov_b64 exec, {sp(mWOST)}")
        self.publish(f"buffer_store_dword v52, v11, {s4(WS)}, s{sOffP} offen {{pol}}", False)
        I("s_mov_b64 exec, -1")
    def yg_addr(self):
        self.a.I(f"v_lshrrev_b32 v54, 4, v0\nv_mul_u32_u24 v54, {H3_H}, v54\nv_and_b32 v9, 15, v0\nv_lshl_add_u32 v54, v9, 4, v54")
    def yg_pre(self, b, L):
        I = self.a.I
        I(f"s_mul_i32 s{sT0}, s{sWave}, {8 * H3_H}\ns_add_u32 s{sOffG}, s{sH3grp}, s{sT0}\ns_add_u32 s{sOffG}, s{sOffG}, {(4 * b + L) * H3_I}\ns_add_u32 s{sOffG2}, s{sOffG}, {4 * H3_H}")
        for j in range(4): I(f"v_and_b32 v{16 + j}, 0x3f803f80, v{vMask + j}")
        for j in range(8): I(f"v_mov_b32 v{8 + j}, 0")
    def yg(self, b, L, between=None, pre_bar=None, hoisted=False, after=None):
        a = self.a; a.comment(f"---- row {b} layer {L}: gather output partials, residual"); I = a.I; inst = 4 * b + L; Yb = Y + YSZ * b
        if not hoisted: self.yg_addr(); self.yg_pre(b, L)
        loads = [f"buffer_load_dwordx4 {v4(8 + 4 * j)}, v54, {s4(WS)}, s{(sOffG, sOffG2)[j]} offen sc1" for j in range(2)]
        self.gather(loads, range(8, 16), 7, between=between, emask=sp(mN10),
                    spec=["v_mfma_f32_16x16x32_bf16 v[20:23], v[16:19], v[8:11], 0", "v_mfma_f32_16x16x32_bf16 v[20:23], v[16:19], v[12:15], v[20:23]"])
        if after: after()
        I(f"v_and_b32 v7, 15, v0\nv_lshlrev_b32 v7, 5, v7\nv_and_b32 v54, 16, v0\nv_add3_u32 v7, v7, v54, s{sYw}")
        I(f"s_mov_b32 exec_lo, s{mN10}\ns_mov_b32 exec_hi, 0\nds_write_b128 v7, v[20:23] offset:{YSZ * b}\ns_mov_b64 exec, -1")
        I(f"v_lshl_add_u32 v7, v0, 2, s{sXROWw}\nds_read_b32 v54, v7 offset:{640 * b}")
        I(f"v_lshlrev_b32 v14, 3, v0\nv_add_u32 v14, {Yb}, v14")
        if L < 3: self.wq_addr(b, L + 1)
        if pre_bar: pre_bar()
        a.barrier()
        I("s_mov_b32 exec_hi, 0xff")
        I("ds_read2_b64 v[8:11], v14 offset0:0 offset1:40\nds_read2_b64 v[12:15], v14 offset0:80 offset1:120")
        I("v_lshlrev_b32 v16, 16, v54\nv_and_b32 v17, 0xffff0000, v54")
        I("v_pk_add_f32 v[8:9], v[8:9], v[10:11]\nv_pk_add_f32 v[12:13], v[12:13], v[14:15]\nv_pk_add_f32 v[8:9], v[8:9], v[12:13]")
        I("v_cvt_pk_bf16_f32 v8, v8, v9\nv_and_b32 v9, 0xffff0000, v8\nv_lshlrev_b32 v8, 16, v8\nv_pk_add_f32 v[8:9], v[8:9], v[16:17]\nv_cvt_pk_bf16_f32 v8, v8, v9")
        if L < 3: I(f"ds_write_b32 v7, v8 offset:{640 * b}")
        else:
            I(f"s_cmp_lg_u32 s{sWave}, 0"); a.skip_begin("s_cbranch_scc1")
            I(f"s_mul_i32 s{sT0}, s{sS}, 160\nv_lshlrev_b32 v7, 2, v0")
            I(f"buffer_store_dword v8, v7, {s4(XO)}, s{sT0} offen offset:{1280 * b}")
            a.skip_end()
        I("s_mov_b64 exec, -1")
    def touch(self, b, L, lvl=1):
        if self.c.get("touch", 0) < lvl: return
        a = self.a; I = a.I
        I(f"s_lshl_b32 s{sT0}, s{sWave}, 7\nv_lshl_add_u32 v31, v0, 1, s{sT0}\nv_and_b32 v31, -4, v31\ns_add_u32 s{sT1}, s{sH2own}, {(4 * b + L) * H2_I}\ns_mov_b32 m0, {JUNK}")
        I(f"buffer_load_dword v31, {s4(WS)}, s{sT1} offen sc1 lds")
        if L < 3:
            I(f"v_lshlrev_b32 v31, 1, v31\ns_add_u32 s{sT1}, s{sH1own}, {(4 * b + L + 1) * H1_I}")
            I(f"buffer_load_dword v31, {s4(WS)}, s{sT1} offen sc1 lds")
    def chain_idle(self, b, L, burst=(0, 0, 0), sh=(0, 0, 0, 0), pf=(0, 0, 0)):
        a = self.a; U = lambda n: (lambda: self.stream(n, paced=False))
        if self.c.get("skip3", 1):
            a.I(f"s_cmp_eq_u32 s{sWave}, 3"); a.skip_begin("s_cbranch_scc1")
            self.wo(b, L, hoisted=True)
            a.skip_end()
            self.yg_addr()
            self.stream(sh[0] + sh[1], paced=False)
            self.pfreg = 7; self.prefetch(pf[0])
        else:
            self.wo(b, L, between=U(burst[0]), hoisted=True, hoist=True, after=U(sh[0]))
            self.stream(sh[1], paced=False)
        self.stamp(f"wo{b}{L}")
        self.fs("pub3")
        late = self.c.get("late", 2)
        if L == 3:
            a.I(f"s_cmp_eq_u32 s{sH}, 1\ns_cbranch_scc1 L_out0")
            a.I(f"s_cmp_lg_u32 s{sH}, 0\ns_cbranch_scc1 L_fin")
            self.page()
        dfr = self.deferred; self.deferred = []
        pub = a.vm.last_tag("pub")
        for jobs in dfr: self.clear_prep(jobs); self.clear_issue("clr3")
        if L < 3 and not late: self.wq_pre((L + 1) & 1)
        if late < 2: self.yg_pre(b, L)
        a.wait_tag("pub"); a.barrier()
        if L < 3 and late: self.wq_pre((L + 1) & 1)
        if late >= 2: self.yg_pre(b, L)
        self.yg(b, L, between=lambda: (self.stream(burst[1], paced=False), self.page() if L < 3 else None), hoisted=True, after=lambda: (self.stream(sh[2], paced=False), self.prefetch(pf[1])), pre_bar=(lambda: a.wait_tag("clr3")) if dfr else None)
        self.fs("xrow")
        if L == 3: return
        self.wq_main(b, L + 1, hoisted=True, hoist=True)
        self.fs("pub1")
        self.stamp(f"wq{b}{L+1}")
        self.qg(b, L + 1, between=U(burst[2]), hoisted=True, tail=True, after=lambda: (self.touch(b, L + 1) if self.c.get("touch", 3) != 3 or (b, L) == (0, 1) else None, self.stream(sh[3], paced=False), self.prefetch(pf[2])))
        self.stamp(f"qg{b}{L+1}")
    def build(self):
        a = self.a; c = self.c; W = self.W; WE = c.get("WE", W); HE = c.get("HE", 4); PG = c.get("PG", 0)
        self.off_val = None
        for x in c.get("order", "kvw"):
            if x == "w": self.add_w("wqA", pWQA, "q", 0)
            else:
                for g in range(4): self.add_kv("KA" if x == "k" else "VA", 0, g)
        self.add_w("woA", pWOA, "o", 0); self.add_w("wqB", pWQB, "q", 1)
        for g in range(16): self.add_kv("KB", 0, g)
        wl = c.get("wolate", 0)
        if not wl: self.add_w("woB", pWOB, "o", 1)
        for g in range(16): self.add_kv("VB", 0, g)
        if wl: self.add_w("woB", pWOB, "o", 1, late=True)
        p1 = len(self.items)
        for g in range(4): self.add_kv("KA", 1, g)
        for g in range(4): self.add_kv("VA", 1, g)
        p2 = len(self.items)
        for g in range(16): self.add_kv("KB", 1, g)
        for g in range(16): self.add_kv("VB", 1, g)
        st = self.stream_to; S = lambda n: (lambda: self.stream(n))
        self.limit = p1; a.nobar = c.get('nobar', 0)
        self.setup()
        if c.get("inject", 1): a.inject = self.injector
        if c.get("streamonly"):
            self.limit = 10**9; self.npage = 0; self.hot = []; self.inl = False; self.boost = 0; a.inject = None
            for upto in c["streamonly"]:
                if isinstance(upto, tuple): st(upto[0], W=upto[1])
                else: st(upto)
                self.stamp("end")
            a.wait(vm=0); self.stamp("end")
            return self.finish()
        P = c.get("P1", dict(arr=24, hs=36, qg0=44, wo=76, yg=104, qg1=130))
        for _ in range(c.get("pad", 0)): a.I("s_nop 0")
        a.raw("L_pf0:")
        self.stamp("setup")
        a.wait_tag("clr"); a.barrier()
        self.arrive()
        st(max(P["arr"], self.index_after("wqA") + 4))
        self.stamp("arr")
        a.wait_tag("wqA"); a.barrier()
        self.wq_pre(0); self.wq_main(0, 0, local_ok=False)
        self.wq_pre(0); self.wq_main(1, 0, local_ok=False)
        self.stamp("wq")
        st(P["hs"]); self.handshake(S(W))
        for r, m, base in ((sCTw, 256, CT), (sATTw, 1536, ATT), (sSTATw, 4, STAT), (sCOMBw, 256, ATT)):
            a.I(f"s_mul_i32 s{r}, s{sWave}, {m}\ns_add_u32 s{r}, s{r}, {base}")
        P_ = lambda i: [("P", i)]
        now = [[P_(1), [("C", 1)], P_(2), [("2", 1), ("3", 1)]], [[("3", 2), ("3", 3)], [("3", 4), ("3", 5)], [("3", 6), ("3", 7)], [("3", 6), ("3", 7)]]]
        self.deferred = [[P_(3), P_(5), P_(6), P_(7)], [[("2", 2), ("2", 3)], [("2", 4), ("2", 5)], [("2", 6), ("2", 7)], [("2", 6), ("2", 7)]]]
        if not c.get("defer", 1): now += self.deferred; self.deferred = []
        for jobs in now:
            self.clear_prep(jobs); self.clear_issue("clr2"); self.stream(1)
        self.stamp("hs")
        st(P["qg0"]); self.qg(0, 0, between=S(W))
        self.stamp()
        self.att(0, 0, pre_bar=lambda: (st(self.index_after("woA")), a.wait_tag("woA"), a.wait_tag("clr2")))
        self.stamp()
        self.qg(1, 0, between=S(W))
        self.stamp("qg10")
        st(P["wo"]); self.wo(0, 0, between=S(W))
        self.stamp("wo00")
        st(P["yg"]); self.yg(0, 0, between=S(W), pre_bar=lambda: a.wait_tag("wqB"))
        self.stamp("yg00")
        self.wq_pre(1); self.wq_main(0, 1, hoisted=True)
        self.stream(3, paced=False); self.warm([0, 1, 2, "R"])
        if c.get("cpf") == 2: self.code_prefetch("L_pf1", "L_pf2")
        st(P["qg1"]); self.touch(0, 1, 2) if c.get('touch') == 2 else None; self.qg(0, 1, tail=True, between=lambda: self.stream(min(WE, p1 - self.pos), W=WE))
        a.raw("L_pf1:")
        self.stamp()
        st_ = 64 << c.get("pfs", 6)
        self.pfq = [(KA, o) for o in range(0, 12288, st_)] + [(VA, o) for o in range(0, 12288, st_)] + [(KB, o) for o in range(0, 49152, st_)]
        self.pfreg = 54
        vb0 = self.index_after(("VB", 0, 0)) - 3
        assert self.pos >= vb0 + 3
        if wl: assert self.pos <= p1 - 8
        self.att(0, 1, hook1=lambda g: self.stream(min(1, p1 - self.pos), W=WE) if g % HE == HE - 1 else None,
                 hook2=lambda i: (st(min(p1, vb0 + 3 * (i + 2) + WE - 3), W=WE), self.page() if i == PG else None, self.prefetch(c.get("pf0", 0)) if i == c.get("pfi", 11) else None), pre_bar=lambda: st(p1, W=WE) if wl else a.wait_tag("woB"), hoist=True, qaddr=True)
        if wl: a.wait_tag("woB"); a.barrier()
        assert self.pos == p1
        a.inject = None; self.limit = p2
        self.stamp("p1end")
        self.chain_idle(0, 1, pf=c.get("pf1", (0, 0, 0)))
        bu = c.get("burst", (6, 0, 0, 0)); sh = c.get("sh", (0, 9, 3, 6))
        self.att(0, 2, hookm=lambda: self.stream(bu[0], paced=False), hoist=True, qaddr=True)
        self.stamp("att02")
        self.pfq = [x for x in self.pfq if x[0] == KB]
        self.chain_idle(0, 2, burst=bu[1:], sh=sh, pf=c.get("pf2", (0, 0, 0)))
        self.stamp("p2beg")
        self.limit = len(self.items)
        n0 = c.get("n0", 9); h2 = c.get("h2", 2); q0 = self.pos
        def hook03(g):
            self.stream(max(0, min(3, q0 + n0 - self.pos, p2 + 3 * g + 3 - self.pos)), paced=False)
        self.att(0, 3, hook1=hook03, hook2=lambda i: self.stream(1, paced=False) if i % h2 == h2 - 1 else None, qaddr=True)
        self.stamp("att03")
        a.raw("L_pf2:")
        P = c.get("P2", dict(att=8, wo=34, yg=62, qg=80))
        if c.get("inject", 1): a.inject = self.injector
        st(p2 + P.get("att", 0))
        self.att(1, 0, guard=True, hook2=lambda i: self.stream(2))
        self.stamp("att10")
        st(p2 + P["wo"]); self.stamp("a"); self.wo(1, 0, between=S(W)); self.stamp("wo10"); self.wo(0, 3, between=S(W)); self.stamp("wo03")
        st(p2 + P["yg"]); self.stamp("b"); self.yg(1, 0, between=S(W)); self.stamp("yg10")
        self.wq_pre(1); self.wq_main(1, 1, hoisted=True)
        self.stream(3, paced=False); self.warm([3, 4, 5, 6])
        if c.get("cpf") == 2: self.code_prefetch("L_pf3", "L_pf9")
        st(p2 + P["qg"]); self.stamp("c"); self.touch(1, 1, 2) if c.get('touch') == 2 else None; self.qg(1, 1, tail=True, between=lambda: self.stream(WE, W=WE))
        a.raw("L_pf3:")
        self.stamp("qg11")
        vb1 = p2 + 48
        self.att(1, 1, hook1=lambda g: self.stream(1, W=WE) if g % HE == HE - 1 else None,
                 hook2=lambda i: (st(min(len(self.items), vb1 + 3 * (i + 2) + WE - 3), W=WE), self.page() if i == PG else None), hoist=True, qaddr=True)
        assert self.pos == len(self.items)
        a.inject = None
        self.stamp("p2end")
        self.chain_idle(1, 1)
        self.fine_on = c.get("fine") == 1
        self.fs("q_ready")
        self.att(1, 2, hoist=True, qaddr=True)
        self.stamp("att12")
        self.chain_idle(1, 2)
        self.fs("q_ready")
        if c.get("fine") == 2: self.fine_on = True; self.fs("q_ready")
        self.att(1, 3, hoist=True, qaddr=True)
        self.stamp("att13")
        self.chain_idle(1, 3)
        a.I("s_branch L_fin"); a.raw("L_out0:"); a.I("s_nop 7"); a.wait(vm=0, lg=0)
        self.yg(0, 3)
        a.raw("L_fin:"); a.I("s_nop 7")
        if c.get("hold"):
            a.raw("L_hold:"); a.I(f"s_memrealtime s[38:39]"); a.wait(lg=0)
            a.I(f"s_sub_u32 s38, s38, s{98 if c.get('holdat') else sST}\ns_cmp_lt_u32 s38, {c['hold']}\ns_cbranch_scc1 L_hold")
        self.fs("end")
        self.stamp("end")
        return self.finish()
    def finish(self):
        a = self.a; c = self.c
        if c.get("fine"):
            a.wait(lg=0)
            for i in range(self.nfine): a.I(f"v_writelane_b32 v{vStamp}, s{FS[i]}, {i}")
            print("fine stamps:", self.fnames)
        if c.get("diag"):
            a.I("s_sleep 100")
            a.I(f"v_writelane_b32 v{vStamp}, s{sRetry}, 62\nv_writelane_b32 v{vStamp}, s{sLocal}, 63")
            a.I(f"s_lshl_b32 s{sT0}, s{sWG}, 10\ns_lshl_b32 s{sT1}, s{sWave}, 8\ns_add_u32 s{sT0}, s{sT0}, s{sT1}\ns_add_u32 s{sT0}, s{sT0}, {DIAG}\nv_lshlrev_b32 v7, 2, v0")
            a.I(f"buffer_store_dword v{vStamp}, v7, {s4(WS)}, s{sT0} offen")
        if c.get("diag") and not c.get("fine"): print("stamps:", " ".join(self.snames))
        a.raw("L_end:"); a.raw("  s_endpgm")
        if c.get("pages", 1): self.hot = [f".p2align {c.get('hotal', 12)}\nLstR:\n  s_setpc_b64 {sp(sRet)}"] + self.hot
        a.tail = self.hot + a.tail
        a.tail.append("L_pf9:\n  s_endpgm")
        body = a.text()
        return (HEAD + f"; @launch grid=(256,1,1) block=(256,1,1) lds={LDS_BYTES}\n" + DOC
                + f'.amdgcn_target "amdgcn-amd-amdhsa--gfx950"\n.text\n.globl {NAME}\n.p2align 8\n.type {NAME},@function\n{NAME}:\n'
                + body + f'.section .rodata,"a"\n.p2align 6\n.amdhsa_kernel {NAME}\n  .amdhsa_next_free_vgpr 512\n  .amdhsa_next_free_sgpr 102\n'
                + "  .amdhsa_accum_offset 256\n  .amdhsa_group_segment_fixed_size 0\n  .amdhsa_kernarg_size 104\n  .amdhsa_user_sgpr_count 2\n"
                + "  .amdhsa_user_sgpr_kernarg_segment_ptr 1\n  .amdhsa_system_sgpr_workgroup_id_x 1\n.end_amdhsa_kernel\n")

def generate(cfg):
    global COMPACT1; COMPACT1 = cfg.get('c1', 0)
    global H1_I, H1_H, H1_S, H2, H2_I, H2_H, H2_S, H3, H3_I, H3_S, H3_H
    H1_S = cfg.get("H1S", 2048); H1_H = cfg.get("H1H", 8 * H1_S); H1_I = 32 * H1_H
    H2_S = cfg.get("H2S", 384); H2_H = cfg.get("H2H", 8 * H2_S if H2_S != 384 else 4096); H2_I = 32 * H2_H; H2 = cfg.get("H2B", 8 * H1_I); assert H2 >= 8 * H1_I
    H3_H = cfg.get("H3H", 192); H3_S = cfg.get("H3S", 32 * H3_H); H3_I = cfg.get("H3I", max(8 * H3_S, 32 * H3_H)); H3 = cfg.get("H3B", H2 + 8 * H2_I); assert H3 >= H2 + 8 * H2_I
    assert H3 + 8 * H3_I <= DIAG
    return Gen(cfg).build()
if __name__ == "__main__":
    cfg = eval(sys.argv[2]) if len(sys.argv) > 2 else {}
    open(sys.argv[1], "w").write(generate(cfg))
```

```python
import sys, math
from dsl import Asm

NAME = "interleave_layers__sliding_block_cached__gqa_block_cached__decode_kernel"
HEAD = open("interleave_layers__sliding_block_cached__gqa_block_cached__decode.s.ref").read().split("; Override")[0]

KV_BYTES = 2 * 32 * 4096 * 384
BSTR = 32 * 4096 * 384
HSTR = 4096 * 384
W_BYTES = 640 * 6144 * 2
WS_BYTES = 434115584
H1_I, H1_H, H1_S = 524288, 16384, 2048
H2 = 8 * H1_I; H2_I, H2_H, H2_S = 131072, 4096, 512
H3 = H2 + 8 * H2_I; H3_I, H3_S, H3_H = 65536, 8192, 256
DIAG = 64 << 20
WQ = (0, 61440); WO = (30720, 92160)
VS = 122880
EX = 147456
ATT = EX; STAT = EX + 6144; Y = EX + 6208; YSZ = 1280; XROW = Y + 2 * YSZ; ONES = XROW + 1280; QB = ONES + 160; CT = QB + 768
JUNK = CT + 2048
LDS_BYTES = JUNK + 256
assert LDS_BYTES <= 163840
sWG, sWave = 2, 3
KA, VA, KB, VB, WS, WT, XO = 4, 8, 12, 16, 20, 24, 28
pX, pKA, pVA, pWQA, pWOA, pKB, pVB, pWQB, pWOB, pOUT, pDBG, pWS = 32, 34, 36, 38, 40, 44, 46, 48, 50, 52, 54, 56
sH, sS, sLocal, sOff, sRetry, sT0, sT1, sT2 = 58, 59, 60, 61, 62, 63, 64, 65
sH1own, sH1grp, sH2own, sH2grp, sH3own, sH3grp, sOffG, sOffP = 66, 67, 68, 69, 70, 71, 72, 73
mODD, mHI8, mHI32, mWOST, mRG1, mRG2, mRG3, m60 = 74, 76, 78, 80, 82, 84, 86, 88
sXcc, sWqRow, sWoRow, sLdsW, sLdsVS = 90, 91, 92, 93, 94
sST = 96; m40 = 98; mBIT1 = 100; mW3 = 42; mN10 = 32; sW2 = 95; sOffG2 = 35; sClr = 0; sM = 34; sOffW = 76; sRet = 78; sPub2 = 44; sXROWw, sYw, sQw, sCTw, sATTw, sSTATw, sCOMBw = 45, 56, 57, 38, 39, 54, 55; sH1c = 77; mQ13 = 98; mPub1 = 52; mPub2 = 46; mL63 = 36
FS = [40, 48, 50, 24, 26, 88, 90, 92]
def sp(n): return f"s[{n}:{n+1}]"
def s4(n): return f"s[{n}:{n+3}]"
def v2(n): return f"v[{n}:{n+1}]"
def v4(n): return f"v[{n}:{n+3}]"
vLane, vKoff, vVoff, vMask = 0, 1, 2, 3
vQ, vACC, vU = 12, 24, 36
vStamp = 55
QUADS = [f"a[{i}:{i+3}]" for i in range(0, 256, 4)] + [f"v[{i}:{i+3}]" for i in range(56, 256, 4)]
SLOT = {}
_names = [("KA", i) for i in range(4)] + [("VA", 0), ("VA", 1)] + [("KB", i) for i in range(16)] + [("VB", i) for i in range(16)]
for i, n in enumerate(_names): SLOT[n] = QUADS[3 * i:3 * i + 3]
assert SLOT[("VB", 15)][2] == "v[252:255]"
vWq0, vWq1, vWo = 252, 253, 254
SCALE = 192 ** -0.5 * math.log2(math.e)
import struct
def f32(x): return "0x%08x" % struct.unpack("<I", struct.pack("<f", x))[0]

DOC = "; Four decode layers (A, B, A, B) in one persistent launch, one workgroup per CU (4 waves x 512 registers, 157 KiB LDS).\n;  workgroup w: head h = 4*(w&7) + ((w>>3)&3), slice s = w>>5. It owns 1/8 of head h's cache positions for both batch rows,\n"

def c1(inst): return COMPACT1 and inst >= 2

class Gen:
    def __init__(self, cfg):
        self.c = cfg; self.a = Asm(); self.items = []; self.pos = 0; self.nstamp = 0
        self.W = cfg.get("W", 10); self.limit = 10**9; self.npage = 0; self.hot = []; self.inl = False; self.boost = 0; self.last_cyc = 0; self.fine_on = False; self.nfine = 0; self.fnames = []; self.snames = ['start']
    def add_w(self, name, ptr, kind, ty, late=False):
        pol = self.c.get("wpol", "nt")
        def mk(k):
            def f():
                a = self.a
                if k == 0:
                    off = sWqRow if kind == "q" else sWoRow
                    a.I(f"s_add_u32 s{WT}, s{ptr}, s{off}\ns_addc_u32 s{WT+1}, s{ptr+1}, 0\ns_sub_u32 s{WT+2}, {W_BYTES}, s{off}")
                    if late: a.I("v_mul_u32_u24 v54, 26, v0\nv_lshrrev_b32 v54, 8, v54\nv_mul_u32_u24 v54, 1120, v54\nv_lshl_add_u32 v54, v0, 4, v54")
                base = (WQ if kind == "q" else WO)[ty]
                a.I(f"s_add_u32 m0, s{sLdsW}, {base + 960 * k}")
                if kind == "q": so = 5 * (k // 2) * 12288; vr = vWq1 if k & 1 else vWq0
                else: so = 6 * k * 1280; vr = 54 if late else vWo
                a.I(f"s_mov_b32 s{sOff}, {so}\ns_mov_b64 exec, {sp(m60)}")
                a.I(f"buffer_load_dwordx4 v{vr}, {s4(WT)}, s{sOff} offen {pol} lds", tag=name)
                a.I("s_mov_b64 exec, -1")
            return f
        self.items += [(name, mk(k)) for k in range(8)]
    def add_kv(self, name, b, g):
        srd = {"KA": KA, "VA": VA, "KB": KB, "VB": VB}[name]
        isK = name[0] == "K"; vo = vKoff if isK else vVoff; step = 128 if isK else 256
        pol = self.c.get("kvpol", "nt")
        def mk(c):
            def f():
                a = self.a
                if (name, g) in SLOT:
                    if c == 0: a.I(f"s_mov_b32 s{sOff}, {b * BSTR + g * 3072}")
                    elif self.off_val != (name, b, g): a.I(f"s_mov_b32 s{sOff}, {b * BSTR + g * 3072}")
                    self.off_val = (name, b, g)
                    a.I(f"buffer_load_dwordx4 {SLOT[(name, g)][c]}, v{vo}, {s4(srd)}, s{sOff} offen offset:{step * c} {pol}")
                else:
                    self.off_val = None
                    a.I(f"s_add_u32 m0, s{sLdsVS}, {(g - 2) * 3072 + 1024 * c}\ns_mov_b32 s{sOff}, {b * BSTR + g * 3072 + step * c}")
                    a.I(f"buffer_load_dwordx4 v{vo}, {s4(srd)}, s{sOff} offen {pol} lds", tag=("VS", b, g))
            return f
        self.items += [((name, b, g), mk(c)) for c in range(3)]
    def stream(self, n, paced=True, W=None):
        for _ in range(n):
            if self.pos >= len(self.items): return
            assert self.pos < self.limit, (self.pos, self.limit)
            if paced: self.a.pace((W or self.W) + (self.c.get("B", 0) if self.pos < self.boost else 0))
            sv = self.a._in_inject; self.a._in_inject = True
            self.items[self.pos][1](); self.pos += 1; self.last_cyc = self.a.cyc
            if self.c.get("diag") == 3 and self.pos % 5 == 0 and self.pos > 10: self.stamp("pos")
            self.a._in_inject = sv
    def prefetch(self, n):
        a = self.a
        for _ in range(n):
            if not self.pfq: return
            srd, off = self.pfq.pop(0)
            a.I(f"v_lshlrev_b32 v{self.pfreg}, {self.c.get('pfs', 6)}, v0\ns_mov_b32 m0, {JUNK}\ns_mov_b32 s{sOff}, {BSTR + off}")
            a.I(f"buffer_load_dword v{self.pfreg}, {s4(srd)}, s{sOff} offen {self.c.get('pfpol', '')} lds")
            self.off_val = None
    def injector(self):
        a = self.a
        if self.pos < self.limit and a.cyc - self.last_cyc >= self.c.get("T", 330) and a.vm.outstanding() < self.W + self.c.get("XW", 6) + (self.c.get("B", 0) if self.pos < self.boost else 0):
            self.stream(1, paced=False)
    def stream_to(self, upto, **k): self.stream(max(0, upto - self.pos), **k)
    def index_after(self, name):
        return max(i for i, it in enumerate(self.items) if it[0] == name) + 1
    def fs(self, name):
        if not self.fine_on or self.nfine >= len(FS): return
        self.a.I(f"{'s_memrealtime' if self.c.get('rt') else 's_memtime'} {sp(FS[self.nfine])}"); self.nfine += 1; self.fnames.append(name)
    def page(self):
        if not self.c.get("pages", 1): return
        k = self.npage; self.npage += 1
        self.a.I(f"s_branch Lpg{k}"); self.a.raw(f".p2align 12\nLst{k}:\n  s_setpc_b64 {sp(sRet)}\nLpg{k}:")
    def warm(self, ks):
        if not (self.c.get("pages", 1) and self.c.get("warm", 1)): return
        a = self.a
        a.I(f"s_cmp_lg_u32 s{sWave}, 3"); a.skip_begin("s_cbranch_scc1")
        for k in ks: a.I(f"s_call_b64 {sp(sRet)}, Lst{k}")
        a.skip_end()
    def check_slot(self, name, b, g):
        assert self.index_after((name, b, g)) <= self.pos, ("not issued", name, b, g, self.pos)
        if b == 0: assert self.index_after((name, 1, g)) - 3 >= self.pos, ("overwritten", name, g)
    def stamp(self, name=''):
        if self.c.get("marks"): self.a.raw(f"M_{name}_{len(self.snames)}:")
        if self.c.get("holdat") == name:
            self.a.I("s_memrealtime s[98:99]"); self.a.wait(lg=0)
        self.snames.append(f'{name}@{self.pos}')
        if not self.c.get("diag") or self.c.get("fine"): return
        if self.c["diag"] == 3 and name not in ("pos", "end"): self.snames.pop(); return
        if self.c["diag"] == 2 and name not in self.c.get("only", ("p1end", "p2beg", "p2end", "end")): self.snames.pop(); return
        a = self.a
        a.I(f"s_memrealtime {sp(sST)}"); a.wait(lg=0)
        a.I(f"v_writelane_b32 v{vStamp}, s{sST if not self.c.get('rcount') else sRetry}, {self.nstamp}"); self.nstamp += 1
    def publish(self, text, local_ok, tag="pub"):
        a = self.a
        if local_ok and self.c.get("local", True):
            a.I(f"s_cmp_lg_u32 s{sLocal}, 0")
            a.either(text.format(pol=""), text.format(pol="sc1"), tag=tag)
        else: a.I(text.format(pol="sc1"), tag=tag); self.boost = self.pos + self.c.get("KB", 14)
    def gather(self, loads, regs, tmp, between=None, emask=None, sleep=None, first=False, spec=(), vmask=False):
        a = self.a
        if first and between: between(); between = None
        if emask: loads = [f"s_mov_b64 exec, {emask}"] + loads + ["s_mov_b64 exec, -1"]
        for t in loads: a.I(t, tag="gat")
        last = len(a.vm.ent) - 1
        if emask or self.c.get("BG"): self.boost = self.pos + self.c.get("KB", 14)
        if between: between()
        self.fs("issued")
        n = a.vm.need(last)
        if n is not None: a.wait(vm=n)
        chk = a.label("Lc"); rt = a.label("Lr")
        a.raw(f"{chk}:"); a.no_inject += 1
        r = list(regs); ops = []
        ops.append(f"v_max3_u32 v{tmp}, v{r[0]}, v{r[1]}, v{r[2]}"); r = r[3:]
        while len(r) >= 2: ops.append(f"v_max3_u32 v{tmp}, v{tmp}, v{r[0]}, v{r[1]}"); r = r[2:]
        if r: ops.append(f"v_max_u32 v{tmp}, v{tmp}, v{r[0]}")
        ops.append(f"v_cmp_eq_u32 vcc, -1, v{tmp}")
        spec = list(spec)
        k = -(-len(ops) // max(1, len(spec)))
        while ops or spec:
            if spec: a.I(spec.pop(0))
            for t in ops[:k]: a.I(t)
            ops = ops[k:]
        if vmask: a.I(f"s_and_b64 vcc, vcc, {emask}")
        self.inl = self.c.get("inl", 0) and not a.inject
        if not (self.c.get("novalid") and a.inject): a.I(f"s_cbranch_vccz {rt}k" if self.inl else f"s_cbranch_vccnz {rt}")
        if self.c.get("narrow", 3) & (2 if emask else 1):
            loads = ["s_mov_b64 exec, vcc"] + [t for t in loads if not t.startswith("s_mov")] + ["s_mov_b64 exec, -1"]
        self.retry_block(rt, chk, loads, sleep); a.no_inject -= 1
        self.fs("valid")
    def lsleep(self): return None if self.a.inject else self.c.get('lsleep', 0)
    def retry_block(self, rt, chk, loads, sleep=None):
        a = self.a
        if sleep is None: sleep = self.c.get("sleep", 0)
        blk = ([f"  s_sleep {sleep}"] if sleep else []) + ["  " + t for t in loads]
        blk += [f"  s_add_u32 s{sRetry}, s{sRetry}, 1", f"  s_cmp_gt_u32 s{sRetry}, {self.c.get('spin', 2000000)}", "  s_cbranch_scc1 L_end",
                "  s_waitcnt vmcnt(0)", f"  s_branch {chk}"]
        if self.inl: a.out += blk + [f"{rt}k:"]
        elif a.inject: a.tail += [f"{rt}:"] + blk
        else: self.hot += [f"{rt}:"] + blk
        self.inl = False
    def setup(self):
        a = self.a; I = a.I
        I(f"s_cmp_ge_u32 s{sWG}, 256\ns_cbranch_scc1 L_end")
        I(f"s_load_dwordx16 s[32:47], s[0:1], 0\ns_load_dwordx8 s[48:55], s[0:1], 64\ns_load_dwordx2 s[56:57], s[0:1], 96")
        if self.c.get("diag") or self.c.get("hold"): I(f"s_memrealtime {sp(sST)}")
        I(f"v_lshrrev_b32 v8, 6, v0\nv_and_b32 v0, 63, v0\nv_readfirstlane_b32 s{sWave}, v8")
        I(f"s_and_b32 s{sT0}, s{sWG}, 7\ns_lshl_b32 s{sT0}, s{sT0}, 2\ns_lshr_b32 s{sT1}, s{sWG}, 3\ns_and_b32 s{sT1}, s{sT1}, 3\ns_add_u32 s{sH}, s{sT0}, s{sT1}\ns_lshr_b32 s{sS}, s{sWG}, 5")
        I(f"v_mul_u32_u24 v8, 43, v0\nv_lshrrev_b32 v8, 10, v8\nv_mul_u32_u24 v9, 24, v8\nv_sub_u32 v9, v0, v9\nv_mul_u32_u24 v8, 0x3000, v8\nv_lshl_add_u32 v{vWq0}, v9, 4, v8")
        I(f"v_add_u32 v10, 60, v0\nv_mul_u32_u24 v8, 43, v10\nv_lshrrev_b32 v8, 10, v8\nv_mul_u32_u24 v9, 24, v8\nv_sub_u32 v9, v10, v9\nv_mul_u32_u24 v8, 0x3000, v8\nv_lshl_add_u32 v{vWq1}, v9, 4, v8")
        I(f"s_mul_i32 s{sT0}, s{sS}, {80 * 12288}\ns_mul_i32 s{sT1}, s{sWave}, {20 * 12288}\ns_add_u32 s{sT0}, s{sT0}, s{sT1}\ns_mul_i32 s{sT1}, s{sH}, 384\ns_add_u32 s{sWqRow}, s{sT0}, s{sT1}")
        I(f"s_mul_i32 s{sT0}, s{sH}, {192 * 1280}\ns_mul_i32 s{sT1}, s{sWave}, {48 * 1280}\ns_add_u32 s{sT0}, s{sT0}, s{sT1}\ns_mul_i32 s{sT1}, s{sS}, 160\ns_add_u32 s{sWoRow}, s{sT0}, s{sT1}")
        I(f"s_mul_i32 s{sLdsW}, s{sWave}, 7680\ns_mov_b32 s{m60}, -1\ns_mov_b32 s{m60+1}, 0x0fffffff\ns_mov_b32 s{WT+3}, 0x20000\ns_mov_b32 s{sRetry}, 0")
        I(f"v_and_b32 v8, 15, v0\nv_lshrrev_b32 v9, 4, v0")
        I(f"v_lshrrev_b32 v10, 1, v8\nv_mul_u32_u24 v10, 384, v10\nv_and_b32 v11, 1, v8\nv_lshl_add_u32 v11, v9, 1, v11\nv_lshl_add_u32 v{vKoff}, v11, 4, v10")
        I(f"v_mul_u32_u24 v10, 768, v9\nv_lshl_add_u32 v{vVoff}, v8, 4, v10")
        I(f"s_mul_i32 s{sT0}, s{sH}, {HSTR}\ns_mul_i32 s{sT1}, s{sS}, {128 * 384}\ns_add_u32 s{sT1}, s{sT1}, s{sT0}\ns_mul_i32 s{sT2}, s{sWave}, {32 * 384}\ns_add_u32 s{sT1}, s{sT1}, s{sT2}\ns_add_u32 s{sOffG}, s{sT1}, {3072 * 384}")
        I(f"s_mul_i32 s{sT1}, s{sS}, {512 * 384}\ns_add_u32 s{sT1}, s{sT1}, s{sT0}\ns_mul_i32 s{sT2}, s{sWave}, {128 * 384}\ns_add_u32 s{sOffP}, s{sT1}, s{sT2}")
        I(f"s_mul_i32 s{sLdsVS}, s{sWave}, 6144\ns_add_u32 s{sLdsVS}, s{sLdsVS}, {VS}")
        I(f"s_mov_b32 s{XO+2}, 2560\ns_mov_b32 s{XO+3}, 0x20000\ns_mul_i32 s{sT0}, s{sS}, 160\nv_lshlrev_b32 v7, 2, v0\nv_min_u32 v7, 156, v7")
        for srd, o in ((KA, sOffG), (VA, sOffG), (KB, sOffP), (VB, sOffP)): I(f"s_sub_u32 s{srd+2}, {KV_BYTES}, s{o}\ns_mov_b32 s{srd+3}, 0x20000")
        I(f"s_mov_b32 s{WS+2}, {WS_BYTES}\ns_mov_b32 s{WS+3}, 0x20000")
        I(f"s_mul_i32 s{sH1grp}, s{sH}, {H1_H}\ns_mul_i32 s{sT1}, s{sS}, {H1_S}\ns_add_u32 s{sH1own}, s{sH1grp}, s{sT1}\ns_mul_i32 s{sT1}, s{sS}, 768\ns_add_u32 s{sH1c}, s{sH1grp}, s{sT1}")
        I(f"s_mul_i32 s{sH2grp}, s{sH}, {H2_H}\ns_add_u32 s{sH2grp}, s{sH2grp}, {H2}\ns_mul_i32 s{sT1}, s{sS}, {H2_S}\ns_add_u32 s{sH2own}, s{sH2grp}, s{sT1}")
        I(f"s_mul_i32 s{sH3grp}, s{sS}, {H3_S}\ns_add_u32 s{sH3grp}, s{sH3grp}, {H3}\ns_mul_i32 s{sT1}, s{sH}, {H3_H}\ns_add_u32 s{sH3own}, s{sH3grp}, s{sT1}")
        self.clear_prep([[("P", 0)], [("C", 0)], [("P", 4)], [("2", 0), ("3", 0)]])
        a.wait(lg=0)
        if self.c.get("diag"): I(f"v_mov_b32 v{vStamp}, 0\nv_writelane_b32 v{vStamp}, s{sST}, 0"); self.nstamp = 1
        def srds(l):
            for srd, p, o in l: I(f"s_add_u32 s{srd}, s{p}, s{o}\ns_addc_u32 s{srd+1}, s{p+1}, 0")
        def small():
            I(f"s_mov_b32 s{WS}, s{pWS}\ns_mov_b32 s{WS+1}, s{pWS+1}\ns_mov_b32 s{XO}, s{pX}\ns_mov_b32 s{XO+1}, s{pX+1}")
            self.clear_issue("clr")
            I(f"buffer_load_dword v12, v7, {s4(XO)}, s{sT0} offen\nbuffer_load_dword v13, v7, {s4(XO)}, s{sT0} offen offset:1280")
        n0, n1 = self.c.get("I", (12, 28))
        srds([(KA, pKA, sOffG)])
        self.stream(min(n0, 12), paced=False)
        srds([(VA, pVA, sOffG), (KB, pKB, sOffP), (VB, pVB, sOffP)])
        self.stream_to(n0, paced=False)
        small()
        self.stream_to(n1, paced=False)
        if self.c.get("st0"):
            self.stamp("end")
            n = len(a.vm.ent)
            for k in (1, 3, 6, 9, 12, 15, 18, n): a.wait(vm=n - k); self.stamp("end")
        if self.c.get("cpf") == 1: self.code_prefetch("L_pf0", "L_pf9")
        I(f"v_mul_u32_u24 v10, 26, v0\nv_lshrrev_b32 v10, 8, v10\nv_mul_u32_u24 v11, 10, v10\nv_sub_u32 v11, v0, v11\nv_mul_u32_u24 v10, 1280, v10\nv_lshl_add_u32 v{vWo}, v11, 4, v10")
        I("v_and_b32 v10, 1, v0\nv_cmp_eq_u32 vcc, 1, v10\nv_mov_b32 v11, 0xffff\nv_mov_b32 v20, 0xffff0000\nv_cndmask_b32 v11, v11, v20, vcc\nv_bfe_u32 v10, v0, 1, 2")
        for j in range(4): I(f"v_cmp_eq_u32 vcc, {j}, v10\nv_cndmask_b32 v{vMask+j}, 0, v11, vcc")
        for m, lo, hi in ((mODD, 0xaaaaaaaa, 0xaaaaaaaa), (mRG1, 0xffff0000, 0), (mRG2, 0, 0xffff), (mRG3, 0, 0xffff0000), (mWOST, 0x5555, 0x5555), (mN10, 0x03ff03ff, 0x03ff03ff), (mBIT1, 0xcccccccc, 0xcccccccc), (mL63, 0, 0x80000000), (mQ13, 0x1fff1fff, 0x1fff1fff)):
            I(f"s_mov_b32 s{m}, {lo:#x}\ns_mov_b32 s{m+1}, {hi:#x}")
        I(f"s_cmp_eq_u32 s{sWave}, 3\ns_cselect_b64 {sp(mW3)}, -1, 0\ns_min_u32 s{sW2}, s{sWave}, 2")
        if H2_S == 384:
            I(f"s_mul_i32 s{sT0}, s{sS}, -368\ns_add_u32 s{sT0}, s{sT0}, 3072\ns_lshl_b32 s{sPub2}, s{sWave}, 7\ns_cmp_eq_u32 s{sWave}, 3\ns_cselect_b32 s{sPub2}, s{sT0}, s{sPub2}")
            I(f"s_mov_b32 s{mPub2}, 0x55555555\ns_cselect_b32 s{mPub2+1}, 0, s{mPub2}\ns_cselect_b32 s{mPub2}, 0x55, s{mPub2}")
        if self.c.get("nost3"): I(f"s_cmp_lt_u32 s{sWave}, 3\ns_cselect_b32 s{mWOST+1}, 0x5555, 0\ns_cselect_b32 s{mWOST}, 0x5555, 0")
        if H3_H == 160: I(f"s_cmp_lt_u32 s{sWave}, 2\ns_cselect_b32 s{mWOST+1}, 0x5555, 0")
        I(f"s_getreg_b32 s{sXcc}, hwreg(HW_REG_XCC_ID, 0, 4)\ns_add_u32 s{sXcc}, s{sXcc}, 1")
        for r, m, base in ((sXROWw, 160, XROW), (sYw, 320, Y), (sQw, 96, QB)): I(f"s_mul_i32 s{r}, s{sWave}, {m}\ns_add_u32 s{r}, s{r}, {base}")
        I(f"v_add_u32 v10, s{sXROWw}, v7\nv_add_u32 v11, {ONES}, v7\nv_mov_b32 v20, 0x3f803f80")
        I("ds_write_b32 v11, v20\nds_write_b32 v10, v12\nds_write_b32 v10, v13 offset:640")
        I(f"s_mov_b32 s{XO}, s{pOUT}\ns_mov_b32 s{XO+1}, s{pOUT+1}")
        I(f"s_mov_b32 s{mPub1}, -1\ns_cmp_eq_u32 s{sWave}, 0\ns_cselect_b32 s{mPub1+1}, 0xfffff, 0\ns_or_b32 s{mPub1+1}, s{mPub1+1}, 0xffff")
    def clear_prep(self, jobs):
        I = self.a.I
        I("v_mov_b32 v16, -1\nv_mov_b32 v17, -1\nv_mov_b32 v18, -1\nv_mov_b32 v19, -1\nv_lshlrev_b32 v14, 4, v0")
        def seg(k, inst, hi):
            if k == "P" and c1(inst): return sH1c, inst * H1_I, (0x1ffff if hi else -1)
            if k in "PC": return sH1own, inst * H1_I + (1024 if k == "C" else 0), -1
            if k == "2": return sH2own, inst * H2_I - 512 * hi, (0x1ffffff if H2_S == 384 else -1)
            return sH3own, inst * H3_I - 512 * hi, (0x3ff if H3_H == 160 else 0xffff if self.c.get('clr256') else 0xfff)
        for w, job in enumerate(jobs):
            lo = seg(*job[0], 0); hi = seg(*job[-1], 1)
            for (r, o, m), dst, md in ((lo, sT1, sClr), (hi, sT2, sClr + 1)):
                if w == 0: I(f"s_add_u32 s{dst}, s{r}, {o & 0xffffffff}\ns_mov_b32 s{md}, {m}")
                else: I(f"s_add_u32 s{sOff}, s{r}, {o & 0xffffffff}\ns_cmp_eq_u32 s{sWave}, {w}\ns_cselect_b32 s{dst}, s{sOff}, s{dst}\ns_cselect_b32 s{md}, {m}, s{md}")
        self.off_val = None
        I(f"v_mov_b32 v15, s{sT1}\nv_mov_b32 v20, s{sT2}\nv_cmp_lt_u32 vcc, 31, v0\nv_cndmask_b32 v15, v15, v20, vcc\nv_add_u32 v15, v15, v14")
        if any(k == "P" and c1(i) for job in jobs for k, i in job):
            I(f"s_mov_b32 s{sT1}, 0\ns_mov_b32 s{sT2}, 0")
            for w, job in enumerate(jobs):
                if job[0][0] == "P" and c1(job[0][1]): I(f"s_cmp_eq_u32 s{sWave}, {w}\ns_cselect_b32 s{sT2}, 0x10000, s{sT2}")
            self.off_val = None; self.a.no_inject += 1
            I(f"s_mul_i32 s{sOff}, s{sS}, -752\ns_add_u32 s{sOff}, s{sOff}, {6144 - 768}\nv_add_u32 v20, s{sOff}, v15\nv_cndmask_b32 v15, v15, v20, {sp(sT1)}")
            self.a.no_inject -= 1
        if H2_S == 384 and any(k == "2" for job in jobs for k, _ in job):
            I(f"s_mov_b32 s{sT1}, 0\ns_mov_b32 s{sT2}, 0")
            for w, job in enumerate(jobs):
                for (k, _), dst in ((job[0], sT1), (job[-1], sT2)):
                    if k == "2": I(f"s_cmp_eq_u32 s{sWave}, {w}\ns_cselect_b32 s{dst}, 0x1000000, s{dst}")
            self.off_val = None; self.a.no_inject += 1
            I(f"s_mul_i32 s{sOff}, s{sS}, -368\ns_add_u32 s{sOff}, s{sOff}, {3072 - 384}\nv_add_u32 v20, s{sOff}, v15\nv_cndmask_b32 v15, v15, v20, {sp(sT1)}")
            self.a.no_inject -= 1
    def clear_issue(self, tag, local_ok=False):
        I = self.a.I
        I(f"s_mov_b64 exec, {sp(sClr)}")
        self.publish(f"buffer_store_dwordx4 v[16:19], v15, {s4(WS)}, 0 offen {{pol}}", local_ok, tag=tag)
        I("s_mov_b64 exec, -1")
    def tlb_touch(self):
        a = self.a; I = a.I
        ent = []
        for p, o, span in ((pWQA, sWqRow, 20 * 12288), (pKA, sOffG, 12288), (pVA, sOffG, 12288), (pWOA, sWoRow, 48 * 1280), (pWQB, sWqRow, 20 * 12288),
                           (pKB, sOffP, 49152), (pWOB, sWoRow, 48 * 1280), (pVB, sOffP, 49152)):
            for b in range(2 if o in (sOffG, sOffP) else 1): ent.append((p, o, b * BSTR))
        if self.c["tlb"] > 1:
            ent += [(pWS, None, 0), (pWS, None, 2 << 20), (pWS, None, 4 << 20), (pDBG, None, 0), (pOUT, None, 0)]
        for i, (p, o, c) in enumerate(ent):
            if o is None: I(f"s_add_u32 s{sT1}, s{p}, {c}\ns_addc_u32 s{sT2}, s{p+1}, 0")
            else:
                I(f"s_add_u32 s{sT1}, s{p}, s{o}\ns_addc_u32 s{sT2}, s{p+1}, 0")
                if c: I(f"s_add_u32 s{sT1}, s{sT1}, {c}\ns_addc_u32 s{sT2}, s{sT2}, 0")
            if i == 0: I(f"v_mov_b32 v14, s{sT1}\nv_mov_b32 v15, s{sT2}")
            else: I(f"v_writelane_b32 v14, s{sT1}, {i}\nv_writelane_b32 v15, s{sT2}, {i}")
        I(f"s_mov_b64 exec, {(1 << len(ent)) - 1}\nglobal_load_dword v250, v[14:15], off nt\ns_mov_b64 exec, -1")
    def code_prefetch(self, lo, hi):
        a = self.a; I = a.I
        l = a.label("Lp")
        I(f"s_getpc_b64 {sp(sT1)}"); a.raw(f"{l}:")
        I(f"s_add_u32 s{sT1}, s{sT1}, {lo}-{l}\ns_addc_u32 s{sT2}, s{sT2}, 0")
        I(f"s_lshr_b32 s{sT0}, s{sWG}, 3\ns_lshl_b32 s{sT0}, s{sT0}, 2\ns_add_u32 s{sT0}, s{sT0}, s{sWave}\ns_lshl_b32 s{sT0}, s{sT0}, 13")
        I(f"v_lshl_add_u32 v30, v0, 7, s{sT0}\nv_cmp_gt_u32 vcc, {hi}-{lo}, v30\ns_mov_b32 m0, {JUNK}")
        I("s_and_b64 exec, vcc, -1"); a.skip_begin("s_cbranch_execz")
        I(f"global_load_lds_dword v30, {sp(sT1)}")
        a.skip_end()
        I("s_mov_b64 exec, -1")
    def arrive(self):
        a = self.a; I = a.I
        I(f"s_cmp_lg_u32 s{sWave}, 0"); a.skip_begin("s_cbranch_scc1")
        I(f"s_and_b32 s{sT0}, s{sWG}, 3\ns_lshl_b32 s{sT0}, s{sT0}, 3\ns_lshl_b32 s{sT0}, s{sXcc}, s{sT0}\ns_and_b32 s{sT1}, s{sWG}, 0xfc")
        I(f"v_mov_b32 v8, s{sT1}\nv_mov_b32 v9, s{sT0}\ns_mov_b64 exec, 1")
        I(f"global_atomic_add v8, v9, {sp(pDBG)} sc1\ns_mov_b64 exec, -1")
        a.skip_end()
    def handshake(self, between):
        a = self.a; I = a.I
        I("v_lshlrev_b32 v7, 2, v0")
        ld = f"global_load_dword v8, v7, {sp(pDBG)} sc1"
        I(ld); last = len(a.vm.ent) - 1
        between()
        n = a.vm.need(last)
        if n is not None: a.wait(vm=n)
        chk = a.label("Lc"); rt = a.label("Lr")
        a.raw(f"{chk}:"); a.no_inject += 1
        I("v_subrev_u32 v9, 0x01010101, v8\nv_not_b32 v10, v8\nv_and_b32 v9, v9, v10\nv_and_b32 v9, 0x80808080, v9\nv_cmp_ne_u32 vcc, 0, v9")
        I(f"s_cbranch_vccnz {rt}")
        self.retry_block(rt, chk, [ld]); a.no_inject -= 1
        I(f"s_and_b32 s{sT0}, s{sWG}, 3\ns_lshl_b32 s{sT0}, s{sT0}, 3\nv_lshrrev_b32 v8, s{sT0}, v8\nv_and_b32 v8, 0xff, v8")
        I(f"s_bfe_u32 s{sT0}, s{sWG}, 0x30002\nv_and_b32 v9, 7, v0\nv_cmp_eq_u32 {sp(sT1)}, s{sT0}, v9\nv_cmp_ne_u32 vcc, s{sXcc}, v8")
        I(f"s_and_b64 vcc, vcc, {sp(sT1)}\ns_cmp_eq_u64 vcc, 0\ns_cselect_b32 s{sLocal}, 1, 0")
    WQB = [(24, 28, 32), (34, 38, 42), (44, 48, 52)]
    def wq_pre(self, ty):
        a = self.a; I = a.I
        I(f"v_bfe_u32 v7, v0, 2, 2\nv_lshrrev_b32 v9, 4, v0\nv_lshl_add_u32 v8, v9, 3, v7\nv_lshl_add_u32 v7, v9, 2, v7")
        I(f"v_and_b32 v9, 3, v0\nv_lshlrev_b32 v9, 3, v9\ns_mul_i32 s{sT0}, s{sWave}, 96\ns_add_u32 s{sT0}, s{sT0}, {WQ[ty]}\nv_add_u32 v9, s{sT0}, v9")
        I(f"s_movk_i32 s{sT0}, 384\nv_mad_u32_u24 v8, v8, s{sT0}, v9\nv_mad_u32_u24 v7, v7, s{sT0}, v9")
        for T, (b0, b1, b2) in enumerate(self.WQB):
            for t, r in ((0, b0), (1, b1)):
                I(f"ds_read_b64_tr_b16 {v2(r)}, v8 offset:{12288 * t + 32 * T}\nds_read_b64_tr_b16 {v2(r+2)}, v8 offset:{12288 * t + 1536 + 32 * T}")
            I(f"ds_read_b64_tr_b16 {v2(b2)}, v7 offset:{24576 + 32 * T}")
    def wq_addr(self, b, L):
        I = self.a.I
        I(f"v_mov_b32 v22, s{sXROWw}\nv_mov_b32 v23, {ONES - 640 * b}")
        I(f"v_cndmask_b32 v23, v22, v23, {sp(mODD)}\nv_lshrrev_b32 v21, 4, v0\nv_lshl_add_u32 v22, v21, 4, v23\nv_lshl_add_u32 v23, v21, 3, v23")
    def wq_main(self, b, L, local_ok=True, hoisted=False, hoist=False):
        a = self.a; a.comment(f"---- row {b} layer {L}: q projection partial"); I = a.I; inst = 4 * b + L; needC = inst < 2
        if not hoisted: self.wq_addr(b, L)
        I(f"ds_read_b128 v[12:15], v22 offset:{640 * b}\nds_read_b128 v[16:19], v22 offset:{640 * b + 64}\nds_read_b64 v[20:21], v23 offset:{640 * b + 128}")
        if c1(inst):
            I(f"s_mul_i32 s{sT0}, s{sWave}, 192\nv_lshl_add_u32 v7, v0, 2, s{sT0}\ns_mul_i32 s{sT0}, s{sS}, -752\ns_add_u32 s{sT0}, s{sT0}, {6144 - 192}\nv_lshl_add_u32 v23, v0, 2, s{sT0}")
            I(f"v_cndmask_b32 v7, v7, v23, {sp(mRG3)}\ns_add_u32 s{sOffP}, s{sH1c}, {inst * H1_I}")
        else: I(f"s_lshl_b32 s{sT0}, s{sWave}, 8\nv_lshl_add_u32 v7, v0, 2, s{sT0}\ns_add_u32 s{sOffP}, s{sH1own}, {inst * H1_I}")
        if hoist: self.qg_addr(b, L)
        D = [8, 24, 28]
        for T, (b0, b1, b2) in enumerate(self.WQB):
            I(f"v_mfma_f32_16x16x32_bf16 {v4(D[T])}, v[12:15], {v4(b0)}, 0")
            I(f"v_mfma_f32_16x16x32_bf16 {v4(D[T])}, v[16:19], {v4(b1)}, {v4(D[T])}")
        I("v_mfma_f32_16x16x32_bf16 v[34:37], v[12:15], v[12:15], 0\nv_mfma_f32_16x16x32_bf16 v[34:37], v[16:19], v[16:19], v[34:37]")
        for T, (b0, b1, b2) in enumerate(self.WQB):
            I(f"v_mfma_f32_16x16x16_bf16 {v4(D[T])}, v[20:21], {v2(b2)}, {v4(D[T])}")
        I("v_mfma_f32_16x16x16_bf16 v[34:37], v[20:21], v[20:21], v[34:37]")
        for r in range(2 if needC else 1):
            I(f"v_cndmask_b32 v{22+r}, v{8+r}, v{24+r}, {sp(mRG1)}\nv_cndmask_b32 v{22+r}, v{22+r}, v{28+r}, {sp(mRG2)}\nv_cndmask_b32 v{22+r}, v{22+r}, v34, {sp(mRG3)}\nv_min_u32 v{22+r}, -2, v{22+r}")
            if c1(inst): I(f"s_mov_b64 exec, {sp(mPub1)}")
            self.publish(f"buffer_store_dword v{22+r}, v7, {s4(WS)}, s{sOffP} offen offset:{1024 * r} {{pol}}", local_ok)
            if c1(inst): I("s_mov_b64 exec, -1")
    def qg_addr(self, b, L):
        I = self.a.I
        if c1(4 * b + L):
            I(f"v_and_b32 v23, 15, v0\nv_lshrrev_b32 v54, 4, v0\nv_mul_u32_u24 v54, 768, v54\nv_lshl_add_u32 v54, v23, 4, v54\ns_mul_i32 s{sT0}, s{sWave}, 192\nv_add_u32 v54, s{sT0}, v54")
            I(f"s_add_u32 s{sOffG}, s{sH1grp}, {(4 * b + L) * H1_I}")
            return
        I(f"v_and_b32 v23, 15, v0\nv_lshrrev_b32 v54, 4, v0\nv_mul_u32_u24 v54, {H1_S}, v54\nv_lshl_add_u32 v54, v23, 4, v54\ns_lshl_b32 s{sT0}, s{sWave}, 8")
        I(f"s_add_u32 s{sOffG}, s{sH1grp}, s{sT0}\ns_add_u32 s{sOffG}, s{sOffG}, {(4 * b + L) * H1_I}\ns_add_u32 s{sOffG2}, s{sOffG}, {4 * H1_S}")
    def qg(self, b, L, between=None, hoisted=False, after=None, tail=False):
        a = self.a; a.comment(f"---- row {b} layer {L}: gather q partials, LayerNorm scale"); I = a.I; inst = 4 * b + L; needC = inst < 2; ty = L & 1
        if not hoisted: self.qg_addr(b, L)
        loads = [f"buffer_load_dwordx4 v[12:15], v54, {s4(WS)}, s{sOffG} offen sc1", f"buffer_load_dwordx4 v[16:19], v54, {s4(WS)}, s{sOffG2} offen sc1"]
        cc = c1(inst)
        if cc: loads = [f"buffer_load_dwordx4 v[12:15], v54, {s4(WS)}, s{sOffG} offen sc1", f"buffer_load_dwordx4 v[16:19], v36, {s4(WS)}, s{sOffG} offen sc1"]
        def addr2():
            I(f"v_add_u32 v36, 3072, v54\nv_and_b32 v37, 48, v0\nv_add_u32 v37, 6144, v37\ns_mov_b32 vcc_lo, 0x10001000\ns_mov_b32 vcc_hi, 0x10001000")
            I("v_cndmask_b32 v54, v54, v37, vcc\nv_add_u32 v37, 64, v37\nv_cndmask_b32 v36, v36, v37, vcc")
        if needC: loads += [f"buffer_load_dwordx4 v[20:23], v54, {s4(WS)}, s{sOffG} offen offset:1024 sc1", f"buffer_load_dwordx4 v[24:27], v54, {s4(WS)}, s{sOffG2} offen offset:1024 sc1"]
        def pre():
            I(f"v_and_b32 v32, 15, v0\nv_lshrrev_b32 v33, 4, v0\nv_and_b32 v34, 1, v33\nv_lshlrev_b32 v34, 1, v34\nv_lshrrev_b32 v28, 1, v33\nv_or_b32 v34, v34, v28\nv_lshl_add_u32 v34, v32, 2, v34")
            I(f"v_lshl_add_u32 v34, v34, 1, s{sQw}\nv_lshl_add_u32 v29, v0, 2, s{sCTw}")
            if not needC: I(f"ds_read_b32 v20, v29 offset:{1024 * ty}")
            self.q_addr(b)
            I(f"v_mov_b32 v35, {f32(1 / (640 * SCALE))}\nv_mov_b32 v32, {f32(1 / (640 * SCALE * SCALE))}\nv_mov_b32 v33, {f32(1e-5 / (SCALE * SCALE))}")
        first = hoisted and self.c.get('first', 3) & 2
        if cc: addr2()
        if first: pre()
        def shadow():
            if not first: pre()
            if tail and self.c.get("tq", 0): self.tail_addr(b, L)
            if between: between()
        self.gather(loads, range(12, 28 if needC else 20), 28, between=shadow, sleep=self.lsleep(), emask=sp(mQ13) if cc else None, vmask=cc)
        if after: after()
        def red(r):
            I(f"v_pk_add_f32 {v2(r)}, {v2(r)}, {v2(r+4)}\nv_pk_add_f32 {v2(r+2)}, {v2(r+2)}, {v2(r+6)}")
            I(f"v_permlane32_swap_b32 v{r}, v{r+1}\nv_permlane32_swap_b32 v{r+2}, v{r+3}\nv_add_f32 v{r}, v{r}, v{r+1}\nv_add_f32 v{r+2}, v{r+2}, v{r+3}")
            I(f"v_permlane16_swap_b32 v{r}, v{r+2}\nv_add_f32 v{r}, v{r}, v{r+2}")
        red(12)
        I(f"v_readlane_b32 s{sT0}, v12, 12\nv_readlane_b32 s{sT1}, v12, 44")
        if needC: red(20); I(f"v_mul_f32 v20, {f32(SCALE)}, v20\nds_write_b32 v29, v20 offset:{1024 * ty}")
        I(f"s_mov_b32 exec_lo, 0x0fff0fff\ns_mov_b32 exec_hi, 0x0fff0fff")
        I(f"v_mul_f32 v15, s{sT1}, v35\nv_fma_f32 v14, s{sT0}, v32, v33\nv_fma_f32 v14, -v15, v15, v14\nv_max_f32 v14, v33, v14\nv_rsq_f32 v14, v14")
        I(f"v_fma_f32 v12, -v15, v20, v12\nv_mul_f32 v12, v12, v14\nv_cvt_pk_bf16_f32 v12, v12, v12")
        I(f"ds_write_b16 v34, v12 offset:{384 * b}\ns_mov_b64 exec, -1")
        a.barrier()
    def tail_addr(self, b, L):
        I = self.a.I; inst = 4 * b + L
        I(f"v_and_b32 v50, 15, v0\nv_lshlrev_b32 v50, 5, v50\nv_and_b32 v51, 16, v0\nv_add3_u32 v50, v50, v51, s{sATTw}\nv_mov_b32 v51, s{sSTATw}")
        self.wo_addr(b, L)
        I(f"v_mov_b32 v9, {STAT}\nv_lshl_add_u32 v10, v0, 2, s{sCOMBw}")
        if H2_S == 384: I(f"v_lshl_add_u32 v11, v0, 1, s{sPub2}\ns_add_u32 s{sOffP}, s{sH2own}, {inst * H2_I}")
        else: I(f"s_lshl_b32 s{sT0}, s{sWave}, 7\nv_lshl_add_u32 v11, v0, 1, s{sT0}\ns_add_u32 s{sOffP}, s{sH2own}, {inst * H2_I}")
    def q_addr(self, b):
        self.a.I(f"v_and_b32 v30, 1, v0\nv_lshrrev_b32 v31, 4, v0\nv_lshlrev_b32 v31, 5, v31\nv_lshl_add_u32 v30, v30, 4, v31\nv_add_u32 v30, {QB + 384 * b}, v30")
    def att(self, b, L, hook1=None, hook2=None, hookm=None, pre_bar=None, guard=False, hoist=False, qaddr=False):
        a = self.a; a.comment(f"---- row {b} layer {L}: attention"); I = a.I; ty = L & 1; G = 16 if ty else 4; Kn = "KB" if ty else "KA"; Vn = "VB" if ty else "VA"
        vM, vL = 52, 53
        if not qaddr: self.q_addr(b)
        for t in range(3): I(f"ds_read_b128 {v4(vQ + 4 * t)}, v30 offset:{128 * t}")
        def lds_v(g):
            a.wait_tag(("VS", b, g))
            I(f"v_lshl_add_u32 v54, v0, 4, s{sLdsVS}")
            for c in range(3): I(f"ds_read_b128 {v4(vU + 2 + 4 * c)}, v54 offset:{(g - 2) * 3072 + 1024 * c}")
        early = (not ty) and L == 2
        if early: lds_v(2)
        if not (qaddr and self.c.get("tq", 0)):
            if self.c.get("fill", 1): a.queue(lambda: self.tail_addr(b, L)); a.drain(self.c.get("fill0", 8))
            else: self.tail_addr(b, L)
        def D(g): return vACC + 4 * (g % 3)
        dm = "row_mask:0xf"; NP = G // 2
        order = list(range(G)) if ty else ([2, 0, 1, 3] if early else [0, 1, 2, 3])
        at = {g: i for i, g in enumerate(order)}
        U = lambda g: vU + at[g] // 2
        bank = lambda g, hi: (1 << (at[g] & 1)) << (2 * hi)
        for g in range(G + 2):
            K = SLOT[(Kn, g)] if g < G else None
            if K: self.check_slot(Kn, b, g)
            e = g - 2
            if K: I(f"v_mfma_f32_16x16x32_bf16 {v4(D(g))}, {K[0]}, {v4(vQ)}, 0")
            if g == 1 and self.c.get("fa"): self.fs("g1")
            if K: a.drain(2)
            if K: I(f"v_mfma_f32_16x16x32_bf16 {v4(D(g))}, {K[1]}, {v4(vQ+4)}, {v4(D(g))}")
            if K and e < 0: a.drain(2)
            if 0 <= e < G: I(f"v_add_f32_dpp v{U(e)}, v{D(e)}, v{D(e)+1} quad_perm:[0,0,2,2] {dm} bank_mask:{bank(e, 0):#x}")
            if K: I(f"v_mfma_f32_16x16x32_bf16 {v4(D(g))}, {K[2]}, {v4(vQ+8)}, {v4(D(g))}")
            if g == G + 1 and NP > 3: I(f"v_max3_f32 v{vM}, v{vU}, v{vU+1}, v{vU+2}\nv_max3_f32 v{vM}, v{vM}, v{vU+3}, v{vU+4}")
            if K and e < 0: a.drain(2)
            if hook1 and g < G: hook1(g)
            if 0 <= e < G: I(f"v_add_f32_dpp v{U(e)}, v{D(e)+2}, v{D(e)+3} quad_perm:[0,0,2,2] {dm} bank_mask:{bank(e, 1):#x}")
        if self.c.get("fa"): self.fs("p1")
        if hookm: hookm()
        if NP > 3: I(f"v_max3_f32 v{vM}, v{vM}, v{vU+5}, v{vU+6}\nv_max_f32 v{vM}, v{vM}, v{vU+7}")
        else: I(f"v_max_f32 v{vM}, v{vU}, v{vU+1}")
        red = ("row_ror:8 row_mask:0xf", "row_ror:4 row_mask:0xf", "row_bcast:15 row_mask:0xa", "row_bcast:31 row_mask:0xc")
        for x in red: I(f"v_max_f32_dpp v{vM}, v{vM}, v{vM} {x} bank_mask:0xf")
        I(f"v_readlane_b32 s{sM}, v{vM}, 63")
        def prob(p): return [f"v_subrev_f32 v{vU+p}, s{sM}, v{vU+p}", f"v_exp_f32 v{vU+p}, v{vU+p}",
                             f"v_mov_b32 v{vL}, v{vU+p}" if p == 0 else f"v_add_f32 v{vL}, v{vL}, v{vU+p}",
                             f"v_cvt_pk_bf16_f32 v{vU+p}, v{vU+p}, v{vU+p}",
                             f"v_mov_b32_dpp v{vU+p}, v{vU+p} quad_perm:[1,1,3,3] {dm} bank_mask:0xf"]
        def diag(i, j):
            d = vQ + 4 * (i & 1) + j; u = vU + i // 2
            if (j >> 1) == (i & 1): I(f"v_and_b32 v{d}, v{u}, v{vMask + j}")
            else: I(f"v_and_b32_dpp v{d}, v{u}, v{vMask + j} {'row_shl:4' if i & 1 else 'row_shr:4'} {dm} bank_mask:0xf bound_ctrl:0")
        a.drain()
        p0 = prob(0); p1 = prob(1)
        for t in (p0[0], p0[1], p1[0], p0[3 - 1], p0[3], p1[1], f"v_mov_b32 v{vM}, s{sM}", p0[4]): I(t)
        pend = p1[2:]
        for j in (0, 1): diag(0, j)
        I(pend.pop(0))
        for j in (2, 3): diag(0, j)
        if guard: a.barrier()
        if self.c.get("fa"): self.fs("p2start")
        lred = []
        for i, g in enumerate(order):
            self.check_slot(Vn, b, g)
            if (Vn, g) in SLOT: V = SLOT[(Vn, g)]
            else:
                if not early: lds_v(g)
                V = [v4(vU + 2 + 4 * c) for c in range(3)]
            A = v4(vQ + 4 * (i & 1))
            nx = i + 1 < G
            if (i & 1) == 1 and i // 2 + 2 < NP: assert not pend; pend = prob(i // 2 + 2)
            if i == G - 2: assert not pend; lred = [f"v_add_f32_dpp v{vL}, v{vL}, v{vL} {x} bank_mask:0xf" for x in red]
            for c in range(3):
                acc = v4(vACC + 4 * c)
                I(f"v_mfma_f32_16x16x32_bf16 {acc}, {A}, {V[c]}, {acc if i else 0}")
                if nx and c < 2: diag(i + 1, 2 * c + 0 if (i + 1) & 1 == 0 else (2 * c + 2) % 4); diag(i + 1, 2 * c + 1 if (i + 1) & 1 == 0 else (2 * c + 3) % 4)
                if pend: I(pend.pop(0))
                if lred: I(lred.pop(0))
                if i == 0 and c == 1: I(f"ds_write_b32 v51, v{vM}")
                if i == G - 1 and c == 1: I(f"s_mov_b64 exec, {sp(mL63)}\nds_write_b32 v51, v{vL} offset:16\ns_mov_b64 exec, -1")
            if early and g == 2: lds_v(3)
            if hook2: hook2(i)
        if self.c.get("fa"): self.fs("p2end")
        for c, (lo, hi) in enumerate(((0xffffffff, 0), (0x00ff00ff, 0xff00ff00), (0, 0xffffffff))):
            I(f"s_mov_b32 exec_lo, {lo:#x}\ns_mov_b32 exec_hi, {hi:#x}\nds_write_b128 v50, {v4(vACC + 4 * c)} offset:{512 * c}")
        I("s_mov_b64 exec, -1")
        if pre_bar: pre_bar()
        self.fs("att_end")
        a.barrier()
        self.combine(b, L)
        self.fs("pub2")
    def combine(self, b, L):
        a = self.a; I = a.I; inst = 4 * b + L; a.comment("merge the four waves' partials and publish")
        I("ds_read_b128 v[44:47], v9\nds_read_b128 v[48:51], v9 offset:16")
        for i in range(0, 8, 2): I(f"ds_read2st64_b32 {v2(12 + i)}, v10 offset0:{3 * i} offset1:{3 * i + 3}")
        I("v_max3_f32 v52, v44, v45, v46\nv_max_f32 v52, v52, v47")
        for w in range(4): I(f"v_sub_f32 v{44+w}, v{44+w}, v52")
        for w in range(4): I(f"v_exp_f32 v{44+w}, v{44+w}")
        for w in range(4): I(f"v_add_f32 v{12 + 2 * w}, v{12 + 2 * w}, v{13 + 2 * w}")
        I("v_mul_f32 v20, v44, v12\nv_fmac_f32 v20, v45, v14\nv_fmac_f32 v20, v46, v16\nv_fmac_f32 v20, v47, v18")
        I("v_mul_f32 v53, v44, v48\nv_fmac_f32 v53, v45, v49")
        I("v_mov_b32_dpp v21, v20 quad_perm:[1,1,3,3] row_mask:0xf bank_mask:0xf")
        I("v_fmac_f32 v53, v46, v50\nv_fmac_f32 v53, v47, v51\nv_cvt_pk_bf16_f32 v20, v20, v21")
        I(f"v_cndmask_b32 v52, v52, v53, {sp(mBIT1)}\nv_cndmask_b32 v20, v20, v52, {sp(mW3)}\nv_min_u32 v20, -2, v20")
        I(f"s_mov_b64 exec, {sp(mPub2)}" if H2_S == 384 else f"s_not_b64 exec, {sp(mODD)}")
        self.publish(f"buffer_store_dword v20, v11, {s4(WS)}, s{sOffP} offen {{pol}}", True)
        I("s_mov_b64 exec, -1")
    def wo_addr(self, b, L):
        I = self.a.I
        I(f"v_bfe_u32 v8, v0, 1, 3\nv_lshrrev_b32 v9, 4, v0\nv_and_b32 v7, 1, v0\nv_lshl_add_u32 v7, v9, 1, v7\nv_lshlrev_b32 v7, 4, v7\ns_movk_i32 s{sT0}, {H2_S}\nv_mad_u32_u24 v7, v8, s{sT0}, v7")
        I(f"v_lshl_add_u32 v8, v9, 1, v8\nv_and_b32 v8, 7, v8\nv_mul_u32_u24 v8, {16 if H2_S == 384 else H2_S}, v8\ns_add_u32 s{sOffW}, s{sH2grp}, {(4 * b + L) * H2_I}")
    def wo(self, b, L, between=None, hoisted=False, hoist=False, after=None):
        a = self.a; a.comment(f"---- row {b} layer {L}: gather attention partials, output projection partial"); I = a.I; inst = 4 * b + L; ty = L & 1
        if not hoisted: self.wo_addr(b, L)
        loads = [f"buffer_load_dwordx2 v[52:53], v8, {s4(WS)}, s{sOffW} offen offset:{3072 if H2_S == 384 else 384} sc1"]
        loads += [f"buffer_load_dwordx4 {v4(12 + 4 * t)}, v7, {s4(WS)}, s{sOffW} offen offset:{128 * t} sc1" for t in range(3)]
        S = [24, 28, 32, 36, 40, 44]
        def rd(kk, reg, tile):
            o = 10240 * (kk >> 1) + 1280 * (kk & 1) + 32 * tile
            I(f"ds_read_b64_tr_b16 {v2(reg)}, v10 offset:{o}\nds_read_b64_tr_b16 {v2(reg + 2)}, v10 offset:{o + 640}")
        def pre():
            I(f"v_bfe_u32 v10, v0, 2, 2\nv_and_b32 v11, 48, v0\nv_add_u32 v10, v10, v11\nv_mul_u32_u24 v10, 160, v10\nv_and_b32 v11, 3, v0\nv_lshl_add_u32 v10, v11, 3, v10")
            I(f"s_lshl_b32 s{sT0}, s{sW2}, 6\ns_add_u32 s{sT1}, s{sT0}, {WO[ty]}\nv_add_u32 v10, s{sT1}, v10")
            for kk in range(6): rd(kk, S[kk], 0)
            I(f"v_and_b32 v11, 15, v0\nv_lshlrev_b32 v11, 1, v11\nv_and_b32 v9, 32, v0\nv_add3_u32 v11, v11, v9, s{sT0}\ns_add_u32 s{sOffP}, s{sH3own}, {inst * H3_I}")
            if hoist: self.yg_addr()
            if between: between()
        D0, D1 = 48, 24
        mt = lambda D, t, B, first: f"v_mfma_f32_16x16x32_bf16 {v4(D)}, {v4(12 + 4 * t)}, {v4(B)}, {0 if first else v4(D)}"
        def mm(*k): I(mt(*k))
        self.gather(loads, [52, 53] + list(range(12, 24)), 9, between=pre, sleep=self.lsleep(), first=hoisted and self.c.get('first', 3) & 1,
                    spec=[mt(D0, 0, S[0], True), mt(D0, 1, S[2], False), mt(D0, 2, S[4], False)])
        if after: after()
        dpp = lambda op, d, x, ctl: I(f"{op}_dpp v{d}, v{x}, v{x} {ctl} row_mask:0xf bank_mask:0xf")
        def fold(out):
            I(f"v_add_f32 v{D0}, v{D0}, v{D1 + 1}\nv_add_f32 v{D0 + 2}, v{D0 + 2}, v{D1 + 3}\nv_mul_f32 v{out}, v7, v{D0}\nv_fmac_f32 v{out}, v8, v{D0 + 2}")
        dpp("v_max_f32", 9, 52, "row_ror:8")
        mm(D1, 0, S[1], True); rd(0, S[2], 1); dpp("v_max_f32", 9, 9, "row_ror:4")
        mm(D1, 1, S[3], False); rd(2, S[4], 1); dpp("v_max_f32", 9, 9, "row_ror:2")
        mm(D1, 2, S[5], False); I("v_sub_f32 v52, v52, v9\nv_exp_f32 v52, v52"); rd(4, S[1], 1); I("v_mul_f32 v53, v52, v53")
        rd(1, S[3], 1); dpp("v_add_f32", 53, 53, "row_ror:8")
        rd(3, S[5], 1); dpp("v_add_f32", 53, 53, "row_ror:4")
        I(f"v_add_f32 v{D0}, v{D0}, v{D1 + 1}\nv_add_f32 v{D0 + 2}, v{D0 + 2}, v{D1 + 3}")
        dpp("v_add_f32", 53, 53, "row_ror:2")
        I(f"v_mov_b32 v7, v{D0}\nv_mov_b32 v8, v{D0 + 2}\nv_rcp_f32 v53, v53")
        mm(D0, 0, S[2], True); rd(5, S[2], 1)
        I("v_mul_f32 v9, v52, v53")
        mm(D0, 1, S[4], False); mm(D0, 2, S[1], False)
        I("v_mul_f32_dpp v52, v9, v7 row_newbcast:0 row_mask:0xf bank_mask:0xf")
        mm(D1, 0, S[3], True)
        I("v_mov_b32_dpp v7, v9 row_newbcast:0 row_mask:0xf bank_mask:0xf")
        mm(D1, 1, S[5], False)
        I("v_fmac_f32_dpp v52, v9, v8 row_newbcast:2 row_mask:0xf bank_mask:0xf")
        mm(D1, 2, S[2], False)
        I("v_mov_b32_dpp v8, v9 row_newbcast:2 row_mask:0xf bank_mask:0xf")
        fold(53)
        I("v_permlane32_swap_b32 v52, v53\nv_add_f32 v52, v52, v53\nv_mov_b32 v53, v52\nv_permlane16_swap_b32 v52, v53\nv_add_f32 v52, v52, v53")
        I("v_mov_b32_dpp v53, v52 quad_perm:[1,1,3,3] row_mask:0xf bank_mask:0xf\nv_cvt_pk_bf16_f32 v52, v52, v53\nv_min_u32 v52, -2, v52")
        I(f"s_mov_b64 exec, {sp(mWOST)}")
        self.publish(f"buffer_store_dword v52, v11, {s4(WS)}, s{sOffP} offen {{pol}}", False)
        I("s_mov_b64 exec, -1")
    def yg_addr(self):
        self.a.I(f"v_lshrrev_b32 v54, 4, v0\nv_mul_u32_u24 v54, {H3_H}, v54\nv_and_b32 v9, 15, v0\nv_lshl_add_u32 v54, v9, 4, v54")
    def yg_pre(self, b, L):
        I = self.a.I
        I(f"s_mul_i32 s{sT0}, s{sWave}, {8 * H3_H}\ns_add_u32 s{sOffG}, s{sH3grp}, s{sT0}\ns_add_u32 s{sOffG}, s{sOffG}, {(4 * b + L) * H3_I}\ns_add_u32 s{sOffG2}, s{sOffG}, {4 * H3_H}")
        for j in range(4): I(f"v_and_b32 v{16 + j}, 0x3f803f80, v{vMask + j}")
        for j in range(8): I(f"v_mov_b32 v{8 + j}, 0")
    def yg(self, b, L, between=None, pre_bar=None, hoisted=False, after=None):
        a = self.a; a.comment(f"---- row {b} layer {L}: gather output partials, residual"); I = a.I; inst = 4 * b + L; Yb = Y + YSZ * b
        if not hoisted: self.yg_addr(); self.yg_pre(b, L)
        loads = [f"buffer_load_dwordx4 {v4(8 + 4 * j)}, v54, {s4(WS)}, s{(sOffG, sOffG2)[j]} offen sc1" for j in range(2)]
        self.gather(loads, range(8, 16), 7, between=between, emask=sp(mN10),
                    spec=["v_mfma_f32_16x16x32_bf16 v[20:23], v[16:19], v[8:11], 0", "v_mfma_f32_16x16x32_bf16 v[20:23], v[16:19], v[12:15], v[20:23]"])
        if after: after()
        I(f"v_and_b32 v7, 15, v0\nv_lshlrev_b32 v7, 5, v7\nv_and_b32 v54, 16, v0\nv_add3_u32 v7, v7, v54, s{sYw}")
        I(f"s_mov_b32 exec_lo, s{mN10}\ns_mov_b32 exec_hi, 0\nds_write_b128 v7, v[20:23] offset:{YSZ * b}\ns_mov_b64 exec, -1")
        I(f"v_lshl_add_u32 v7, v0, 2, s{sXROWw}\nds_read_b32 v54, v7 offset:{640 * b}")
        I(f"v_lshlrev_b32 v14, 3, v0\nv_add_u32 v14, {Yb}, v14")
        if L < 3: self.wq_addr(b, L + 1)
        if pre_bar: pre_bar()
        a.barrier()
        I("s_mov_b32 exec_hi, 0xff")
        I("ds_read2_b64 v[8:11], v14 offset0:0 offset1:40\nds_read2_b64 v[12:15], v14 offset0:80 offset1:120")
        I("v_lshlrev_b32 v16, 16, v54\nv_and_b32 v17, 0xffff0000, v54")
        I("v_pk_add_f32 v[8:9], v[8:9], v[10:11]\nv_pk_add_f32 v[12:13], v[12:13], v[14:15]\nv_pk_add_f32 v[8:9], v[8:9], v[12:13]")
        I("v_cvt_pk_bf16_f32 v8, v8, v9\nv_and_b32 v9, 0xffff0000, v8\nv_lshlrev_b32 v8, 16, v8\nv_pk_add_f32 v[8:9], v[8:9], v[16:17]\nv_cvt_pk_bf16_f32 v8, v8, v9")
        if L < 3: I(f"ds_write_b32 v7, v8 offset:{640 * b}")
        else:
            I(f"s_cmp_lg_u32 s{sWave}, 0"); a.skip_begin("s_cbranch_scc1")
            I(f"s_mul_i32 s{sT0}, s{sS}, 160\nv_lshlrev_b32 v7, 2, v0")
            I(f"buffer_store_dword v8, v7, {s4(XO)}, s{sT0} offen offset:{1280 * b}")
            a.skip_end()
        I("s_mov_b64 exec, -1")
    def touch(self, b, L, lvl=1):
        if self.c.get("touch", 1) < lvl: return
        a = self.a; I = a.I; m = self.c.get("tm", 3)
        I(f"s_mov_b32 m0, {JUNK}\ns_mov_b64 exec, 3")
        if m & 1:
            I(f"v_mov_b32 v31, s{sPub2}\ns_add_u32 s{sT1}, s{sH2own}, {(4 * b + L) * H2_I}")
            I(f"buffer_load_dword v31, {s4(WS)}, s{sT1} offen sc1 lds")
        if L < 3 and m & 2:
            I(f"s_lshl_b32 s{sT0}, s{sWave}, 8\nv_lshl_add_u32 v31, v0, 7, s{sT0}\ns_add_u32 s{sT1}, s{sH1own}, {(4 * b + L + 1) * H1_I}")
            I(f"buffer_load_dword v31, {s4(WS)}, s{sT1} offen sc1 lds")
        I("s_mov_b64 exec, -1")
    def chain_idle(self, b, L, burst=(0, 0, 0), sh=(0, 0, 0, 0), pf=(0, 0, 0)):
        a = self.a; U = lambda n: (lambda: self.stream(n, paced=False))
        if self.c.get("skip3", 1):
            a.I(f"s_cmp_eq_u32 s{sWave}, 3"); a.skip_begin("s_cbranch_scc1")
            self.wo(b, L, hoisted=True)
            a.skip_end()
            self.yg_addr()
            self.stream(sh[0] + sh[1], paced=False)
            self.pfreg = 7; self.prefetch(pf[0])
        else:
            self.wo(b, L, between=U(burst[0]), hoisted=True, hoist=True, after=U(sh[0]))
            self.stream(sh[1], paced=False)
        self.stamp(f"wo{b}{L}")
        self.fs("pub3")
        late = self.c.get("late", 2)
        if L == 3:
            a.I(f"s_cmp_eq_u32 s{sH}, 1\ns_cbranch_scc1 L_out0")
            a.I(f"s_cmp_lg_u32 s{sH}, 0\ns_cbranch_scc1 L_fin")
            self.page()
        dfr = self.deferred; self.deferred = []
        pub = a.vm.last_tag("pub")
        for jobs in dfr: self.clear_prep(jobs); self.clear_issue("clr3")
        if L < 3 and not late: self.wq_pre((L + 1) & 1)
        if late < 2: self.yg_pre(b, L)
        a.wait_tag("pub"); a.barrier()
        if L < 3 and late: self.wq_pre((L + 1) & 1)
        if late >= 2: self.yg_pre(b, L)
        self.yg(b, L, between=lambda: (self.stream(burst[1], paced=False), self.page() if L < 3 else None), hoisted=True, after=lambda: (self.stream(sh[2], paced=False), self.prefetch(pf[1])), pre_bar=(lambda: a.wait_tag("clr3")) if dfr else None)
        self.fs("xrow")
        if L == 3: return
        self.wq_main(b, L + 1, hoisted=True, hoist=True)
        self.fs("pub1")
        self.stamp(f"wq{b}{L+1}")
        self.qg(b, L + 1, between=U(burst[2]), hoisted=True, tail=True, after=lambda: (self.touch(b, L + 1) if self.c.get("touch", 1) != 3 or (b, L) == (0, 1) else None, self.stream(sh[3], paced=False), self.prefetch(pf[2])))
        self.stamp(f"qg{b}{L+1}")
    def build(self):
        a = self.a; c = self.c; W = self.W; WE = c.get("WE", W); HE = c.get("HE", 4); PG = c.get("PG", 0)
        self.off_val = None
        for x in c.get("order", "kvw"):
            if x == "w": self.add_w("wqA", pWQA, "q", 0)
            else:
                for g in range(4): self.add_kv("KA" if x == "k" else "VA", 0, g)
        self.add_w("woA", pWOA, "o", 0); self.add_w("wqB", pWQB, "q", 1)
        for g in range(16): self.add_kv("KB", 0, g)
        wl = c.get("wolate", 0)
        if not wl: self.add_w("woB", pWOB, "o", 1)
        for g in range(16): self.add_kv("VB", 0, g)
        if wl: self.add_w("woB", pWOB, "o", 1, late=True)
        p1 = len(self.items)
        for g in range(4): self.add_kv("KA", 1, g)
        for g in range(4): self.add_kv("VA", 1, g)
        p2 = len(self.items)
        for g in range(16): self.add_kv("KB", 1, g)
        for g in range(16): self.add_kv("VB", 1, g)
        st = self.stream_to; S = lambda n: (lambda: self.stream(n))
        self.limit = p1; a.nobar = c.get('nobar', 0)
        self.setup()
        if c.get("inject", 1): a.inject = self.injector
        if c.get("streamonly"):
            self.limit = 10**9; self.npage = 0; self.hot = []; self.inl = False; self.boost = 0; a.inject = None
            for upto in c["streamonly"]:
                if isinstance(upto, tuple): st(upto[0], W=upto[1])
                else: st(upto)
                self.stamp("end")
            a.wait(vm=0); self.stamp("end")
            return self.finish()
        P = c.get("P1", dict(arr=24, hs=36, qg0=44, wo=76, yg=104, qg1=130))
        for _ in range(c.get("pad", 0)): a.I("s_nop 0")
        a.raw("L_pf0:")
        self.stamp("setup")
        a.wait_tag("clr"); a.barrier()
        self.arrive()
        st(max(P["arr"], self.index_after("wqA") + 4))
        self.stamp("arr")
        a.wait_tag("wqA"); a.barrier()
        self.wq_pre(0); self.wq_main(0, 0, local_ok=False)
        self.wq_pre(0); self.wq_main(1, 0, local_ok=False)
        self.stamp("wq")
        st(P["hs"]); self.handshake(S(W))
        for r, m, base in ((sCTw, 256, CT), (sATTw, 1536, ATT), (sSTATw, 4, STAT), (sCOMBw, 256, ATT)):
            a.I(f"s_mul_i32 s{r}, s{sWave}, {m}\ns_add_u32 s{r}, s{r}, {base}")
        P_ = lambda i: [("P", i)]
        now = [[P_(1), [("C", 1)], P_(2), [("2", 1), ("3", 1)]], [[("3", 2), ("3", 3)], [("3", 4), ("3", 5)], [("3", 6), ("3", 7)], [("3", 6), ("3", 7)]]]
        self.deferred = [[P_(3), P_(5), P_(6), P_(7)], [[("2", 2), ("2", 3)], [("2", 4), ("2", 5)], [("2", 6), ("2", 7)], [("2", 6), ("2", 7)]]]
        if not c.get("defer", 1): now += self.deferred; self.deferred = []
        for jobs in now:
            self.clear_prep(jobs); self.clear_issue("clr2"); self.stream(1)
        self.stamp("hs")
        st(P["qg0"]); self.qg(0, 0, between=S(W))
        self.stamp()
        self.att(0, 0, pre_bar=lambda: (st(self.index_after("woA")), a.wait_tag("woA"), a.wait_tag("clr2")))
        self.stamp()
        self.qg(1, 0, between=S(W))
        self.stamp("qg10")
        st(P["wo"]); self.wo(0, 0, between=S(W))
        self.stamp("wo00")
        st(P["yg"]); self.yg(0, 0, between=S(W), pre_bar=lambda: a.wait_tag("wqB"))
        self.stamp("yg00")
        self.wq_pre(1); self.wq_main(0, 1, hoisted=True)
        self.stream(3, paced=False); self.warm([0, 1, 2, "R"])
        if c.get("cpf") == 2: self.code_prefetch("L_pf1", "L_pf2")
        st(P["qg1"]); self.touch(0, 1, 2) if c.get('touch') == 2 else None; self.qg(0, 1, tail=True, between=lambda: self.stream(min(WE, p1 - self.pos), W=WE))
        a.raw("L_pf1:")
        self.stamp()
        st_ = 64 << c.get("pfs", 6)
        self.pfq = [(KA, o) for o in range(0, 12288, st_)] + [(VA, o) for o in range(0, 12288, st_)] + [(KB, o) for o in range(0, 49152, st_)]
        self.pfreg = 54
        vb0 = self.index_after(("VB", 0, 0)) - 3
        assert self.pos >= vb0 + 3
        if wl: assert self.pos <= p1 - 8
        self.att(0, 1, hook1=lambda g: self.stream(min(1, p1 - self.pos), W=WE) if g % HE == HE - 1 else None,
                 hook2=lambda i: (st(min(p1, vb0 + 3 * (i + 2) + WE - 3), W=WE), self.page() if i == PG else None, self.prefetch(c.get("pf0", 0)) if i == c.get("pfi", 11) else None), pre_bar=lambda: st(p1, W=WE) if wl else a.wait_tag("woB"), hoist=True, qaddr=True)
        if wl: a.wait_tag("woB"); a.barrier()
        assert self.pos == p1
        a.inject = None; self.limit = p2
        self.stamp("p1end")
        self.chain_idle(0, 1, pf=c.get("pf1", (0, 0, 0)))
        bu = c.get("burst", (6, 0, 0, 0)); sh = c.get("sh", (0, 9, 3, 6))
        self.att(0, 2, hookm=lambda: self.stream(bu[0], paced=False), hoist=True, qaddr=True)
        self.stamp("att02")
        self.pfq = [x for x in self.pfq if x[0] == KB]
        self.chain_idle(0, 2, burst=bu[1:], sh=sh, pf=c.get("pf2", (0, 0, 0)))
        self.stamp("p2beg")
        self.limit = len(self.items)
        n0 = c.get("n0", 9); h2 = c.get("h2", 2); q0 = self.pos
        def hook03(g):
            self.stream(max(0, min(3, q0 + n0 - self.pos, p2 + 3 * g + 3 - self.pos)), paced=False)
        self.att(0, 3, hook1=hook03, hook2=lambda i: self.stream(1, paced=False) if i % h2 == h2 - 1 else None, qaddr=True)
        self.stamp("att03")
        a.raw("L_pf2:")
        P = c.get("P2", dict(att=8, wo=34, yg=62, qg=80))
        if c.get("inject", 1): a.inject = self.injector
        st(p2 + P.get("att", 0))
        self.att(1, 0, guard=True, hook2=lambda i: self.stream(2))
        self.stamp("att10")
        st(p2 + P["wo"]); self.stamp("a"); self.wo(1, 0, between=S(W)); self.stamp("wo10"); self.wo(0, 3, between=S(W)); self.stamp("wo03")
        st(p2 + P["yg"]); self.stamp("b"); self.yg(1, 0, between=S(W)); self.stamp("yg10")
        self.wq_pre(1); self.wq_main(1, 1, hoisted=True)
        self.stream(3, paced=False); self.warm([3, 4, 5, 6])
        if c.get("cpf") == 2: self.code_prefetch("L_pf3", "L_pf9")
        st(p2 + P["qg"]); self.stamp("c"); self.touch(1, 1, 2) if c.get('touch') == 2 else None; self.qg(1, 1, tail=True, between=lambda: self.stream(WE, W=WE))
        a.raw("L_pf3:")
        self.stamp("qg11")
        vb1 = p2 + 48
        self.att(1, 1, hook1=lambda g: self.stream(1, W=WE) if g % HE == HE - 1 else None,
                 hook2=lambda i: (st(min(len(self.items), vb1 + 3 * (i + 2) + WE - 3), W=WE), self.page() if i == PG else None), hoist=True, qaddr=True)
        assert self.pos == len(self.items)
        a.inject = None
        self.stamp("p2end")
        self.chain_idle(1, 1)
        self.fine_on = c.get("fine") == 1
        self.fs("q_ready")
        self.att(1, 2, hoist=True, qaddr=True)
        self.stamp("att12")
        self.chain_idle(1, 2)
        self.fs("q_ready")
        if c.get("fine") == 2: self.fine_on = True; self.fs("q_ready")
        self.att(1, 3, hoist=True, qaddr=True)
        self.stamp("att13")
        self.chain_idle(1, 3)
        a.I("s_branch L_fin"); a.raw("L_out0:"); a.I("s_nop 7"); a.wait(vm=0, lg=0)
        self.yg(0, 3)
        a.raw("L_fin:"); a.I("s_nop 7")
        if c.get("hold"):
            a.raw("L_hold:"); a.I(f"s_memrealtime s[38:39]"); a.wait(lg=0)
            a.I(f"s_sub_u32 s38, s38, s{98 if c.get('holdat') else sST}\ns_cmp_lt_u32 s38, {c['hold']}\ns_cbranch_scc1 L_hold")
        self.fs("end")
        self.stamp("end")
        return self.finish()
    def finish(self):
        a = self.a; c = self.c
        if c.get("fine"):
            a.wait(lg=0)
            for i in range(self.nfine): a.I(f"v_writelane_b32 v{vStamp}, s{FS[i]}, {i}")
            print("fine stamps:", self.fnames)
        if c.get("diag"):
            a.I("s_sleep 100")
            a.I(f"v_writelane_b32 v{vStamp}, s{sRetry}, 62\nv_writelane_b32 v{vStamp}, s{sLocal}, 63")
            a.I(f"s_lshl_b32 s{sT0}, s{sWG}, 10\ns_lshl_b32 s{sT1}, s{sWave}, 8\ns_add_u32 s{sT0}, s{sT0}, s{sT1}\ns_add_u32 s{sT0}, s{sT0}, {DIAG}\nv_lshlrev_b32 v7, 2, v0")
            a.I(f"buffer_store_dword v{vStamp}, v7, {s4(WS)}, s{sT0} offen")
        if c.get("diag") and not c.get("fine"): print("stamps:", " ".join(self.snames))
        a.raw("L_end:"); a.raw("  s_endpgm")
        if c.get("pages", 1): self.hot = [f".p2align {c.get('hotal', 12)}\nLstR:\n  s_setpc_b64 {sp(sRet)}"] + self.hot
        a.tail = self.hot + a.tail
        a.tail.append("L_pf9:\n  s_endpgm")
        body = a.text()
        return (HEAD + f"; @launch grid=(256,1,1) block=(256,1,1) lds={LDS_BYTES}\n" + DOC
                + f'.amdgcn_target "amdgcn-amd-amdhsa--gfx950"\n.text\n.globl {NAME}\n.p2align 8\n.type {NAME},@function\n{NAME}:\n'
                + body + f'.section .rodata,"a"\n.p2align 6\n.amdhsa_kernel {NAME}\n  .amdhsa_next_free_vgpr 512\n  .amdhsa_next_free_sgpr 102\n'
                + "  .amdhsa_accum_offset 256\n  .amdhsa_group_segment_fixed_size 0\n  .amdhsa_kernarg_size 104\n  .amdhsa_user_sgpr_count 2\n"
                + "  .amdhsa_user_sgpr_kernarg_segment_ptr 1\n  .amdhsa_system_sgpr_workgroup_id_x 1\n.end_amdhsa_kernel\n")

def generate(cfg):
    global COMPACT1; COMPACT1 = cfg.get('c1', 0)
    global H1_I, H1_H, H1_S, H2, H2_I, H2_H, H2_S, H3, H3_I, H3_S, H3_H
    H1_S = cfg.get("H1S", 2048); H1_H = cfg.get("H1H", 8 * H1_S); H1_I = 32 * H1_H
    H2_S = cfg.get("H2S", 384); H2_H = cfg.get("H2H", 8 * H2_S if H2_S != 384 else 4096); H2_I = 32 * H2_H; H2 = cfg.get("H2B", 8 * H1_I); assert H2 >= 8 * H1_I
    H3_H = cfg.get("H3H", 192); H3_S = cfg.get("H3S", 32 * H3_H); H3_I = cfg.get("H3I", max(8 * H3_S, 32 * H3_H)); H3 = cfg.get("H3B", H2 + 8 * H2_I); assert H3 >= H2 + 8 * H2_I
    assert H3 + 8 * H3_I <= DIAG
    return Gen(cfg).build()
if __name__ == "__main__":
    cfg = eval(sys.argv[2]) if len(sys.argv) > 2 else {}
    open(sys.argv[1], "w").write(generate(cfg))
```

```python
import sys, math
from dsl import Asm

NAME = "interleave_layers__sliding_block_cached__gqa_block_cached__decode_kernel"
HEAD = open("interleave_layers__sliding_block_cached__gqa_block_cached__decode.s.ref").read().split("; Override")[0]

KV_BYTES = 2 * 32 * 4096 * 384
BSTR = 32 * 4096 * 384
HSTR = 4096 * 384
W_BYTES = 640 * 6144 * 2
WS_BYTES = 434115584
H1_I, H1_H, H1_S = 524288, 16384, 2048
H2 = 8 * H1_I; H2_I, H2_H, H2_S = 131072, 4096, 512
H3 = H2 + 8 * H2_I; H3_I, H3_S, H3_H = 65536, 8192, 256
DIAG = 64 << 20
WQ = (0, 61440); WO = (30720, 92160)
VS = 122880
EX = 147456
ATT = EX; STAT = EX + 6144; Y = EX + 6208; YSZ = 1280; XROW = Y + 2 * YSZ; ONES = XROW + 1280; QB = ONES + 160; CT = QB + 768
JUNK = CT + 2048
LDS_BYTES = JUNK + 256
assert LDS_BYTES <= 163840
sWG, sWave = 2, 3
KA, VA, KB, VB, WS, WT, XO = 4, 8, 12, 16, 20, 24, 28
pX, pKA, pVA, pWQA, pWOA, pKB, pVB, pWQB, pWOB, pOUT, pDBG, pWS = 32, 34, 36, 38, 40, 44, 46, 48, 50, 52, 54, 56
sH, sS, sLocal, sOff, sRetry, sT0, sT1, sT2 = 58, 59, 60, 61, 62, 63, 64, 65
sH1own, sH1grp, sH2own, sH2grp, sH3own, sH3grp, sOffG, sOffP = 66, 67, 68, 69, 70, 71, 72, 73
mODD, mHI8, mHI32, mWOST, mRG1, mRG2, mRG3, m60 = 74, 76, 78, 80, 82, 84, 86, 88
sXcc, sWqRow, sWoRow, sLdsW, sLdsVS = 90, 91, 92, 93, 94
sST = 0; m40 = 98; mBIT1 = 100; mW3 = 42; mN10 = 32; sW2 = 95; sOffG2 = 35; sClr = 0; sM = 34; sOffW = 76; sRet = 78; sX1own, sX1grp, sX2own, sX2grp, sX3own, sX3g0, sX3g1 = 77, 98, 99, 52, 53, 96, 97; sPub2 = 44; sXROWw, sYw, sQw, sCTw, sATTw, sSTATw, sCOMBw = 45, 56, 57, 38, 39, 54, 55; sH1c = 77; mQ13 = 98; mPub1 = 52; mPub2 = 46; mL63 = 36
FS = [40, 48, 50, 24, 26, 88, 90, 92]
def sp(n): return f"s[{n}:{n+1}]"
def s4(n): return f"s[{n}:{n+3}]"
def v2(n): return f"v[{n}:{n+1}]"
def v4(n): return f"v[{n}:{n+3}]"
vLane, vKoff, vVoff, vMask = 0, 1, 2, 3
vQ, vACC, vU = 12, 24, 36
vStamp = 55
QUADS = [f"a[{i}:{i+3}]" for i in range(0, 256, 4)] + [f"v[{i}:{i+3}]" for i in range(56, 256, 4)]
SLOT = {}
_names = [("KA", i) for i in range(4)] + [("VA", 0), ("VA", 1)] + [("KB", i) for i in range(16)] + [("VB", i) for i in range(16)]
for i, n in enumerate(_names): SLOT[n] = QUADS[3 * i:3 * i + 3]
assert SLOT[("VB", 15)][2] == "v[252:255]"
vWq0, vWq1, vWo = 252, 253, 254
SCALE = 192 ** -0.5 * math.log2(math.e)
import struct
def f32(x): return "0x%08x" % struct.unpack("<I", struct.pack("<f", x))[0]

DOC = "; Four decode layers (A, B, A, B) in one persistent launch, one workgroup per CU (4 waves x 512 registers, 157 KiB LDS).\n;  workgroup w: head h = 4*(w&7) + ((w>>3)&3), slice s = w>>5. It owns 1/8 of head h's cache positions for both batch rows,\n"

HOT1 = {2: 0, 3: 1, 6: 2, 7: 3}; HOT2 = {1: 0, 2: 1, 5: 2, 6: 3, 7: 4}
X2 = 1 << 20; X3 = X2 + 5 * 131072
USE_HOT = True
def h1(inst): return (sX1own, sX1grp, HOT1[inst] * 262144, 1024) if USE_HOT and inst in HOT1 else (sH1own, sH1grp, inst * H1_I, H1_S)
def h2(inst): return (sX2own, sX2grp, HOT2[inst] * 131072) if USE_HOT and inst in HOT2 else (sH2own, sH2grp, inst * H2_I)
def h3(inst): return (sX3own, None, HOT2[inst] * 65536) if USE_HOT and inst in HOT2 else (sH3own, sH3grp, inst * H3_I)
def c1(inst): return COMPACT1 and inst >= 2

class Gen:
    def __init__(self, cfg):
        self.c = cfg; self.a = Asm(); self.items = []; self.pos = 0; self.nstamp = 0
        self.W = cfg.get("W", 10); self.limit = 10**9; self.npage = 0; self.hot = []; self.inl = False; self.boost = 0; self.last_cyc = 0; self.fine_on = False; self.nfine = 0; self.fnames = []; self.snames = ['start']
    def add_w(self, name, ptr, kind, ty, late=False):
        pol = self.c.get("wpol", "nt")
        def mk(k):
            def f():
                a = self.a
                if k == 0:
                    off = sWqRow if kind == "q" else sWoRow
                    a.I(f"s_add_u32 s{WT}, s{ptr}, s{off}\ns_addc_u32 s{WT+1}, s{ptr+1}, 0\ns_sub_u32 s{WT+2}, {W_BYTES}, s{off}")
                    if late: a.I("v_mul_u32_u24 v54, 26, v0\nv_lshrrev_b32 v54, 8, v54\nv_mul_u32_u24 v54, 1120, v54\nv_lshl_add_u32 v54, v0, 4, v54")
                base = (WQ if kind == "q" else WO)[ty]
                a.I(f"s_add_u32 m0, s{sLdsW}, {base + 960 * k}")
                if kind == "q": so = 5 * (k // 2) * 12288; vr = vWq1 if k & 1 else vWq0
                else: so = 6 * k * 1280; vr = 54 if late else vWo
                a.I(f"s_mov_b32 s{sOff}, {so}\ns_mov_b64 exec, {sp(m60)}")
                a.I(f"buffer_load_dwordx4 v{vr}, {s4(WT)}, s{sOff} offen {pol} lds", tag=name)
                a.I("s_mov_b64 exec, -1")
            return f
        self.items += [(name, mk(k)) for k in range(8)]
    def add_kv(self, name, b, g):
        srd = {"KA": KA, "VA": VA, "KB": KB, "VB": VB}[name]
        isK = name[0] == "K"; vo = vKoff if isK else vVoff; step = 128 if isK else 256
        pol = self.c.get("kvpol", "nt")
        def mk(c):
            def f():
                a = self.a
                if (name, g) in SLOT:
                    if c == 0: a.I(f"s_mov_b32 s{sOff}, {b * BSTR + g * 3072}")
                    elif self.off_val != (name, b, g): a.I(f"s_mov_b32 s{sOff}, {b * BSTR + g * 3072}")
                    self.off_val = (name, b, g)
                    a.I(f"buffer_load_dwordx4 {SLOT[(name, g)][c]}, v{vo}, {s4(srd)}, s{sOff} offen offset:{step * c} {pol}")
                else:
                    self.off_val = None
                    a.I(f"s_add_u32 m0, s{sLdsVS}, {(g - 2) * 3072 + 1024 * c}\ns_mov_b32 s{sOff}, {b * BSTR + g * 3072 + step * c}")
                    a.I(f"buffer_load_dwordx4 v{vo}, {s4(srd)}, s{sOff} offen {pol} lds", tag=("VS", b, g))
            return f
        self.items += [((name, b, g), mk(c)) for c in range(3)]
    def stream(self, n, paced=True, W=None):
        for _ in range(n):
            if self.pos >= len(self.items): return
            assert self.pos < self.limit, (self.pos, self.limit)
            if paced: self.a.pace((W or self.W) + (self.c.get("B", 0) if self.pos < self.boost else 0))
            sv = self.a._in_inject; self.a._in_inject = True
            self.items[self.pos][1](); self.pos += 1; self.last_cyc = self.a.cyc
            if self.c.get("diag") == 3 and self.pos % 5 == 0 and self.pos > 10: self.stamp("pos")
            self.a._in_inject = sv
    def prefetch(self, n):
        a = self.a
        for _ in range(n):
            if not self.pfq: return
            srd, off = self.pfq.pop(0)
            a.I(f"v_lshlrev_b32 v{self.pfreg}, {self.c.get('pfs', 6)}, v0\ns_mov_b32 m0, {JUNK}\ns_mov_b32 s{sOff}, {BSTR + off}")
            a.I(f"buffer_load_dword v{self.pfreg}, {s4(srd)}, s{sOff} offen {self.c.get('pfpol', '')} lds")
            self.off_val = None
    def injector(self):
        a = self.a
        if self.pos < self.limit and a.cyc - self.last_cyc >= self.c.get("T", 330) and a.vm.outstanding() < self.W + self.c.get("XW", 6) + (self.c.get("B", 0) if self.pos < self.boost else 0):
            self.stream(1, paced=False)
    def stream_to(self, upto, **k): self.stream(max(0, upto - self.pos), **k)
    def index_after(self, name):
        return max(i for i, it in enumerate(self.items) if it[0] == name) + 1
    def fs(self, name):
        if not self.fine_on or self.nfine >= len(FS): return
        self.a.I(f"{'s_memrealtime' if self.c.get('rt') else 's_memtime'} {sp(FS[self.nfine])}"); self.nfine += 1; self.fnames.append(name)
    def page(self):
        if not self.c.get("pages", 1): return
        k = self.npage; self.npage += 1
        self.a.I(f"s_branch Lpg{k}"); self.a.raw(f".p2align 12\nLst{k}:\n  s_setpc_b64 {sp(sRet)}\nLpg{k}:")
    def warm(self, ks):
        if not (self.c.get("pages", 1) and self.c.get("warm", 1)): return
        a = self.a
        a.I(f"s_cmp_lg_u32 s{sWave}, 3"); a.skip_begin("s_cbranch_scc1")
        for k in ks: a.I(f"s_call_b64 {sp(sRet)}, Lst{k}")
        a.skip_end()
    def check_slot(self, name, b, g):
        assert self.index_after((name, b, g)) <= self.pos, ("not issued", name, b, g, self.pos)
        if b == 0: assert self.index_after((name, 1, g)) - 3 >= self.pos, ("overwritten", name, g)
    def stamp(self, name=''):
        if self.c.get("marks"): self.a.raw(f"M_{name}_{len(self.snames)}:")
        if self.c.get("holdat") == name:
            self.a.I("s_memrealtime s[98:99]"); self.a.wait(lg=0)
        self.snames.append(f'{name}@{self.pos}')
        if not self.c.get("diag") or self.c.get("fine"): return
        if self.c["diag"] == 3 and name not in ("pos", "end"): self.snames.pop(); return
        if self.c["diag"] == 2 and name not in self.c.get("only", ("p1end", "p2beg", "p2end", "end")): self.snames.pop(); return
        a = self.a
        a.I(f"s_memrealtime {sp(sST)}"); a.wait(lg=0)
        a.I(f"v_writelane_b32 v{vStamp}, s{sST if not self.c.get('rcount') else sRetry}, {self.nstamp}"); self.nstamp += 1
    def publish(self, text, local_ok, tag="pub"):
        a = self.a
        if local_ok and self.c.get("local", True):
            a.I(f"s_cmp_lg_u32 s{sLocal}, 0")
            a.either(text.format(pol=""), text.format(pol="sc1"), tag=tag)
        else: a.I(text.format(pol="sc1"), tag=tag); self.boost = self.pos + self.c.get("KB", 14)
    def gather(self, loads, regs, tmp, between=None, emask=None, sleep=None, first=False, spec=(), vmask=False):
        a = self.a
        if first and between: between(); between = None
        if emask: loads = [f"s_mov_b64 exec, {emask}"] + loads + ["s_mov_b64 exec, -1"]
        for t in loads: a.I(t, tag="gat")
        last = len(a.vm.ent) - 1
        if emask or self.c.get("BG"): self.boost = self.pos + self.c.get("KB", 14)
        if between: between()
        self.fs("issued")
        n = a.vm.need(last)
        if n is not None: a.wait(vm=n)
        chk = a.label("Lc"); rt = a.label("Lr")
        a.raw(f"{chk}:"); a.no_inject += 1
        r = list(regs); ops = []
        ops.append(f"v_max3_u32 v{tmp}, v{r[0]}, v{r[1]}, v{r[2]}"); r = r[3:]
        while len(r) >= 2: ops.append(f"v_max3_u32 v{tmp}, v{tmp}, v{r[0]}, v{r[1]}"); r = r[2:]
        if r: ops.append(f"v_max_u32 v{tmp}, v{tmp}, v{r[0]}")
        ops.append(f"v_cmp_eq_u32 vcc, -1, v{tmp}")
        spec = list(spec)
        k = -(-len(ops) // max(1, len(spec)))
        while ops or spec:
            if spec: a.I(spec.pop(0))
            for t in ops[:k]: a.I(t)
            ops = ops[k:]
        if vmask: a.I(f"s_and_b64 vcc, vcc, {emask}")
        self.inl = self.c.get("inl", 0) and not a.inject
        if not (self.c.get("novalid") and a.inject): a.I(f"s_cbranch_vccz {rt}k" if self.inl else f"s_cbranch_vccnz {rt}")
        if self.c.get("narrow", 3) & (2 if emask else 1):
            loads = ["s_mov_b64 exec, vcc"] + [t for t in loads if not t.startswith("s_mov")] + ["s_mov_b64 exec, -1"]
        self.retry_block(rt, chk, loads, sleep); a.no_inject -= 1
        self.fs("valid")
    def lsleep(self): return None if self.a.inject else self.c.get('lsleep', 0)
    def retry_block(self, rt, chk, loads, sleep=None):
        a = self.a
        if sleep is None: sleep = self.c.get("sleep", 0)
        blk = ([f"  s_sleep {sleep}"] if sleep else []) + ["  " + t for t in loads]
        blk += [f"  s_add_u32 s{sRetry}, s{sRetry}, 1", f"  s_cmp_gt_u32 s{sRetry}, {self.c.get('spin', 2000000)}", "  s_cbranch_scc1 L_end",
                "  s_waitcnt vmcnt(0)", f"  s_branch {chk}"]
        if self.inl: a.out += blk + [f"{rt}k:"]
        elif a.inject: a.tail += [f"{rt}:"] + blk
        else: self.hot += [f"{rt}:"] + blk
        self.inl = False
    def setup(self):
        a = self.a; I = a.I
        I(f"s_cmp_ge_u32 s{sWG}, 256\ns_cbranch_scc1 L_end")
        I(f"s_load_dwordx16 s[32:47], s[0:1], 0\ns_load_dwordx8 s[48:55], s[0:1], 64\ns_load_dwordx2 s[56:57], s[0:1], 96")
        if self.c.get("diag") or self.c.get("hold"): I(f"s_memrealtime s[96:97]")
        I(f"v_lshrrev_b32 v8, 6, v0\nv_and_b32 v0, 63, v0\nv_readfirstlane_b32 s{sWave}, v8")
        I(f"s_and_b32 s{sT0}, s{sWG}, 7\ns_lshl_b32 s{sT0}, s{sT0}, 2\ns_lshr_b32 s{sT1}, s{sWG}, 3\ns_and_b32 s{sT1}, s{sT1}, 3\ns_add_u32 s{sH}, s{sT0}, s{sT1}\ns_lshr_b32 s{sS}, s{sWG}, 5")
        I(f"v_mul_u32_u24 v8, 43, v0\nv_lshrrev_b32 v8, 10, v8\nv_mul_u32_u24 v9, 24, v8\nv_sub_u32 v9, v0, v9\nv_mul_u32_u24 v8, 0x3000, v8\nv_lshl_add_u32 v{vWq0}, v9, 4, v8")
        I(f"v_add_u32 v10, 60, v0\nv_mul_u32_u24 v8, 43, v10\nv_lshrrev_b32 v8, 10, v8\nv_mul_u32_u24 v9, 24, v8\nv_sub_u32 v9, v10, v9\nv_mul_u32_u24 v8, 0x3000, v8\nv_lshl_add_u32 v{vWq1}, v9, 4, v8")
        I(f"s_mul_i32 s{sT0}, s{sS}, {80 * 12288}\ns_mul_i32 s{sT1}, s{sWave}, {20 * 12288}\ns_add_u32 s{sT0}, s{sT0}, s{sT1}\ns_mul_i32 s{sT1}, s{sH}, 384\ns_add_u32 s{sWqRow}, s{sT0}, s{sT1}")
        I(f"s_mul_i32 s{sT0}, s{sH}, {192 * 1280}\ns_mul_i32 s{sT1}, s{sWave}, {48 * 1280}\ns_add_u32 s{sT0}, s{sT0}, s{sT1}\ns_mul_i32 s{sT1}, s{sS}, 160\ns_add_u32 s{sWoRow}, s{sT0}, s{sT1}")
        I(f"s_mul_i32 s{sLdsW}, s{sWave}, 7680\ns_mov_b32 s{m60}, -1\ns_mov_b32 s{m60+1}, 0x0fffffff\ns_mov_b32 s{WT+3}, 0x20000\ns_mov_b32 s{sRetry}, 0")
        I(f"v_and_b32 v8, 15, v0\nv_lshrrev_b32 v9, 4, v0")
        I(f"v_lshrrev_b32 v10, 1, v8\nv_mul_u32_u24 v10, 384, v10\nv_and_b32 v11, 1, v8\nv_lshl_add_u32 v11, v9, 1, v11\nv_lshl_add_u32 v{vKoff}, v11, 4, v10")
        I(f"v_mul_u32_u24 v10, 768, v9\nv_lshl_add_u32 v{vVoff}, v8, 4, v10")
        I(f"s_mul_i32 s{sT0}, s{sH}, {HSTR}\ns_mul_i32 s{sT1}, s{sS}, {128 * 384}\ns_add_u32 s{sT1}, s{sT1}, s{sT0}\ns_mul_i32 s{sT2}, s{sWave}, {32 * 384}\ns_add_u32 s{sT1}, s{sT1}, s{sT2}\ns_add_u32 s{sOffG}, s{sT1}, {3072 * 384}")
        I(f"s_mul_i32 s{sT1}, s{sS}, {512 * 384}\ns_add_u32 s{sT1}, s{sT1}, s{sT0}\ns_mul_i32 s{sT2}, s{sWave}, {128 * 384}\ns_add_u32 s{sOffP}, s{sT1}, s{sT2}")
        I(f"s_mul_i32 s{sLdsVS}, s{sWave}, 6144\ns_add_u32 s{sLdsVS}, s{sLdsVS}, {VS}")
        I(f"s_mov_b32 s{XO+2}, 2560\ns_mov_b32 s{XO+3}, 0x20000\ns_mul_i32 s{sT0}, s{sS}, 160\nv_lshlrev_b32 v7, 2, v0\nv_min_u32 v7, 156, v7")
        for srd, o in ((KA, sOffG), (VA, sOffG), (KB, sOffP), (VB, sOffP)): I(f"s_sub_u32 s{srd+2}, {KV_BYTES}, s{o}\ns_mov_b32 s{srd+3}, 0x20000")
        I(f"s_mov_b32 s{WS+2}, {WS_BYTES}\ns_mov_b32 s{WS+3}, 0x20000")
        I(f"s_mul_i32 s{sH1grp}, s{sH}, {H1_H}\ns_mul_i32 s{sT1}, s{sS}, {H1_S}\ns_add_u32 s{sH1own}, s{sH1grp}, s{sT1}" + (f"\ns_mul_i32 s{sT1}, s{sS}, 768\ns_add_u32 s{sH1c}, s{sH1grp}, s{sT1}" if COMPACT1 else ""))
        I(f"s_mul_i32 s{sH2grp}, s{sH}, {H2_H}\ns_add_u32 s{sH2grp}, s{sH2grp}, {H2}\ns_mul_i32 s{sT1}, s{sS}, {H2_S}\ns_add_u32 s{sH2own}, s{sH2grp}, s{sT1}")
        I(f"s_mul_i32 s{sH3grp}, s{sS}, {H3_S}\ns_add_u32 s{sH3grp}, s{sH3grp}, {H3}\ns_mul_i32 s{sT1}, s{sH}, {H3_H}\ns_add_u32 s{sH3own}, s{sH3grp}, s{sT1}")
        self.clear_prep([[("P", 0)], [("C", 0)], [("P", 4)], [("2", 0), ("3", 0)]])
        a.wait(lg=0)
        if self.c.get("diag"): I(f"v_mov_b32 v{vStamp}, 0\nv_writelane_b32 v{vStamp}, s96, 0"); self.nstamp = 1
        def srds(l):
            for srd, p, o in l: I(f"s_add_u32 s{srd}, s{p}, s{o}\ns_addc_u32 s{srd+1}, s{p+1}, 0")
        def small():
            I(f"s_mov_b32 s{WS}, s{pWS}\ns_mov_b32 s{WS+1}, s{pWS+1}\ns_mov_b32 s{XO}, s{pX}\ns_mov_b32 s{XO+1}, s{pX+1}")
            self.clear_issue("clr")
            I(f"buffer_load_dword v12, v7, {s4(XO)}, s{sT0} offen\nbuffer_load_dword v13, v7, {s4(XO)}, s{sT0} offen offset:1280")
        n0, n1 = self.c.get("I", (12, 28))
        srds([(KA, pKA, sOffG)])
        self.stream(min(n0, 12), paced=False)
        srds([(VA, pVA, sOffG), (KB, pKB, sOffP), (VB, pVB, sOffP)])
        self.stream_to(n0, paced=False)
        small()
        self.stream_to(n1, paced=False)
        if self.c.get("st0"):
            self.stamp("end")
            n = len(a.vm.ent)
            for k in (1, 3, 6, 9, 12, 15, 18, n): a.wait(vm=n - k); self.stamp("end")
        if self.c.get("cpf") == 1: self.code_prefetch("L_pf0", "L_pf9")
        I(f"v_mul_u32_u24 v10, 26, v0\nv_lshrrev_b32 v10, 8, v10\nv_mul_u32_u24 v11, 10, v10\nv_sub_u32 v11, v0, v11\nv_mul_u32_u24 v10, 1280, v10\nv_lshl_add_u32 v{vWo}, v11, 4, v10")
        I("v_and_b32 v10, 1, v0\nv_cmp_eq_u32 vcc, 1, v10\nv_mov_b32 v11, 0xffff\nv_mov_b32 v20, 0xffff0000\nv_cndmask_b32 v11, v11, v20, vcc\nv_bfe_u32 v10, v0, 1, 2")
        for j in range(4): I(f"v_cmp_eq_u32 vcc, {j}, v10\nv_cndmask_b32 v{vMask+j}, 0, v11, vcc")
        for m, lo, hi in ((mODD, 0xaaaaaaaa, 0xaaaaaaaa), (mRG1, 0xffff0000, 0), (mRG2, 0, 0xffff), (mRG3, 0, 0xffff0000), (mWOST, 0x5555, 0x5555), (mN10, 0x03ff03ff, 0x03ff03ff), (mBIT1, 0xcccccccc, 0xcccccccc), (mL63, 0, 0x80000000)) + (((mQ13, 0x1fff1fff, 0x1fff1fff),) if COMPACT1 else ()):
            I(f"s_mov_b32 s{m}, {lo:#x}\ns_mov_b32 s{m+1}, {hi:#x}")
        I(f"s_cmp_eq_u32 s{sWave}, 3\ns_cselect_b64 {sp(mW3)}, -1, 0\ns_min_u32 s{sW2}, s{sWave}, 2")
        if H2_S == 384:
            I(f"s_mul_i32 s{sT0}, s{sS}, -368\ns_add_u32 s{sT0}, s{sT0}, 3072\ns_lshl_b32 s{sPub2}, s{sWave}, 7\ns_cmp_eq_u32 s{sWave}, 3\ns_cselect_b32 s{sPub2}, s{sT0}, s{sPub2}")
            I(f"s_mov_b32 s{mPub2}, 0x55555555\ns_cselect_b32 s{mPub2+1}, 0, s{mPub2}\ns_cselect_b32 s{mPub2}, 0x55, s{mPub2}")
        if self.c.get("nost3"): I(f"s_cmp_lt_u32 s{sWave}, 3\ns_cselect_b32 s{mWOST+1}, 0x5555, 0\ns_cselect_b32 s{mWOST}, 0x5555, 0")
        if H3_H == 160: I(f"s_cmp_lt_u32 s{sWave}, 2\ns_cselect_b32 s{mWOST+1}, 0x5555, 0")
        I(f"s_getreg_b32 s{sXcc}, hwreg(HW_REG_XCC_ID, 0, 4)\ns_add_u32 s{sXcc}, s{sXcc}, 1")
        for r, m, base in ((sXROWw, 160, XROW), (sYw, 320, Y), (sQw, 96, QB)): I(f"s_mul_i32 s{r}, s{sWave}, {m}\ns_add_u32 s{r}, s{r}, {base}")
        I(f"v_add_u32 v10, s{sXROWw}, v7\nv_add_u32 v11, {ONES}, v7\nv_mov_b32 v20, 0x3f803f80")
        I("ds_write_b32 v11, v20\nds_write_b32 v10, v12\nds_write_b32 v10, v13 offset:640")
        I(f"s_mov_b32 s{XO}, s{pOUT}\ns_mov_b32 s{XO+1}, s{pOUT+1}")
        if COMPACT1: I(f"s_mov_b32 s{mPub1}, -1\ns_cmp_eq_u32 s{sWave}, 0\ns_cselect_b32 s{mPub1+1}, 0xfffff, 0\ns_or_b32 s{mPub1+1}, s{mPub1+1}, 0xffff")
    def clear_prep(self, jobs):
        I = self.a.I
        I("v_mov_b32 v16, -1\nv_mov_b32 v17, -1\nv_mov_b32 v18, -1\nv_mov_b32 v19, -1\nv_lshlrev_b32 v14, 4, v0")
        def seg(k, inst, hi):
            if k == "P" and c1(inst): return sH1c, inst * H1_I, (0x1ffff if hi else -1)
            if k in "PC": return h1(inst)[0], h1(inst)[2] + (1024 if k == "C" else 0), -1
            if k == "2": return h2(inst)[0], h2(inst)[2] - 512 * hi, (0x1ffffff if H2_S == 384 else -1)
            return h3(inst)[0], h3(inst)[2] - 512 * hi, (0x3ff if H3_H == 160 else 0xffff if self.c.get('clr256') else 0xfff)
        for w, job in enumerate(jobs):
            lo = seg(*job[0], 0); hi = seg(*job[-1], 1)
            for (r, o, m), dst, md in ((lo, sT1, sClr), (hi, sT2, sClr + 1)):
                if w == 0: I(f"s_add_u32 s{dst}, s{r}, {o & 0xffffffff}\ns_mov_b32 s{md}, {m}")
                else: I(f"s_add_u32 s{sOff}, s{r}, {o & 0xffffffff}\ns_cmp_eq_u32 s{sWave}, {w}\ns_cselect_b32 s{dst}, s{sOff}, s{dst}\ns_cselect_b32 s{md}, {m}, s{md}")
        self.off_val = None
        I(f"v_mov_b32 v15, s{sT1}\nv_mov_b32 v20, s{sT2}\nv_cmp_lt_u32 vcc, 31, v0\nv_cndmask_b32 v15, v15, v20, vcc\nv_add_u32 v15, v15, v14")
        if any(k == "P" and c1(i) for job in jobs for k, i in job):
            I(f"s_mov_b32 s{sT1}, 0\ns_mov_b32 s{sT2}, 0")
            for w, job in enumerate(jobs):
                if job[0][0] == "P" and c1(job[0][1]): I(f"s_cmp_eq_u32 s{sWave}, {w}\ns_cselect_b32 s{sT2}, 0x10000, s{sT2}")
            self.off_val = None; self.a.no_inject += 1
            I(f"s_mul_i32 s{sOff}, s{sS}, -752\ns_add_u32 s{sOff}, s{sOff}, {6144 - 768}\nv_add_u32 v20, s{sOff}, v15\nv_cndmask_b32 v15, v15, v20, {sp(sT1)}")
            self.a.no_inject -= 1
        if H2_S == 384 and any(k == "2" for job in jobs for k, _ in job):
            I(f"s_mov_b32 s{sT1}, 0\ns_mov_b32 s{sT2}, 0")
            for w, job in enumerate(jobs):
                for (k, _), dst in ((job[0], sT1), (job[-1], sT2)):
                    if k == "2": I(f"s_cmp_eq_u32 s{sWave}, {w}\ns_cselect_b32 s{dst}, 0x1000000, s{dst}")
            self.off_val = None; self.a.no_inject += 1
            I(f"s_mul_i32 s{sOff}, s{sS}, -368\ns_add_u32 s{sOff}, s{sOff}, {3072 - 384}\nv_add_u32 v20, s{sOff}, v15\nv_cndmask_b32 v15, v15, v20, {sp(sT1)}")
            self.a.no_inject -= 1
    def clear_issue(self, tag, local_ok=False):
        I = self.a.I
        I(f"s_mov_b64 exec, {sp(sClr)}")
        self.publish(f"buffer_store_dwordx4 v[16:19], v15, {s4(WS)}, 0 offen {{pol}}", local_ok, tag=tag)
        I("s_mov_b64 exec, -1")
    def tlb_touch(self):
        a = self.a; I = a.I
        ent = []
        for p, o, span in ((pWQA, sWqRow, 20 * 12288), (pKA, sOffG, 12288), (pVA, sOffG, 12288), (pWOA, sWoRow, 48 * 1280), (pWQB, sWqRow, 20 * 12288),
                           (pKB, sOffP, 49152), (pWOB, sWoRow, 48 * 1280), (pVB, sOffP, 49152)):
            for b in range(2 if o in (sOffG, sOffP) else 1): ent.append((p, o, b * BSTR))
        if self.c["tlb"] > 1:
            ent += [(pWS, None, 0), (pWS, None, 2 << 20), (pWS, None, 4 << 20), (pDBG, None, 0), (pOUT, None, 0)]
        for i, (p, o, c) in enumerate(ent):
            if o is None: I(f"s_add_u32 s{sT1}, s{p}, {c}\ns_addc_u32 s{sT2}, s{p+1}, 0")
            else:
                I(f"s_add_u32 s{sT1}, s{p}, s{o}\ns_addc_u32 s{sT2}, s{p+1}, 0")
                if c: I(f"s_add_u32 s{sT1}, s{sT1}, {c}\ns_addc_u32 s{sT2}, s{sT2}, 0")
            if i == 0: I(f"v_mov_b32 v14, s{sT1}\nv_mov_b32 v15, s{sT2}")
            else: I(f"v_writelane_b32 v14, s{sT1}, {i}\nv_writelane_b32 v15, s{sT2}, {i}")
        I(f"s_mov_b64 exec, {(1 << len(ent)) - 1}\nglobal_load_dword v250, v[14:15], off nt\ns_mov_b64 exec, -1")
    def code_prefetch(self, lo, hi):
        a = self.a; I = a.I
        l = a.label("Lp")
        I(f"s_getpc_b64 {sp(sT1)}"); a.raw(f"{l}:")
        I(f"s_add_u32 s{sT1}, s{sT1}, {lo}-{l}\ns_addc_u32 s{sT2}, s{sT2}, 0")
        I(f"s_lshr_b32 s{sT0}, s{sWG}, 3\ns_lshl_b32 s{sT0}, s{sT0}, 2\ns_add_u32 s{sT0}, s{sT0}, s{sWave}\ns_lshl_b32 s{sT0}, s{sT0}, 13")
        I(f"v_lshl_add_u32 v30, v0, 7, s{sT0}\nv_cmp_gt_u32 vcc, {hi}-{lo}, v30\ns_mov_b32 m0, {JUNK}")
        I("s_and_b64 exec, vcc, -1"); a.skip_begin("s_cbranch_execz")
        I(f"global_load_lds_dword v30, {sp(sT1)}")
        a.skip_end()
        I("s_mov_b64 exec, -1")
    def arrive(self):
        a = self.a; I = a.I
        I(f"s_cmp_lg_u32 s{sWave}, 0"); a.skip_begin("s_cbranch_scc1")
        I(f"s_and_b32 s{sT0}, s{sWG}, 3\ns_lshl_b32 s{sT0}, s{sT0}, 3\ns_lshl_b32 s{sT0}, s{sXcc}, s{sT0}\ns_and_b32 s{sT1}, s{sWG}, 0xfc")
        I(f"v_mov_b32 v8, s{sT1}\nv_mov_b32 v9, s{sT0}\ns_mov_b64 exec, 1")
        I(f"global_atomic_add v8, v9, {sp(pDBG)} sc1\ns_mov_b64 exec, -1")
        a.skip_end()
    def handshake(self, between):
        a = self.a; I = a.I
        I("v_lshlrev_b32 v7, 2, v0")
        ld = f"global_load_dword v8, v7, {sp(pDBG)} sc1"
        I(ld); last = len(a.vm.ent) - 1
        between()
        n = a.vm.need(last)
        if n is not None: a.wait(vm=n)
        chk = a.label("Lc"); rt = a.label("Lr")
        a.raw(f"{chk}:"); a.no_inject += 1
        I("v_subrev_u32 v9, 0x01010101, v8\nv_not_b32 v10, v8\nv_and_b32 v9, v9, v10\nv_and_b32 v9, 0x80808080, v9\nv_cmp_ne_u32 vcc, 0, v9")
        I(f"s_cbranch_vccnz {rt}")
        self.retry_block(rt, chk, [ld]); a.no_inject -= 1
        if USE_HOT: self.sides()
        I(f"s_and_b32 s{sT0}, s{sWG}, 3\ns_lshl_b32 s{sT0}, s{sT0}, 3\nv_lshrrev_b32 v8, s{sT0}, v8\nv_and_b32 v8, 0xff, v8")
        I(f"s_bfe_u32 s{sT0}, s{sWG}, 0x30002\nv_and_b32 v9, 7, v0\nv_cmp_eq_u32 {sp(sT1)}, s{sT0}, v9\nv_cmp_ne_u32 vcc, s{sXcc}, v8")
        I(f"s_and_b64 vcc, vcc, {sp(sT1)}\ns_cmp_eq_u64 vcc, 0\ns_cselect_b32 s{sLocal}, 1, 0")
    def sides(self):
        a = self.a; I = a.I; a.no_inject += 1
        I(f"v_readlane_b32 s{sT1}, v8, 0\nv_readlane_b32 s{sT2}, v8, 1\nv_mov_b32 v9, s{sT1}\nv_mov_b32 v10, s{sT2}\nv_cndmask_b32 v9, v9, v10, {sp(mODD)}\nv_cmp_ne_u32 vcc, v8, v9")
        I(f"s_sub_u32 s{sT1}, s{sT1}, 0x01010101\ns_sub_u32 s{sT2}, s{sT2}, 0x01010101\ns_lshr_b32 s{sT1}, s{sT1}, 2\ns_lshr_b32 s{sT2}, s{sT2}, 2\ns_and_b32 s{sT1}, s{sT1}, 0x01010101\ns_and_b32 s{sT2}, s{sT2}, 0x01010101")
        I(f"s_xor_b32 s{sT0}, s{sT1}, s{sT2}\ns_cmp_eq_u32 s{sT0}, 0x01010101\ns_cselect_b32 s{sLocal}, 1, 0\ns_cmp_eq_u64 vcc, 0\ns_cselect_b32 s{sLocal}, s{sLocal}, 0")
        if self.c.get("pol"): I(f"s_xor_b32 s{sT1}, s{sT1}, 0x01010101\ns_xor_b32 s{sT2}, s{sT2}, 0x01010101")
        I(f"s_cmp_lg_u32 s{sLocal}, 0\ns_cselect_b32 s{sT1}, s{sT1}, 0\ns_cselect_b32 s{sT2}, s{sT2}, 0x01010101")
        def side(dst, k): I(f"s_lshr_b64 s[0:1], {sp(sT1)}, s{k}\ns_and_b32 s{dst}, s0, 1\ns_lshl_b32 s{dst}, s{dst}, 13")
        I(f"s_add_u32 s{sOffP}, s{WS}, {(8 << 20) - 1}\ns_and_b32 s{sOffP}, s{sOffP}, 0xffe00000\ns_sub_u32 s{sOffP}, s{sOffP}, s{WS}")
        I(f"s_and_b32 s{sT0}, s{sWG}, 7\ns_lshl_b32 s{sT0}, s{sT0}, 3"); side(sOffG, sT0)
        I(f"s_add_u32 s{sOffG}, s{sOffG}, s{sOffP}")
        I(f"s_and_b32 s{sT0}, s{sH}, 15\ns_lshl_b32 s{sX1grp}, s{sT0}, 14\ns_add_u32 s{sX1grp}, s{sX1grp}, s{sOffG}\ns_lshl_b32 s0, s{sS}, 10\ns_add_u32 s{sX1own}, s{sX1grp}, s0")
        I(f"s_lshr_b32 s0, s{sT0}, 1\ns_lshl_b32 s0, s0, 14\ns_and_b32 s1, s{sT0}, 1\ns_lshl_b32 s1, s1, 12\ns_add_u32 s0, s0, s1\ns_add_u32 s0, s0, {X2}\ns_add_u32 s{sX2grp}, s0, s{sOffG}\ns_mul_i32 s0, s{sS}, {H2_S}\ns_add_u32 s{sX2own}, s{sX2grp}, s0")
        I(f"s_lshr_b32 s0, s{sS}, 1\ns_lshl_b32 s0, s0, 14\ns_and_b32 s1, s{sS}, 1\ns_lshl_b32 s1, s1, 12\ns_add_u32 s0, s0, s1\ns_add_u32 s{sOffW}, s0, {X3}")
        I(f"s_mul_i32 s0, s{sT0}, {H3_H}\ns_add_u32 s0, s0, s{sOffW}\ns_add_u32 s{sX3own}, s0, s{sOffG}\ns_add_u32 s{sOffW}, s{sOffW}, s{sOffP}")
        for j, dst in enumerate((sX3g0, sX3g1)):
            I(f"s_lshl_b32 s{sT0}, s{sWave}, 4\ns_add_u32 s{sT0}, s{sT0}, {8 * j}"); side(dst, sT0)
            I(f"s_lshl_b32 s0, s{sWave}, 1\ns_add_u32 s0, s0, {j}\ns_and_b32 s0, s0, 3\ns_mul_i32 s0, s0, {4 * H3_H}\ns_add_u32 s{dst}, s{dst}, s0\ns_add_u32 s{dst}, s{dst}, s{sOffW}")
        a.no_inject -= 1
    WQB = [(24, 28, 32), (34, 38, 42), (44, 48, 52)]
    def wq_pre(self, ty):
        a = self.a; I = a.I
        I(f"v_bfe_u32 v7, v0, 2, 2\nv_lshrrev_b32 v9, 4, v0\nv_lshl_add_u32 v8, v9, 3, v7\nv_lshl_add_u32 v7, v9, 2, v7")
        I(f"v_and_b32 v9, 3, v0\nv_lshlrev_b32 v9, 3, v9\ns_mul_i32 s{sT0}, s{sWave}, 96\ns_add_u32 s{sT0}, s{sT0}, {WQ[ty]}\nv_add_u32 v9, s{sT0}, v9")
        I(f"s_movk_i32 s{sT0}, 384\nv_mad_u32_u24 v8, v8, s{sT0}, v9\nv_mad_u32_u24 v7, v7, s{sT0}, v9")
        for T, (b0, b1, b2) in enumerate(self.WQB):
            for t, r in ((0, b0), (1, b1)):
                I(f"ds_read_b64_tr_b16 {v2(r)}, v8 offset:{12288 * t + 32 * T}\nds_read_b64_tr_b16 {v2(r+2)}, v8 offset:{12288 * t + 1536 + 32 * T}")
            I(f"ds_read_b64_tr_b16 {v2(b2)}, v7 offset:{24576 + 32 * T}")
    def wq_addr(self, b, L):
        I = self.a.I
        I(f"v_mov_b32 v22, s{sXROWw}\nv_mov_b32 v23, {ONES - 640 * b}")
        I(f"v_cndmask_b32 v23, v22, v23, {sp(mODD)}\nv_lshrrev_b32 v21, 4, v0\nv_lshl_add_u32 v22, v21, 4, v23\nv_lshl_add_u32 v23, v21, 3, v23")
    def wq_main(self, b, L, local_ok=True, hoisted=False, hoist=False):
        a = self.a; a.comment(f"---- row {b} layer {L}: q projection partial"); I = a.I; inst = 4 * b + L; needC = inst < 2
        if not hoisted: self.wq_addr(b, L)
        I(f"ds_read_b128 v[12:15], v22 offset:{640 * b}\nds_read_b128 v[16:19], v22 offset:{640 * b + 64}\nds_read_b64 v[20:21], v23 offset:{640 * b + 128}")
        if c1(inst):
            I(f"s_mul_i32 s{sT0}, s{sWave}, 192\nv_lshl_add_u32 v7, v0, 2, s{sT0}\ns_mul_i32 s{sT0}, s{sS}, -752\ns_add_u32 s{sT0}, s{sT0}, {6144 - 192}\nv_lshl_add_u32 v23, v0, 2, s{sT0}")
            I(f"v_cndmask_b32 v7, v7, v23, {sp(mRG3)}\ns_add_u32 s{sOffP}, s{sH1c}, {inst * H1_I}")
        else: I(f"s_lshl_b32 s{sT0}, s{sWave}, 8\nv_lshl_add_u32 v7, v0, 2, s{sT0}\ns_add_u32 s{sOffP}, s{h1(inst)[0]}, {h1(inst)[2]}")
        if hoist: self.qg_addr(b, L)
        D = [8, 24, 28]
        for T, (b0, b1, b2) in enumerate(self.WQB):
            I(f"v_mfma_f32_16x16x32_bf16 {v4(D[T])}, v[12:15], {v4(b0)}, 0")
            I(f"v_mfma_f32_16x16x32_bf16 {v4(D[T])}, v[16:19], {v4(b1)}, {v4(D[T])}")
        I("v_mfma_f32_16x16x32_bf16 v[34:37], v[12:15], v[12:15], 0\nv_mfma_f32_16x16x32_bf16 v[34:37], v[16:19], v[16:19], v[34:37]")
        for T, (b0, b1, b2) in enumerate(self.WQB):
            I(f"v_mfma_f32_16x16x16_bf16 {v4(D[T])}, v[20:21], {v2(b2)}, {v4(D[T])}")
        I("v_mfma_f32_16x16x16_bf16 v[34:37], v[20:21], v[20:21], v[34:37]")
        for r in range(2 if needC else 1):
            I(f"v_cndmask_b32 v{22+r}, v{8+r}, v{24+r}, {sp(mRG1)}\nv_cndmask_b32 v{22+r}, v{22+r}, v{28+r}, {sp(mRG2)}\nv_cndmask_b32 v{22+r}, v{22+r}, v34, {sp(mRG3)}\nv_min_u32 v{22+r}, -2, v{22+r}")
            if c1(inst): I(f"s_mov_b64 exec, {sp(mPub1)}")
            self.publish(f"buffer_store_dword v{22+r}, v7, {s4(WS)}, s{sOffP} offen offset:{1024 * r} {{pol}}", local_ok)
            if c1(inst): I("s_mov_b64 exec, -1")
    def qg_addr(self, b, L):
        I = self.a.I
        if c1(4 * b + L):
            I(f"v_and_b32 v23, 15, v0\nv_lshrrev_b32 v54, 4, v0\nv_mul_u32_u24 v54, 768, v54\nv_lshl_add_u32 v54, v23, 4, v54\ns_mul_i32 s{sT0}, s{sWave}, 192\nv_add_u32 v54, s{sT0}, v54")
            I(f"s_add_u32 s{sOffG}, s{sH1grp}, {(4 * b + L) * H1_I}")
            return
        I(f"v_and_b32 v23, 15, v0\nv_lshrrev_b32 v54, 4, v0\nv_mul_u32_u24 v54, {h1(4 * b + L)[3]}, v54\nv_lshl_add_u32 v54, v23, 4, v54\ns_lshl_b32 s{sT0}, s{sWave}, 8")
        I(f"s_add_u32 s{sOffG}, s{h1(4 * b + L)[1]}, s{sT0}\ns_add_u32 s{sOffG}, s{sOffG}, {h1(4 * b + L)[2]}\ns_add_u32 s{sOffG2}, s{sOffG}, {4 * h1(4 * b + L)[3]}")
    def qg(self, b, L, between=None, hoisted=False, after=None, tail=False):
        a = self.a; a.comment(f"---- row {b} layer {L}: gather q partials, LayerNorm scale"); I = a.I; inst = 4 * b + L; needC = inst < 2; ty = L & 1
        if not hoisted: self.qg_addr(b, L)
        loads = [f"buffer_load_dwordx4 v[12:15], v54, {s4(WS)}, s{sOffG} offen sc1", f"buffer_load_dwordx4 v[16:19], v54, {s4(WS)}, s{sOffG2} offen sc1"]
        cc = c1(inst)
        if cc: loads = [f"buffer_load_dwordx4 v[12:15], v54, {s4(WS)}, s{sOffG} offen sc1", f"buffer_load_dwordx4 v[16:19], v36, {s4(WS)}, s{sOffG} offen sc1"]
        def addr2():
            I(f"v_add_u32 v36, 3072, v54\nv_and_b32 v37, 48, v0\nv_add_u32 v37, 6144, v37\ns_mov_b32 vcc_lo, 0x10001000\ns_mov_b32 vcc_hi, 0x10001000")
            I("v_cndmask_b32 v54, v54, v37, vcc\nv_add_u32 v37, 64, v37\nv_cndmask_b32 v36, v36, v37, vcc")
        if needC: loads += [f"buffer_load_dwordx4 v[20:23], v54, {s4(WS)}, s{sOffG} offen offset:1024 sc1", f"buffer_load_dwordx4 v[24:27], v54, {s4(WS)}, s{sOffG2} offen offset:1024 sc1"]
        def pre():
            I(f"v_and_b32 v32, 15, v0\nv_lshrrev_b32 v33, 4, v0\nv_and_b32 v34, 1, v33\nv_lshlrev_b32 v34, 1, v34\nv_lshrrev_b32 v28, 1, v33\nv_or_b32 v34, v34, v28\nv_lshl_add_u32 v34, v32, 2, v34")
            I(f"v_lshl_add_u32 v34, v34, 1, s{sQw}\nv_lshl_add_u32 v29, v0, 2, s{sCTw}")
            if not needC: I(f"ds_read_b32 v20, v29 offset:{1024 * ty}")
            self.q_addr(b)
            I(f"v_mov_b32 v35, {f32(1 / (640 * SCALE))}\nv_mov_b32 v32, {f32(1 / (640 * SCALE * SCALE))}\nv_mov_b32 v33, {f32(1e-5 / (SCALE * SCALE))}")
        first = hoisted and self.c.get('first', 3) & 2
        if cc: addr2()
        if first: pre()
        def shadow():
            if not first: pre()
            if tail and self.c.get("tq", 0): self.tail_addr(b, L)
            if between: between()
        self.gather(loads, range(12, 28 if needC else 20), 28, between=shadow, sleep=self.lsleep(), emask=sp(mQ13) if cc else None, vmask=cc)
        if after: after()
        def red(r):
            I(f"v_pk_add_f32 {v2(r)}, {v2(r)}, {v2(r+4)}\nv_pk_add_f32 {v2(r+2)}, {v2(r+2)}, {v2(r+6)}")
            I(f"v_permlane32_swap_b32 v{r}, v{r+1}\nv_permlane32_swap_b32 v{r+2}, v{r+3}\nv_add_f32 v{r}, v{r}, v{r+1}\nv_add_f32 v{r+2}, v{r+2}, v{r+3}")
            I(f"v_permlane16_swap_b32 v{r}, v{r+2}\nv_add_f32 v{r}, v{r}, v{r+2}")
        red(12)
        I(f"v_readlane_b32 s{sT0}, v12, 12\nv_readlane_b32 s{sT1}, v12, 44")
        if needC: red(20); I(f"v_mul_f32 v20, {f32(SCALE)}, v20\nds_write_b32 v29, v20 offset:{1024 * ty}")
        I(f"s_mov_b32 exec_lo, 0x0fff0fff\ns_mov_b32 exec_hi, 0x0fff0fff")
        I(f"v_mul_f32 v15, s{sT1}, v35\nv_fma_f32 v14, s{sT0}, v32, v33\nv_fma_f32 v14, -v15, v15, v14\nv_max_f32 v14, v33, v14\nv_rsq_f32 v14, v14")
        I(f"v_fma_f32 v12, -v15, v20, v12\nv_mul_f32 v12, v12, v14\nv_cvt_pk_bf16_f32 v12, v12, v12")
        I(f"ds_write_b16 v34, v12 offset:{384 * b}\ns_mov_b64 exec, -1")
        a.barrier()
    def tail_addr(self, b, L):
        I = self.a.I; inst = 4 * b + L
        I(f"v_and_b32 v50, 15, v0\nv_lshlrev_b32 v50, 5, v50\nv_and_b32 v51, 16, v0\nv_add3_u32 v50, v50, v51, s{sATTw}\nv_mov_b32 v51, s{sSTATw}")
        self.wo_addr(b, L)
        I(f"v_mov_b32 v9, {STAT}\nv_lshl_add_u32 v10, v0, 2, s{sCOMBw}")
        if H2_S == 384: I(f"v_lshl_add_u32 v11, v0, 1, s{sPub2}\ns_add_u32 s{sOffP}, s{h2(inst)[0]}, {h2(inst)[2]}")
        else: I(f"s_lshl_b32 s{sT0}, s{sWave}, 7\nv_lshl_add_u32 v11, v0, 1, s{sT0}\ns_add_u32 s{sOffP}, s{h2(inst)[0]}, {h2(inst)[2]}")
    def q_addr(self, b):
        self.a.I(f"v_and_b32 v30, 1, v0\nv_lshrrev_b32 v31, 4, v0\nv_lshlrev_b32 v31, 5, v31\nv_lshl_add_u32 v30, v30, 4, v31\nv_add_u32 v30, {QB + 384 * b}, v30")
    def att(self, b, L, hook1=None, hook2=None, hookm=None, pre_bar=None, guard=False, hoist=False, qaddr=False):
        a = self.a; a.comment(f"---- row {b} layer {L}: attention"); I = a.I; ty = L & 1; G = 16 if ty else 4; Kn = "KB" if ty else "KA"; Vn = "VB" if ty else "VA"
        vM, vL = 52, 53
        if not qaddr: self.q_addr(b)
        for t in range(3): I(f"ds_read_b128 {v4(vQ + 4 * t)}, v30 offset:{128 * t}")
        def lds_v(g):
            a.wait_tag(("VS", b, g))
            I(f"v_lshl_add_u32 v54, v0, 4, s{sLdsVS}")
            for c in range(3): I(f"ds_read_b128 {v4(vU + 2 + 4 * c)}, v54 offset:{(g - 2) * 3072 + 1024 * c}")
        early = (not ty) and L == 2
        if early: lds_v(2)
        if not (qaddr and self.c.get("tq", 0)):
            if self.c.get("fill", 1): a.queue(lambda: self.tail_addr(b, L)); a.drain(self.c.get("fill0", 8))
            else: self.tail_addr(b, L)
        def D(g): return vACC + 4 * (g % 3)
        dm = "row_mask:0xf"; NP = G // 2
        order = list(range(G)) if ty else ([2, 0, 1, 3] if early else [0, 1, 2, 3])
        at = {g: i for i, g in enumerate(order)}
        U = lambda g: vU + at[g] // 2
        bank = lambda g, hi: (1 << (at[g] & 1)) << (2 * hi)
        for g in range(G + 2):
            K = SLOT[(Kn, g)] if g < G else None
            if K: self.check_slot(Kn, b, g)
            e = g - 2
            if K: I(f"v_mfma_f32_16x16x32_bf16 {v4(D(g))}, {K[0]}, {v4(vQ)}, 0")
            if g == 1 and self.c.get("fa"): self.fs("g1")
            if K: a.drain(2)
            if K: I(f"v_mfma_f32_16x16x32_bf16 {v4(D(g))}, {K[1]}, {v4(vQ+4)}, {v4(D(g))}")
            if K and e < 0: a.drain(2)
            if 0 <= e < G: I(f"v_add_f32_dpp v{U(e)}, v{D(e)}, v{D(e)+1} quad_perm:[0,0,2,2] {dm} bank_mask:{bank(e, 0):#x}")
            if K: I(f"v_mfma_f32_16x16x32_bf16 {v4(D(g))}, {K[2]}, {v4(vQ+8)}, {v4(D(g))}")
            if g == G + 1 and NP > 3: I(f"v_max3_f32 v{vM}, v{vU}, v{vU+1}, v{vU+2}\nv_max3_f32 v{vM}, v{vM}, v{vU+3}, v{vU+4}")
            if K and e < 0: a.drain(2)
            if hook1 and g < G: hook1(g)
            if 0 <= e < G: I(f"v_add_f32_dpp v{U(e)}, v{D(e)+2}, v{D(e)+3} quad_perm:[0,0,2,2] {dm} bank_mask:{bank(e, 1):#x}")
        if self.c.get("fa"): self.fs("p1")
        if hookm: hookm()
        if NP > 3: I(f"v_max3_f32 v{vM}, v{vM}, v{vU+5}, v{vU+6}\nv_max_f32 v{vM}, v{vM}, v{vU+7}")
        else: I(f"v_max_f32 v{vM}, v{vU}, v{vU+1}")
        red = ("row_ror:8 row_mask:0xf", "row_ror:4 row_mask:0xf", "row_bcast:15 row_mask:0xa", "row_bcast:31 row_mask:0xc")
        for x in red: I(f"v_max_f32_dpp v{vM}, v{vM}, v{vM} {x} bank_mask:0xf")
        I(f"v_readlane_b32 s{sM}, v{vM}, 63")
        def prob(p): return [f"v_subrev_f32 v{vU+p}, s{sM}, v{vU+p}", f"v_exp_f32 v{vU+p}, v{vU+p}",
                             f"v_mov_b32 v{vL}, v{vU+p}" if p == 0 else f"v_add_f32 v{vL}, v{vL}, v{vU+p}",
                             f"v_cvt_pk_bf16_f32 v{vU+p}, v{vU+p}, v{vU+p}",
                             f"v_mov_b32_dpp v{vU+p}, v{vU+p} quad_perm:[1,1,3,3] {dm} bank_mask:0xf"]
        def diag(i, j):
            d = vQ + 4 * (i & 1) + j; u = vU + i // 2
            if (j >> 1) == (i & 1): I(f"v_and_b32 v{d}, v{u}, v{vMask + j}")
            else: I(f"v_and_b32_dpp v{d}, v{u}, v{vMask + j} {'row_shl:4' if i & 1 else 'row_shr:4'} {dm} bank_mask:0xf bound_ctrl:0")
        a.drain()
        p0 = prob(0); p1 = prob(1)
        for t in (p0[0], p0[1], p1[0], p0[3 - 1], p0[3], p1[1], f"v_mov_b32 v{vM}, s{sM}", p0[4]): I(t)
        pend = p1[2:]
        for j in (0, 1): diag(0, j)
        I(pend.pop(0))
        for j in (2, 3): diag(0, j)
        if guard: a.barrier()
        if self.c.get("fa"): self.fs("p2start")
        lred = []
        for i, g in enumerate(order):
            self.check_slot(Vn, b, g)
            if (Vn, g) in SLOT: V = SLOT[(Vn, g)]
            else:
                if not early: lds_v(g)
                V = [v4(vU + 2 + 4 * c) for c in range(3)]
            A = v4(vQ + 4 * (i & 1))
            nx = i + 1 < G
            if (i & 1) == 1 and i // 2 + 2 < NP: assert not pend; pend = prob(i // 2 + 2)
            if i == G - 2: assert not pend; lred = [f"v_add_f32_dpp v{vL}, v{vL}, v{vL} {x} bank_mask:0xf" for x in red]
            for c in range(3):
                acc = v4(vACC + 4 * c)
                I(f"v_mfma_f32_16x16x32_bf16 {acc}, {A}, {V[c]}, {acc if i else 0}")
                if nx and c < 2: diag(i + 1, 2 * c + 0 if (i + 1) & 1 == 0 else (2 * c + 2) % 4); diag(i + 1, 2 * c + 1 if (i + 1) & 1 == 0 else (2 * c + 3) % 4)
                if pend: I(pend.pop(0))
                if lred: I(lred.pop(0))
                if i == 0 and c == 1: I(f"ds_write_b32 v51, v{vM}")
                if i == G - 1 and c == 1: I(f"s_mov_b64 exec, {sp(mL63)}\nds_write_b32 v51, v{vL} offset:16\ns_mov_b64 exec, -1")
            if early and g == 2: lds_v(3)
            if hook2: hook2(i)
        if self.c.get("fa"): self.fs("p2end")
        for c, (lo, hi) in enumerate(((0xffffffff, 0), (0x00ff00ff, 0xff00ff00), (0, 0xffffffff))):
            I(f"s_mov_b32 exec_lo, {lo:#x}\ns_mov_b32 exec_hi, {hi:#x}\nds_write_b128 v50, {v4(vACC + 4 * c)} offset:{512 * c}")
        I("s_mov_b64 exec, -1")
        if pre_bar: pre_bar()
        self.fs("att_end")
        a.barrier()
        self.combine(b, L)
        self.fs("pub2")
    def combine(self, b, L):
        a = self.a; I = a.I; inst = 4 * b + L; a.comment("merge the four waves' partials and publish")
        I("ds_read_b128 v[44:47], v9\nds_read_b128 v[48:51], v9 offset:16")
        for i in range(0, 8, 2): I(f"ds_read2st64_b32 {v2(12 + i)}, v10 offset0:{3 * i} offset1:{3 * i + 3}")
        I("v_max3_f32 v52, v44, v45, v46\nv_max_f32 v52, v52, v47")
        for w in range(4): I(f"v_sub_f32 v{44+w}, v{44+w}, v52")
        for w in range(4): I(f"v_exp_f32 v{44+w}, v{44+w}")
        for w in range(4): I(f"v_add_f32 v{12 + 2 * w}, v{12 + 2 * w}, v{13 + 2 * w}")
        I("v_mul_f32 v20, v44, v12\nv_fmac_f32 v20, v45, v14\nv_fmac_f32 v20, v46, v16\nv_fmac_f32 v20, v47, v18")
        I("v_mul_f32 v53, v44, v48\nv_fmac_f32 v53, v45, v49")
        I("v_mov_b32_dpp v21, v20 quad_perm:[1,1,3,3] row_mask:0xf bank_mask:0xf")
        I("v_fmac_f32 v53, v46, v50\nv_fmac_f32 v53, v47, v51\nv_cvt_pk_bf16_f32 v20, v20, v21")
        I(f"v_cndmask_b32 v52, v52, v53, {sp(mBIT1)}\nv_cndmask_b32 v20, v20, v52, {sp(mW3)}\nv_min_u32 v20, -2, v20")
        I(f"s_mov_b64 exec, {sp(mPub2)}" if H2_S == 384 else f"s_not_b64 exec, {sp(mODD)}")
        self.publish(f"buffer_store_dword v20, v11, {s4(WS)}, s{sOffP} offen {{pol}}", True)
        I("s_mov_b64 exec, -1")
    def wo_addr(self, b, L):
        I = self.a.I
        I(f"v_bfe_u32 v8, v0, 1, 3\nv_lshrrev_b32 v9, 4, v0\nv_and_b32 v7, 1, v0\nv_lshl_add_u32 v7, v9, 1, v7\nv_lshlrev_b32 v7, 4, v7\ns_movk_i32 s{sT0}, {H2_S}\nv_mad_u32_u24 v7, v8, s{sT0}, v7")
        I(f"v_lshl_add_u32 v8, v9, 1, v8\nv_and_b32 v8, 7, v8\nv_mul_u32_u24 v8, {16 if H2_S == 384 else H2_S}, v8\ns_add_u32 s{sOffW}, s{h2(4 * b + L)[1]}, {h2(4 * b + L)[2]}")
    def wo(self, b, L, between=None, hoisted=False, hoist=False, after=None):
        a = self.a; a.comment(f"---- row {b} layer {L}: gather attention partials, output projection partial"); I = a.I; inst = 4 * b + L; ty = L & 1
        if not hoisted: self.wo_addr(b, L)
        loads = [f"buffer_load_dwordx2 v[52:53], v8, {s4(WS)}, s{sOffW} offen offset:{3072 if H2_S == 384 else 384} sc1"]
        loads += [f"buffer_load_dwordx4 {v4(12 + 4 * t)}, v7, {s4(WS)}, s{sOffW} offen offset:{128 * t} sc1" for t in range(3)]
        S = [24, 28, 32, 36, 40, 44]
        def rd(kk, reg, tile):
            o = 10240 * (kk >> 1) + 1280 * (kk & 1) + 32 * tile
            I(f"ds_read_b64_tr_b16 {v2(reg)}, v10 offset:{o}\nds_read_b64_tr_b16 {v2(reg + 2)}, v10 offset:{o + 640}")
        def pre():
            I(f"v_bfe_u32 v10, v0, 2, 2\nv_and_b32 v11, 48, v0\nv_add_u32 v10, v10, v11\nv_mul_u32_u24 v10, 160, v10\nv_and_b32 v11, 3, v0\nv_lshl_add_u32 v10, v11, 3, v10")
            I(f"s_lshl_b32 s{sT0}, s{sW2}, 6\ns_add_u32 s{sT1}, s{sT0}, {WO[ty]}\nv_add_u32 v10, s{sT1}, v10")
            for kk in range(6): rd(kk, S[kk], 0)
            I(f"v_and_b32 v11, 15, v0\nv_lshlrev_b32 v11, 1, v11\nv_and_b32 v9, 32, v0\nv_add3_u32 v11, v11, v9, s{sT0}\ns_add_u32 s{sOffP}, s{h3(inst)[0]}, {h3(inst)[2]}")
            if hoist: self.yg_addr()
            if between: between()
        D0, D1 = 48, 24
        mt = lambda D, t, B, first: f"v_mfma_f32_16x16x32_bf16 {v4(D)}, {v4(12 + 4 * t)}, {v4(B)}, {0 if first else v4(D)}"
        def mm(*k): I(mt(*k))
        self.gather(loads, [52, 53] + list(range(12, 24)), 9, between=pre, sleep=self.lsleep(), first=hoisted and self.c.get('first', 3) & 1,
                    spec=[mt(D0, 0, S[0], True), mt(D0, 1, S[2], False), mt(D0, 2, S[4], False)])
        if after: after()
        dpp = lambda op, d, x, ctl: I(f"{op}_dpp v{d}, v{x}, v{x} {ctl} row_mask:0xf bank_mask:0xf")
        def fold(out):
            I(f"v_add_f32 v{D0}, v{D0}, v{D1 + 1}\nv_add_f32 v{D0 + 2}, v{D0 + 2}, v{D1 + 3}\nv_mul_f32 v{out}, v7, v{D0}\nv_fmac_f32 v{out}, v8, v{D0 + 2}")
        dpp("v_max_f32", 9, 52, "row_ror:8")
        mm(D1, 0, S[1], True); rd(0, S[2], 1); dpp("v_max_f32", 9, 9, "row_ror:4")
        mm(D1, 1, S[3], False); rd(2, S[4], 1); dpp("v_max_f32", 9, 9, "row_ror:2")
        mm(D1, 2, S[5], False); I("v_sub_f32 v52, v52, v9\nv_exp_f32 v52, v52"); rd(4, S[1], 1); I("v_mul_f32 v53, v52, v53")
        rd(1, S[3], 1); dpp("v_add_f32", 53, 53, "row_ror:8")
        rd(3, S[5], 1); dpp("v_add_f32", 53, 53, "row_ror:4")
        I(f"v_add_f32 v{D0}, v{D0}, v{D1 + 1}\nv_add_f32 v{D0 + 2}, v{D0 + 2}, v{D1 + 3}")
        dpp("v_add_f32", 53, 53, "row_ror:2")
        I(f"v_mov_b32 v7, v{D0}\nv_mov_b32 v8, v{D0 + 2}\nv_rcp_f32 v53, v53")
        mm(D0, 0, S[2], True); rd(5, S[2], 1)
        I("v_mul_f32 v9, v52, v53")
        mm(D0, 1, S[4], False); mm(D0, 2, S[1], False)
        I("v_mul_f32_dpp v52, v9, v7 row_newbcast:0 row_mask:0xf bank_mask:0xf")
        mm(D1, 0, S[3], True)
        I("v_mov_b32_dpp v7, v9 row_newbcast:0 row_mask:0xf bank_mask:0xf")
        mm(D1, 1, S[5], False)
        I("v_fmac_f32_dpp v52, v9, v8 row_newbcast:2 row_mask:0xf bank_mask:0xf")
        mm(D1, 2, S[2], False)
        I("v_mov_b32_dpp v8, v9 row_newbcast:2 row_mask:0xf bank_mask:0xf")
        fold(53)
        I("v_permlane32_swap_b32 v52, v53\nv_add_f32 v52, v52, v53\nv_mov_b32 v53, v52\nv_permlane16_swap_b32 v52, v53\nv_add_f32 v52, v52, v53")
        I("v_mov_b32_dpp v53, v52 quad_perm:[1,1,3,3] row_mask:0xf bank_mask:0xf\nv_cvt_pk_bf16_f32 v52, v52, v53\nv_min_u32 v52, -2, v52")
        I(f"s_mov_b64 exec, {sp(mWOST)}")
        self.publish(f"buffer_store_dword v52, v11, {s4(WS)}, s{sOffP} offen {{pol}}", False)
        I("s_mov_b64 exec, -1")
    def yg_addr(self):
        self.a.I(f"v_lshrrev_b32 v54, 4, v0\nv_mul_u32_u24 v54, {H3_H}, v54\nv_and_b32 v9, 15, v0\nv_lshl_add_u32 v54, v9, 4, v54")
    def yg_pre(self, b, L):
        I = self.a.I
        if h3(4 * b + L)[1] is None: I(f"s_add_u32 s{sOffG}, s{sX3g0}, {h3(4 * b + L)[2]}\ns_add_u32 s{sOffG2}, s{sX3g1}, {h3(4 * b + L)[2]}")
        else: I(f"s_mul_i32 s{sT0}, s{sWave}, {8 * H3_H}\ns_add_u32 s{sOffG}, s{sH3grp}, s{sT0}\ns_add_u32 s{sOffG}, s{sOffG}, {(4 * b + L) * H3_I}\ns_add_u32 s{sOffG2}, s{sOffG}, {4 * H3_H}")
        for j in range(4): I(f"v_and_b32 v{16 + j}, 0x3f803f80, v{vMask + j}")
        for j in range(8): I(f"v_mov_b32 v{8 + j}, 0")
    def yg(self, b, L, between=None, pre_bar=None, hoisted=False, after=None):
        a = self.a; a.comment(f"---- row {b} layer {L}: gather output partials, residual"); I = a.I; inst = 4 * b + L; Yb = Y + YSZ * b
        if not hoisted: self.yg_addr(); self.yg_pre(b, L)
        loads = [f"buffer_load_dwordx4 {v4(8 + 4 * j)}, v54, {s4(WS)}, s{(sOffG, sOffG2)[j]} offen sc1" for j in range(2)]
        self.gather(loads, range(8, 16), 7, between=between, emask=sp(mN10),
                    spec=["v_mfma_f32_16x16x32_bf16 v[20:23], v[16:19], v[8:11], 0", "v_mfma_f32_16x16x32_bf16 v[20:23], v[16:19], v[12:15], v[20:23]"])
        if after: after()
        I(f"v_and_b32 v7, 15, v0\nv_lshlrev_b32 v7, 5, v7\nv_and_b32 v54, 16, v0\nv_add3_u32 v7, v7, v54, s{sYw}")
        I(f"s_mov_b32 exec_lo, s{mN10}\ns_mov_b32 exec_hi, 0\nds_write_b128 v7, v[20:23] offset:{YSZ * b}\ns_mov_b64 exec, -1")
        I(f"v_lshl_add_u32 v7, v0, 2, s{sXROWw}\nds_read_b32 v54, v7 offset:{640 * b}")
        I(f"v_lshlrev_b32 v14, 3, v0\nv_add_u32 v14, {Yb}, v14")
        if L < 3: self.wq_addr(b, L + 1)
        if pre_bar: pre_bar()
        a.barrier()
        I("s_mov_b32 exec_hi, 0xff")
        I("ds_read2_b64 v[8:11], v14 offset0:0 offset1:40\nds_read2_b64 v[12:15], v14 offset0:80 offset1:120")
        I("v_lshlrev_b32 v16, 16, v54\nv_and_b32 v17, 0xffff0000, v54")
        I("v_pk_add_f32 v[8:9], v[8:9], v[10:11]\nv_pk_add_f32 v[12:13], v[12:13], v[14:15]\nv_pk_add_f32 v[8:9], v[8:9], v[12:13]")
        I("v_cvt_pk_bf16_f32 v8, v8, v9\nv_and_b32 v9, 0xffff0000, v8\nv_lshlrev_b32 v8, 16, v8\nv_pk_add_f32 v[8:9], v[8:9], v[16:17]\nv_cvt_pk_bf16_f32 v8, v8, v9")
        if L < 3: I(f"ds_write_b32 v7, v8 offset:{640 * b}")
        else:
            I(f"s_cmp_lg_u32 s{sWave}, 0"); a.skip_begin("s_cbranch_scc1")
            I(f"s_mul_i32 s{sT0}, s{sS}, 160\nv_lshlrev_b32 v7, 2, v0")
            I(f"buffer_store_dword v8, v7, {s4(XO)}, s{sT0} offen offset:{1280 * b}")
            a.skip_end()
        I("s_mov_b64 exec, -1")
    def touch(self, b, L, lvl=1):
        if self.c.get("touch", 1) < lvl: return
        a = self.a; I = a.I; m = self.c.get("tm", 3)
        I(f"s_mov_b32 m0, {JUNK}\ns_mov_b64 exec, 3")
        if m & 1:
            I(f"v_mov_b32 v31, s{sPub2}\ns_add_u32 s{sT1}, s{h2(4 * b + L)[0]}, {h2(4 * b + L)[2]}")
            I(f"buffer_load_dword v31, {s4(WS)}, s{sT1} offen sc1 lds")
        if L < 3 and m & 2:
            I(f"s_lshl_b32 s{sT0}, s{sWave}, 8\nv_lshl_add_u32 v31, v0, 7, s{sT0}\ns_add_u32 s{sT1}, s{h1(4 * b + L + 1)[0]}, {h1(4 * b + L + 1)[2]}")
            I(f"buffer_load_dword v31, {s4(WS)}, s{sT1} offen sc1 lds")
        I("s_mov_b64 exec, -1")
    def chain_idle(self, b, L, burst=(0, 0, 0), sh=(0, 0, 0, 0), pf=(0, 0, 0)):
        a = self.a; U = lambda n: (lambda: self.stream(n, paced=False))
        if self.c.get("skip3", 1):
            a.I(f"s_cmp_eq_u32 s{sWave}, 3"); a.skip_begin("s_cbranch_scc1")
            self.wo(b, L, hoisted=True)
            a.skip_end()
            self.yg_addr()
            self.stream(sh[0] + sh[1], paced=False)
            self.pfreg = 7; self.prefetch(pf[0])
        else:
            self.wo(b, L, between=U(burst[0]), hoisted=True, hoist=True, after=U(sh[0]))
            self.stream(sh[1], paced=False)
        self.stamp(f"wo{b}{L}")
        self.fs("pub3")
        late = self.c.get("late", 2)
        if L == 3:
            a.I(f"s_cmp_eq_u32 s{sH}, 1\ns_cbranch_scc1 L_out0")
            a.I(f"s_cmp_lg_u32 s{sH}, 0\ns_cbranch_scc1 L_fin")
            self.page()
        dfr = self.deferred; self.deferred = []
        pub = a.vm.last_tag("pub")
        for jobs in dfr: self.clear_prep(jobs); self.clear_issue("clr3")
        if L < 3 and not late: self.wq_pre((L + 1) & 1)
        if late < 2: self.yg_pre(b, L)
        a.wait_tag("pub"); a.barrier()
        if L < 3 and late: self.wq_pre((L + 1) & 1)
        if late >= 2: self.yg_pre(b, L)
        self.yg(b, L, between=lambda: (self.stream(burst[1], paced=False), self.page() if L < 3 else None), hoisted=True, after=lambda: (self.stream(sh[2], paced=False), self.prefetch(pf[1])), pre_bar=(lambda: a.wait_tag("clr3")) if dfr else None)
        self.fs("xrow")
        if L == 3: return
        self.wq_main(b, L + 1, hoisted=True, hoist=True)
        self.fs("pub1")
        self.stamp(f"wq{b}{L+1}")
        self.qg(b, L + 1, between=U(burst[2]), hoisted=True, tail=True, after=lambda: (self.touch(b, L + 1) if self.c.get("touch", 1) != 3 or (b, L) == (0, 1) else None, self.stream(sh[3], paced=False), self.prefetch(pf[2])))
        self.stamp(f"qg{b}{L+1}")
    def build(self):
        a = self.a; c = self.c; W = self.W; WE = c.get("WE", W); HE = c.get("HE", 4); PG = c.get("PG", 0)
        self.off_val = None
        for x in c.get("order", "kvw"):
            if x == "w": self.add_w("wqA", pWQA, "q", 0)
            else:
                for g in range(4): self.add_kv("KA" if x == "k" else "VA", 0, g)
        self.add_w("woA", pWOA, "o", 0); self.add_w("wqB", pWQB, "q", 1)
        for g in range(16): self.add_kv("KB", 0, g)
        wl = c.get("wolate", 0)
        if not wl: self.add_w("woB", pWOB, "o", 1)
        for g in range(16): self.add_kv("VB", 0, g)
        if wl: self.add_w("woB", pWOB, "o", 1, late=True)
        p1 = len(self.items)
        for g in range(4): self.add_kv("KA", 1, g)
        for g in range(4): self.add_kv("VA", 1, g)
        p2 = len(self.items)
        for g in range(16): self.add_kv("KB", 1, g)
        for g in range(16): self.add_kv("VB", 1, g)
        st = self.stream_to; S = lambda n: (lambda: self.stream(n))
        self.limit = p1; a.nobar = c.get('nobar', 0)
        self.setup()
        if c.get("inject", 1): a.inject = self.injector
        if c.get("streamonly"):
            self.limit = 10**9; self.npage = 0; self.hot = []; self.inl = False; self.boost = 0; a.inject = None
            for upto in c["streamonly"]:
                if isinstance(upto, tuple): st(upto[0], W=upto[1])
                else: st(upto)
                self.stamp("end")
            a.wait(vm=0); self.stamp("end")
            return self.finish()
        P = c.get("P1", dict(arr=24, hs=36, qg0=44, wo=76, yg=104, qg1=130))
        for _ in range(c.get("pad", 0)): a.I("s_nop 0")
        a.raw("L_pf0:")
        self.stamp("setup")
        a.wait_tag("clr"); a.barrier()
        self.arrive()
        st(max(P["arr"], self.index_after("wqA") + 4))
        self.stamp("arr")
        a.wait_tag("wqA"); a.barrier()
        self.wq_pre(0); self.wq_main(0, 0, local_ok=False)
        self.wq_pre(0); self.wq_main(1, 0, local_ok=False)
        self.stamp("wq")
        st(P["hs"]); self.handshake(S(W))
        for r, m, base in ((sCTw, 256, CT), (sATTw, 1536, ATT), (sSTATw, 4, STAT), (sCOMBw, 256, ATT)):
            a.I(f"s_mul_i32 s{r}, s{sWave}, {m}\ns_add_u32 s{r}, s{r}, {base}")
        P_ = lambda i: [("P", i)]
        now = [[P_(1), [("C", 1)], P_(2), [("2", 1), ("3", 1)]], [[("3", 2), ("3", 3)], [("3", 4), ("3", 5)], [("3", 6), ("3", 7)], [("3", 6), ("3", 7)]]]
        self.deferred = [[P_(3), P_(5), P_(6), P_(7)], [[("2", 2), ("2", 3)], [("2", 4), ("2", 5)], [("2", 6), ("2", 7)], [("2", 6), ("2", 7)]]]
        if not c.get("defer", 1): now += self.deferred; self.deferred = []
        for jobs in now:
            self.clear_prep(jobs); self.clear_issue("clr2"); self.stream(1)
        self.stamp("hs")
        st(P["qg0"]); self.qg(0, 0, between=S(W))
        self.stamp()
        self.att(0, 0, pre_bar=lambda: (st(self.index_after("woA")), a.wait_tag("woA"), a.wait_tag("clr2")))
        self.stamp()
        self.qg(1, 0, between=S(W))
        self.stamp("qg10")
        st(P["wo"]); self.wo(0, 0, between=S(W))
        self.stamp("wo00")
        st(P["yg"]); self.yg(0, 0, between=S(W), pre_bar=lambda: a.wait_tag("wqB"))
        self.stamp("yg00")
        self.wq_pre(1); self.wq_main(0, 1, hoisted=True)
        self.stream(3, paced=False); self.warm([0, 1, 2, "R"])
        if c.get("cpf") == 2: self.code_prefetch("L_pf1", "L_pf2")
        st(P["qg1"]); self.touch(0, 1, 2) if c.get('touch') == 2 else None; self.qg(0, 1, tail=True, between=lambda: self.stream(min(WE, p1 - self.pos), W=WE))
        a.raw("L_pf1:")
        self.stamp()
        st_ = 64 << c.get("pfs", 6)
        self.pfq = [(KA, o) for o in range(0, 12288, st_)] + [(VA, o) for o in range(0, 12288, st_)] + [(KB, o) for o in range(0, 49152, st_)]
        self.pfreg = 54
        vb0 = self.index_after(("VB", 0, 0)) - 3
        assert self.pos >= vb0 + 3
        if wl: assert self.pos <= p1 - 8
        self.att(0, 1, hook1=lambda g: self.stream(min(1, p1 - self.pos), W=WE) if g % HE == HE - 1 else None,
                 hook2=lambda i: (st(min(p1, vb0 + 3 * (i + 2) + WE - 3), W=WE), self.page() if i == PG else None, self.prefetch(c.get("pf0", 0)) if i == c.get("pfi", 11) else None), pre_bar=lambda: st(p1, W=WE) if wl else a.wait_tag("woB"), hoist=True, qaddr=True)
        if wl: a.wait_tag("woB"); a.barrier()
        assert self.pos == p1
        a.inject = None; self.limit = p2
        self.stamp("p1end")
        self.chain_idle(0, 1, pf=c.get("pf1", (0, 0, 0)))
        bu = c.get("burst", (6, 0, 0, 0)); sh = c.get("sh", (0, 9, 3, 6))
        self.att(0, 2, hookm=lambda: self.stream(bu[0], paced=False), hoist=True, qaddr=True)
        self.stamp("att02")
        self.pfq = [x for x in self.pfq if x[0] == KB]
        self.chain_idle(0, 2, burst=bu[1:], sh=sh, pf=c.get("pf2", (0, 0, 0)))
        self.stamp("p2beg")
        self.limit = len(self.items)
        n0 = c.get("n0", 9); h2 = c.get("h2", 2); q0 = self.pos
        def hook03(g):
            self.stream(max(0, min(3, q0 + n0 - self.pos, p2 + 3 * g + 3 - self.pos)), paced=False)
        self.att(0, 3, hook1=hook03, hook2=lambda i: self.stream(1, paced=False) if i % h2 == h2 - 1 else None, qaddr=True)
        self.stamp("att03")
        a.raw("L_pf2:")
        P = c.get("P2", dict(att=8, wo=34, yg=62, qg=80))
        if c.get("inject", 1): a.inject = self.injector
        st(p2 + P.get("att", 0))
        self.att(1, 0, guard=True, hook2=lambda i: self.stream(2))
        self.stamp("att10")
        st(p2 + P["wo"]); self.stamp("a"); self.wo(1, 0, between=S(W)); self.stamp("wo10"); self.wo(0, 3, between=S(W)); self.stamp("wo03")
        st(p2 + P["yg"]); self.stamp("b"); self.yg(1, 0, between=S(W)); self.stamp("yg10")
        self.wq_pre(1); self.wq_main(1, 1, hoisted=True)
        self.stream(3, paced=False); self.warm([3, 4, 5, 6])
        if c.get("cpf") == 2: self.code_prefetch("L_pf3", "L_pf9")
        st(p2 + P["qg"]); self.stamp("c"); self.touch(1, 1, 2) if c.get('touch') == 2 else None; self.qg(1, 1, tail=True, between=lambda: self.stream(WE, W=WE))
        a.raw("L_pf3:")
        self.stamp("qg11")
        vb1 = p2 + 48
        self.att(1, 1, hook1=lambda g: self.stream(1, W=WE) if g % HE == HE - 1 else None,
                 hook2=lambda i: (st(min(len(self.items), vb1 + 3 * (i + 2) + WE - 3), W=WE), self.page() if i == PG else None), hoist=True, qaddr=True)
        assert self.pos == len(self.items)
        a.inject = None
        self.stamp("p2end")
        self.chain_idle(1, 1)
        self.fine_on = c.get("fine") == 1
        self.fs("q_ready")
        self.att(1, 2, hoist=True, qaddr=True)
        self.stamp("att12")
        self.chain_idle(1, 2)
        self.fs("q_ready")
        if c.get("fine") == 2: self.fine_on = True; self.fs("q_ready")
        self.att(1, 3, hoist=True, qaddr=True)
        self.stamp("att13")
        self.chain_idle(1, 3)
        a.I("s_branch L_fin"); a.raw("L_out0:"); a.I("s_nop 7"); a.wait(vm=0, lg=0)
        self.yg(0, 3)
        a.raw("L_fin:"); a.I("s_nop 7")
        if c.get("hold"):
            a.raw("L_hold:"); a.I(f"s_memrealtime s[38:39]"); a.wait(lg=0)
            a.I(f"s_sub_u32 s38, s38, s{98 if c.get('holdat') else sST}\ns_cmp_lt_u32 s38, {c['hold']}\ns_cbranch_scc1 L_hold")
        self.fs("end")
        self.stamp("end")
        return self.finish()
    def finish(self):
        a = self.a; c = self.c
        if c.get("fine"):
            a.wait(lg=0)
            for i in range(self.nfine): a.I(f"v_writelane_b32 v{vStamp}, s{FS[i]}, {i}")
            print("fine stamps:", self.fnames)
        if c.get("diag"):
            a.I("s_sleep 100")
            a.I(f"v_writelane_b32 v{vStamp}, s{sRetry}, 62\nv_writelane_b32 v{vStamp}, s{sLocal}, 63")
            a.I(f"s_lshl_b32 s{sT0}, s{sWG}, 10\ns_lshl_b32 s{sT1}, s{sWave}, 8\ns_add_u32 s{sT0}, s{sT0}, s{sT1}\ns_add_u32 s{sT0}, s{sT0}, {DIAG}\nv_lshlrev_b32 v7, 2, v0")
            a.I(f"buffer_store_dword v{vStamp}, v7, {s4(WS)}, s{sT0} offen")
        if c.get("diag") and not c.get("fine"): print("stamps:", " ".join(self.snames))
        a.raw("L_end:"); a.raw("  s_endpgm")
        if c.get("pages", 1): self.hot = [f".p2align {c.get('hotal', 12)}\nLstR:\n  s_setpc_b64 {sp(sRet)}"] + self.hot
        a.tail = self.hot + a.tail
        a.tail.append("L_pf9:\n  s_endpgm")
        body = a.text()
        return (HEAD + f"; @launch grid=(256,1,1) block=(256,1,1) lds={LDS_BYTES}\n" + DOC
                + f'.amdgcn_target "amdgcn-amd-amdhsa--gfx950"\n.text\n.globl {NAME}\n.p2align 8\n.type {NAME},@function\n{NAME}:\n'
                + body + f'.section .rodata,"a"\n.p2align 6\n.amdhsa_kernel {NAME}\n  .amdhsa_next_free_vgpr 512\n  .amdhsa_next_free_sgpr 102\n'
                + "  .amdhsa_accum_offset 256\n  .amdhsa_group_segment_fixed_size 0\n  .amdhsa_kernarg_size 104\n  .amdhsa_user_sgpr_count 2\n"
                + "  .amdhsa_user_sgpr_kernarg_segment_ptr 1\n  .amdhsa_system_sgpr_workgroup_id_x 1\n.end_amdhsa_kernel\n")

def generate(cfg):
    global COMPACT1; COMPACT1 = cfg.get('c1', 0)
    global H1_I, H1_H, H1_S, H2, H2_I, H2_H, H2_S, H3, H3_I, H3_S, H3_H
    H1_S = cfg.get("H1S", 2048); H1_H = cfg.get("H1H", 8 * H1_S); H1_I = 32 * H1_H
    H2_S = cfg.get("H2S", 384); H2_H = cfg.get("H2H", 8 * H2_S if H2_S != 384 else 4096); H2_I = 32 * H2_H; H2 = cfg.get("H2B", 8 * H1_I); assert H2 >= 8 * H1_I
    H3_H = cfg.get("H3H", 192); H3_S = cfg.get("H3S", 32 * H3_H); H3_I = cfg.get("H3I", max(8 * H3_S, 32 * H3_H)); H3 = cfg.get("H3B", H2 + 8 * H2_I); assert H3 >= H2 + 8 * H2_I
    global USE_HOT; USE_HOT = cfg.get("hot", 0)
    assert H3 + 8 * H3_I <= (6 << 20) and not (USE_HOT and COMPACT1) and H3_H <= 256
    return Gen(cfg).build()
if __name__ == "__main__":
    cfg = eval(sys.argv[2]) if len(sys.argv) > 2 else {}
    open(sys.argv[1], "w").write(generate(cfg))
```

```python
import sys, math
from dsl import Asm

NAME = "interleave_layers__sliding_block_cached__gqa_block_cached__decode_kernel"
HEAD = open("interleave_layers__sliding_block_cached__gqa_block_cached__decode.s.ref").read().split("; Override")[0]

KV_BYTES = 2 * 32 * 4096 * 384
BSTR = 32 * 4096 * 384
HSTR = 4096 * 384
W_BYTES = 640 * 6144 * 2
WS_BYTES = 434115584
H1_I, H1_H, H1_S = 524288, 16384, 2048
H2 = 8 * H1_I; H2_I, H2_H, H2_S = 131072, 4096, 512
H3 = H2 + 8 * H2_I; H3_I, H3_S, H3_H = 65536, 8192, 256
DIAG = 64 << 20
WQ = (0, 61440); WO = (30720, 92160)
VS = 122880
EX = 147456
ATT = EX; STAT = EX + 6144; Y = EX + 6208; YSZ = 1280; XROW = Y + 2 * YSZ; ONES = XROW + 1280; QB = ONES + 160; CT = QB + 768
JUNK = CT + 2048
LDS_BYTES = JUNK + 256
assert LDS_BYTES <= 163840
sWG, sWave = 2, 3
KA, VA, KB, VB, WS, WT, XO = 4, 8, 12, 16, 20, 24, 28
pX, pKA, pVA, pWQA, pWOA, pKB, pVB, pWQB, pWOB, pOUT, pDBG, pWS = 32, 34, 36, 38, 40, 44, 46, 48, 50, 52, 54, 56
sH, sS, sLocal, sOff, sRetry, sT0, sT1, sT2 = 58, 59, 60, 61, 62, 63, 64, 65
sH1own, sH1grp, sH2own, sH2grp, sH3own, sH3grp, sOffG, sOffP = 66, 67, 68, 69, 70, 71, 72, 73
mODD, mHI8, mHI32, mWOST, mRG1, mRG2, mRG3, m60 = 74, 76, 78, 80, 82, 84, 86, 88
sXcc, sWqRow, sWoRow, sLdsW, sLdsVS = 90, 91, 92, 93, 94
sST = 0; m40 = 98; mBIT1 = 100; mW3 = 42; mN10 = 32; sW2 = 95; sOffG2 = 35; sClr = 0; sM = 34; sOffW = 76; sRet = 78; sX1own, sX1grp, sX2own, sX2grp, sX3own, sX3g0, sX3g1 = 77, 98, 99, 52, 53, 96, 97; sPub2 = 44; sXROWw, sYw, sQw, sCTw, sATTw, sSTATw, sCOMBw = 45, 56, 57, 38, 39, 54, 55; sH1c = 77; mQ13 = 98; mPub1 = 52; mPub2 = 46; mL63 = 36
FS = [40, 48, 50, 24, 26, 88, 90, 92]
def sp(n): return f"s[{n}:{n+1}]"
def s4(n): return f"s[{n}:{n+3}]"
def v2(n): return f"v[{n}:{n+1}]"
def v4(n): return f"v[{n}:{n+3}]"
vLane, vKoff, vVoff, vMask = 0, 1, 2, 3
vQ, vACC, vU = 12, 24, 36
vStamp = 55
QUADS = [f"a[{i}:{i+3}]" for i in range(0, 256, 4)] + [f"v[{i}:{i+3}]" for i in range(56, 256, 4)]
SLOT = {}
_names = [("KA", i) for i in range(4)] + [("VA", 0), ("VA", 1)] + [("KB", i) for i in range(16)] + [("VB", i) for i in range(16)]
for i, n in enumerate(_names): SLOT[n] = QUADS[3 * i:3 * i + 3]
assert SLOT[("VB", 15)][2] == "v[252:255]"
vWq0, vWq1, vWo = 252, 253, 254
SCALE = 192 ** -0.5 * math.log2(math.e)
import struct
def f32(x): return "0x%08x" % struct.unpack("<I", struct.pack("<f", x))[0]

DOC = "; Four decode layers (A, B, A, B) in one persistent launch, one workgroup per CU (4 waves x 512 registers, 157 KiB LDS).\n;  workgroup w: head h = 4*(w&7) + ((w>>3)&3), slice s = w>>5. It owns 1/8 of head h's cache positions for both batch rows,\n"

HOT1 = {2: 0, 3: 1, 6: 2, 7: 3}; HOT2 = {1: 0, 2: 1, 5: 2, 6: 3, 7: 4}
X2 = 1 << 20; X3 = X2 + 5 * 131072
USE_HOT = True
def h1(inst): return (sX1own, sX1grp, HOT1[inst] * 262144, 1024) if USE_HOT and inst in HOT1 else (sH1own, sH1grp, inst * H1_I, H1_S)
def h2(inst): return (sX2own, sX2grp, HOT2[inst] * 131072) if USE_HOT and inst in HOT2 else (sH2own, sH2grp, inst * H2_I)
def h3(inst): return (sX3own, None, HOT2[inst] * 65536) if USE_HOT and inst in HOT2 else (sH3own, sH3grp, inst * H3_I)
def c1(inst): return COMPACT1 and inst >= 2

class Gen:
    def __init__(self, cfg):
        self.c = cfg; self.a = Asm(); self.items = []; self.pos = 0; self.nstamp = 0
        self.W = cfg.get("W", 10); self.limit = 10**9; self.npage = 0; self.hot = []; self.inl = False; self.boost = 0; self.last_cyc = 0; self.fine_on = False; self.nfine = 0; self.fnames = []; self.snames = ['start']
    def add_w(self, name, ptr, kind, ty, late=False):
        pol = self.c.get("wpol", "nt")
        def mk(k):
            def f():
                a = self.a
                if k == 0:
                    off = sWqRow if kind == "q" else sWoRow
                    a.I(f"s_add_u32 s{WT}, s{ptr}, s{off}\ns_addc_u32 s{WT+1}, s{ptr+1}, 0\ns_sub_u32 s{WT+2}, {W_BYTES}, s{off}")
                    if late: a.I("v_mul_u32_u24 v54, 26, v0\nv_lshrrev_b32 v54, 8, v54\nv_mul_u32_u24 v54, 1120, v54\nv_lshl_add_u32 v54, v0, 4, v54")
                base = (WQ if kind == "q" else WO)[ty]
                a.I(f"s_add_u32 m0, s{sLdsW}, {base + 960 * k}")
                if kind == "q": so = 5 * (k // 2) * 12288; vr = vWq1 if k & 1 else vWq0
                else: so = 6 * k * 1280; vr = 54 if late else vWo
                a.I(f"s_mov_b32 s{sOff}, {so}\ns_mov_b64 exec, {sp(m60)}")
                a.I(f"buffer_load_dwordx4 v{vr}, {s4(WT)}, s{sOff} offen {pol} lds", tag=name)
                a.I("s_mov_b64 exec, -1")
            return f
        self.items += [(name, mk(k)) for k in range(8)]
    def add_kv(self, name, b, g):
        srd = {"KA": KA, "VA": VA, "KB": KB, "VB": VB}[name]
        isK = name[0] == "K"; vo = vKoff if isK else vVoff; step = 128 if isK else 256
        pol = self.c.get("kvpol", "nt")
        def mk(c):
            def f():
                a = self.a
                if (name, g) in SLOT:
                    if c == 0: a.I(f"s_mov_b32 s{sOff}, {b * BSTR + g * 3072}")
                    elif self.off_val != (name, b, g): a.I(f"s_mov_b32 s{sOff}, {b * BSTR + g * 3072}")
                    self.off_val = (name, b, g)
                    a.I(f"buffer_load_dwordx4 {SLOT[(name, g)][c]}, v{vo}, {s4(srd)}, s{sOff} offen offset:{step * c} {pol}")
                else:
                    self.off_val = None
                    a.I(f"s_add_u32 m0, s{sLdsVS}, {(g - 2) * 3072 + 1024 * c}\ns_mov_b32 s{sOff}, {b * BSTR + g * 3072 + step * c}")
                    a.I(f"buffer_load_dwordx4 v{vo}, {s4(srd)}, s{sOff} offen {pol} lds", tag=("VS", b, g))
            return f
        self.items += [((name, b, g), mk(c)) for c in range(3)]
    def stream(self, n, paced=True, W=None):
        for _ in range(n):
            if self.pos >= len(self.items): return
            assert self.pos < self.limit, (self.pos, self.limit)
            if paced: self.a.pace((W or self.W) + (self.c.get("B", 0) if self.pos < self.boost else 0))
            sv = self.a._in_inject; self.a._in_inject = True
            self.items[self.pos][1](); self.pos += 1; self.last_cyc = self.a.cyc
            if self.c.get("diag") == 3 and self.pos % 5 == 0 and self.pos > 10: self.stamp("pos")
            self.a._in_inject = sv
    def prefetch(self, n):
        a = self.a
        for _ in range(n):
            if not self.pfq: return
            srd, off = self.pfq.pop(0)
            a.I(f"v_lshlrev_b32 v{self.pfreg}, {self.c.get('pfs', 6)}, v0\ns_mov_b32 m0, {JUNK}\ns_mov_b32 s{sOff}, {BSTR + off}")
            a.I(f"buffer_load_dword v{self.pfreg}, {s4(srd)}, s{sOff} offen {self.c.get('pfpol', '')} lds")
            self.off_val = None
    def injector(self):
        a = self.a
        if self.pos < self.limit and a.cyc - self.last_cyc >= self.c.get("T", 330) and a.vm.outstanding() < self.W + self.c.get("XW", 6) + (self.c.get("B", 0) if self.pos < self.boost else 0):
            self.stream(1, paced=False)
    def stream_to(self, upto, **k): self.stream(max(0, upto - self.pos), **k)
    def index_after(self, name):
        return max(i for i, it in enumerate(self.items) if it[0] == name) + 1
    def fs(self, name):
        if not self.fine_on or self.nfine >= len(FS): return
        self.a.I(f"{'s_memrealtime' if self.c.get('rt') else 's_memtime'} {sp(FS[self.nfine])}"); self.nfine += 1; self.fnames.append(name)
    def page(self):
        if not self.c.get("pages", 1): return
        k = self.npage; self.npage += 1
        self.a.I(f"s_branch Lpg{k}"); self.a.raw(f".p2align 12\nLst{k}:\n  s_setpc_b64 {sp(sRet)}\nLpg{k}:")
    def warm(self, ks):
        if not (self.c.get("pages", 1) and self.c.get("warm", 1)): return
        a = self.a
        a.I(f"s_cmp_lg_u32 s{sWave}, 3"); a.skip_begin("s_cbranch_scc1")
        for k in ks: a.I(f"s_call_b64 {sp(sRet)}, Lst{k}")
        a.skip_end()
    def check_slot(self, name, b, g):
        assert self.index_after((name, b, g)) <= self.pos, ("not issued", name, b, g, self.pos)
        if b == 0: assert self.index_after((name, 1, g)) - 3 >= self.pos, ("overwritten", name, g)
    def stamp(self, name=''):
        if self.c.get("marks"): self.a.raw(f"M_{name}_{len(self.snames)}:")
        if self.c.get("holdat") == name:
            self.a.I("s_memrealtime s[98:99]"); self.a.wait(lg=0)
        self.snames.append(f'{name}@{self.pos}')
        if not self.c.get("diag") or self.c.get("fine"): return
        if self.c["diag"] == 3 and name not in ("pos", "end"): self.snames.pop(); return
        if self.c["diag"] == 2 and name not in self.c.get("only", ("p1end", "p2beg", "p2end", "end")): self.snames.pop(); return
        a = self.a
        a.I(f"s_memrealtime {sp(sST)}"); a.wait(lg=0)
        a.I(f"v_writelane_b32 v{vStamp}, s{sST if not self.c.get('rcount') else sRetry}, {self.nstamp}"); self.nstamp += 1
    def publish(self, text, local_ok, tag="pub"):
        a = self.a
        if local_ok and self.c.get("local", True):
            a.I(f"s_cmp_lg_u32 s{sLocal}, 0")
            a.either(text.format(pol=""), text.format(pol="sc1"), tag=tag)
        else: a.I(text.format(pol="sc1"), tag=tag); self.boost = self.pos + self.c.get("KB", 14)
    def gather(self, loads, regs, tmp, between=None, emask=None, sleep=None, first=False, spec=(), vmask=False):
        a = self.a
        if first and between: between(); between = None
        if emask: loads = [f"s_mov_b64 exec, {emask}"] + loads + ["s_mov_b64 exec, -1"]
        for t in loads: a.I(t, tag="gat")
        last = len(a.vm.ent) - 1
        if emask or self.c.get("BG"): self.boost = self.pos + self.c.get("KB", 14)
        if between: between()
        self.fs("issued")
        n = a.vm.need(last)
        if n is not None: a.wait(vm=n)
        chk = a.label("Lc"); rt = a.label("Lr")
        a.raw(f"{chk}:"); a.no_inject += 1
        r = list(regs); ops = []
        ops.append(f"v_max3_u32 v{tmp}, v{r[0]}, v{r[1]}, v{r[2]}"); r = r[3:]
        while len(r) >= 2: ops.append(f"v_max3_u32 v{tmp}, v{tmp}, v{r[0]}, v{r[1]}"); r = r[2:]
        if r: ops.append(f"v_max_u32 v{tmp}, v{tmp}, v{r[0]}")
        ops.append(f"v_cmp_eq_u32 vcc, -1, v{tmp}")
        spec = list(spec)
        k = -(-len(ops) // max(1, len(spec)))
        while ops or spec:
            if spec: a.I(spec.pop(0))
            for t in ops[:k]: a.I(t)
            ops = ops[k:]
        if vmask: a.I(f"s_and_b64 vcc, vcc, {emask}")
        self.inl = self.c.get("inl", 0) and not a.inject
        if not (self.c.get("novalid") and a.inject): a.I(f"s_cbranch_vccz {rt}k" if self.inl else f"s_cbranch_vccnz {rt}")
        if self.c.get("narrow", 3) & (2 if emask else 1):
            loads = ["s_mov_b64 exec, vcc"] + [t for t in loads if not t.startswith("s_mov")] + ["s_mov_b64 exec, -1"]
        self.retry_block(rt, chk, loads, sleep); a.no_inject -= 1
        self.fs("valid")
    def lsleep(self): return None if self.a.inject else self.c.get('lsleep', 0)
    def retry_block(self, rt, chk, loads, sleep=None):
        a = self.a
        if sleep is None: sleep = self.c.get("sleep", 0)
        blk = ([f"  s_sleep {sleep}"] if sleep else []) + ["  " + t for t in loads]
        blk += [f"  s_add_u32 s{sRetry}, s{sRetry}, 1", f"  s_cmp_gt_u32 s{sRetry}, {self.c.get('spin', 2000000)}", "  s_cbranch_scc1 L_end",
                "  s_waitcnt vmcnt(0)", f"  s_branch {chk}"]
        if self.inl: a.out += blk + [f"{rt}k:"]
        elif a.inject: a.tail += [f"{rt}:"] + blk
        else: self.hot += [f"{rt}:"] + blk
        self.inl = False
    def setup(self):
        a = self.a; I = a.I
        I(f"s_cmp_ge_u32 s{sWG}, 256\ns_cbranch_scc1 L_end")
        I(f"s_load_dwordx16 s[32:47], s[0:1], 0\ns_load_dwordx8 s[48:55], s[0:1], 64\ns_load_dwordx2 s[56:57], s[0:1], 96")
        if self.c.get("diag") or self.c.get("hold"): I(f"s_memrealtime s[96:97]")
        I(f"v_lshrrev_b32 v8, 6, v0\nv_and_b32 v0, 63, v0\nv_readfirstlane_b32 s{sWave}, v8")
        I(f"s_and_b32 s{sT0}, s{sWG}, 7\ns_lshl_b32 s{sT0}, s{sT0}, 2\ns_lshr_b32 s{sT1}, s{sWG}, 3\ns_and_b32 s{sT1}, s{sT1}, 3\ns_add_u32 s{sH}, s{sT0}, s{sT1}\ns_lshr_b32 s{sS}, s{sWG}, 5")
        I(f"v_mul_u32_u24 v8, 43, v0\nv_lshrrev_b32 v8, 10, v8\nv_mul_u32_u24 v9, 24, v8\nv_sub_u32 v9, v0, v9\nv_mul_u32_u24 v8, 0x3000, v8\nv_lshl_add_u32 v{vWq0}, v9, 4, v8")
        I(f"v_add_u32 v10, 60, v0\nv_mul_u32_u24 v8, 43, v10\nv_lshrrev_b32 v8, 10, v8\nv_mul_u32_u24 v9, 24, v8\nv_sub_u32 v9, v10, v9\nv_mul_u32_u24 v8, 0x3000, v8\nv_lshl_add_u32 v{vWq1}, v9, 4, v8")
        I(f"s_mul_i32 s{sT0}, s{sS}, {80 * 12288}\ns_mul_i32 s{sT1}, s{sWave}, {20 * 12288}\ns_add_u32 s{sT0}, s{sT0}, s{sT1}\ns_mul_i32 s{sT1}, s{sH}, 384\ns_add_u32 s{sWqRow}, s{sT0}, s{sT1}")
        I(f"s_mul_i32 s{sT0}, s{sH}, {192 * 1280}\ns_mul_i32 s{sT1}, s{sWave}, {48 * 1280}\ns_add_u32 s{sT0}, s{sT0}, s{sT1}\ns_mul_i32 s{sT1}, s{sS}, 160\ns_add_u32 s{sWoRow}, s{sT0}, s{sT1}")
        I(f"s_mul_i32 s{sLdsW}, s{sWave}, 7680\ns_mov_b32 s{m60}, -1\ns_mov_b32 s{m60+1}, 0x0fffffff\ns_mov_b32 s{WT+3}, 0x20000\ns_mov_b32 s{sRetry}, 0")
        I(f"v_and_b32 v8, 15, v0\nv_lshrrev_b32 v9, 4, v0")
        I(f"v_lshrrev_b32 v10, 1, v8\nv_mul_u32_u24 v10, 384, v10\nv_and_b32 v11, 1, v8\nv_lshl_add_u32 v11, v9, 1, v11\nv_lshl_add_u32 v{vKoff}, v11, 4, v10")
        I(f"v_mul_u32_u24 v10, 768, v9\nv_lshl_add_u32 v{vVoff}, v8, 4, v10")
        I(f"s_mul_i32 s{sT0}, s{sH}, {HSTR}\ns_mul_i32 s{sT1}, s{sS}, {128 * 384}\ns_add_u32 s{sT1}, s{sT1}, s{sT0}\ns_mul_i32 s{sT2}, s{sWave}, {32 * 384}\ns_add_u32 s{sT1}, s{sT1}, s{sT2}\ns_add_u32 s{sOffG}, s{sT1}, {3072 * 384}")
        I(f"s_mul_i32 s{sT1}, s{sS}, {512 * 384}\ns_add_u32 s{sT1}, s{sT1}, s{sT0}\ns_mul_i32 s{sT2}, s{sWave}, {128 * 384}\ns_add_u32 s{sOffP}, s{sT1}, s{sT2}")
        I(f"s_mul_i32 s{sLdsVS}, s{sWave}, 6144\ns_add_u32 s{sLdsVS}, s{sLdsVS}, {VS}")
        I(f"s_mov_b32 s{XO+2}, 2560\ns_mov_b32 s{XO+3}, 0x20000\ns_mul_i32 s{sT0}, s{sS}, 160\nv_lshlrev_b32 v7, 2, v0\nv_min_u32 v7, 156, v7")
        for srd, o in ((KA, sOffG), (VA, sOffG), (KB, sOffP), (VB, sOffP)): I(f"s_sub_u32 s{srd+2}, {KV_BYTES}, s{o}\ns_mov_b32 s{srd+3}, 0x20000")
        I(f"s_mov_b32 s{WS+2}, {WS_BYTES}\ns_mov_b32 s{WS+3}, 0x20000")
        I(f"s_mul_i32 s{sH1grp}, s{sH}, {H1_H}\ns_mul_i32 s{sT1}, s{sS}, {H1_S}\ns_add_u32 s{sH1own}, s{sH1grp}, s{sT1}" + (f"\ns_mul_i32 s{sT1}, s{sS}, 768\ns_add_u32 s{sH1c}, s{sH1grp}, s{sT1}" if COMPACT1 else ""))
        I(f"s_mul_i32 s{sH2grp}, s{sH}, {H2_H}\ns_add_u32 s{sH2grp}, s{sH2grp}, {H2}\ns_mul_i32 s{sT1}, s{sS}, {H2_S}\ns_add_u32 s{sH2own}, s{sH2grp}, s{sT1}")
        I(f"s_mul_i32 s{sH3grp}, s{sS}, {H3_S}\ns_add_u32 s{sH3grp}, s{sH3grp}, {H3}\ns_mul_i32 s{sT1}, s{sH}, {H3_H}\ns_add_u32 s{sH3own}, s{sH3grp}, s{sT1}")
        self.clear_prep([[("P", 0)], [("C", 0)], [("P", 4)], [("2", 0), ("3", 0)]])
        a.wait(lg=0)
        if self.c.get("diag"): I(f"v_mov_b32 v{vStamp}, 0\nv_writelane_b32 v{vStamp}, s96, 0"); self.nstamp = 1
        def srds(l):
            for srd, p, o in l: I(f"s_add_u32 s{srd}, s{p}, s{o}\ns_addc_u32 s{srd+1}, s{p+1}, 0")
        def small():
            I(f"s_mov_b32 s{WS}, s{pWS}\ns_mov_b32 s{WS+1}, s{pWS+1}\ns_mov_b32 s{XO}, s{pX}\ns_mov_b32 s{XO+1}, s{pX+1}")
            self.clear_issue("clr")
            I(f"buffer_load_dword v12, v7, {s4(XO)}, s{sT0} offen\nbuffer_load_dword v13, v7, {s4(XO)}, s{sT0} offen offset:1280")
        n0, n1 = self.c.get("I", (12, 28))
        srds([(KA, pKA, sOffG)])
        self.stream(min(n0, 12), paced=False)
        srds([(VA, pVA, sOffG), (KB, pKB, sOffP), (VB, pVB, sOffP)])
        self.stream_to(n0, paced=False)
        small()
        self.stream_to(n1, paced=False)
        if self.c.get("st0"):
            self.stamp("end")
            n = len(a.vm.ent)
            for k in (1, 3, 6, 9, 12, 15, 18, n): a.wait(vm=n - k); self.stamp("end")
        if self.c.get("cpf") == 1: self.code_prefetch("L_pf0", "L_pf9")
        I(f"v_mul_u32_u24 v10, 26, v0\nv_lshrrev_b32 v10, 8, v10\nv_mul_u32_u24 v11, 10, v10\nv_sub_u32 v11, v0, v11\nv_mul_u32_u24 v10, 1280, v10\nv_lshl_add_u32 v{vWo}, v11, 4, v10")
        I("v_and_b32 v10, 1, v0\nv_cmp_eq_u32 vcc, 1, v10\nv_mov_b32 v11, 0xffff\nv_mov_b32 v20, 0xffff0000\nv_cndmask_b32 v11, v11, v20, vcc\nv_bfe_u32 v10, v0, 1, 2")
        for j in range(4): I(f"v_cmp_eq_u32 vcc, {j}, v10\nv_cndmask_b32 v{vMask+j}, 0, v11, vcc")
        for m, lo, hi in ((mODD, 0xaaaaaaaa, 0xaaaaaaaa), (mRG1, 0xffff0000, 0), (mRG2, 0, 0xffff), (mRG3, 0, 0xffff0000), (mWOST, 0x5555, 0x5555), (mN10, 0x03ff03ff, 0x03ff03ff), (mBIT1, 0xcccccccc, 0xcccccccc), (mL63, 0, 0x80000000)) + (((mQ13, 0x1fff1fff, 0x1fff1fff),) if COMPACT1 else ()):
            I(f"s_mov_b32 s{m}, {lo:#x}\ns_mov_b32 s{m+1}, {hi:#x}")
        I(f"s_cmp_eq_u32 s{sWave}, 3\ns_cselect_b64 {sp(mW3)}, -1, 0\ns_min_u32 s{sW2}, s{sWave}, 2")
        if H2_S == 384:
            I(f"s_mul_i32 s{sT0}, s{sS}, -368\ns_add_u32 s{sT0}, s{sT0}, 3072\ns_lshl_b32 s{sPub2}, s{sWave}, 7\ns_cmp_eq_u32 s{sWave}, 3\ns_cselect_b32 s{sPub2}, s{sT0}, s{sPub2}")
            I(f"s_mov_b32 s{mPub2}, 0x55555555\ns_cselect_b32 s{mPub2+1}, 0, s{mPub2}\ns_cselect_b32 s{mPub2}, 0x55, s{mPub2}")
        if self.c.get("nost3"): I(f"s_cmp_lt_u32 s{sWave}, 3\ns_cselect_b32 s{mWOST+1}, 0x5555, 0\ns_cselect_b32 s{mWOST}, 0x5555, 0")
        if H3_H == 160: I(f"s_cmp_lt_u32 s{sWave}, 2\ns_cselect_b32 s{mWOST+1}, 0x5555, 0")
        I(f"s_getreg_b32 s{sXcc}, hwreg(HW_REG_XCC_ID, 0, 4)\ns_add_u32 s{sXcc}, s{sXcc}, 1")
        for r, m, base in ((sXROWw, 160, XROW), (sYw, 320, Y), (sQw, 96, QB)): I(f"s_mul_i32 s{r}, s{sWave}, {m}\ns_add_u32 s{r}, s{r}, {base}")
        I(f"v_add_u32 v10, s{sXROWw}, v7\nv_add_u32 v11, {ONES}, v7\nv_mov_b32 v20, 0x3f803f80")
        I("ds_write_b32 v11, v20\nds_write_b32 v10, v12\nds_write_b32 v10, v13 offset:640")
        I(f"s_mov_b32 s{XO}, s{pOUT}\ns_mov_b32 s{XO+1}, s{pOUT+1}")
        if COMPACT1: I(f"s_mov_b32 s{mPub1}, -1\ns_cmp_eq_u32 s{sWave}, 0\ns_cselect_b32 s{mPub1+1}, 0xfffff, 0\ns_or_b32 s{mPub1+1}, s{mPub1+1}, 0xffff")
    def clear_prep(self, jobs):
        I = self.a.I
        I("v_mov_b32 v16, -1\nv_mov_b32 v17, -1\nv_mov_b32 v18, -1\nv_mov_b32 v19, -1\nv_lshlrev_b32 v14, 4, v0")
        def seg(k, inst, hi):
            if k == "P" and c1(inst): return sH1c, inst * H1_I, (0x1ffff if hi else -1)
            if k in "PC": return h1(inst)[0], h1(inst)[2] + (1024 if k == "C" else 0), -1
            if k == "2": return h2(inst)[0], h2(inst)[2] - 512 * hi, (0x1ffffff if H2_S == 384 else -1)
            return h3(inst)[0], h3(inst)[2] - 512 * hi, (0x3ff if H3_H == 160 else 0xffff if self.c.get('clr256') else 0xfff)
        for w, job in enumerate(jobs):
            lo = seg(*job[0], 0); hi = seg(*job[-1], 1)
            for (r, o, m), dst, md in ((lo, sT1, sClr), (hi, sT2, sClr + 1)):
                if w == 0: I(f"s_add_u32 s{dst}, s{r}, {o & 0xffffffff}\ns_mov_b32 s{md}, {m}")
                else: I(f"s_add_u32 s{sOff}, s{r}, {o & 0xffffffff}\ns_cmp_eq_u32 s{sWave}, {w}\ns_cselect_b32 s{dst}, s{sOff}, s{dst}\ns_cselect_b32 s{md}, {m}, s{md}")
        self.off_val = None
        I(f"v_mov_b32 v15, s{sT1}\nv_mov_b32 v20, s{sT2}\nv_cmp_lt_u32 vcc, 31, v0\nv_cndmask_b32 v15, v15, v20, vcc\nv_add_u32 v15, v15, v14")
        if any(k == "P" and c1(i) for job in jobs for k, i in job):
            I(f"s_mov_b32 s{sT1}, 0\ns_mov_b32 s{sT2}, 0")
            for w, job in enumerate(jobs):
                if job[0][0] == "P" and c1(job[0][1]): I(f"s_cmp_eq_u32 s{sWave}, {w}\ns_cselect_b32 s{sT2}, 0x10000, s{sT2}")
            self.off_val = None; self.a.no_inject += 1
            I(f"s_mul_i32 s{sOff}, s{sS}, -752\ns_add_u32 s{sOff}, s{sOff}, {6144 - 768}\nv_add_u32 v20, s{sOff}, v15\nv_cndmask_b32 v15, v15, v20, {sp(sT1)}")
            self.a.no_inject -= 1
        if H2_S == 384 and any(k == "2" for job in jobs for k, _ in job):
            I(f"s_mov_b32 s{sT1}, 0\ns_mov_b32 s{sT2}, 0")
            for w, job in enumerate(jobs):
                for (k, _), dst in ((job[0], sT1), (job[-1], sT2)):
                    if k == "2": I(f"s_cmp_eq_u32 s{sWave}, {w}\ns_cselect_b32 s{dst}, 0x1000000, s{dst}")
            self.off_val = None; self.a.no_inject += 1
            I(f"s_mul_i32 s{sOff}, s{sS}, -368\ns_add_u32 s{sOff}, s{sOff}, {3072 - 384}\nv_add_u32 v20, s{sOff}, v15\nv_cndmask_b32 v15, v15, v20, {sp(sT1)}")
            self.a.no_inject -= 1
    def clear_issue(self, tag, local_ok=False):
        I = self.a.I
        I(f"s_mov_b64 exec, {sp(sClr)}")
        self.publish(f"buffer_store_dwordx4 v[16:19], v15, {s4(WS)}, 0 offen {{pol}}", local_ok, tag=tag)
        I("s_mov_b64 exec, -1")
    def tlb_touch(self):
        a = self.a; I = a.I
        ent = []
        for p, o, span in ((pWQA, sWqRow, 20 * 12288), (pKA, sOffG, 12288), (pVA, sOffG, 12288), (pWOA, sWoRow, 48 * 1280), (pWQB, sWqRow, 20 * 12288),
                           (pKB, sOffP, 49152), (pWOB, sWoRow, 48 * 1280), (pVB, sOffP, 49152)):
            for b in range(2 if o in (sOffG, sOffP) else 1): ent.append((p, o, b * BSTR))
        if self.c["tlb"] > 1:
            ent += [(pWS, None, 0), (pWS, None, 2 << 20), (pWS, None, 4 << 20), (pDBG, None, 0), (pOUT, None, 0)]
        for i, (p, o, c) in enumerate(ent):
            if o is None: I(f"s_add_u32 s{sT1}, s{p}, {c}\ns_addc_u32 s{sT2}, s{p+1}, 0")
            else:
                I(f"s_add_u32 s{sT1}, s{p}, s{o}\ns_addc_u32 s{sT2}, s{p+1}, 0")
                if c: I(f"s_add_u32 s{sT1}, s{sT1}, {c}\ns_addc_u32 s{sT2}, s{sT2}, 0")
            if i == 0: I(f"v_mov_b32 v14, s{sT1}\nv_mov_b32 v15, s{sT2}")
            else: I(f"v_writelane_b32 v14, s{sT1}, {i}\nv_writelane_b32 v15, s{sT2}, {i}")
        I(f"s_mov_b64 exec, {(1 << len(ent)) - 1}\nglobal_load_dword v250, v[14:15], off nt\ns_mov_b64 exec, -1")
    def code_prefetch(self, lo, hi):
        a = self.a; I = a.I
        l = a.label("Lp")
        I(f"s_getpc_b64 {sp(sT1)}"); a.raw(f"{l}:")
        I(f"s_add_u32 s{sT1}, s{sT1}, {lo}-{l}\ns_addc_u32 s{sT2}, s{sT2}, 0")
        I(f"s_lshr_b32 s{sT0}, s{sWG}, 3\ns_lshl_b32 s{sT0}, s{sT0}, 2\ns_add_u32 s{sT0}, s{sT0}, s{sWave}\ns_lshl_b32 s{sT0}, s{sT0}, 13")
        I(f"v_lshl_add_u32 v30, v0, 7, s{sT0}\nv_cmp_gt_u32 vcc, {hi}-{lo}, v30\ns_mov_b32 m0, {JUNK}")
        I("s_and_b64 exec, vcc, -1"); a.skip_begin("s_cbranch_execz")
        I(f"global_load_lds_dword v30, {sp(sT1)}")
        a.skip_end()
        I("s_mov_b64 exec, -1")
    def arrive(self):
        a = self.a; I = a.I
        I(f"s_cmp_lg_u32 s{sWave}, 0"); a.skip_begin("s_cbranch_scc1")
        I(f"s_and_b32 s{sT0}, s{sWG}, 3\ns_lshl_b32 s{sT0}, s{sT0}, 3\ns_lshl_b32 s{sT0}, s{sXcc}, s{sT0}\ns_and_b32 s{sT1}, s{sWG}, 0xfc")
        I(f"v_mov_b32 v8, s{sT1}\nv_mov_b32 v9, s{sT0}\ns_mov_b64 exec, 1")
        I(f"global_atomic_add v8, v9, {sp(pDBG)} sc1\ns_mov_b64 exec, -1")
        a.skip_end()
    def handshake(self, between):
        a = self.a; I = a.I
        I("v_lshlrev_b32 v7, 2, v0")
        ld = f"global_load_dword v8, v7, {sp(pDBG)} sc1"
        I(ld); last = len(a.vm.ent) - 1
        between()
        n = a.vm.need(last)
        if n is not None: a.wait(vm=n)
        chk = a.label("Lc"); rt = a.label("Lr")
        a.raw(f"{chk}:"); a.no_inject += 1
        I("v_subrev_u32 v9, 0x01010101, v8\nv_not_b32 v10, v8\nv_and_b32 v9, v9, v10\nv_and_b32 v9, 0x80808080, v9\nv_cmp_ne_u32 vcc, 0, v9")
        I(f"s_cbranch_vccnz {rt}")
        self.retry_block(rt, chk, [ld]); a.no_inject -= 1
        if USE_HOT: self.sides()
        I(f"s_and_b32 s{sT0}, s{sWG}, 3\ns_lshl_b32 s{sT0}, s{sT0}, 3\nv_lshrrev_b32 v8, s{sT0}, v8\nv_and_b32 v8, 0xff, v8")
        I(f"s_bfe_u32 s{sT0}, s{sWG}, 0x30002\nv_and_b32 v9, 7, v0\nv_cmp_eq_u32 {sp(sT1)}, s{sT0}, v9\nv_cmp_ne_u32 vcc, s{sXcc}, v8")
        I(f"s_and_b64 vcc, vcc, {sp(sT1)}\ns_cmp_eq_u64 vcc, 0\ns_cselect_b32 s{sLocal}, 1, 0")
    def sides(self):
        a = self.a; I = a.I; a.no_inject += 1
        if USE_HOT == 2: I(f"s_mov_b32 s{sT1}, 0\ns_mov_b32 s{sT2}, 0x01010101")
        else:
            I(f"v_readlane_b32 s{sT1}, v8, 0\nv_readlane_b32 s{sT2}, v8, 1\nv_mov_b32 v9, s{sT1}\nv_mov_b32 v10, s{sT2}\nv_cndmask_b32 v9, v9, v10, {sp(mODD)}\nv_cmp_ne_u32 vcc, v8, v9")
            I(f"s_sub_u32 s{sT1}, s{sT1}, 0x01010101\ns_sub_u32 s{sT2}, s{sT2}, 0x01010101\ns_lshr_b32 s{sT1}, s{sT1}, 2\ns_lshr_b32 s{sT2}, s{sT2}, 2\ns_and_b32 s{sT1}, s{sT1}, 0x01010101\ns_and_b32 s{sT2}, s{sT2}, 0x01010101")
            I(f"s_xor_b32 s{sT0}, s{sT1}, s{sT2}\ns_cmp_eq_u32 s{sT0}, 0x01010101\ns_cselect_b32 s{sLocal}, 1, 0\ns_cmp_eq_u64 vcc, 0\ns_cselect_b32 s{sLocal}, s{sLocal}, 0")
            if self.c.get("pol"): I(f"s_xor_b32 s{sT1}, s{sT1}, 0x01010101\ns_xor_b32 s{sT2}, s{sT2}, 0x01010101")
            I(f"s_cmp_lg_u32 s{sLocal}, 0\ns_cselect_b32 s{sT1}, s{sT1}, 0\ns_cselect_b32 s{sT2}, s{sT2}, 0x01010101")
        def side(dst, k): I(f"s_lshr_b64 s[0:1], {sp(sT1)}, s{k}\ns_and_b32 s{dst}, s0, 1\ns_lshl_b32 s{dst}, s{dst}, 13")
        I(f"s_add_u32 s{sOffP}, s{WS}, {(8 << 20) - 1}\ns_and_b32 s{sOffP}, s{sOffP}, 0xffe00000\ns_sub_u32 s{sOffP}, s{sOffP}, s{WS}")
        I(f"s_and_b32 s{sT0}, s{sWG}, 7\ns_lshl_b32 s{sT0}, s{sT0}, 3"); side(sOffG, sT0)
        I(f"s_add_u32 s{sOffG}, s{sOffG}, s{sOffP}")
        I(f"s_and_b32 s{sT0}, s{sH}, 15\ns_lshl_b32 s{sX1grp}, s{sT0}, 14\ns_add_u32 s{sX1grp}, s{sX1grp}, s{sOffG}\ns_lshl_b32 s0, s{sS}, 10\ns_add_u32 s{sX1own}, s{sX1grp}, s0")
        I(f"s_lshr_b32 s0, s{sT0}, 1\ns_lshl_b32 s0, s0, 14\ns_and_b32 s1, s{sT0}, 1\ns_lshl_b32 s1, s1, 12\ns_add_u32 s0, s0, s1\ns_add_u32 s0, s0, {X2}\ns_add_u32 s{sX2grp}, s0, s{sOffG}\ns_mul_i32 s0, s{sS}, {H2_S}\ns_add_u32 s{sX2own}, s{sX2grp}, s0")
        I(f"s_lshr_b32 s0, s{sS}, 1\ns_lshl_b32 s0, s0, 14\ns_and_b32 s1, s{sS}, 1\ns_lshl_b32 s1, s1, 12\ns_add_u32 s0, s0, s1\ns_add_u32 s{sOffW}, s0, {X3}")
        I(f"s_mul_i32 s0, s{sT0}, {H3_H}\ns_add_u32 s0, s0, s{sOffW}\ns_add_u32 s{sX3own}, s0, s{sOffG}\ns_add_u32 s{sOffW}, s{sOffW}, s{sOffP}")
        for j, dst in enumerate((sX3g0, sX3g1)):
            I(f"s_lshl_b32 s{sT0}, s{sWave}, 4\ns_add_u32 s{sT0}, s{sT0}, {8 * j}"); side(dst, sT0)
            I(f"s_lshl_b32 s0, s{sWave}, 1\ns_add_u32 s0, s0, {j}\ns_and_b32 s0, s0, 3\ns_mul_i32 s0, s0, {4 * H3_H}\ns_add_u32 s{dst}, s{dst}, s0\ns_add_u32 s{dst}, s{dst}, s{sOffW}")
        a.no_inject -= 1
    WQB = [(24, 28, 32), (34, 38, 42), (44, 48, 52)]
    def wq_pre(self, ty):
        a = self.a; I = a.I
        I(f"v_bfe_u32 v7, v0, 2, 2\nv_lshrrev_b32 v9, 4, v0\nv_lshl_add_u32 v8, v9, 3, v7\nv_lshl_add_u32 v7, v9, 2, v7")
        I(f"v_and_b32 v9, 3, v0\nv_lshlrev_b32 v9, 3, v9\ns_mul_i32 s{sT0}, s{sWave}, 96\ns_add_u32 s{sT0}, s{sT0}, {WQ[ty]}\nv_add_u32 v9, s{sT0}, v9")
        I(f"s_movk_i32 s{sT0}, 384\nv_mad_u32_u24 v8, v8, s{sT0}, v9\nv_mad_u32_u24 v7, v7, s{sT0}, v9")
        for T, (b0, b1, b2) in enumerate(self.WQB):
            for t, r in ((0, b0), (1, b1)):
                I(f"ds_read_b64_tr_b16 {v2(r)}, v8 offset:{12288 * t + 32 * T}\nds_read_b64_tr_b16 {v2(r+2)}, v8 offset:{12288 * t + 1536 + 32 * T}")
            I(f"ds_read_b64_tr_b16 {v2(b2)}, v7 offset:{24576 + 32 * T}")
    def wq_addr(self, b, L):
        I = self.a.I
        I(f"v_mov_b32 v22, s{sXROWw}\nv_mov_b32 v23, {ONES - 640 * b}")
        I(f"v_cndmask_b32 v23, v22, v23, {sp(mODD)}\nv_lshrrev_b32 v21, 4, v0\nv_lshl_add_u32 v22, v21, 4, v23\nv_lshl_add_u32 v23, v21, 3, v23")
    def wq_main(self, b, L, local_ok=True, hoisted=False, hoist=False):
        a = self.a; a.comment(f"---- row {b} layer {L}: q projection partial"); I = a.I; inst = 4 * b + L; needC = inst < 2
        if not hoisted: self.wq_addr(b, L)
        I(f"ds_read_b128 v[12:15], v22 offset:{640 * b}\nds_read_b128 v[16:19], v22 offset:{640 * b + 64}\nds_read_b64 v[20:21], v23 offset:{640 * b + 128}")
        if c1(inst):
            I(f"s_mul_i32 s{sT0}, s{sWave}, 192\nv_lshl_add_u32 v7, v0, 2, s{sT0}\ns_mul_i32 s{sT0}, s{sS}, -752\ns_add_u32 s{sT0}, s{sT0}, {6144 - 192}\nv_lshl_add_u32 v23, v0, 2, s{sT0}")
            I(f"v_cndmask_b32 v7, v7, v23, {sp(mRG3)}\ns_add_u32 s{sOffP}, s{sH1c}, {inst * H1_I}")
        else: I(f"s_lshl_b32 s{sT0}, s{sWave}, 8\nv_lshl_add_u32 v7, v0, 2, s{sT0}\ns_add_u32 s{sOffP}, s{h1(inst)[0]}, {h1(inst)[2]}")
        if hoist: self.qg_addr(b, L)
        D = [8, 24, 28]
        for T, (b0, b1, b2) in enumerate(self.WQB):
            I(f"v_mfma_f32_16x16x32_bf16 {v4(D[T])}, v[12:15], {v4(b0)}, 0")
            I(f"v_mfma_f32_16x16x32_bf16 {v4(D[T])}, v[16:19], {v4(b1)}, {v4(D[T])}")
        I("v_mfma_f32_16x16x32_bf16 v[34:37], v[12:15], v[12:15], 0\nv_mfma_f32_16x16x32_bf16 v[34:37], v[16:19], v[16:19], v[34:37]")
        for T, (b0, b1, b2) in enumerate(self.WQB):
            I(f"v_mfma_f32_16x16x16_bf16 {v4(D[T])}, v[20:21], {v2(b2)}, {v4(D[T])}")
        I("v_mfma_f32_16x16x16_bf16 v[34:37], v[20:21], v[20:21], v[34:37]")
        for r in range(2 if needC else 1):
            I(f"v_cndmask_b32 v{22+r}, v{8+r}, v{24+r}, {sp(mRG1)}\nv_cndmask_b32 v{22+r}, v{22+r}, v{28+r}, {sp(mRG2)}\nv_cndmask_b32 v{22+r}, v{22+r}, v34, {sp(mRG3)}\nv_min_u32 v{22+r}, -2, v{22+r}")
            if c1(inst): I(f"s_mov_b64 exec, {sp(mPub1)}")
            self.publish(f"buffer_store_dword v{22+r}, v7, {s4(WS)}, s{sOffP} offen offset:{1024 * r} {{pol}}", local_ok)
            if c1(inst): I("s_mov_b64 exec, -1")
    def qg_addr(self, b, L):
        I = self.a.I
        if c1(4 * b + L):
            I(f"v_and_b32 v23, 15, v0\nv_lshrrev_b32 v54, 4, v0\nv_mul_u32_u24 v54, 768, v54\nv_lshl_add_u32 v54, v23, 4, v54\ns_mul_i32 s{sT0}, s{sWave}, 192\nv_add_u32 v54, s{sT0}, v54")
            I(f"s_add_u32 s{sOffG}, s{sH1grp}, {(4 * b + L) * H1_I}")
            return
        I(f"v_and_b32 v23, 15, v0\nv_lshrrev_b32 v54, 4, v0\nv_mul_u32_u24 v54, {h1(4 * b + L)[3]}, v54\nv_lshl_add_u32 v54, v23, 4, v54\ns_lshl_b32 s{sT0}, s{sWave}, 8")
        I(f"s_add_u32 s{sOffG}, s{h1(4 * b + L)[1]}, s{sT0}\ns_add_u32 s{sOffG}, s{sOffG}, {h1(4 * b + L)[2]}\ns_add_u32 s{sOffG2}, s{sOffG}, {4 * h1(4 * b + L)[3]}")
    def qg(self, b, L, between=None, hoisted=False, after=None, tail=False):
        a = self.a; a.comment(f"---- row {b} layer {L}: gather q partials, LayerNorm scale"); I = a.I; inst = 4 * b + L; needC = inst < 2; ty = L & 1
        if not hoisted: self.qg_addr(b, L)
        loads = [f"buffer_load_dwordx4 v[12:15], v54, {s4(WS)}, s{sOffG} offen sc1", f"buffer_load_dwordx4 v[16:19], v54, {s4(WS)}, s{sOffG2} offen sc1"]
        cc = c1(inst)
        if cc: loads = [f"buffer_load_dwordx4 v[12:15], v54, {s4(WS)}, s{sOffG} offen sc1", f"buffer_load_dwordx4 v[16:19], v36, {s4(WS)}, s{sOffG} offen sc1"]
        def addr2():
            I(f"v_add_u32 v36, 3072, v54\nv_and_b32 v37, 48, v0\nv_add_u32 v37, 6144, v37\ns_mov_b32 vcc_lo, 0x10001000\ns_mov_b32 vcc_hi, 0x10001000")
            I("v_cndmask_b32 v54, v54, v37, vcc\nv_add_u32 v37, 64, v37\nv_cndmask_b32 v36, v36, v37, vcc")
        if needC: loads += [f"buffer_load_dwordx4 v[20:23], v54, {s4(WS)}, s{sOffG} offen offset:1024 sc1", f"buffer_load_dwordx4 v[24:27], v54, {s4(WS)}, s{sOffG2} offen offset:1024 sc1"]
        def pre():
            I(f"v_and_b32 v32, 15, v0\nv_lshrrev_b32 v33, 4, v0\nv_and_b32 v34, 1, v33\nv_lshlrev_b32 v34, 1, v34\nv_lshrrev_b32 v28, 1, v33\nv_or_b32 v34, v34, v28\nv_lshl_add_u32 v34, v32, 2, v34")
            I(f"v_lshl_add_u32 v34, v34, 1, s{sQw}\nv_lshl_add_u32 v29, v0, 2, s{sCTw}")
            if not needC: I(f"ds_read_b32 v20, v29 offset:{1024 * ty}")
            self.q_addr(b)
            I(f"v_mov_b32 v35, {f32(1 / (640 * SCALE))}\nv_mov_b32 v32, {f32(1 / (640 * SCALE * SCALE))}\nv_mov_b32 v33, {f32(1e-5 / (SCALE * SCALE))}")
        first = hoisted and self.c.get('first', 3) & 2
        if cc: addr2()
        if first: pre()
        def shadow():
            if not first: pre()
            if tail and self.c.get("tq", 0): self.tail_addr(b, L)
            if between: between()
        self.gather(loads, range(12, 28 if needC else 20), 28, between=shadow, sleep=self.lsleep(), emask=sp(mQ13) if cc else None, vmask=cc)
        if after: after()
        def red(r):
            I(f"v_pk_add_f32 {v2(r)}, {v2(r)}, {v2(r+4)}\nv_pk_add_f32 {v2(r+2)}, {v2(r+2)}, {v2(r+6)}")
            I(f"v_permlane32_swap_b32 v{r}, v{r+1}\nv_permlane32_swap_b32 v{r+2}, v{r+3}\nv_add_f32 v{r}, v{r}, v{r+1}\nv_add_f32 v{r+2}, v{r+2}, v{r+3}")
            I(f"v_permlane16_swap_b32 v{r}, v{r+2}\nv_add_f32 v{r}, v{r}, v{r+2}")
        red(12)
        I(f"v_readlane_b32 s{sT0}, v12, 12\nv_readlane_b32 s{sT1}, v12, 44")
        if needC: red(20); I(f"v_mul_f32 v20, {f32(SCALE)}, v20\nds_write_b32 v29, v20 offset:{1024 * ty}")
        I(f"s_mov_b32 exec_lo, 0x0fff0fff\ns_mov_b32 exec_hi, 0x0fff0fff")
        I(f"v_mul_f32 v15, s{sT1}, v35\nv_fma_f32 v14, s{sT0}, v32, v33\nv_fma_f32 v14, -v15, v15, v14\nv_max_f32 v14, v33, v14\nv_rsq_f32 v14, v14")
        I(f"v_fma_f32 v12, -v15, v20, v12\nv_mul_f32 v12, v12, v14\nv_cvt_pk_bf16_f32 v12, v12, v12")
        I(f"ds_write_b16 v34, v12 offset:{384 * b}\ns_mov_b64 exec, -1")
        a.barrier()
    def tail_addr(self, b, L):
        I = self.a.I; inst = 4 * b + L
        I(f"v_and_b32 v50, 15, v0\nv_lshlrev_b32 v50, 5, v50\nv_and_b32 v51, 16, v0\nv_add3_u32 v50, v50, v51, s{sATTw}\nv_mov_b32 v51, s{sSTATw}")
        self.wo_addr(b, L)
        I(f"v_mov_b32 v9, {STAT}\nv_lshl_add_u32 v10, v0, 2, s{sCOMBw}")
        if H2_S == 384: I(f"v_lshl_add_u32 v11, v0, 1, s{sPub2}\ns_add_u32 s{sOffP}, s{h2(inst)[0]}, {h2(inst)[2]}")
        else: I(f"s_lshl_b32 s{sT0}, s{sWave}, 7\nv_lshl_add_u32 v11, v0, 1, s{sT0}\ns_add_u32 s{sOffP}, s{h2(inst)[0]}, {h2(inst)[2]}")
    def q_addr(self, b):
        self.a.I(f"v_and_b32 v30, 1, v0\nv_lshrrev_b32 v31, 4, v0\nv_lshlrev_b32 v31, 5, v31\nv_lshl_add_u32 v30, v30, 4, v31\nv_add_u32 v30, {QB + 384 * b}, v30")
    def att(self, b, L, hook1=None, hook2=None, hookm=None, pre_bar=None, guard=False, hoist=False, qaddr=False):
        a = self.a; a.comment(f"---- row {b} layer {L}: attention"); I = a.I; ty = L & 1; G = 16 if ty else 4; Kn = "KB" if ty else "KA"; Vn = "VB" if ty else "VA"
        vM, vL = 52, 53
        if not qaddr: self.q_addr(b)
        for t in range(3): I(f"ds_read_b128 {v4(vQ + 4 * t)}, v30 offset:{128 * t}")
        def lds_v(g):
            a.wait_tag(("VS", b, g))
            I(f"v_lshl_add_u32 v54, v0, 4, s{sLdsVS}")
            for c in range(3): I(f"ds_read_b128 {v4(vU + 2 + 4 * c)}, v54 offset:{(g - 2) * 3072 + 1024 * c}")
        early = (not ty) and L == 2
        if early: lds_v(2)
        if not (qaddr and self.c.get("tq", 0)):
            if self.c.get("fill", 1): a.queue(lambda: self.tail_addr(b, L)); a.drain(self.c.get("fill0", 8))
            else: self.tail_addr(b, L)
        def D(g): return vACC + 4 * (g % 3)
        dm = "row_mask:0xf"; NP = G // 2
        order = list(range(G)) if ty else ([2, 0, 1, 3] if early else [0, 1, 2, 3])
        at = {g: i for i, g in enumerate(order)}
        U = lambda g: vU + at[g] // 2
        bank = lambda g, hi: (1 << (at[g] & 1)) << (2 * hi)
        for g in range(G + 2):
            K = SLOT[(Kn, g)] if g < G else None
            if K: self.check_slot(Kn, b, g)
            e = g - 2
            if K: I(f"v_mfma_f32_16x16x32_bf16 {v4(D(g))}, {K[0]}, {v4(vQ)}, 0")
            if g == 1 and self.c.get("fa"): self.fs("g1")
            if K: a.drain(2)
            if K: I(f"v_mfma_f32_16x16x32_bf16 {v4(D(g))}, {K[1]}, {v4(vQ+4)}, {v4(D(g))}")
            if K and e < 0: a.drain(2)
            if 0 <= e < G: I(f"v_add_f32_dpp v{U(e)}, v{D(e)}, v{D(e)+1} quad_perm:[0,0,2,2] {dm} bank_mask:{bank(e, 0):#x}")
            if K: I(f"v_mfma_f32_16x16x32_bf16 {v4(D(g))}, {K[2]}, {v4(vQ+8)}, {v4(D(g))}")
            if g == G + 1 and NP > 3: I(f"v_max3_f32 v{vM}, v{vU}, v{vU+1}, v{vU+2}\nv_max3_f32 v{vM}, v{vM}, v{vU+3}, v{vU+4}")
            if K and e < 0: a.drain(2)
            if hook1 and g < G: hook1(g)
            if 0 <= e < G: I(f"v_add_f32_dpp v{U(e)}, v{D(e)+2}, v{D(e)+3} quad_perm:[0,0,2,2] {dm} bank_mask:{bank(e, 1):#x}")
        if self.c.get("fa"): self.fs("p1")
        if hookm: hookm()
        if NP > 3: I(f"v_max3_f32 v{vM}, v{vM}, v{vU+5}, v{vU+6}\nv_max_f32 v{vM}, v{vM}, v{vU+7}")
        else: I(f"v_max_f32 v{vM}, v{vU}, v{vU+1}")
        red = ("row_ror:8 row_mask:0xf", "row_ror:4 row_mask:0xf", "row_bcast:15 row_mask:0xa", "row_bcast:31 row_mask:0xc")
        for x in red: I(f"v_max_f32_dpp v{vM}, v{vM}, v{vM} {x} bank_mask:0xf")
        I(f"v_readlane_b32 s{sM}, v{vM}, 63")
        def prob(p): return [f"v_subrev_f32 v{vU+p}, s{sM}, v{vU+p}", f"v_exp_f32 v{vU+p}, v{vU+p}",
                             f"v_mov_b32 v{vL}, v{vU+p}" if p == 0 else f"v_add_f32 v{vL}, v{vL}, v{vU+p}",
                             f"v_cvt_pk_bf16_f32 v{vU+p}, v{vU+p}, v{vU+p}",
                             f"v_mov_b32_dpp v{vU+p}, v{vU+p} quad_perm:[1,1,3,3] {dm} bank_mask:0xf"]
        def diag(i, j):
            d = vQ + 4 * (i & 1) + j; u = vU + i // 2
            if (j >> 1) == (i & 1): I(f"v_and_b32 v{d}, v{u}, v{vMask + j}")
            else: I(f"v_and_b32_dpp v{d}, v{u}, v{vMask + j} {'row_shl:4' if i & 1 else 'row_shr:4'} {dm} bank_mask:0xf bound_ctrl:0")
        a.drain()
        p0 = prob(0); p1 = prob(1)
        for t in (p0[0], p0[1], p1[0], p0[3 - 1], p0[3], p1[1], f"v_mov_b32 v{vM}, s{sM}", p0[4]): I(t)
        pend = p1[2:]
        for j in (0, 1): diag(0, j)
        I(pend.pop(0))
        for j in (2, 3): diag(0, j)
        if guard: a.barrier()
        if self.c.get("fa"): self.fs("p2start")
        lred = []
        for i, g in enumerate(order):
            self.check_slot(Vn, b, g)
            if (Vn, g) in SLOT: V = SLOT[(Vn, g)]
            else:
                if not early: lds_v(g)
                V = [v4(vU + 2 + 4 * c) for c in range(3)]
            A = v4(vQ + 4 * (i & 1))
            nx = i + 1 < G
            if (i & 1) == 1 and i // 2 + 2 < NP: assert not pend; pend = prob(i // 2 + 2)
            if i == G - 2: assert not pend; lred = [f"v_add_f32_dpp v{vL}, v{vL}, v{vL} {x} bank_mask:0xf" for x in red]
            for c in range(3):
                acc = v4(vACC + 4 * c)
                I(f"v_mfma_f32_16x16x32_bf16 {acc}, {A}, {V[c]}, {acc if i else 0}")
                if nx and c < 2: diag(i + 1, 2 * c + 0 if (i + 1) & 1 == 0 else (2 * c + 2) % 4); diag(i + 1, 2 * c + 1 if (i + 1) & 1 == 0 else (2 * c + 3) % 4)
                if pend: I(pend.pop(0))
                if lred: I(lred.pop(0))
                if i == 0 and c == 1: I(f"ds_write_b32 v51, v{vM}")
                if i == G - 1 and c == 1: I(f"s_mov_b64 exec, {sp(mL63)}\nds_write_b32 v51, v{vL} offset:16\ns_mov_b64 exec, -1")
            if early and g == 2: lds_v(3)
            if hook2: hook2(i)
        if self.c.get("fa"): self.fs("p2end")
        for c, (lo, hi) in enumerate(((0xffffffff, 0), (0x00ff00ff, 0xff00ff00), (0, 0xffffffff))):
            I(f"s_mov_b32 exec_lo, {lo:#x}\ns_mov_b32 exec_hi, {hi:#x}\nds_write_b128 v50, {v4(vACC + 4 * c)} offset:{512 * c}")
        I("s_mov_b64 exec, -1")
        if pre_bar: pre_bar()
        self.fs("att_end")
        a.barrier()
        self.combine(b, L)
        self.fs("pub2")
    def combine(self, b, L):
        a = self.a; I = a.I; inst = 4 * b + L; a.comment("merge the four waves' partials and publish")
        I("ds_read_b128 v[44:47], v9\nds_read_b128 v[48:51], v9 offset:16")
        for i in range(0, 8, 2): I(f"ds_read2st64_b32 {v2(12 + i)}, v10 offset0:{3 * i} offset1:{3 * i + 3}")
        I("v_max3_f32 v52, v44, v45, v46\nv_max_f32 v52, v52, v47")
        for w in range(4): I(f"v_sub_f32 v{44+w}, v{44+w}, v52")
        for w in range(4): I(f"v_exp_f32 v{44+w}, v{44+w}")
        for w in range(4): I(f"v_add_f32 v{12 + 2 * w}, v{12 + 2 * w}, v{13 + 2 * w}")
        I("v_mul_f32 v20, v44, v12\nv_fmac_f32 v20, v45, v14\nv_fmac_f32 v20, v46, v16\nv_fmac_f32 v20, v47, v18")
        I("v_mul_f32 v53, v44, v48\nv_fmac_f32 v53, v45, v49")
        I("v_mov_b32_dpp v21, v20 quad_perm:[1,1,3,3] row_mask:0xf bank_mask:0xf")
        I("v_fmac_f32 v53, v46, v50\nv_fmac_f32 v53, v47, v51\nv_cvt_pk_bf16_f32 v20, v20, v21")
        I(f"v_cndmask_b32 v52, v52, v53, {sp(mBIT1)}\nv_cndmask_b32 v20, v20, v52, {sp(mW3)}\nv_min_u32 v20, -2, v20")
        I(f"s_mov_b64 exec, {sp(mPub2)}" if H2_S == 384 else f"s_not_b64 exec, {sp(mODD)}")
        self.publish(f"buffer_store_dword v20, v11, {s4(WS)}, s{sOffP} offen {{pol}}", True)
        I("s_mov_b64 exec, -1")
    def wo_addr(self, b, L):
        I = self.a.I
        I(f"v_bfe_u32 v8, v0, 1, 3\nv_lshrrev_b32 v9, 4, v0\nv_and_b32 v7, 1, v0\nv_lshl_add_u32 v7, v9, 1, v7\nv_lshlrev_b32 v7, 4, v7\ns_movk_i32 s{sT0}, {H2_S}\nv_mad_u32_u24 v7, v8, s{sT0}, v7")
        I(f"v_lshl_add_u32 v8, v9, 1, v8\nv_and_b32 v8, 7, v8\nv_mul_u32_u24 v8, {16 if H2_S == 384 else H2_S}, v8\ns_add_u32 s{sOffW}, s{h2(4 * b + L)[1]}, {h2(4 * b + L)[2]}")
    def wo(self, b, L, between=None, hoisted=False, hoist=False, after=None):
        a = self.a; a.comment(f"---- row {b} layer {L}: gather attention partials, output projection partial"); I = a.I; inst = 4 * b + L; ty = L & 1
        if not hoisted: self.wo_addr(b, L)
        loads = [f"buffer_load_dwordx2 v[52:53], v8, {s4(WS)}, s{sOffW} offen offset:{3072 if H2_S == 384 else 384} sc1"]
        loads += [f"buffer_load_dwordx4 {v4(12 + 4 * t)}, v7, {s4(WS)}, s{sOffW} offen offset:{128 * t} sc1" for t in range(3)]
        S = [24, 28, 32, 36, 40, 44]
        def rd(kk, reg, tile):
            o = 10240 * (kk >> 1) + 1280 * (kk & 1) + 32 * tile
            I(f"ds_read_b64_tr_b16 {v2(reg)}, v10 offset:{o}\nds_read_b64_tr_b16 {v2(reg + 2)}, v10 offset:{o + 640}")
        def pre():
            I(f"v_bfe_u32 v10, v0, 2, 2\nv_and_b32 v11, 48, v0\nv_add_u32 v10, v10, v11\nv_mul_u32_u24 v10, 160, v10\nv_and_b32 v11, 3, v0\nv_lshl_add_u32 v10, v11, 3, v10")
            I(f"s_lshl_b32 s{sT0}, s{sW2}, 6\ns_add_u32 s{sT1}, s{sT0}, {WO[ty]}\nv_add_u32 v10, s{sT1}, v10")
            for kk in range(6): rd(kk, S[kk], 0)
            I(f"v_and_b32 v11, 15, v0\nv_lshlrev_b32 v11, 1, v11\nv_and_b32 v9, 32, v0\nv_add3_u32 v11, v11, v9, s{sT0}\ns_add_u32 s{sOffP}, s{h3(inst)[0]}, {h3(inst)[2]}")
            if hoist: self.yg_addr()
            if between: between()
        D0, D1 = 48, 24
        mt = lambda D, t, B, first: f"v_mfma_f32_16x16x32_bf16 {v4(D)}, {v4(12 + 4 * t)}, {v4(B)}, {0 if first else v4(D)}"
        def mm(*k): I(mt(*k))
        self.gather(loads, [52, 53] + list(range(12, 24)), 9, between=pre, sleep=self.lsleep(), first=hoisted and self.c.get('first', 3) & 1,
                    spec=[mt(D0, 0, S[0], True), mt(D0, 1, S[2], False), mt(D0, 2, S[4], False)])
        if after: after()
        dpp = lambda op, d, x, ctl: I(f"{op}_dpp v{d}, v{x}, v{x} {ctl} row_mask:0xf bank_mask:0xf")
        def fold(out):
            I(f"v_add_f32 v{D0}, v{D0}, v{D1 + 1}\nv_add_f32 v{D0 + 2}, v{D0 + 2}, v{D1 + 3}\nv_mul_f32 v{out}, v7, v{D0}\nv_fmac_f32 v{out}, v8, v{D0 + 2}")
        dpp("v_max_f32", 9, 52, "row_ror:8")
        mm(D1, 0, S[1], True); rd(0, S[2], 1); dpp("v_max_f32", 9, 9, "row_ror:4")
        mm(D1, 1, S[3], False); rd(2, S[4], 1); dpp("v_max_f32", 9, 9, "row_ror:2")
        mm(D1, 2, S[5], False); I("v_sub_f32 v52, v52, v9\nv_exp_f32 v52, v52"); rd(4, S[1], 1); I("v_mul_f32 v53, v52, v53")
        rd(1, S[3], 1); dpp("v_add_f32", 53, 53, "row_ror:8")
        rd(3, S[5], 1); dpp("v_add_f32", 53, 53, "row_ror:4")
        I(f"v_add_f32 v{D0}, v{D0}, v{D1 + 1}\nv_add_f32 v{D0 + 2}, v{D0 + 2}, v{D1 + 3}")
        dpp("v_add_f32", 53, 53, "row_ror:2")
        I(f"v_mov_b32 v7, v{D0}\nv_mov_b32 v8, v{D0 + 2}\nv_rcp_f32 v53, v53")
        mm(D0, 0, S[2], True); rd(5, S[2], 1)
        I("v_mul_f32 v9, v52, v53")
        mm(D0, 1, S[4], False); mm(D0, 2, S[1], False)
        I("v_mul_f32_dpp v52, v9, v7 row_newbcast:0 row_mask:0xf bank_mask:0xf")
        mm(D1, 0, S[3], True)
        I("v_mov_b32_dpp v7, v9 row_newbcast:0 row_mask:0xf bank_mask:0xf")
        mm(D1, 1, S[5], False)
        I("v_fmac_f32_dpp v52, v9, v8 row_newbcast:2 row_mask:0xf bank_mask:0xf")
        mm(D1, 2, S[2], False)
        I("v_mov_b32_dpp v8, v9 row_newbcast:2 row_mask:0xf bank_mask:0xf")
        fold(53)
        I("v_permlane32_swap_b32 v52, v53\nv_add_f32 v52, v52, v53\nv_mov_b32 v53, v52\nv_permlane16_swap_b32 v52, v53\nv_add_f32 v52, v52, v53")
        I("v_mov_b32_dpp v53, v52 quad_perm:[1,1,3,3] row_mask:0xf bank_mask:0xf\nv_cvt_pk_bf16_f32 v52, v52, v53\nv_min_u32 v52, -2, v52")
        I(f"s_mov_b64 exec, {sp(mWOST)}")
        self.publish(f"buffer_store_dword v52, v11, {s4(WS)}, s{sOffP} offen {{pol}}", False)
        I("s_mov_b64 exec, -1")
    def yg_addr(self):
        self.a.I(f"v_lshrrev_b32 v54, 4, v0\nv_mul_u32_u24 v54, {H3_H}, v54\nv_and_b32 v9, 15, v0\nv_lshl_add_u32 v54, v9, 4, v54")
    def yg_pre(self, b, L):
        I = self.a.I
        if h3(4 * b + L)[1] is None: I(f"s_add_u32 s{sOffG}, s{sX3g0}, {h3(4 * b + L)[2]}\ns_add_u32 s{sOffG2}, s{sX3g1}, {h3(4 * b + L)[2]}")
        else: I(f"s_mul_i32 s{sT0}, s{sWave}, {8 * H3_H}\ns_add_u32 s{sOffG}, s{sH3grp}, s{sT0}\ns_add_u32 s{sOffG}, s{sOffG}, {(4 * b + L) * H3_I}\ns_add_u32 s{sOffG2}, s{sOffG}, {4 * H3_H}")
        for j in range(4): I(f"v_and_b32 v{16 + j}, 0x3f803f80, v{vMask + j}")
        for j in range(8): I(f"v_mov_b32 v{8 + j}, 0")
    def yg(self, b, L, between=None, pre_bar=None, hoisted=False, after=None):
        a = self.a; a.comment(f"---- row {b} layer {L}: gather output partials, residual"); I = a.I; inst = 4 * b + L; Yb = Y + YSZ * b
        if not hoisted: self.yg_addr(); self.yg_pre(b, L)
        loads = [f"buffer_load_dwordx4 {v4(8 + 4 * j)}, v54, {s4(WS)}, s{(sOffG, sOffG2)[j]} offen sc1" for j in range(2)]
        self.gather(loads, range(8, 16), 7, between=between, emask=sp(mN10),
                    spec=["v_mfma_f32_16x16x32_bf16 v[20:23], v[16:19], v[8:11], 0", "v_mfma_f32_16x16x32_bf16 v[20:23], v[16:19], v[12:15], v[20:23]"])
        if after: after()
        I(f"v_and_b32 v7, 15, v0\nv_lshlrev_b32 v7, 5, v7\nv_and_b32 v54, 16, v0\nv_add3_u32 v7, v7, v54, s{sYw}")
        I(f"s_mov_b32 exec_lo, s{mN10}\ns_mov_b32 exec_hi, 0\nds_write_b128 v7, v[20:23] offset:{YSZ * b}\ns_mov_b64 exec, -1")
        I(f"v_lshl_add_u32 v7, v0, 2, s{sXROWw}\nds_read_b32 v54, v7 offset:{640 * b}")
        I(f"v_lshlrev_b32 v14, 3, v0\nv_add_u32 v14, {Yb}, v14")
        if L < 3: self.wq_addr(b, L + 1)
        if pre_bar: pre_bar()
        a.barrier()
        I("s_mov_b32 exec_hi, 0xff")
        I("ds_read2_b64 v[8:11], v14 offset0:0 offset1:40\nds_read2_b64 v[12:15], v14 offset0:80 offset1:120")
        I("v_lshlrev_b32 v16, 16, v54\nv_and_b32 v17, 0xffff0000, v54")
        I("v_pk_add_f32 v[8:9], v[8:9], v[10:11]\nv_pk_add_f32 v[12:13], v[12:13], v[14:15]\nv_pk_add_f32 v[8:9], v[8:9], v[12:13]")
        I("v_cvt_pk_bf16_f32 v8, v8, v9\nv_and_b32 v9, 0xffff0000, v8\nv_lshlrev_b32 v8, 16, v8\nv_pk_add_f32 v[8:9], v[8:9], v[16:17]\nv_cvt_pk_bf16_f32 v8, v8, v9")
        if L < 3: I(f"ds_write_b32 v7, v8 offset:{640 * b}")
        else:
            I(f"s_cmp_lg_u32 s{sWave}, 0"); a.skip_begin("s_cbranch_scc1")
            I(f"s_mul_i32 s{sT0}, s{sS}, 160\nv_lshlrev_b32 v7, 2, v0")
            I(f"buffer_store_dword v8, v7, {s4(XO)}, s{sT0} offen offset:{1280 * b}")
            a.skip_end()
        I("s_mov_b64 exec, -1")
    def touch(self, b, L, lvl=1):
        if self.c.get("touch", 1) < lvl: return
        a = self.a; I = a.I; m = self.c.get("tm", 3)
        I(f"s_mov_b32 m0, {JUNK}\ns_mov_b64 exec, 3")
        if m & 1:
            I(f"v_mov_b32 v31, s{sPub2}\ns_add_u32 s{sT1}, s{h2(4 * b + L)[0]}, {h2(4 * b + L)[2]}")
            I(f"buffer_load_dword v31, {s4(WS)}, s{sT1} offen sc1 lds")
        if L < 3 and m & 2:
            I(f"s_lshl_b32 s{sT0}, s{sWave}, 8\nv_lshl_add_u32 v31, v0, 7, s{sT0}\ns_add_u32 s{sT1}, s{h1(4 * b + L + 1)[0]}, {h1(4 * b + L + 1)[2]}")
            I(f"buffer_load_dword v31, {s4(WS)}, s{sT1} offen sc1 lds")
        I("s_mov_b64 exec, -1")
    def chain_idle(self, b, L, burst=(0, 0, 0), sh=(0, 0, 0, 0), pf=(0, 0, 0)):
        a = self.a; U = lambda n: (lambda: self.stream(n, paced=False))
        if self.c.get("skip3", 1):
            a.I(f"s_cmp_eq_u32 s{sWave}, 3"); a.skip_begin("s_cbranch_scc1")
            self.wo(b, L, hoisted=True)
            a.skip_end()
            self.yg_addr()
            self.stream(sh[0] + sh[1], paced=False)
            self.pfreg = 7; self.prefetch(pf[0])
        else:
            self.wo(b, L, between=U(burst[0]), hoisted=True, hoist=True, after=U(sh[0]))
            self.stream(sh[1], paced=False)
        self.stamp(f"wo{b}{L}")
        self.fs("pub3")
        late = self.c.get("late", 2)
        if L == 3:
            a.I(f"s_cmp_eq_u32 s{sH}, 1\ns_cbranch_scc1 L_out0")
            a.I(f"s_cmp_lg_u32 s{sH}, 0\ns_cbranch_scc1 L_fin")
            self.page()
        dfr = self.deferred; self.deferred = []
        pub = a.vm.last_tag("pub")
        for jobs in dfr: self.clear_prep(jobs); self.clear_issue("clr3")
        if L < 3 and not late: self.wq_pre((L + 1) & 1)
        if late < 2: self.yg_pre(b, L)
        a.wait_tag("pub"); a.barrier()
        if L < 3 and late: self.wq_pre((L + 1) & 1)
        if late >= 2: self.yg_pre(b, L)
        self.yg(b, L, between=lambda: (self.stream(burst[1], paced=False), self.page() if L < 3 else None), hoisted=True, after=lambda: (self.stream(sh[2], paced=False), self.prefetch(pf[1])), pre_bar=(lambda: a.wait_tag("clr3")) if dfr else None)
        self.fs("xrow")
        if L == 3: return
        self.wq_main(b, L + 1, hoisted=True, hoist=True)
        self.fs("pub1")
        self.stamp(f"wq{b}{L+1}")
        self.qg(b, L + 1, between=U(burst[2]), hoisted=True, tail=True, after=lambda: (self.touch(b, L + 1) if self.c.get("touch", 1) != 3 or (b, L) == (0, 1) else None, self.stream(sh[3], paced=False), self.prefetch(pf[2])))
        self.stamp(f"qg{b}{L+1}")
    def build(self):
        a = self.a; c = self.c; W = self.W; WE = c.get("WE", W); HE = c.get("HE", 4); PG = c.get("PG", 0)
        self.off_val = None
        for x in c.get("order", "kvw"):
            if x == "w": self.add_w("wqA", pWQA, "q", 0)
            else:
                for g in range(4): self.add_kv("KA" if x == "k" else "VA", 0, g)
        self.add_w("woA", pWOA, "o", 0); self.add_w("wqB", pWQB, "q", 1)
        for g in range(16): self.add_kv("KB", 0, g)
        wl = c.get("wolate", 0)
        if not wl: self.add_w("woB", pWOB, "o", 1)
        for g in range(16): self.add_kv("VB", 0, g)
        if wl: self.add_w("woB", pWOB, "o", 1, late=True)
        p1 = len(self.items)
        for g in range(4): self.add_kv("KA", 1, g)
        for g in range(4): self.add_kv("VA", 1, g)
        p2 = len(self.items)
        for g in range(16): self.add_kv("KB", 1, g)
        for g in range(16): self.add_kv("VB", 1, g)
        st = self.stream_to; S = lambda n: (lambda: self.stream(n))
        self.limit = p1; a.nobar = c.get('nobar', 0)
        self.setup()
        if c.get("inject", 1): a.inject = self.injector
        if c.get("streamonly"):
            self.limit = 10**9; self.npage = 0; self.hot = []; self.inl = False; self.boost = 0; a.inject = None
            for upto in c["streamonly"]:
                if isinstance(upto, tuple): st(upto[0], W=upto[1])
                else: st(upto)
                self.stamp("end")
            a.wait(vm=0); self.stamp("end")
            return self.finish()
        P = c.get("P1", dict(arr=24, hs=36, qg0=44, wo=76, yg=104, qg1=130))
        for _ in range(c.get("pad", 0)): a.I("s_nop 0")
        a.raw("L_pf0:")
        self.stamp("setup")
        a.wait_tag("clr"); a.barrier()
        self.arrive()
        st(max(P["arr"], self.index_after("wqA") + 4))
        self.stamp("arr")
        a.wait_tag("wqA"); a.barrier()
        self.wq_pre(0); self.wq_main(0, 0, local_ok=False)
        self.wq_pre(0); self.wq_main(1, 0, local_ok=False)
        self.stamp("wq")
        st(P["hs"]); self.handshake(S(W))
        for r, m, base in ((sCTw, 256, CT), (sATTw, 1536, ATT), (sSTATw, 4, STAT), (sCOMBw, 256, ATT)):
            a.I(f"s_mul_i32 s{r}, s{sWave}, {m}\ns_add_u32 s{r}, s{r}, {base}")
        P_ = lambda i: [("P", i)]
        now = [[P_(1), [("C", 1)], P_(2), [("2", 1), ("3", 1)]], [[("3", 2), ("3", 3)], [("3", 4), ("3", 5)], [("3", 6), ("3", 7)], [("3", 6), ("3", 7)]]]
        self.deferred = [[P_(3), P_(5), P_(6), P_(7)], [[("2", 2), ("2", 3)], [("2", 4), ("2", 5)], [("2", 6), ("2", 7)], [("2", 6), ("2", 7)]]]
        if not c.get("defer", 1): now += self.deferred; self.deferred = []
        for jobs in now:
            self.clear_prep(jobs); self.clear_issue("clr2"); self.stream(1)
        self.stamp("hs")
        st(P["qg0"]); self.qg(0, 0, between=S(W))
        self.stamp()
        self.att(0, 0, pre_bar=lambda: (st(self.index_after("woA")), a.wait_tag("woA"), a.wait_tag("clr2")))
        self.stamp()
        self.qg(1, 0, between=S(W))
        self.stamp("qg10")
        st(P["wo"]); self.wo(0, 0, between=S(W))
        self.stamp("wo00")
        st(P["yg"]); self.yg(0, 0, between=S(W), pre_bar=lambda: a.wait_tag("wqB"))
        self.stamp("yg00")
        self.wq_pre(1); self.wq_main(0, 1, hoisted=True)
        self.stream(3, paced=False); self.warm([0, 1, 2, "R"])
        if c.get("cpf") == 2: self.code_prefetch("L_pf1", "L_pf2")
        st(P["qg1"]); self.touch(0, 1, 2) if c.get('touch') == 2 else None; self.qg(0, 1, tail=True, between=lambda: self.stream(min(WE, p1 - self.pos), W=WE))
        a.raw("L_pf1:")
        self.stamp()
        st_ = 64 << c.get("pfs", 6)
        self.pfq = [(KA, o) for o in range(0, 12288, st_)] + [(VA, o) for o in range(0, 12288, st_)] + [(KB, o) for o in range(0, 49152, st_)]
        self.pfreg = 54
        vb0 = self.index_after(("VB", 0, 0)) - 3
        assert self.pos >= vb0 + 3
        if wl: assert self.pos <= p1 - 8
        self.att(0, 1, hook1=lambda g: self.stream(min(1, p1 - self.pos), W=WE) if g % HE == HE - 1 else None,
                 hook2=lambda i: (st(min(p1, vb0 + 3 * (i + 2) + WE - 3), W=WE), self.page() if i == PG else None, self.prefetch(c.get("pf0", 0)) if i == c.get("pfi", 11) else None), pre_bar=lambda: st(p1, W=WE) if wl else a.wait_tag("woB"), hoist=True, qaddr=True)
        if wl: a.wait_tag("woB"); a.barrier()
        assert self.pos == p1
        a.inject = None; self.limit = p2
        self.stamp("p1end")
        self.chain_idle(0, 1, pf=c.get("pf1", (0, 0, 0)))
        bu = c.get("burst", (6, 0, 0, 0)); sh = c.get("sh", (0, 9, 3, 6))
        self.att(0, 2, hookm=lambda: self.stream(bu[0], paced=False), hoist=True, qaddr=True)
        self.stamp("att02")
        self.pfq = [x for x in self.pfq if x[0] == KB]
        self.chain_idle(0, 2, burst=bu[1:], sh=sh, pf=c.get("pf2", (0, 0, 0)))
        self.stamp("p2beg")
        self.limit = len(self.items)
        n0 = c.get("n0", 9); h2 = c.get("h2", 2); q0 = self.pos
        def hook03(g):
            self.stream(max(0, min(3, q0 + n0 - self.pos, p2 + 3 * g + 3 - self.pos)), paced=False)
        self.att(0, 3, hook1=hook03, hook2=lambda i: self.stream(1, paced=False) if i % h2 == h2 - 1 else None, qaddr=True)
        self.stamp("att03")
        a.raw("L_pf2:")
        P = c.get("P2", dict(att=8, wo=34, yg=62, qg=80))
        if c.get("inject", 1): a.inject = self.injector
        st(p2 + P.get("att", 0))
        self.att(1, 0, guard=True, hook2=lambda i: self.stream(2))
        self.stamp("att10")
        st(p2 + P["wo"]); self.stamp("a"); self.wo(1, 0, between=S(W)); self.stamp("wo10"); self.wo(0, 3, between=S(W)); self.stamp("wo03")
        st(p2 + P["yg"]); self.stamp("b"); self.yg(1, 0, between=S(W)); self.stamp("yg10")
        self.wq_pre(1); self.wq_main(1, 1, hoisted=True)
        self.stream(3, paced=False); self.warm([3, 4, 5, 6])
        if c.get("cpf") == 2: self.code_prefetch("L_pf3", "L_pf9")
        st(p2 + P["qg"]); self.stamp("c"); self.touch(1, 1, 2) if c.get('touch') == 2 else None; self.qg(1, 1, tail=True, between=lambda: self.stream(WE, W=WE))
        a.raw("L_pf3:")
        self.stamp("qg11")
        vb1 = p2 + 48
        self.att(1, 1, hook1=lambda g: self.stream(1, W=WE) if g % HE == HE - 1 else None,
                 hook2=lambda i: (st(min(len(self.items), vb1 + 3 * (i + 2) + WE - 3), W=WE), self.page() if i == PG else None), hoist=True, qaddr=True)
        assert self.pos == len(self.items)
        a.inject = None
        self.stamp("p2end")
        self.chain_idle(1, 1)
        self.fine_on = c.get("fine") == 1
        self.fs("q_ready")
        self.att(1, 2, hoist=True, qaddr=True)
        self.stamp("att12")
        self.chain_idle(1, 2)
        self.fs("q_ready")
        if c.get("fine") == 2: self.fine_on = True; self.fs("q_ready")
        self.att(1, 3, hoist=True, qaddr=True)
        self.stamp("att13")
        self.chain_idle(1, 3)
        a.I("s_branch L_fin"); a.raw("L_out0:"); a.I("s_nop 7"); a.wait(vm=0, lg=0)
        self.yg(0, 3)
        a.raw("L_fin:"); a.I("s_nop 7")
        if c.get("hold"):
            a.raw("L_hold:"); a.I(f"s_memrealtime s[38:39]"); a.wait(lg=0)
            a.I(f"s_sub_u32 s38, s38, s{98 if c.get('holdat') else sST}\ns_cmp_lt_u32 s38, {c['hold']}\ns_cbranch_scc1 L_hold")
        self.fs("end")
        self.stamp("end")
        return self.finish()
    def finish(self):
        a = self.a; c = self.c
        if c.get("fine"):
            a.wait(lg=0)
            for i in range(self.nfine): a.I(f"v_writelane_b32 v{vStamp}, s{FS[i]}, {i}")
            print("fine stamps:", self.fnames)
        if c.get("diag"):
            a.I("s_sleep 100")
            a.I(f"v_writelane_b32 v{vStamp}, s{sRetry}, 62\nv_writelane_b32 v{vStamp}, s{sLocal}, 63")
            a.I(f"s_lshl_b32 s{sT0}, s{sWG}, 10\ns_lshl_b32 s{sT1}, s{sWave}, 8\ns_add_u32 s{sT0}, s{sT0}, s{sT1}\ns_add_u32 s{sT0}, s{sT0}, {DIAG}\nv_lshlrev_b32 v7, 2, v0")
            a.I(f"buffer_store_dword v{vStamp}, v7, {s4(WS)}, s{sT0} offen")
        if c.get("diag") and not c.get("fine"): print("stamps:", " ".join(self.snames))
        a.raw("L_end:"); a.raw("  s_endpgm")
        if c.get("pages", 1): self.hot = [f".p2align {c.get('hotal', 12)}\nLstR:\n  s_setpc_b64 {sp(sRet)}"] + self.hot
        a.tail = self.hot + a.tail
        a.tail.append("L_pf9:\n  s_endpgm")
        body = a.text()
        return (HEAD + f"; @launch grid=(256,1,1) block=(256,1,1) lds={LDS_BYTES}\n" + DOC
                + f'.amdgcn_target "amdgcn-amd-amdhsa--gfx950"\n.text\n.globl {NAME}\n.p2align 8\n.type {NAME},@function\n{NAME}:\n'
                + body + f'.section .rodata,"a"\n.p2align 6\n.amdhsa_kernel {NAME}\n  .amdhsa_next_free_vgpr 512\n  .amdhsa_next_free_sgpr 102\n'
                + "  .amdhsa_accum_offset 256\n  .amdhsa_group_segment_fixed_size 0\n  .amdhsa_kernarg_size 104\n  .amdhsa_user_sgpr_count 2\n"
                + "  .amdhsa_user_sgpr_kernarg_segment_ptr 1\n  .amdhsa_system_sgpr_workgroup_id_x 1\n.end_amdhsa_kernel\n")

def generate(cfg):
    global COMPACT1; COMPACT1 = cfg.get('c1', 0)
    global H1_I, H1_H, H1_S, H2, H2_I, H2_H, H2_S, H3, H3_I, H3_S, H3_H
    H1_S = cfg.get("H1S", 2048); H1_H = cfg.get("H1H", 8 * H1_S); H1_I = 32 * H1_H
    H2_S = cfg.get("H2S", 384); H2_H = cfg.get("H2H", 8 * H2_S if H2_S != 384 else 4096); H2_I = 32 * H2_H; H2 = cfg.get("H2B", 8 * H1_I); assert H2 >= 8 * H1_I
    H3_H = cfg.get("H3H", 192); H3_S = cfg.get("H3S", 32 * H3_H); H3_I = cfg.get("H3I", max(8 * H3_S, 32 * H3_H)); H3 = cfg.get("H3B", H2 + 8 * H2_I); assert H3 >= H2 + 8 * H2_I
    global USE_HOT; USE_HOT = cfg.get("hot", 0)
    assert H3 + 8 * H3_I <= (6 << 20) and not (USE_HOT and COMPACT1) and H3_H <= 256
    return Gen(cfg).build()
if __name__ == "__main__":
    cfg = eval(sys.argv[2]) if len(sys.argv) > 2 else {}
    open(sys.argv[1], "w").write(generate(cfg))
```

```python
import sys, math
from dsl import Asm

NAME = "interleave_layers__sliding_block_cached__gqa_block_cached__decode_kernel"
HEAD = open("interleave_layers__sliding_block_cached__gqa_block_cached__decode.s.ref").read().split("; Override")[0]

KV_BYTES = 2 * 32 * 4096 * 384
BSTR = 32 * 4096 * 384
HSTR = 4096 * 384
W_BYTES = 640 * 6144 * 2
WS_BYTES = 434115584
H1_I, H1_H, H1_S = 524288, 16384, 2048
H2 = 8 * H1_I; H2_I, H2_H, H2_S = 131072, 4096, 512
H3 = H2 + 8 * H2_I; H3_I, H3_S, H3_H = 65536, 8192, 256
DIAG = 64 << 20
WQ = (0, 61440); WO = (30720, 92160)
VS = 122880
EX = 147456
ATT = EX; STAT = EX + 6144; Y = EX + 6208; YSZ = 1280; XROW = Y + 2 * YSZ; ONES = XROW + 1280; QB = ONES + 160; CT = QB + 768
JUNK = CT + 2048
LDS_BYTES = JUNK + 256
assert LDS_BYTES <= 163840
sWG, sWave = 2, 3
KA, VA, KB, VB, WS, WT, XO = 4, 8, 12, 16, 20, 24, 28
pX, pKA, pVA, pWQA, pWOA, pKB, pVB, pWQB, pWOB, pOUT, pDBG, pWS = 32, 34, 36, 38, 40, 44, 46, 48, 50, 52, 54, 56
sH, sS, sLocal, sOff, sRetry, sT0, sT1, sT2 = 58, 59, 60, 61, 62, 63, 64, 65
sH1own, sH1grp, sH2own, sH2grp, sH3own, sH3grp, sOffG, sOffP = 66, 67, 68, 69, 70, 71, 72, 73
mODD, mHI8, mHI32, mWOST, mRG1, mRG2, mRG3, m60 = 74, 76, 78, 80, 82, 84, 86, 88
sXcc, sWqRow, sWoRow, sLdsW, sLdsVS = 90, 91, 92, 93, 94
sST = 0; m40 = 98; mBIT1 = 100; mW3 = 42; mN10 = 32; sW2 = 95; sOffG2 = 35; sClr = 0; sM = 34; sOffW = 76; sRet = 78; sX1own, sX1grp, sX2own, sX2grp, sX3own, sX3g0, sX3g1 = 77, 98, 99, 52, 53, 96, 97; sPub2 = 44; sXROWw, sYw, sQw, sCTw, sATTw, sSTATw, sCOMBw = 45, 56, 57, 38, 39, 54, 55; sH1c = 77; mQ13 = 98; mPub1 = 52; mPub2 = 46; mL63 = 36
FS = [40, 48, 50, 24, 26, 88, 90, 92]
def sp(n): return f"s[{n}:{n+1}]"
def s4(n): return f"s[{n}:{n+3}]"
def v2(n): return f"v[{n}:{n+1}]"
def v4(n): return f"v[{n}:{n+3}]"
vLane, vKoff, vVoff, vMask = 0, 1, 2, 3
vQ, vACC, vU = 12, 24, 36
vStamp = 55
QUADS = [f"a[{i}:{i+3}]" for i in range(0, 256, 4)] + [f"v[{i}:{i+3}]" for i in range(56, 256, 4)]
SLOT = {}
_names = [("KA", i) for i in range(4)] + [("VA", 0), ("VA", 1)] + [("KB", i) for i in range(16)] + [("VB", i) for i in range(16)]
for i, n in enumerate(_names): SLOT[n] = QUADS[3 * i:3 * i + 3]
assert SLOT[("VB", 15)][2] == "v[252:255]"
vWq0, vWq1, vWo = 252, 253, 254
SCALE = 192 ** -0.5 * math.log2(math.e)
import struct
def f32(x): return "0x%08x" % struct.unpack("<I", struct.pack("<f", x))[0]

DOC = "; Four decode layers (A, B, A, B) in one persistent launch, one workgroup per CU (4 waves x 512 registers, 157 KiB LDS).\n;  workgroup w: head h = 4*(w&7) + ((w>>3)&3), slice s = w>>5. It owns 1/8 of head h's cache positions for both batch rows,\n"

HOT1 = {2: 0, 3: 1, 6: 2, 7: 3}; HOT2 = {1: 0, 2: 1, 5: 2, 6: 3, 7: 4}
X2 = 1 << 20; X3 = X2 + 5 * 131072; XP = X3 + 5 * 65536
USE_HOT = True
def h1(inst): return (sX1own, sX1grp, HOT1[inst] * 262144, 1024) if USE_HOT and inst in HOT1 else (sH1own, sH1grp, inst * H1_I, H1_S)
def h2(inst): return (sX2own, sX2grp, HOT2[inst] * 131072) if USE_HOT and inst in HOT2 else (sH2own, sH2grp, inst * H2_I)
def h3(inst): return (sX3own, None, HOT2[inst] * 65536) if USE_HOT and inst in HOT2 else (sH3own, sH3grp, inst * H3_I)
def c1(inst): return COMPACT1 and inst >= 2

class Gen:
    def __init__(self, cfg):
        self.c = cfg; self.a = Asm(); self.items = []; self.pos = 0; self.nstamp = 0
        self.W = cfg.get("W", 10); self.limit = 10**9; self.npage = 0; self.hot = []; self.inl = False; self.boost = 0; self.last_cyc = 0; self.fine_on = False; self.nfine = 0; self.fnames = []; self.snames = ['start']
    def add_w(self, name, ptr, kind, ty, late=False):
        pol = self.c.get("wpol", "nt")
        def mk(k):
            def f():
                a = self.a
                if k == 0:
                    off = sWqRow if kind == "q" else sWoRow
                    a.I(f"s_add_u32 s{WT}, s{ptr}, s{off}\ns_addc_u32 s{WT+1}, s{ptr+1}, 0\ns_sub_u32 s{WT+2}, {W_BYTES}, s{off}")
                    if late: a.I("v_mul_u32_u24 v54, 26, v0\nv_lshrrev_b32 v54, 8, v54\nv_mul_u32_u24 v54, 1120, v54\nv_lshl_add_u32 v54, v0, 4, v54")
                base = (WQ if kind == "q" else WO)[ty]
                a.I(f"s_add_u32 m0, s{sLdsW}, {base + 960 * k}")
                if kind == "q": so = 5 * (k // 2) * 12288; vr = vWq1 if k & 1 else vWq0
                else: so = 6 * k * 1280; vr = 54 if late else vWo
                a.I(f"s_mov_b32 s{sOff}, {so}\ns_mov_b64 exec, {sp(m60)}")
                a.I(f"buffer_load_dwordx4 v{vr}, {s4(WT)}, s{sOff} offen {pol} lds", tag=name)
                a.I("s_mov_b64 exec, -1")
            return f
        self.items += [(name, mk(k)) for k in range(8)]
    def add_kv(self, name, b, g):
        srd = {"KA": KA, "VA": VA, "KB": KB, "VB": VB}[name]
        isK = name[0] == "K"; vo = vKoff if isK else vVoff; step = 128 if isK else 256
        pol = self.c.get("kvpol", "nt")
        def mk(c):
            def f():
                a = self.a
                if (name, g) in SLOT:
                    if c == 0: a.I(f"s_mov_b32 s{sOff}, {b * BSTR + g * 3072}")
                    elif self.off_val != (name, b, g): a.I(f"s_mov_b32 s{sOff}, {b * BSTR + g * 3072}")
                    self.off_val = (name, b, g)
                    a.I(f"buffer_load_dwordx4 {SLOT[(name, g)][c]}, v{vo}, {s4(srd)}, s{sOff} offen offset:{step * c} {pol}")
                else:
                    self.off_val = None
                    a.I(f"s_add_u32 m0, s{sLdsVS}, {(g - 2) * 3072 + 1024 * c}\ns_mov_b32 s{sOff}, {b * BSTR + g * 3072 + step * c}")
                    a.I(f"buffer_load_dwordx4 v{vo}, {s4(srd)}, s{sOff} offen {pol} lds", tag=("VS", b, g))
            return f
        self.items += [((name, b, g), mk(c)) for c in range(3)]
    def stream(self, n, paced=True, W=None):
        for _ in range(n):
            if self.pos >= len(self.items): return
            assert self.pos < self.limit, (self.pos, self.limit)
            if paced: self.a.pace((W or self.W) + (self.c.get("B", 0) if self.pos < self.boost else 0))
            sv = self.a._in_inject; self.a._in_inject = True
            self.items[self.pos][1](); self.pos += 1; self.last_cyc = self.a.cyc
            if self.c.get("diag") == 3 and self.pos % 5 == 0 and self.pos > 10: self.stamp("pos")
            self.a._in_inject = sv
    def prefetch(self, n):
        a = self.a
        for _ in range(n):
            if not self.pfq: return
            srd, off = self.pfq.pop(0)
            a.I(f"v_lshlrev_b32 v{self.pfreg}, {self.c.get('pfs', 6)}, v0\ns_mov_b32 m0, {JUNK}\ns_mov_b32 s{sOff}, {BSTR + off}")
            a.I(f"buffer_load_dword v{self.pfreg}, {s4(srd)}, s{sOff} offen {self.c.get('pfpol', '')} lds")
            self.off_val = None
    def injector(self):
        a = self.a
        if self.pos < self.limit and a.cyc - self.last_cyc >= self.c.get("T", 330) and a.vm.outstanding() < self.W + self.c.get("XW", 6) + (self.c.get("B", 0) if self.pos < self.boost else 0):
            self.stream(1, paced=False)
    def stream_to(self, upto, **k): self.stream(max(0, upto - self.pos), **k)
    def index_after(self, name):
        return max(i for i, it in enumerate(self.items) if it[0] == name) + 1
    def fs(self, name):
        if not self.fine_on or self.nfine >= len(FS): return
        self.a.I(f"{'s_memrealtime' if self.c.get('rt') else 's_memtime'} {sp(FS[self.nfine])}"); self.nfine += 1; self.fnames.append(name)
    def page(self):
        if not self.c.get("pages", 1): return
        k = self.npage; self.npage += 1
        self.a.I(f"s_branch Lpg{k}"); self.a.raw(f".p2align 12\nLst{k}:\n  s_setpc_b64 {sp(sRet)}\nLpg{k}:")
    def warm(self, ks):
        if not (self.c.get("pages", 1) and self.c.get("warm", 1)): return
        a = self.a
        a.I(f"s_cmp_lg_u32 s{sWave}, 3"); a.skip_begin("s_cbranch_scc1")
        for k in ks: a.I(f"s_call_b64 {sp(sRet)}, Lst{k}")
        a.skip_end()
    def check_slot(self, name, b, g):
        assert self.index_after((name, b, g)) <= self.pos, ("not issued", name, b, g, self.pos)
        if b == 0: assert self.index_after((name, 1, g)) - 3 >= self.pos, ("overwritten", name, g)
    def stamp(self, name=''):
        if self.c.get("marks"): self.a.raw(f"M_{name}_{len(self.snames)}:")
        if self.c.get("holdat") == name:
            self.a.I("s_memrealtime s[98:99]"); self.a.wait(lg=0)
        self.snames.append(f'{name}@{self.pos}')
        if not self.c.get("diag") or self.c.get("fine"): return
        if self.c["diag"] == 3 and name not in ("pos", "end"): self.snames.pop(); return
        if self.c["diag"] == 2 and name not in self.c.get("only", ("p1end", "p2beg", "p2end", "end")): self.snames.pop(); return
        a = self.a
        a.I(f"s_memrealtime {sp(sST)}"); a.wait(lg=0)
        a.I(f"v_writelane_b32 v{vStamp}, s{sST if not self.c.get('rcount') else sRetry}, {self.nstamp}"); self.nstamp += 1
    def publish(self, text, local_ok, tag="pub"):
        a = self.a
        if local_ok and self.c.get("local", True):
            a.I(f"s_cmp_lg_u32 s{sLocal}, 0")
            a.either(text.format(pol=""), text.format(pol="sc1"), tag=tag)
        else: a.I(text.format(pol="sc1"), tag=tag); self.boost = self.pos + self.c.get("KB", 14)
    def gather(self, loads, regs, tmp, between=None, emask=None, sleep=None, first=False, spec=(), vmask=False):
        a = self.a
        if first and between: between(); between = None
        if emask: loads = [f"s_mov_b64 exec, {emask}"] + loads + ["s_mov_b64 exec, -1"]
        for t in loads: a.I(t, tag="gat")
        last = len(a.vm.ent) - 1
        if emask or self.c.get("BG"): self.boost = self.pos + self.c.get("KB", 14)
        if between: between()
        self.fs("issued")
        n = a.vm.need(last)
        if n is not None: a.wait(vm=n)
        chk = a.label("Lc"); rt = a.label("Lr")
        a.raw(f"{chk}:"); a.no_inject += 1
        r = list(regs); ops = []
        ops.append(f"v_max3_u32 v{tmp}, v{r[0]}, v{r[1]}, v{r[2]}"); r = r[3:]
        while len(r) >= 2: ops.append(f"v_max3_u32 v{tmp}, v{tmp}, v{r[0]}, v{r[1]}"); r = r[2:]
        if r: ops.append(f"v_max_u32 v{tmp}, v{tmp}, v{r[0]}")
        ops.append(f"v_cmp_eq_u32 vcc, -1, v{tmp}")
        spec = list(spec)
        k = -(-len(ops) // max(1, len(spec)))
        while ops or spec:
            if spec: a.I(spec.pop(0))
            for t in ops[:k]: a.I(t)
            ops = ops[k:]
        if vmask: a.I(f"s_and_b64 vcc, vcc, {emask}")
        self.inl = self.c.get("inl", 0) and not a.inject
        if not (self.c.get("novalid") and a.inject): a.I(f"s_cbranch_vccz {rt}k" if self.inl else f"s_cbranch_vccnz {rt}")
        if self.c.get("narrow", 3) & (2 if emask else 1):
            loads = ["s_mov_b64 exec, vcc"] + [t for t in loads if not t.startswith("s_mov")] + ["s_mov_b64 exec, -1"]
        self.retry_block(rt, chk, loads, sleep); a.no_inject -= 1
        self.fs("valid")
    def lsleep(self): return None if self.a.inject else self.c.get('lsleep', 0)
    def retry_block(self, rt, chk, loads, sleep=None):
        a = self.a
        if sleep is None: sleep = self.c.get("sleep", 0)
        blk = ([f"  s_sleep {sleep}"] if sleep else []) + ["  " + t for t in loads]
        blk += [f"  s_add_u32 s{sRetry}, s{sRetry}, 1", f"  s_cmp_gt_u32 s{sRetry}, {self.c.get('spin', 400000)}", "  s_cbranch_scc1 L_end",
                "  s_waitcnt vmcnt(0)", f"  s_branch {chk}"]
        if self.inl: a.out += blk + [f"{rt}k:"]
        elif a.inject: a.tail += [f"{rt}:"] + blk
        else: self.hot += [f"{rt}:"] + blk
        self.inl = False
    def setup(self):
        a = self.a; I = a.I
        I(f"s_cmp_ge_u32 s{sWG}, 256\ns_cbranch_scc1 L_end")
        I(f"s_load_dwordx16 s[32:47], s[0:1], 0\ns_load_dwordx8 s[48:55], s[0:1], 64\ns_load_dwordx2 s[56:57], s[0:1], 96")
        if self.c.get("diag") or self.c.get("hold"): I(f"s_memrealtime s[96:97]")
        I(f"v_lshrrev_b32 v8, 6, v0\nv_and_b32 v0, 63, v0\nv_readfirstlane_b32 s{sWave}, v8")
        I(f"s_and_b32 s{sT0}, s{sWG}, 7\ns_lshl_b32 s{sT0}, s{sT0}, 2\ns_lshr_b32 s{sT1}, s{sWG}, 3\ns_and_b32 s{sT1}, s{sT1}, 3\ns_add_u32 s{sH}, s{sT0}, s{sT1}\ns_lshr_b32 s{sS}, s{sWG}, 5")
        I(f"v_mul_u32_u24 v8, 43, v0\nv_lshrrev_b32 v8, 10, v8\nv_mul_u32_u24 v9, 24, v8\nv_sub_u32 v9, v0, v9\nv_mul_u32_u24 v8, 0x3000, v8\nv_lshl_add_u32 v{vWq0}, v9, 4, v8")
        I(f"v_add_u32 v10, 60, v0\nv_mul_u32_u24 v8, 43, v10\nv_lshrrev_b32 v8, 10, v8\nv_mul_u32_u24 v9, 24, v8\nv_sub_u32 v9, v10, v9\nv_mul_u32_u24 v8, 0x3000, v8\nv_lshl_add_u32 v{vWq1}, v9, 4, v8")
        I(f"s_mul_i32 s{sT0}, s{sS}, {80 * 12288}\ns_mul_i32 s{sT1}, s{sWave}, {20 * 12288}\ns_add_u32 s{sT0}, s{sT0}, s{sT1}\ns_mul_i32 s{sT1}, s{sH}, 384\ns_add_u32 s{sWqRow}, s{sT0}, s{sT1}")
        I(f"s_mul_i32 s{sT0}, s{sH}, {192 * 1280}\ns_mul_i32 s{sT1}, s{sWave}, {48 * 1280}\ns_add_u32 s{sT0}, s{sT0}, s{sT1}\ns_mul_i32 s{sT1}, s{sS}, 160\ns_add_u32 s{sWoRow}, s{sT0}, s{sT1}")
        I(f"s_mul_i32 s{sLdsW}, s{sWave}, 7680\ns_mov_b32 s{m60}, -1\ns_mov_b32 s{m60+1}, 0x0fffffff\ns_mov_b32 s{WT+3}, 0x20000\ns_mov_b32 s{sRetry}, 0")
        I(f"v_and_b32 v8, 15, v0\nv_lshrrev_b32 v9, 4, v0")
        I(f"v_lshrrev_b32 v10, 1, v8\nv_mul_u32_u24 v10, 384, v10\nv_and_b32 v11, 1, v8\nv_lshl_add_u32 v11, v9, 1, v11\nv_lshl_add_u32 v{vKoff}, v11, 4, v10")
        I(f"v_mul_u32_u24 v10, 768, v9\nv_lshl_add_u32 v{vVoff}, v8, 4, v10")
        I(f"s_mul_i32 s{sT0}, s{sH}, {HSTR}\ns_mul_i32 s{sT1}, s{sS}, {128 * 384}\ns_add_u32 s{sT1}, s{sT1}, s{sT0}\ns_mul_i32 s{sT2}, s{sWave}, {32 * 384}\ns_add_u32 s{sT1}, s{sT1}, s{sT2}\ns_add_u32 s{sOffG}, s{sT1}, {3072 * 384}")
        I(f"s_mul_i32 s{sT1}, s{sS}, {512 * 384}\ns_add_u32 s{sT1}, s{sT1}, s{sT0}\ns_mul_i32 s{sT2}, s{sWave}, {128 * 384}\ns_add_u32 s{sOffP}, s{sT1}, s{sT2}")
        I(f"s_mul_i32 s{sLdsVS}, s{sWave}, 6144\ns_add_u32 s{sLdsVS}, s{sLdsVS}, {VS}")
        I(f"s_mov_b32 s{XO+2}, 2560\ns_mov_b32 s{XO+3}, 0x20000\ns_mul_i32 s{sT0}, s{sS}, 160\nv_lshlrev_b32 v7, 2, v0\nv_min_u32 v7, 156, v7")
        for srd, o in ((KA, sOffG), (VA, sOffG), (KB, sOffP), (VB, sOffP)): I(f"s_sub_u32 s{srd+2}, {KV_BYTES}, s{o}\ns_mov_b32 s{srd+3}, 0x20000")
        I(f"s_mov_b32 s{WS+2}, {WS_BYTES}\ns_mov_b32 s{WS+3}, 0x20000")
        I(f"s_mul_i32 s{sH1grp}, s{sH}, {H1_H}\ns_mul_i32 s{sT1}, s{sS}, {H1_S}\ns_add_u32 s{sH1own}, s{sH1grp}, s{sT1}" + (f"\ns_mul_i32 s{sT1}, s{sS}, 768\ns_add_u32 s{sH1c}, s{sH1grp}, s{sT1}" if COMPACT1 else ""))
        I(f"s_mul_i32 s{sH2grp}, s{sH}, {H2_H}\ns_add_u32 s{sH2grp}, s{sH2grp}, {H2}\ns_mul_i32 s{sT1}, s{sS}, {H2_S}\ns_add_u32 s{sH2own}, s{sH2grp}, s{sT1}")
        I(f"s_mul_i32 s{sH3grp}, s{sS}, {H3_S}\ns_add_u32 s{sH3grp}, s{sH3grp}, {H3}\ns_mul_i32 s{sT1}, s{sH}, {H3_H}\ns_add_u32 s{sH3own}, s{sH3grp}, s{sT1}")
        self.clear_prep([[("P", 0)], [("C", 0)], [("P", 4)], [("2", 0), ("3", 0)]])
        a.wait(lg=0)
        if self.c.get("diag"): I(f"v_mov_b32 v{vStamp}, 0\nv_writelane_b32 v{vStamp}, s96, 0"); self.nstamp = 1
        def srds(l):
            for srd, p, o in l: I(f"s_add_u32 s{srd}, s{p}, s{o}\ns_addc_u32 s{srd+1}, s{p+1}, 0")
        def small():
            I(f"s_mov_b32 s{WS}, s{pWS}\ns_mov_b32 s{WS+1}, s{pWS+1}\ns_mov_b32 s{XO}, s{pX}\ns_mov_b32 s{XO+1}, s{pX+1}")
            self.clear_issue("clr")
            if USE_HOT == 3: self.probe_store()
            I(f"buffer_load_dword v12, v7, {s4(XO)}, s{sT0} offen\nbuffer_load_dword v13, v7, {s4(XO)}, s{sT0} offen offset:1280")
        n0, n1 = self.c.get("I", (12, 28))
        srds([(KA, pKA, sOffG)])
        self.stream(min(n0, 12), paced=False)
        srds([(VA, pVA, sOffG), (KB, pKB, sOffP), (VB, pVB, sOffP)])
        self.stream_to(n0, paced=False)
        small()
        self.stream_to(n1, paced=False)
        if self.c.get("st0"):
            self.stamp("end")
            n = len(a.vm.ent)
            for k in (1, 3, 6, 9, 12, 15, 18, n): a.wait(vm=n - k); self.stamp("end")
        if self.c.get("cpf") == 1: self.code_prefetch("L_pf0", "L_pf9")
        I(f"v_mul_u32_u24 v10, 26, v0\nv_lshrrev_b32 v10, 8, v10\nv_mul_u32_u24 v11, 10, v10\nv_sub_u32 v11, v0, v11\nv_mul_u32_u24 v10, 1280, v10\nv_lshl_add_u32 v{vWo}, v11, 4, v10")
        I("v_and_b32 v10, 1, v0\nv_cmp_eq_u32 vcc, 1, v10\nv_mov_b32 v11, 0xffff\nv_mov_b32 v20, 0xffff0000\nv_cndmask_b32 v11, v11, v20, vcc\nv_bfe_u32 v10, v0, 1, 2")
        for j in range(4): I(f"v_cmp_eq_u32 vcc, {j}, v10\nv_cndmask_b32 v{vMask+j}, 0, v11, vcc")
        for m, lo, hi in ((mODD, 0xaaaaaaaa, 0xaaaaaaaa), (mRG1, 0xffff0000, 0), (mRG2, 0, 0xffff), (mRG3, 0, 0xffff0000), (mWOST, 0x5555, 0x5555), (mN10, 0x03ff03ff, 0x03ff03ff), (mBIT1, 0xcccccccc, 0xcccccccc), (mL63, 0, 0x80000000)) + (((mQ13, 0x1fff1fff, 0x1fff1fff),) if COMPACT1 else ()):
            I(f"s_mov_b32 s{m}, {lo:#x}\ns_mov_b32 s{m+1}, {hi:#x}")
        I(f"s_cmp_eq_u32 s{sWave}, 3\ns_cselect_b64 {sp(mW3)}, -1, 0\ns_min_u32 s{sW2}, s{sWave}, 2")
        if H2_S == 384:
            I(f"s_mul_i32 s{sT0}, s{sS}, -368\ns_add_u32 s{sT0}, s{sT0}, 3072\ns_lshl_b32 s{sPub2}, s{sWave}, 7\ns_cmp_eq_u32 s{sWave}, 3\ns_cselect_b32 s{sPub2}, s{sT0}, s{sPub2}")
            I(f"s_mov_b32 s{mPub2}, 0x55555555\ns_cselect_b32 s{mPub2+1}, 0, s{mPub2}\ns_cselect_b32 s{mPub2}, 0x55, s{mPub2}")
        if self.c.get("nost3"): I(f"s_cmp_lt_u32 s{sWave}, 3\ns_cselect_b32 s{mWOST+1}, 0x5555, 0\ns_cselect_b32 s{mWOST}, 0x5555, 0")
        if H3_H == 160: I(f"s_cmp_lt_u32 s{sWave}, 2\ns_cselect_b32 s{mWOST+1}, 0x5555, 0")
        I(f"s_getreg_b32 s{sXcc}, hwreg(HW_REG_XCC_ID, 0, 4)\ns_add_u32 s{sXcc}, s{sXcc}, 1")
        for r, m, base in ((sXROWw, 160, XROW), (sYw, 320, Y), (sQw, 96, QB)): I(f"s_mul_i32 s{r}, s{sWave}, {m}\ns_add_u32 s{r}, s{r}, {base}")
        I(f"v_add_u32 v10, s{sXROWw}, v7\nv_add_u32 v11, {ONES}, v7\nv_mov_b32 v20, 0x3f803f80")
        I("ds_write_b32 v11, v20\nds_write_b32 v10, v12\nds_write_b32 v10, v13 offset:640")
        I(f"s_mov_b32 s{XO}, s{pOUT}\ns_mov_b32 s{XO+1}, s{pOUT+1}")
        if COMPACT1: I(f"s_mov_b32 s{mPub1}, -1\ns_cmp_eq_u32 s{sWave}, 0\ns_cselect_b32 s{mPub1+1}, 0xfffff, 0\ns_or_b32 s{mPub1+1}, s{mPub1+1}, 0xffff")
    def clear_prep(self, jobs):
        I = self.a.I
        I("v_mov_b32 v16, -1\nv_mov_b32 v17, -1\nv_mov_b32 v18, -1\nv_mov_b32 v19, -1\nv_lshlrev_b32 v14, 4, v0")
        def seg(k, inst, hi):
            if k == "P" and c1(inst): return sH1c, inst * H1_I, (0x1ffff if hi else -1)
            if k in "PC": return h1(inst)[0], h1(inst)[2] + (1024 if k == "C" else 0), -1
            if k == "2": return h2(inst)[0], h2(inst)[2] - 512 * hi, (0x1ffffff if H2_S == 384 else -1)
            return h3(inst)[0], h3(inst)[2] - 512 * hi, (0x3ff if H3_H == 160 else 0xffff if self.c.get('clr256') else 0xfff)
        for w, job in enumerate(jobs):
            lo = seg(*job[0], 0); hi = seg(*job[-1], 1)
            for (r, o, m), dst, md in ((lo, sT1, sClr), (hi, sT2, sClr + 1)):
                if w == 0: I(f"s_add_u32 s{dst}, s{r}, {o & 0xffffffff}\ns_mov_b32 s{md}, {m}")
                else: I(f"s_add_u32 s{sOff}, s{r}, {o & 0xffffffff}\ns_cmp_eq_u32 s{sWave}, {w}\ns_cselect_b32 s{dst}, s{sOff}, s{dst}\ns_cselect_b32 s{md}, {m}, s{md}")
        self.off_val = None
        I(f"v_mov_b32 v15, s{sT1}\nv_mov_b32 v20, s{sT2}\nv_cmp_lt_u32 vcc, 31, v0\nv_cndmask_b32 v15, v15, v20, vcc\nv_add_u32 v15, v15, v14")
        if any(k == "P" and c1(i) for job in jobs for k, i in job):
            I(f"s_mov_b32 s{sT1}, 0\ns_mov_b32 s{sT2}, 0")
            for w, job in enumerate(jobs):
                if job[0][0] == "P" and c1(job[0][1]): I(f"s_cmp_eq_u32 s{sWave}, {w}\ns_cselect_b32 s{sT2}, 0x10000, s{sT2}")
            self.off_val = None; self.a.no_inject += 1
            I(f"s_mul_i32 s{sOff}, s{sS}, -752\ns_add_u32 s{sOff}, s{sOff}, {6144 - 768}\nv_add_u32 v20, s{sOff}, v15\nv_cndmask_b32 v15, v15, v20, {sp(sT1)}")
            self.a.no_inject -= 1
        if H2_S == 384 and any(k == "2" for job in jobs for k, _ in job):
            I(f"s_mov_b32 s{sT1}, 0\ns_mov_b32 s{sT2}, 0")
            for w, job in enumerate(jobs):
                for (k, _), dst in ((job[0], sT1), (job[-1], sT2)):
                    if k == "2": I(f"s_cmp_eq_u32 s{sWave}, {w}\ns_cselect_b32 s{dst}, 0x1000000, s{dst}")
            self.off_val = None; self.a.no_inject += 1
            I(f"s_mul_i32 s{sOff}, s{sS}, -368\ns_add_u32 s{sOff}, s{sOff}, {3072 - 384}\nv_add_u32 v20, s{sOff}, v15\nv_cndmask_b32 v15, v15, v20, {sp(sT1)}")
            self.a.no_inject -= 1
    def clear_issue(self, tag, local_ok=False):
        I = self.a.I
        I(f"s_mov_b64 exec, {sp(sClr)}")
        self.publish(f"buffer_store_dwordx4 v[16:19], v15, {s4(WS)}, 0 offen {{pol}}", local_ok, tag=tag)
        I("s_mov_b64 exec, -1")
    def tlb_touch(self):
        a = self.a; I = a.I
        ent = []
        for p, o, span in ((pWQA, sWqRow, 20 * 12288), (pKA, sOffG, 12288), (pVA, sOffG, 12288), (pWOA, sWoRow, 48 * 1280), (pWQB, sWqRow, 20 * 12288),
                           (pKB, sOffP, 49152), (pWOB, sWoRow, 48 * 1280), (pVB, sOffP, 49152)):
            for b in range(2 if o in (sOffG, sOffP) else 1): ent.append((p, o, b * BSTR))
        if self.c["tlb"] > 1:
            ent += [(pWS, None, 0), (pWS, None, 2 << 20), (pWS, None, 4 << 20), (pDBG, None, 0), (pOUT, None, 0)]
        for i, (p, o, c) in enumerate(ent):
            if o is None: I(f"s_add_u32 s{sT1}, s{p}, {c}\ns_addc_u32 s{sT2}, s{p+1}, 0")
            else:
                I(f"s_add_u32 s{sT1}, s{p}, s{o}\ns_addc_u32 s{sT2}, s{p+1}, 0")
                if c: I(f"s_add_u32 s{sT1}, s{sT1}, {c}\ns_addc_u32 s{sT2}, s{sT2}, 0")
            if i == 0: I(f"v_mov_b32 v14, s{sT1}\nv_mov_b32 v15, s{sT2}")
            else: I(f"v_writelane_b32 v14, s{sT1}, {i}\nv_writelane_b32 v15, s{sT2}, {i}")
        I(f"s_mov_b64 exec, {(1 << len(ent)) - 1}\nglobal_load_dword v250, v[14:15], off nt\ns_mov_b64 exec, -1")
    def code_prefetch(self, lo, hi):
        a = self.a; I = a.I
        l = a.label("Lp")
        I(f"s_getpc_b64 {sp(sT1)}"); a.raw(f"{l}:")
        I(f"s_add_u32 s{sT1}, s{sT1}, {lo}-{l}\ns_addc_u32 s{sT2}, s{sT2}, 0")
        I(f"s_lshr_b32 s{sT0}, s{sWG}, 3\ns_lshl_b32 s{sT0}, s{sT0}, 2\ns_add_u32 s{sT0}, s{sT0}, s{sWave}\ns_lshl_b32 s{sT0}, s{sT0}, 13")
        I(f"v_lshl_add_u32 v30, v0, 7, s{sT0}\nv_cmp_gt_u32 vcc, {hi}-{lo}, v30\ns_mov_b32 m0, {JUNK}")
        I("s_and_b64 exec, vcc, -1"); a.skip_begin("s_cbranch_execz")
        I(f"global_load_lds_dword v30, {sp(sT1)}")
        a.skip_end()
        I("s_mov_b64 exec, -1")
    def probe_store(self):
        a = self.a; I = a.I
        I(f"s_add_u32 s{sX1own}, s{WS}, {(8 << 20) - 1}\ns_and_b32 s{sX1own}, s{sX1own}, 0xffe00000\ns_sub_u32 s{sX1own}, s{sX1own}, s{WS}")
        I(f"s_lshr_b32 s{sT1}, s{sWG}, 6\ns_lshl_b32 s{sT1}, s{sT1}, 14\ns_and_b32 s{sT2}, s{sWG}, 63\ns_lshl_b32 s{sT2}, s{sT2}, 7\ns_add_u32 s{sT1}, s{sT1}, s{sT2}\ns_add_u32 s{sT1}, s{sT1}, {XP}\ns_add_u32 s{sX1own}, s{sX1own}, s{sT1}")
        I(f"s_cmp_lg_u32 s{sWave}, 0"); a.skip_begin("s_cbranch_scc1")
        I(f"v_and_b32 v15, 8, v0\nv_lshlrev_b32 v15, 10, v15\nv_and_b32 v20, 7, v0\nv_lshl_add_u32 v15, v20, 4, v15\ns_mov_b64 exec, 0xffff")
        I(f"buffer_store_dwordx4 v[16:19], v15, {s4(WS)}, s{sX1own} offen sc1", tag="prb")
        I("s_mov_b64 exec, -1")
        a.skip_end()
    def arrive(self):
        a = self.a; I = a.I
        I(f"s_cmp_lg_u32 s{sWave}, 0"); a.skip_begin("s_cbranch_scc1")
        src = sXcc
        if USE_HOT == 3:
            a.wait_tag("prb")
            I(f"s_and_b32 s{sT0}, s{sWG}, 63\ns_lshl_b32 s{sT0}, s{sT0}, 7\ns_sub_u32 s{sT0}, s{sX1own}, s{sT0}\ns_sub_u32 s{sT0}, s{sT0}, 128")
            I(f"s_load_dword s{sT1}, {sp(WS)}, s{sT0}"); a.wait(lg=0)
            I(f"s_add_u32 s{sT0}, s{sX1own}, 8192\ns_memtime s[0:1]"); a.wait(lg=0)
            I(f"s_load_dword s{sT1}, {sp(WS)}, s{sX1own}"); a.wait(lg=0)
            I(f"s_memtime {sp(sX3g0)}"); a.wait(lg=0)
            I(f"s_load_dword s{sT1}, {sp(WS)}, s{sT0}"); a.wait(lg=0)
            I(f"s_memtime {sp(sX1grp)}"); a.wait(lg=0)
            I(f"s_sub_u32 s0, s{sX3g0}, s0\ns_sub_u32 s1, s{sX1grp}, s{sX3g0}\ns_cmp_gt_u32 s0, s1\ns_cselect_b32 s{sT0}, 0x80, 0")
            I(f"s_sub_u32 s{sT1}, s{sXcc}, 1\ns_and_b32 s{sT1}, s{sT1}, 4\ns_lshl_b32 s{sT1}, s{sT1}, 5\ns_xor_b32 s{sT0}, s{sT0}, s{sT1}\ns_or_b32 s{sT2}, s{sT0}, s{sXcc}")
            src = sT2
        I(f"s_and_b32 s{sT0}, s{sWG}, 3\ns_lshl_b32 s{sT0}, s{sT0}, 3\ns_lshl_b32 s{sT0}, s{src}, s{sT0}\ns_and_b32 s{sT1}, s{sWG}, 0xfc")
        I(f"v_mov_b32 v8, s{sT1}\nv_mov_b32 v9, s{sT0}\ns_mov_b64 exec, 1")
        I(f"global_atomic_add v8, v9, {sp(pDBG)} sc1\ns_mov_b64 exec, -1")
        a.skip_end()
    def handshake(self, between):
        a = self.a; I = a.I
        I("v_lshlrev_b32 v7, 2, v0")
        ld = f"global_load_dword v8, v7, {sp(pDBG)} sc1"
        I(ld); last = len(a.vm.ent) - 1
        between()
        n = a.vm.need(last)
        if n is not None: a.wait(vm=n)
        chk = a.label("Lc"); rt = a.label("Lr")
        a.raw(f"{chk}:"); a.no_inject += 1
        I("v_subrev_u32 v9, 0x01010101, v8\nv_not_b32 v10, v8\nv_and_b32 v9, v9, v10\nv_and_b32 v9, 0x80808080, v9\nv_cmp_ne_u32 vcc, 0, v9")
        I(f"s_cbranch_vccnz {rt}")
        self.retry_block(rt, chk, [ld]); a.no_inject -= 1
        if USE_HOT: self.sides()
        I(f"s_and_b32 s{sT0}, s{sWG}, 3\ns_lshl_b32 s{sT0}, s{sT0}, 3\nv_lshrrev_b32 v8, s{sT0}, v8\nv_and_b32 v8, 0xff, v8")
        I(f"s_bfe_u32 s{sT0}, s{sWG}, 0x30002\nv_and_b32 v9, 7, v0\nv_cmp_eq_u32 {sp(sT1)}, s{sT0}, v9\nv_cmp_ne_u32 vcc, s{sXcc}, v8")
        I(f"s_and_b64 vcc, vcc, {sp(sT1)}\ns_cmp_eq_u64 vcc, 0\ns_cselect_b32 s{sLocal}, 1, 0")
    def sides(self):
        a = self.a; I = a.I; a.no_inject += 1
        if USE_HOT == 3:
            I(f"s_mov_b32 s{sOffW}, 0")
            for k in range(4):
                I(f"v_bfe_u32 v9, v8, {8 * k + 7}, 1\nv_cmp_ne_u32 vcc, 0, v9\ns_bcnt1_i32_b64 s{sT0}, vcc\ns_add_u32 s{sOffW}, s{sOffW}, s{sT0}")
            I("v_and_b32 v8, 0x7f7f7f7f, v8")
        if USE_HOT == 2: I(f"s_mov_b32 s{sT1}, 0\ns_mov_b32 s{sT2}, 0x01010101")
        else:
            I(f"v_readlane_b32 s{sT1}, v8, 0\nv_readlane_b32 s{sT2}, v8, 1\nv_mov_b32 v9, s{sT1}\nv_mov_b32 v10, s{sT2}\nv_cndmask_b32 v9, v9, v10, {sp(mODD)}\nv_cmp_ne_u32 vcc, v8, v9")
            I(f"s_sub_u32 s{sT1}, s{sT1}, 0x01010101\ns_sub_u32 s{sT2}, s{sT2}, 0x01010101\ns_lshr_b32 s{sT1}, s{sT1}, 2\ns_lshr_b32 s{sT2}, s{sT2}, 2\ns_and_b32 s{sT1}, s{sT1}, 0x01010101\ns_and_b32 s{sT2}, s{sT2}, 0x01010101")
            I(f"s_xor_b32 s{sT0}, s{sT1}, s{sT2}\ns_cmp_eq_u32 s{sT0}, 0x01010101\ns_cselect_b32 s{sLocal}, 1, 0\ns_cmp_eq_u64 vcc, 0\ns_cselect_b32 s{sLocal}, s{sLocal}, 0")
            if USE_HOT == 3: I(f"s_cmp_gt_u32 s{sOffW}, 128\ns_cselect_b32 s{sT0}, 0x01010101, 0\ns_xor_b32 s{sT1}, s{sT1}, s{sT0}\ns_xor_b32 s{sT2}, s{sT2}, s{sT0}")
            if self.c.get("pol"): I(f"s_xor_b32 s{sT1}, s{sT1}, 0x01010101\ns_xor_b32 s{sT2}, s{sT2}, 0x01010101")
            I(f"s_cmp_lg_u32 s{sLocal}, 0\ns_cselect_b32 s{sT1}, s{sT1}, 0\ns_cselect_b32 s{sT2}, s{sT2}, 0x01010101")
        def side(dst, k): I(f"s_lshr_b64 s[0:1], {sp(sT1)}, s{k}\ns_and_b32 s{dst}, s0, 1\ns_lshl_b32 s{dst}, s{dst}, 13")
        I(f"s_add_u32 s{sOffP}, s{WS}, {(8 << 20) - 1}\ns_and_b32 s{sOffP}, s{sOffP}, 0xffe00000\ns_sub_u32 s{sOffP}, s{sOffP}, s{WS}")
        I(f"s_and_b32 s{sT0}, s{sWG}, 7\ns_lshl_b32 s{sT0}, s{sT0}, 3"); side(sOffG, sT0)
        I(f"s_add_u32 s{sOffG}, s{sOffG}, s{sOffP}")
        I(f"s_and_b32 s{sT0}, s{sH}, 15\ns_lshl_b32 s{sX1grp}, s{sT0}, 14\ns_add_u32 s{sX1grp}, s{sX1grp}, s{sOffG}\ns_lshl_b32 s0, s{sS}, 10\ns_add_u32 s{sX1own}, s{sX1grp}, s0")
        I(f"s_lshr_b32 s0, s{sT0}, 1\ns_lshl_b32 s0, s0, 14\ns_and_b32 s1, s{sT0}, 1\ns_lshl_b32 s1, s1, 12\ns_add_u32 s0, s0, s1\ns_add_u32 s0, s0, {X2}\ns_add_u32 s{sX2grp}, s0, s{sOffG}\ns_mul_i32 s0, s{sS}, {H2_S}\ns_add_u32 s{sX2own}, s{sX2grp}, s0")
        I(f"s_lshr_b32 s0, s{sS}, 1\ns_lshl_b32 s0, s0, 14\ns_and_b32 s1, s{sS}, 1\ns_lshl_b32 s1, s1, 12\ns_add_u32 s0, s0, s1\ns_add_u32 s{sOffW}, s0, {X3}")
        I(f"s_mul_i32 s0, s{sT0}, {H3_H}\ns_add_u32 s0, s0, s{sOffW}\ns_add_u32 s{sX3own}, s0, s{sOffG}\ns_add_u32 s{sOffW}, s{sOffW}, s{sOffP}")
        for j, dst in enumerate((sX3g0, sX3g1)):
            I(f"s_lshl_b32 s{sT0}, s{sWave}, 4\ns_add_u32 s{sT0}, s{sT0}, {8 * j}"); side(dst, sT0)
            I(f"s_lshl_b32 s0, s{sWave}, 1\ns_add_u32 s0, s0, {j}\ns_and_b32 s0, s0, 3\ns_mul_i32 s0, s0, {4 * H3_H}\ns_add_u32 s{dst}, s{dst}, s0\ns_add_u32 s{dst}, s{dst}, s{sOffW}")
        a.no_inject -= 1
    WQB = [(24, 28, 32), (34, 38, 42), (44, 48, 52)]
    def wq_pre(self, ty):
        a = self.a; I = a.I
        I(f"v_bfe_u32 v7, v0, 2, 2\nv_lshrrev_b32 v9, 4, v0\nv_lshl_add_u32 v8, v9, 3, v7\nv_lshl_add_u32 v7, v9, 2, v7")
        I(f"v_and_b32 v9, 3, v0\nv_lshlrev_b32 v9, 3, v9\ns_mul_i32 s{sT0}, s{sWave}, 96\ns_add_u32 s{sT0}, s{sT0}, {WQ[ty]}\nv_add_u32 v9, s{sT0}, v9")
        I(f"s_movk_i32 s{sT0}, 384\nv_mad_u32_u24 v8, v8, s{sT0}, v9\nv_mad_u32_u24 v7, v7, s{sT0}, v9")
        for T, (b0, b1, b2) in enumerate(self.WQB):
            for t, r in ((0, b0), (1, b1)):
                I(f"ds_read_b64_tr_b16 {v2(r)}, v8 offset:{12288 * t + 32 * T}\nds_read_b64_tr_b16 {v2(r+2)}, v8 offset:{12288 * t + 1536 + 32 * T}")
            I(f"ds_read_b64_tr_b16 {v2(b2)}, v7 offset:{24576 + 32 * T}")
    def wq_addr(self, b, L):
        I = self.a.I
        I(f"v_mov_b32 v22, s{sXROWw}\nv_mov_b32 v23, {ONES - 640 * b}")
        I(f"v_cndmask_b32 v23, v22, v23, {sp(mODD)}\nv_lshrrev_b32 v21, 4, v0\nv_lshl_add_u32 v22, v21, 4, v23\nv_lshl_add_u32 v23, v21, 3, v23")
    def wq_main(self, b, L, local_ok=True, hoisted=False, hoist=False):
        a = self.a; a.comment(f"---- row {b} layer {L}: q projection partial"); I = a.I; inst = 4 * b + L; needC = inst < 2
        if not hoisted: self.wq_addr(b, L)
        I(f"ds_read_b128 v[12:15], v22 offset:{640 * b}\nds_read_b128 v[16:19], v22 offset:{640 * b + 64}\nds_read_b64 v[20:21], v23 offset:{640 * b + 128}")
        if c1(inst):
            I(f"s_mul_i32 s{sT0}, s{sWave}, 192\nv_lshl_add_u32 v7, v0, 2, s{sT0}\ns_mul_i32 s{sT0}, s{sS}, -752\ns_add_u32 s{sT0}, s{sT0}, {6144 - 192}\nv_lshl_add_u32 v23, v0, 2, s{sT0}")
            I(f"v_cndmask_b32 v7, v7, v23, {sp(mRG3)}\ns_add_u32 s{sOffP}, s{sH1c}, {inst * H1_I}")
        else: I(f"s_lshl_b32 s{sT0}, s{sWave}, 8\nv_lshl_add_u32 v7, v0, 2, s{sT0}\ns_add_u32 s{sOffP}, s{h1(inst)[0]}, {h1(inst)[2]}")
        if hoist: self.qg_addr(b, L)
        D = [8, 24, 28]
        for T, (b0, b1, b2) in enumerate(self.WQB):
            I(f"v_mfma_f32_16x16x32_bf16 {v4(D[T])}, v[12:15], {v4(b0)}, 0")
            I(f"v_mfma_f32_16x16x32_bf16 {v4(D[T])}, v[16:19], {v4(b1)}, {v4(D[T])}")
        I("v_mfma_f32_16x16x32_bf16 v[34:37], v[12:15], v[12:15], 0\nv_mfma_f32_16x16x32_bf16 v[34:37], v[16:19], v[16:19], v[34:37]")
        for T, (b0, b1, b2) in enumerate(self.WQB):
            I(f"v_mfma_f32_16x16x16_bf16 {v4(D[T])}, v[20:21], {v2(b2)}, {v4(D[T])}")
        I("v_mfma_f32_16x16x16_bf16 v[34:37], v[20:21], v[20:21], v[34:37]")
        for r in range(2 if needC else 1):
            I(f"v_cndmask_b32 v{22+r}, v{8+r}, v{24+r}, {sp(mRG1)}\nv_cndmask_b32 v{22+r}, v{22+r}, v{28+r}, {sp(mRG2)}\nv_cndmask_b32 v{22+r}, v{22+r}, v34, {sp(mRG3)}\nv_min_u32 v{22+r}, -2, v{22+r}")
            if c1(inst): I(f"s_mov_b64 exec, {sp(mPub1)}")
            self.publish(f"buffer_store_dword v{22+r}, v7, {s4(WS)}, s{sOffP} offen offset:{1024 * r} {{pol}}", local_ok)
            if c1(inst): I("s_mov_b64 exec, -1")
    def qg_addr(self, b, L):
        I = self.a.I
        if c1(4 * b + L):
            I(f"v_and_b32 v23, 15, v0\nv_lshrrev_b32 v54, 4, v0\nv_mul_u32_u24 v54, 768, v54\nv_lshl_add_u32 v54, v23, 4, v54\ns_mul_i32 s{sT0}, s{sWave}, 192\nv_add_u32 v54, s{sT0}, v54")
            I(f"s_add_u32 s{sOffG}, s{sH1grp}, {(4 * b + L) * H1_I}")
            return
        I(f"v_and_b32 v23, 15, v0\nv_lshrrev_b32 v54, 4, v0\nv_mul_u32_u24 v54, {h1(4 * b + L)[3]}, v54\nv_lshl_add_u32 v54, v23, 4, v54\ns_lshl_b32 s{sT0}, s{sWave}, 8")
        I(f"s_add_u32 s{sOffG}, s{h1(4 * b + L)[1]}, s{sT0}\ns_add_u32 s{sOffG}, s{sOffG}, {h1(4 * b + L)[2]}\ns_add_u32 s{sOffG2}, s{sOffG}, {4 * h1(4 * b + L)[3]}")
    def qg(self, b, L, between=None, hoisted=False, after=None, tail=False):
        a = self.a; a.comment(f"---- row {b} layer {L}: gather q partials, LayerNorm scale"); I = a.I; inst = 4 * b + L; needC = inst < 2; ty = L & 1
        if not hoisted: self.qg_addr(b, L)
        loads = [f"buffer_load_dwordx4 v[12:15], v54, {s4(WS)}, s{sOffG} offen sc1", f"buffer_load_dwordx4 v[16:19], v54, {s4(WS)}, s{sOffG2} offen sc1"]
        cc = c1(inst)
        if cc: loads = [f"buffer_load_dwordx4 v[12:15], v54, {s4(WS)}, s{sOffG} offen sc1", f"buffer_load_dwordx4 v[16:19], v36, {s4(WS)}, s{sOffG} offen sc1"]
        def addr2():
            I(f"v_add_u32 v36, 3072, v54\nv_and_b32 v37, 48, v0\nv_add_u32 v37, 6144, v37\ns_mov_b32 vcc_lo, 0x10001000\ns_mov_b32 vcc_hi, 0x10001000")
            I("v_cndmask_b32 v54, v54, v37, vcc\nv_add_u32 v37, 64, v37\nv_cndmask_b32 v36, v36, v37, vcc")
        if needC: loads += [f"buffer_load_dwordx4 v[20:23], v54, {s4(WS)}, s{sOffG} offen offset:1024 sc1", f"buffer_load_dwordx4 v[24:27], v54, {s4(WS)}, s{sOffG2} offen offset:1024 sc1"]
        def pre():
            I(f"v_and_b32 v32, 15, v0\nv_lshrrev_b32 v33, 4, v0\nv_and_b32 v34, 1, v33\nv_lshlrev_b32 v34, 1, v34\nv_lshrrev_b32 v28, 1, v33\nv_or_b32 v34, v34, v28\nv_lshl_add_u32 v34, v32, 2, v34")
            I(f"v_lshl_add_u32 v34, v34, 1, s{sQw}\nv_lshl_add_u32 v29, v0, 2, s{sCTw}")
            if not needC: I(f"ds_read_b32 v20, v29 offset:{1024 * ty}")
            self.q_addr(b)
            I(f"v_mov_b32 v35, {f32(1 / (640 * SCALE))}\nv_mov_b32 v32, {f32(1 / (640 * SCALE * SCALE))}\nv_mov_b32 v33, {f32(1e-5 / (SCALE * SCALE))}")
        first = hoisted and self.c.get('first', 3) & 2
        if cc: addr2()
        if first: pre()
        def shadow():
            if not first: pre()
            if tail and self.c.get("tq", 0): self.tail_addr(b, L)
            if between: between()
        self.gather(loads, range(12, 28 if needC else 20), 28, between=shadow, sleep=self.lsleep(), emask=sp(mQ13) if cc else None, vmask=cc)
        if after: after()
        def red(r):
            I(f"v_pk_add_f32 {v2(r)}, {v2(r)}, {v2(r+4)}\nv_pk_add_f32 {v2(r+2)}, {v2(r+2)}, {v2(r+6)}")
            I(f"v_permlane32_swap_b32 v{r}, v{r+1}\nv_permlane32_swap_b32 v{r+2}, v{r+3}\nv_add_f32 v{r}, v{r}, v{r+1}\nv_add_f32 v{r+2}, v{r+2}, v{r+3}")
            I(f"v_permlane16_swap_b32 v{r}, v{r+2}\nv_add_f32 v{r}, v{r}, v{r+2}")
        red(12)
        I(f"v_readlane_b32 s{sT0}, v12, 12\nv_readlane_b32 s{sT1}, v12, 44")
        if needC: red(20); I(f"v_mul_f32 v20, {f32(SCALE)}, v20\nds_write_b32 v29, v20 offset:{1024 * ty}")
        I(f"s_mov_b32 exec_lo, 0x0fff0fff\ns_mov_b32 exec_hi, 0x0fff0fff")
        I(f"v_mul_f32 v15, s{sT1}, v35\nv_fma_f32 v14, s{sT0}, v32, v33\nv_fma_f32 v14, -v15, v15, v14\nv_max_f32 v14, v33, v14\nv_rsq_f32 v14, v14")
        I(f"v_fma_f32 v12, -v15, v20, v12\nv_mul_f32 v12, v12, v14\nv_cvt_pk_bf16_f32 v12, v12, v12")
        I(f"ds_write_b16 v34, v12 offset:{384 * b}\ns_mov_b64 exec, -1")
        a.barrier()
    def tail_addr(self, b, L):
        I = self.a.I; inst = 4 * b + L
        I(f"v_and_b32 v50, 15, v0\nv_lshlrev_b32 v50, 5, v50\nv_and_b32 v51, 16, v0\nv_add3_u32 v50, v50, v51, s{sATTw}\nv_mov_b32 v51, s{sSTATw}")
        self.wo_addr(b, L)
        I(f"v_mov_b32 v9, {STAT}\nv_lshl_add_u32 v10, v0, 2, s{sCOMBw}")
        if H2_S == 384: I(f"v_lshl_add_u32 v11, v0, 1, s{sPub2}\ns_add_u32 s{sOffP}, s{h2(inst)[0]}, {h2(inst)[2]}")
        else: I(f"s_lshl_b32 s{sT0}, s{sWave}, 7\nv_lshl_add_u32 v11, v0, 1, s{sT0}\ns_add_u32 s{sOffP}, s{h2(inst)[0]}, {h2(inst)[2]}")
    def q_addr(self, b):
        self.a.I(f"v_and_b32 v30, 1, v0\nv_lshrrev_b32 v31, 4, v0\nv_lshlrev_b32 v31, 5, v31\nv_lshl_add_u32 v30, v30, 4, v31\nv_add_u32 v30, {QB + 384 * b}, v30")
    def att(self, b, L, hook1=None, hook2=None, hookm=None, pre_bar=None, guard=False, hoist=False, qaddr=False):
        a = self.a; a.comment(f"---- row {b} layer {L}: attention"); I = a.I; ty = L & 1; G = 16 if ty else 4; Kn = "KB" if ty else "KA"; Vn = "VB" if ty else "VA"
        vM, vL = 52, 53
        if not qaddr: self.q_addr(b)
        for t in range(3): I(f"ds_read_b128 {v4(vQ + 4 * t)}, v30 offset:{128 * t}")
        def lds_v(g):
            a.wait_tag(("VS", b, g))
            I(f"v_lshl_add_u32 v54, v0, 4, s{sLdsVS}")
            for c in range(3): I(f"ds_read_b128 {v4(vU + 2 + 4 * c)}, v54 offset:{(g - 2) * 3072 + 1024 * c}")
        early = (not ty) and L == 2
        if early: lds_v(2)
        if not (qaddr and self.c.get("tq", 0)):
            if self.c.get("fill", 1): a.queue(lambda: self.tail_addr(b, L)); a.drain(self.c.get("fill0", 8))
            else: self.tail_addr(b, L)
        def D(g): return vACC + 4 * (g % 3)
        dm = "row_mask:0xf"; NP = G // 2
        order = list(range(G)) if ty else ([2, 0, 1, 3] if early else [0, 1, 2, 3])
        at = {g: i for i, g in enumerate(order)}
        U = lambda g: vU + at[g] // 2
        bank = lambda g, hi: (1 << (at[g] & 1)) << (2 * hi)
        for g in range(G + 2):
            K = SLOT[(Kn, g)] if g < G else None
            if K: self.check_slot(Kn, b, g)
            e = g - 2
            if K: I(f"v_mfma_f32_16x16x32_bf16 {v4(D(g))}, {K[0]}, {v4(vQ)}, 0")
            if g == 1 and self.c.get("fa"): self.fs("g1")
            if K: a.drain(2)
            if K: I(f"v_mfma_f32_16x16x32_bf16 {v4(D(g))}, {K[1]}, {v4(vQ+4)}, {v4(D(g))}")
            if K and e < 0: a.drain(2)
            if 0 <= e < G: I(f"v_add_f32_dpp v{U(e)}, v{D(e)}, v{D(e)+1} quad_perm:[0,0,2,2] {dm} bank_mask:{bank(e, 0):#x}")
            if K: I(f"v_mfma_f32_16x16x32_bf16 {v4(D(g))}, {K[2]}, {v4(vQ+8)}, {v4(D(g))}")
            if g == G + 1 and NP > 3: I(f"v_max3_f32 v{vM}, v{vU}, v{vU+1}, v{vU+2}\nv_max3_f32 v{vM}, v{vM}, v{vU+3}, v{vU+4}")
            if K and e < 0: a.drain(2)
            if hook1 and g < G: hook1(g)
            if 0 <= e < G: I(f"v_add_f32_dpp v{U(e)}, v{D(e)+2}, v{D(e)+3} quad_perm:[0,0,2,2] {dm} bank_mask:{bank(e, 1):#x}")
        if self.c.get("fa"): self.fs("p1")
        if hookm: hookm()
        if NP > 3: I(f"v_max3_f32 v{vM}, v{vM}, v{vU+5}, v{vU+6}\nv_max_f32 v{vM}, v{vM}, v{vU+7}")
        else: I(f"v_max_f32 v{vM}, v{vU}, v{vU+1}")
        red = ("row_ror:8 row_mask:0xf", "row_ror:4 row_mask:0xf", "row_bcast:15 row_mask:0xa", "row_bcast:31 row_mask:0xc")
        for x in red: I(f"v_max_f32_dpp v{vM}, v{vM}, v{vM} {x} bank_mask:0xf")
        I(f"v_readlane_b32 s{sM}, v{vM}, 63")
        def prob(p): return [f"v_subrev_f32 v{vU+p}, s{sM}, v{vU+p}", f"v_exp_f32 v{vU+p}, v{vU+p}",
                             f"v_mov_b32 v{vL}, v{vU+p}" if p == 0 else f"v_add_f32 v{vL}, v{vL}, v{vU+p}",
                             f"v_cvt_pk_bf16_f32 v{vU+p}, v{vU+p}, v{vU+p}",
                             f"v_mov_b32_dpp v{vU+p}, v{vU+p} quad_perm:[1,1,3,3] {dm} bank_mask:0xf"]
        def diag(i, j):
            d = vQ + 4 * (i & 1) + j; u = vU + i // 2
            if (j >> 1) == (i & 1): I(f"v_and_b32 v{d}, v{u}, v{vMask + j}")
            else: I(f"v_and_b32_dpp v{d}, v{u}, v{vMask + j} {'row_shl:4' if i & 1 else 'row_shr:4'} {dm} bank_mask:0xf bound_ctrl:0")
        a.drain()
        p0 = prob(0); p1 = prob(1)
        for t in (p0[0], p0[1], p1[0], p0[3 - 1], p0[3], p1[1], f"v_mov_b32 v{vM}, s{sM}", p0[4]): I(t)
        pend = p1[2:]
        for j in (0, 1): diag(0, j)
        I(pend.pop(0))
        for j in (2, 3): diag(0, j)
        if guard: a.barrier()
        if self.c.get("fa"): self.fs("p2start")
        lred = []
        for i, g in enumerate(order):
            self.check_slot(Vn, b, g)
            if (Vn, g) in SLOT: V = SLOT[(Vn, g)]
            else:
                if not early: lds_v(g)
                V = [v4(vU + 2 + 4 * c) for c in range(3)]
            A = v4(vQ + 4 * (i & 1))
            nx = i + 1 < G
            if (i & 1) == 1 and i // 2 + 2 < NP: assert not pend; pend = prob(i // 2 + 2)
            if i == G - 2: assert not pend; lred = [f"v_add_f32_dpp v{vL}, v{vL}, v{vL} {x} bank_mask:0xf" for x in red]
            for c in range(3):
                acc = v4(vACC + 4 * c)
                I(f"v_mfma_f32_16x16x32_bf16 {acc}, {A}, {V[c]}, {acc if i else 0}")
                if nx and c < 2: diag(i + 1, 2 * c + 0 if (i + 1) & 1 == 0 else (2 * c + 2) % 4); diag(i + 1, 2 * c + 1 if (i + 1) & 1 == 0 else (2 * c + 3) % 4)
                if pend: I(pend.pop(0))
                if lred: I(lred.pop(0))
                if i == 0 and c == 1: I(f"ds_write_b32 v51, v{vM}")
                if i == G - 1 and c == 1: I(f"s_mov_b64 exec, {sp(mL63)}\nds_write_b32 v51, v{vL} offset:16\ns_mov_b64 exec, -1")
            if early and g == 2: lds_v(3)
            if hook2: hook2(i)
        if self.c.get("fa"): self.fs("p2end")
        for c, (lo, hi) in enumerate(((0xffffffff, 0), (0x00ff00ff, 0xff00ff00), (0, 0xffffffff))):
            I(f"s_mov_b32 exec_lo, {lo:#x}\ns_mov_b32 exec_hi, {hi:#x}\nds_write_b128 v50, {v4(vACC + 4 * c)} offset:{512 * c}")
        I("s_mov_b64 exec, -1")
        if pre_bar: pre_bar()
        self.fs("att_end")
        a.barrier()
        self.combine(b, L)
        self.fs("pub2")
    def combine(self, b, L):
        a = self.a; I = a.I; inst = 4 * b + L; a.comment("merge the four waves' partials and publish")
        I("ds_read_b128 v[44:47], v9\nds_read_b128 v[48:51], v9 offset:16")
        for i in range(0, 8, 2): I(f"ds_read2st64_b32 {v2(12 + i)}, v10 offset0:{3 * i} offset1:{3 * i + 3}")
        I("v_max3_f32 v52, v44, v45, v46\nv_max_f32 v52, v52, v47")
        for w in range(4): I(f"v_sub_f32 v{44+w}, v{44+w}, v52")
        for w in range(4): I(f"v_exp_f32 v{44+w}, v{44+w}")
        for w in range(4): I(f"v_add_f32 v{12 + 2 * w}, v{12 + 2 * w}, v{13 + 2 * w}")
        I("v_mul_f32 v20, v44, v12\nv_fmac_f32 v20, v45, v14\nv_fmac_f32 v20, v46, v16\nv_fmac_f32 v20, v47, v18")
        I("v_mul_f32 v53, v44, v48\nv_fmac_f32 v53, v45, v49")
        I("v_mov_b32_dpp v21, v20 quad_perm:[1,1,3,3] row_mask:0xf bank_mask:0xf")
        I("v_fmac_f32 v53, v46, v50\nv_fmac_f32 v53, v47, v51\nv_cvt_pk_bf16_f32 v20, v20, v21")
        I(f"v_cndmask_b32 v52, v52, v53, {sp(mBIT1)}\nv_cndmask_b32 v20, v20, v52, {sp(mW3)}\nv_min_u32 v20, -2, v20")
        I(f"s_mov_b64 exec, {sp(mPub2)}" if H2_S == 384 else f"s_not_b64 exec, {sp(mODD)}")
        self.publish(f"buffer_store_dword v20, v11, {s4(WS)}, s{sOffP} offen {{pol}}", True)
        I("s_mov_b64 exec, -1")
    def wo_addr(self, b, L):
        I = self.a.I
        I(f"v_bfe_u32 v8, v0, 1, 3\nv_lshrrev_b32 v9, 4, v0\nv_and_b32 v7, 1, v0\nv_lshl_add_u32 v7, v9, 1, v7\nv_lshlrev_b32 v7, 4, v7\ns_movk_i32 s{sT0}, {H2_S}\nv_mad_u32_u24 v7, v8, s{sT0}, v7")
        I(f"v_lshl_add_u32 v8, v9, 1, v8\nv_and_b32 v8, 7, v8\nv_mul_u32_u24 v8, {16 if H2_S == 384 else H2_S}, v8\ns_add_u32 s{sOffW}, s{h2(4 * b + L)[1]}, {h2(4 * b + L)[2]}")
    def wo(self, b, L, between=None, hoisted=False, hoist=False, after=None):
        a = self.a; a.comment(f"---- row {b} layer {L}: gather attention partials, output projection partial"); I = a.I; inst = 4 * b + L; ty = L & 1
        if not hoisted: self.wo_addr(b, L)
        loads = [f"buffer_load_dwordx2 v[52:53], v8, {s4(WS)}, s{sOffW} offen offset:{3072 if H2_S == 384 else 384} sc1"]
        loads += [f"buffer_load_dwordx4 {v4(12 + 4 * t)}, v7, {s4(WS)}, s{sOffW} offen offset:{128 * t} sc1" for t in range(3)]
        S = [24, 28, 32, 36, 40, 44]
        def rd(kk, reg, tile):
            o = 10240 * (kk >> 1) + 1280 * (kk & 1) + 32 * tile
            I(f"ds_read_b64_tr_b16 {v2(reg)}, v10 offset:{o}\nds_read_b64_tr_b16 {v2(reg + 2)}, v10 offset:{o + 640}")
        def pre():
            I(f"v_bfe_u32 v10, v0, 2, 2\nv_and_b32 v11, 48, v0\nv_add_u32 v10, v10, v11\nv_mul_u32_u24 v10, 160, v10\nv_and_b32 v11, 3, v0\nv_lshl_add_u32 v10, v11, 3, v10")
            I(f"s_lshl_b32 s{sT0}, s{sW2}, 6\ns_add_u32 s{sT1}, s{sT0}, {WO[ty]}\nv_add_u32 v10, s{sT1}, v10")
            for kk in range(6): rd(kk, S[kk], 0)
            I(f"v_and_b32 v11, 15, v0\nv_lshlrev_b32 v11, 1, v11\nv_and_b32 v9, 32, v0\nv_add3_u32 v11, v11, v9, s{sT0}\ns_add_u32 s{sOffP}, s{h3(inst)[0]}, {h3(inst)[2]}")
            if hoist: self.yg_addr()
            if between: between()
        D0, D1 = 48, 24
        mt = lambda D, t, B, first: f"v_mfma_f32_16x16x32_bf16 {v4(D)}, {v4(12 + 4 * t)}, {v4(B)}, {0 if first else v4(D)}"
        def mm(*k): I(mt(*k))
        self.gather(loads, [52, 53] + list(range(12, 24)), 9, between=pre, sleep=self.lsleep(), first=hoisted and self.c.get('first', 3) & 1,
                    spec=[mt(D0, 0, S[0], True), mt(D0, 1, S[2], False), mt(D0, 2, S[4], False)])
        if after: after()
        dpp = lambda op, d, x, ctl: I(f"{op}_dpp v{d}, v{x}, v{x} {ctl} row_mask:0xf bank_mask:0xf")
        def fold(out):
            I(f"v_add_f32 v{D0}, v{D0}, v{D1 + 1}\nv_add_f32 v{D0 + 2}, v{D0 + 2}, v{D1 + 3}\nv_mul_f32 v{out}, v7, v{D0}\nv_fmac_f32 v{out}, v8, v{D0 + 2}")
        dpp("v_max_f32", 9, 52, "row_ror:8")
        mm(D1, 0, S[1], True); rd(0, S[2], 1); dpp("v_max_f32", 9, 9, "row_ror:4")
        mm(D1, 1, S[3], False); rd(2, S[4], 1); dpp("v_max_f32", 9, 9, "row_ror:2")
        mm(D1, 2, S[5], False); I("v_sub_f32 v52, v52, v9\nv_exp_f32 v52, v52"); rd(4, S[1], 1); I("v_mul_f32 v53, v52, v53")
        rd(1, S[3], 1); dpp("v_add_f32", 53, 53, "row_ror:8")
        rd(3, S[5], 1); dpp("v_add_f32", 53, 53, "row_ror:4")
        I(f"v_add_f32 v{D0}, v{D0}, v{D1 + 1}\nv_add_f32 v{D0 + 2}, v{D0 + 2}, v{D1 + 3}")
        dpp("v_add_f32", 53, 53, "row_ror:2")
        I(f"v_mov_b32 v7, v{D0}\nv_mov_b32 v8, v{D0 + 2}\nv_rcp_f32 v53, v53")
        mm(D0, 0, S[2], True); rd(5, S[2], 1)
        I("v_mul_f32 v9, v52, v53")
        mm(D0, 1, S[4], False); mm(D0, 2, S[1], False)
        I("v_mul_f32_dpp v52, v9, v7 row_newbcast:0 row_mask:0xf bank_mask:0xf")
        mm(D1, 0, S[3], True)
        I("v_mov_b32_dpp v7, v9 row_newbcast:0 row_mask:0xf bank_mask:0xf")
        mm(D1, 1, S[5], False)
        I("v_fmac_f32_dpp v52, v9, v8 row_newbcast:2 row_mask:0xf bank_mask:0xf")
        mm(D1, 2, S[2], False)
        I("v_mov_b32_dpp v8, v9 row_newbcast:2 row_mask:0xf bank_mask:0xf")
        fold(53)
        I("v_permlane32_swap_b32 v52, v53\nv_add_f32 v52, v52, v53\nv_mov_b32 v53, v52\nv_permlane16_swap_b32 v52, v53\nv_add_f32 v52, v52, v53")
        I("v_mov_b32_dpp v53, v52 quad_perm:[1,1,3,3] row_mask:0xf bank_mask:0xf\nv_cvt_pk_bf16_f32 v52, v52, v53\nv_min_u32 v52, -2, v52")
        I(f"s_mov_b64 exec, {sp(mWOST)}")
        self.publish(f"buffer_store_dword v52, v11, {s4(WS)}, s{sOffP} offen {{pol}}", False)
        I("s_mov_b64 exec, -1")
    def yg_addr(self):
        self.a.I(f"v_lshrrev_b32 v54, 4, v0\nv_mul_u32_u24 v54, {H3_H}, v54\nv_and_b32 v9, 15, v0\nv_lshl_add_u32 v54, v9, 4, v54")
    def yg_pre(self, b, L):
        I = self.a.I
        if h3(4 * b + L)[1] is None: I(f"s_add_u32 s{sOffG}, s{sX3g0}, {h3(4 * b + L)[2]}\ns_add_u32 s{sOffG2}, s{sX3g1}, {h3(4 * b + L)[2]}")
        else: I(f"s_mul_i32 s{sT0}, s{sWave}, {8 * H3_H}\ns_add_u32 s{sOffG}, s{sH3grp}, s{sT0}\ns_add_u32 s{sOffG}, s{sOffG}, {(4 * b + L) * H3_I}\ns_add_u32 s{sOffG2}, s{sOffG}, {4 * H3_H}")
        for j in range(4): I(f"v_and_b32 v{16 + j}, 0x3f803f80, v{vMask + j}")
        for j in range(8): I(f"v_mov_b32 v{8 + j}, 0")
    def yg(self, b, L, between=None, pre_bar=None, hoisted=False, after=None):
        a = self.a; a.comment(f"---- row {b} layer {L}: gather output partials, residual"); I = a.I; inst = 4 * b + L; Yb = Y + YSZ * b
        if not hoisted: self.yg_addr(); self.yg_pre(b, L)
        loads = [f"buffer_load_dwordx4 {v4(8 + 4 * j)}, v54, {s4(WS)}, s{(sOffG, sOffG2)[j]} offen sc1" for j in range(2)]
        self.gather(loads, range(8, 16), 7, between=between, emask=sp(mN10),
                    spec=["v_mfma_f32_16x16x32_bf16 v[20:23], v[16:19], v[8:11], 0", "v_mfma_f32_16x16x32_bf16 v[20:23], v[16:19], v[12:15], v[20:23]"])
        if after: after()
        I(f"v_and_b32 v7, 15, v0\nv_lshlrev_b32 v7, 5, v7\nv_and_b32 v54, 16, v0\nv_add3_u32 v7, v7, v54, s{sYw}")
        I(f"s_mov_b32 exec_lo, s{mN10}\ns_mov_b32 exec_hi, 0\nds_write_b128 v7, v[20:23] offset:{YSZ * b}\ns_mov_b64 exec, -1")
        I(f"v_lshl_add_u32 v7, v0, 2, s{sXROWw}\nds_read_b32 v54, v7 offset:{640 * b}")
        I(f"v_lshlrev_b32 v14, 3, v0\nv_add_u32 v14, {Yb}, v14")
        if L < 3: self.wq_addr(b, L + 1)
        if pre_bar: pre_bar()
        a.barrier()
        I("s_mov_b32 exec_hi, 0xff")
        I("ds_read2_b64 v[8:11], v14 offset0:0 offset1:40\nds_read2_b64 v[12:15], v14 offset0:80 offset1:120")
        I("v_lshlrev_b32 v16, 16, v54\nv_and_b32 v17, 0xffff0000, v54")
        I("v_pk_add_f32 v[8:9], v[8:9], v[10:11]\nv_pk_add_f32 v[12:13], v[12:13], v[14:15]\nv_pk_add_f32 v[8:9], v[8:9], v[12:13]")
        I("v_cvt_pk_bf16_f32 v8, v8, v9\nv_and_b32 v9, 0xffff0000, v8\nv_lshlrev_b32 v8, 16, v8\nv_pk_add_f32 v[8:9], v[8:9], v[16:17]\nv_cvt_pk_bf16_f32 v8, v8, v9")
        if L < 3: I(f"ds_write_b32 v7, v8 offset:{640 * b}")
        else:
            I(f"s_cmp_lg_u32 s{sWave}, 0"); a.skip_begin("s_cbranch_scc1")
            I(f"s_mul_i32 s{sT0}, s{sS}, 160\nv_lshlrev_b32 v7, 2, v0")
            I(f"buffer_store_dword v8, v7, {s4(XO)}, s{sT0} offen offset:{1280 * b}")
            a.skip_end()
        I("s_mov_b64 exec, -1")
    def touch(self, b, L, lvl=1):
        if self.c.get("touch", 1) < lvl: return
        a = self.a; I = a.I; m = self.c.get("tm", 3)
        I(f"s_mov_b32 m0, {JUNK}\ns_mov_b64 exec, 3")
        if m & 1:
            I(f"v_mov_b32 v31, s{sPub2}\ns_add_u32 s{sT1}, s{h2(4 * b + L)[0]}, {h2(4 * b + L)[2]}")
            I(f"buffer_load_dword v31, {s4(WS)}, s{sT1} offen sc1 lds")
        if L < 3 and m & 2:
            I(f"s_lshl_b32 s{sT0}, s{sWave}, 8\nv_lshl_add_u32 v31, v0, 7, s{sT0}\ns_add_u32 s{sT1}, s{h1(4 * b + L + 1)[0]}, {h1(4 * b + L + 1)[2]}")
            I(f"buffer_load_dword v31, {s4(WS)}, s{sT1} offen sc1 lds")
        I("s_mov_b64 exec, -1")
    def chain_idle(self, b, L, burst=(0, 0, 0), sh=(0, 0, 0, 0), pf=(0, 0, 0)):
        a = self.a; U = lambda n: (lambda: self.stream(n, paced=False))
        if self.c.get("skip3", 1):
            a.I(f"s_cmp_eq_u32 s{sWave}, 3"); a.skip_begin("s_cbranch_scc1")
            self.wo(b, L, hoisted=True)
            a.skip_end()
            self.yg_addr()
            self.stream(sh[0] + sh[1], paced=False)
            self.pfreg = 7; self.prefetch(pf[0])
        else:
            self.wo(b, L, between=U(burst[0]), hoisted=True, hoist=True, after=U(sh[0]))
            self.stream(sh[1], paced=False)
        self.stamp(f"wo{b}{L}")
        self.fs("pub3")
        late = self.c.get("late", 2)
        if L == 3:
            a.I(f"s_cmp_eq_u32 s{sH}, 1\ns_cbranch_scc1 L_out0")
            a.I(f"s_cmp_lg_u32 s{sH}, 0\ns_cbranch_scc1 L_fin")
            self.page()
        dfr = self.deferred; self.deferred = []
        pub = a.vm.last_tag("pub")
        for jobs in dfr: self.clear_prep(jobs); self.clear_issue("clr3")
        if L < 3 and not late: self.wq_pre((L + 1) & 1)
        if late < 2: self.yg_pre(b, L)
        a.wait_tag("pub"); a.barrier()
        if L < 3 and late: self.wq_pre((L + 1) & 1)
        if late >= 2: self.yg_pre(b, L)
        self.yg(b, L, between=lambda: (self.stream(burst[1], paced=False), self.page() if L < 3 else None), hoisted=True, after=lambda: (self.stream(sh[2], paced=False), self.prefetch(pf[1])), pre_bar=(lambda: a.wait_tag("clr3")) if dfr else None)
        self.fs("xrow")
        if L == 3: return
        self.wq_main(b, L + 1, hoisted=True, hoist=True)
        self.fs("pub1")
        self.stamp(f"wq{b}{L+1}")
        self.qg(b, L + 1, between=U(burst[2]), hoisted=True, tail=True, after=lambda: (self.touch(b, L + 1) if self.c.get("touch", 1) != 3 or (b, L) == (0, 1) else None, self.stream(sh[3], paced=False), self.prefetch(pf[2])))
        self.stamp(f"qg{b}{L+1}")
    def build(self):
        a = self.a; c = self.c; W = self.W; WE = c.get("WE", W); HE = c.get("HE", 4); PG = c.get("PG", 0)
        self.off_val = None
        for x in c.get("order", "kvw"):
            if x == "w": self.add_w("wqA", pWQA, "q", 0)
            else:
                for g in range(4): self.add_kv("KA" if x == "k" else "VA", 0, g)
        self.add_w("woA", pWOA, "o", 0); self.add_w("wqB", pWQB, "q", 1)
        for g in range(16): self.add_kv("KB", 0, g)
        wl = c.get("wolate", 0)
        if not wl: self.add_w("woB", pWOB, "o", 1)
        for g in range(16): self.add_kv("VB", 0, g)
        if wl: self.add_w("woB", pWOB, "o", 1, late=True)
        p1 = len(self.items)
        for g in range(4): self.add_kv("KA", 1, g)
        for g in range(4): self.add_kv("VA", 1, g)
        p2 = len(self.items)
        for g in range(16): self.add_kv("KB", 1, g)
        for g in range(16): self.add_kv("VB", 1, g)
        st = self.stream_to; S = lambda n: (lambda: self.stream(n))
        self.limit = p1; a.nobar = c.get('nobar', 0)
        self.setup()
        if c.get("inject", 1): a.inject = self.injector
        if c.get("streamonly"):
            self.limit = 10**9; self.npage = 0; self.hot = []; self.inl = False; self.boost = 0; a.inject = None
            for upto in c["streamonly"]:
                if isinstance(upto, tuple): st(upto[0], W=upto[1])
                else: st(upto)
                self.stamp("end")
            a.wait(vm=0); self.stamp("end")
            return self.finish()
        P = c.get("P1", dict(arr=24, hs=36, qg0=44, wo=76, yg=104, qg1=130))
        for _ in range(c.get("pad", 0)): a.I("s_nop 0")
        a.raw("L_pf0:")
        self.stamp("setup")
        a.wait_tag("clr"); a.barrier()
        self.arrive()
        st(max(P["arr"], self.index_after("wqA") + 4))
        self.stamp("arr")
        a.wait_tag("wqA"); a.barrier()
        self.wq_pre(0); self.wq_main(0, 0, local_ok=False)
        self.wq_pre(0); self.wq_main(1, 0, local_ok=False)
        self.stamp("wq")
        st(P["hs"]); self.handshake(S(W))
        for r, m, base in ((sCTw, 256, CT), (sATTw, 1536, ATT), (sSTATw, 4, STAT), (sCOMBw, 256, ATT)):
            a.I(f"s_mul_i32 s{r}, s{sWave}, {m}\ns_add_u32 s{r}, s{r}, {base}")
        P_ = lambda i: [("P", i)]
        now = [[P_(1), [("C", 1)], P_(2), [("2", 1), ("3", 1)]], [[("3", 2), ("3", 3)], [("3", 4), ("3", 5)], [("3", 6), ("3", 7)], [("3", 6), ("3", 7)]]]
        self.deferred = [[P_(3), P_(5), P_(6), P_(7)], [[("2", 2), ("2", 3)], [("2", 4), ("2", 5)], [("2", 6), ("2", 7)], [("2", 6), ("2", 7)]]]
        if not c.get("defer", 1): now += self.deferred; self.deferred = []
        for jobs in now:
            self.clear_prep(jobs); self.clear_issue("clr2"); self.stream(1)
        self.stamp("hs")
        st(P["qg0"]); self.qg(0, 0, between=S(W))
        self.stamp()
        self.att(0, 0, pre_bar=lambda: (st(self.index_after("woA")), a.wait_tag("woA"), a.wait_tag("clr2")))
        self.stamp()
        self.qg(1, 0, between=S(W))
        self.stamp("qg10")
        st(P["wo"]); self.wo(0, 0, between=S(W))
        self.stamp("wo00")
        st(P["yg"]); self.yg(0, 0, between=S(W), pre_bar=lambda: a.wait_tag("wqB"))
        self.stamp("yg00")
        self.wq_pre(1); self.wq_main(0, 1, hoisted=True)
        self.stream(3, paced=False); self.warm([0, 1, 2, "R"])
        if c.get("cpf") == 2: self.code_prefetch("L_pf1", "L_pf2")
        st(P["qg1"]); self.touch(0, 1, 2) if c.get('touch') == 2 else None; self.qg(0, 1, tail=True, between=lambda: self.stream(min(WE, p1 - self.pos), W=WE))
        a.raw("L_pf1:")
        self.stamp()
        st_ = 64 << c.get("pfs", 6)
        self.pfq = [(KA, o) for o in range(0, 12288, st_)] + [(VA, o) for o in range(0, 12288, st_)] + [(KB, o) for o in range(0, 49152, st_)]
        self.pfreg = 54
        vb0 = self.index_after(("VB", 0, 0)) - 3
        assert self.pos >= vb0 + 3
        if wl: assert self.pos <= p1 - 8
        self.att(0, 1, hook1=lambda g: self.stream(min(1, p1 - self.pos), W=WE) if g % HE == HE - 1 else None,
                 hook2=lambda i: (st(min(p1, vb0 + 3 * (i + 2) + WE - 3), W=WE), self.page() if i == PG else None, self.prefetch(c.get("pf0", 0)) if i == c.get("pfi", 11) else None), pre_bar=lambda: st(p1, W=WE) if wl else a.wait_tag("woB"), hoist=True, qaddr=True)
        if wl: a.wait_tag("woB"); a.barrier()
        assert self.pos == p1
        a.inject = None; self.limit = p2
        self.stamp("p1end")
        self.chain_idle(0, 1, pf=c.get("pf1", (0, 0, 0)))
        bu = c.get("burst", (6, 0, 0, 0)); sh = c.get("sh", (0, 9, 3, 6))
        self.att(0, 2, hookm=lambda: self.stream(bu[0], paced=False), hoist=True, qaddr=True)
        self.stamp("att02")
        self.pfq = [x for x in self.pfq if x[0] == KB]
        self.chain_idle(0, 2, burst=bu[1:], sh=sh, pf=c.get("pf2", (0, 0, 0)))
        self.stamp("p2beg")
        self.limit = len(self.items)
        n0 = c.get("n0", 9); h2 = c.get("h2", 2); q0 = self.pos
        def hook03(g):
            self.stream(max(0, min(3, q0 + n0 - self.pos, p2 + 3 * g + 3 - self.pos)), paced=False)
        self.att(0, 3, hook1=hook03, hook2=lambda i: self.stream(1, paced=False) if i % h2 == h2 - 1 else None, qaddr=True)
        self.stamp("att03")
        a.raw("L_pf2:")
        P = c.get("P2", dict(att=8, wo=34, yg=62, qg=80))
        if c.get("inject", 1): a.inject = self.injector
        st(p2 + P.get("att", 0))
        self.att(1, 0, guard=True, hook2=lambda i: self.stream(2))
        self.stamp("att10")
        st(p2 + P["wo"]); self.stamp("a"); self.wo(1, 0, between=S(W)); self.stamp("wo10"); self.wo(0, 3, between=S(W)); self.stamp("wo03")
        st(p2 + P["yg"]); self.stamp("b"); self.yg(1, 0, between=S(W)); self.stamp("yg10")
        self.wq_pre(1); self.wq_main(1, 1, hoisted=True)
        self.stream(3, paced=False); self.warm([3, 4, 5, 6])
        if c.get("cpf") == 2: self.code_prefetch("L_pf3", "L_pf9")
        st(p2 + P["qg"]); self.stamp("c"); self.touch(1, 1, 2) if c.get('touch') == 2 else None; self.qg(1, 1, tail=True, between=lambda: self.stream(WE, W=WE))
        a.raw("L_pf3:")
        self.stamp("qg11")
        vb1 = p2 + 48
        self.att(1, 1, hook1=lambda g: self.stream(1, W=WE) if g % HE == HE - 1 else None,
                 hook2=lambda i: (st(min(len(self.items), vb1 + 3 * (i + 2) + WE - 3), W=WE), self.page() if i == PG else None), hoist=True, qaddr=True)
        assert self.pos == len(self.items)
        a.inject = None
        self.stamp("p2end")
        self.chain_idle(1, 1)
        self.fine_on = c.get("fine") == 1
        self.fs("q_ready")
        self.att(1, 2, hoist=True, qaddr=True)
        self.stamp("att12")
        self.chain_idle(1, 2)
        self.fs("q_ready")
        if c.get("fine") == 2: self.fine_on = True; self.fs("q_ready")
        self.att(1, 3, hoist=True, qaddr=True)
        self.stamp("att13")
        self.chain_idle(1, 3)
        a.I("s_branch L_fin"); a.raw("L_out0:"); a.I("s_nop 7"); a.wait(vm=0, lg=0)
        self.yg(0, 3)
        a.raw("L_fin:"); a.I("s_nop 7")
        if c.get("hold"):
            a.raw("L_hold:"); a.I(f"s_memrealtime s[38:39]"); a.wait(lg=0)
            a.I(f"s_sub_u32 s38, s38, s{98 if c.get('holdat') else sST}\ns_cmp_lt_u32 s38, {c['hold']}\ns_cbranch_scc1 L_hold")
        self.fs("end")
        self.stamp("end")
        return self.finish()
    def finish(self):
        a = self.a; c = self.c
        if c.get("fine"):
            a.wait(lg=0)
            for i in range(self.nfine): a.I(f"v_writelane_b32 v{vStamp}, s{FS[i]}, {i}")
            print("fine stamps:", self.fnames)
        if c.get("diag"):
            a.I("s_sleep 100")
            a.I(f"v_writelane_b32 v{vStamp}, s{sRetry}, 62\nv_writelane_b32 v{vStamp}, s{sLocal}, 63")
            a.I(f"s_lshl_b32 s{sT0}, s{sWG}, 10\ns_lshl_b32 s{sT1}, s{sWave}, 8\ns_add_u32 s{sT0}, s{sT0}, s{sT1}\ns_add_u32 s{sT0}, s{sT0}, {DIAG}\nv_lshlrev_b32 v7, 2, v0")
            a.I(f"buffer_store_dword v{vStamp}, v7, {s4(WS)}, s{sT0} offen")
        if c.get("diag") and not c.get("fine"): print("stamps:", " ".join(self.snames))
        a.raw("L_end:"); a.raw("  s_endpgm")
        if c.get("pages", 1): self.hot = [f".p2align {c.get('hotal', 12)}\nLstR:\n  s_setpc_b64 {sp(sRet)}"] + self.hot
        a.tail = self.hot + a.tail
        a.tail.append("L_pf9:\n  s_endpgm")
        body = a.text()
        return (HEAD + f"; @launch grid=(256,1,1) block=(256,1,1) lds={LDS_BYTES}\n" + DOC
                + f'.amdgcn_target "amdgcn-amd-amdhsa--gfx950"\n.text\n.globl {NAME}\n.p2align 8\n.type {NAME},@function\n{NAME}:\n'
                + body + f'.section .rodata,"a"\n.p2align 6\n.amdhsa_kernel {NAME}\n  .amdhsa_next_free_vgpr 512\n  .amdhsa_next_free_sgpr 102\n'
                + "  .amdhsa_accum_offset 256\n  .amdhsa_group_segment_fixed_size 0\n  .amdhsa_kernarg_size 104\n  .amdhsa_user_sgpr_count 2\n"
                + "  .amdhsa_user_sgpr_kernarg_segment_ptr 1\n  .amdhsa_system_sgpr_workgroup_id_x 1\n.end_amdhsa_kernel\n")

def generate(cfg):
    global COMPACT1; COMPACT1 = cfg.get('c1', 0)
    global H1_I, H1_H, H1_S, H2, H2_I, H2_H, H2_S, H3, H3_I, H3_S, H3_H
    H1_S = cfg.get("H1S", 2048); H1_H = cfg.get("H1H", 8 * H1_S); H1_I = 32 * H1_H
    H2_S = cfg.get("H2S", 384); H2_H = cfg.get("H2H", 8 * H2_S if H2_S != 384 else 4096); H2_I = 32 * H2_H; H2 = cfg.get("H2B", 8 * H1_I); assert H2 >= 8 * H1_I
    H3_H = cfg.get("H3H", 192); H3_S = cfg.get("H3S", 32 * H3_H); H3_I = cfg.get("H3I", max(8 * H3_S, 32 * H3_H)); H3 = cfg.get("H3B", H2 + 8 * H2_I); assert H3 >= H2 + 8 * H2_I
    global USE_HOT; USE_HOT = cfg.get("hot", 0)
    assert H3 + 8 * H3_I <= (6 << 20) and not (USE_HOT and COMPACT1) and H3_H <= 256
    return Gen(cfg).build()
if __name__ == "__main__":
    cfg = eval(sys.argv[2]) if len(sys.argv) > 2 else {}
    open(sys.argv[1], "w").write(generate(cfg))
```

```python
import re

TRANS = ("v_exp_f32", "v_log_f32", "v_rcp_f32", "v_rsq_f32", "v_sqrt_f32", "v_sin_f32", "v_cos_f32")
REG_RE = re.compile(r"^(-?)(?:abs\()?([vas])(?:(\d+)|\[(\d+):(\d+)\])\)?$")

def regs_of(tok):
    tok = tok.strip()
    if tok in ("vcc",): return [("s", "vcc")]
    if tok in ("exec",): return [("s", "exec")]
    if tok == "m0": return [("s", "m0")]
    m = REG_RE.match(tok)
    if not m: return []
    k = m.group(2)
    if m.group(3) is not None: return [(k, int(m.group(3)))]
    return [(k, i) for i in range(int(m.group(4)), int(m.group(5)) + 1)]

class Inst:
    def __init__(self, text):
        self.text = text
        t = text.split(None, 1)
        self.op = t[0]
        rest = t[1] if len(t) > 1 else ""
        parts = []; depth = 0; cur = ""
        for ch in rest:
            if ch == "[": depth += 1
            if ch == "]": depth -= 1
            if ch == "," and depth == 0: parts.append(cur); cur = ""
            else: cur += ch
        parts.append(cur)
        self.mods = ""
        last = parts[-1].strip().split(None, 1)
        if last:
            parts[-1] = last[0]
            self.mods = last[1] if len(last) > 1 else ""
        self.ops = [p.strip() for p in parts if p.strip()]
        op = self.op
        self.is_mfma = op.startswith("v_mfma")
        self.is_valu = op.startswith("v_") and not self.is_mfma
        self.is_ds = op.startswith("ds_")
        self.is_vmem = op.startswith(("buffer_", "global_"))
        self.is_smem = op.startswith(("s_load", "s_memrealtime", "s_memtime"))
        self.is_salu = op.startswith("s_") and not self.is_smem
        self.is_dpp = "_dpp" in op
        self.is_trans = op.startswith(TRANS)
        self.is_lds_dma = self.is_vmem and (re.search(r"\blds\b", self.mods) is not None or "_lds_" in op)
        R = [regs_of(o) for o in self.ops]
        dst = []; src = []
        self.srcC = []; self.srcAB = []; self.data = []
        if self.is_mfma:
            dst = R[0]; self.srcAB = R[1] + R[2]; self.srcC = R[3]; src = self.srcAB + self.srcC
        elif op.startswith("v_permlane") and "swap" in op:
            dst = R[0] + R[1]; src = R[0] + R[1]
        elif op.startswith("v_cmp"):
            dst = R[0]; src = sum(R[1:], [])
        elif op.startswith(("v_add_co", "v_sub_co", "v_addc_co")):
            dst = R[0] + R[1]; src = sum(R[2:], [])
        elif self.is_valu:
            dst = R[0]; src = sum(R[1:], [])
            if op.startswith(("v_fmac", "v_writelane")) or self.is_dpp: src = src + R[0]
            if op.startswith("v_cndmask") and len(self.ops) == 3: src = src + [("s", "vcc")]
        elif self.is_ds:
            if op.startswith("ds_read"): dst = R[0]; src = sum(R[1:], [])
            else: src = sum(R, [])
        elif self.is_vmem:
            if self.is_lds_dma: src = sum(R, []) + [("s", "m0")]
            elif "load" in op: dst = R[0]; src = sum(R[1:], [])
            else:
                src = sum(R, [])
                if "store" in op and ("x4" in op or "x3" in op):
                    self.data = R[0] if op.startswith("buffer") else R[1]
        elif self.is_smem:
            dst = R[0]; src = sum(R[1:], [])
        elif self.is_salu:
            if op.startswith(("s_cmp", "s_cbranch", "s_branch", "s_waitcnt", "s_nop", "s_barrier", "s_sleep", "s_endpgm", "s_setprio")):
                src = sum(R, [])
                if "vcc" in op: src = src + [("s", "vcc")]
            else:
                dst = R[0]; src = sum(R[1:], [])
        self.dst = dst; self.src = src
        self.states = 1
        if op == "s_nop": self.states = int(self.ops[0]) + 1

class Fifo:
    def __init__(self, name, maxn):
        self.name = name; self.ent = []; self.done = 0; self.maxn = maxn
    def push(self, tag=None):
        self.ent.append([tag, True]); return len(self.ent) - 1
    def younger(self, idx):
        return sum(1 for e in self.ent[idx + 1:] if e[1])
    def need(self, idx):
        if idx < self.done: return None
        return min(self.younger(idx), self.maxn)
    def waited(self, n):
        c = 0
        for i in range(len(self.ent) - 1, -1, -1):
            if c >= n:
                self.done = max(self.done, i + 1); return
            if self.ent[i][1]: c += 1
    def outstanding(self):
        return len(self.ent) - self.done
    def last_tag(self, tag):
        for i in range(len(self.ent) - 1, -1, -1):
            if self.ent[i][0] == tag: return i
        raise KeyError(tag)

class Asm:
    def __init__(self):
        self.out = []
        self.vm = Fifo("vmcnt", 63); self.lg = Fifo("lgkmcnt", 15)
        self.pend = {}
        self.smem_pending = False
        self.clock = 0
        self.w_valu = {}; self.w_trans = {}; self.w_mfma = {}; self.r_mfmaC = {}; self.w_sgpr_valu = {}
        self.store_data = {}; self.w_m0 = -99
        self.mfma_dst_full = {}
        self.tail = []
        self.regions = []
        self.nlabel = 0
        self.nbytes = 0
        self.exec_full = True; self.scc_live = False; self.cyc = 0
        self.fill = []; self._in_fill = False
        self.inject = None; self.no_inject = 0; self._in_inject = False
    def label(self, p="L"):
        self.nlabel += 1; return f"{p}{self.nlabel}"
    def raw(self, text): self.out.append(text)
    def comment(self, text): self.out.append("; " + text)
    def _emit(self, ins):
        self.out.append("  " + ins.text); self.clock += ins.states
        op = ins.op
        if ins.is_mfma: self.cyc += 12
        elif op == "s_waitcnt": self.cyc += 70 if "lgkm" in ins.text else 4
        elif op == "s_barrier": self.cyc += 60
        elif ins.is_trans: self.cyc += 8
        elif ins.is_ds: self.cyc += 8
        else: self.cyc += 4.5 * ins.states
        if ins.ops and ins.ops[0] in ("exec", "exec_lo", "exec_hi") and ins.is_salu:
            self.exec_full = ins.text.replace(" ", "") == "s_mov_b64exec,-1"
        if op.startswith("s_cmp"): self.scc_live = True
        elif op.startswith(("s_cbranch_scc", "s_cselect")): self.scc_live = False
    def wait(self, vm=None, lg=None):
        parts = []
        if vm is not None: parts.append(f"vmcnt({vm})"); self.vm.waited(vm)
        if lg is not None:
            if self.smem_pending: lg = 0
            parts.append(f"lgkmcnt({lg})"); self.lg.waited(lg)
            if lg == 0: self.smem_pending = False
        if parts: self._emit(Inst("s_waitcnt " + " ".join(parts)))
    def wait_tag(self, tag):
        n = self.vm.need(self.vm.last_tag(tag))
        if n is not None: self.wait(vm=n)
    def pace(self, W):
        if self.vm.outstanding() > W - 1: self.wait(vm=W - 1)
    def I(self, text, tag=None):
        for t in text.split("\n"):
            t = t.strip()
            if t: self._I(t, tag)
    def _I(self, text, tag):
        ins = Inst(text)
        if ins.op == "s_waitcnt": raise ValueError("use wait()")
        vm = None; lg = None
        for r in ins.src + ins.dst:
            if r in self.pend:
                f, idx = self.pend[r]
                n = f.need(idx)
                if n is None: continue
                if f is self.vm: vm = n if vm is None else min(vm, n)
                else: lg = n if lg is None else min(lg, n)
        if vm is not None or lg is not None: self.wait(vm, lg)
        need = 0
        def req(table, regs, d):
            nonlocal need
            for r in regs:
                if r in table: need = max(need, d - (self.clock - table[r]))
        vsrc = [r for r in ins.src if r[0] in "va"]; vdst = [r for r in ins.dst if r[0] in "va"]
        ssrc = [r for r in ins.src if r[0] == "s"]
        if ins.is_dpp or "permlane" in ins.op: req(self.w_valu, vsrc, 2)
        if ins.op.startswith(("v_readlane", "v_readfirstlane")): req(self.w_valu, vsrc, 1)
        if ins.is_valu: req(self.w_trans, vsrc + vdst, 1)
        if ins.is_valu:
            req(self.w_sgpr_valu, ssrc, 4 if ins.op.startswith(("v_readlane", "v_writelane")) else 2)
        if ins.is_vmem: req(self.w_sgpr_valu, ssrc, 5)
        if ins.is_salu and not ins.op.startswith("s_cbranch"): req(self.w_sgpr_valu, ssrc, 1)
        if ins.is_mfma:
            req(self.w_valu, vsrc, 2)
            req(self.w_mfma, ins.srcAB, 8)
            if ins.srcC:
                key = (ins.srcC[0], len(ins.srcC), ins.op)
                for r in ins.srcC:
                    if r in self.w_mfma and self.mfma_dst_full.get(r) != key:
                        need = max(need, 6 - (self.clock - self.w_mfma[r]))
        else:
            if ins.is_valu or ins.is_vmem or ins.is_ds: req(self.w_mfma, vsrc + vdst, 8)
        if ins.is_valu:
            req(self.r_mfmaC, vdst, 3); req(self.store_data, vdst, 2)
        elif vdst: req(self.store_data, vdst, 1)
        if ins.is_lds_dma: need = max(need, 1 - (self.clock - self.w_m0))
        while need > 0 and self.fill and not self._in_fill and self.exec_full and not self.scc_live and not self.no_inject:
            c0 = self.clock; self.drain(1); need -= self.clock - c0
        while need > 0:
            k = min(need, 16); self._emit(Inst(f"s_nop {k-1}")); need -= k
        self._emit(ins)
        c = self.clock
        for r in ins.dst: self.pend.pop(r, None)
        if ins.is_valu:
            for r in ins.dst:
                if r[0] == "s": self.w_sgpr_valu[r] = c
                else:
                    self.w_valu[r] = c; self.w_mfma.pop(r, None)
                    if ins.is_trans: self.w_trans[r] = c
                    else: self.w_trans.pop(r, None)
        if ins.is_mfma:
            key = (ins.dst[0], len(ins.dst), ins.op)
            for r in ins.dst: self.w_mfma[r] = c; self.mfma_dst_full[r] = key; self.w_valu.pop(r, None)
            for r in ins.srcC: self.r_mfmaC[r] = c
        if ins.is_salu:
            for r in ins.dst:
                self.w_sgpr_valu.pop(r, None)
                if r == ("s", "m0"): self.w_m0 = c
        for r in ins.data: self.store_data[r] = c
        if ins.is_vmem:
            idx = self.vm.push(tag)
            assert self.vm.outstanding() <= 63, "vmcnt overflow"
            for r in ins.dst: self.pend[r] = (self.vm, idx)
        if ins.is_ds:
            idx = self.lg.push(tag)
            for r in ins.dst: self.pend[r] = (self.lg, idx)
        if ins.is_smem:
            idx = self.lg.push(tag); self.smem_pending = True
            for r in ins.dst: self.pend[r] = (self.lg, idx)
        if (self.inject and not self._in_inject and not self.no_inject and not self.regions and self.exec_full
                and not self.scc_live and (ins.is_valu or ins.is_mfma or ins.is_ds)):
            self._in_inject = True; self.inject(); self._in_inject = False
    def either(self, cond_true_text, cond_false_text, tag=None):
        l1 = self.label("Le"); l2 = self.label("Lf")
        mark = len(self.out)
        self._I(cond_true_text, tag)
        text = self.out.pop()
        self.scc_live = False
        self.out += [f"  s_cbranch_scc0 {l1}", text, f"{l2}:"]
        self.tail += [f"{l1}:", "  " + cond_false_text, f"  s_branch {l2}"]
    def skip_begin(self, branch):
        l = self.label("Ls")
        self._I(f"{branch} {l}", None)
        snap = [dict(t) for t in self._tables()]
        self.regions.append((l, len(self.vm.ent), len(self.lg.ent), self.vm.done, self.lg.done, self.clock, self.smem_pending, dict(self.pend), snap))
    def skip_end(self):
        l, nv, nl, dv, dl, clk, sp, pend, snap = self.regions.pop()
        for r, (f, idx) in list(self.pend.items()):
            if idx >= (nv if f is self.vm else nl) and idx < f.done: del self.pend[r]
        for e in self.vm.ent[nv:]: e[1] = False
        for e in self.lg.ent[nl:]: e[1] = False
        self.vm.done = min(self.vm.done, dv); self.lg.done = min(self.lg.done, dl)
        self.smem_pending = self.smem_pending or sp
        for r, v in pend.items(): self.pend.setdefault(r, v)
        d = self.clock - clk
        for t, old in zip(self._tables(), snap):
            for r, c in old.items():
                if c + d > t.get(r, -10**9):
                    t[r] = c + d
                    if t is self.w_mfma: self.mfma_dst_full[r] = None
        if self.w_m0 <= clk: self.w_m0 += d
        self.out.append(f"{l}:")
    def _tables(self):
        return (self.w_valu, self.w_trans, self.w_mfma, self.r_mfmaC, self.w_sgpr_valu, self.store_data)
    def drain(self, n=10**9):
        sv = (self._in_fill, self._in_inject); self._in_fill = self._in_inject = True
        while n > 0 and self.fill:
            for t in self.fill.pop(0).split("|"): self._I(t.strip(), None)
            n -= 1
        self._in_fill, self._in_inject = sv
    def queue(self, fn):
        got = []; sv = self.I
        self.I = lambda text, tag=None: got.extend(t.strip() for t in text.split("\n") if t.strip())
        fn(); self.I = sv
        self.fill += got
    def barrier(self):
        if self.lg.outstanding() > 0 or self.smem_pending: self.wait(lg=0)
        if getattr(self, "nobar", 0) and self.inject: return
        self._I("s_barrier", None)
    def text(self):
        return "\n".join(self.out + self.tail) + "\n"
```

```python
import sys, math
from dsl import Asm

NAME = "interleave_layers__sliding_block_cached__gqa_block_cached__decode_kernel"
HEAD = open("interleave_layers__sliding_block_cached__gqa_block_cached__decode.s.ref").read().split("; Override")[0]

KV_BYTES = 2 * 32 * 4096 * 384
BSTR = 32 * 4096 * 384
HSTR = 4096 * 384
W_BYTES = 640 * 6144 * 2
WS_BYTES = 434115584
H1_I, H1_H, H1_S = 524288, 16384, 2048
H2 = 8 * H1_I; H2_I, H2_H, H2_S = 131072, 4096, 512
H3 = H2 + 8 * H2_I; H3_I, H3_S, H3_H = 65536, 8192, 256
DIAG = 64 << 20
WQ = (0, 61440); WO = (30720, 92160)
VS = 122880
EX = 147456
ATT = EX; STAT = EX + 6144; Y = EX + 6208; YSZ = 1280; XROW = Y + 2 * YSZ; ONES = XROW + 1280; QB = ONES + 160; CT = QB + 768
JUNK = CT + 2048
LDS_BYTES = JUNK + 256
assert LDS_BYTES <= 163840
sWG, sWave = 2, 3
KA, VA, KB, VB, WS, WT, XO = 4, 8, 12, 16, 20, 24, 28
pX, pKA, pVA, pWQA, pWOA, pKB, pVB, pWQB, pWOB, pOUT, pDBG, pWS = 32, 34, 36, 38, 40, 44, 46, 48, 50, 52, 54, 56
sH, sS, sLocal, sOff, sRetry, sT0, sT1, sT2 = 58, 59, 60, 61, 62, 63, 64, 65
sH1own, sH1grp, sH2own, sH2grp, sH3own, sH3grp, sOffG, sOffP = 66, 67, 68, 69, 70, 71, 72, 73
mODD, mHI8, mHI32, mWOST, mRG1, mRG2, mRG3, m60 = 74, 76, 78, 80, 82, 84, 86, 88
sXcc, sWqRow, sWoRow, sLdsW, sLdsVS = 90, 91, 92, 93, 94
sST = 0; m40 = 98; mBIT1 = 100; mW3 = 42; mN10 = 32; sW2 = 95; sOffG2 = 35; sClr = 0; sM = 34; sOffW = 76; sRet = 78; sX1own, sX1grp, sX2own, sX2grp, sX3own, sX3g0, sX3g1 = 77, 98, 99, 52, 53, 96, 97; sPub2 = 44; sXROWw, sYw, sQw, sCTw, sATTw, sSTATw, sCOMBw = 45, 56, 57, 38, 39, 54, 55; sH1c = 77; mQ13 = 98; mPub1 = 52; mPub2 = 46; mL63 = 36
FS = [48, 50, 24, 26, 88, 90, 92]
def sp(n): return f"s[{n}:{n+1}]"
def s4(n): return f"s[{n}:{n+3}]"
def v2(n): return f"v[{n}:{n+1}]"
def v4(n): return f"v[{n}:{n+3}]"
vLane, vKoff, vVoff, vMask = 0, 1, 2, 3
vQ, vACC, vU = 12, 24, 36
vStamp = 55
QUADS = [f"a[{i}:{i+3}]" for i in range(0, 256, 4)] + [f"v[{i}:{i+3}]" for i in range(56, 256, 4)]
SLOT = {}
_names = [("KA", i) for i in range(4)] + [("VA", 0), ("VA", 1)] + [("KB", i) for i in range(16)] + [("VB", i) for i in range(16)]
for i, n in enumerate(_names): SLOT[n] = QUADS[3 * i:3 * i + 3]
assert SLOT[("VB", 15)][2] == "v[252:255]"
vWq0, vWq1, vWo = 252, 253, 254
SCALE = 192 ** -0.5 * math.log2(math.e)
import struct
def f32(x): return "0x%08x" % struct.unpack("<I", struct.pack("<f", x))[0]

DOC = "; Four decode layers (A, B, A, B) in one persistent launch, one workgroup per CU (4 waves x 512 registers, 157 KiB LDS).\n;  workgroup w: head h = 4*(w&7) + ((w>>3)&3), slice s = w>>5. It owns 1/8 of head h's cache positions for both batch rows,\n;  Speed only: the slots of the latency-bound hand-offs share one 2 MiB page of d_ws whose address bit 13 selects the memory\n"

HOT1 = {2: 0, 3: 1, 6: 2, 7: 3}; HOT2 = {1: 0, 2: 1, 5: 2, 6: 3, 7: 4}
X2 = 1 << 20; X3 = X2 + 5 * 131072; XP = X3 + 5 * 65536
USE_HOT = True
def h1(inst): return (sX1own, sX1grp, HOT1[inst] * 262144, 1024) if USE_HOT and inst in HOT1 else (sH1own, sH1grp, inst * H1_I, H1_S)
def h2(inst): return (sX2own, sX2grp, HOT2[inst] * 131072) if USE_HOT and inst in HOT2 else (sH2own, sH2grp, inst * H2_I)
def h3(inst): return (sX3own, None, HOT2[inst] * 65536) if USE_HOT and inst in HOT2 else (sH3own, sH3grp, inst * H3_I)
def c1(inst): return COMPACT1 and inst >= 2

class Gen:
    def __init__(self, cfg):
        self.c = cfg; self.a = Asm(); self.items = []; self.pos = 0; self.nstamp = 0
        self.W = cfg.get("W", 10); self.limit = 10**9; self.npage = 0; self.hot = []; self.inl = False; self.boost = 0; self.last_cyc = 0; self.fine_on = False; self.nfine = 0; self.fnames = []; self.snames = ['start']
    def add_w(self, name, ptr, kind, ty, late=False):
        pol = self.c.get("wpol", "nt")
        def mk(k):
            def f():
                a = self.a
                if k == 0:
                    off = sWqRow if kind == "q" else sWoRow
                    a.I(f"s_add_u32 s{WT}, s{ptr}, s{off}\ns_addc_u32 s{WT+1}, s{ptr+1}, 0\ns_sub_u32 s{WT+2}, {W_BYTES}, s{off}")
                    if late: a.I("v_mul_u32_u24 v54, 26, v0\nv_lshrrev_b32 v54, 8, v54\nv_mul_u32_u24 v54, 1120, v54\nv_lshl_add_u32 v54, v0, 4, v54")
                base = (WQ if kind == "q" else WO)[ty]
                a.I(f"s_add_u32 m0, s{sLdsW}, {base + 960 * k}")
                if kind == "q": so = 5 * (k // 2) * 12288; vr = vWq1 if k & 1 else vWq0
                else: so = 6 * k * 1280; vr = 54 if late else vWo
                a.I(f"s_mov_b32 s{sOff}, {so}\ns_mov_b64 exec, {sp(m60)}")
                a.I(f"buffer_load_dwordx4 v{vr}, {s4(WT)}, s{sOff} offen {pol} lds", tag=name)
                a.I("s_mov_b64 exec, -1")
            return f
        self.items += [(name, mk(k)) for k in range(8)]
    def add_kv(self, name, b, g):
        srd = {"KA": KA, "VA": VA, "KB": KB, "VB": VB}[name]
        isK = name[0] == "K"; vo = vKoff if isK else vVoff; step = 128 if isK else 256
        pol = self.c.get("kvpol", "nt")
        def mk(c):
            def f():
                a = self.a
                if (name, g) in SLOT:
                    if c == 0: a.I(f"s_mov_b32 s{sOff}, {b * BSTR + g * 3072}")
                    elif self.off_val != (name, b, g): a.I(f"s_mov_b32 s{sOff}, {b * BSTR + g * 3072}")
                    self.off_val = (name, b, g)
                    a.I(f"buffer_load_dwordx4 {SLOT[(name, g)][c]}, v{vo}, {s4(srd)}, s{sOff} offen offset:{step * c} {pol}")
                else:
                    self.off_val = None
                    a.I(f"s_add_u32 m0, s{sLdsVS}, {(g - 2) * 3072 + 1024 * c}\ns_mov_b32 s{sOff}, {b * BSTR + g * 3072 + step * c}")
                    a.I(f"buffer_load_dwordx4 v{vo}, {s4(srd)}, s{sOff} offen {pol} lds", tag=("VS", b, g))
            return f
        self.items += [((name, b, g), mk(c)) for c in range(3)]
    def stream(self, n, paced=True, W=None):
        for _ in range(n):
            if self.pos >= len(self.items): return
            assert self.pos < self.limit, (self.pos, self.limit)
            if paced: self.a.pace((W or self.W) + (self.c.get("B", 0) if self.pos < self.boost else 0))
            sv = self.a._in_inject; self.a._in_inject = True
            self.items[self.pos][1](); self.pos += 1; self.last_cyc = self.a.cyc
            if self.c.get("diag") == 3 and self.pos % 5 == 0 and self.pos > 10: self.stamp("pos")
            self.a._in_inject = sv
    def prefetch(self, n):
        a = self.a
        for _ in range(n):
            if not self.pfq: return
            srd, off = self.pfq.pop(0)
            a.I(f"v_lshlrev_b32 v{self.pfreg}, {self.c.get('pfs', 6)}, v0\ns_mov_b32 m0, {JUNK}\ns_mov_b32 s{sOff}, {BSTR + off}")
            a.I(f"buffer_load_dword v{self.pfreg}, {s4(srd)}, s{sOff} offen {self.c.get('pfpol', '')} lds")
            self.off_val = None
    def injector(self):
        a = self.a
        if self.pos < self.limit and a.cyc - self.last_cyc >= self.c.get("T", 330) and a.vm.outstanding() < self.W + self.c.get("XW", 6) + (self.c.get("B", 0) if self.pos < self.boost else 0):
            self.stream(1, paced=False)
    def stream_to(self, upto, **k): self.stream(max(0, upto - self.pos), **k)
    def index_after(self, name):
        return max(i for i, it in enumerate(self.items) if it[0] == name) + 1
    def fs(self, name):
        if not self.fine_on or self.nfine >= len(FS): return
        self.fcount = getattr(self, "fcount", 0) + 1
        if self.fcount <= self.c.get("fskip", 0): return
        self.a.I(f"{'s_memrealtime' if self.c.get('rt') else 's_memtime'} {sp(FS[self.nfine])}"); self.nfine += 1; self.fnames.append(name)
    def page(self):
        if not self.c.get("pages", 1): return
        k = self.npage; self.npage += 1
        self.a.I(f"s_branch Lpg{k}"); self.a.raw(f".p2align 12\nLst{k}:\n  s_setpc_b64 {sp(sRet)}\nLpg{k}:")
    def warm(self, ks):
        if not (self.c.get("pages", 1) and self.c.get("warm", 1)): return
        a = self.a
        a.I(f"s_cmp_lg_u32 s{sWave}, 3"); a.skip_begin("s_cbranch_scc1")
        for k in ks: a.I(f"s_call_b64 {sp(sRet)}, Lst{k}")
        a.skip_end()
    def check_slot(self, name, b, g):
        assert self.index_after((name, b, g)) <= self.pos, ("not issued", name, b, g, self.pos)
        if b == 0: assert self.index_after((name, 1, g)) - 3 >= self.pos, ("overwritten", name, g)
    def stamp(self, name=''):
        if self.c.get("marks"): self.a.raw(f"M_{name}_{len(self.snames)}:")
        if self.c.get("holdat") == name:
            self.a.I("s_memrealtime s[98:99]"); self.a.wait(lg=0)
        self.snames.append(f'{name}@{self.pos}')
        if not self.c.get("diag") or self.c.get("fine"): return
        if self.c["diag"] == 3 and name not in ("pos", "end"): self.snames.pop(); return
        if self.c["diag"] == 2 and name not in self.c.get("only", ("p1end", "p2beg", "p2end", "end")): self.snames.pop(); return
        a = self.a
        a.I(f"s_memrealtime {sp(sST)}"); a.wait(lg=0)
        a.I(f"v_writelane_b32 v{vStamp}, s{sST if not self.c.get('rcount') else sRetry}, {self.nstamp}"); self.nstamp += 1
    def publish(self, text, local_ok, tag="pub"):
        a = self.a
        if local_ok and self.c.get("local", True):
            a.I(f"s_cmp_lg_u32 s{sLocal}, 0")
            a.either(text.format(pol=""), text.format(pol="sc1"), tag=tag)
        else: a.I(text.format(pol="sc1"), tag=tag); self.boost = self.pos + self.c.get("KB", 14)
    def gather(self, loads, regs, tmp, between=None, emask=None, sleep=None, first=False, spec=(), vmask=False):
        a = self.a
        if first and between: between(); between = None
        if emask: loads = [f"s_mov_b64 exec, {emask}"] + loads + ["s_mov_b64 exec, -1"]
        for t in loads: a.I(t, tag="gat")
        last = len(a.vm.ent) - 1
        if emask or self.c.get("BG"): self.boost = self.pos + self.c.get("KB", 14)
        if between: between()
        self.fs("issued")
        n = a.vm.need(last)
        if n is not None: a.wait(vm=n)
        chk = a.label("Lc"); rt = a.label("Lr")
        a.raw(f"{chk}:"); a.no_inject += 1
        r = list(regs); ops = []
        ops.append(f"v_max3_u32 v{tmp}, v{r[0]}, v{r[1]}, v{r[2]}"); r = r[3:]
        while len(r) >= 2: ops.append(f"v_max3_u32 v{tmp}, v{tmp}, v{r[0]}, v{r[1]}"); r = r[2:]
        if r: ops.append(f"v_max_u32 v{tmp}, v{tmp}, v{r[0]}")
        ops.append(f"v_cmp_eq_u32 vcc, -1, v{tmp}")
        spec = list(spec)
        k = -(-len(ops) // max(1, len(spec)))
        while ops or spec:
            if spec: a.I(spec.pop(0))
            for t in ops[:k]: a.I(t)
            ops = ops[k:]
        if vmask: a.I(f"s_and_b64 vcc, vcc, {emask}")
        self.inl = self.c.get("inl", 0) and not a.inject
        if not (self.c.get("novalid") and a.inject): a.I(f"s_cbranch_vccz {rt}k" if self.inl else f"s_cbranch_vccnz {rt}")
        if self.c.get("narrow", 3) & (2 if emask else 1):
            loads = ["s_mov_b64 exec, vcc"] + [t for t in loads if not t.startswith("s_mov")] + ["s_mov_b64 exec, -1"]
        self.retry_block(rt, chk, loads, sleep); a.no_inject -= 1
        self.fs("valid")
    def lsleep(self): return None if self.a.inject else self.c.get('lsleep', 0)
    def retry_block(self, rt, chk, loads, sleep=None):
        a = self.a
        if sleep is None: sleep = self.c.get("sleep", 0)
        blk = ([f"  s_sleep {sleep}"] if sleep else []) + ["  " + t for t in loads]
        blk += [f"  s_add_u32 s{sRetry}, s{sRetry}, 1", f"  s_cmp_gt_u32 s{sRetry}, {self.c.get('spin', 400000)}", "  s_cbranch_scc1 L_end",
                "  s_waitcnt vmcnt(0)", f"  s_branch {chk}"]
        if self.inl: a.out += blk + [f"{rt}k:"]
        elif a.inject: a.tail += [f"{rt}:"] + blk
        else: self.hot += [f"{rt}:"] + blk
        self.inl = False
    def setup(self):
        a = self.a; I = a.I
        I(f"s_cmp_ge_u32 s{sWG}, 256\ns_cbranch_scc1 L_end")
        I(f"s_load_dwordx16 s[32:47], s[0:1], 0\ns_load_dwordx8 s[48:55], s[0:1], 64\ns_load_dwordx2 s[56:57], s[0:1], 96")
        if self.c.get("diag") or self.c.get("hold"): I(f"s_memrealtime s[96:97]")
        I(f"v_lshrrev_b32 v8, 6, v0\nv_and_b32 v0, 63, v0\nv_readfirstlane_b32 s{sWave}, v8")
        I(f"s_and_b32 s{sT0}, s{sWG}, 7\ns_lshl_b32 s{sT0}, s{sT0}, 2\ns_lshr_b32 s{sT1}, s{sWG}, 3\ns_and_b32 s{sT1}, s{sT1}, 3\ns_add_u32 s{sH}, s{sT0}, s{sT1}\ns_lshr_b32 s{sS}, s{sWG}, 5")
        I(f"v_mul_u32_u24 v8, 43, v0\nv_lshrrev_b32 v8, 10, v8\nv_mul_u32_u24 v9, 24, v8\nv_sub_u32 v9, v0, v9\nv_mul_u32_u24 v8, 0x3000, v8\nv_lshl_add_u32 v{vWq0}, v9, 4, v8")
        I(f"v_add_u32 v10, 60, v0\nv_mul_u32_u24 v8, 43, v10\nv_lshrrev_b32 v8, 10, v8\nv_mul_u32_u24 v9, 24, v8\nv_sub_u32 v9, v10, v9\nv_mul_u32_u24 v8, 0x3000, v8\nv_lshl_add_u32 v{vWq1}, v9, 4, v8")
        I(f"s_mul_i32 s{sT0}, s{sS}, {80 * 12288}\ns_mul_i32 s{sT1}, s{sWave}, {20 * 12288}\ns_add_u32 s{sT0}, s{sT0}, s{sT1}\ns_mul_i32 s{sT1}, s{sH}, 384\ns_add_u32 s{sWqRow}, s{sT0}, s{sT1}")
        I(f"s_mul_i32 s{sT0}, s{sH}, {192 * 1280}\ns_mul_i32 s{sT1}, s{sWave}, {48 * 1280}\ns_add_u32 s{sT0}, s{sT0}, s{sT1}\ns_mul_i32 s{sT1}, s{sS}, 160\ns_add_u32 s{sWoRow}, s{sT0}, s{sT1}")
        I(f"s_mul_i32 s{sLdsW}, s{sWave}, 7680\ns_mov_b32 s{m60}, -1\ns_mov_b32 s{m60+1}, 0x0fffffff\ns_mov_b32 s{WT+3}, 0x20000\ns_mov_b32 s{sRetry}, 0")
        I(f"v_and_b32 v8, 15, v0\nv_lshrrev_b32 v9, 4, v0")
        I(f"v_lshrrev_b32 v10, 1, v8\nv_mul_u32_u24 v10, 384, v10\nv_and_b32 v11, 1, v8\nv_lshl_add_u32 v11, v9, 1, v11\nv_lshl_add_u32 v{vKoff}, v11, 4, v10")
        I(f"v_mul_u32_u24 v10, 768, v9\nv_lshl_add_u32 v{vVoff}, v8, 4, v10")
        I(f"s_mul_i32 s{sT0}, s{sH}, {HSTR}\ns_mul_i32 s{sT1}, s{sS}, {128 * 384}\ns_add_u32 s{sT1}, s{sT1}, s{sT0}\ns_mul_i32 s{sT2}, s{sWave}, {32 * 384}\ns_add_u32 s{sT1}, s{sT1}, s{sT2}\ns_add_u32 s{sOffG}, s{sT1}, {3072 * 384}")
        I(f"s_mul_i32 s{sT1}, s{sS}, {512 * 384}\ns_add_u32 s{sT1}, s{sT1}, s{sT0}\ns_mul_i32 s{sT2}, s{sWave}, {128 * 384}\ns_add_u32 s{sOffP}, s{sT1}, s{sT2}")
        I(f"s_mul_i32 s{sLdsVS}, s{sWave}, 6144\ns_add_u32 s{sLdsVS}, s{sLdsVS}, {VS}")
        I(f"s_mov_b32 s{XO+2}, 2560\ns_mov_b32 s{XO+3}, 0x20000\ns_mul_i32 s{sT0}, s{sS}, 160\nv_lshlrev_b32 v7, 2, v0\nv_min_u32 v7, 156, v7")
        for srd, o in ((KA, sOffG), (VA, sOffG), (KB, sOffP), (VB, sOffP)): I(f"s_sub_u32 s{srd+2}, {KV_BYTES}, s{o}\ns_mov_b32 s{srd+3}, 0x20000")
        I(f"s_mov_b32 s{WS+2}, {WS_BYTES}\ns_mov_b32 s{WS+3}, 0x20000")
        I(f"s_mul_i32 s{sH1grp}, s{sH}, {H1_H}\ns_mul_i32 s{sT1}, s{sS}, {H1_S}\ns_add_u32 s{sH1own}, s{sH1grp}, s{sT1}" + (f"\ns_mul_i32 s{sT1}, s{sS}, 768\ns_add_u32 s{sH1c}, s{sH1grp}, s{sT1}" if COMPACT1 else ""))
        I(f"s_mul_i32 s{sH2grp}, s{sH}, {H2_H}\ns_add_u32 s{sH2grp}, s{sH2grp}, {H2}\ns_mul_i32 s{sT1}, s{sS}, {H2_S}\ns_add_u32 s{sH2own}, s{sH2grp}, s{sT1}")
        I(f"s_mul_i32 s{sH3grp}, s{sS}, {H3_S}\ns_add_u32 s{sH3grp}, s{sH3grp}, {H3}\ns_mul_i32 s{sT1}, s{sH}, {H3_H}\ns_add_u32 s{sH3own}, s{sH3grp}, s{sT1}")
        self.clear_prep([[("P", 0)], [("C", 0)], [("P", 4)], [("2", 0), ("3", 0)]])
        a.wait(lg=0)
        if self.c.get("diag"): I(f"v_mov_b32 v{vStamp}, 0\nv_writelane_b32 v{vStamp}, s96, 0"); self.nstamp = 1
        def srds(l):
            for srd, p, o in l: I(f"s_add_u32 s{srd}, s{p}, s{o}\ns_addc_u32 s{srd+1}, s{p+1}, 0")
        def small():
            I(f"s_mov_b32 s{WS}, s{pWS}\ns_mov_b32 s{WS+1}, s{pWS+1}\ns_mov_b32 s{XO}, s{pX}\ns_mov_b32 s{XO+1}, s{pX+1}")
            self.clear_issue("clr")
            if USE_HOT == 3: self.probe_store()
            I(f"buffer_load_dword v12, v7, {s4(XO)}, s{sT0} offen\nbuffer_load_dword v13, v7, {s4(XO)}, s{sT0} offen offset:1280")
        n0, n1 = self.c.get("I", (12, 28))
        srds([(KA, pKA, sOffG)])
        self.stream(min(n0, 12), paced=False)
        srds([(VA, pVA, sOffG), (KB, pKB, sOffP), (VB, pVB, sOffP)])
        self.stream_to(n0, paced=False)
        small()
        self.stream_to(n1, paced=False)
        if self.c.get("st0"):
            self.stamp("end")
            n = len(a.vm.ent)
            for k in (1, 3, 6, 9, 12, 15, 18, n): a.wait(vm=n - k); self.stamp("end")
        if self.c.get("cpf") == 1: self.code_prefetch("L_pf0", "L_pf9")
        I(f"v_mul_u32_u24 v10, 26, v0\nv_lshrrev_b32 v10, 8, v10\nv_mul_u32_u24 v11, 10, v10\nv_sub_u32 v11, v0, v11\nv_mul_u32_u24 v10, 1280, v10\nv_lshl_add_u32 v{vWo}, v11, 4, v10")
        I("v_and_b32 v10, 1, v0\nv_cmp_eq_u32 vcc, 1, v10\nv_mov_b32 v11, 0xffff\nv_mov_b32 v20, 0xffff0000\nv_cndmask_b32 v11, v11, v20, vcc\nv_bfe_u32 v10, v0, 1, 2")
        for j in range(4): I(f"v_cmp_eq_u32 vcc, {j}, v10\nv_cndmask_b32 v{vMask+j}, 0, v11, vcc")
        for m, lo, hi in ((mODD, 0xaaaaaaaa, 0xaaaaaaaa), (mRG1, 0xffff0000, 0), (mRG2, 0, 0xffff), (mRG3, 0, 0xffff0000), (mWOST, 0x5555, 0x5555), (mN10, 0x03ff03ff, 0x03ff03ff), (mBIT1, 0xcccccccc, 0xcccccccc), (mL63, 0, 0x80000000)) + (((mQ13, 0x1fff1fff, 0x1fff1fff),) if COMPACT1 else ()):
            I(f"s_mov_b32 s{m}, {lo:#x}\ns_mov_b32 s{m+1}, {hi:#x}")
        I(f"s_cmp_eq_u32 s{sWave}, 3\ns_cselect_b64 {sp(mW3)}, -1, 0\ns_min_u32 s{sW2}, s{sWave}, 2")
        if H2_S == 384:
            I(f"s_mul_i32 s{sT0}, s{sS}, -368\ns_add_u32 s{sT0}, s{sT0}, 3072\ns_lshl_b32 s{sPub2}, s{sWave}, 7\ns_cmp_eq_u32 s{sWave}, 3\ns_cselect_b32 s{sPub2}, s{sT0}, s{sPub2}")
            I(f"s_mov_b32 s{mPub2}, 0x55555555\ns_cselect_b32 s{mPub2+1}, 0, s{mPub2}\ns_cselect_b32 s{mPub2}, 0x55, s{mPub2}")
        if self.c.get("nost3"): I(f"s_cmp_lt_u32 s{sWave}, 3\ns_cselect_b32 s{mWOST+1}, 0x5555, 0\ns_cselect_b32 s{mWOST}, 0x5555, 0")
        if H3_H == 160: I(f"s_cmp_lt_u32 s{sWave}, 2\ns_cselect_b32 s{mWOST+1}, 0x5555, 0")
        I(f"s_getreg_b32 s{sXcc}, hwreg(HW_REG_XCC_ID, 0, 4)\ns_add_u32 s{sXcc}, s{sXcc}, 1")
        for r, m, base in ((sXROWw, 160, XROW), (sYw, 320, Y), (sQw, 96, QB)): I(f"s_mul_i32 s{r}, s{sWave}, {m}\ns_add_u32 s{r}, s{r}, {base}")
        I(f"v_add_u32 v10, s{sXROWw}, v7\nv_add_u32 v11, {ONES}, v7\nv_mov_b32 v20, 0x3f803f80")
        I("ds_write_b32 v11, v20\nds_write_b32 v10, v12\nds_write_b32 v10, v13 offset:640")
        I(f"s_mov_b32 s{XO}, s{pOUT}\ns_mov_b32 s{XO+1}, s{pOUT+1}")
        if COMPACT1: I(f"s_mov_b32 s{mPub1}, -1\ns_cmp_eq_u32 s{sWave}, 0\ns_cselect_b32 s{mPub1+1}, 0xfffff, 0\ns_or_b32 s{mPub1+1}, s{mPub1+1}, 0xffff")
    def clear_prep(self, jobs):
        I = self.a.I
        I("v_mov_b32 v16, -1\nv_mov_b32 v17, -1\nv_mov_b32 v18, -1\nv_mov_b32 v19, -1\nv_lshlrev_b32 v14, 4, v0")
        def seg(k, inst, hi):
            if k == "P" and c1(inst): return sH1c, inst * H1_I, (0x1ffff if hi else -1)
            if k in "PC": return h1(inst)[0], h1(inst)[2] + (1024 if k == "C" else 0), -1
            if k == "2": return h2(inst)[0], h2(inst)[2] - 512 * hi, (0x1ffffff if H2_S == 384 else -1)
            return h3(inst)[0], h3(inst)[2] - 512 * hi, (0x3ff if H3_H == 160 else 0xffff if self.c.get('clr256') else 0xfff)
        for w, job in enumerate(jobs):
            lo = seg(*job[0], 0); hi = seg(*job[-1], 1)
            for (r, o, m), dst, md in ((lo, sT1, sClr), (hi, sT2, sClr + 1)):
                if w == 0: I(f"s_add_u32 s{dst}, s{r}, {o & 0xffffffff}\ns_mov_b32 s{md}, {m}")
                else: I(f"s_add_u32 s{sOff}, s{r}, {o & 0xffffffff}\ns_cmp_eq_u32 s{sWave}, {w}\ns_cselect_b32 s{dst}, s{sOff}, s{dst}\ns_cselect_b32 s{md}, {m}, s{md}")
        self.off_val = None
        I(f"v_mov_b32 v15, s{sT1}\nv_mov_b32 v20, s{sT2}\nv_cmp_lt_u32 vcc, 31, v0\nv_cndmask_b32 v15, v15, v20, vcc\nv_add_u32 v15, v15, v14")
        if any(k == "P" and c1(i) for job in jobs for k, i in job):
            I(f"s_mov_b32 s{sT1}, 0\ns_mov_b32 s{sT2}, 0")
            for w, job in enumerate(jobs):
                if job[0][0] == "P" and c1(job[0][1]): I(f"s_cmp_eq_u32 s{sWave}, {w}\ns_cselect_b32 s{sT2}, 0x10000, s{sT2}")
            self.off_val = None; self.a.no_inject += 1
            I(f"s_mul_i32 s{sOff}, s{sS}, -752\ns_add_u32 s{sOff}, s{sOff}, {6144 - 768}\nv_add_u32 v20, s{sOff}, v15\nv_cndmask_b32 v15, v15, v20, {sp(sT1)}")
            self.a.no_inject -= 1
        if H2_S == 384 and any(k == "2" for job in jobs for k, _ in job):
            I(f"s_mov_b32 s{sT1}, 0\ns_mov_b32 s{sT2}, 0")
            for w, job in enumerate(jobs):
                for (k, _), dst in ((job[0], sT1), (job[-1], sT2)):
                    if k == "2": I(f"s_cmp_eq_u32 s{sWave}, {w}\ns_cselect_b32 s{dst}, 0x1000000, s{dst}")
            self.off_val = None; self.a.no_inject += 1
            I(f"s_mul_i32 s{sOff}, s{sS}, -368\ns_add_u32 s{sOff}, s{sOff}, {3072 - 384}\nv_add_u32 v20, s{sOff}, v15\nv_cndmask_b32 v15, v15, v20, {sp(sT1)}")
            self.a.no_inject -= 1
    def clear_issue(self, tag, local_ok=False):
        I = self.a.I
        I(f"s_mov_b64 exec, {sp(sClr)}")
        self.publish(f"buffer_store_dwordx4 v[16:19], v15, {s4(WS)}, 0 offen {{pol}}", local_ok, tag=tag)
        I("s_mov_b64 exec, -1")
    def tlb_touch(self):
        a = self.a; I = a.I
        ent = []
        for p, o, span in ((pWQA, sWqRow, 20 * 12288), (pKA, sOffG, 12288), (pVA, sOffG, 12288), (pWOA, sWoRow, 48 * 1280), (pWQB, sWqRow, 20 * 12288),
                           (pKB, sOffP, 49152), (pWOB, sWoRow, 48 * 1280), (pVB, sOffP, 49152)):
            for b in range(2 if o in (sOffG, sOffP) else 1): ent.append((p, o, b * BSTR))
        if self.c["tlb"] > 1:
            ent += [(pWS, None, 0), (pWS, None, 2 << 20), (pWS, None, 4 << 20), (pDBG, None, 0), (pOUT, None, 0)]
        for i, (p, o, c) in enumerate(ent):
            if o is None: I(f"s_add_u32 s{sT1}, s{p}, {c}\ns_addc_u32 s{sT2}, s{p+1}, 0")
            else:
                I(f"s_add_u32 s{sT1}, s{p}, s{o}\ns_addc_u32 s{sT2}, s{p+1}, 0")
                if c: I(f"s_add_u32 s{sT1}, s{sT1}, {c}\ns_addc_u32 s{sT2}, s{sT2}, 0")
            if i == 0: I(f"v_mov_b32 v14, s{sT1}\nv_mov_b32 v15, s{sT2}")
            else: I(f"v_writelane_b32 v14, s{sT1}, {i}\nv_writelane_b32 v15, s{sT2}, {i}")
        I(f"s_mov_b64 exec, {(1 << len(ent)) - 1}\nglobal_load_dword v250, v[14:15], off nt\ns_mov_b64 exec, -1")
    def code_prefetch(self, lo, hi):
        a = self.a; I = a.I
        l = a.label("Lp")
        I(f"s_getpc_b64 {sp(sT1)}"); a.raw(f"{l}:")
        I(f"s_add_u32 s{sT1}, s{sT1}, {lo}-{l}\ns_addc_u32 s{sT2}, s{sT2}, 0")
        I(f"s_lshr_b32 s{sT0}, s{sWG}, 3\ns_lshl_b32 s{sT0}, s{sT0}, 2\ns_add_u32 s{sT0}, s{sT0}, s{sWave}\ns_lshl_b32 s{sT0}, s{sT0}, 13")
        I(f"v_lshl_add_u32 v30, v0, 7, s{sT0}\nv_cmp_gt_u32 vcc, {hi}-{lo}, v30\ns_mov_b32 m0, {JUNK}")
        I("s_and_b64 exec, vcc, -1"); a.skip_begin("s_cbranch_execz")
        I(f"global_load_lds_dword v30, {sp(sT1)}")
        a.skip_end()
        I("s_mov_b64 exec, -1")
    def probe_store(self):
        a = self.a; I = a.I
        I(f"s_add_u32 s{sX1own}, s{WS}, {(8 << 20) - 1}\ns_and_b32 s{sX1own}, s{sX1own}, 0xffe00000\ns_sub_u32 s{sX1own}, s{sX1own}, s{WS}")
        I(f"s_lshr_b32 s{sT1}, s{sWG}, 6\ns_lshl_b32 s{sT1}, s{sT1}, 14\ns_and_b32 s{sT2}, s{sWG}, 63\ns_lshl_b32 s{sT2}, s{sT2}, 7\ns_add_u32 s{sT1}, s{sT1}, s{sT2}\ns_add_u32 s{sT1}, s{sT1}, {XP}\ns_add_u32 s{sX1own}, s{sX1own}, s{sT1}")
        I(f"s_cmp_lg_u32 s{sWave}, 0"); a.skip_begin("s_cbranch_scc1")
        I(f"v_and_b32 v15, 8, v0\nv_lshlrev_b32 v15, 10, v15\nv_and_b32 v20, 7, v0\nv_lshl_add_u32 v15, v20, 4, v15\ns_mov_b64 exec, 0xffff")
        I(f"buffer_store_dwordx4 v[16:19], v15, {s4(WS)}, s{sX1own} offen sc1", tag="prb")
        I("s_mov_b64 exec, -1")
        a.skip_end()
    def arrive(self):
        a = self.a; I = a.I
        I(f"s_cmp_lg_u32 s{sWave}, 0"); a.skip_begin("s_cbranch_scc1")
        src = sXcc
        if USE_HOT == 3:
            a.wait_tag("prb")
            I(f"s_and_b32 s{sT0}, s{sWG}, 63\ns_lshl_b32 s{sT0}, s{sT0}, 7\ns_sub_u32 s{sT0}, s{sX1own}, s{sT0}\ns_sub_u32 s{sT0}, s{sT0}, 128")
            I(f"s_load_dword s{sT1}, {sp(WS)}, s{sT0}"); a.wait(lg=0)
            I(f"s_add_u32 s{sT0}, s{sX1own}, 8192\ns_memtime s[0:1]"); a.wait(lg=0)
            I(f"s_load_dword s{sT1}, {sp(WS)}, s{sX1own}"); a.wait(lg=0)
            I(f"s_memtime {sp(sX3g0)}"); a.wait(lg=0)
            I(f"s_load_dword s{sT1}, {sp(WS)}, s{sT0}"); a.wait(lg=0)
            I(f"s_memtime {sp(sX1grp)}"); a.wait(lg=0)
            I(f"s_sub_u32 s0, s{sX3g0}, s0\ns_sub_u32 s1, s{sX1grp}, s{sX3g0}\ns_cmp_gt_u32 s0, s1\ns_cselect_b32 s{sT0}, 0x80, 0")
            I(f"s_sub_u32 s{sT1}, s{sXcc}, 1\ns_and_b32 s{sT1}, s{sT1}, 4\ns_lshl_b32 s{sT1}, s{sT1}, 5\ns_xor_b32 s{sT0}, s{sT0}, s{sT1}\ns_or_b32 s{sT2}, s{sT0}, s{sXcc}")
            src = sT2
        I(f"s_and_b32 s{sT0}, s{sWG}, 3\ns_lshl_b32 s{sT0}, s{sT0}, 3\ns_lshl_b32 s{sT0}, s{src}, s{sT0}\ns_and_b32 s{sT1}, s{sWG}, 0xfc")
        I(f"v_mov_b32 v8, s{sT1}\nv_mov_b32 v9, s{sT0}\ns_mov_b64 exec, 1")
        I(f"global_atomic_add v8, v9, {sp(pDBG)} sc1\ns_mov_b64 exec, -1")
        a.skip_end()
    def handshake(self, between):
        a = self.a; I = a.I
        I("v_lshlrev_b32 v7, 2, v0")
        ld = f"global_load_dword v8, v7, {sp(pDBG)} sc1"
        I(ld); last = len(a.vm.ent) - 1
        between()
        n = a.vm.need(last)
        if n is not None: a.wait(vm=n)
        chk = a.label("Lc"); rt = a.label("Lr")
        a.raw(f"{chk}:"); a.no_inject += 1
        I("v_subrev_u32 v9, 0x01010101, v8\nv_not_b32 v10, v8\nv_and_b32 v9, v9, v10\nv_and_b32 v9, 0x80808080, v9\nv_cmp_ne_u32 vcc, 0, v9")
        I(f"s_cbranch_vccnz {rt}")
        self.retry_block(rt, chk, [ld]); a.no_inject -= 1
        if USE_HOT: self.sides()
        I(f"s_and_b32 s{sT0}, s{sWG}, 3\ns_lshl_b32 s{sT0}, s{sT0}, 3\nv_lshrrev_b32 v8, s{sT0}, v8\nv_and_b32 v8, 0xff, v8")
        I(f"s_bfe_u32 s{sT0}, s{sWG}, 0x30002\nv_and_b32 v9, 7, v0\nv_cmp_eq_u32 {sp(sT1)}, s{sT0}, v9\nv_cmp_ne_u32 vcc, s{sXcc}, v8")
        I(f"s_and_b64 vcc, vcc, {sp(sT1)}\ns_cmp_eq_u64 vcc, 0\ns_cselect_b32 s{sLocal}, 1, 0")
    def sides(self):
        a = self.a; I = a.I; a.no_inject += 1
        if USE_HOT == 3:
            I(f"s_mov_b32 s{sOffW}, 0")
            for k in range(4):
                I(f"v_bfe_u32 v9, v8, {8 * k + 7}, 1\nv_cmp_ne_u32 vcc, 0, v9\ns_bcnt1_i32_b64 s{sT0}, vcc\ns_add_u32 s{sOffW}, s{sOffW}, s{sT0}")
            I("v_and_b32 v8, 0x7f7f7f7f, v8")
        if USE_HOT == 2: I(f"s_mov_b32 s{sT1}, 0\ns_mov_b32 s{sT2}, 0x01010101")
        else:
            I(f"v_readlane_b32 s{sT1}, v8, 0\nv_readlane_b32 s{sT2}, v8, 1\nv_mov_b32 v9, s{sT1}\nv_mov_b32 v10, s{sT2}\nv_cndmask_b32 v9, v9, v10, {sp(mODD)}\nv_cmp_ne_u32 vcc, v8, v9")
            I(f"s_and_b32 s{sT0}, s{sWG}, 7\ns_lshl_b32 s{sT0}, s{sT0}, 3\ns_lshr_b64 s[0:1], {sp(sT1)}, s{sT0}\ns_and_b32 s0, s0, 0xff\ns_cmp_eq_u32 s0, s{sXcc}\ns_cselect_b64 vcc, vcc, -1")
            I(f"s_sub_u32 s{sT1}, s{sT1}, 0x01010101\ns_sub_u32 s{sT2}, s{sT2}, 0x01010101\ns_lshr_b32 s{sT1}, s{sT1}, 2\ns_lshr_b32 s{sT2}, s{sT2}, 2\ns_and_b32 s{sT1}, s{sT1}, 0x01010101\ns_and_b32 s{sT2}, s{sT2}, 0x01010101")
            I(f"s_xor_b32 s{sT0}, s{sT1}, s{sT2}\ns_cmp_eq_u32 s{sT0}, 0x01010101\ns_cselect_b32 s{sLocal}, 1, 0\ns_cmp_eq_u64 vcc, 0\ns_cselect_b32 s{sLocal}, s{sLocal}, 0")
            if USE_HOT == 3: I(f"s_cmp_gt_u32 s{sOffW}, 128\ns_cselect_b32 s{sT0}, 0x01010101, 0\ns_xor_b32 s{sT1}, s{sT1}, s{sT0}\ns_xor_b32 s{sT2}, s{sT2}, s{sT0}")
            if self.c.get("pol"): I(f"s_xor_b32 s{sT1}, s{sT1}, 0x01010101\ns_xor_b32 s{sT2}, s{sT2}, 0x01010101")
            I(f"s_cmp_lg_u32 s{sLocal}, 0\ns_cselect_b32 s{sT1}, s{sT1}, 0\ns_cselect_b32 s{sT2}, s{sT2}, 0x01010101")
        I(f"s_mov_b64 s[40:41], {sp(sT1)}")
        def side(dst, k): I(f"s_lshr_b64 s[0:1], {sp(sT1)}, s{k}\ns_and_b32 s{dst}, s0, 1\ns_lshl_b32 s{dst}, s{dst}, 13")
        I(f"s_add_u32 s{sOffP}, s{WS}, {(8 << 20) - 1}\ns_and_b32 s{sOffP}, s{sOffP}, 0xffe00000\ns_sub_u32 s{sOffP}, s{sOffP}, s{WS}")
        I(f"s_and_b32 s{sT0}, s{sWG}, 7\ns_lshl_b32 s{sT0}, s{sT0}, 3"); side(sOffG, sT0)
        I(f"s_add_u32 s{sOffG}, s{sOffG}, s{sOffP}")
        I(f"s_and_b32 s{sT0}, s{sH}, 15\ns_lshl_b32 s{sX1grp}, s{sT0}, 14\ns_add_u32 s{sX1grp}, s{sX1grp}, s{sOffG}\ns_lshl_b32 s0, s{sS}, 10\ns_add_u32 s{sX1own}, s{sX1grp}, s0")
        I(f"s_lshr_b32 s0, s{sT0}, 1\ns_lshl_b32 s0, s0, 14\ns_and_b32 s1, s{sT0}, 1\ns_lshl_b32 s1, s1, 12\ns_add_u32 s0, s0, s1\ns_add_u32 s0, s0, {X2}\ns_add_u32 s{sX2grp}, s0, s{sOffG}\ns_mul_i32 s0, s{sS}, {H2_S}\ns_add_u32 s{sX2own}, s{sX2grp}, s0")
        I(f"s_lshr_b32 s0, s{sS}, 1\ns_lshl_b32 s0, s0, 14\ns_and_b32 s1, s{sS}, 1\ns_lshl_b32 s1, s1, 12\ns_add_u32 s0, s0, s1\ns_add_u32 s{sOffW}, s0, {X3}")
        I(f"s_mul_i32 s0, s{sT0}, {H3_H}\ns_add_u32 s0, s0, s{sOffW}\ns_add_u32 s{sX3own}, s0, s{sOffG}\ns_add_u32 s{sOffW}, s{sOffW}, s{sOffP}")
        for j, dst in enumerate((sX3g0, sX3g1)):
            I(f"s_lshl_b32 s{sT0}, s{sWave}, 4\ns_add_u32 s{sT0}, s{sT0}, {8 * j}"); side(dst, sT0)
            I(f"s_lshl_b32 s0, s{sWave}, 1\ns_add_u32 s0, s0, {j}\ns_and_b32 s0, s0, 3\ns_mul_i32 s0, s0, {4 * H3_H}\ns_add_u32 s{dst}, s{dst}, s0\ns_add_u32 s{dst}, s{dst}, s{sOffW}")
        a.no_inject -= 1
    WQB = [(24, 28, 32), (34, 38, 42), (44, 48, 52)]
    def wq_pre(self, ty):
        a = self.a; I = a.I
        I(f"v_bfe_u32 v7, v0, 2, 2\nv_lshrrev_b32 v9, 4, v0\nv_lshl_add_u32 v8, v9, 3, v7\nv_lshl_add_u32 v7, v9, 2, v7")
        I(f"v_and_b32 v9, 3, v0\nv_lshlrev_b32 v9, 3, v9\ns_mul_i32 s{sT0}, s{sWave}, 96\ns_add_u32 s{sT0}, s{sT0}, {WQ[ty]}\nv_add_u32 v9, s{sT0}, v9")
        I(f"s_movk_i32 s{sT0}, 384\nv_mad_u32_u24 v8, v8, s{sT0}, v9\nv_mad_u32_u24 v7, v7, s{sT0}, v9")
        for T, (b0, b1, b2) in enumerate(self.WQB):
            for t, r in ((0, b0), (1, b1)):
                I(f"ds_read_b64_tr_b16 {v2(r)}, v8 offset:{12288 * t + 32 * T}\nds_read_b64_tr_b16 {v2(r+2)}, v8 offset:{12288 * t + 1536 + 32 * T}")
            I(f"ds_read_b64_tr_b16 {v2(b2)}, v7 offset:{24576 + 32 * T}")
    def wq_addr(self, b, L):
        I = self.a.I
        I(f"v_mov_b32 v22, s{sXROWw}\nv_mov_b32 v23, {ONES - 640 * b}")
        I(f"v_cndmask_b32 v23, v22, v23, {sp(mODD)}\nv_lshrrev_b32 v21, 4, v0\nv_lshl_add_u32 v22, v21, 4, v23\nv_lshl_add_u32 v23, v21, 3, v23")
    def wq_main(self, b, L, local_ok=True, hoisted=False, hoist=False):
        a = self.a; a.comment(f"---- row {b} layer {L}: q projection partial"); I = a.I; inst = 4 * b + L; needC = inst < 2
        if not hoisted: self.wq_addr(b, L)
        I(f"ds_read_b128 v[12:15], v22 offset:{640 * b}\nds_read_b128 v[16:19], v22 offset:{640 * b + 64}\nds_read_b64 v[20:21], v23 offset:{640 * b + 128}")
        if c1(inst):
            I(f"s_mul_i32 s{sT0}, s{sWave}, 192\nv_lshl_add_u32 v7, v0, 2, s{sT0}\ns_mul_i32 s{sT0}, s{sS}, -752\ns_add_u32 s{sT0}, s{sT0}, {6144 - 192}\nv_lshl_add_u32 v23, v0, 2, s{sT0}")
            I(f"v_cndmask_b32 v7, v7, v23, {sp(mRG3)}\ns_add_u32 s{sOffP}, s{sH1c}, {inst * H1_I}")
        else: I(f"s_lshl_b32 s{sT0}, s{sWave}, 8\nv_lshl_add_u32 v7, v0, 2, s{sT0}\ns_add_u32 s{sOffP}, s{h1(inst)[0]}, {h1(inst)[2]}")
        if hoist: self.qg_addr(b, L)
        D = [8, 24, 28]
        for T, (b0, b1, b2) in enumerate(self.WQB):
            I(f"v_mfma_f32_16x16x32_bf16 {v4(D[T])}, v[12:15], {v4(b0)}, 0")
            I(f"v_mfma_f32_16x16x32_bf16 {v4(D[T])}, v[16:19], {v4(b1)}, {v4(D[T])}")
        I("v_mfma_f32_16x16x32_bf16 v[34:37], v[12:15], v[12:15], 0\nv_mfma_f32_16x16x32_bf16 v[34:37], v[16:19], v[16:19], v[34:37]")
        for T, (b0, b1, b2) in enumerate(self.WQB):
            I(f"v_mfma_f32_16x16x16_bf16 {v4(D[T])}, v[20:21], {v2(b2)}, {v4(D[T])}")
        I("v_mfma_f32_16x16x16_bf16 v[34:37], v[20:21], v[20:21], v[34:37]")
        for r in range(2 if needC else 1):
            I(f"v_cndmask_b32 v{22+r}, v{8+r}, v{24+r}, {sp(mRG1)}\nv_cndmask_b32 v{22+r}, v{22+r}, v{28+r}, {sp(mRG2)}\nv_cndmask_b32 v{22+r}, v{22+r}, v34, {sp(mRG3)}\nv_min_u32 v{22+r}, -2, v{22+r}")
            if c1(inst): I(f"s_mov_b64 exec, {sp(mPub1)}")
            self.publish(f"buffer_store_dword v{22+r}, v7, {s4(WS)}, s{sOffP} offen offset:{1024 * r} {{pol}}", local_ok)
            if c1(inst): I("s_mov_b64 exec, -1")
    def qg_addr(self, b, L):
        I = self.a.I
        if c1(4 * b + L):
            I(f"v_and_b32 v23, 15, v0\nv_lshrrev_b32 v54, 4, v0\nv_mul_u32_u24 v54, 768, v54\nv_lshl_add_u32 v54, v23, 4, v54\ns_mul_i32 s{sT0}, s{sWave}, 192\nv_add_u32 v54, s{sT0}, v54")
            I(f"s_add_u32 s{sOffG}, s{sH1grp}, {(4 * b + L) * H1_I}")
            return
        I(f"v_and_b32 v23, 15, v0\nv_lshrrev_b32 v54, 4, v0\nv_mul_u32_u24 v54, {h1(4 * b + L)[3]}, v54\nv_lshl_add_u32 v54, v23, 4, v54\ns_lshl_b32 s{sT0}, s{sWave}, 8")
        I(f"s_add_u32 s{sOffG}, s{h1(4 * b + L)[1]}, s{sT0}\ns_add_u32 s{sOffG}, s{sOffG}, {h1(4 * b + L)[2]}\ns_add_u32 s{sOffG2}, s{sOffG}, {4 * h1(4 * b + L)[3]}")
    def qg(self, b, L, between=None, hoisted=False, after=None, tail=False):
        a = self.a; a.comment(f"---- row {b} layer {L}: gather q partials, LayerNorm scale"); I = a.I; inst = 4 * b + L; needC = inst < 2; ty = L & 1
        if not hoisted: self.qg_addr(b, L)
        loads = [f"buffer_load_dwordx4 v[12:15], v54, {s4(WS)}, s{sOffG} offen sc1", f"buffer_load_dwordx4 v[16:19], v54, {s4(WS)}, s{sOffG2} offen sc1"]
        cc = c1(inst)
        if cc: loads = [f"buffer_load_dwordx4 v[12:15], v54, {s4(WS)}, s{sOffG} offen sc1", f"buffer_load_dwordx4 v[16:19], v36, {s4(WS)}, s{sOffG} offen sc1"]
        def addr2():
            I(f"v_add_u32 v36, 3072, v54\nv_and_b32 v37, 48, v0\nv_add_u32 v37, 6144, v37\ns_mov_b32 vcc_lo, 0x10001000\ns_mov_b32 vcc_hi, 0x10001000")
            I("v_cndmask_b32 v54, v54, v37, vcc\nv_add_u32 v37, 64, v37\nv_cndmask_b32 v36, v36, v37, vcc")
        if needC: loads += [f"buffer_load_dwordx4 v[20:23], v54, {s4(WS)}, s{sOffG} offen offset:1024 sc1", f"buffer_load_dwordx4 v[24:27], v54, {s4(WS)}, s{sOffG2} offen offset:1024 sc1"]
        def pre():
            I(f"v_and_b32 v32, 15, v0\nv_lshrrev_b32 v33, 4, v0\nv_and_b32 v34, 1, v33\nv_lshlrev_b32 v34, 1, v34\nv_lshrrev_b32 v28, 1, v33\nv_or_b32 v34, v34, v28\nv_lshl_add_u32 v34, v32, 2, v34")
            I(f"v_lshl_add_u32 v34, v34, 1, s{sQw}\nv_lshl_add_u32 v29, v0, 2, s{sCTw}")
            if not needC: I(f"ds_read_b32 v20, v29 offset:{1024 * ty}")
            self.q_addr(b)
            I(f"v_mov_b32 v35, {f32(1 / (640 * SCALE))}\nv_mov_b32 v32, {f32(1 / (640 * SCALE * SCALE))}\nv_mov_b32 v33, {f32(1e-5 / (SCALE * SCALE))}")
        first = hoisted and self.c.get('first', 3) & 2
        if cc: addr2()
        if first: pre()
        def shadow():
            if not first: pre()
            if tail and self.c.get("tq", 0): self.tail_addr(b, L)
            if tail and L == 2 and self.c.get("v2", 1):
                I(f"v_lshl_add_u32 v37, v0, 4, s{sLdsVS}")
                for c in range(3): I(f"ds_read_b128 {v4(vU + 2 + 4 * c)}, v37 offset:{1024 * c}")
            if between: between()
        self.gather(loads, range(12, 28 if needC else 20), 28, between=shadow, sleep=self.lsleep(), emask=sp(mQ13) if cc else None, vmask=cc)
        if after: after()
        def red(r):
            I(f"v_pk_add_f32 {v2(r)}, {v2(r)}, {v2(r+4)}\nv_pk_add_f32 {v2(r+2)}, {v2(r+2)}, {v2(r+6)}")
            I(f"v_permlane32_swap_b32 v{r}, v{r+1}\nv_permlane32_swap_b32 v{r+2}, v{r+3}\nv_add_f32 v{r}, v{r}, v{r+1}\nv_add_f32 v{r+2}, v{r+2}, v{r+3}")
            I(f"v_permlane16_swap_b32 v{r}, v{r+2}\nv_add_f32 v{r}, v{r}, v{r+2}")
        red(12)
        I(f"v_readlane_b32 s{sT0}, v12, 12\nv_readlane_b32 s{sT1}, v12, 44")
        if needC: red(20); I(f"v_mul_f32 v20, {f32(SCALE)}, v20\nds_write_b32 v29, v20 offset:{1024 * ty}")
        I(f"s_mov_b32 exec_lo, 0x0fff0fff\ns_mov_b32 exec_hi, 0x0fff0fff")
        I(f"v_mul_f32 v15, s{sT1}, v35\nv_fma_f32 v14, s{sT0}, v32, v33\nv_fma_f32 v14, -v15, v15, v14\nv_max_f32 v14, v33, v14\nv_rsq_f32 v14, v14")
        I(f"v_fma_f32 v12, -v15, v20, v12\nv_mul_f32 v12, v12, v14\nv_cvt_pk_bf16_f32 v12, v12, v12")
        I(f"ds_write_b16 v34, v12 offset:{384 * b}\ns_mov_b64 exec, -1")
        a.barrier()
    def tail_addr(self, b, L):
        I = self.a.I; inst = 4 * b + L
        I(f"v_and_b32 v50, 15, v0\nv_lshlrev_b32 v50, 5, v50\nv_and_b32 v51, 16, v0\nv_add3_u32 v50, v50, v51, s{sATTw}\nv_mov_b32 v51, s{sSTATw}")
        self.wo_addr(b, L)
        I(f"v_mov_b32 v9, {STAT}\nv_lshl_add_u32 v10, v0, 2, s{sCOMBw}")
        if H2_S == 384: I(f"v_lshl_add_u32 v11, v0, 1, s{sPub2}\ns_add_u32 s{sOffP}, s{h2(inst)[0]}, {h2(inst)[2]}")
        else: I(f"s_lshl_b32 s{sT0}, s{sWave}, 7\nv_lshl_add_u32 v11, v0, 1, s{sT0}\ns_add_u32 s{sOffP}, s{h2(inst)[0]}, {h2(inst)[2]}")
    def q_addr(self, b):
        self.a.I(f"v_and_b32 v30, 1, v0\nv_lshrrev_b32 v31, 4, v0\nv_lshlrev_b32 v31, 5, v31\nv_lshl_add_u32 v30, v30, 4, v31\nv_add_u32 v30, {QB + 384 * b}, v30")
    def att(self, b, L, hook1=None, hook2=None, hookm=None, pre_bar=None, guard=False, hoist=False, qaddr=False):
        a = self.a; a.comment(f"---- row {b} layer {L}: attention"); I = a.I; ty = L & 1; G = 16 if ty else 4; Kn = "KB" if ty else "KA"; Vn = "VB" if ty else "VA"
        vM, vL = 52, 53
        if not qaddr: self.q_addr(b)
        for t in range(3): I(f"ds_read_b128 {v4(vQ + 4 * t)}, v30 offset:{128 * t}")
        def lds_v(g):
            a.wait_tag(("VS", b, g))
            I(f"v_lshl_add_u32 v54, v0, 4, s{sLdsVS}")
            for c in range(3): I(f"ds_read_b128 {v4(vU + 2 + 4 * c)}, v54 offset:{(g - 2) * 3072 + 1024 * c}")
        early = (not ty) and L == 2
        if early and not self.c.get('v2', 1): lds_v(2)
        if not (qaddr and self.c.get("tq", 0)):
            if self.c.get("fill", 1):
                if self.c.get("touch", 4) == 4 and L >= 2 and (b, L) != (0, 3): a.queue(lambda: self.touch_fill(b, L))
                a.queue(lambda: self.tail_addr(b, L)); a.drain(self.c.get("fill0", 8))
            else: self.tail_addr(b, L)
        def D(g): return vACC + 4 * (g % 3)
        dm = "row_mask:0xf"; NP = G // 2
        order = list(range(G)) if ty else ([2, 0, 1, 3] if early else [0, 1, 2, 3])
        at = {g: i for i, g in enumerate(order)}
        U = lambda g: vU + at[g] // 2
        bank = lambda g, hi: (1 << (at[g] & 1)) << (2 * hi)
        for g in range(G + 2):
            K = SLOT[(Kn, g)] if g < G else None
            if K: self.check_slot(Kn, b, g)
            e = g - 2
            if K: I(f"v_mfma_f32_16x16x32_bf16 {v4(D(g))}, {K[0]}, {v4(vQ)}, 0")
            if g == 1 and self.c.get("fa"): self.fs("g1")
            if K: a.drain(2)
            if K: I(f"v_mfma_f32_16x16x32_bf16 {v4(D(g))}, {K[1]}, {v4(vQ+4)}, {v4(D(g))}")
            if K and e < 0: a.drain(2)
            if 0 <= e < G: I(f"v_add_f32_dpp v{U(e)}, v{D(e)}, v{D(e)+1} quad_perm:[0,0,2,2] {dm} bank_mask:{bank(e, 0):#x}")
            if K: I(f"v_mfma_f32_16x16x32_bf16 {v4(D(g))}, {K[2]}, {v4(vQ+8)}, {v4(D(g))}")
            if g == G + 1 and NP > 3: I(f"v_max3_f32 v{vM}, v{vU}, v{vU+1}, v{vU+2}\nv_max3_f32 v{vM}, v{vM}, v{vU+3}, v{vU+4}")
            if K and e < 0: a.drain(2)
            if hook1 and g < G: hook1(g)
            if 0 <= e < G: I(f"v_add_f32_dpp v{U(e)}, v{D(e)+2}, v{D(e)+3} quad_perm:[0,0,2,2] {dm} bank_mask:{bank(e, 1):#x}")
        if self.c.get("fa"): self.fs("p1")
        if hookm: hookm()
        if NP > 3: I(f"v_max3_f32 v{vM}, v{vM}, v{vU+5}, v{vU+6}\nv_max_f32 v{vM}, v{vM}, v{vU+7}")
        else: I(f"v_max_f32 v{vM}, v{vU}, v{vU+1}")
        red = ("row_ror:8 row_mask:0xf", "row_ror:4 row_mask:0xf", "row_bcast:15 row_mask:0xa", "row_bcast:31 row_mask:0xc")
        for x in red: I(f"v_max_f32_dpp v{vM}, v{vM}, v{vM} {x} bank_mask:0xf")
        I(f"v_readlane_b32 s{sM}, v{vM}, 63")
        def prob(p): return [f"v_subrev_f32 v{vU+p}, s{sM}, v{vU+p}", f"v_exp_f32 v{vU+p}, v{vU+p}",
                             f"v_mov_b32 v{vL}, v{vU+p}" if p == 0 else f"v_add_f32 v{vL}, v{vL}, v{vU+p}",
                             f"v_cvt_pk_bf16_f32 v{vU+p}, v{vU+p}, v{vU+p}",
                             f"v_mov_b32_dpp v{vU+p}, v{vU+p} quad_perm:[1,1,3,3] {dm} bank_mask:0xf"]
        def diag(i, j):
            d = vQ + 4 * (i & 1) + j; u = vU + i // 2
            if (j >> 1) == (i & 1): I(f"v_and_b32 v{d}, v{u}, v{vMask + j}")
            else: I(f"v_and_b32_dpp v{d}, v{u}, v{vMask + j} {'row_shl:4' if i & 1 else 'row_shr:4'} {dm} bank_mask:0xf bound_ctrl:0")
        a.drain()
        p0 = prob(0); p1 = prob(1)
        for t in (p0[0], p0[1], p1[0], p0[3 - 1], p0[3], p1[1], f"v_mov_b32 v{vM}, s{sM}", p0[4]): I(t)
        pend = p1[2:]
        for j in (0, 1): diag(0, j)
        I(pend.pop(0))
        for j in (2, 3): diag(0, j)
        if guard: a.barrier()
        if self.c.get("fa"): self.fs("p2start")
        lred = []
        for i, g in enumerate(order):
            self.check_slot(Vn, b, g)
            if (Vn, g) in SLOT: V = SLOT[(Vn, g)]
            else:
                if not early: lds_v(g)
                V = [v4(vU + 2 + 4 * c) for c in range(3)]
            A = v4(vQ + 4 * (i & 1))
            nx = i + 1 < G
            if (i & 1) == 1 and i // 2 + 2 < NP: assert not pend; pend = prob(i // 2 + 2)
            if i == G - 2: assert not pend; lred = [f"v_add_f32_dpp v{vL}, v{vL}, v{vL} {x} bank_mask:0xf" for x in red]
            for c in range(3):
                acc = v4(vACC + 4 * c)
                I(f"v_mfma_f32_16x16x32_bf16 {acc}, {A}, {V[c]}, {acc if i else 0}")
                if nx and c < 2: diag(i + 1, 2 * c + 0 if (i + 1) & 1 == 0 else (2 * c + 2) % 4); diag(i + 1, 2 * c + 1 if (i + 1) & 1 == 0 else (2 * c + 3) % 4)
                if pend: I(pend.pop(0))
                if lred: I(lred.pop(0))
                if i == 0 and c == 1: I(f"ds_write_b32 v51, v{vM}")
                if i == G - 1 and c == 1: I(f"s_mov_b64 exec, {sp(mL63)}\nds_write_b32 v51, v{vL} offset:16\ns_mov_b64 exec, -1")
            if early and g == 2: lds_v(3)
            if hook2: hook2(i)
        if self.c.get("fa"): self.fs("p2end")
        for c, (lo, hi) in enumerate(((0xffffffff, 0), (0x00ff00ff, 0xff00ff00), (0, 0xffffffff))):
            I(f"s_mov_b32 exec_lo, {lo:#x}\ns_mov_b32 exec_hi, {hi:#x}\nds_write_b128 v50, {v4(vACC + 4 * c)} offset:{512 * c}")
        I("s_mov_b64 exec, -1")
        if pre_bar: pre_bar()
        self.fs("att_end")
        a.barrier()
        self.combine(b, L)
        self.fs("pub2")
    def combine(self, b, L):
        a = self.a; I = a.I; inst = 4 * b + L; a.comment("merge the four waves' partials and publish")
        I("ds_read_b128 v[44:47], v9\nds_read_b128 v[48:51], v9 offset:16")
        for i in range(0, 8, 2): I(f"ds_read2st64_b32 {v2(12 + i)}, v10 offset0:{3 * i} offset1:{3 * i + 3}")
        I("v_max3_f32 v52, v44, v45, v46\nv_max_f32 v52, v52, v47")
        for w in range(4): I(f"v_sub_f32 v{44+w}, v{44+w}, v52")
        for w in range(4): I(f"v_exp_f32 v{44+w}, v{44+w}")
        for w in range(4): I(f"v_add_f32 v{12 + 2 * w}, v{12 + 2 * w}, v{13 + 2 * w}")
        I("v_mul_f32 v20, v44, v12\nv_fmac_f32 v20, v45, v14\nv_fmac_f32 v20, v46, v16\nv_fmac_f32 v20, v47, v18")
        I("v_mul_f32 v53, v44, v48\nv_fmac_f32 v53, v45, v49")
        I("v_mov_b32_dpp v21, v20 quad_perm:[1,1,3,3] row_mask:0xf bank_mask:0xf")
        I("v_fmac_f32 v53, v46, v50\nv_fmac_f32 v53, v47, v51\nv_cvt_pk_bf16_f32 v20, v20, v21")
        I(f"v_cndmask_b32 v52, v52, v53, {sp(mBIT1)}\nv_cndmask_b32 v20, v20, v52, {sp(mW3)}\nv_min_u32 v20, -2, v20")
        I(f"s_mov_b64 exec, {sp(mPub2)}" if H2_S == 384 else f"s_not_b64 exec, {sp(mODD)}")
        self.publish(f"buffer_store_dword v20, v11, {s4(WS)}, s{sOffP} offen {{pol}}", True)
        I("s_mov_b64 exec, -1")
    def wo_addr(self, b, L):
        I = self.a.I
        I(f"v_bfe_u32 v8, v0, 1, 3\nv_lshrrev_b32 v9, 4, v0\nv_and_b32 v7, 1, v0\nv_lshl_add_u32 v7, v9, 1, v7\nv_lshlrev_b32 v7, 4, v7\ns_movk_i32 s{sT0}, {H2_S}\nv_mad_u32_u24 v7, v8, s{sT0}, v7")
        I(f"v_lshl_add_u32 v8, v9, 1, v8\nv_and_b32 v8, 7, v8\nv_mul_u32_u24 v8, {16 if H2_S == 384 else H2_S}, v8\ns_add_u32 s{sOffW}, s{h2(4 * b + L)[1]}, {h2(4 * b + L)[2]}")
    def wo(self, b, L, between=None, hoisted=False, hoist=False, after=None):
        a = self.a; a.comment(f"---- row {b} layer {L}: gather attention partials, output projection partial"); I = a.I; inst = 4 * b + L; ty = L & 1
        if not hoisted: self.wo_addr(b, L)
        loads = [f"buffer_load_dwordx2 v[52:53], v8, {s4(WS)}, s{sOffW} offen offset:{3072 if H2_S == 384 else 384} sc1"]
        loads += [f"buffer_load_dwordx4 {v4(12 + 4 * t)}, v7, {s4(WS)}, s{sOffW} offen offset:{128 * t} sc1" for t in range(3)]
        S = [24, 28, 32, 36, 40, 44]
        def rd(kk, reg, tile):
            o = 10240 * (kk >> 1) + 1280 * (kk & 1) + 32 * tile
            I(f"ds_read_b64_tr_b16 {v2(reg)}, v10 offset:{o}\nds_read_b64_tr_b16 {v2(reg + 2)}, v10 offset:{o + 640}")
        def pre():
            I(f"v_bfe_u32 v10, v0, 2, 2\nv_and_b32 v11, 48, v0\nv_add_u32 v10, v10, v11\nv_mul_u32_u24 v10, 160, v10\nv_and_b32 v11, 3, v0\nv_lshl_add_u32 v10, v11, 3, v10")
            I(f"s_lshl_b32 s{sT0}, s{sW2}, 6\ns_add_u32 s{sT1}, s{sT0}, {WO[ty]}\nv_add_u32 v10, s{sT1}, v10")
            for kk in range(6): rd(kk, S[kk], 0)
            I(f"v_and_b32 v11, 15, v0\nv_lshlrev_b32 v11, 1, v11\nv_and_b32 v9, 32, v0\nv_add3_u32 v11, v11, v9, s{sT0}\ns_add_u32 s{sOffP}, s{h3(inst)[0]}, {h3(inst)[2]}")
            if hoist: self.yg_addr()
            if between: between()
        D0, D1 = 48, 24
        mt = lambda D, t, B, first: f"v_mfma_f32_16x16x32_bf16 {v4(D)}, {v4(12 + 4 * t)}, {v4(B)}, {0 if first else v4(D)}"
        def mm(*k): I(mt(*k))
        self.gather(loads, [52, 53] + list(range(12, 24)), 9, between=pre, sleep=self.lsleep(), first=hoisted and self.c.get('first', 3) & 1,
                    spec=[mt(D0, 0, S[0], True), mt(D0, 1, S[2], False), mt(D0, 2, S[4], False)])
        if after: after()
        dpp = lambda op, d, x, ctl: I(f"{op}_dpp v{d}, v{x}, v{x} {ctl} row_mask:0xf bank_mask:0xf")
        def fold(out):
            I(f"v_add_f32 v{D0}, v{D0}, v{D1 + 1}\nv_add_f32 v{D0 + 2}, v{D0 + 2}, v{D1 + 3}\nv_mul_f32 v{out}, v7, v{D0}\nv_fmac_f32 v{out}, v8, v{D0 + 2}")
        dpp("v_max_f32", 9, 52, "row_ror:8")
        mm(D1, 0, S[1], True); rd(0, S[2], 1); dpp("v_max_f32", 9, 9, "row_ror:4")
        mm(D1, 1, S[3], False); rd(2, S[4], 1); dpp("v_max_f32", 9, 9, "row_ror:2")
        mm(D1, 2, S[5], False); I("v_sub_f32 v52, v52, v9\nv_exp_f32 v52, v52"); rd(4, S[1], 1); I("v_mul_f32 v53, v52, v53")
        rd(1, S[3], 1); dpp("v_add_f32", 53, 53, "row_ror:8")
        rd(3, S[5], 1); dpp("v_add_f32", 53, 53, "row_ror:4")
        I(f"v_add_f32 v{D0}, v{D0}, v{D1 + 1}\nv_add_f32 v{D0 + 2}, v{D0 + 2}, v{D1 + 3}")
        dpp("v_add_f32", 53, 53, "row_ror:2")
        I(f"v_mov_b32 v7, v{D0}\nv_mov_b32 v8, v{D0 + 2}\nv_rcp_f32 v53, v53")
        mm(D0, 0, S[2], True); rd(5, S[2], 1)
        I("v_mul_f32 v9, v52, v53")
        mm(D0, 1, S[4], False); mm(D0, 2, S[1], False)
        I("v_mul_f32_dpp v52, v9, v7 row_newbcast:0 row_mask:0xf bank_mask:0xf")
        mm(D1, 0, S[3], True)
        I("v_mov_b32_dpp v7, v9 row_newbcast:0 row_mask:0xf bank_mask:0xf")
        mm(D1, 1, S[5], False)
        I("v_fmac_f32_dpp v52, v9, v8 row_newbcast:2 row_mask:0xf bank_mask:0xf")
        mm(D1, 2, S[2], False)
        I("v_mov_b32_dpp v8, v9 row_newbcast:2 row_mask:0xf bank_mask:0xf")
        fold(53)
        I("v_permlane32_swap_b32 v52, v53\nv_add_f32 v52, v52, v53\nv_mov_b32 v53, v52\nv_permlane16_swap_b32 v52, v53\nv_add_f32 v52, v52, v53")
        I("v_mov_b32_dpp v53, v52 quad_perm:[1,1,3,3] row_mask:0xf bank_mask:0xf\nv_cvt_pk_bf16_f32 v52, v52, v53\nv_min_u32 v52, -2, v52")
        I(f"s_mov_b64 exec, {sp(mWOST)}")
        self.publish(f"buffer_store_dword v52, v11, {s4(WS)}, s{sOffP} offen {{pol}}", False)
        I("s_mov_b64 exec, -1")
    def yg_addr(self):
        self.a.I(f"v_lshrrev_b32 v54, 4, v0\nv_mul_u32_u24 v54, {H3_H}, v54\nv_and_b32 v9, 15, v0\nv_lshl_add_u32 v54, v9, 4, v54")
    def yg_pre(self, b, L):
        I = self.a.I
        if h3(4 * b + L)[1] is None: I(f"s_add_u32 s{sOffG}, s{sX3g0}, {h3(4 * b + L)[2]}\ns_add_u32 s{sOffG2}, s{sX3g1}, {h3(4 * b + L)[2]}")
        else: I(f"s_mul_i32 s{sT0}, s{sWave}, {8 * H3_H}\ns_add_u32 s{sOffG}, s{sH3grp}, s{sT0}\ns_add_u32 s{sOffG}, s{sOffG}, {(4 * b + L) * H3_I}\ns_add_u32 s{sOffG2}, s{sOffG}, {4 * H3_H}")
        for j in range(4): I(f"v_and_b32 v{16 + j}, 0x3f803f80, v{vMask + j}")
        for j in range(8): I(f"v_mov_b32 v{8 + j}, 0")
    def yg(self, b, L, between=None, pre_bar=None, hoisted=False, after=None):
        a = self.a; a.comment(f"---- row {b} layer {L}: gather output partials, residual"); I = a.I; inst = 4 * b + L; Yb = Y + YSZ * b
        if not hoisted: self.yg_addr(); self.yg_pre(b, L)
        loads = [f"buffer_load_dwordx4 {v4(8 + 4 * j)}, v54, {s4(WS)}, s{(sOffG, sOffG2)[j]} offen sc1" for j in range(2)]
        self.gather(loads, range(8, 16), 7, between=between, emask=sp(mN10),
                    spec=["v_mfma_f32_16x16x32_bf16 v[20:23], v[16:19], v[8:11], 0", "v_mfma_f32_16x16x32_bf16 v[20:23], v[16:19], v[12:15], v[20:23]"])
        if after: after()
        I(f"v_and_b32 v7, 15, v0\nv_lshlrev_b32 v7, 5, v7\nv_and_b32 v54, 16, v0\nv_add3_u32 v7, v7, v54, s{sYw}")
        I(f"s_mov_b32 exec_lo, s{mN10}\ns_mov_b32 exec_hi, 0\nds_write_b128 v7, v[20:23] offset:{YSZ * b}\ns_mov_b64 exec, -1")
        I(f"v_lshl_add_u32 v7, v0, 2, s{sXROWw}\nds_read_b32 v54, v7 offset:{640 * b}")
        I(f"v_lshlrev_b32 v14, 3, v0\nv_add_u32 v14, {Yb}, v14")
        if L < 3: self.wq_addr(b, L + 1)
        if pre_bar: pre_bar()
        a.barrier()
        I("s_mov_b32 exec_hi, 0xff")
        I("ds_read2_b64 v[8:11], v14 offset0:0 offset1:40\nds_read2_b64 v[12:15], v14 offset0:80 offset1:120")
        I("v_lshlrev_b32 v16, 16, v54\nv_and_b32 v17, 0xffff0000, v54")
        I("v_pk_add_f32 v[8:9], v[8:9], v[10:11]\nv_pk_add_f32 v[12:13], v[12:13], v[14:15]\nv_pk_add_f32 v[8:9], v[8:9], v[12:13]")
        I("v_cvt_pk_bf16_f32 v8, v8, v9\nv_and_b32 v9, 0xffff0000, v8\nv_lshlrev_b32 v8, 16, v8\nv_pk_add_f32 v[8:9], v[8:9], v[16:17]\nv_cvt_pk_bf16_f32 v8, v8, v9")
        if L < 3: I(f"ds_write_b32 v7, v8 offset:{640 * b}")
        else:
            I(f"s_cmp_lg_u32 s{sWave}, 0"); a.skip_begin("s_cbranch_scc1")
            I(f"s_mul_i32 s{sT0}, s{sS}, 160\nv_lshlrev_b32 v7, 2, v0")
            I(f"buffer_store_dword v8, v7, {s4(XO)}, s{sT0} offen offset:{1280 * b}")
            a.skip_end()
        I("s_mov_b64 exec, -1")
    def fin_pre(self, b):
        a = self.a; I = a.I; inst = 4 * b + 3
        self.yg_addr(b, 3) if False else None
        for j in range(4): I(f"v_and_b32 v{16 + j}, 0x3f803f80, v{vMask + j}")
        I(f"v_and_b32 v9, 15, v0\nv_lshlrev_b32 v9, 4, v9\nv_bfe_u32 v10, v0, 4, 1\nv_lshl_add_u32 v9, v10, 3, v9\nv_add_u32 v10, {XROW + 640 * b}, v9\nds_read_b64 v[10:11], v10")
        for k in range(8):
            if h3(inst)[1] is None:
                if k == 0: I(f"s_and_b32 s0, s40, 1\ns_lshl_b32 s0, s0, 13\ns_sub_u32 s12, s{sX3g0}, s0\ns_add_u32 s12, s12, {h3(inst)[2]}")
                I(f"s_bfe_u32 s0, s{40 + (k >> 2)}, {0x10000 + 8 * (k & 3):#x}\ns_lshl_b32 s0, s0, 13\ns_add_u32 s0, s0, {(k & 3) * 4 * H3_H}\ns_add_u32 s{4 + k}, s12, s0")
            else: I(f"s_add_u32 s{4 + k}, s{sH3grp}, {h3(inst)[2] + k * 4 * H3_H}")
        I(f"v_lshlrev_b32 v12, 16, v10\nv_and_b32 v13, 0xffff0000, v10\nv_lshlrev_b32 v14, 16, v11\nv_and_b32 v15, 0xffff0000, v11\ns_mul_i32 s{sT0}, s{sS}, 160")
    def fin(self, b):
        a = self.a; I = a.I; a.comment(f"---- row {b}: gather output partials, residual, store")
        loads = [f"buffer_load_dwordx4 {v4(60 + 4 * k)}, v54, {s4(WS)}, s{4 + k} offen sc1" for k in range(8)]
        self.gather(loads, range(60, 92), 7, emask=sp(mN10), vmask=True,
                    spec=[f"v_mfma_f32_16x16x32_bf16 v[20:23], v[16:19], {v4(60 + 4 * k)}, {'v[20:23]' if k else 0}" for k in range(8)])
        I(f"s_mov_b32 exec_lo, s{mN10}\ns_mov_b32 exec_hi, 0")
        I("v_cvt_pk_bf16_f32 v20, v20, v21\nv_cvt_pk_bf16_f32 v22, v22, v23\nv_and_b32 v21, 0xffff0000, v20\nv_lshlrev_b32 v20, 16, v20\nv_and_b32 v23, 0xffff0000, v22\nv_lshlrev_b32 v22, 16, v22")
        I("v_pk_add_f32 v[20:21], v[20:21], v[12:13]\nv_pk_add_f32 v[22:23], v[22:23], v[14:15]\nv_cvt_pk_bf16_f32 v20, v20, v21\nv_cvt_pk_bf16_f32 v21, v22, v23")
        I(f"buffer_store_dwordx2 v[20:21], v9, {s4(XO)}, s{sT0} offen offset:{1280 * b}\ns_mov_b64 exec, -1")
    def touch(self, b, L, lvl=1):
        if self.c.get("touch", 4) == 4 or self.c.get("touch") < lvl: return
        a = self.a; I = a.I; m = self.c.get("tm", 2)
        I(f"s_mov_b32 m0, {JUNK}\ns_mov_b64 exec, 3")
        if m & 1:
            I(f"v_mov_b32 v31, s{sPub2}\ns_add_u32 s{sT1}, s{h2(4 * b + L)[0]}, {h2(4 * b + L)[2]}")
            I(f"buffer_load_dword v31, {s4(WS)}, s{sT1} offen sc1 lds")
        if L < 3 and m & 2:
            I(f"s_lshl_b32 s{sT0}, s{sWave}, 8\nv_lshl_add_u32 v31, v0, 7, s{sT0}\ns_add_u32 s{sT1}, s{h1(4 * b + L + 1)[0]}, {h1(4 * b + L + 1)[2]}")
            I(f"buffer_load_dword v31, {s4(WS)}, s{sT1} offen sc1 lds")
        I("s_mov_b64 exec, -1")
    def touch_fill(self, b, L):
        I = self.a.I; m = self.c.get("tm", 2)
        if m & 1:
            I(f"s_add_u32 s{sT1}, s{h2(4 * b + L)[0]}, {h2(4 * b + L)[2]}\nv_mov_b32 v54, s{sPub2}")
            I(f"s_mov_b32 m0, {JUNK} | buffer_load_dword v54, {s4(WS)}, s{sT1} offen sc1 lds")
        if L < 3 and m & 2:
            I(f"s_lshl_b32 s{sT0}, s{sWave}, 8\nv_and_b32 v54, 1, v0\nv_lshl_add_u32 v54, v54, 7, s{sT0}\ns_add_u32 s{sT1}, s{h1(4 * b + L + 1)[0]}, {h1(4 * b + L + 1)[2]}")
            I(f"s_mov_b32 m0, {JUNK} | buffer_load_dword v54, {s4(WS)}, s{sT1} offen sc1 lds")
    def chain_idle(self, b, L, burst=(0, 0, 0), sh=(0, 0, 0, 0), pf=(0, 0, 0)):
        a = self.a; U = lambda n: (lambda: self.stream(n, paced=False))
        if self.c.get("skip3", 1):
            a.I(f"s_cmp_eq_u32 s{sWave}, 3"); a.skip_begin("s_cbranch_scc1")
            self.wo(b, L, hoisted=True)
            a.skip_end()
            self.yg_addr()
            self.stream(sh[0] + sh[1], paced=False)
            self.pfreg = 7; self.prefetch(pf[0])
        else:
            self.wo(b, L, between=U(burst[0]), hoisted=True, hoist=True, after=U(sh[0]))
            self.stream(sh[1], paced=False)
        self.stamp(f"wo{b}{L}")
        self.fs("pub3")
        late = self.c.get("late", 2)
        if L == 3:
            a.I(f"s_cmp_eq_u32 s{sH}, 1\ns_cbranch_scc1 L_out0")
            a.I(f"s_cmp_lg_u32 s{sH}, 0\ns_cbranch_scc1 L_fin")
            self.page()
            if self.c.get("fin1", 1):
                if not self.c.get("finl", 1): self.fin_pre(1)
                a.wait_tag("pub"); a.barrier()
                a.I(f"s_cmp_lg_u32 s{sWave}, 0\ns_cbranch_scc1 L_fin")
                if self.c.get("finl", 1): self.fin_pre(1)
                self.fin(1)
                return
        dfr = self.deferred; self.deferred = []
        pub = a.vm.last_tag("pub")
        for jobs in dfr: self.clear_prep(jobs); self.clear_issue("clr3")
        if L < 3 and not late: self.wq_pre((L + 1) & 1)
        if late < 2: self.yg_pre(b, L)
        a.wait_tag("pub"); a.barrier()
        if L < 3 and late: self.wq_pre((L + 1) & 1)
        if late >= 2: self.yg_pre(b, L)
        self.yg(b, L, between=lambda: (self.stream(burst[1], paced=False), self.page() if L < 3 else None), hoisted=True, after=lambda: (self.stream(sh[2], paced=False), self.prefetch(pf[1])), pre_bar=(lambda: a.wait_tag("clr3")) if dfr else None)
        self.fs("xrow")
        if L == 3: return
        self.wq_main(b, L + 1, hoisted=True, hoist=True)
        self.fs("pub1")
        self.stamp(f"wq{b}{L+1}")
        self.qg(b, L + 1, between=U(burst[2]), hoisted=True, tail=True, after=lambda: (self.touch(b, L + 1) if self.c.get("touch", 4) != 3 or (b, L) == (0, 1) else None, self.stream(sh[3], paced=False), self.prefetch(pf[2])))
        self.stamp(f"qg{b}{L+1}")
    def build(self):
        a = self.a; c = self.c; W = self.W; WE = c.get("WE", W); HE = c.get("HE", 4); PG = c.get("PG", 0)
        self.off_val = None
        for x in c.get("order", "kvw"):
            if x == "w": self.add_w("wqA", pWQA, "q", 0)
            else:
                for g in range(4): self.add_kv("KA" if x == "k" else "VA", 0, g)
        self.add_w("woA", pWOA, "o", 0); self.add_w("wqB", pWQB, "q", 1)
        for g in range(16): self.add_kv("KB", 0, g)
        wl = c.get("wolate", 0)
        if not wl: self.add_w("woB", pWOB, "o", 1)
        for g in range(16): self.add_kv("VB", 0, g)
        if wl: self.add_w("woB", pWOB, "o", 1, late=True)
        p1 = len(self.items)
        for g in range(4): self.add_kv("KA", 1, g)
        for g in range(4): self.add_kv("VA", 1, g)
        p2 = len(self.items)
        for g in range(16): self.add_kv("KB", 1, g)
        for g in range(16): self.add_kv("VB", 1, g)
        st = self.stream_to; S = lambda n: (lambda: self.stream(n))
        self.limit = p1; a.nobar = c.get('nobar', 0)
        self.setup()
        if c.get("inject", 1): a.inject = self.injector
        if c.get("streamonly"):
            self.limit = 10**9; self.npage = 0; self.hot = []; self.inl = False; self.boost = 0; a.inject = None
            for upto in c["streamonly"]:
                if isinstance(upto, tuple): st(upto[0], W=upto[1])
                else: st(upto)
                self.stamp("end")
            a.wait(vm=0); self.stamp("end")
            return self.finish()
        P = c.get("P1", dict(arr=24, hs=36, qg0=44, wo=76, yg=104, qg1=130))
        for _ in range(c.get("pad", 0)): a.I("s_nop 0")
        a.raw("L_pf0:")
        self.stamp("setup")
        a.wait_tag("clr"); a.barrier()
        self.arrive()
        st(max(P["arr"], self.index_after("wqA") + 4))
        self.stamp("arr")
        a.wait_tag("wqA"); a.barrier()
        self.wq_pre(0); self.wq_main(0, 0, local_ok=False)
        self.wq_pre(0); self.wq_main(1, 0, local_ok=False)
        self.stamp("wq")
        st(P["hs"]); self.handshake(S(W))
        for r, m, base in ((sCTw, 256, CT), (sATTw, 1536, ATT), (sSTATw, 4, STAT), (sCOMBw, 256, ATT)):
            a.I(f"s_mul_i32 s{r}, s{sWave}, {m}\ns_add_u32 s{r}, s{r}, {base}")
        P_ = lambda i: [("P", i)]
        now = [[P_(1), [("C", 1)], P_(2), [("2", 1), ("3", 1)]], [[("3", 2), ("3", 3)], [("3", 4), ("3", 5)], [("3", 6), ("3", 7)], [("3", 6), ("3", 7)]]]
        self.deferred = [[P_(3), P_(5), P_(6), P_(7)], [[("2", 2), ("2", 3)], [("2", 4), ("2", 5)], [("2", 6), ("2", 7)], [("2", 6), ("2", 7)]]]
        if not c.get("defer", 1): now += self.deferred; self.deferred = []
        for jobs in now:
            self.clear_prep(jobs); self.clear_issue("clr2"); self.stream(1)
        self.stamp("hs")
        st(P["qg0"]); self.qg(0, 0, between=S(W))
        self.stamp()
        self.att(0, 0, pre_bar=lambda: (st(self.index_after("woA")), a.wait_tag("woA"), a.wait_tag("clr2")))
        self.stamp()
        self.qg(1, 0, between=S(W))
        self.stamp("qg10")
        st(P["wo"]); self.wo(0, 0, between=S(W))
        self.stamp("wo00")
        st(P["yg"]); self.yg(0, 0, between=S(W), pre_bar=lambda: a.wait_tag("wqB"))
        self.stamp("yg00")
        self.wq_pre(1); self.wq_main(0, 1, hoisted=True)
        self.stream(3, paced=False); self.warm([0, 1, 2, "R"])
        if c.get("cpf") == 2: self.code_prefetch("L_pf1", "L_pf2")
        st(P["qg1"]); self.touch(0, 1, 2) if c.get('touch') == 2 else None; self.qg(0, 1, tail=True, between=lambda: self.stream(min(WE, p1 - self.pos), W=WE))
        a.raw("L_pf1:")
        self.stamp()
        st_ = 64 << c.get("pfs", 6)
        self.pfq = [(KA, o) for o in range(0, 12288, st_)] + [(VA, o) for o in range(0, 12288, st_)] + [(KB, o) for o in range(0, 49152, st_)]
        self.pfreg = 54
        vb0 = self.index_after(("VB", 0, 0)) - 3
        assert self.pos >= vb0 + 3
        if wl: assert self.pos <= p1 - 8
        self.att(0, 1, hook1=lambda g: self.stream(min(1, p1 - self.pos), W=WE) if g % HE == HE - 1 else None,
                 hook2=lambda i: (st(min(p1, vb0 + 3 * (i + 2) + WE - 3), W=WE), self.page() if i == PG else None, self.prefetch(c.get("pf0", 0)) if i == c.get("pfi", 11) else None), pre_bar=lambda: st(p1, W=WE) if wl else a.wait_tag("woB"), hoist=True, qaddr=True)
        if wl: a.wait_tag("woB"); a.barrier()
        assert self.pos == p1
        a.inject = None; self.limit = p2
        self.stamp("p1end")
        self.chain_idle(0, 1, pf=c.get("pf1", (0, 0, 0)))
        bu = c.get("burst", (6, 0, 0, 0)); sh = c.get("sh", (0, 9, 3, 6))
        self.att(0, 2, hookm=lambda: self.stream(bu[0], paced=False), hoist=True, qaddr=True)
        self.stamp("att02")
        self.pfq = [x for x in self.pfq if x[0] == KB]
        self.chain_idle(0, 2, burst=bu[1:], sh=sh, pf=c.get("pf2", (0, 0, 0)))
        self.stamp("p2beg")
        self.limit = len(self.items)
        n0 = c.get("n0", 9); h2 = c.get("h2", 2); q0 = self.pos
        def hook03(g):
            self.stream(max(0, min(3, q0 + n0 - self.pos, p2 + 3 * g + 3 - self.pos)), paced=False)
        self.att(0, 3, hook1=hook03, hook2=lambda i: self.stream(1, paced=False) if i % h2 == h2 - 1 else None, qaddr=True)
        self.stamp("att03")
        a.raw("L_pf2:")
        P = c.get("P2", dict(att=8, wo=34, yg=62, qg=80))
        if c.get("inject", 1): a.inject = self.injector
        st(p2 + P.get("att", 0))
        self.att(1, 0, guard=True, hook2=lambda i: self.stream(2))
        self.stamp("att10")
        st(p2 + P["wo"]); self.stamp("a"); self.wo(1, 0, between=S(W)); self.stamp("wo10"); self.wo(0, 3, between=S(W)); self.stamp("wo03")
        st(p2 + P["yg"]); self.stamp("b"); self.yg(1, 0, between=S(W)); self.stamp("yg10")
        self.wq_pre(1); self.wq_main(1, 1, hoisted=True)
        self.stream(3, paced=False); self.warm([3, 4, 5, 6])
        if c.get("cpf") == 2: self.code_prefetch("L_pf3", "L_pf9")
        st(p2 + P["qg"]); self.stamp("c"); self.touch(1, 1, 2) if c.get('touch') == 2 else None; self.qg(1, 1, tail=True, between=lambda: self.stream(WE, W=WE))
        a.raw("L_pf3:")
        self.stamp("qg11")
        vb1 = p2 + 48
        self.att(1, 1, hook1=lambda g: self.stream(1, W=WE) if g % HE == HE - 1 else None,
                 hook2=lambda i: (st(min(len(self.items), vb1 + 3 * (i + 2) + WE - 3), W=WE), self.page() if i == PG else None), hoist=True, qaddr=True)
        assert self.pos == len(self.items)
        a.inject = None
        self.stamp("p2end")
        self.chain_idle(1, 1)
        self.fine_on = c.get("fine") == 1
        self.fs("q_ready")
        self.att(1, 2, hoist=True, qaddr=True)
        self.stamp("att12")
        self.chain_idle(1, 2)
        self.fs("q_ready")
        if c.get("fine") == 2: self.fine_on = True; self.fs("q_ready")
        self.att(1, 3, hoist=True, qaddr=True)
        self.stamp("att13")
        self.chain_idle(1, 3)
        a.I("s_branch L_fin"); a.raw("L_out0:"); a.I("s_nop 7"); a.wait(vm=0, lg=0)
        if c.get("fin1", 1):
            a.I(f"s_cmp_lg_u32 s{sWave}, 0\ns_cbranch_scc1 L_fin")
            self.fin_pre(0); self.fin(0)
        else: self.yg(0, 3)
        a.raw("L_fin:"); a.I("s_nop 7")
        if c.get("hold"):
            a.raw("L_hold:"); a.I(f"s_memrealtime s[38:39]"); a.wait(lg=0)
            a.I(f"s_sub_u32 s38, s38, s{98 if c.get('holdat') else sST}\ns_cmp_lt_u32 s38, {c['hold']}\ns_cbranch_scc1 L_hold")
        self.fs("end")
        self.stamp("end")
        return self.finish()
    def finish(self):
        a = self.a; c = self.c
        if c.get("fine"):
            a.wait(lg=0)
            for i in range(self.nfine): a.I(f"v_writelane_b32 v{vStamp}, s{FS[i]}, {i}")
            print("fine stamps:", self.fnames)
        if c.get("diag"):
            a.I("s_sleep 100")
            a.I(f"v_writelane_b32 v{vStamp}, s{sRetry}, 62\nv_writelane_b32 v{vStamp}, s{sLocal}, 63")
            a.I(f"s_lshl_b32 s{sT0}, s{sWG}, 10\ns_lshl_b32 s{sT1}, s{sWave}, 8\ns_add_u32 s{sT0}, s{sT0}, s{sT1}\ns_add_u32 s{sT0}, s{sT0}, {DIAG}\nv_lshlrev_b32 v7, 2, v0")
            a.I(f"buffer_store_dword v{vStamp}, v7, {s4(WS)}, s{sT0} offen")
        if c.get("diag") and not c.get("fine"): print("stamps:", " ".join(self.snames))
        a.raw("L_end:"); a.raw("  s_endpgm")
        if c.get("pages", 1): self.hot = [f".p2align {c.get('hotal', 12)}\nLstR:\n  s_setpc_b64 {sp(sRet)}"] + self.hot
        a.tail = self.hot + a.tail
        a.tail.append("L_pf9:\n  s_endpgm")
        body = a.text()
        return (HEAD + f"; @launch grid=(256,1,1) block=(256,1,1) lds={LDS_BYTES}\n" + DOC
                + f'.amdgcn_target "amdgcn-amd-amdhsa--gfx950"\n.text\n.globl {NAME}\n.p2align 8\n.type {NAME},@function\n{NAME}:\n'
                + body + f'.section .rodata,"a"\n.p2align 6\n.amdhsa_kernel {NAME}\n  .amdhsa_next_free_vgpr 512\n  .amdhsa_next_free_sgpr 102\n'
                + "  .amdhsa_accum_offset 256\n  .amdhsa_group_segment_fixed_size 0\n  .amdhsa_kernarg_size 104\n  .amdhsa_user_sgpr_count 2\n"
                + "  .amdhsa_user_sgpr_kernarg_segment_ptr 1\n  .amdhsa_system_sgpr_workgroup_id_x 1\n.end_amdhsa_kernel\n")

def generate(cfg):
    global COMPACT1; COMPACT1 = cfg.get('c1', 0)
    global H1_I, H1_H, H1_S, H2, H2_I, H2_H, H2_S, H3, H3_I, H3_S, H3_H
    H1_S = cfg.get("H1S", 2048); H1_H = cfg.get("H1H", 8 * H1_S); H1_I = 32 * H1_H
    H2_S = cfg.get("H2S", 384); H2_H = cfg.get("H2H", 8 * H2_S if H2_S != 384 else 4096); H2_I = 32 * H2_H; H2 = cfg.get("H2B", 8 * H1_I); assert H2 >= 8 * H1_I
    H3_H = cfg.get("H3H", 192); H3_S = cfg.get("H3S", 32 * H3_H); H3_I = cfg.get("H3I", max(8 * H3_S, 32 * H3_H)); H3 = cfg.get("H3B", H2 + 8 * H2_I); assert H3 >= H2 + 8 * H2_I
    global USE_HOT; USE_HOT = cfg.get("hot", 3)
    assert H3 + 8 * H3_I <= (6 << 20) and not (USE_HOT and COMPACT1) and H3_H <= 256
    return Gen(cfg).build()
if __name__ == "__main__":
    cfg = eval(sys.argv[2]) if len(sys.argv) > 2 else {}
    open(sys.argv[1], "w").write(generate(cfg))
```

```python
import sys, math
from dsl import Asm

NAME = "interleave_layers__sliding_block_cached__gqa_block_cached__decode_kernel"
HEAD = open("interleave_layers__sliding_block_cached__gqa_block_cached__decode.s.ref").read().split("; Override")[0]

KV_BYTES = 2 * 32 * 4096 * 384
BSTR = 32 * 4096 * 384
HSTR = 4096 * 384
W_BYTES = 640 * 6144 * 2
WS_BYTES = 434115584
H1_I, H1_H, H1_S = 524288, 16384, 2048
H2 = 8 * H1_I; H2_I, H2_H, H2_S = 131072, 4096, 512
H3 = H2 + 8 * H2_I; H3_I, H3_S, H3_H = 65536, 8192, 256
DIAG = 64 << 20
WQ = (0, 61440); WO = (30720, 92160)
VS = 122880
EX = 147456
ATT = EX; STAT = EX + 6144; Y = EX + 6208; YSZ = 1280; XROW = Y + 2 * YSZ; ONES = XROW + 1280; QB = ONES + 160; CT = QB + 768
JUNK = CT + 2048
LDS_BYTES = JUNK + 256
assert LDS_BYTES <= 163840
sWG, sWave = 2, 3
KA, VA, KB, VB, WS, WT, XO = 4, 8, 12, 16, 20, 24, 28
pX, pKA, pVA, pWQA, pWOA, pKB, pVB, pWQB, pWOB, pOUT, pDBG, pWS = 32, 34, 36, 38, 40, 44, 46, 48, 50, 52, 54, 56
sH, sS, sLocal, sOff, sRetry, sT0, sT1, sT2 = 58, 59, 60, 61, 62, 63, 64, 65
sH1own, sH1grp, sH2own, sH2grp, sH3own, sH3grp, sOffG, sOffP = 66, 67, 68, 69, 70, 71, 72, 73
mODD, mHI8, mHI32, mWOST, mRG1, mRG2, mRG3, m60 = 74, 76, 78, 80, 82, 84, 86, 88
sXcc, sWqRow, sWoRow, sLdsW, sLdsVS = 90, 91, 92, 93, 94
sST = 0; m40 = 98; mBIT1 = 100; mW3 = 42; mN10 = 32; sW2 = 95; sOffG2 = 35; sClr = 0; sM = 34; sOffW = 76; sRet = 78; sX1own, sX1grp, sX2own, sX2grp, sX3own, sX3g0, sX3g1 = 77, 98, 99, 52, 53, 96, 97; sPub2 = 44; sXROWw, sYw, sQw, sCTw, sATTw, sSTATw, sCOMBw = 45, 56, 57, 38, 39, 54, 55; sH1c = 77; mQ13 = 98; mPub1 = 52; mPub2 = 46; mL63 = 36
FS = [50, 24, 26, 88, 90, 92]
def sp(n): return f"s[{n}:{n+1}]"
def s4(n): return f"s[{n}:{n+3}]"
def v2(n): return f"v[{n}:{n+1}]"
def v4(n): return f"v[{n}:{n+3}]"
vLane, vKoff, vVoff, vMask = 0, 1, 2, 3
vQ, vACC, vU = 12, 24, 36
vStamp = 55
QUADS = [f"a[{i}:{i+3}]" for i in range(0, 256, 4)] + [f"v[{i}:{i+3}]" for i in range(56, 256, 4)]
SLOT = {}
_names = [("KA", i) for i in range(4)] + [("VA", 0), ("VA", 1)] + [("KB", i) for i in range(16)] + [("VB", i) for i in range(16)]
for i, n in enumerate(_names): SLOT[n] = QUADS[3 * i:3 * i + 3]
assert SLOT[("VB", 15)][2] == "v[252:255]"
vWq0, vWq1, vWo = 252, 253, 254
SCALE = 192 ** -0.5 * math.log2(math.e)
import struct
def f32(x): return "0x%08x" % struct.unpack("<I", struct.pack("<f", x))[0]

DOC = "; Four decode layers (A, B, A, B) in one persistent launch, one workgroup per CU (4 waves x 512 registers, 157 KiB LDS).\n;  workgroup w: head h = 4*(w&7) + ((w>>3)&3), slice s = w>>5. It owns 1/8 of head h's cache positions for both batch rows,\n;  Speed only: the slots of the latency-bound hand-offs share one 2 MiB page of d_ws whose address bit 13 selects the memory\n"

HOT1 = {2: 0, 3: 1, 6: 2, 7: 3}; HOT2 = {1: 0, 2: 1, 5: 2, 6: 3, 7: 4}
X2 = 1 << 20; X3 = X2 + 5 * 131072; XP = X3 + 5 * 65536
USE_HOT = True
def h1(inst): return (sX1own, sX1grp, HOT1[inst] * 262144, 1024) if USE_HOT and inst in HOT1 else (sH1own, sH1grp, inst * H1_I, H1_S)
def h2(inst): return (sX2own, sX2grp, HOT2[inst] * 131072) if USE_HOT and inst in HOT2 else (sH2own, sH2grp, inst * H2_I)
def h3(inst): return (sX3own, None, HOT2[inst] * 65536) if USE_HOT and inst in HOT2 else (sH3own, sH3grp, inst * H3_I)
def c1(inst): return COMPACT1 and inst >= 2

class Gen:
    def __init__(self, cfg):
        self.c = cfg; self.a = Asm(); self.items = []; self.pos = 0; self.nstamp = 0
        self.W = cfg.get("W", 9); self.limit = 10**9; self.npage = 0; self.hot = []; self.inl = False; self.boost = 0; self.last_cyc = 0; self.fine_on = False; self.nfine = 0; self.fnames = []; self.snames = ['start']
    def add_w(self, name, ptr, kind, ty, late=False):
        pol = self.c.get("wpol", "nt")
        def mk(k):
            def f():
                a = self.a
                if k == 0:
                    off = sWqRow if kind == "q" else sWoRow
                    a.I(f"s_add_u32 s{WT}, s{ptr}, s{off}\ns_addc_u32 s{WT+1}, s{ptr+1}, 0\ns_sub_u32 s{WT+2}, {W_BYTES}, s{off}")
                    if late: a.I("v_mul_u32_u24 v54, 26, v0\nv_lshrrev_b32 v54, 8, v54\nv_mul_u32_u24 v54, 1120, v54\nv_lshl_add_u32 v54, v0, 4, v54")
                base = (WQ if kind == "q" else WO)[ty]
                a.I(f"s_add_u32 m0, s{sLdsW}, {base + 960 * k}")
                if kind == "q": so = 5 * (k // 2) * 12288; vr = vWq1 if k & 1 else vWq0
                else: so = 6 * k * 1280; vr = 54 if late else vWo
                a.I(f"s_mov_b32 s{sOff}, {so}\ns_mov_b64 exec, {sp(m60)}")
                a.I(f"buffer_load_dwordx4 v{vr}, {s4(WT)}, s{sOff} offen {pol} lds", tag=name)
                a.I("s_mov_b64 exec, -1")
            return f
        self.items += [(name, mk(k)) for k in range(8)]
    def add_kv(self, name, b, g):
        srd = {"KA": KA, "VA": VA, "KB": KB, "VB": VB}[name]
        isK = name[0] == "K"; vo = vKoff if isK else vVoff; step = 128 if isK else 256
        pol = self.c.get("kvpol", "nt")
        def mk(c):
            def f():
                a = self.a
                if (name, g) in SLOT:
                    rot = self.c.get("rot", 1) and name[1] == "B"
                    if rot and (name, b, g, c) == ("KB", 0, 0, 0):
                        m = self.c.get("rot", 1)
                        if m == 1: a.I(f"s_and_b32 s48, s{sS}, 3\ns_lshl_b32 s49, s{sWave}, 2\ns_or_b32 s48, s48, s49")
                        if m == 2: a.I(f"s_lshl_b32 s48, s{sWave}, 2")
                        if m == 3: a.I(f"s_and_b32 s48, s{sS}, 3\ns_lshl_b32 s48, s48, 2")
                        if m == 4: a.I(f"s_and_b32 s48, s{sWave}, 1\ns_lshl_b32 s48, s48, 3")
                    if c == 0 or self.off_val != (name, b, g):
                        if rot: a.I(f"s_xor_b32 s{sOff}, s48, {g}\ns_mul_i32 s{sOff}, s{sOff}, 3072" + (f"\ns_add_u32 s{sOff}, s{sOff}, {BSTR}" if b else ""))
                        else: a.I(f"s_mov_b32 s{sOff}, {b * BSTR + g * 3072}")
                    self.off_val = (name, b, g)
                    a.I(f"buffer_load_dwordx4 {SLOT[(name, g)][c]}, v{vo}, {s4(srd)}, s{sOff} offen offset:{step * c} {pol}")
                else:
                    self.off_val = None
                    a.I(f"s_add_u32 m0, s{sLdsVS}, {(g - 2) * 3072 + 1024 * c}\ns_mov_b32 s{sOff}, {b * BSTR + g * 3072 + step * c}")
                    a.I(f"buffer_load_dwordx4 v{vo}, {s4(srd)}, s{sOff} offen {pol} lds", tag=("VS", b, g))
            return f
        self.items += [((name, b, g), mk(c)) for c in range(3)]
    def stream(self, n, paced=True, W=None):
        for _ in range(n):
            if self.pos >= len(self.items): return
            assert self.pos < self.limit, (self.pos, self.limit)
            if paced: self.a.pace((W or self.W) + (self.c.get("B", 0) if self.pos < self.boost else 0))
            sv = self.a._in_inject; self.a._in_inject = True
            self.items[self.pos][1](); self.pos += 1; self.last_cyc = self.a.cyc
            if self.c.get("diag") == 3 and self.pos % 5 == 0 and self.pos > 10: self.stamp("pos")
            self.a._in_inject = sv
    def prefetch(self, n):
        a = self.a
        for _ in range(n):
            if not self.pfq: return
            srd, off = self.pfq.pop(0)
            a.I(f"v_lshlrev_b32 v{self.pfreg}, {self.c.get('pfs', 6)}, v0\ns_mov_b32 m0, {JUNK}\ns_mov_b32 s{sOff}, {BSTR + off}")
            a.I(f"buffer_load_dword v{self.pfreg}, {s4(srd)}, s{sOff} offen {self.c.get('pfpol', '')} lds")
            self.off_val = None
    def injector(self):
        a = self.a
        if self.pos < self.limit and a.cyc - self.last_cyc >= self.c.get("T", 330) and a.vm.outstanding() < self.W + self.c.get("XW", 4) + (self.c.get("B", 0) if self.pos < self.boost else 0):
            self.stream(1, paced=False)
    def stream_to(self, upto, **k): self.stream(max(0, upto - self.pos), **k)
    def index_after(self, name):
        return max(i for i, it in enumerate(self.items) if it[0] == name) + 1
    def fs(self, name):
        if not self.fine_on or self.nfine >= len(FS): return
        self.fcount = getattr(self, "fcount", 0) + 1
        if self.fcount <= self.c.get("fskip", 0): return
        self.a.I(f"{'s_memrealtime' if self.c.get('rt') else 's_memtime'} {sp(FS[self.nfine])}"); self.nfine += 1; self.fnames.append(name)
    def page(self):
        if not self.c.get("pages", 1): return
        k = self.npage; self.npage += 1
        self.a.I(f"s_branch Lpg{k}"); self.a.raw(f".p2align 12\nLst{k}:\n  s_setpc_b64 {sp(sRet)}\nLpg{k}:")
    def warm(self, ks):
        if not (self.c.get("pages", 1) and self.c.get("warm", 1)): return
        a = self.a
        a.I(f"s_cmp_lg_u32 s{sWave}, 3"); a.skip_begin("s_cbranch_scc1")
        for k in ks: a.I(f"s_call_b64 {sp(sRet)}, Lst{k}")
        a.skip_end()
    def check_slot(self, name, b, g):
        assert self.index_after((name, b, g)) <= self.pos, ("not issued", name, b, g, self.pos)
        if b == 0: assert self.index_after((name, 1, g)) - 3 >= self.pos, ("overwritten", name, g)
    def stamp(self, name=''):
        if self.c.get("marks"): self.a.raw(f"M_{name}_{len(self.snames)}:")
        if self.c.get("holdat") == name:
            self.a.I("s_memrealtime s[98:99]"); self.a.wait(lg=0)
        self.snames.append(f'{name}@{self.pos}')
        if not self.c.get("diag") or self.c.get("fine"): return
        if self.c["diag"] == 3 and name not in ("pos", "end"): self.snames.pop(); return
        if self.c["diag"] == 2 and name not in self.c.get("only", ("p1end", "p2beg", "p2end", "end")): self.snames.pop(); return
        a = self.a
        a.I(f"s_memrealtime {sp(sST)}"); a.wait(lg=0)
        a.I(f"v_writelane_b32 v{vStamp}, s{sST if not self.c.get('rcount') else sRetry}, {self.nstamp}"); self.nstamp += 1
    def publish(self, text, local_ok, tag="pub"):
        a = self.a
        if local_ok and self.c.get("local", True):
            a.I(f"s_cmp_lg_u32 s{sLocal}, 0")
            a.either(text.format(pol=""), text.format(pol="sc1"), tag=tag)
        else: a.I(text.format(pol="sc1"), tag=tag); self.boost = self.pos + self.c.get("KB", 14)
    def gather(self, loads, regs, tmp, between=None, emask=None, sleep=None, first=False, spec=(), vmask=False):
        a = self.a
        if first and between: between(); between = None
        if emask: loads = [f"s_mov_b64 exec, {emask}"] + loads + ["s_mov_b64 exec, -1"]
        for t in loads: a.I(t, tag="gat")
        last = len(a.vm.ent) - 1
        if emask or self.c.get("BG"): self.boost = self.pos + self.c.get("KB", 14)
        if between: between()
        self.fs("issued")
        n = a.vm.need(last)
        if n is not None: a.wait(vm=n)
        chk = a.label("Lc"); rt = a.label("Lr")
        a.raw(f"{chk}:"); a.no_inject += 1
        r = list(regs); ops = []
        ops.append(f"v_max3_u32 v{tmp}, v{r[0]}, v{r[1]}, v{r[2]}"); r = r[3:]
        while len(r) >= 2: ops.append(f"v_max3_u32 v{tmp}, v{tmp}, v{r[0]}, v{r[1]}"); r = r[2:]
        if r: ops.append(f"v_max_u32 v{tmp}, v{tmp}, v{r[0]}")
        ops.append(f"v_cmp_eq_u32 vcc, -1, v{tmp}")
        spec = list(spec)
        k = -(-len(ops) // max(1, len(spec)))
        while ops or spec:
            if spec: a.I(spec.pop(0))
            for t in ops[:k]: a.I(t)
            ops = ops[k:]
        if vmask: a.I(f"s_and_b64 vcc, vcc, {emask}")
        self.inl = self.c.get("inl", 0) and not a.inject
        if not (self.c.get("novalid") and a.inject): a.I(f"s_cbranch_vccz {rt}k" if self.inl else f"s_cbranch_vccnz {rt}")
        if self.c.get("narrow", 3) & (2 if emask else 1):
            loads = ["s_mov_b64 exec, vcc"] + [t for t in loads if not t.startswith("s_mov")] + ["s_mov_b64 exec, -1"]
        self.retry_block(rt, chk, loads, sleep); a.no_inject -= 1
        self.fs("valid")
    def lsleep(self): return None if self.a.inject else self.c.get('lsleep', 0)
    def retry_block(self, rt, chk, loads, sleep=None):
        a = self.a
        if sleep is None: sleep = self.c.get("sleep", 0)
        blk = ([f"  s_sleep {sleep}"] if sleep else []) + ["  " + t for t in loads]
        blk += [f"  s_add_u32 s{sRetry}, s{sRetry}, 1", f"  s_cmp_gt_u32 s{sRetry}, {self.c.get('spin', 400000)}", "  s_cbranch_scc1 L_end",
                "  s_waitcnt vmcnt(0)", f"  s_branch {chk}"]
        if self.inl: a.out += blk + [f"{rt}k:"]
        elif a.inject: a.tail += [f"{rt}:"] + blk
        else: self.hot += [f"{rt}:"] + blk
        self.inl = False
    def setup(self):
        a = self.a; I = a.I
        I(f"s_cmp_ge_u32 s{sWG}, 256\ns_cbranch_scc1 L_end")
        I(f"s_load_dwordx16 s[32:47], s[0:1], 0\ns_load_dwordx8 s[48:55], s[0:1], 64\ns_load_dwordx2 s[56:57], s[0:1], 96")
        if self.c.get("diag") or self.c.get("hold"): I(f"s_memrealtime s[96:97]")
        I(f"v_lshrrev_b32 v8, 6, v0\nv_and_b32 v0, 63, v0\nv_readfirstlane_b32 s{sWave}, v8")
        I(f"s_and_b32 s{sT0}, s{sWG}, 7\ns_lshl_b32 s{sT0}, s{sT0}, 2\ns_lshr_b32 s{sT1}, s{sWG}, 3\ns_and_b32 s{sT1}, s{sT1}, 3\ns_add_u32 s{sH}, s{sT0}, s{sT1}\ns_lshr_b32 s{sS}, s{sWG}, 5")
        I(f"v_mul_u32_u24 v8, 43, v0\nv_lshrrev_b32 v8, 10, v8\nv_mul_u32_u24 v9, 24, v8\nv_sub_u32 v9, v0, v9\nv_mul_u32_u24 v8, 0x3000, v8\nv_lshl_add_u32 v{vWq0}, v9, 4, v8")
        I(f"v_add_u32 v10, 60, v0\nv_mul_u32_u24 v8, 43, v10\nv_lshrrev_b32 v8, 10, v8\nv_mul_u32_u24 v9, 24, v8\nv_sub_u32 v9, v10, v9\nv_mul_u32_u24 v8, 0x3000, v8\nv_lshl_add_u32 v{vWq1}, v9, 4, v8")
        I(f"s_mul_i32 s{sT0}, s{sS}, {80 * 12288}\ns_mul_i32 s{sT1}, s{sWave}, {20 * 12288}\ns_add_u32 s{sT0}, s{sT0}, s{sT1}\ns_mul_i32 s{sT1}, s{sH}, 384\ns_add_u32 s{sWqRow}, s{sT0}, s{sT1}")
        I(f"s_mul_i32 s{sT0}, s{sH}, {192 * 1280}\ns_mul_i32 s{sT1}, s{sWave}, {48 * 1280}\ns_add_u32 s{sT0}, s{sT0}, s{sT1}\ns_mul_i32 s{sT1}, s{sS}, 160\ns_add_u32 s{sWoRow}, s{sT0}, s{sT1}")
        I(f"s_mul_i32 s{sLdsW}, s{sWave}, 7680\ns_mov_b32 s{m60}, -1\ns_mov_b32 s{m60+1}, 0x0fffffff\ns_mov_b32 s{WT+3}, 0x20000\ns_mov_b32 s{sRetry}, 0")
        I(f"v_and_b32 v8, 15, v0\nv_lshrrev_b32 v9, 4, v0")
        I(f"v_lshrrev_b32 v10, 1, v8\nv_mul_u32_u24 v10, 384, v10\nv_and_b32 v11, 1, v8\nv_lshl_add_u32 v11, v9, 1, v11\nv_lshl_add_u32 v{vKoff}, v11, 4, v10")
        I(f"v_mul_u32_u24 v10, 768, v9\nv_lshl_add_u32 v{vVoff}, v8, 4, v10")
        I(f"s_mul_i32 s{sT0}, s{sH}, {HSTR}\ns_mul_i32 s{sT1}, s{sS}, {128 * 384}\ns_add_u32 s{sT1}, s{sT1}, s{sT0}\ns_mul_i32 s{sT2}, s{sWave}, {32 * 384}\ns_add_u32 s{sT1}, s{sT1}, s{sT2}\ns_add_u32 s{sOffG}, s{sT1}, {3072 * 384}")
        I(f"s_mul_i32 s{sT1}, s{sS}, {512 * 384}\ns_add_u32 s{sT1}, s{sT1}, s{sT0}\ns_mul_i32 s{sT2}, s{sWave}, {128 * 384}\ns_add_u32 s{sOffP}, s{sT1}, s{sT2}")
        I(f"s_mul_i32 s{sLdsVS}, s{sWave}, 6144\ns_add_u32 s{sLdsVS}, s{sLdsVS}, {VS}")
        I(f"s_mov_b32 s{XO+2}, 2560\ns_mov_b32 s{XO+3}, 0x20000\ns_mul_i32 s{sT0}, s{sS}, 160\nv_lshlrev_b32 v7, 2, v0\nv_min_u32 v7, 156, v7")
        for srd, o in ((KA, sOffG), (VA, sOffG), (KB, sOffP), (VB, sOffP)): I(f"s_sub_u32 s{srd+2}, {KV_BYTES}, s{o}\ns_mov_b32 s{srd+3}, 0x20000")
        I(f"s_mov_b32 s{WS+2}, {WS_BYTES}\ns_mov_b32 s{WS+3}, 0x20000")
        I(f"s_mul_i32 s{sH1grp}, s{sH}, {H1_H}\ns_mul_i32 s{sT1}, s{sS}, {H1_S}\ns_add_u32 s{sH1own}, s{sH1grp}, s{sT1}" + (f"\ns_mul_i32 s{sT1}, s{sS}, 768\ns_add_u32 s{sH1c}, s{sH1grp}, s{sT1}" if COMPACT1 else ""))
        I(f"s_mul_i32 s{sH2grp}, s{sH}, {H2_H}\ns_add_u32 s{sH2grp}, s{sH2grp}, {H2}\ns_mul_i32 s{sT1}, s{sS}, {H2_S}\ns_add_u32 s{sH2own}, s{sH2grp}, s{sT1}")
        I(f"s_mul_i32 s{sH3grp}, s{sS}, {H3_S}\ns_add_u32 s{sH3grp}, s{sH3grp}, {H3}\ns_mul_i32 s{sT1}, s{sH}, {H3_H}\ns_add_u32 s{sH3own}, s{sH3grp}, s{sT1}")
        self.clear_prep([[("P", 0)], [("C", 0)], [("P", 4)], [("2", 0), ("3", 0)]])
        a.wait(lg=0)
        if self.c.get("diag"): I(f"v_mov_b32 v{vStamp}, 0\nv_writelane_b32 v{vStamp}, s96, 0"); self.nstamp = 1
        def srds(l):
            for srd, p, o in l: I(f"s_add_u32 s{srd}, s{p}, s{o}\ns_addc_u32 s{srd+1}, s{p+1}, 0")
        def small():
            I(f"s_mov_b32 s{WS}, s{pWS}\ns_mov_b32 s{WS+1}, s{pWS+1}\ns_mov_b32 s{XO}, s{pX}\ns_mov_b32 s{XO+1}, s{pX+1}")
            self.clear_issue("clr")
            if USE_HOT == 3: self.probe_store()
            I(f"buffer_load_dword v12, v7, {s4(XO)}, s{sT0} offen\nbuffer_load_dword v13, v7, {s4(XO)}, s{sT0} offen offset:1280")
        n0, n1 = self.c.get("I", (12, 28))
        srds([(KA, pKA, sOffG)])
        self.stream(min(n0, 12), paced=False)
        srds([(VA, pVA, sOffG), (KB, pKB, sOffP), (VB, pVB, sOffP)])
        self.stream_to(n0, paced=False)
        small()
        self.stream_to(n1, paced=False)
        if self.c.get("st0"):
            self.stamp("end")
            n = len(a.vm.ent)
            for k in (1, 3, 6, 9, 12, 15, 18, n): a.wait(vm=n - k); self.stamp("end")
        if self.c.get("cpf") == 1: self.code_prefetch("L_pf0", "L_pf9")
        I(f"v_mul_u32_u24 v10, 26, v0\nv_lshrrev_b32 v10, 8, v10\nv_mul_u32_u24 v11, 10, v10\nv_sub_u32 v11, v0, v11\nv_mul_u32_u24 v10, 1280, v10\nv_lshl_add_u32 v{vWo}, v11, 4, v10")
        I("v_and_b32 v10, 1, v0\nv_cmp_eq_u32 vcc, 1, v10\nv_mov_b32 v11, 0xffff\nv_mov_b32 v20, 0xffff0000\nv_cndmask_b32 v11, v11, v20, vcc\nv_bfe_u32 v10, v0, 1, 2")
        for j in range(4): I(f"v_cmp_eq_u32 vcc, {j}, v10\nv_cndmask_b32 v{vMask+j}, 0, v11, vcc")
        for m, lo, hi in ((mODD, 0xaaaaaaaa, 0xaaaaaaaa), (mRG1, 0xffff0000, 0), (mRG2, 0, 0xffff), (mRG3, 0, 0xffff0000), (mWOST, 0x5555, 0x5555), (mN10, 0x03ff03ff, 0x03ff03ff), (mBIT1, 0xcccccccc, 0xcccccccc), (mL63, 0, 0x80000000)) + (((mQ13, 0x1fff1fff, 0x1fff1fff),) if COMPACT1 else ()):
            I(f"s_mov_b32 s{m}, {lo:#x}\ns_mov_b32 s{m+1}, {hi:#x}")
        I(f"s_cmp_eq_u32 s{sWave}, 3\ns_cselect_b64 {sp(mW3)}, -1, 0\ns_min_u32 s{sW2}, s{sWave}, 2")
        if H2_S == 384:
            I(f"s_mul_i32 s{sT0}, s{sS}, -368\ns_add_u32 s{sT0}, s{sT0}, 3072\ns_lshl_b32 s{sPub2}, s{sWave}, 7\ns_cmp_eq_u32 s{sWave}, 3\ns_cselect_b32 s{sPub2}, s{sT0}, s{sPub2}")
            I(f"s_mov_b32 s{mPub2}, 0x55555555\ns_cselect_b32 s{mPub2+1}, 0, s{mPub2}\ns_cselect_b32 s{mPub2}, 0x55, s{mPub2}")
        if self.c.get("nost3"): I(f"s_cmp_lt_u32 s{sWave}, 3\ns_cselect_b32 s{mWOST+1}, 0x5555, 0\ns_cselect_b32 s{mWOST}, 0x5555, 0")
        if H3_H == 160: I(f"s_cmp_lt_u32 s{sWave}, 2\ns_cselect_b32 s{mWOST+1}, 0x5555, 0")
        I(f"s_getreg_b32 s{sXcc}, hwreg(HW_REG_XCC_ID, 0, 4)\ns_add_u32 s{sXcc}, s{sXcc}, 1")
        for r, m, base in ((sXROWw, 160, XROW), (sYw, 320, Y), (sQw, 96, QB)): I(f"s_mul_i32 s{r}, s{sWave}, {m}\ns_add_u32 s{r}, s{r}, {base}")
        I(f"v_add_u32 v10, s{sXROWw}, v7\nv_add_u32 v11, {ONES}, v7\nv_mov_b32 v20, 0x3f803f80")
        I("ds_write_b32 v11, v20\nds_write_b32 v10, v12\nds_write_b32 v10, v13 offset:640")
        I(f"s_mov_b32 s{XO}, s{pOUT}\ns_mov_b32 s{XO+1}, s{pOUT+1}")
        if COMPACT1: I(f"s_mov_b32 s{mPub1}, -1\ns_cmp_eq_u32 s{sWave}, 0\ns_cselect_b32 s{mPub1+1}, 0xfffff, 0\ns_or_b32 s{mPub1+1}, s{mPub1+1}, 0xffff")
    def clear_prep(self, jobs):
        I = self.a.I
        I("v_mov_b32 v16, -1\nv_mov_b32 v17, -1\nv_mov_b32 v18, -1\nv_mov_b32 v19, -1\nv_lshlrev_b32 v14, 4, v0")
        def seg(k, inst, hi):
            if k == "P" and c1(inst): return sH1c, inst * H1_I, (0x1ffff if hi else -1)
            if k in "PC": return h1(inst)[0], h1(inst)[2] + (1024 if k == "C" else 0), -1
            if k == "2": return h2(inst)[0], h2(inst)[2] - 512 * hi, (0x1ffffff if H2_S == 384 else -1)
            return h3(inst)[0], h3(inst)[2] - 512 * hi, (0x3ff if H3_H == 160 else 0xffff if self.c.get('clr256') else 0xfff)
        for w, job in enumerate(jobs):
            lo = seg(*job[0], 0); hi = seg(*job[-1], 1)
            for (r, o, m), dst, md in ((lo, sT1, sClr), (hi, sT2, sClr + 1)):
                if w == 0: I(f"s_add_u32 s{dst}, s{r}, {o & 0xffffffff}\ns_mov_b32 s{md}, {m}")
                else: I(f"s_add_u32 s{sOff}, s{r}, {o & 0xffffffff}\ns_cmp_eq_u32 s{sWave}, {w}\ns_cselect_b32 s{dst}, s{sOff}, s{dst}\ns_cselect_b32 s{md}, {m}, s{md}")
        self.off_val = None
        I(f"v_mov_b32 v15, s{sT1}\nv_mov_b32 v20, s{sT2}\nv_cmp_lt_u32 vcc, 31, v0\nv_cndmask_b32 v15, v15, v20, vcc\nv_add_u32 v15, v15, v14")
        if any(k == "P" and c1(i) for job in jobs for k, i in job):
            I(f"s_mov_b32 s{sT1}, 0\ns_mov_b32 s{sT2}, 0")
            for w, job in enumerate(jobs):
                if job[0][0] == "P" and c1(job[0][1]): I(f"s_cmp_eq_u32 s{sWave}, {w}\ns_cselect_b32 s{sT2}, 0x10000, s{sT2}")
            self.off_val = None; self.a.no_inject += 1
            I(f"s_mul_i32 s{sOff}, s{sS}, -752\ns_add_u32 s{sOff}, s{sOff}, {6144 - 768}\nv_add_u32 v20, s{sOff}, v15\nv_cndmask_b32 v15, v15, v20, {sp(sT1)}")
            self.a.no_inject -= 1
        if H2_S == 384 and any(k == "2" for job in jobs for k, _ in job):
            I(f"s_mov_b32 s{sT1}, 0\ns_mov_b32 s{sT2}, 0")
            for w, job in enumerate(jobs):
                for (k, _), dst in ((job[0], sT1), (job[-1], sT2)):
                    if k == "2": I(f"s_cmp_eq_u32 s{sWave}, {w}\ns_cselect_b32 s{dst}, 0x1000000, s{dst}")
            self.off_val = None; self.a.no_inject += 1
            I(f"s_mul_i32 s{sOff}, s{sS}, -368\ns_add_u32 s{sOff}, s{sOff}, {3072 - 384}\nv_add_u32 v20, s{sOff}, v15\nv_cndmask_b32 v15, v15, v20, {sp(sT1)}")
            self.a.no_inject -= 1
    def clear_issue(self, tag, local_ok=False):
        I = self.a.I
        I(f"s_mov_b64 exec, {sp(sClr)}")
        self.publish(f"buffer_store_dwordx4 v[16:19], v15, {s4(WS)}, 0 offen {{pol}}", local_ok, tag=tag)
        I("s_mov_b64 exec, -1")
    def tlb_touch(self):
        a = self.a; I = a.I
        ent = []
        for p, o, span in ((pWQA, sWqRow, 20 * 12288), (pKA, sOffG, 12288), (pVA, sOffG, 12288), (pWOA, sWoRow, 48 * 1280), (pWQB, sWqRow, 20 * 12288),
                           (pKB, sOffP, 49152), (pWOB, sWoRow, 48 * 1280), (pVB, sOffP, 49152)):
            for b in range(2 if o in (sOffG, sOffP) else 1): ent.append((p, o, b * BSTR))
        if self.c["tlb"] > 1:
            ent += [(pWS, None, 0), (pWS, None, 2 << 20), (pWS, None, 4 << 20), (pDBG, None, 0), (pOUT, None, 0)]
        for i, (p, o, c) in enumerate(ent):
            if o is None: I(f"s_add_u32 s{sT1}, s{p}, {c}\ns_addc_u32 s{sT2}, s{p+1}, 0")
            else:
                I(f"s_add_u32 s{sT1}, s{p}, s{o}\ns_addc_u32 s{sT2}, s{p+1}, 0")
                if c: I(f"s_add_u32 s{sT1}, s{sT1}, {c}\ns_addc_u32 s{sT2}, s{sT2}, 0")
            if i == 0: I(f"v_mov_b32 v14, s{sT1}\nv_mov_b32 v15, s{sT2}")
            else: I(f"v_writelane_b32 v14, s{sT1}, {i}\nv_writelane_b32 v15, s{sT2}, {i}")
        I(f"s_mov_b64 exec, {(1 << len(ent)) - 1}\nglobal_load_dword v250, v[14:15], off nt\ns_mov_b64 exec, -1")
    def code_prefetch(self, lo, hi):
        a = self.a; I = a.I
        l = a.label("Lp")
        I(f"s_getpc_b64 {sp(sT1)}"); a.raw(f"{l}:")
        I(f"s_add_u32 s{sT1}, s{sT1}, {lo}-{l}\ns_addc_u32 s{sT2}, s{sT2}, 0")
        I(f"s_lshr_b32 s{sT0}, s{sWG}, 3\ns_lshl_b32 s{sT0}, s{sT0}, 2\ns_add_u32 s{sT0}, s{sT0}, s{sWave}\ns_lshl_b32 s{sT0}, s{sT0}, 13")
        I(f"v_lshl_add_u32 v30, v0, 7, s{sT0}\nv_cmp_gt_u32 vcc, {hi}-{lo}, v30\ns_mov_b32 m0, {JUNK}")
        I("s_and_b64 exec, vcc, -1"); a.skip_begin("s_cbranch_execz")
        I(f"global_load_lds_dword v30, {sp(sT1)}")
        a.skip_end()
        I("s_mov_b64 exec, -1")
    def probe_store(self):
        a = self.a; I = a.I
        I(f"s_add_u32 s{sX1own}, s{WS}, {(8 << 20) - 1}\ns_and_b32 s{sX1own}, s{sX1own}, 0xffe00000\ns_sub_u32 s{sX1own}, s{sX1own}, s{WS}")
        I(f"s_lshr_b32 s{sT1}, s{sWG}, 6\ns_lshl_b32 s{sT1}, s{sT1}, 14\ns_and_b32 s{sT2}, s{sWG}, 63\ns_lshl_b32 s{sT2}, s{sT2}, 7\ns_add_u32 s{sT1}, s{sT1}, s{sT2}\ns_add_u32 s{sT1}, s{sT1}, {XP}\ns_add_u32 s{sX1own}, s{sX1own}, s{sT1}")
        I(f"s_cmp_lg_u32 s{sWave}, 0"); a.skip_begin("s_cbranch_scc1")
        I(f"v_and_b32 v15, 8, v0\nv_lshlrev_b32 v15, 10, v15\nv_and_b32 v20, 7, v0\nv_lshl_add_u32 v15, v20, 4, v15\ns_mov_b64 exec, 0xffff")
        I(f"buffer_store_dwordx4 v[16:19], v15, {s4(WS)}, s{sX1own} offen sc1", tag="prb")
        I("s_mov_b64 exec, -1")
        a.skip_end()
    def arrive(self):
        a = self.a; I = a.I
        I(f"s_cmp_lg_u32 s{sWave}, 0"); a.skip_begin("s_cbranch_scc1")
        src = sXcc
        if USE_HOT == 3:
            a.wait_tag("prb")
            I(f"s_and_b32 s{sT0}, s{sWG}, 63\ns_lshl_b32 s{sT0}, s{sT0}, 7\ns_sub_u32 s{sT0}, s{sX1own}, s{sT0}\ns_sub_u32 s{sT0}, s{sT0}, 128")
            I(f"s_load_dword s{sT1}, {sp(WS)}, s{sT0}"); a.wait(lg=0)
            I(f"s_add_u32 s{sT0}, s{sX1own}, 8192\ns_memtime s[0:1]"); a.wait(lg=0)
            I(f"s_load_dword s{sT1}, {sp(WS)}, s{sX1own}"); a.wait(lg=0)
            I(f"s_memtime {sp(sX3g0)}"); a.wait(lg=0)
            I(f"s_load_dword s{sT1}, {sp(WS)}, s{sT0}"); a.wait(lg=0)
            I(f"s_memtime {sp(sX1grp)}"); a.wait(lg=0)
            I(f"s_sub_u32 s0, s{sX3g0}, s0\ns_sub_u32 s1, s{sX1grp}, s{sX3g0}\ns_cmp_gt_u32 s0, s1\ns_cselect_b32 s{sT0}, 0x80, 0")
            I(f"s_sub_u32 s{sT1}, s{sXcc}, 1\ns_and_b32 s{sT1}, s{sT1}, 4\ns_lshl_b32 s{sT1}, s{sT1}, 5\ns_xor_b32 s{sT0}, s{sT0}, s{sT1}\ns_or_b32 s{sT2}, s{sT0}, s{sXcc}")
            src = sT2
        I(f"s_and_b32 s{sT0}, s{sWG}, 3\ns_lshl_b32 s{sT0}, s{sT0}, 3\ns_lshl_b32 s{sT0}, s{src}, s{sT0}\ns_and_b32 s{sT1}, s{sWG}, 0xfc")
        I(f"v_mov_b32 v8, s{sT1}\nv_mov_b32 v9, s{sT0}\ns_mov_b64 exec, 1")
        I(f"global_atomic_add v8, v9, {sp(pDBG)} sc1\ns_mov_b64 exec, -1")
        a.skip_end()
    def handshake(self, between):
        a = self.a; I = a.I
        I("v_lshlrev_b32 v7, 2, v0")
        ld = f"global_load_dword v8, v7, {sp(pDBG)} sc1"
        I(ld); last = len(a.vm.ent) - 1
        between()
        n = a.vm.need(last)
        if n is not None: a.wait(vm=n)
        chk = a.label("Lc"); rt = a.label("Lr")
        a.raw(f"{chk}:"); a.no_inject += 1
        I("v_subrev_u32 v9, 0x01010101, v8\nv_not_b32 v10, v8\nv_and_b32 v9, v9, v10\nv_and_b32 v9, 0x80808080, v9\nv_cmp_ne_u32 vcc, 0, v9")
        I(f"s_cbranch_vccnz {rt}")
        self.retry_block(rt, chk, [ld]); a.no_inject -= 1
        if USE_HOT: self.sides()
        I(f"s_and_b32 s{sT0}, s{sWG}, 3\ns_lshl_b32 s{sT0}, s{sT0}, 3\nv_lshrrev_b32 v8, s{sT0}, v8\nv_and_b32 v8, 0xff, v8")
        I(f"s_bfe_u32 s{sT0}, s{sWG}, 0x30002\nv_and_b32 v9, 7, v0\nv_cmp_eq_u32 {sp(sT1)}, s{sT0}, v9\nv_cmp_ne_u32 vcc, s{sXcc}, v8")
        I(f"s_and_b64 vcc, vcc, {sp(sT1)}\ns_cmp_eq_u64 vcc, 0\ns_cselect_b32 s{sLocal}, 1, 0")
    def sides(self):
        a = self.a; I = a.I; a.no_inject += 1
        if USE_HOT == 3:
            I(f"s_mov_b32 s{sOffW}, 0")
            for k in range(4):
                I(f"v_bfe_u32 v9, v8, {8 * k + 7}, 1\nv_cmp_ne_u32 vcc, 0, v9\ns_bcnt1_i32_b64 s{sT0}, vcc\ns_add_u32 s{sOffW}, s{sOffW}, s{sT0}")
            I("v_and_b32 v8, 0x7f7f7f7f, v8")
        if USE_HOT == 2: I(f"s_mov_b32 s{sT1}, 0\ns_mov_b32 s{sT2}, 0x01010101")
        else:
            I(f"v_readlane_b32 s{sT1}, v8, 0\nv_readlane_b32 s{sT2}, v8, 1\nv_mov_b32 v9, s{sT1}\nv_mov_b32 v10, s{sT2}\nv_cndmask_b32 v9, v9, v10, {sp(mODD)}\nv_cmp_ne_u32 vcc, v8, v9")
            I(f"s_and_b32 s{sT0}, s{sWG}, 7\ns_lshl_b32 s{sT0}, s{sT0}, 3\ns_lshr_b64 s[0:1], {sp(sT1)}, s{sT0}\ns_and_b32 s0, s0, 0xff\ns_cmp_eq_u32 s0, s{sXcc}\ns_cselect_b64 vcc, vcc, -1")
            I(f"s_sub_u32 s{sT1}, s{sT1}, 0x01010101\ns_sub_u32 s{sT2}, s{sT2}, 0x01010101\ns_lshr_b32 s{sT1}, s{sT1}, 2\ns_lshr_b32 s{sT2}, s{sT2}, 2\ns_and_b32 s{sT1}, s{sT1}, 0x01010101\ns_and_b32 s{sT2}, s{sT2}, 0x01010101")
            I(f"s_xor_b32 s{sT0}, s{sT1}, s{sT2}\ns_cmp_eq_u32 s{sT0}, 0x01010101\ns_cselect_b32 s{sLocal}, 1, 0\ns_cmp_eq_u64 vcc, 0\ns_cselect_b32 s{sLocal}, s{sLocal}, 0")
            if USE_HOT == 3: I(f"s_cmp_gt_u32 s{sOffW}, 128\ns_cselect_b32 s{sT0}, 0x01010101, 0\ns_xor_b32 s{sT1}, s{sT1}, s{sT0}\ns_xor_b32 s{sT2}, s{sT2}, s{sT0}")
            if self.c.get("pol"): I(f"s_xor_b32 s{sT1}, s{sT1}, 0x01010101\ns_xor_b32 s{sT2}, s{sT2}, 0x01010101")
            I(f"s_cmp_lg_u32 s{sLocal}, 0\ns_cselect_b32 s{sT1}, s{sT1}, 0\ns_cselect_b32 s{sT2}, s{sT2}, 0x01010101")
        I(f"s_mov_b64 s[40:41], {sp(sT1)}")
        def side(dst, k): I(f"s_lshr_b64 s[0:1], {sp(sT1)}, s{k}\ns_and_b32 s{dst}, s0, 1\ns_lshl_b32 s{dst}, s{dst}, 13")
        I(f"s_add_u32 s{sOffP}, s{WS}, {(8 << 20) - 1}\ns_and_b32 s{sOffP}, s{sOffP}, 0xffe00000\ns_sub_u32 s{sOffP}, s{sOffP}, s{WS}")
        I(f"s_and_b32 s{sT0}, s{sWG}, 7\ns_lshl_b32 s{sT0}, s{sT0}, 3"); side(sOffG, sT0)
        I(f"s_add_u32 s{sOffG}, s{sOffG}, s{sOffP}")
        I(f"s_and_b32 s{sT0}, s{sH}, 15\ns_lshl_b32 s{sX1grp}, s{sT0}, 14\ns_add_u32 s{sX1grp}, s{sX1grp}, s{sOffG}\ns_lshl_b32 s0, s{sS}, 10\ns_add_u32 s{sX1own}, s{sX1grp}, s0")
        I(f"s_lshr_b32 s0, s{sT0}, 1\ns_lshl_b32 s0, s0, 14\ns_and_b32 s1, s{sT0}, 1\ns_lshl_b32 s1, s1, 12\ns_add_u32 s0, s0, s1\ns_add_u32 s0, s0, {X2}\ns_add_u32 s{sX2grp}, s0, s{sOffG}\ns_mul_i32 s0, s{sS}, {H2_S}\ns_add_u32 s{sX2own}, s{sX2grp}, s0")
        I(f"s_lshr_b32 s0, s{sS}, 1\ns_lshl_b32 s0, s0, 14\ns_and_b32 s1, s{sS}, 1\ns_lshl_b32 s1, s1, 12\ns_add_u32 s0, s0, s1\ns_add_u32 s{sOffW}, s0, {X3}")
        I(f"s_mul_i32 s0, s{sT0}, {H3_H}\ns_add_u32 s0, s0, s{sOffW}\ns_add_u32 s{sX3own}, s0, s{sOffG}\ns_add_u32 s{sOffW}, s{sOffW}, s{sOffP}")
        for j, dst in enumerate((sX3g0, sX3g1)):
            I(f"s_lshl_b32 s{sT0}, s{sWave}, 4\ns_add_u32 s{sT0}, s{sT0}, {8 * j}"); side(dst, sT0)
            I(f"s_lshl_b32 s0, s{sWave}, 1\ns_add_u32 s0, s0, {j}\ns_and_b32 s0, s0, 3\ns_mul_i32 s0, s0, {4 * H3_H}\ns_add_u32 s{dst}, s{dst}, s0\ns_add_u32 s{dst}, s{dst}, s{sOffW}")
        a.no_inject -= 1
    WQB = [(24, 28, 32), (34, 38, 42), (44, 48, 52)]
    def wq_pre(self, ty):
        a = self.a; I = a.I
        I(f"v_bfe_u32 v7, v0, 2, 2\nv_lshrrev_b32 v9, 4, v0\nv_lshl_add_u32 v8, v9, 3, v7\nv_lshl_add_u32 v7, v9, 2, v7")
        I(f"v_and_b32 v9, 3, v0\nv_lshlrev_b32 v9, 3, v9\ns_mul_i32 s{sT0}, s{sWave}, 96\ns_add_u32 s{sT0}, s{sT0}, {WQ[ty]}\nv_add_u32 v9, s{sT0}, v9")
        I(f"s_movk_i32 s{sT0}, 384\nv_mad_u32_u24 v8, v8, s{sT0}, v9\nv_mad_u32_u24 v7, v7, s{sT0}, v9")
        for T, (b0, b1, b2) in enumerate(self.WQB):
            for t, r in ((0, b0), (1, b1)):
                I(f"ds_read_b64_tr_b16 {v2(r)}, v8 offset:{12288 * t + 32 * T}\nds_read_b64_tr_b16 {v2(r+2)}, v8 offset:{12288 * t + 1536 + 32 * T}")
            I(f"ds_read_b64_tr_b16 {v2(b2)}, v7 offset:{24576 + 32 * T}")
    def wq_addr(self, b, L):
        I = self.a.I
        I(f"v_mov_b32 v22, s{sXROWw}\nv_mov_b32 v23, {ONES - 640 * b}")
        I(f"v_cndmask_b32 v23, v22, v23, {sp(mODD)}\nv_lshrrev_b32 v21, 4, v0\nv_lshl_add_u32 v22, v21, 4, v23\nv_lshl_add_u32 v23, v21, 3, v23")
    def wq_main(self, b, L, local_ok=True, hoisted=False, hoist=False):
        a = self.a; a.comment(f"---- row {b} layer {L}: q projection partial"); I = a.I; inst = 4 * b + L; needC = inst < 2
        if not hoisted: self.wq_addr(b, L)
        I(f"ds_read_b128 v[12:15], v22 offset:{640 * b}\nds_read_b128 v[16:19], v22 offset:{640 * b + 64}\nds_read_b64 v[20:21], v23 offset:{640 * b + 128}")
        if c1(inst):
            I(f"s_mul_i32 s{sT0}, s{sWave}, 192\nv_lshl_add_u32 v7, v0, 2, s{sT0}\ns_mul_i32 s{sT0}, s{sS}, -752\ns_add_u32 s{sT0}, s{sT0}, {6144 - 192}\nv_lshl_add_u32 v23, v0, 2, s{sT0}")
            I(f"v_cndmask_b32 v7, v7, v23, {sp(mRG3)}\ns_add_u32 s{sOffP}, s{sH1c}, {inst * H1_I}")
        else: I(f"s_lshl_b32 s{sT0}, s{sWave}, 8\nv_lshl_add_u32 v7, v0, 2, s{sT0}\ns_add_u32 s{sOffP}, s{h1(inst)[0]}, {h1(inst)[2]}")
        if hoist: self.qg_addr(b, L)
        D = [8, 24, 28]
        for T, (b0, b1, b2) in enumerate(self.WQB):
            I(f"v_mfma_f32_16x16x32_bf16 {v4(D[T])}, v[12:15], {v4(b0)}, 0")
            I(f"v_mfma_f32_16x16x32_bf16 {v4(D[T])}, v[16:19], {v4(b1)}, {v4(D[T])}")
        I("v_mfma_f32_16x16x32_bf16 v[34:37], v[12:15], v[12:15], 0\nv_mfma_f32_16x16x32_bf16 v[34:37], v[16:19], v[16:19], v[34:37]")
        for T, (b0, b1, b2) in enumerate(self.WQB):
            I(f"v_mfma_f32_16x16x16_bf16 {v4(D[T])}, v[20:21], {v2(b2)}, {v4(D[T])}")
        I("v_mfma_f32_16x16x16_bf16 v[34:37], v[20:21], v[20:21], v[34:37]")
        for r in range(2 if needC else 1):
            I(f"v_cndmask_b32 v{22+r}, v{8+r}, v{24+r}, {sp(mRG1)}\nv_cndmask_b32 v{22+r}, v{22+r}, v{28+r}, {sp(mRG2)}\nv_cndmask_b32 v{22+r}, v{22+r}, v34, {sp(mRG3)}\nv_min_u32 v{22+r}, -2, v{22+r}")
            if c1(inst): I(f"s_mov_b64 exec, {sp(mPub1)}")
            self.publish(f"buffer_store_dword v{22+r}, v7, {s4(WS)}, s{sOffP} offen offset:{1024 * r} {{pol}}", local_ok)
            if c1(inst): I("s_mov_b64 exec, -1")
    def qg_addr(self, b, L):
        I = self.a.I
        if c1(4 * b + L):
            I(f"v_and_b32 v23, 15, v0\nv_lshrrev_b32 v54, 4, v0\nv_mul_u32_u24 v54, 768, v54\nv_lshl_add_u32 v54, v23, 4, v54\ns_mul_i32 s{sT0}, s{sWave}, 192\nv_add_u32 v54, s{sT0}, v54")
            I(f"s_add_u32 s{sOffG}, s{sH1grp}, {(4 * b + L) * H1_I}")
            return
        I(f"v_and_b32 v23, 15, v0\nv_lshrrev_b32 v54, 4, v0\nv_mul_u32_u24 v54, {h1(4 * b + L)[3]}, v54\nv_lshl_add_u32 v54, v23, 4, v54\ns_lshl_b32 s{sT0}, s{sWave}, 8")
        I(f"s_add_u32 s{sOffG}, s{h1(4 * b + L)[1]}, s{sT0}\ns_add_u32 s{sOffG}, s{sOffG}, {h1(4 * b + L)[2]}\ns_add_u32 s{sOffG2}, s{sOffG}, {4 * h1(4 * b + L)[3]}")
    def qg(self, b, L, between=None, hoisted=False, after=None, tail=False):
        a = self.a; a.comment(f"---- row {b} layer {L}: gather q partials, LayerNorm scale"); I = a.I; inst = 4 * b + L; needC = inst < 2; ty = L & 1
        if not hoisted: self.qg_addr(b, L)
        loads = [f"buffer_load_dwordx4 v[12:15], v54, {s4(WS)}, s{sOffG} offen sc1", f"buffer_load_dwordx4 v[16:19], v54, {s4(WS)}, s{sOffG2} offen sc1"]
        cc = c1(inst)
        if cc: loads = [f"buffer_load_dwordx4 v[12:15], v54, {s4(WS)}, s{sOffG} offen sc1", f"buffer_load_dwordx4 v[16:19], v36, {s4(WS)}, s{sOffG} offen sc1"]
        def addr2():
            I(f"v_add_u32 v36, 3072, v54\nv_and_b32 v37, 48, v0\nv_add_u32 v37, 6144, v37\ns_mov_b32 vcc_lo, 0x10001000\ns_mov_b32 vcc_hi, 0x10001000")
            I("v_cndmask_b32 v54, v54, v37, vcc\nv_add_u32 v37, 64, v37\nv_cndmask_b32 v36, v36, v37, vcc")
        if needC: loads += [f"buffer_load_dwordx4 v[20:23], v54, {s4(WS)}, s{sOffG} offen offset:1024 sc1", f"buffer_load_dwordx4 v[24:27], v54, {s4(WS)}, s{sOffG2} offen offset:1024 sc1"]
        def pre():
            I(f"v_and_b32 v32, 15, v0\nv_lshrrev_b32 v33, 4, v0\nv_and_b32 v34, 1, v33\nv_lshlrev_b32 v34, 1, v34\nv_lshrrev_b32 v28, 1, v33\nv_or_b32 v34, v34, v28\nv_lshl_add_u32 v34, v32, 2, v34")
            I(f"v_lshl_add_u32 v34, v34, 1, s{sQw}\nv_lshl_add_u32 v29, v0, 2, s{sCTw}")
            if not needC: I(f"ds_read_b32 v20, v29 offset:{1024 * ty}")
            self.q_addr(b)
            I(f"v_mov_b32 v35, {f32(1 / (640 * SCALE))}\nv_mov_b32 v32, {f32(1 / (640 * SCALE * SCALE))}\nv_mov_b32 v33, {f32(1e-5 / (SCALE * SCALE))}")
        first = hoisted and self.c.get('first', 3) & 2
        if cc: addr2()
        if first: pre()
        def shadow():
            if not first: pre()
            if tail and self.c.get("tq", 0): self.tail_addr(b, L)
            if tail and L == 2 and self.c.get("v2", 1):
                I(f"v_lshl_add_u32 v37, v0, 4, s{sLdsVS}")
                for c in range(3): I(f"ds_read_b128 {v4(vU + 2 + 4 * c)}, v37 offset:{1024 * c}")
            if between: between()
        self.gather(loads, range(12, 28 if needC else 20), 28, between=shadow, sleep=self.lsleep(), emask=sp(mQ13) if cc else None, vmask=cc)
        if after: after()
        def red(r):
            I(f"v_pk_add_f32 {v2(r)}, {v2(r)}, {v2(r+4)}\nv_pk_add_f32 {v2(r+2)}, {v2(r+2)}, {v2(r+6)}")
            I(f"v_permlane32_swap_b32 v{r}, v{r+1}\nv_permlane32_swap_b32 v{r+2}, v{r+3}\nv_add_f32 v{r}, v{r}, v{r+1}\nv_add_f32 v{r+2}, v{r+2}, v{r+3}")
            I(f"v_permlane16_swap_b32 v{r}, v{r+2}\nv_add_f32 v{r}, v{r}, v{r+2}")
        red(12)
        I(f"v_readlane_b32 s{sT0}, v12, 12\nv_readlane_b32 s{sT1}, v12, 44")
        if needC: red(20); I(f"v_mul_f32 v20, {f32(SCALE)}, v20\nds_write_b32 v29, v20 offset:{1024 * ty}")
        I(f"s_mov_b32 exec_lo, 0x0fff0fff\ns_mov_b32 exec_hi, 0x0fff0fff")
        I(f"v_mul_f32 v15, s{sT1}, v35\nv_fma_f32 v14, s{sT0}, v32, v33\nv_fma_f32 v14, -v15, v15, v14\nv_max_f32 v14, v33, v14\nv_rsq_f32 v14, v14")
        I(f"v_fma_f32 v12, -v15, v20, v12\nv_mul_f32 v12, v12, v14\nv_cvt_pk_bf16_f32 v12, v12, v12")
        I(f"ds_write_b16 v34, v12 offset:{384 * b}\ns_mov_b64 exec, -1")
        a.barrier()
    def tail_addr(self, b, L):
        I = self.a.I; inst = 4 * b + L
        I(f"v_and_b32 v50, 15, v0\nv_lshlrev_b32 v50, 5, v50\nv_and_b32 v51, 16, v0\nv_add3_u32 v50, v50, v51, s{sATTw}\nv_mov_b32 v51, s{sSTATw}")
        self.wo_addr(b, L)
        I(f"v_mov_b32 v9, {STAT}\nv_lshl_add_u32 v10, v0, 2, s{sCOMBw}")
        if H2_S == 384: I(f"v_lshl_add_u32 v11, v0, 1, s{sPub2}\ns_add_u32 s{sOffP}, s{h2(inst)[0]}, {h2(inst)[2]}")
        else: I(f"s_lshl_b32 s{sT0}, s{sWave}, 7\nv_lshl_add_u32 v11, v0, 1, s{sT0}\ns_add_u32 s{sOffP}, s{h2(inst)[0]}, {h2(inst)[2]}")
    def q_addr(self, b):
        self.a.I(f"v_and_b32 v30, 1, v0\nv_lshrrev_b32 v31, 4, v0\nv_lshlrev_b32 v31, 5, v31\nv_lshl_add_u32 v30, v30, 4, v31\nv_add_u32 v30, {QB + 384 * b}, v30")
    def att(self, b, L, hook1=None, hook2=None, hookm=None, pre_bar=None, guard=False, hoist=False, qaddr=False):
        a = self.a; a.comment(f"---- row {b} layer {L}: attention"); I = a.I; ty = L & 1; G = 16 if ty else 4; Kn = "KB" if ty else "KA"; Vn = "VB" if ty else "VA"
        vM, vL = 52, 53
        if not qaddr: self.q_addr(b)
        for t in range(3): I(f"ds_read_b128 {v4(vQ + 4 * t)}, v30 offset:{128 * t}")
        def lds_v(g):
            a.wait_tag(("VS", b, g))
            I(f"v_lshl_add_u32 v54, v0, 4, s{sLdsVS}")
            for c in range(3): I(f"ds_read_b128 {v4(vU + 2 + 4 * c)}, v54 offset:{(g - 2) * 3072 + 1024 * c}")
        early = (not ty) and L == 2
        if early and not self.c.get('v2', 1): lds_v(2)
        if not (qaddr and self.c.get("tq", 0)):
            if self.c.get("fill", 1):
                if self.c.get("touch", 4) == 4 and L >= 2 and (b, L) != (0, 3): a.queue(lambda: self.touch_fill(b, L))
                a.queue(lambda: self.tail_addr(b, L)); a.drain(self.c.get("fill0", 8))
            else: self.tail_addr(b, L)
        def D(g): return vACC + 4 * (g % 3)
        dm = "row_mask:0xf"; NP = G // 2
        order = list(range(G)) if ty else ([2, 0, 1, 3] if early else [0, 1, 2, 3])
        at = {g: i for i, g in enumerate(order)}
        U = lambda g: vU + at[g] // 2
        bank = lambda g, hi: (1 << (at[g] & 1)) << (2 * hi)
        for g in range(G + 2):
            K = SLOT[(Kn, g)] if g < G else None
            if K: self.check_slot(Kn, b, g)
            e = g - 2
            if K: I(f"v_mfma_f32_16x16x32_bf16 {v4(D(g))}, {K[0]}, {v4(vQ)}, 0")
            if g == 1 and self.c.get("fa"): self.fs("g1")
            if K: a.drain(2)
            if K: I(f"v_mfma_f32_16x16x32_bf16 {v4(D(g))}, {K[1]}, {v4(vQ+4)}, {v4(D(g))}")
            if K and e < 0: a.drain(2)
            if 0 <= e < G: I(f"v_add_f32_dpp v{U(e)}, v{D(e)}, v{D(e)+1} quad_perm:[0,0,2,2] {dm} bank_mask:{bank(e, 0):#x}")
            if K: I(f"v_mfma_f32_16x16x32_bf16 {v4(D(g))}, {K[2]}, {v4(vQ+8)}, {v4(D(g))}")
            if g == G + 1 and NP > 3: I(f"v_max3_f32 v{vM}, v{vU}, v{vU+1}, v{vU+2}\nv_max3_f32 v{vM}, v{vM}, v{vU+3}, v{vU+4}")
            if K and e < 0: a.drain(2)
            if hook1 and g < G: hook1(g)
            if 0 <= e < G: I(f"v_add_f32_dpp v{U(e)}, v{D(e)+2}, v{D(e)+3} quad_perm:[0,0,2,2] {dm} bank_mask:{bank(e, 1):#x}")
        if self.c.get("fa"): self.fs("p1")
        if hookm: hookm()
        if NP > 3: I(f"v_max3_f32 v{vM}, v{vM}, v{vU+5}, v{vU+6}\nv_max_f32 v{vM}, v{vM}, v{vU+7}")
        else: I(f"v_max_f32 v{vM}, v{vU}, v{vU+1}")
        red = ("row_ror:8 row_mask:0xf", "row_ror:4 row_mask:0xf", "row_bcast:15 row_mask:0xa", "row_bcast:31 row_mask:0xc")
        for x in red: I(f"v_max_f32_dpp v{vM}, v{vM}, v{vM} {x} bank_mask:0xf")
        I(f"v_readlane_b32 s{sM}, v{vM}, 63")
        def prob(p): return [f"v_subrev_f32 v{vU+p}, s{sM}, v{vU+p}", f"v_exp_f32 v{vU+p}, v{vU+p}",
                             f"v_mov_b32 v{vL}, v{vU+p}" if p == 0 else f"v_add_f32 v{vL}, v{vL}, v{vU+p}",
                             f"v_cvt_pk_bf16_f32 v{vU+p}, v{vU+p}, v{vU+p}",
                             f"v_mov_b32_dpp v{vU+p}, v{vU+p} quad_perm:[1,1,3,3] {dm} bank_mask:0xf"]
        def diag(i, j):
            d = vQ + 4 * (i & 1) + j; u = vU + i // 2
            if (j >> 1) == (i & 1): I(f"v_and_b32 v{d}, v{u}, v{vMask + j}")
            else: I(f"v_and_b32_dpp v{d}, v{u}, v{vMask + j} {'row_shl:4' if i & 1 else 'row_shr:4'} {dm} bank_mask:0xf bound_ctrl:0")
        a.drain()
        p0 = prob(0); p1 = prob(1)
        for t in (p0[0], p0[1], p1[0], p0[3 - 1], p0[3], p1[1], f"v_mov_b32 v{vM}, s{sM}", p0[4]): I(t)
        pend = p1[2:]
        for j in (0, 1): diag(0, j)
        I(pend.pop(0))
        for j in (2, 3): diag(0, j)
        if guard: a.barrier()
        if self.c.get("fa"): self.fs("p2start")
        lred = []
        for i, g in enumerate(order):
            self.check_slot(Vn, b, g)
            if (Vn, g) in SLOT: V = SLOT[(Vn, g)]
            else:
                if not early: lds_v(g)
                V = [v4(vU + 2 + 4 * c) for c in range(3)]
            A = v4(vQ + 4 * (i & 1))
            nx = i + 1 < G
            if (i & 1) == 1 and i // 2 + 2 < NP: assert not pend; pend = prob(i // 2 + 2)
            if i == G - 2: assert not pend; lred = [f"v_add_f32_dpp v{vL}, v{vL}, v{vL} {x} bank_mask:0xf" for x in red]
            for c in range(3):
                acc = v4(vACC + 4 * c)
                I(f"v_mfma_f32_16x16x32_bf16 {acc}, {A}, {V[c]}, {acc if i else 0}")
                if nx and c < 2: diag(i + 1, 2 * c + 0 if (i + 1) & 1 == 0 else (2 * c + 2) % 4); diag(i + 1, 2 * c + 1 if (i + 1) & 1 == 0 else (2 * c + 3) % 4)
                if pend: I(pend.pop(0))
                if lred: I(lred.pop(0))
                if i == 0 and c == 1: I(f"ds_write_b32 v51, v{vM}")
                if i == G - 1 and c == 1: I(f"s_mov_b64 exec, {sp(mL63)}\nds_write_b32 v51, v{vL} offset:16\ns_mov_b64 exec, -1")
            if early and g == 2: lds_v(3)
            if hook2: hook2(i)
        if self.c.get("fa"): self.fs("p2end")
        for c, (lo, hi) in enumerate(((0xffffffff, 0), (0x00ff00ff, 0xff00ff00), (0, 0xffffffff))):
            I(f"s_mov_b32 exec_lo, {lo:#x}\ns_mov_b32 exec_hi, {hi:#x}\nds_write_b128 v50, {v4(vACC + 4 * c)} offset:{512 * c}")
        I("s_mov_b64 exec, -1")
        if pre_bar: pre_bar()
        self.fs("att_end")
        a.barrier()
        self.combine(b, L)
        self.fs("pub2")
    def combine(self, b, L):
        a = self.a; I = a.I; inst = 4 * b + L; a.comment("merge the four waves' partials and publish")
        I("ds_read_b128 v[44:47], v9\nds_read_b128 v[48:51], v9 offset:16")
        for i in range(0, 8, 2): I(f"ds_read2st64_b32 {v2(12 + i)}, v10 offset0:{3 * i} offset1:{3 * i + 3}")
        I("v_max3_f32 v52, v44, v45, v46\nv_max_f32 v52, v52, v47")
        for w in range(4): I(f"v_sub_f32 v{44+w}, v{44+w}, v52")
        for w in range(4): I(f"v_exp_f32 v{44+w}, v{44+w}")
        for w in range(4): I(f"v_add_f32 v{12 + 2 * w}, v{12 + 2 * w}, v{13 + 2 * w}")
        I("v_mul_f32 v20, v44, v12\nv_fmac_f32 v20, v45, v14\nv_fmac_f32 v20, v46, v16\nv_fmac_f32 v20, v47, v18")
        I("v_mul_f32 v53, v44, v48\nv_fmac_f32 v53, v45, v49")
        I("v_mov_b32_dpp v21, v20 quad_perm:[1,1,3,3] row_mask:0xf bank_mask:0xf")
        I("v_fmac_f32 v53, v46, v50\nv_fmac_f32 v53, v47, v51\nv_cvt_pk_bf16_f32 v20, v20, v21")
        I(f"v_cndmask_b32 v52, v52, v53, {sp(mBIT1)}\nv_cndmask_b32 v20, v20, v52, {sp(mW3)}\nv_min_u32 v20, -2, v20")
        I(f"s_mov_b64 exec, {sp(mPub2)}" if H2_S == 384 else f"s_not_b64 exec, {sp(mODD)}")
        self.publish(f"buffer_store_dword v20, v11, {s4(WS)}, s{sOffP} offen {{pol}}", True)
        I("s_mov_b64 exec, -1")
    def wo_addr(self, b, L):
        I = self.a.I
        I(f"v_bfe_u32 v8, v0, 1, 3\nv_lshrrev_b32 v9, 4, v0\nv_and_b32 v7, 1, v0\nv_lshl_add_u32 v7, v9, 1, v7\nv_lshlrev_b32 v7, 4, v7\ns_movk_i32 s{sT0}, {H2_S}\nv_mad_u32_u24 v7, v8, s{sT0}, v7")
        I(f"v_lshl_add_u32 v8, v9, 1, v8\nv_and_b32 v8, 7, v8\nv_mul_u32_u24 v8, {16 if H2_S == 384 else H2_S}, v8\ns_add_u32 s{sOffW}, s{h2(4 * b + L)[1]}, {h2(4 * b + L)[2]}")
    def wo(self, b, L, between=None, hoisted=False, hoist=False, after=None):
        a = self.a; a.comment(f"---- row {b} layer {L}: gather attention partials, output projection partial"); I = a.I; inst = 4 * b + L; ty = L & 1
        if not hoisted: self.wo_addr(b, L)
        loads = [f"buffer_load_dwordx2 v[52:53], v8, {s4(WS)}, s{sOffW} offen offset:{3072 if H2_S == 384 else 384} sc1"]
        loads += [f"buffer_load_dwordx4 {v4(12 + 4 * t)}, v7, {s4(WS)}, s{sOffW} offen offset:{128 * t} sc1" for t in range(3)]
        S = [24, 28, 32, 36, 40, 44]
        def rd(kk, reg, tile):
            o = 10240 * (kk >> 1) + 1280 * (kk & 1) + 32 * tile
            I(f"ds_read_b64_tr_b16 {v2(reg)}, v10 offset:{o}\nds_read_b64_tr_b16 {v2(reg + 2)}, v10 offset:{o + 640}")
        def pre():
            I(f"v_bfe_u32 v10, v0, 2, 2\nv_and_b32 v11, 48, v0\nv_add_u32 v10, v10, v11\nv_mul_u32_u24 v10, 160, v10\nv_and_b32 v11, 3, v0\nv_lshl_add_u32 v10, v11, 3, v10")
            I(f"s_lshl_b32 s{sT0}, s{sW2}, 6\ns_add_u32 s{sT1}, s{sT0}, {WO[ty]}\nv_add_u32 v10, s{sT1}, v10")
            for kk in range(6): rd(kk, S[kk], 0)
            I(f"v_and_b32 v11, 15, v0\nv_lshlrev_b32 v11, 1, v11\nv_and_b32 v9, 32, v0\nv_add3_u32 v11, v11, v9, s{sT0}\ns_add_u32 s{sOffP}, s{h3(inst)[0]}, {h3(inst)[2]}")
            if hoist: self.yg_addr()
            if between: between()
        D0, D1 = 48, 24
        mt = lambda D, t, B, first: f"v_mfma_f32_16x16x32_bf16 {v4(D)}, {v4(12 + 4 * t)}, {v4(B)}, {0 if first else v4(D)}"
        def mm(*k): I(mt(*k))
        self.gather(loads, [52, 53] + list(range(12, 24)), 9, between=pre, sleep=self.lsleep(), first=hoisted and self.c.get('first', 3) & 1,
                    spec=[mt(D0, 0, S[0], True), mt(D0, 1, S[2], False), mt(D0, 2, S[4], False)])
        if after: after()
        dpp = lambda op, d, x, ctl: I(f"{op}_dpp v{d}, v{x}, v{x} {ctl} row_mask:0xf bank_mask:0xf")
        def fold(out):
            I(f"v_add_f32 v{D0}, v{D0}, v{D1 + 1}\nv_add_f32 v{D0 + 2}, v{D0 + 2}, v{D1 + 3}\nv_mul_f32 v{out}, v7, v{D0}\nv_fmac_f32 v{out}, v8, v{D0 + 2}")
        dpp("v_max_f32", 9, 52, "row_ror:8")
        mm(D1, 0, S[1], True); rd(0, S[2], 1); dpp("v_max_f32", 9, 9, "row_ror:4")
        mm(D1, 1, S[3], False); rd(2, S[4], 1); dpp("v_max_f32", 9, 9, "row_ror:2")
        mm(D1, 2, S[5], False); I("v_sub_f32 v52, v52, v9\nv_exp_f32 v52, v52"); rd(4, S[1], 1); I("v_mul_f32 v53, v52, v53")
        rd(1, S[3], 1); dpp("v_add_f32", 53, 53, "row_ror:8")
        rd(3, S[5], 1); dpp("v_add_f32", 53, 53, "row_ror:4")
        I(f"v_add_f32 v{D0}, v{D0}, v{D1 + 1}\nv_add_f32 v{D0 + 2}, v{D0 + 2}, v{D1 + 3}")
        dpp("v_add_f32", 53, 53, "row_ror:2")
        I(f"v_mov_b32 v7, v{D0}\nv_mov_b32 v8, v{D0 + 2}\nv_rcp_f32 v53, v53")
        mm(D0, 0, S[2], True); rd(5, S[2], 1)
        I("v_mul_f32 v9, v52, v53")
        mm(D0, 1, S[4], False); mm(D0, 2, S[1], False)
        I("v_mul_f32_dpp v52, v9, v7 row_newbcast:0 row_mask:0xf bank_mask:0xf")
        mm(D1, 0, S[3], True)
        I("v_mov_b32_dpp v7, v9 row_newbcast:0 row_mask:0xf bank_mask:0xf")
        mm(D1, 1, S[5], False)
        I("v_fmac_f32_dpp v52, v9, v8 row_newbcast:2 row_mask:0xf bank_mask:0xf")
        mm(D1, 2, S[2], False)
        I("v_mov_b32_dpp v8, v9 row_newbcast:2 row_mask:0xf bank_mask:0xf")
        fold(53)
        I("v_permlane32_swap_b32 v52, v53\nv_add_f32 v52, v52, v53\nv_mov_b32 v53, v52\nv_permlane16_swap_b32 v52, v53\nv_add_f32 v52, v52, v53")
        I("v_mov_b32_dpp v53, v52 quad_perm:[1,1,3,3] row_mask:0xf bank_mask:0xf\nv_cvt_pk_bf16_f32 v52, v52, v53\nv_min_u32 v52, -2, v52")
        I(f"s_mov_b64 exec, {sp(mWOST)}")
        self.publish(f"buffer_store_dword v52, v11, {s4(WS)}, s{sOffP} offen {{pol}}", False)
        I("s_mov_b64 exec, -1")
    def yg_addr(self):
        self.a.I(f"v_lshrrev_b32 v54, 4, v0\nv_mul_u32_u24 v54, {H3_H}, v54\nv_and_b32 v9, 15, v0\nv_lshl_add_u32 v54, v9, 4, v54")
    def yg_pre(self, b, L):
        I = self.a.I
        if h3(4 * b + L)[1] is None: I(f"s_add_u32 s{sOffG}, s{sX3g0}, {h3(4 * b + L)[2]}\ns_add_u32 s{sOffG2}, s{sX3g1}, {h3(4 * b + L)[2]}")
        else: I(f"s_mul_i32 s{sT0}, s{sWave}, {8 * H3_H}\ns_add_u32 s{sOffG}, s{sH3grp}, s{sT0}\ns_add_u32 s{sOffG}, s{sOffG}, {(4 * b + L) * H3_I}\ns_add_u32 s{sOffG2}, s{sOffG}, {4 * H3_H}")
        for j in range(4): I(f"v_and_b32 v{16 + j}, 0x3f803f80, v{vMask + j}")
        for j in range(8): I(f"v_mov_b32 v{8 + j}, 0")
    def yg(self, b, L, between=None, pre_bar=None, hoisted=False, after=None):
        a = self.a; a.comment(f"---- row {b} layer {L}: gather output partials, residual"); I = a.I; inst = 4 * b + L; Yb = Y + YSZ * b
        if not hoisted: self.yg_addr(); self.yg_pre(b, L)
        loads = [f"buffer_load_dwordx4 {v4(8 + 4 * j)}, v54, {s4(WS)}, s{(sOffG, sOffG2)[j]} offen sc1" for j in range(2)]
        self.gather(loads, range(8, 16), 7, between=between, emask=sp(mN10),
                    spec=["v_mfma_f32_16x16x32_bf16 v[20:23], v[16:19], v[8:11], 0", "v_mfma_f32_16x16x32_bf16 v[20:23], v[16:19], v[12:15], v[20:23]"])
        if after: after()
        I(f"v_and_b32 v7, 15, v0\nv_lshlrev_b32 v7, 5, v7\nv_and_b32 v54, 16, v0\nv_add3_u32 v7, v7, v54, s{sYw}")
        I(f"s_mov_b32 exec_lo, s{mN10}\ns_mov_b32 exec_hi, 0\nds_write_b128 v7, v[20:23] offset:{YSZ * b}\ns_mov_b64 exec, -1")
        I(f"v_lshl_add_u32 v7, v0, 2, s{sXROWw}\nds_read_b32 v54, v7 offset:{640 * b}")
        I(f"v_lshlrev_b32 v14, 3, v0\nv_add_u32 v14, {Yb}, v14")
        if L < 3: self.wq_addr(b, L + 1)
        if pre_bar: pre_bar()
        a.barrier()
        I("s_mov_b32 exec_hi, 0xff")
        I("ds_read2_b64 v[8:11], v14 offset0:0 offset1:40\nds_read2_b64 v[12:15], v14 offset0:80 offset1:120")
        I("v_lshlrev_b32 v16, 16, v54\nv_and_b32 v17, 0xffff0000, v54")
        I("v_pk_add_f32 v[8:9], v[8:9], v[10:11]\nv_pk_add_f32 v[12:13], v[12:13], v[14:15]\nv_pk_add_f32 v[8:9], v[8:9], v[12:13]")
        I("v_cvt_pk_bf16_f32 v8, v8, v9\nv_and_b32 v9, 0xffff0000, v8\nv_lshlrev_b32 v8, 16, v8\nv_pk_add_f32 v[8:9], v[8:9], v[16:17]\nv_cvt_pk_bf16_f32 v8, v8, v9")
        if L < 3: I(f"ds_write_b32 v7, v8 offset:{640 * b}")
        else:
            I(f"s_cmp_lg_u32 s{sWave}, 0"); a.skip_begin("s_cbranch_scc1")
            I(f"s_mul_i32 s{sT0}, s{sS}, 160\nv_lshlrev_b32 v7, 2, v0")
            I(f"buffer_store_dword v8, v7, {s4(XO)}, s{sT0} offen offset:{1280 * b}")
            a.skip_end()
        I("s_mov_b64 exec, -1")
    def fin_pre(self, b):
        a = self.a; I = a.I; inst = 4 * b + 3
        self.yg_addr(b, 3) if False else None
        for j in range(4): I(f"v_and_b32 v{16 + j}, 0x3f803f80, v{vMask + j}")
        I(f"v_and_b32 v9, 15, v0\nv_lshlrev_b32 v9, 4, v9\nv_bfe_u32 v10, v0, 4, 1\nv_lshl_add_u32 v9, v10, 3, v9\nv_add_u32 v10, {XROW + 640 * b}, v9\nds_read_b64 v[10:11], v10")
        for k in range(8):
            if h3(inst)[1] is None:
                if k == 0: I(f"s_and_b32 s0, s40, 1\ns_lshl_b32 s0, s0, 13\ns_sub_u32 s12, s{sX3g0}, s0\ns_add_u32 s12, s12, {h3(inst)[2]}")
                I(f"s_bfe_u32 s0, s{40 + (k >> 2)}, {0x10000 + 8 * (k & 3):#x}\ns_lshl_b32 s0, s0, 13\ns_add_u32 s0, s0, {(k & 3) * 4 * H3_H}\ns_add_u32 s{4 + k}, s12, s0")
            else: I(f"s_add_u32 s{4 + k}, s{sH3grp}, {h3(inst)[2] + k * 4 * H3_H}")
        I(f"v_lshlrev_b32 v12, 16, v10\nv_and_b32 v13, 0xffff0000, v10\nv_lshlrev_b32 v14, 16, v11\nv_and_b32 v15, 0xffff0000, v11\ns_mul_i32 s{sT0}, s{sS}, 160")
    def fin(self, b):
        a = self.a; I = a.I; a.comment(f"---- row {b}: gather output partials, residual, store")
        loads = [f"buffer_load_dwordx4 {v4(60 + 4 * k)}, v54, {s4(WS)}, s{4 + k} offen sc1" for k in range(8)]
        self.gather(loads, range(60, 92), 7, emask=sp(mN10), vmask=True,
                    spec=[f"v_mfma_f32_16x16x32_bf16 v[20:23], v[16:19], {v4(60 + 4 * k)}, {'v[20:23]' if k else 0}" for k in range(8)])
        I(f"s_mov_b32 exec_lo, s{mN10}\ns_mov_b32 exec_hi, 0")
        I("v_cvt_pk_bf16_f32 v20, v20, v21\nv_cvt_pk_bf16_f32 v22, v22, v23\nv_and_b32 v21, 0xffff0000, v20\nv_lshlrev_b32 v20, 16, v20\nv_and_b32 v23, 0xffff0000, v22\nv_lshlrev_b32 v22, 16, v22")
        I("v_pk_add_f32 v[20:21], v[20:21], v[12:13]\nv_pk_add_f32 v[22:23], v[22:23], v[14:15]\nv_cvt_pk_bf16_f32 v20, v20, v21\nv_cvt_pk_bf16_f32 v21, v22, v23")
        I(f"buffer_store_dwordx2 v[20:21], v9, {s4(XO)}, s{sT0} offen offset:{1280 * b}\ns_mov_b64 exec, -1")
    def touch(self, b, L, lvl=1):
        if self.c.get("touch", 4) == 4 or self.c.get("touch") < lvl: return
        a = self.a; I = a.I; m = self.c.get("tm", 2)
        I(f"s_mov_b32 m0, {JUNK}\ns_mov_b64 exec, 3")
        if m & 1:
            I(f"v_mov_b32 v31, s{sPub2}\ns_add_u32 s{sT1}, s{h2(4 * b + L)[0]}, {h2(4 * b + L)[2]}")
            I(f"buffer_load_dword v31, {s4(WS)}, s{sT1} offen sc1 lds")
        if L < 3 and m & 2:
            I(f"s_lshl_b32 s{sT0}, s{sWave}, 8\nv_lshl_add_u32 v31, v0, 7, s{sT0}\ns_add_u32 s{sT1}, s{h1(4 * b + L + 1)[0]}, {h1(4 * b + L + 1)[2]}")
            I(f"buffer_load_dword v31, {s4(WS)}, s{sT1} offen sc1 lds")
        I("s_mov_b64 exec, -1")
    def touch_fill(self, b, L):
        I = self.a.I; m = self.c.get("tm", 2)
        if m & 1:
            I(f"s_add_u32 s{sT1}, s{h2(4 * b + L)[0]}, {h2(4 * b + L)[2]}\nv_mov_b32 v54, s{sPub2}")
            I(f"s_mov_b32 m0, {JUNK} | buffer_load_dword v54, {s4(WS)}, s{sT1} offen sc1 lds")
        if L < 3 and m & 2:
            I(f"s_lshl_b32 s{sT0}, s{sWave}, 8\nv_and_b32 v54, 1, v0\nv_lshl_add_u32 v54, v54, 7, s{sT0}\ns_add_u32 s{sT1}, s{h1(4 * b + L + 1)[0]}, {h1(4 * b + L + 1)[2]}")
            I(f"s_mov_b32 m0, {JUNK} | buffer_load_dword v54, {s4(WS)}, s{sT1} offen sc1 lds")
    def chain_idle(self, b, L, burst=(0, 0, 0), sh=(0, 0, 0, 0), pf=(0, 0, 0)):
        a = self.a; U = lambda n: (lambda: self.stream(n, paced=False))
        if self.c.get("skip3", 1):
            a.I(f"s_cmp_eq_u32 s{sWave}, 3"); a.skip_begin("s_cbranch_scc1")
            self.wo(b, L, hoisted=True)
            a.skip_end()
            self.yg_addr()
            self.stream(sh[0] + sh[1], paced=False)
            self.pfreg = 7; self.prefetch(pf[0])
        else:
            self.wo(b, L, between=U(burst[0]), hoisted=True, hoist=True, after=U(sh[0]))
            self.stream(sh[1], paced=False)
        self.stamp(f"wo{b}{L}")
        self.fs("pub3")
        late = self.c.get("late", 2)
        if L == 3:
            a.I(f"s_cmp_eq_u32 s{sH}, 1\ns_cbranch_scc1 L_out0")
            a.I(f"s_cmp_lg_u32 s{sH}, 0\ns_cbranch_scc1 L_fin")
            self.page()
            if self.c.get("fin1", 1):
                if not self.c.get("finl", 1): self.fin_pre(1)
                a.wait_tag("pub"); a.barrier()
                a.I(f"s_cmp_lg_u32 s{sWave}, 0\ns_cbranch_scc1 L_fin")
                if self.c.get("finl", 1): self.fin_pre(1)
                self.fin(1)
                return
        dfr = self.deferred; self.deferred = []
        pub = a.vm.last_tag("pub")
        for jobs in dfr: self.clear_prep(jobs); self.clear_issue("clr3")
        if L < 3 and not late: self.wq_pre((L + 1) & 1)
        if late < 2: self.yg_pre(b, L)
        a.wait_tag("pub"); a.barrier()
        if L < 3 and late: self.wq_pre((L + 1) & 1)
        if late >= 2: self.yg_pre(b, L)
        self.yg(b, L, between=lambda: (self.stream(burst[1], paced=False), self.page() if L < 3 else None), hoisted=True, after=lambda: (self.stream(sh[2], paced=False), self.prefetch(pf[1])), pre_bar=(lambda: a.wait_tag("clr3")) if dfr else None)
        self.fs("xrow")
        if L == 3: return
        self.wq_main(b, L + 1, hoisted=True, hoist=True)
        self.fs("pub1")
        self.stamp(f"wq{b}{L+1}")
        self.qg(b, L + 1, between=U(burst[2]), hoisted=True, tail=True, after=lambda: (self.touch(b, L + 1) if self.c.get("touch", 4) != 3 or (b, L) == (0, 1) else None, self.stream(sh[3], paced=False), self.prefetch(pf[2])))
        self.stamp(f"qg{b}{L+1}")
    def build(self):
        a = self.a; c = self.c; W = self.W; WE = c.get("WE", W); HE = c.get("HE", 4); PG = c.get("PG", 0)
        self.off_val = None
        for x in c.get("order", "kvw"):
            if x == "w": self.add_w("wqA", pWQA, "q", 0)
            else:
                for g in range(4): self.add_kv("KA" if x == "k" else "VA", 0, g)
        self.add_w("woA", pWOA, "o", 0); self.add_w("wqB", pWQB, "q", 1)
        for g in range(16): self.add_kv("KB", 0, g)
        wl = c.get("wolate", 0)
        if not wl: self.add_w("woB", pWOB, "o", 1)
        for g in range(16): self.add_kv("VB", 0, g)
        if wl: self.add_w("woB", pWOB, "o", 1, late=True)
        p1 = len(self.items)
        for g in range(4): self.add_kv("KA", 1, g)
        for g in range(4): self.add_kv("VA", 1, g)
        p2 = len(self.items)
        for g in range(16): self.add_kv("KB", 1, g)
        for g in range(16): self.add_kv("VB", 1, g)
        st = self.stream_to; S = lambda n: (lambda: self.stream(n))
        self.limit = p1; a.nobar = c.get('nobar', 0)
        self.setup()
        if c.get("inject", 1): a.inject = self.injector
        if c.get("streamonly"):
            self.limit = 10**9; self.npage = 0; self.hot = []; self.inl = False; self.boost = 0; a.inject = None
            for upto in c["streamonly"]:
                if isinstance(upto, tuple): st(upto[0], W=upto[1])
                else: st(upto)
                self.stamp("end")
            a.wait(vm=0); self.stamp("end")
            return self.finish()
        P = c.get("P1", dict(arr=24, hs=36, qg0=44, wo=76, yg=104, qg1=130))
        for _ in range(c.get("pad", 0)): a.I("s_nop 0")
        a.raw("L_pf0:")
        self.stamp("setup")
        a.wait_tag("clr"); a.barrier()
        self.arrive()
        st(max(P["arr"], self.index_after("wqA") + 4))
        self.stamp("arr")
        a.wait_tag("wqA"); a.barrier()
        self.wq_pre(0); self.wq_main(0, 0, local_ok=False)
        self.wq_pre(0); self.wq_main(1, 0, local_ok=False)
        self.stamp("wq")
        st(P["hs"]); self.handshake(S(W))
        for r, m, base in ((sCTw, 256, CT), (sATTw, 1536, ATT), (sSTATw, 4, STAT), (sCOMBw, 256, ATT)):
            a.I(f"s_mul_i32 s{r}, s{sWave}, {m}\ns_add_u32 s{r}, s{r}, {base}")
        P_ = lambda i: [("P", i)]
        now = [[P_(1), [("C", 1)], P_(2), [("2", 1), ("3", 1)]], [[("3", 2), ("3", 3)], [("3", 4), ("3", 5)], [("3", 6), ("3", 7)], [("3", 6), ("3", 7)]]]
        self.deferred = [[P_(3), P_(5), P_(6), P_(7)], [[("2", 2), ("2", 3)], [("2", 4), ("2", 5)], [("2", 6), ("2", 7)], [("2", 6), ("2", 7)]]]
        if not c.get("defer", 1): now += self.deferred; self.deferred = []
        for jobs in now:
            self.clear_prep(jobs); self.clear_issue("clr2"); self.stream(1)
        self.stamp("hs")
        st(P["qg0"]); self.qg(0, 0, between=S(W))
        self.stamp()
        self.att(0, 0, pre_bar=lambda: (st(self.index_after("woA")), a.wait_tag("woA"), a.wait_tag("clr2")))
        self.stamp()
        self.qg(1, 0, between=S(W))
        self.stamp("qg10")
        st(P["wo"]); self.wo(0, 0, between=S(W))
        self.stamp("wo00")
        st(P["yg"]); self.yg(0, 0, between=S(W), pre_bar=lambda: a.wait_tag("wqB"))
        self.stamp("yg00")
        self.wq_pre(1); self.wq_main(0, 1, hoisted=True)
        self.stream(3, paced=False); self.warm([0, 1, 2, "R"])
        if c.get("cpf") == 2: self.code_prefetch("L_pf1", "L_pf2")
        st(P["qg1"]); self.touch(0, 1, 2) if c.get('touch') == 2 else None; self.qg(0, 1, tail=True, between=lambda: self.stream(min(WE, p1 - self.pos), W=WE))
        a.raw("L_pf1:")
        self.stamp()
        st_ = 64 << c.get("pfs", 6)
        self.pfq = [(KA, o) for o in range(0, 12288, st_)] + [(VA, o) for o in range(0, 12288, st_)] + [(KB, o) for o in range(0, 49152, st_)]
        self.pfreg = 54
        vb0 = self.index_after(("VB", 0, 0)) - 3
        assert self.pos >= vb0 + 3
        if wl: assert self.pos <= p1 - 8
        self.att(0, 1, hook1=lambda g: self.stream(min(1, p1 - self.pos), W=WE) if g % HE == HE - 1 else None,
                 hook2=lambda i: (st(min(p1, vb0 + 3 * (i + 2) + WE - 3), W=WE), self.page() if i == PG else None, self.prefetch(c.get("pf0", 0)) if i == c.get("pfi", 11) else None), pre_bar=lambda: st(p1, W=WE) if wl else a.wait_tag("woB"), hoist=True, qaddr=True)
        if wl: a.wait_tag("woB"); a.barrier()
        assert self.pos == p1
        a.inject = None; self.limit = p2
        self.stamp("p1end")
        self.chain_idle(0, 1, pf=c.get("pf1", (0, 0, 0)))
        bu = c.get("burst", (6, 0, 0, 0)); sh = c.get("sh", (0, 9, 3, 6))
        self.att(0, 2, hookm=lambda: self.stream(bu[0], paced=False), hoist=True, qaddr=True)
        self.stamp("att02")
        self.pfq = [x for x in self.pfq if x[0] == KB]
        self.chain_idle(0, 2, burst=bu[1:], sh=sh, pf=c.get("pf2", (0, 0, 0)))
        self.stamp("p2beg")
        self.limit = len(self.items)
        n0 = c.get("n0", 9); h2 = c.get("h2", 2); q0 = self.pos
        def hook03(g):
            self.stream(max(0, min(3, q0 + n0 - self.pos, p2 + 3 * g + 3 - self.pos)), paced=False)
        self.att(0, 3, hook1=hook03, hook2=lambda i: self.stream(1, paced=False) if i % h2 == h2 - 1 else None, qaddr=True)
        self.stamp("att03")
        a.raw("L_pf2:")
        P = c.get("P2", dict(att=8, wo=34, yg=62, qg=80))
        if c.get("inject", 1): a.inject = self.injector
        st(p2 + P.get("att", 0))
        self.att(1, 0, guard=True, hook2=lambda i: self.stream(2))
        self.stamp("att10")
        st(p2 + P["wo"]); self.stamp("a"); self.wo(1, 0, between=S(W)); self.stamp("wo10"); self.wo(0, 3, between=S(W)); self.stamp("wo03")
        st(p2 + P["yg"]); self.stamp("b"); self.yg(1, 0, between=S(W)); self.stamp("yg10")
        self.wq_pre(1); self.wq_main(1, 1, hoisted=True)
        self.stream(3, paced=False); self.warm([3, 4, 5, 6])
        if c.get("cpf") == 2: self.code_prefetch("L_pf3", "L_pf9")
        st(p2 + P["qg"]); self.stamp("c"); self.touch(1, 1, 2) if c.get('touch') == 2 else None; self.qg(1, 1, tail=True, between=lambda: self.stream(WE, W=WE))
        a.raw("L_pf3:")
        self.stamp("qg11")
        vb1 = p2 + 48
        self.att(1, 1, hook1=lambda g: self.stream(1, W=WE) if g % HE == HE - 1 else None,
                 hook2=lambda i: (st(min(len(self.items), vb1 + 3 * (i + 2) + WE - 3), W=WE), self.page() if i == PG else None), hoist=True, qaddr=True)
        assert self.pos == len(self.items)
        a.inject = None
        self.stamp("p2end")
        self.chain_idle(1, 1)
        self.fine_on = c.get("fine") == 1
        self.fs("q_ready")
        self.att(1, 2, hoist=True, qaddr=True)
        self.stamp("att12")
        self.chain_idle(1, 2)
        self.fs("q_ready")
        if c.get("fine") == 2: self.fine_on = True; self.fs("q_ready")
        self.att(1, 3, hoist=True, qaddr=True)
        self.stamp("att13")
        self.chain_idle(1, 3)
        a.I("s_branch L_fin"); a.raw("L_out0:"); a.I("s_nop 7"); a.wait(vm=0, lg=0)
        if c.get("fin1", 1):
            a.I(f"s_cmp_lg_u32 s{sWave}, 0\ns_cbranch_scc1 L_fin")
            self.fin_pre(0); self.fin(0)
        else: self.yg(0, 3)
        a.raw("L_fin:"); a.I("s_nop 7")
        if c.get("hold"):
            a.raw("L_hold:"); a.I(f"s_memrealtime s[38:39]"); a.wait(lg=0)
            a.I(f"s_sub_u32 s38, s38, s{98 if c.get('holdat') else sST}\ns_cmp_lt_u32 s38, {c['hold']}\ns_cbranch_scc1 L_hold")
        self.fs("end")
        self.stamp("end")
        return self.finish()
    def finish(self):
        a = self.a; c = self.c
        if c.get("fine"):
            a.wait(lg=0)
            for i in range(self.nfine): a.I(f"v_writelane_b32 v{vStamp}, s{FS[i]}, {i}")
            print("fine stamps:", self.fnames)
        if c.get("diag"):
            a.I("s_sleep 100")
            a.I(f"v_writelane_b32 v{vStamp}, s{sRetry}, 62\nv_writelane_b32 v{vStamp}, s{sLocal}, 63")
            a.I(f"s_lshl_b32 s{sT0}, s{sWG}, 10\ns_lshl_b32 s{sT1}, s{sWave}, 8\ns_add_u32 s{sT0}, s{sT0}, s{sT1}\ns_add_u32 s{sT0}, s{sT0}, {DIAG}\nv_lshlrev_b32 v7, 2, v0")
            a.I(f"buffer_store_dword v{vStamp}, v7, {s4(WS)}, s{sT0} offen")
        if c.get("diag") and not c.get("fine"): print("stamps:", " ".join(self.snames))
        a.raw("L_end:"); a.raw("  s_endpgm")
        if c.get("pages", 1): self.hot = [f".p2align {c.get('hotal', 12)}\nLstR:\n  s_setpc_b64 {sp(sRet)}"] + self.hot
        a.tail = self.hot + a.tail
        a.tail.append("L_pf9:\n  s_endpgm")
        body = a.text()
        return (HEAD + f"; @launch grid=(256,1,1) block=(256,1,1) lds={LDS_BYTES}\n" + DOC
                + f'.amdgcn_target "amdgcn-amd-amdhsa--gfx950"\n.text\n.globl {NAME}\n.p2align 8\n.type {NAME},@function\n{NAME}:\n'
                + body + f'.section .rodata,"a"\n.p2align 6\n.amdhsa_kernel {NAME}\n  .amdhsa_next_free_vgpr 512\n  .amdhsa_next_free_sgpr 102\n'
                + "  .amdhsa_accum_offset 256\n  .amdhsa_group_segment_fixed_size 0\n  .amdhsa_kernarg_size 104\n  .amdhsa_user_sgpr_count 2\n"
                + "  .amdhsa_user_sgpr_kernarg_segment_ptr 1\n  .amdhsa_system_sgpr_workgroup_id_x 1\n.end_amdhsa_kernel\n")

def generate(cfg):
    global COMPACT1; COMPACT1 = cfg.get('c1', 0)
    global H1_I, H1_H, H1_S, H2, H2_I, H2_H, H2_S, H3, H3_I, H3_S, H3_H
    H1_S = cfg.get("H1S", 2048); H1_H = cfg.get("H1H", 8 * H1_S); H1_I = 32 * H1_H
    H2_S = cfg.get("H2S", 384); H2_H = cfg.get("H2H", 8 * H2_S if H2_S != 384 else 4096); H2_I = 32 * H2_H; H2 = cfg.get("H2B", 8 * H1_I); assert H2 >= 8 * H1_I
    H3_H = cfg.get("H3H", 192); H3_S = cfg.get("H3S", 32 * H3_H); H3_I = cfg.get("H3I", max(8 * H3_S, 32 * H3_H)); H3 = cfg.get("H3B", H2 + 8 * H2_I); assert H3 >= H2 + 8 * H2_I
    global USE_HOT; USE_HOT = cfg.get("hot", 3)
    assert H3 + 8 * H3_I <= (6 << 20) and not (USE_HOT and COMPACT1) and H3_H <= 256
    return Gen(cfg).build()
if __name__ == "__main__":
    cfg = eval(sys.argv[2]) if len(sys.argv) > 2 else {}
    open(sys.argv[1], "w").write(generate(cfg))
```

```python
import sys, math
from dsl import Asm

NAME = "interleave_layers__sliding_block_cached__gqa_block_cached__decode_kernel"
HEAD = open("interleave_layers__sliding_block_cached__gqa_block_cached__decode.s.ref").read().split("; Override")[0]

KV_BYTES = 2 * 32 * 4096 * 384
BSTR = 32 * 4096 * 384
HSTR = 4096 * 384
W_BYTES = 640 * 6144 * 2
WS_BYTES = 434115584
H1_I, H1_H, H1_S = 524288, 16384, 2048
H2 = 8 * H1_I; H2_I, H2_H, H2_S = 131072, 4096, 512
H3 = H2 + 8 * H2_I; H3_I, H3_S, H3_H = 65536, 8192, 256
DIAG = 64 << 20
WQ = (0, 61440); WO = (30720, 92160)
VS = 122880
EX = 147456
ATT = EX; STAT = EX + 6144; Y = EX + 6208; YSZ = 1280; XROW = Y + 2 * YSZ; ONES = XROW + 1280; QB = ONES + 160; CT = QB + 768
JUNK = CT + 2048
LDS_BYTES = JUNK + 256
assert LDS_BYTES <= 163840
sWG, sWave = 2, 3
KA, VA, KB, VB, WS, WT, XO = 4, 8, 12, 16, 20, 24, 28
pX, pKA, pVA, pWQA, pWOA, pKB, pVB, pWQB, pWOB, pOUT, pDBG, pWS = 32, 34, 36, 38, 40, 44, 46, 48, 50, 52, 54, 56
sH, sS, sLocal, sOff, sRetry, sT0, sT1, sT2 = 58, 59, 60, 61, 62, 63, 64, 65
sH1own, sH1grp, sH2own, sH2grp, sH3own, sH3grp, sOffG, sOffP = 66, 67, 68, 69, 70, 71, 72, 73
mODD, mHI8, mHI32, mWOST, mRG1, mRG2, mRG3, m60 = 74, 76, 78, 80, 82, 84, 86, 88
sXcc, sWqRow, sWoRow, sLdsW, sLdsVS = 90, 91, 92, 93, 94
sST = 0; m40 = 98; mBIT1 = 100; mW3 = 42; mN10 = 32; sW2 = 95; sOffG2 = 35; sClr = 0; sM = 34; sOffW = 76; sRet = 78; sX1own, sX1grp, sX2own, sX2grp, sX3own, sX3g0, sX3g1 = 77, 98, 99, 52, 53, 96, 97; sPub2 = 44; sXROWw, sYw, sQw, sCTw, sATTw, sSTATw, sCOMBw = 45, 56, 57, 38, 39, 54, 55; sH1c = 77; mQ13 = 98; mPub1 = 52; mPub2 = 46; mL63 = 36
FS = [50, 24, 26, 88, 90, 92]
def sp(n): return f"s[{n}:{n+1}]"
def s4(n): return f"s[{n}:{n+3}]"
def v2(n): return f"v[{n}:{n+1}]"
def v4(n): return f"v[{n}:{n+3}]"
vLane, vKoff, vVoff, vMask = 0, 1, 2, 3
vQ, vACC, vU = 12, 24, 36
vStamp = 55
QUADS = [f"a[{i}:{i+3}]" for i in range(0, 256, 4)] + [f"v[{i}:{i+3}]" for i in range(56, 256, 4)]
SLOT = {}
_names = [("KA", i) for i in range(4)] + [("VA", 0), ("VA", 1)] + [("KB", i) for i in range(16)] + [("VB", i) for i in range(16)]
for i, n in enumerate(_names): SLOT[n] = QUADS[3 * i:3 * i + 3]
assert SLOT[("VB", 15)][2] == "v[252:255]"
vWq0, vWq1, vWo = 252, 253, 254
SCALE = 192 ** -0.5 * math.log2(math.e)
import struct
def f32(x): return "0x%08x" % struct.unpack("<I", struct.pack("<f", x))[0]

DOC = "; Four decode layers (A, B, A, B) in one persistent launch, one workgroup per CU (4 waves x 512 registers, 157 KiB LDS).\n;  workgroup w: head h = 4*(w&7) + ((w>>3)&3), slice s = w>>5. It owns 1/8 of head h's cache positions for both batch rows,\n;  Speed only: the slots of the latency-bound hand-offs share one 2 MiB page of d_ws whose address bit 13 selects the memory\n"

HOT1 = {2: 0, 3: 1, 6: 2, 7: 3}; HOT2 = {1: 0, 2: 1, 5: 2, 6: 3, 7: 4}
X2 = 1 << 20; X3 = X2 + 5 * 131072; XP = X3 + 5 * 65536
USE_HOT = True
def h1(inst): return (sX1own, sX1grp, HOT1[inst] * 262144, 1024) if USE_HOT and inst in HOT1 else (sH1own, sH1grp, inst * H1_I, H1_S)
def h2(inst): return (sX2own, sX2grp, HOT2[inst] * 131072) if USE_HOT and inst in HOT2 else (sH2own, sH2grp, inst * H2_I)
def h3(inst): return (sX3own, None, HOT2[inst] * 65536) if USE_HOT and inst in HOT2 else (sH3own, sH3grp, inst * H3_I)
def c1(inst): return COMPACT1 and inst >= 2

class Gen:
    def __init__(self, cfg):
        self.c = cfg; self.a = Asm(); self.items = []; self.pos = 0; self.nstamp = 0
        self.W = cfg.get("W", 9); self.limit = 10**9; self.npage = 0; self.hot = []; self.inl = False; self.boost = 0; self.last_cyc = 0; self.fine_on = False; self.nfine = 0; self.fnames = []; self.snames = ['start']
    def add_w(self, name, ptr, kind, ty, late=False):
        pol = self.c.get("wpol", "nt")
        def mk(k):
            def f():
                a = self.a
                if k == 0:
                    off = sWqRow if kind == "q" else sWoRow
                    a.I(f"s_add_u32 s{WT}, s{ptr}, s{off}\ns_addc_u32 s{WT+1}, s{ptr+1}, 0\ns_sub_u32 s{WT+2}, {W_BYTES}, s{off}")
                    if late: a.I("v_mul_u32_u24 v54, 26, v0\nv_lshrrev_b32 v54, 8, v54\nv_mul_u32_u24 v54, 1120, v54\nv_lshl_add_u32 v54, v0, 4, v54")
                base = (WQ if kind == "q" else WO)[ty]
                a.I(f"s_add_u32 m0, s{sLdsW}, {base + 960 * k}")
                if kind == "q": so = 5 * (k // 2) * 12288; vr = vWq1 if k & 1 else vWq0
                else: so = 6 * k * 1280; vr = 54 if late else vWo
                a.I(f"s_mov_b32 s{sOff}, {so}\ns_mov_b64 exec, {sp(m60)}")
                a.I(f"buffer_load_dwordx4 v{vr}, {s4(WT)}, s{sOff} offen {pol} lds", tag=name)
                a.I("s_mov_b64 exec, -1")
            return f
        self.items += [(name, mk(k)) for k in range(8)]
    def add_kv(self, name, b, g):
        srd = {"KA": KA, "VA": VA, "KB": KB, "VB": VB}[name]
        isK = name[0] == "K"; vo = vKoff if isK else vVoff; step = 128 if isK else 256
        pol = self.c.get("kvpol", "nt")
        def mk(c):
            def f():
                a = self.a
                if (name, g) in SLOT:
                    rot = self.c.get("rot", 1) and name[1] == "B"
                    if rot and (name, b, g, c) == ("KB", 0, 0, 0):
                        m = self.c.get("rot", 1)
                        if m == 1: a.I(f"s_and_b32 s48, s{sS}, 3\ns_lshl_b32 s49, s{sWave}, 2\ns_or_b32 s48, s48, s49")
                        if m == 2: a.I(f"s_lshl_b32 s48, s{sWave}, 2")
                        if m == 3: a.I(f"s_and_b32 s48, s{sS}, 3\ns_lshl_b32 s48, s48, 2")
                        if m == 4: a.I(f"s_and_b32 s48, s{sWave}, 1\ns_lshl_b32 s48, s48, 3")
                    if c == 0 or self.off_val != (name, b, g):
                        if rot: a.I(f"s_xor_b32 s{sOff}, s48, {g}\ns_mul_i32 s{sOff}, s{sOff}, 3072" + (f"\ns_add_u32 s{sOff}, s{sOff}, {BSTR}" if b else ""))
                        else: a.I(f"s_mov_b32 s{sOff}, {b * BSTR + g * 3072}")
                    self.off_val = (name, b, g)
                    a.I(f"buffer_load_dwordx4 {SLOT[(name, g)][c]}, v{vo}, {s4(srd)}, s{sOff} offen offset:{step * c} {pol}")
                else:
                    self.off_val = None
                    a.I(f"s_add_u32 m0, s{sLdsVS}, {(g - 2) * 3072 + 1024 * c}\ns_mov_b32 s{sOff}, {b * BSTR + g * 3072 + step * c}")
                    a.I(f"buffer_load_dwordx4 v{vo}, {s4(srd)}, s{sOff} offen {pol} lds", tag=("VS", b, g))
            return f
        self.items += [((name, b, g), mk(c)) for c in range(3)]
    def stream(self, n, paced=True, W=None):
        for _ in range(n):
            if self.pos >= len(self.items): return
            assert self.pos < self.limit, (self.pos, self.limit)
            if paced: self.a.pace((W or self.W) + (self.c.get("B", 0) if self.pos < self.boost else 0))
            sv = self.a._in_inject; self.a._in_inject = True
            self.items[self.pos][1](); self.pos += 1; self.last_cyc = self.a.cyc
            if self.c.get("diag") == 3 and self.pos % 5 == 0 and self.pos > 10: self.stamp("pos")
            self.a._in_inject = sv
    def prefetch(self, n):
        a = self.a
        for _ in range(n):
            if not self.pfq: return
            srd, off = self.pfq.pop(0)
            a.I(f"v_lshlrev_b32 v{self.pfreg}, {self.c.get('pfs', 6)}, v0\ns_mov_b32 m0, {JUNK}\ns_mov_b32 s{sOff}, {BSTR + off}")
            a.I(f"buffer_load_dword v{self.pfreg}, {s4(srd)}, s{sOff} offen {self.c.get('pfpol', '')} lds")
            self.off_val = None
    def injector(self):
        a = self.a
        if self.pos < self.limit and a.cyc - self.last_cyc >= self.c.get("T", 330) and a.vm.outstanding() < self.W + self.c.get("XW", 4) + (self.c.get("B", 0) if self.pos < self.boost else 0):
            self.stream(1, paced=False)
    def stream_to(self, upto, **k): self.stream(max(0, upto - self.pos), **k)
    def index_after(self, name):
        return max(i for i, it in enumerate(self.items) if it[0] == name) + 1
    def fs(self, name):
        if not self.fine_on or self.nfine >= len(FS): return
        self.fcount = getattr(self, "fcount", 0) + 1
        if self.fcount <= self.c.get("fskip", 0): return
        self.a.I(f"{'s_memrealtime' if self.c.get('rt') else 's_memtime'} {sp(FS[self.nfine])}"); self.nfine += 1; self.fnames.append(name)
    def page(self):
        if not self.c.get("pages", 1): return
        k = self.npage; self.npage += 1
        self.a.I(f"s_branch Lpg{k}"); self.a.raw(f".p2align 12\nLst{k}:\n  s_setpc_b64 {sp(sRet)}\nLpg{k}:")
    def warm(self, ks):
        if not (self.c.get("pages", 1) and self.c.get("warm", 1)): return
        a = self.a
        a.I(f"s_cmp_lg_u32 s{sWave}, 3"); a.skip_begin("s_cbranch_scc1")
        for k in ks: a.I(f"s_call_b64 {sp(sRet)}, Lst{k}")
        a.skip_end()
    def check_slot(self, name, b, g):
        assert self.index_after((name, b, g)) <= self.pos, ("not issued", name, b, g, self.pos)
        if b == 0: assert self.index_after((name, 1, g)) - 3 >= self.pos, ("overwritten", name, g)
    def stamp(self, name=''):
        if self.c.get("marks"): self.a.raw(f"M_{name}_{len(self.snames)}:")
        if self.c.get("holdat") == name:
            self.a.I("s_memrealtime s[98:99]"); self.a.wait(lg=0)
        self.snames.append(f'{name}@{self.pos}')
        if not self.c.get("diag") or self.c.get("fine"): return
        if self.c["diag"] == 3 and name not in ("pos", "end"): self.snames.pop(); return
        if self.c["diag"] == 2 and name not in self.c.get("only", ("p1end", "p2beg", "p2end", "end")): self.snames.pop(); return
        a = self.a
        a.I(f"s_memrealtime {sp(sST)}"); a.wait(lg=0)
        a.I(f"v_writelane_b32 v{vStamp}, s{sST if not self.c.get('rcount') else sRetry}, {self.nstamp}"); self.nstamp += 1
    def publish(self, text, local_ok, tag="pub"):
        a = self.a
        if local_ok and self.c.get("local", True):
            a.I(f"s_cmp_lg_u32 s{sLocal}, 0")
            a.either(text.format(pol=""), text.format(pol="sc1"), tag=tag)
        else: a.I(text.format(pol="sc1"), tag=tag); self.boost = self.pos + self.c.get("KB", 14)
    def gather(self, loads, regs, tmp, between=None, emask=None, sleep=None, first=False, spec=(), vmask=False):
        a = self.a
        if first and between: between(); between = None
        if emask: loads = [f"s_mov_b64 exec, {emask}"] + loads + ["s_mov_b64 exec, -1"]
        for t in loads: a.I(t, tag="gat")
        last = len(a.vm.ent) - 1
        if emask or self.c.get("BG"): self.boost = self.pos + self.c.get("KB", 14)
        if between: between()
        self.fs("issued")
        n = a.vm.need(last)
        if n is not None: a.wait(vm=n)
        chk = a.label("Lc"); rt = a.label("Lr")
        a.raw(f"{chk}:"); a.no_inject += 1
        r = list(regs); ops = []
        ops.append(f"v_max3_u32 v{tmp}, v{r[0]}, v{r[1]}, v{r[2]}"); r = r[3:]
        while len(r) >= 2: ops.append(f"v_max3_u32 v{tmp}, v{tmp}, v{r[0]}, v{r[1]}"); r = r[2:]
        if r: ops.append(f"v_max_u32 v{tmp}, v{tmp}, v{r[0]}")
        ops.append(f"v_cmp_eq_u32 vcc, -1, v{tmp}")
        spec = list(spec)
        k = -(-len(ops) // max(1, len(spec)))
        while ops or spec:
            if spec: a.I(spec.pop(0))
            for t in ops[:k]: a.I(t)
            ops = ops[k:]
        if vmask: a.I(f"s_and_b64 vcc, vcc, {emask}")
        self.inl = self.c.get("inl", 0) and not a.inject
        if not (self.c.get("novalid") and a.inject): a.I(f"s_cbranch_vccz {rt}k" if self.inl else f"s_cbranch_vccnz {rt}")
        if self.c.get("narrow", 3) & (2 if emask else 1):
            loads = ["s_mov_b64 exec, vcc"] + [t for t in loads if not t.startswith("s_mov")] + ["s_mov_b64 exec, -1"]
        self.retry_block(rt, chk, loads, sleep); a.no_inject -= 1
        self.fs("valid")
    def lsleep(self): return None if self.a.inject else self.c.get('lsleep', 0)
    def retry_block(self, rt, chk, loads, sleep=None):
        a = self.a
        if sleep is None: sleep = self.c.get("sleep", 0)
        blk = ([f"  s_sleep {sleep}"] if sleep else []) + ["  " + t for t in loads]
        blk += [f"  s_add_u32 s{sRetry}, s{sRetry}, 1", f"  s_cmp_gt_u32 s{sRetry}, {self.c.get('spin', 400000)}", "  s_cbranch_scc1 L_end",
                "  s_waitcnt vmcnt(0)", f"  s_branch {chk}"]
        if self.inl: a.out += blk + [f"{rt}k:"]
        elif a.inject: a.tail += [f"{rt}:"] + blk
        else: self.hot += [f"{rt}:"] + blk
        self.inl = False
    def setup(self):
        a = self.a; I = a.I
        I(f"s_cmp_ge_u32 s{sWG}, 256\ns_cbranch_scc1 L_end")
        I(f"s_load_dwordx16 s[32:47], s[0:1], 0\ns_load_dwordx8 s[48:55], s[0:1], 64\ns_load_dwordx2 s[56:57], s[0:1], 96")
        if self.c.get("diag") or self.c.get("hold"): I(f"s_memrealtime s[96:97]")
        I(f"v_lshrrev_b32 v8, 6, v0\nv_and_b32 v0, 63, v0\nv_readfirstlane_b32 s{sWave}, v8")
        I(f"s_and_b32 s{sT0}, s{sWG}, 7\ns_lshl_b32 s{sT0}, s{sT0}, 2\ns_lshr_b32 s{sT1}, s{sWG}, 3\ns_and_b32 s{sT1}, s{sT1}, 3\ns_add_u32 s{sH}, s{sT0}, s{sT1}\ns_lshr_b32 s{sS}, s{sWG}, 5")
        I(f"v_mul_u32_u24 v8, 43, v0\nv_lshrrev_b32 v8, 10, v8\nv_mul_u32_u24 v9, 24, v8\nv_sub_u32 v9, v0, v9\nv_mul_u32_u24 v8, 0x3000, v8\nv_lshl_add_u32 v{vWq0}, v9, 4, v8")
        I(f"v_add_u32 v10, 60, v0\nv_mul_u32_u24 v8, 43, v10\nv_lshrrev_b32 v8, 10, v8\nv_mul_u32_u24 v9, 24, v8\nv_sub_u32 v9, v10, v9\nv_mul_u32_u24 v8, 0x3000, v8\nv_lshl_add_u32 v{vWq1}, v9, 4, v8")
        I(f"s_mul_i32 s{sT0}, s{sS}, {80 * 12288}\ns_mul_i32 s{sT1}, s{sWave}, {20 * 12288}\ns_add_u32 s{sT0}, s{sT0}, s{sT1}\ns_mul_i32 s{sT1}, s{sH}, 384\ns_add_u32 s{sWqRow}, s{sT0}, s{sT1}")
        I(f"s_mul_i32 s{sT0}, s{sH}, {192 * 1280}\ns_mul_i32 s{sT1}, s{sWave}, {48 * 1280}\ns_add_u32 s{sT0}, s{sT0}, s{sT1}\ns_mul_i32 s{sT1}, s{sS}, 160\ns_add_u32 s{sWoRow}, s{sT0}, s{sT1}")
        I(f"s_mul_i32 s{sLdsW}, s{sWave}, 7680\ns_mov_b32 s{m60}, -1\ns_mov_b32 s{m60+1}, 0x0fffffff\ns_mov_b32 s{WT+3}, 0x20000\ns_mov_b32 s{sRetry}, 0")
        I(f"v_and_b32 v8, 15, v0\nv_lshrrev_b32 v9, 4, v0")
        I(f"v_lshrrev_b32 v10, 1, v8\nv_mul_u32_u24 v10, 384, v10\nv_and_b32 v11, 1, v8\nv_lshl_add_u32 v11, v9, 1, v11\nv_lshl_add_u32 v{vKoff}, v11, 4, v10")
        I(f"v_mul_u32_u24 v10, 768, v9\nv_lshl_add_u32 v{vVoff}, v8, 4, v10")
        I(f"s_mul_i32 s{sT0}, s{sH}, {HSTR}\ns_mul_i32 s{sT1}, s{sS}, {128 * 384}\ns_add_u32 s{sT1}, s{sT1}, s{sT0}\ns_mul_i32 s{sT2}, s{sWave}, {32 * 384}\ns_add_u32 s{sT1}, s{sT1}, s{sT2}\ns_add_u32 s{sOffG}, s{sT1}, {3072 * 384}")
        I(f"s_mul_i32 s{sT1}, s{sS}, {512 * 384}\ns_add_u32 s{sT1}, s{sT1}, s{sT0}\ns_mul_i32 s{sT2}, s{sWave}, {128 * 384}\ns_add_u32 s{sOffP}, s{sT1}, s{sT2}")
        I(f"s_mul_i32 s{sLdsVS}, s{sWave}, 6144\ns_add_u32 s{sLdsVS}, s{sLdsVS}, {VS}")
        I(f"s_mov_b32 s{XO+2}, 2560\ns_mov_b32 s{XO+3}, 0x20000\ns_mul_i32 s{sT0}, s{sS}, 160\nv_lshlrev_b32 v7, 2, v0\nv_min_u32 v7, 156, v7")
        for srd, o in ((KA, sOffG), (VA, sOffG), (KB, sOffP), (VB, sOffP)): I(f"s_sub_u32 s{srd+2}, {KV_BYTES}, s{o}\ns_mov_b32 s{srd+3}, 0x20000")
        I(f"s_mov_b32 s{WS+2}, {WS_BYTES}\ns_mov_b32 s{WS+3}, 0x20000")
        I(f"s_mul_i32 s{sH1grp}, s{sH}, {H1_H}\ns_mul_i32 s{sT1}, s{sS}, {H1_S}\ns_add_u32 s{sH1own}, s{sH1grp}, s{sT1}" + (f"\ns_mul_i32 s{sT1}, s{sS}, 768\ns_add_u32 s{sH1c}, s{sH1grp}, s{sT1}" if COMPACT1 else ""))
        I(f"s_mul_i32 s{sH2grp}, s{sH}, {H2_H}\ns_add_u32 s{sH2grp}, s{sH2grp}, {H2}\ns_mul_i32 s{sT1}, s{sS}, {H2_S}\ns_add_u32 s{sH2own}, s{sH2grp}, s{sT1}")
        I(f"s_mul_i32 s{sH3grp}, s{sS}, {H3_S}\ns_add_u32 s{sH3grp}, s{sH3grp}, {H3}\ns_mul_i32 s{sT1}, s{sH}, {H3_H}\ns_add_u32 s{sH3own}, s{sH3grp}, s{sT1}")
        self.clear_prep([[("P", 0)], [("C", 0)], [("P", 4)], [("2", 0), ("3", 0)]])
        a.wait(lg=0)
        if self.c.get("diag"): I(f"v_mov_b32 v{vStamp}, 0\nv_writelane_b32 v{vStamp}, s96, 0"); self.nstamp = 1
        def srds(l):
            for srd, p, o in l: I(f"s_add_u32 s{srd}, s{p}, s{o}\ns_addc_u32 s{srd+1}, s{p+1}, 0")
        def small():
            I(f"s_mov_b32 s{WS}, s{pWS}\ns_mov_b32 s{WS+1}, s{pWS+1}\ns_mov_b32 s{XO}, s{pX}\ns_mov_b32 s{XO+1}, s{pX+1}")
            self.clear_issue("clr")
            if USE_HOT == 3: self.probe_store()
            I(f"buffer_load_dword v12, v7, {s4(XO)}, s{sT0} offen\nbuffer_load_dword v13, v7, {s4(XO)}, s{sT0} offen offset:1280")
        n0, n1 = self.c.get("I", (12, 28))
        srds([(KA, pKA, sOffG)])
        self.stream(min(n0, 12), paced=False)
        srds([(VA, pVA, sOffG), (KB, pKB, sOffP), (VB, pVB, sOffP)])
        self.stream_to(n0, paced=False)
        small()
        self.stream_to(n1, paced=False)
        if self.c.get("st0"):
            self.stamp("end")
            n = len(a.vm.ent)
            for k in (1, 3, 6, 9, 12, 15, 18, n): a.wait(vm=n - k); self.stamp("end")
        if self.c.get("cpf") == 1: self.code_prefetch("L_pf0", "L_pf9")
        I(f"v_mul_u32_u24 v10, 26, v0\nv_lshrrev_b32 v10, 8, v10\nv_mul_u32_u24 v11, 10, v10\nv_sub_u32 v11, v0, v11\nv_mul_u32_u24 v10, 1280, v10\nv_lshl_add_u32 v{vWo}, v11, 4, v10")
        I("v_and_b32 v10, 1, v0\nv_cmp_eq_u32 vcc, 1, v10\nv_mov_b32 v11, 0xffff\nv_mov_b32 v20, 0xffff0000\nv_cndmask_b32 v11, v11, v20, vcc\nv_bfe_u32 v10, v0, 1, 2")
        for j in range(4): I(f"v_cmp_eq_u32 vcc, {j}, v10\nv_cndmask_b32 v{vMask+j}, 0, v11, vcc")
        for m, lo, hi in ((mODD, 0xaaaaaaaa, 0xaaaaaaaa), (mRG1, 0xffff0000, 0), (mRG2, 0, 0xffff), (mRG3, 0, 0xffff0000), (mWOST, 0x5555, 0x5555), (mN10, 0x03ff03ff, 0x03ff03ff), (mBIT1, 0xcccccccc, 0xcccccccc), (mL63, 0, 0x80000000)) + (((mQ13, 0x1fff1fff, 0x1fff1fff),) if COMPACT1 else ()):
            I(f"s_mov_b32 s{m}, {lo:#x}\ns_mov_b32 s{m+1}, {hi:#x}")
        I(f"s_cmp_eq_u32 s{sWave}, 3\ns_cselect_b64 {sp(mW3)}, -1, 0\ns_min_u32 s{sW2}, s{sWave}, 2")
        if H2_S == 384:
            I(f"s_mul_i32 s{sT0}, s{sS}, -368\ns_add_u32 s{sT0}, s{sT0}, 3072\ns_lshl_b32 s{sPub2}, s{sWave}, 7\ns_cmp_eq_u32 s{sWave}, 3\ns_cselect_b32 s{sPub2}, s{sT0}, s{sPub2}")
            I(f"s_mov_b32 s{mPub2}, 0x55555555\ns_cselect_b32 s{mPub2+1}, 0, s{mPub2}\ns_cselect_b32 s{mPub2}, 0x55, s{mPub2}")
        if self.c.get("nost3"): I(f"s_cmp_lt_u32 s{sWave}, 3\ns_cselect_b32 s{mWOST+1}, 0x5555, 0\ns_cselect_b32 s{mWOST}, 0x5555, 0")
        if H3_H == 160: I(f"s_cmp_lt_u32 s{sWave}, 2\ns_cselect_b32 s{mWOST+1}, 0x5555, 0")
        I(f"s_getreg_b32 s{sXcc}, hwreg(HW_REG_XCC_ID, 0, 4)\ns_add_u32 s{sXcc}, s{sXcc}, 1")
        for r, m, base in ((sXROWw, 160, XROW), (sYw, 320, Y), (sQw, 96, QB)): I(f"s_mul_i32 s{r}, s{sWave}, {m}\ns_add_u32 s{r}, s{r}, {base}")
        I(f"v_add_u32 v10, s{sXROWw}, v7\nv_add_u32 v11, {ONES}, v7\nv_mov_b32 v20, 0x3f803f80")
        I("ds_write_b32 v11, v20\nds_write_b32 v10, v12\nds_write_b32 v10, v13 offset:640")
        I(f"s_mov_b32 s{XO}, s{pOUT}\ns_mov_b32 s{XO+1}, s{pOUT+1}")
        if COMPACT1: I(f"s_mov_b32 s{mPub1}, -1\ns_cmp_eq_u32 s{sWave}, 0\ns_cselect_b32 s{mPub1+1}, 0xfffff, 0\ns_or_b32 s{mPub1+1}, s{mPub1+1}, 0xffff")
    def clear_prep(self, jobs):
        I = self.a.I
        I("v_mov_b32 v16, -1\nv_mov_b32 v17, -1\nv_mov_b32 v18, -1\nv_mov_b32 v19, -1\nv_lshlrev_b32 v14, 4, v0")
        def seg(k, inst, hi):
            if k == "P" and c1(inst): return sH1c, inst * H1_I, (0x1ffff if hi else -1)
            if k in "PC": return h1(inst)[0], h1(inst)[2] + (1024 if k == "C" else 0), -1
            if k == "2": return h2(inst)[0], h2(inst)[2] - 512 * hi, (0x1ffffff if H2_S == 384 else -1)
            return h3(inst)[0], h3(inst)[2] - 512 * hi, (0x3ff if H3_H == 160 else 0xffff if self.c.get('clr256') else 0xfff)
        for w, job in enumerate(jobs):
            lo = seg(*job[0], 0); hi = seg(*job[-1], 1)
            for (r, o, m), dst, md in ((lo, sT1, sClr), (hi, sT2, sClr + 1)):
                if w == 0: I(f"s_add_u32 s{dst}, s{r}, {o & 0xffffffff}\ns_mov_b32 s{md}, {m}")
                else: I(f"s_add_u32 s{sOff}, s{r}, {o & 0xffffffff}\ns_cmp_eq_u32 s{sWave}, {w}\ns_cselect_b32 s{dst}, s{sOff}, s{dst}\ns_cselect_b32 s{md}, {m}, s{md}")
        self.off_val = None
        I(f"v_mov_b32 v15, s{sT1}\nv_mov_b32 v20, s{sT2}\nv_cmp_lt_u32 vcc, 31, v0\nv_cndmask_b32 v15, v15, v20, vcc\nv_add_u32 v15, v15, v14")
        if any(k == "P" and c1(i) for job in jobs for k, i in job):
            I(f"s_mov_b32 s{sT1}, 0\ns_mov_b32 s{sT2}, 0")
            for w, job in enumerate(jobs):
                if job[0][0] == "P" and c1(job[0][1]): I(f"s_cmp_eq_u32 s{sWave}, {w}\ns_cselect_b32 s{sT2}, 0x10000, s{sT2}")
            self.off_val = None; self.a.no_inject += 1
            I(f"s_mul_i32 s{sOff}, s{sS}, -752\ns_add_u32 s{sOff}, s{sOff}, {6144 - 768}\nv_add_u32 v20, s{sOff}, v15\nv_cndmask_b32 v15, v15, v20, {sp(sT1)}")
            self.a.no_inject -= 1
        if H2_S == 384 and any(k == "2" for job in jobs for k, _ in job):
            I(f"s_mov_b32 s{sT1}, 0\ns_mov_b32 s{sT2}, 0")
            for w, job in enumerate(jobs):
                for (k, _), dst in ((job[0], sT1), (job[-1], sT2)):
                    if k == "2": I(f"s_cmp_eq_u32 s{sWave}, {w}\ns_cselect_b32 s{dst}, 0x1000000, s{dst}")
            self.off_val = None; self.a.no_inject += 1
            I(f"s_mul_i32 s{sOff}, s{sS}, -368\ns_add_u32 s{sOff}, s{sOff}, {3072 - 384}\nv_add_u32 v20, s{sOff}, v15\nv_cndmask_b32 v15, v15, v20, {sp(sT1)}")
            self.a.no_inject -= 1
    def clear_issue(self, tag, local_ok=False):
        I = self.a.I
        I(f"s_mov_b64 exec, {sp(sClr)}")
        self.publish(f"buffer_store_dwordx4 v[16:19], v15, {s4(WS)}, 0 offen {{pol}}", local_ok, tag=tag)
        I("s_mov_b64 exec, -1")
    def tlb_touch(self):
        a = self.a; I = a.I
        ent = []
        for p, o, span in ((pWQA, sWqRow, 20 * 12288), (pKA, sOffG, 12288), (pVA, sOffG, 12288), (pWOA, sWoRow, 48 * 1280), (pWQB, sWqRow, 20 * 12288),
                           (pKB, sOffP, 49152), (pWOB, sWoRow, 48 * 1280), (pVB, sOffP, 49152)):
            for b in range(2 if o in (sOffG, sOffP) else 1): ent.append((p, o, b * BSTR))
        if self.c["tlb"] > 1:
            ent += [(pWS, None, 0), (pWS, None, 2 << 20), (pWS, None, 4 << 20), (pDBG, None, 0), (pOUT, None, 0)]
        for i, (p, o, c) in enumerate(ent):
            if o is None: I(f"s_add_u32 s{sT1}, s{p}, {c}\ns_addc_u32 s{sT2}, s{p+1}, 0")
            else:
                I(f"s_add_u32 s{sT1}, s{p}, s{o}\ns_addc_u32 s{sT2}, s{p+1}, 0")
                if c: I(f"s_add_u32 s{sT1}, s{sT1}, {c}\ns_addc_u32 s{sT2}, s{sT2}, 0")
            if i == 0: I(f"v_mov_b32 v14, s{sT1}\nv_mov_b32 v15, s{sT2}")
            else: I(f"v_writelane_b32 v14, s{sT1}, {i}\nv_writelane_b32 v15, s{sT2}, {i}")
        I(f"s_mov_b64 exec, {(1 << len(ent)) - 1}\nglobal_load_dword v250, v[14:15], off nt\ns_mov_b64 exec, -1")
    def code_prefetch(self, lo, hi):
        a = self.a; I = a.I
        l = a.label("Lp")
        I(f"s_getpc_b64 {sp(sT1)}"); a.raw(f"{l}:")
        I(f"s_add_u32 s{sT1}, s{sT1}, {lo}-{l}\ns_addc_u32 s{sT2}, s{sT2}, 0")
        I(f"s_lshr_b32 s{sT0}, s{sWG}, 3\ns_lshl_b32 s{sT0}, s{sT0}, 2\ns_add_u32 s{sT0}, s{sT0}, s{sWave}\ns_lshl_b32 s{sT0}, s{sT0}, 13")
        I(f"v_lshl_add_u32 v30, v0, 7, s{sT0}\nv_cmp_gt_u32 vcc, {hi}-{lo}, v30\ns_mov_b32 m0, {JUNK}")
        I("s_and_b64 exec, vcc, -1"); a.skip_begin("s_cbranch_execz")
        I(f"global_load_lds_dword v30, {sp(sT1)}")
        a.skip_end()
        I("s_mov_b64 exec, -1")
    def probe_store(self):
        a = self.a; I = a.I
        I(f"s_add_u32 s{sX1own}, s{WS}, {(8 << 20) - 1}\ns_and_b32 s{sX1own}, s{sX1own}, 0xffe00000\ns_sub_u32 s{sX1own}, s{sX1own}, s{WS}")
        I(f"s_lshr_b32 s{sT1}, s{sWG}, 4\ns_lshl_b32 s{sT1}, s{sT1}, 14\ns_bfe_u32 s{sT2}, s{sWG}, 0x10003\ns_lshl_b32 s{sT2}, s{sT2}, 12\ns_add_u32 s{sT1}, s{sT1}, s{sT2}")
        I(f"s_and_b32 s{sT2}, s{sWG}, 7\ns_lshl_b32 s{sT2}, s{sT2}, 7\ns_add_u32 s{sT1}, s{sT1}, s{sT2}\ns_add_u32 s{sT1}, s{sT1}, {X3 + 3072}\ns_add_u32 s{sX3g1}, s{sX1own}, s{sT1}")
        I(f"s_lshr_b32 s{sT1}, s{sWG}, 6\ns_lshl_b32 s{sT1}, s{sT1}, 14\ns_and_b32 s{sT2}, s{sWG}, 63\ns_lshl_b32 s{sT2}, s{sT2}, 7\ns_add_u32 s{sT1}, s{sT1}, s{sT2}\ns_add_u32 s{sT1}, s{sT1}, {XP}\ns_add_u32 s{sX1own}, s{sX1own}, s{sT1}")
        I(f"s_cmp_ge_u32 s{sWG}, {self.c.get('NV', 32)}\ns_cselect_b32 s{sT1}, 1, s{sWave}\ns_cmp_lg_u32 s{sT1}, 0"); a.skip_begin("s_cbranch_scc1")
        I(f"v_and_b32 v15, 8, v0\nv_lshlrev_b32 v15, 10, v15\nv_add_u32 v15, s{sX1own}, v15\nv_mov_b32 v20, s{sX3g1}\nv_cmp_lt_u32 vcc, 15, v0\nv_cndmask_b32 v15, v15, v20, vcc")
        I(f"v_and_b32 v20, 7, v0\nv_lshl_add_u32 v15, v20, 4, v15\ns_mov_b64 exec, 0xffffff")
        I(f"buffer_store_dwordx4 v[16:19], v15, {s4(WS)}, 0 offen sc1", tag="prb")
        I("s_mov_b64 exec, -1")
        a.skip_end()
    def arrive(self):
        a = self.a; I = a.I
        I(f"s_cmp_lg_u32 s{sWave}, 0"); a.skip_begin("s_cbranch_scc1")
        src = sXcc
        if USE_HOT == 3:
            NV = self.c.get("NV", 32)
            I(f"s_mov_b32 s{sT2}, s{sXcc}\ns_cmp_ge_u32 s{sWG}, {NV}"); a.skip_begin("s_cbranch_scc1")
            a.wait_tag("prb")
            I(f"s_load_dword s{sT1}, {sp(WS)}, s{sX3g1}"); a.wait(lg=0)
            I(f"s_add_u32 s{sT0}, s{sX1own}, 8192\ns_memtime s[0:1]"); a.wait(lg=0)
            I(f"s_load_dword s{sT1}, {sp(WS)}, s{sX1own}"); a.wait(lg=0)
            I(f"s_memtime {sp(sX3g0)}"); a.wait(lg=0)
            I(f"s_load_dword s{sT1}, {sp(WS)}, s{sT0}"); a.wait(lg=0)
            I(f"s_memtime {sp(sX1grp)}"); a.wait(lg=0)
            I(f"s_sub_u32 s0, s{sX3g0}, s0\ns_sub_u32 s1, s{sX1grp}, s{sX3g0}\ns_cmp_gt_u32 s0, s1\ns_cselect_b32 s{sT0}, 0x80, 0")
            I(f"s_sub_u32 s{sT1}, s{sXcc}, 1\ns_and_b32 s{sT1}, s{sT1}, 4\ns_lshl_b32 s{sT1}, s{sT1}, 5\ns_xor_b32 s{sT0}, s{sT0}, s{sT1}\ns_or_b32 s{sT2}, s{sT0}, s{sXcc}")
            a.skip_end()
            src = sT2
        I(f"s_and_b32 s{sT0}, s{sWG}, 3\ns_lshl_b32 s{sT0}, s{sT0}, 3\ns_lshl_b32 s{sT0}, s{src}, s{sT0}\ns_and_b32 s{sT1}, s{sWG}, 0xfc")
        I(f"v_mov_b32 v8, s{sT1}\nv_mov_b32 v9, s{sT0}\ns_mov_b64 exec, 1")
        I(f"global_atomic_add v8, v9, {sp(pDBG)} sc1\ns_mov_b64 exec, -1")
        a.skip_end()
    def handshake(self, between):
        a = self.a; I = a.I
        I("v_lshlrev_b32 v7, 2, v0")
        ld = f"global_load_dword v8, v7, {sp(pDBG)} sc1"
        I(ld); last = len(a.vm.ent) - 1
        between()
        n = a.vm.need(last)
        if n is not None: a.wait(vm=n)
        chk = a.label("Lc"); rt = a.label("Lr")
        a.raw(f"{chk}:"); a.no_inject += 1
        I("v_subrev_u32 v9, 0x01010101, v8\nv_not_b32 v10, v8\nv_and_b32 v9, v9, v10\nv_and_b32 v9, 0x80808080, v9\nv_cmp_ne_u32 vcc, 0, v9")
        I(f"s_cbranch_vccnz {rt}")
        self.retry_block(rt, chk, [ld]); a.no_inject -= 1
        if USE_HOT: self.sides()
        I(f"s_and_b32 s{sT0}, s{sWG}, 3\ns_lshl_b32 s{sT0}, s{sT0}, 3\nv_lshrrev_b32 v8, s{sT0}, v8\nv_and_b32 v8, 0xff, v8")
        I(f"s_bfe_u32 s{sT0}, s{sWG}, 0x30002\nv_and_b32 v9, 7, v0\nv_cmp_eq_u32 {sp(sT1)}, s{sT0}, v9\nv_cmp_ne_u32 vcc, s{sXcc}, v8")
        I(f"s_and_b64 vcc, vcc, {sp(sT1)}\ns_cmp_eq_u64 vcc, 0\ns_cselect_b32 s{sLocal}, 1, 0")
    def sides(self):
        a = self.a; I = a.I; a.no_inject += 1
        if USE_HOT == 3:
            I(f"s_mov_b32 s{sOffW}, 0")
            for k in range(4):
                I(f"v_bfe_u32 v9, v8, {8 * k + 7}, 1\nv_cmp_ne_u32 vcc, 0, v9\ns_bcnt1_i32_b64 s{sT0}, vcc\ns_add_u32 s{sOffW}, s{sOffW}, s{sT0}")
            I("v_and_b32 v8, 0x7f7f7f7f, v8")
        if USE_HOT == 2: I(f"s_mov_b32 s{sT1}, 0\ns_mov_b32 s{sT2}, 0x01010101")
        else:
            I(f"v_readlane_b32 s{sT1}, v8, 0\nv_readlane_b32 s{sT2}, v8, 1\nv_mov_b32 v9, s{sT1}\nv_mov_b32 v10, s{sT2}\nv_cndmask_b32 v9, v9, v10, {sp(mODD)}\nv_cmp_ne_u32 vcc, v8, v9")
            I(f"s_and_b32 s{sT0}, s{sWG}, 7\ns_lshl_b32 s{sT0}, s{sT0}, 3\ns_lshr_b64 s[0:1], {sp(sT1)}, s{sT0}\ns_and_b32 s0, s0, 0xff\ns_cmp_eq_u32 s0, s{sXcc}\ns_cselect_b64 vcc, vcc, -1")
            I(f"s_sub_u32 s{sT1}, s{sT1}, 0x01010101\ns_sub_u32 s{sT2}, s{sT2}, 0x01010101\ns_lshr_b32 s{sT1}, s{sT1}, 2\ns_lshr_b32 s{sT2}, s{sT2}, 2\ns_and_b32 s{sT1}, s{sT1}, 0x01010101\ns_and_b32 s{sT2}, s{sT2}, 0x01010101")
            I(f"s_xor_b32 s{sT0}, s{sT1}, s{sT2}\ns_cmp_eq_u32 s{sT0}, 0x01010101\ns_cselect_b32 s{sLocal}, 1, 0\ns_cmp_eq_u64 vcc, 0\ns_cselect_b32 s{sLocal}, s{sLocal}, 0")
            if USE_HOT == 3: I(f"s_cmp_gt_u32 s{sOffW}, {self.c.get('NV', 32) // 2}\ns_cselect_b32 s{sT0}, 0x01010101, 0\ns_xor_b32 s{sT1}, s{sT1}, s{sT0}\ns_xor_b32 s{sT2}, s{sT2}, s{sT0}")
            if self.c.get("pol"): I(f"s_xor_b32 s{sT1}, s{sT1}, 0x01010101\ns_xor_b32 s{sT2}, s{sT2}, 0x01010101")
            I(f"s_cmp_lg_u32 s{sLocal}, 0\ns_cselect_b32 s{sT1}, s{sT1}, 0\ns_cselect_b32 s{sT2}, s{sT2}, 0x01010101")
        I(f"s_mov_b64 s[40:41], {sp(sT1)}")
        def side(dst, k): I(f"s_lshr_b64 s[0:1], {sp(sT1)}, s{k}\ns_and_b32 s{dst}, s0, 1\ns_lshl_b32 s{dst}, s{dst}, 13")
        I(f"s_add_u32 s{sOffP}, s{WS}, {(8 << 20) - 1}\ns_and_b32 s{sOffP}, s{sOffP}, 0xffe00000\ns_sub_u32 s{sOffP}, s{sOffP}, s{WS}")
        I(f"s_and_b32 s{sT0}, s{sWG}, 7\ns_lshl_b32 s{sT0}, s{sT0}, 3"); side(sOffG, sT0)
        I(f"s_add_u32 s{sOffG}, s{sOffG}, s{sOffP}")
        I(f"s_and_b32 s{sT0}, s{sH}, 15\ns_lshl_b32 s{sX1grp}, s{sT0}, 14\ns_add_u32 s{sX1grp}, s{sX1grp}, s{sOffG}\ns_lshl_b32 s0, s{sS}, 10\ns_add_u32 s{sX1own}, s{sX1grp}, s0")
        I(f"s_lshr_b32 s0, s{sT0}, 1\ns_lshl_b32 s0, s0, 14\ns_and_b32 s1, s{sT0}, 1\ns_lshl_b32 s1, s1, 12\ns_add_u32 s0, s0, s1\ns_add_u32 s0, s0, {X2}\ns_add_u32 s{sX2grp}, s0, s{sOffG}\ns_mul_i32 s0, s{sS}, {H2_S}\ns_add_u32 s{sX2own}, s{sX2grp}, s0")
        I(f"s_lshr_b32 s0, s{sS}, 1\ns_lshl_b32 s0, s0, 14\ns_and_b32 s1, s{sS}, 1\ns_lshl_b32 s1, s1, 12\ns_add_u32 s0, s0, s1\ns_add_u32 s{sOffW}, s0, {X3}")
        I(f"s_mul_i32 s0, s{sT0}, {H3_H}\ns_add_u32 s0, s0, s{sOffW}\ns_add_u32 s{sX3own}, s0, s{sOffG}\ns_add_u32 s{sOffW}, s{sOffW}, s{sOffP}")
        for j, dst in enumerate((sX3g0, sX3g1)):
            I(f"s_lshl_b32 s{sT0}, s{sWave}, 4\ns_add_u32 s{sT0}, s{sT0}, {8 * j}"); side(dst, sT0)
            I(f"s_lshl_b32 s0, s{sWave}, 1\ns_add_u32 s0, s0, {j}\ns_and_b32 s0, s0, 3\ns_mul_i32 s0, s0, {4 * H3_H}\ns_add_u32 s{dst}, s{dst}, s0\ns_add_u32 s{dst}, s{dst}, s{sOffW}")
        a.no_inject -= 1
    WQB = [(24, 28, 32), (34, 38, 42), (44, 48, 52)]
    def wq_pre(self, ty):
        a = self.a; I = a.I
        I(f"v_bfe_u32 v7, v0, 2, 2\nv_lshrrev_b32 v9, 4, v0\nv_lshl_add_u32 v8, v9, 3, v7\nv_lshl_add_u32 v7, v9, 2, v7")
        I(f"v_and_b32 v9, 3, v0\nv_lshlrev_b32 v9, 3, v9\ns_mul_i32 s{sT0}, s{sWave}, 96\ns_add_u32 s{sT0}, s{sT0}, {WQ[ty]}\nv_add_u32 v9, s{sT0}, v9")
        I(f"s_movk_i32 s{sT0}, 384\nv_mad_u32_u24 v8, v8, s{sT0}, v9\nv_mad_u32_u24 v7, v7, s{sT0}, v9")
        for T, (b0, b1, b2) in enumerate(self.WQB):
            for t, r in ((0, b0), (1, b1)):
                I(f"ds_read_b64_tr_b16 {v2(r)}, v8 offset:{12288 * t + 32 * T}\nds_read_b64_tr_b16 {v2(r+2)}, v8 offset:{12288 * t + 1536 + 32 * T}")
            I(f"ds_read_b64_tr_b16 {v2(b2)}, v7 offset:{24576 + 32 * T}")
    def wq_addr(self, b, L):
        I = self.a.I
        I(f"v_mov_b32 v22, s{sXROWw}\nv_mov_b32 v23, {ONES - 640 * b}")
        I(f"v_cndmask_b32 v23, v22, v23, {sp(mODD)}\nv_lshrrev_b32 v21, 4, v0\nv_lshl_add_u32 v22, v21, 4, v23\nv_lshl_add_u32 v23, v21, 3, v23")
    def wq_main(self, b, L, local_ok=True, hoisted=False, hoist=False):
        a = self.a; a.comment(f"---- row {b} layer {L}: q projection partial"); I = a.I; inst = 4 * b + L; needC = inst < 2
        if not hoisted: self.wq_addr(b, L)
        I(f"ds_read_b128 v[12:15], v22 offset:{640 * b}\nds_read_b128 v[16:19], v22 offset:{640 * b + 64}\nds_read_b64 v[20:21], v23 offset:{640 * b + 128}")
        if c1(inst):
            I(f"s_mul_i32 s{sT0}, s{sWave}, 192\nv_lshl_add_u32 v7, v0, 2, s{sT0}\ns_mul_i32 s{sT0}, s{sS}, -752\ns_add_u32 s{sT0}, s{sT0}, {6144 - 192}\nv_lshl_add_u32 v23, v0, 2, s{sT0}")
            I(f"v_cndmask_b32 v7, v7, v23, {sp(mRG3)}\ns_add_u32 s{sOffP}, s{sH1c}, {inst * H1_I}")
        else: I(f"s_lshl_b32 s{sT0}, s{sWave}, 8\nv_lshl_add_u32 v7, v0, 2, s{sT0}\ns_add_u32 s{sOffP}, s{h1(inst)[0]}, {h1(inst)[2]}")
        if hoist: self.qg_addr(b, L)
        D = [8, 24, 28]
        for T, (b0, b1, b2) in enumerate(self.WQB):
            I(f"v_mfma_f32_16x16x32_bf16 {v4(D[T])}, v[12:15], {v4(b0)}, 0")
            I(f"v_mfma_f32_16x16x32_bf16 {v4(D[T])}, v[16:19], {v4(b1)}, {v4(D[T])}")
        I("v_mfma_f32_16x16x32_bf16 v[34:37], v[12:15], v[12:15], 0\nv_mfma_f32_16x16x32_bf16 v[34:37], v[16:19], v[16:19], v[34:37]")
        for T, (b0, b1, b2) in enumerate(self.WQB):
            I(f"v_mfma_f32_16x16x16_bf16 {v4(D[T])}, v[20:21], {v2(b2)}, {v4(D[T])}")
        I("v_mfma_f32_16x16x16_bf16 v[34:37], v[20:21], v[20:21], v[34:37]")
        for r in range(2 if needC else 1):
            I(f"v_cndmask_b32 v{22+r}, v{8+r}, v{24+r}, {sp(mRG1)}\nv_cndmask_b32 v{22+r}, v{22+r}, v{28+r}, {sp(mRG2)}\nv_cndmask_b32 v{22+r}, v{22+r}, v34, {sp(mRG3)}\nv_min_u32 v{22+r}, -2, v{22+r}")
            if c1(inst): I(f"s_mov_b64 exec, {sp(mPub1)}")
            self.publish(f"buffer_store_dword v{22+r}, v7, {s4(WS)}, s{sOffP} offen offset:{1024 * r} {{pol}}", local_ok)
            if c1(inst): I("s_mov_b64 exec, -1")
    def qg_addr(self, b, L):
        I = self.a.I
        if c1(4 * b + L):
            I(f"v_and_b32 v23, 15, v0\nv_lshrrev_b32 v54, 4, v0\nv_mul_u32_u24 v54, 768, v54\nv_lshl_add_u32 v54, v23, 4, v54\ns_mul_i32 s{sT0}, s{sWave}, 192\nv_add_u32 v54, s{sT0}, v54")
            I(f"s_add_u32 s{sOffG}, s{sH1grp}, {(4 * b + L) * H1_I}")
            return
        I(f"v_and_b32 v23, 15, v0\nv_lshrrev_b32 v54, 4, v0\nv_mul_u32_u24 v54, {h1(4 * b + L)[3]}, v54\nv_lshl_add_u32 v54, v23, 4, v54\ns_lshl_b32 s{sT0}, s{sWave}, 8")
        I(f"s_add_u32 s{sOffG}, s{h1(4 * b + L)[1]}, s{sT0}\ns_add_u32 s{sOffG}, s{sOffG}, {h1(4 * b + L)[2]}\ns_add_u32 s{sOffG2}, s{sOffG}, {4 * h1(4 * b + L)[3]}")
    def qg(self, b, L, between=None, hoisted=False, after=None, tail=False):
        a = self.a; a.comment(f"---- row {b} layer {L}: gather q partials, LayerNorm scale"); I = a.I; inst = 4 * b + L; needC = inst < 2; ty = L & 1
        if not hoisted: self.qg_addr(b, L)
        loads = [f"buffer_load_dwordx4 v[12:15], v54, {s4(WS)}, s{sOffG} offen sc1", f"buffer_load_dwordx4 v[16:19], v54, {s4(WS)}, s{sOffG2} offen sc1"]
        cc = c1(inst)
        if cc: loads = [f"buffer_load_dwordx4 v[12:15], v54, {s4(WS)}, s{sOffG} offen sc1", f"buffer_load_dwordx4 v[16:19], v36, {s4(WS)}, s{sOffG} offen sc1"]
        def addr2():
            I(f"v_add_u32 v36, 3072, v54\nv_and_b32 v37, 48, v0\nv_add_u32 v37, 6144, v37\ns_mov_b32 vcc_lo, 0x10001000\ns_mov_b32 vcc_hi, 0x10001000")
            I("v_cndmask_b32 v54, v54, v37, vcc\nv_add_u32 v37, 64, v37\nv_cndmask_b32 v36, v36, v37, vcc")
        if needC: loads += [f"buffer_load_dwordx4 v[20:23], v54, {s4(WS)}, s{sOffG} offen offset:1024 sc1", f"buffer_load_dwordx4 v[24:27], v54, {s4(WS)}, s{sOffG2} offen offset:1024 sc1"]
        def pre():
            I(f"v_and_b32 v32, 15, v0\nv_lshrrev_b32 v33, 4, v0\nv_and_b32 v34, 1, v33\nv_lshlrev_b32 v34, 1, v34\nv_lshrrev_b32 v28, 1, v33\nv_or_b32 v34, v34, v28\nv_lshl_add_u32 v34, v32, 2, v34")
            I(f"v_lshl_add_u32 v34, v34, 1, s{sQw}\nv_lshl_add_u32 v29, v0, 2, s{sCTw}")
            if not needC: I(f"ds_read_b32 v20, v29 offset:{1024 * ty}")
            self.q_addr(b)
            I(f"v_mov_b32 v35, {f32(1 / (640 * SCALE))}\nv_mov_b32 v32, {f32(1 / (640 * SCALE * SCALE))}\nv_mov_b32 v33, {f32(1e-5 / (SCALE * SCALE))}")
        first = hoisted and self.c.get('first', 3) & 2
        if cc: addr2()
        if first: pre()
        def shadow():
            if not first: pre()
            if tail and self.c.get("tq", 0): self.tail_addr(b, L)
            if tail and L == 2 and self.c.get("v2", 1):
                I(f"v_lshl_add_u32 v37, v0, 4, s{sLdsVS}")
                for c in range(3): I(f"ds_read_b128 {v4(vU + 2 + 4 * c)}, v37 offset:{1024 * c}")
            if between: between()
        self.gather(loads, range(12, 28 if needC else 20), 28, between=shadow, sleep=self.lsleep(), emask=sp(mQ13) if cc else None, vmask=cc)
        if after: after()
        def red(r):
            I(f"v_pk_add_f32 {v2(r)}, {v2(r)}, {v2(r+4)}\nv_pk_add_f32 {v2(r+2)}, {v2(r+2)}, {v2(r+6)}")
            I(f"v_permlane32_swap_b32 v{r}, v{r+1}\nv_permlane32_swap_b32 v{r+2}, v{r+3}\nv_add_f32 v{r}, v{r}, v{r+1}\nv_add_f32 v{r+2}, v{r+2}, v{r+3}")
            I(f"v_permlane16_swap_b32 v{r}, v{r+2}\nv_add_f32 v{r}, v{r}, v{r+2}")
        red(12)
        I(f"v_readlane_b32 s{sT0}, v12, 12\nv_readlane_b32 s{sT1}, v12, 44")
        if needC: red(20); I(f"v_mul_f32 v20, {f32(SCALE)}, v20\nds_write_b32 v29, v20 offset:{1024 * ty}")
        I(f"s_mov_b32 exec_lo, 0x0fff0fff\ns_mov_b32 exec_hi, 0x0fff0fff")
        I(f"v_mul_f32 v15, s{sT1}, v35\nv_fma_f32 v14, s{sT0}, v32, v33\nv_fma_f32 v14, -v15, v15, v14\nv_max_f32 v14, v33, v14\nv_rsq_f32 v14, v14")
        I(f"v_fma_f32 v12, -v15, v20, v12\nv_mul_f32 v12, v12, v14\nv_cvt_pk_bf16_f32 v12, v12, v12")
        I(f"ds_write_b16 v34, v12 offset:{384 * b}\ns_mov_b64 exec, -1")
        a.barrier()
    def tail_addr(self, b, L):
        I = self.a.I; inst = 4 * b + L
        I(f"v_and_b32 v50, 15, v0\nv_lshlrev_b32 v50, 5, v50\nv_and_b32 v51, 16, v0\nv_add3_u32 v50, v50, v51, s{sATTw}\nv_mov_b32 v51, s{sSTATw}")
        self.wo_addr(b, L)
        I(f"v_mov_b32 v9, {STAT}\nv_lshl_add_u32 v10, v0, 2, s{sCOMBw}")
        if H2_S == 384: I(f"v_lshl_add_u32 v11, v0, 1, s{sPub2}\ns_add_u32 s{sOffP}, s{h2(inst)[0]}, {h2(inst)[2]}")
        else: I(f"s_lshl_b32 s{sT0}, s{sWave}, 7\nv_lshl_add_u32 v11, v0, 1, s{sT0}\ns_add_u32 s{sOffP}, s{h2(inst)[0]}, {h2(inst)[2]}")
    def q_addr(self, b):
        self.a.I(f"v_and_b32 v30, 1, v0\nv_lshrrev_b32 v31, 4, v0\nv_lshlrev_b32 v31, 5, v31\nv_lshl_add_u32 v30, v30, 4, v31\nv_add_u32 v30, {QB + 384 * b}, v30")
    def att(self, b, L, hook1=None, hook2=None, hookm=None, pre_bar=None, guard=False, hoist=False, qaddr=False):
        a = self.a; a.comment(f"---- row {b} layer {L}: attention"); I = a.I; ty = L & 1; G = 16 if ty else 4; Kn = "KB" if ty else "KA"; Vn = "VB" if ty else "VA"
        vM, vL = 52, 53
        if not qaddr: self.q_addr(b)
        for t in range(3): I(f"ds_read_b128 {v4(vQ + 4 * t)}, v30 offset:{128 * t}")
        def lds_v(g):
            a.wait_tag(("VS", b, g))
            I(f"v_lshl_add_u32 v54, v0, 4, s{sLdsVS}")
            for c in range(3): I(f"ds_read_b128 {v4(vU + 2 + 4 * c)}, v54 offset:{(g - 2) * 3072 + 1024 * c}")
        early = (not ty) and L == 2
        if early and not self.c.get('v2', 1): lds_v(2)
        if not (qaddr and self.c.get("tq", 0)):
            if self.c.get("fill", 1):
                if self.c.get("touch", 4) == 4 and L >= 2 and (b, L) != (0, 3): a.queue(lambda: self.touch_fill(b, L))
                a.queue(lambda: self.tail_addr(b, L)); a.drain(self.c.get("fill0", 8))
            else: self.tail_addr(b, L)
        def D(g): return vACC + 4 * (g % 3)
        dm = "row_mask:0xf"; NP = G // 2
        order = list(range(G)) if ty else ([2, 0, 1, 3] if early else [0, 1, 2, 3])
        at = {g: i for i, g in enumerate(order)}
        U = lambda g: vU + at[g] // 2
        bank = lambda g, hi: (1 << (at[g] & 1)) << (2 * hi)
        spread = []; got = {}
        for g in range(G + 2):
            K = SLOT[(Kn, g)] if g < G else None
            if K: self.check_slot(Kn, b, g)
            e = g - 2
            if K: I(f"v_mfma_f32_16x16x32_bf16 {v4(D(g))}, {K[0]}, {v4(vQ)}, 0")
            if spread and K: I(spread.pop(0))
            if g == 1 and self.c.get("fa"): self.fs("g1")
            if K: a.drain(2)
            if K: I(f"v_mfma_f32_16x16x32_bf16 {v4(D(g))}, {K[1]}, {v4(vQ+4)}, {v4(D(g))}")
            if K and e < 0: a.drain(2)
            if 0 <= e < G: I(f"v_add_f32_dpp v{U(e)}, v{D(e)}, v{D(e)+1} quad_perm:[0,0,2,2] {dm} bank_mask:{bank(e, 0):#x}")
            if K: I(f"v_mfma_f32_16x16x32_bf16 {v4(D(g))}, {K[2]}, {v4(vQ+8)}, {v4(D(g))}")
            if g == G + 1 and NP > 3: I(f"v_max3_f32 v{vM}, v{vU}, v{vU+1}, v{vU+2}\nv_max3_f32 v{vM}, v{vM}, v{vU+3}, v{vU+4}")
            if K and e < 0: a.drain(2)
            if hook1 and g < G: hook1(g)
            if 0 <= e < G: I(f"v_add_f32_dpp v{U(e)}, v{D(e)+2}, v{D(e)+3} quad_perm:[0,0,2,2] {dm} bank_mask:{bank(e, 1):#x}")
            if 0 <= e < G:
                got[U(e)] = got.get(U(e), 0) + 1
                if got[U(e)] == 2: spread.append(f"v_mov_b32_dpp v{U(e)}, v{U(e)} quad_perm:[1,1,3,3] {dm} bank_mask:0xf")
        a.fill = spread + a.fill
        if self.c.get("fa"): self.fs("p1")
        if hookm: hookm()
        if NP > 3: I(f"v_max3_f32 v{vM}, v{vM}, v{vU+5}, v{vU+6}\nv_max_f32 v{vM}, v{vM}, v{vU+7}")
        else: I(f"v_max_f32 v{vM}, v{vU}, v{vU+1}")
        red = ("row_ror:8 row_mask:0xf", "row_ror:4 row_mask:0xf", "row_bcast:15 row_mask:0xa", "row_bcast:31 row_mask:0xc")
        for x in red: I(f"v_max_f32_dpp v{vM}, v{vM}, v{vM} {x} bank_mask:0xf")
        I(f"v_readlane_b32 s{sM}, v{vM}, 63")
        def prob(p): return [f"v_subrev_f32 v{vU+p}, s{sM}, v{vU+p}", f"v_exp_f32 v{vU+p}, v{vU+p}",
                             f"v_mov_b32 v{vL}, v{vU+p}" if p == 0 else f"v_add_f32 v{vL}, v{vL}, v{vU+p}",
                             f"v_cvt_pk_bf16_f32 v{vU+p}, v{vU+p}, v{vU+p}"]
        def diag(i, j):
            d = vQ + 4 * (i & 1) + j; u = vU + i // 2
            if (j >> 1) == (i & 1): I(f"v_and_b32 v{d}, v{u}, v{vMask + j}")
            else: I(f"v_and_b32_dpp v{d}, v{u}, v{vMask + j} {'row_shl:4' if i & 1 else 'row_shr:4'} {dm} bank_mask:0xf bound_ctrl:0")
        a.drain()
        p0 = prob(0); p1 = prob(1)
        for t in (p0[0], p0[1], p1[0], p0[2], p0[3], p1[1]): I(t)
        pend = p1[2:]
        for j in (0, 1, 2, 3): diag(0, j)
        I(f"v_mov_b32 v{vM}, s{sM}\nds_write_b32 v51, v{vM}") if not guard else None
        if guard: a.barrier(); I(f"v_mov_b32 v{vM}, s{sM}\nds_write_b32 v51, v{vM}")
        if self.c.get("fa"): self.fs("p2start")
        lred = []
        for i, g in enumerate(order):
            self.check_slot(Vn, b, g)
            if (Vn, g) in SLOT: V = SLOT[(Vn, g)]
            else:
                if not early: lds_v(g)
                V = [v4(vU + 2 + 4 * c) for c in range(3)]
            A = v4(vQ + 4 * (i & 1))
            nx = i + 1 < G
            if (i & 1) == 1 and i // 2 + 2 < NP: assert not pend; pend = prob(i // 2 + 2)
            if i == G - 2: assert not pend; lred = [f"v_add_f32_dpp v{vL}, v{vL}, v{vL} {x} bank_mask:0xf" for x in red]
            for c in range(3):
                acc = v4(vACC + 4 * c)
                I(f"v_mfma_f32_16x16x32_bf16 {acc}, {A}, {V[c]}, {acc if i else 0}")
                if nx and c < 2: diag(i + 1, 2 * c + 0 if (i + 1) & 1 == 0 else (2 * c + 2) % 4); diag(i + 1, 2 * c + 1 if (i + 1) & 1 == 0 else (2 * c + 3) % 4)
                if pend and c == 2: I(pend.pop(0)); I(pend.pop(0))
                if lred: I(lred.pop(0))
                if i == G - 1 and c == 1: I(f"s_mov_b64 exec, {sp(mL63)}\nds_write_b32 v51, v{vL} offset:16\ns_mov_b64 exec, -1")
            if early and g == 2: lds_v(3)
            if hook2: hook2(i)
        if self.c.get("fa"): self.fs("p2end")
        for c, (lo, hi) in enumerate(((0xffffffff, 0), (0x00ff00ff, 0xff00ff00), (0, 0xffffffff))):
            I(f"s_mov_b32 exec_lo, {lo:#x}\ns_mov_b32 exec_hi, {hi:#x}\nds_write_b128 v50, {v4(vACC + 4 * c)} offset:{512 * c}")
        I("s_mov_b64 exec, -1")
        if pre_bar: pre_bar()
        self.fs("att_end")
        a.barrier()
        self.combine(b, L)
        self.fs("pub2")
    def combine(self, b, L):
        a = self.a; I = a.I; inst = 4 * b + L; a.comment("merge the four waves' partials and publish")
        I("ds_read_b128 v[44:47], v9\nds_read_b128 v[48:51], v9 offset:16")
        for i in range(0, 8, 2): I(f"ds_read2st64_b32 {v2(12 + i)}, v10 offset0:{3 * i} offset1:{3 * i + 3}")
        I("v_max3_f32 v52, v44, v45, v46\nv_max_f32 v52, v52, v47")
        for w in range(4): I(f"v_sub_f32 v{44+w}, v{44+w}, v52")
        for w in range(4): I(f"v_exp_f32 v{44+w}, v{44+w}")
        for w in range(4): I(f"v_add_f32 v{12 + 2 * w}, v{12 + 2 * w}, v{13 + 2 * w}")
        I("v_mul_f32 v20, v44, v12\nv_fmac_f32 v20, v45, v14\nv_fmac_f32 v20, v46, v16\nv_fmac_f32 v20, v47, v18")
        I("v_mul_f32 v53, v44, v48\nv_fmac_f32 v53, v45, v49")
        I("v_mov_b32_dpp v21, v20 quad_perm:[1,1,3,3] row_mask:0xf bank_mask:0xf")
        I("v_fmac_f32 v53, v46, v50\nv_fmac_f32 v53, v47, v51\nv_cvt_pk_bf16_f32 v20, v20, v21")
        I(f"v_cndmask_b32 v52, v52, v53, {sp(mBIT1)}\nv_cndmask_b32 v20, v20, v52, {sp(mW3)}\nv_min_u32 v20, -2, v20")
        I(f"s_mov_b64 exec, {sp(mPub2)}" if H2_S == 384 else f"s_not_b64 exec, {sp(mODD)}")
        self.publish(f"buffer_store_dword v20, v11, {s4(WS)}, s{sOffP} offen {{pol}}", True)
        I("s_mov_b64 exec, -1")
    def wo_addr(self, b, L):
        I = self.a.I
        I(f"v_bfe_u32 v8, v0, 1, 3\nv_lshrrev_b32 v9, 4, v0\nv_and_b32 v7, 1, v0\nv_lshl_add_u32 v7, v9, 1, v7\nv_lshlrev_b32 v7, 4, v7\ns_movk_i32 s{sT0}, {H2_S}\nv_mad_u32_u24 v7, v8, s{sT0}, v7")
        I(f"v_lshl_add_u32 v8, v9, 1, v8\nv_and_b32 v8, 7, v8\nv_mul_u32_u24 v8, {16 if H2_S == 384 else H2_S}, v8\ns_add_u32 s{sOffW}, s{h2(4 * b + L)[1]}, {h2(4 * b + L)[2]}")
    def wo(self, b, L, between=None, hoisted=False, hoist=False, after=None):
        a = self.a; a.comment(f"---- row {b} layer {L}: gather attention partials, output projection partial"); I = a.I; inst = 4 * b + L; ty = L & 1
        if not hoisted: self.wo_addr(b, L)
        loads = [f"buffer_load_dwordx2 v[52:53], v8, {s4(WS)}, s{sOffW} offen offset:{3072 if H2_S == 384 else 384} sc1"]
        loads += [f"buffer_load_dwordx4 {v4(12 + 4 * t)}, v7, {s4(WS)}, s{sOffW} offen offset:{128 * t} sc1" for t in range(3)]
        S = [24, 28, 32, 36, 40, 44]
        def rd(kk, reg, tile):
            o = 10240 * (kk >> 1) + 1280 * (kk & 1) + 32 * tile
            I(f"ds_read_b64_tr_b16 {v2(reg)}, v10 offset:{o}\nds_read_b64_tr_b16 {v2(reg + 2)}, v10 offset:{o + 640}")
        def pre():
            I(f"v_bfe_u32 v10, v0, 2, 2\nv_and_b32 v11, 48, v0\nv_add_u32 v10, v10, v11\nv_mul_u32_u24 v10, 160, v10\nv_and_b32 v11, 3, v0\nv_lshl_add_u32 v10, v11, 3, v10")
            I(f"s_lshl_b32 s{sT0}, s{sW2}, 6\ns_add_u32 s{sT1}, s{sT0}, {WO[ty]}\nv_add_u32 v10, s{sT1}, v10")
            for kk in range(6): rd(kk, S[kk], 0)
            I(f"v_and_b32 v11, 15, v0\nv_lshlrev_b32 v11, 1, v11\nv_and_b32 v9, 32, v0\nv_add3_u32 v11, v11, v9, s{sT0}\ns_add_u32 s{sOffP}, s{h3(inst)[0]}, {h3(inst)[2]}")
            if hoist: self.yg_addr()
            if between: between()
        D0, D1 = 48, 24
        mt = lambda D, t, B, first: f"v_mfma_f32_16x16x32_bf16 {v4(D)}, {v4(12 + 4 * t)}, {v4(B)}, {0 if first else v4(D)}"
        def mm(*k): I(mt(*k))
        self.gather(loads, [52, 53] + list(range(12, 24)), 9, between=pre, sleep=self.lsleep(), first=hoisted and self.c.get('first', 3) & 1,
                    spec=[mt(D0, 0, S[0], True), mt(D0, 1, S[2], False), mt(D0, 2, S[4], False)])
        if after: after()
        dpp = lambda op, d, x, ctl: I(f"{op}_dpp v{d}, v{x}, v{x} {ctl} row_mask:0xf bank_mask:0xf")
        def fold(out):
            I(f"v_add_f32 v{D0}, v{D0}, v{D1 + 1}\nv_add_f32 v{D0 + 2}, v{D0 + 2}, v{D1 + 3}\nv_mul_f32 v{out}, v7, v{D0}\nv_fmac_f32 v{out}, v8, v{D0 + 2}")
        dpp("v_max_f32", 9, 52, "row_ror:8")
        mm(D1, 0, S[1], True); rd(0, S[2], 1); dpp("v_max_f32", 9, 9, "row_ror:4")
        mm(D1, 1, S[3], False); rd(2, S[4], 1); dpp("v_max_f32", 9, 9, "row_ror:2")
        mm(D1, 2, S[5], False); I("v_sub_f32 v52, v52, v9\nv_exp_f32 v52, v52"); rd(4, S[1], 1); I("v_mul_f32 v53, v52, v53")
        rd(1, S[3], 1); dpp("v_add_f32", 53, 53, "row_ror:8")
        rd(3, S[5], 1); dpp("v_add_f32", 53, 53, "row_ror:4")
        I(f"v_add_f32 v{D0}, v{D0}, v{D1 + 1}\nv_add_f32 v{D0 + 2}, v{D0 + 2}, v{D1 + 3}")
        dpp("v_add_f32", 53, 53, "row_ror:2")
        I(f"v_mov_b32 v7, v{D0}\nv_mov_b32 v8, v{D0 + 2}\nv_rcp_f32 v53, v53")
        mm(D0, 0, S[2], True); rd(5, S[2], 1)
        I("v_mul_f32 v9, v52, v53")
        mm(D0, 1, S[4], False); mm(D0, 2, S[1], False)
        I("v_mul_f32_dpp v52, v9, v7 row_newbcast:0 row_mask:0xf bank_mask:0xf")
        mm(D1, 0, S[3], True)
        I("v_mov_b32_dpp v7, v9 row_newbcast:0 row_mask:0xf bank_mask:0xf")
        mm(D1, 1, S[5], False)
        I("v_fmac_f32_dpp v52, v9, v8 row_newbcast:2 row_mask:0xf bank_mask:0xf")
        mm(D1, 2, S[2], False)
        I("v_mov_b32_dpp v8, v9 row_newbcast:2 row_mask:0xf bank_mask:0xf")
        fold(53)
        I("v_permlane32_swap_b32 v52, v53\nv_add_f32 v52, v52, v53\nv_mov_b32 v53, v52\nv_permlane16_swap_b32 v52, v53\nv_add_f32 v52, v52, v53")
        I("v_mov_b32_dpp v53, v52 quad_perm:[1,1,3,3] row_mask:0xf bank_mask:0xf\nv_cvt_pk_bf16_f32 v52, v52, v53\nv_min_u32 v52, -2, v52")
        I(f"s_mov_b64 exec, {sp(mWOST)}")
        self.publish(f"buffer_store_dword v52, v11, {s4(WS)}, s{sOffP} offen {{pol}}", False)
        I("s_mov_b64 exec, -1")
    def yg_addr(self):
        self.a.I(f"v_lshrrev_b32 v54, 4, v0\nv_mul_u32_u24 v54, {H3_H}, v54\nv_and_b32 v9, 15, v0\nv_lshl_add_u32 v54, v9, 4, v54")
    def yg_pre(self, b, L):
        I = self.a.I
        if h3(4 * b + L)[1] is None: I(f"s_add_u32 s{sOffG}, s{sX3g0}, {h3(4 * b + L)[2]}\ns_add_u32 s{sOffG2}, s{sX3g1}, {h3(4 * b + L)[2]}")
        else: I(f"s_mul_i32 s{sT0}, s{sWave}, {8 * H3_H}\ns_add_u32 s{sOffG}, s{sH3grp}, s{sT0}\ns_add_u32 s{sOffG}, s{sOffG}, {(4 * b + L) * H3_I}\ns_add_u32 s{sOffG2}, s{sOffG}, {4 * H3_H}")
        for j in range(4): I(f"v_and_b32 v{16 + j}, 0x3f803f80, v{vMask + j}")
        for j in range(8): I(f"v_mov_b32 v{8 + j}, 0")
    def yg(self, b, L, between=None, pre_bar=None, hoisted=False, after=None):
        a = self.a; a.comment(f"---- row {b} layer {L}: gather output partials, residual"); I = a.I; inst = 4 * b + L; Yb = Y + YSZ * b
        if not hoisted: self.yg_addr(); self.yg_pre(b, L)
        loads = [f"buffer_load_dwordx4 {v4(8 + 4 * j)}, v54, {s4(WS)}, s{(sOffG, sOffG2)[j]} offen sc1" for j in range(2)]
        self.gather(loads, range(8, 16), 7, between=between, emask=sp(mN10),
                    spec=["v_mfma_f32_16x16x32_bf16 v[20:23], v[16:19], v[8:11], 0", "v_mfma_f32_16x16x32_bf16 v[20:23], v[16:19], v[12:15], v[20:23]"])
        if after: after()
        I(f"v_and_b32 v7, 15, v0\nv_lshlrev_b32 v7, 5, v7\nv_and_b32 v54, 16, v0\nv_add3_u32 v7, v7, v54, s{sYw}")
        I(f"s_mov_b32 exec_lo, s{mN10}\ns_mov_b32 exec_hi, 0\nds_write_b128 v7, v[20:23] offset:{YSZ * b}\ns_mov_b64 exec, -1")
        I(f"v_lshl_add_u32 v7, v0, 2, s{sXROWw}\nds_read_b32 v54, v7 offset:{640 * b}")
        I(f"v_lshlrev_b32 v14, 3, v0\nv_add_u32 v14, {Yb}, v14")
        if L < 3: self.wq_addr(b, L + 1)
        if pre_bar: pre_bar()
        a.barrier()
        I("s_mov_b32 exec_hi, 0xff")
        I("ds_read2_b64 v[8:11], v14 offset0:0 offset1:40\nds_read2_b64 v[12:15], v14 offset0:80 offset1:120")
        I("v_lshlrev_b32 v16, 16, v54\nv_and_b32 v17, 0xffff0000, v54")
        I("v_pk_add_f32 v[8:9], v[8:9], v[10:11]\nv_pk_add_f32 v[12:13], v[12:13], v[14:15]\nv_pk_add_f32 v[8:9], v[8:9], v[12:13]")
        I("v_cvt_pk_bf16_f32 v8, v8, v9\nv_and_b32 v9, 0xffff0000, v8\nv_lshlrev_b32 v8, 16, v8\nv_pk_add_f32 v[8:9], v[8:9], v[16:17]\nv_cvt_pk_bf16_f32 v8, v8, v9")
        if L < 3: I(f"ds_write_b32 v7, v8 offset:{640 * b}")
        else:
            I(f"s_cmp_lg_u32 s{sWave}, 0"); a.skip_begin("s_cbranch_scc1")
            I(f"s_mul_i32 s{sT0}, s{sS}, 160\nv_lshlrev_b32 v7, 2, v0")
            I(f"buffer_store_dword v8, v7, {s4(XO)}, s{sT0} offen offset:{1280 * b}")
            a.skip_end()
        I("s_mov_b64 exec, -1")
    def fin_pre(self, b):
        a = self.a; I = a.I; inst = 4 * b + 3
        self.yg_addr(b, 3) if False else None
        for j in range(4): I(f"v_and_b32 v{16 + j}, 0x3f803f80, v{vMask + j}")
        I(f"v_and_b32 v9, 15, v0\nv_lshlrev_b32 v9, 4, v9\nv_bfe_u32 v10, v0, 4, 1\nv_lshl_add_u32 v9, v10, 3, v9\nv_add_u32 v10, {XROW + 640 * b}, v9\nds_read_b64 v[10:11], v10")
        for k in range(8):
            if h3(inst)[1] is None:
                if k == 0: I(f"s_and_b32 s0, s40, 1\ns_lshl_b32 s0, s0, 13\ns_sub_u32 s12, s{sX3g0}, s0\ns_add_u32 s12, s12, {h3(inst)[2]}")
                I(f"s_bfe_u32 s0, s{40 + (k >> 2)}, {0x10000 + 8 * (k & 3):#x}\ns_lshl_b32 s0, s0, 13\ns_add_u32 s0, s0, {(k & 3) * 4 * H3_H}\ns_add_u32 s{4 + k}, s12, s0")
            else: I(f"s_add_u32 s{4 + k}, s{sH3grp}, {h3(inst)[2] + k * 4 * H3_H}")
        I(f"v_lshlrev_b32 v12, 16, v10\nv_and_b32 v13, 0xffff0000, v10\nv_lshlrev_b32 v14, 16, v11\nv_and_b32 v15, 0xffff0000, v11\ns_mul_i32 s{sT0}, s{sS}, 160")
    def fin(self, b):
        a = self.a; I = a.I; a.comment(f"---- row {b}: gather output partials, residual, store")
        loads = [f"buffer_load_dwordx4 {v4(60 + 4 * k)}, v54, {s4(WS)}, s{4 + k} offen sc1" for k in range(8)]
        self.gather(loads, range(60, 92), 7, emask=sp(mN10), vmask=True,
                    spec=[f"v_mfma_f32_16x16x32_bf16 v[20:23], v[16:19], {v4(60 + 4 * k)}, {'v[20:23]' if k else 0}" for k in range(8)])
        I(f"s_mov_b32 exec_lo, s{mN10}\ns_mov_b32 exec_hi, 0")
        I("v_cvt_pk_bf16_f32 v20, v20, v21\nv_cvt_pk_bf16_f32 v22, v22, v23\nv_and_b32 v21, 0xffff0000, v20\nv_lshlrev_b32 v20, 16, v20\nv_and_b32 v23, 0xffff0000, v22\nv_lshlrev_b32 v22, 16, v22")
        I("v_pk_add_f32 v[20:21], v[20:21], v[12:13]\nv_pk_add_f32 v[22:23], v[22:23], v[14:15]\nv_cvt_pk_bf16_f32 v20, v20, v21\nv_cvt_pk_bf16_f32 v21, v22, v23")
        I(f"buffer_store_dwordx2 v[20:21], v9, {s4(XO)}, s{sT0} offen offset:{1280 * b}\ns_mov_b64 exec, -1")
    def touch(self, b, L, lvl=1):
        if self.c.get("touch", 4) == 4 or self.c.get("touch") < lvl: return
        a = self.a; I = a.I; m = self.c.get("tm", 2)
        I(f"s_mov_b32 m0, {JUNK}\ns_mov_b64 exec, 3")
        if m & 1:
            I(f"v_mov_b32 v31, s{sPub2}\ns_add_u32 s{sT1}, s{h2(4 * b + L)[0]}, {h2(4 * b + L)[2]}")
            I(f"buffer_load_dword v31, {s4(WS)}, s{sT1} offen sc1 lds")
        if L < 3 and m & 2:
            I(f"s_lshl_b32 s{sT0}, s{sWave}, 8\nv_lshl_add_u32 v31, v0, 7, s{sT0}\ns_add_u32 s{sT1}, s{h1(4 * b + L + 1)[0]}, {h1(4 * b + L + 1)[2]}")
            I(f"buffer_load_dword v31, {s4(WS)}, s{sT1} offen sc1 lds")
        I("s_mov_b64 exec, -1")
    def touch_fill(self, b, L):
        I = self.a.I; m = self.c.get("tm", 2)
        if m & 1:
            I(f"s_add_u32 s{sT1}, s{h2(4 * b + L)[0]}, {h2(4 * b + L)[2]}\nv_mov_b32 v54, s{sPub2}")
            I(f"s_mov_b32 m0, {JUNK} | buffer_load_dword v54, {s4(WS)}, s{sT1} offen sc1 lds")
        if L < 3 and m & 2:
            I(f"s_lshl_b32 s{sT0}, s{sWave}, 8\nv_and_b32 v54, 1, v0\nv_lshl_add_u32 v54, v54, 7, s{sT0}\ns_add_u32 s{sT1}, s{h1(4 * b + L + 1)[0]}, {h1(4 * b + L + 1)[2]}")
            I(f"s_mov_b32 m0, {JUNK} | buffer_load_dword v54, {s4(WS)}, s{sT1} offen sc1 lds")
    def chain_idle(self, b, L, burst=(0, 0, 0), sh=(0, 0, 0, 0), pf=(0, 0, 0)):
        a = self.a; U = lambda n: (lambda: self.stream(n, paced=False))
        if self.c.get("skip3", 1):
            a.I(f"s_cmp_eq_u32 s{sWave}, 3"); a.skip_begin("s_cbranch_scc1")
            self.wo(b, L, hoisted=True)
            a.skip_end()
            self.yg_addr()
            self.stream(sh[0] + sh[1], paced=False)
            self.pfreg = 7; self.prefetch(pf[0])
        else:
            self.wo(b, L, between=U(burst[0]), hoisted=True, hoist=True, after=U(sh[0]))
            self.stream(sh[1], paced=False)
        self.stamp(f"wo{b}{L}")
        self.fs("pub3")
        late = self.c.get("late", 2)
        if L == 3:
            a.I(f"s_cmp_eq_u32 s{sH}, 1\ns_cbranch_scc1 L_out0")
            a.I(f"s_cmp_lg_u32 s{sH}, 0\ns_cbranch_scc1 L_fin")
            self.page()
            if self.c.get("fin1", 1):
                if not self.c.get("finl", 1): self.fin_pre(1)
                a.wait_tag("pub"); a.barrier()
                a.I(f"s_cmp_lg_u32 s{sWave}, 0\ns_cbranch_scc1 L_fin")
                if self.c.get("finl", 1): self.fin_pre(1)
                self.fin(1)
                return
        dfr = self.deferred; self.deferred = []
        pub = a.vm.last_tag("pub")
        for jobs in dfr: self.clear_prep(jobs); self.clear_issue("clr3")
        if L < 3 and not late: self.wq_pre((L + 1) & 1)
        if late < 2: self.yg_pre(b, L)
        a.wait_tag("pub"); a.barrier()
        if L < 3 and late: self.wq_pre((L + 1) & 1)
        if late >= 2: self.yg_pre(b, L)
        self.yg(b, L, between=lambda: (self.stream(burst[1], paced=False), self.page() if L < 3 else None), hoisted=True, after=lambda: (self.stream(sh[2], paced=False), self.prefetch(pf[1])), pre_bar=(lambda: a.wait_tag("clr3")) if dfr else None)
        self.fs("xrow")
        if L == 3: return
        self.wq_main(b, L + 1, hoisted=True, hoist=True)
        self.fs("pub1")
        self.stamp(f"wq{b}{L+1}")
        self.qg(b, L + 1, between=U(burst[2]), hoisted=True, tail=True, after=lambda: (self.touch(b, L + 1) if self.c.get("touch", 4) != 3 or (b, L) == (0, 1) else None, self.stream(sh[3], paced=False), self.prefetch(pf[2])))
        self.stamp(f"qg{b}{L+1}")
    def build(self):
        a = self.a; c = self.c; W = self.W; WE = c.get("WE", W); HE = c.get("HE", 4); PG = c.get("PG", 0)
        self.off_val = None
        for x in c.get("order", "kvw"):
            if x == "w": self.add_w("wqA", pWQA, "q", 0)
            else:
                for g in range(4): self.add_kv("KA" if x == "k" else "VA", 0, g)
        self.add_w("woA", pWOA, "o", 0); self.add_w("wqB", pWQB, "q", 1)
        for g in range(16): self.add_kv("KB", 0, g)
        wl = c.get("wolate", 0)
        if not wl: self.add_w("woB", pWOB, "o", 1)
        for g in range(16): self.add_kv("VB", 0, g)
        if wl: self.add_w("woB", pWOB, "o", 1, late=True)
        p1 = len(self.items)
        for g in range(4): self.add_kv("KA", 1, g)
        for g in range(4): self.add_kv("VA", 1, g)
        p2 = len(self.items)
        for g in range(16): self.add_kv("KB", 1, g)
        for g in range(16): self.add_kv("VB", 1, g)
        st = self.stream_to; S = lambda n: (lambda: self.stream(n))
        self.limit = p1; a.nobar = c.get('nobar', 0)
        self.setup()
        if c.get("inject", 1): a.inject = self.injector
        if c.get("streamonly"):
            self.limit = 10**9; self.npage = 0; self.hot = []; self.inl = False; self.boost = 0; a.inject = None
            for upto in c["streamonly"]:
                if isinstance(upto, tuple): st(upto[0], W=upto[1])
                else: st(upto)
                self.stamp("end")
            a.wait(vm=0); self.stamp("end")
            return self.finish()
        P = c.get("P1", dict(arr=24, hs=36, qg0=44, wo=76, yg=104, qg1=130))
        for _ in range(c.get("pad", 0)): a.I("s_nop 0")
        a.raw("L_pf0:")
        self.stamp("setup")
        a.wait_tag("clr"); a.barrier()
        self.arrive()
        st(max(P["arr"], self.index_after("wqA") + 4))
        self.stamp("arr")
        a.wait_tag("wqA"); a.barrier()
        self.wq_pre(0); self.wq_main(0, 0, local_ok=False)
        self.wq_pre(0); self.wq_main(1, 0, local_ok=False)
        self.stamp("wq")
        st(P["hs"]); self.handshake(S(W))
        for r, m, base in ((sCTw, 256, CT), (sATTw, 1536, ATT), (sSTATw, 4, STAT), (sCOMBw, 256, ATT)):
            a.I(f"s_mul_i32 s{r}, s{sWave}, {m}\ns_add_u32 s{r}, s{r}, {base}")
        P_ = lambda i: [("P", i)]
        now = [[P_(1), [("C", 1)], P_(2), [("2", 1), ("3", 1)]], [[("3", 2), ("3", 3)], [("3", 4), ("3", 5)], [("3", 6), ("3", 7)], [("3", 6), ("3", 7)]]]
        self.deferred = [[P_(3), P_(5), P_(6), P_(7)], [[("2", 2), ("2", 3)], [("2", 4), ("2", 5)], [("2", 6), ("2", 7)], [("2", 6), ("2", 7)]]]
        if not c.get("defer", 1): now += self.deferred; self.deferred = []
        for jobs in now:
            self.clear_prep(jobs); self.clear_issue("clr2"); self.stream(1)
        self.stamp("hs")
        st(P["qg0"]); self.qg(0, 0, between=S(W))
        self.stamp()
        self.att(0, 0, pre_bar=lambda: (st(self.index_after("woA")), a.wait_tag("woA"), a.wait_tag("clr2")))
        self.stamp()
        self.qg(1, 0, between=S(W))
        self.stamp("qg10")
        st(P["wo"]); self.wo(0, 0, between=S(W))
        self.stamp("wo00")
        st(P["yg"]); self.yg(0, 0, between=S(W), pre_bar=lambda: a.wait_tag("wqB"))
        self.stamp("yg00")
        self.wq_pre(1); self.wq_main(0, 1, hoisted=True)
        self.stream(3, paced=False); self.warm([0, 1, 2, "R"])
        if c.get("cpf") == 2: self.code_prefetch("L_pf1", "L_pf2")
        st(P["qg1"]); self.touch(0, 1, 2) if c.get('touch') == 2 else None; self.qg(0, 1, tail=True, between=lambda: self.stream(min(WE, p1 - self.pos), W=WE))
        a.raw("L_pf1:")
        self.stamp()
        st_ = 64 << c.get("pfs", 6)
        self.pfq = [(KA, o) for o in range(0, 12288, st_)] + [(VA, o) for o in range(0, 12288, st_)] + [(KB, o) for o in range(0, 49152, st_)]
        self.pfreg = 54
        vb0 = self.index_after(("VB", 0, 0)) - 3
        assert self.pos >= vb0 + 3
        if wl: assert self.pos <= p1 - 8
        self.att(0, 1, hook1=lambda g: self.stream(min(1, p1 - self.pos), W=WE) if g % HE == HE - 1 else None,
                 hook2=lambda i: (st(min(p1, vb0 + 3 * (i + 2) + WE - 3), W=WE), self.page() if i == PG else None, self.prefetch(c.get("pf0", 0)) if i == c.get("pfi", 11) else None), pre_bar=lambda: st(p1, W=WE) if wl else a.wait_tag("woB"), hoist=True, qaddr=True)
        if wl: a.wait_tag("woB"); a.barrier()
        assert self.pos == p1
        a.inject = None; self.limit = p2
        self.stamp("p1end")
        self.chain_idle(0, 1, pf=c.get("pf1", (0, 0, 0)))
        bu = c.get("burst", (6, 0, 0, 0)); sh = c.get("sh", (0, 9, 3, 6))
        self.att(0, 2, hookm=lambda: self.stream(bu[0], paced=False), hoist=True, qaddr=True)
        self.stamp("att02")
        self.pfq = [x for x in self.pfq if x[0] == KB]
        self.chain_idle(0, 2, burst=bu[1:], sh=sh, pf=c.get("pf2", (0, 0, 0)))
        self.stamp("p2beg")
        self.limit = len(self.items)
        n0 = c.get("n0", 9); h2 = c.get("h2", 2); q0 = self.pos
        def hook03(g):
            self.stream(max(0, min(3, q0 + n0 - self.pos, p2 + 3 * g + 3 - self.pos)), paced=False)
        self.att(0, 3, hook1=hook03, hook2=lambda i: self.stream(1, paced=False) if i % h2 == h2 - 1 else None, qaddr=True)
        self.stamp("att03")
        a.raw("L_pf2:")
        P = c.get("P2", dict(att=8, wo=34, yg=62, qg=80))
        if c.get("inject", 1): a.inject = self.injector
        st(p2 + P.get("att", 0))
        self.att(1, 0, guard=True, hook2=lambda i: self.stream(2))
        self.stamp("att10")
        st(p2 + P["wo"]); self.stamp("a"); self.wo(1, 0, between=S(W)); self.stamp("wo10"); self.wo(0, 3, between=S(W)); self.stamp("wo03")
        st(p2 + P["yg"]); self.stamp("b"); self.yg(1, 0, between=S(W)); self.stamp("yg10")
        self.wq_pre(1); self.wq_main(1, 1, hoisted=True)
        self.stream(3, paced=False); self.warm([3, 4, 5, 6])
        if c.get("cpf") == 2: self.code_prefetch("L_pf3", "L_pf9")
        st(p2 + P["qg"]); self.stamp("c"); self.touch(1, 1, 2) if c.get('touch') == 2 else None; self.qg(1, 1, tail=True, between=lambda: self.stream(WE, W=WE))
        a.raw("L_pf3:")
        self.stamp("qg11")
        vb1 = p2 + 48
        self.att(1, 1, hook1=lambda g: self.stream(1, W=WE) if g % HE == HE - 1 else None,
                 hook2=lambda i: (st(min(len(self.items), vb1 + 3 * (i + 2) + WE - 3), W=WE), self.page() if i == PG else None), hoist=True, qaddr=True)
        assert self.pos == len(self.items)
        a.inject = None
        self.stamp("p2end")
        self.chain_idle(1, 1)
        self.fine_on = c.get("fine") == 1
        self.fs("q_ready")
        self.att(1, 2, hoist=True, qaddr=True)
        self.stamp("att12")
        self.chain_idle(1, 2)
        self.fs("q_ready")
        if c.get("fine") == 2: self.fine_on = True; self.fs("q_ready")
        self.att(1, 3, hoist=True, qaddr=True)
        self.stamp("att13")
        self.chain_idle(1, 3)
        a.I("s_branch L_fin"); a.raw("L_out0:"); a.I("s_nop 7"); a.wait(vm=0, lg=0)
        if c.get("fin1", 1):
            a.I(f"s_cmp_lg_u32 s{sWave}, 0\ns_cbranch_scc1 L_fin")
            self.fin_pre(0); self.fin(0)
        else: self.yg(0, 3)
        a.raw("L_fin:"); a.I("s_nop 7")
        if c.get("hold"):
            a.raw("L_hold:"); a.I(f"s_memrealtime s[38:39]"); a.wait(lg=0)
            a.I(f"s_sub_u32 s38, s38, s{98 if c.get('holdat') else sST}\ns_cmp_lt_u32 s38, {c['hold']}\ns_cbranch_scc1 L_hold")
        self.fs("end")
        self.stamp("end")
        return self.finish()
    def finish(self):
        a = self.a; c = self.c
        if c.get("fine"):
            a.wait(lg=0)
            for i in range(self.nfine): a.I(f"v_writelane_b32 v{vStamp}, s{FS[i]}, {i}")
            print("fine stamps:", self.fnames)
        if c.get("diag"):
            a.I("s_sleep 100")
            a.I(f"v_writelane_b32 v{vStamp}, s{sRetry}, 62\nv_writelane_b32 v{vStamp}, s{sLocal}, 63")
            a.I(f"s_lshl_b32 s{sT0}, s{sWG}, 10\ns_lshl_b32 s{sT1}, s{sWave}, 8\ns_add_u32 s{sT0}, s{sT0}, s{sT1}\ns_add_u32 s{sT0}, s{sT0}, {DIAG}\nv_lshlrev_b32 v7, 2, v0")
            a.I(f"buffer_store_dword v{vStamp}, v7, {s4(WS)}, s{sT0} offen")
        if c.get("diag") and not c.get("fine"): print("stamps:", " ".join(self.snames))
        a.raw("L_end:"); a.raw("  s_endpgm")
        if c.get("pages", 1): self.hot = [f".p2align {c.get('hotal', 12)}\nLstR:\n  s_setpc_b64 {sp(sRet)}"] + self.hot
        a.tail = self.hot + a.tail
        a.tail.append("L_pf9:\n  s_endpgm")
        body = a.text()
        return (HEAD + f"; @launch grid=(256,1,1) block=(256,1,1) lds={LDS_BYTES}\n" + DOC
                + f'.amdgcn_target "amdgcn-amd-amdhsa--gfx950"\n.text\n.globl {NAME}\n.p2align 8\n.type {NAME},@function\n{NAME}:\n'
                + body + f'.section .rodata,"a"\n.p2align 6\n.amdhsa_kernel {NAME}\n  .amdhsa_next_free_vgpr 512\n  .amdhsa_next_free_sgpr 102\n'
                + "  .amdhsa_accum_offset 256\n  .amdhsa_group_segment_fixed_size 0\n  .amdhsa_kernarg_size 104\n  .amdhsa_user_sgpr_count 2\n"
                + "  .amdhsa_user_sgpr_kernarg_segment_ptr 1\n  .amdhsa_system_sgpr_workgroup_id_x 1\n.end_amdhsa_kernel\n")

def generate(cfg):
    global COMPACT1; COMPACT1 = cfg.get('c1', 0)
    global H1_I, H1_H, H1_S, H2, H2_I, H2_H, H2_S, H3, H3_I, H3_S, H3_H
    H1_S = cfg.get("H1S", 2048); H1_H = cfg.get("H1H", 8 * H1_S); H1_I = 32 * H1_H
    H2_S = cfg.get("H2S", 384); H2_H = cfg.get("H2H", 8 * H2_S if H2_S != 384 else 4096); H2_I = 32 * H2_H; H2 = cfg.get("H2B", 8 * H1_I); assert H2 >= 8 * H1_I
    H3_H = cfg.get("H3H", 192); H3_S = cfg.get("H3S", 32 * H3_H); H3_I = cfg.get("H3I", max(8 * H3_S, 32 * H3_H)); H3 = cfg.get("H3B", H2 + 8 * H2_I); assert H3 >= H2 + 8 * H2_I
    global USE_HOT; USE_HOT = cfg.get("hot", 3)
    assert H3 + 8 * H3_I <= (6 << 20) and not (USE_HOT and COMPACT1) and H3_H <= (192 if USE_HOT == 3 else 256)
    return Gen(cfg).build()
if __name__ == "__main__":
    cfg = eval(sys.argv[2]) if len(sys.argv) > 2 else {}
    open(sys.argv[1], "w").write(generate(cfg))
```

```python
import sys, math
from dsl import Asm

NAME = "interleave_layers__sliding_block_cached__gqa_block_cached__decode_kernel"
HEAD = open("interleave_layers__sliding_block_cached__gqa_block_cached__decode.s.ref").read().split("; Override")[0]

KV_BYTES = 2 * 32 * 4096 * 384
BSTR = 32 * 4096 * 384
HSTR = 4096 * 384
W_BYTES = 640 * 6144 * 2
WS_BYTES = 434115584
H1_I, H1_H, H1_S = 524288, 16384, 2048
H2 = 8 * H1_I; H2_I, H2_H, H2_S = 131072, 4096, 512
H3 = H2 + 8 * H2_I; H3_I, H3_S, H3_H = 65536, 8192, 256
DIAG = 64 << 20
WQ = (0, 61440); WO = (30720, 92160)
VS = 122880
EX = 147456
ATT = EX; STAT = EX + 6144; Y = EX + 6208; YSZ = 1280; XROW = Y + 2 * YSZ; ONES = XROW + 1280; QB = ONES + 160; CT = QB + 768
JUNK = CT + 2048
LDS_BYTES = JUNK + 256
assert LDS_BYTES <= 163840
sWG, sWave = 2, 3
KA, VA, KB, VB, WS, WT, XO = 4, 8, 12, 16, 20, 24, 28
pX, pKA, pVA, pWQA, pWOA, pKB, pVB, pWQB, pWOB, pOUT, pDBG, pWS = 32, 34, 36, 38, 40, 44, 46, 48, 50, 52, 54, 56
sH, sS, sLocal, sOff, sRetry, sT0, sT1, sT2 = 58, 59, 60, 61, 62, 63, 64, 65
sH1own, sH1grp, sH2own, sH2grp, sH3own, sH3grp, sOffG, sOffP = 66, 67, 68, 69, 70, 71, 72, 73
mODD, mHI8, mHI32, mWOST, mRG1, mRG2, mRG3, m60 = 74, 76, 78, 80, 82, 84, 86, 88
sXcc, sWqRow, sWoRow, sLdsW, sLdsVS = 90, 91, 92, 93, 94
sST = 0; m40 = 98; mBIT1 = 100; mW3 = 42; mN10 = 32; sW2 = 95; sOffG2 = 35; sClr = 0; sM = 34; sOffW = 76; sRet = 78; sX1own, sX1grp, sX2own, sX2grp, sX3own, sX3g0, sX3g1 = 77, 98, 99, 52, 53, 96, 97; sPub2 = 44; sXROWw, sYw, sQw, sCTw, sATTw, sSTATw, sCOMBw = 45, 56, 57, 38, 39, 54, 55; sH1c = 77; mQ13 = 98; mPub1 = 52; mPub2 = 46; mL63 = 36
FS = [50, 24, 26, 88, 90, 92]
def sp(n): return f"s[{n}:{n+1}]"
def s4(n): return f"s[{n}:{n+3}]"
def v2(n): return f"v[{n}:{n+1}]"
def v4(n): return f"v[{n}:{n+3}]"
vLane, vKoff, vVoff, vMask = 0, 1, 2, 3
vQ, vACC, vU = 12, 24, 36
vStamp = 55
QUADS = [f"a[{i}:{i+3}]" for i in range(0, 256, 4)] + [f"v[{i}:{i+3}]" for i in range(56, 256, 4)]
SLOT = {}
_names = [("KA", i) for i in range(4)] + [("VA", 0), ("VA", 1)] + [("KB", i) for i in range(16)] + [("VB", i) for i in range(16)]
for i, n in enumerate(_names): SLOT[n] = QUADS[3 * i:3 * i + 3]
assert SLOT[("VB", 15)][2] == "v[252:255]"
vWq0, vWq1, vWo = 252, 253, 254
SCALE = 192 ** -0.5 * math.log2(math.e)
import struct
def f32(x): return "0x%08x" % struct.unpack("<I", struct.pack("<f", x))[0]

DOC = "; Four decode layers (A, B, A, B) in one persistent launch, one workgroup per CU (4 waves x 512 registers, 157 KiB LDS).\n;  workgroup w: head h = 4*(w&7) + ((w>>3)&3), slice s = w>>5. It owns 1/8 of head h's cache positions for both batch rows,\n;  Speed only: the slots of the latency-bound hand-offs share one 2 MiB page of d_ws whose address bit 13 selects the memory\n"

HOT1 = {2: 0, 3: 1, 6: 2, 7: 3}; HOT2 = {1: 0, 2: 1, 5: 2, 6: 3, 7: 4}
X2 = 1 << 20; X3 = X2 + 5 * 131072; XP = X3 + 5 * 65536
USE_HOT = True
def h1(inst): return (sX1own, sX1grp, HOT1[inst] * 262144, 1024) if USE_HOT and inst in HOT1 else (sH1own, sH1grp, inst * H1_I, H1_S)
def h2(inst): return (sX2own, sX2grp, HOT2[inst] * 131072) if USE_HOT and inst in HOT2 else (sH2own, sH2grp, inst * H2_I)
def h3(inst): return (sX3own, None, HOT2[inst] * 65536) if USE_HOT and inst in HOT2 else (sH3own, sH3grp, inst * H3_I)
def c1(inst): return COMPACT1 and inst >= 2

class Gen:
    def __init__(self, cfg):
        self.c = cfg; self.a = Asm(); self.items = []; self.pos = 0; self.nstamp = 0
        self.W = cfg.get("W", 9); self.limit = 10**9; self.npage = 0; self.hot = []; self.inl = False; self.boost = 0; self.last_cyc = 0; self.fine_on = False; self.nfine = 0; self.fnames = []; self.snames = ['start']
    def add_w(self, name, ptr, kind, ty, late=False):
        pol = self.c.get("wpol", "nt")
        def mk(k):
            def f():
                a = self.a
                if k == 0:
                    off = sWqRow if kind == "q" else sWoRow
                    a.I(f"s_add_u32 s{WT}, s{ptr}, s{off}\ns_addc_u32 s{WT+1}, s{ptr+1}, 0\ns_sub_u32 s{WT+2}, {W_BYTES}, s{off}")
                    if late: a.I("v_mul_u32_u24 v54, 26, v0\nv_lshrrev_b32 v54, 8, v54\nv_mul_u32_u24 v54, 1120, v54\nv_lshl_add_u32 v54, v0, 4, v54")
                base = (WQ if kind == "q" else WO)[ty]
                a.I(f"s_add_u32 m0, s{sLdsW}, {base + 960 * k}")
                if kind == "q": so = 5 * (k // 2) * 12288; vr = vWq1 if k & 1 else vWq0
                else: so = 6 * k * 1280; vr = 54 if late else vWo
                a.I(f"s_mov_b32 s{sOff}, {so}\ns_mov_b64 exec, {sp(m60)}")
                a.I(f"buffer_load_dwordx4 v{vr}, {s4(WT)}, s{sOff} offen {pol} lds", tag=name)
                a.I("s_mov_b64 exec, -1")
            return f
        self.items += [(name, mk(k)) for k in range(8)]
    def add_kv(self, name, b, g):
        srd = {"KA": KA, "VA": VA, "KB": KB, "VB": VB}[name]
        isK = name[0] == "K"; vo = vKoff if isK else vVoff; step = 128 if isK else 256
        pol = self.c.get("kvpol", "nt")
        def mk(c):
            def f():
                a = self.a
                if (name, g) in SLOT:
                    rot = self.c.get("rot", 1) and name[1] == "B"
                    if rot and (name, b, g, c) == ("KB", 0, 0, 0):
                        m = self.c.get("rot", 1)
                        if m == 1: a.I(f"s_and_b32 s48, s{sS}, 3\ns_lshl_b32 s49, s{sWave}, 2\ns_or_b32 s48, s48, s49")
                        if m == 2: a.I(f"s_lshl_b32 s48, s{sWave}, 2")
                        if m == 3: a.I(f"s_and_b32 s48, s{sS}, 3\ns_lshl_b32 s48, s48, 2")
                        if m == 4: a.I(f"s_and_b32 s48, s{sWave}, 1\ns_lshl_b32 s48, s48, 3")
                    if c == 0 or self.off_val != (name, b, g):
                        if rot: a.I(f"s_xor_b32 s{sOff}, s48, {g}\ns_mul_i32 s{sOff}, s{sOff}, 3072" + (f"\ns_add_u32 s{sOff}, s{sOff}, {BSTR}" if b else ""))
                        else: a.I(f"s_mov_b32 s{sOff}, {b * BSTR + g * 3072}")
                    self.off_val = (name, b, g)
                    a.I(f"buffer_load_dwordx4 {SLOT[(name, g)][c]}, v{vo}, {s4(srd)}, s{sOff} offen offset:{step * c} {pol}")
                else:
                    self.off_val = None
                    a.I(f"s_add_u32 m0, s{sLdsVS}, {(g - 2) * 3072 + 1024 * c}\ns_mov_b32 s{sOff}, {b * BSTR + g * 3072 + step * c}")
                    a.I(f"buffer_load_dwordx4 v{vo}, {s4(srd)}, s{sOff} offen {pol} lds", tag=("VS", b, g))
            return f
        self.items += [((name, b, g), mk(c)) for c in range(3)]
    def stream(self, n, paced=True, W=None):
        for _ in range(n):
            if self.pos >= len(self.items): return
            assert self.pos < self.limit, (self.pos, self.limit)
            if paced: self.a.pace((W or self.W) + (self.c.get("B", 0) if self.pos < self.boost else 0))
            sv = self.a._in_inject; self.a._in_inject = True
            self.items[self.pos][1](); self.pos += 1; self.last_cyc = self.a.cyc
            if self.c.get("diag") == 3 and self.pos % 5 == 0 and self.pos > 10: self.stamp("pos")
            self.a._in_inject = sv
    def prefetch(self, n):
        a = self.a
        for _ in range(n):
            if not self.pfq: return
            srd, off = self.pfq.pop(0)
            a.I(f"v_lshlrev_b32 v{self.pfreg}, {self.c.get('pfs', 6)}, v0\ns_mov_b32 m0, {JUNK}\ns_mov_b32 s{sOff}, {BSTR + off}")
            a.I(f"buffer_load_dword v{self.pfreg}, {s4(srd)}, s{sOff} offen {self.c.get('pfpol', '')} lds")
            self.off_val = None
    def injector(self):
        a = self.a
        if self.pos < self.limit and a.cyc - self.last_cyc >= self.c.get("T", 330) and a.vm.outstanding() < self.W + self.c.get("XW", 4) + (self.c.get("B", 0) if self.pos < self.boost else 0):
            self.stream(1, paced=False)
    def stream_to(self, upto, **k): self.stream(max(0, upto - self.pos), **k)
    def index_after(self, name):
        return max(i for i, it in enumerate(self.items) if it[0] == name) + 1
    def fs(self, name):
        if not self.fine_on or self.nfine >= len(FS): return
        self.fcount = getattr(self, "fcount", 0) + 1
        if self.fcount <= self.c.get("fskip", 0): return
        self.a.I(f"{'s_memrealtime' if self.c.get('rt') else 's_memtime'} {sp(FS[self.nfine])}"); self.nfine += 1; self.fnames.append(name)
    def page(self):
        if not self.c.get("pages", 1): return
        k = self.npage; self.npage += 1
        self.a.I(f"s_branch Lpg{k}"); self.a.raw(f".p2align 12\nLst{k}:\n  s_setpc_b64 {sp(sRet)}\nLpg{k}:")
    def warm(self, ks):
        if not (self.c.get("pages", 1) and self.c.get("warm", 1)): return
        a = self.a
        a.I(f"s_cmp_lg_u32 s{sWave}, 3"); a.skip_begin("s_cbranch_scc1")
        for k in ks: a.I(f"s_call_b64 {sp(sRet)}, Lst{k}")
        a.skip_end()
    def check_slot(self, name, b, g):
        assert self.index_after((name, b, g)) <= self.pos, ("not issued", name, b, g, self.pos)
        if b == 0: assert self.index_after((name, 1, g)) - 3 >= self.pos, ("overwritten", name, g)
    def stamp(self, name=''):
        if self.c.get("marks"): self.a.raw(f"M_{name}_{len(self.snames)}:")
        if self.c.get("holdat") == name:
            self.a.I("s_memrealtime s[98:99]"); self.a.wait(lg=0)
        self.snames.append(f'{name}@{self.pos}')
        if not self.c.get("diag") or self.c.get("fine"): return
        if self.c["diag"] == 3 and name not in ("pos", "end"): self.snames.pop(); return
        if self.c["diag"] == 2 and name not in self.c.get("only", ("p1end", "p2beg", "p2end", "end")): self.snames.pop(); return
        a = self.a
        a.I(f"s_memrealtime {sp(sST)}"); a.wait(lg=0)
        a.I(f"v_writelane_b32 v{vStamp}, s{sST if not self.c.get('rcount') else sRetry}, {self.nstamp}"); self.nstamp += 1
    def publish(self, text, local_ok, tag="pub"):
        a = self.a
        if local_ok and self.c.get("local", True):
            a.I(f"s_cmp_lg_u32 s{sLocal}, 0")
            a.either(text.format(pol=""), text.format(pol="sc1"), tag=tag)
        else: a.I(text.format(pol="sc1"), tag=tag); self.boost = self.pos + self.c.get("KB", 14)
    def gather(self, loads, regs, tmp, between=None, emask=None, sleep=None, first=False, spec=(), vmask=False):
        a = self.a
        if first and between: between(); between = None
        if emask: loads = [f"s_mov_b64 exec, {emask}"] + loads + ["s_mov_b64 exec, -1"]
        for t in loads: a.I(t, tag="gat")
        last = len(a.vm.ent) - 1
        if emask or self.c.get("BG"): self.boost = self.pos + self.c.get("KB", 14)
        if between: between()
        self.fs("issued")
        n = a.vm.need(last)
        if n is not None: a.wait(vm=n)
        chk = a.label("Lc"); rt = a.label("Lr")
        a.raw(f"{chk}:"); a.no_inject += 1
        r = list(regs); ops = []
        ops.append(f"v_max3_u32 v{tmp}, v{r[0]}, v{r[1]}, v{r[2]}"); r = r[3:]
        while len(r) >= 2: ops.append(f"v_max3_u32 v{tmp}, v{tmp}, v{r[0]}, v{r[1]}"); r = r[2:]
        if r: ops.append(f"v_max_u32 v{tmp}, v{tmp}, v{r[0]}")
        ops.append(f"v_cmp_eq_u32 vcc, -1, v{tmp}")
        spec = list(spec)
        k = -(-len(ops) // max(1, len(spec)))
        while ops or spec:
            if spec: a.I(spec.pop(0))
            for t in ops[:k]: a.I(t)
            ops = ops[k:]
        if vmask: a.I(f"s_and_b64 vcc, vcc, {emask}")
        self.inl = self.c.get("inl", 0) and not a.inject
        if not (self.c.get("novalid") and a.inject): a.I(f"s_cbranch_vccz {rt}k" if self.inl else f"s_cbranch_vccnz {rt}")
        if self.c.get("narrow", 3) & (2 if emask else 1):
            loads = ["s_mov_b64 exec, vcc"] + [t for t in loads if not t.startswith("s_mov")] + ["s_mov_b64 exec, -1"]
        self.retry_block(rt, chk, loads, sleep); a.no_inject -= 1
        self.fs("valid")
    def lsleep(self): return None if self.a.inject else self.c.get('lsleep', 0)
    def retry_block(self, rt, chk, loads, sleep=None):
        a = self.a
        if sleep is None: sleep = self.c.get("sleep", 0)
        blk = ([f"  s_sleep {sleep}"] if sleep else []) + ["  " + t for t in loads]
        blk += [f"  s_add_u32 s{sRetry}, s{sRetry}, 1", f"  s_cmp_gt_u32 s{sRetry}, {self.c.get('spin', 400000)}", "  s_cbranch_scc1 L_end",
                "  s_waitcnt vmcnt(0)", f"  s_branch {chk}"]
        if self.inl: a.out += blk + [f"{rt}k:"]
        elif a.inject: a.tail += [f"{rt}:"] + blk
        else: self.hot += [f"{rt}:"] + blk
        self.inl = False
    def setup(self):
        a = self.a; I = a.I
        I(f"s_cmp_ge_u32 s{sWG}, 256\ns_cbranch_scc1 L_end")
        I(f"s_load_dwordx16 s[32:47], s[0:1], 0\ns_load_dwordx8 s[48:55], s[0:1], 64\ns_load_dwordx2 s[56:57], s[0:1], 96")
        if self.c.get("diag") or self.c.get("hold"): I(f"s_memrealtime s[96:97]")
        I(f"v_lshrrev_b32 v8, 6, v0\nv_and_b32 v0, 63, v0\nv_readfirstlane_b32 s{sWave}, v8")
        I(f"s_and_b32 s{sT0}, s{sWG}, 7\ns_lshl_b32 s{sT0}, s{sT0}, 2\ns_lshr_b32 s{sT1}, s{sWG}, 3\ns_and_b32 s{sT1}, s{sT1}, 3\ns_add_u32 s{sH}, s{sT0}, s{sT1}\ns_lshr_b32 s{sS}, s{sWG}, 5")
        I(f"v_mul_u32_u24 v8, 43, v0\nv_lshrrev_b32 v8, 10, v8\nv_mul_u32_u24 v9, 24, v8\nv_sub_u32 v9, v0, v9\nv_mul_u32_u24 v8, 0x3000, v8\nv_lshl_add_u32 v{vWq0}, v9, 4, v8")
        I(f"v_add_u32 v10, 60, v0\nv_mul_u32_u24 v8, 43, v10\nv_lshrrev_b32 v8, 10, v8\nv_mul_u32_u24 v9, 24, v8\nv_sub_u32 v9, v10, v9\nv_mul_u32_u24 v8, 0x3000, v8\nv_lshl_add_u32 v{vWq1}, v9, 4, v8")
        I(f"s_mul_i32 s{sT0}, s{sS}, {80 * 12288}\ns_mul_i32 s{sT1}, s{sWave}, {20 * 12288}\ns_add_u32 s{sT0}, s{sT0}, s{sT1}\ns_mul_i32 s{sT1}, s{sH}, 384\ns_add_u32 s{sWqRow}, s{sT0}, s{sT1}")
        I(f"s_mul_i32 s{sT0}, s{sH}, {192 * 1280}\ns_mul_i32 s{sT1}, s{sWave}, {48 * 1280}\ns_add_u32 s{sT0}, s{sT0}, s{sT1}\ns_mul_i32 s{sT1}, s{sS}, 160\ns_add_u32 s{sWoRow}, s{sT0}, s{sT1}")
        I(f"s_mul_i32 s{sLdsW}, s{sWave}, 7680\ns_mov_b32 s{m60}, -1\ns_mov_b32 s{m60+1}, 0x0fffffff\ns_mov_b32 s{WT+3}, 0x20000\ns_mov_b32 s{sRetry}, 0")
        I(f"v_and_b32 v8, 15, v0\nv_lshrrev_b32 v9, 4, v0")
        I(f"v_lshrrev_b32 v10, 1, v8\nv_mul_u32_u24 v10, 384, v10\nv_and_b32 v11, 1, v8\nv_lshl_add_u32 v11, v9, 1, v11\nv_lshl_add_u32 v{vKoff}, v11, 4, v10")
        I(f"v_mul_u32_u24 v10, 768, v9\nv_lshl_add_u32 v{vVoff}, v8, 4, v10")
        I(f"s_mul_i32 s{sT0}, s{sH}, {HSTR}\ns_mul_i32 s{sT1}, s{sS}, {128 * 384}\ns_add_u32 s{sT1}, s{sT1}, s{sT0}\ns_mul_i32 s{sT2}, s{sWave}, {32 * 384}\ns_add_u32 s{sT1}, s{sT1}, s{sT2}\ns_add_u32 s{sOffG}, s{sT1}, {3072 * 384}")
        I(f"s_mul_i32 s{sT1}, s{sS}, {512 * 384}\ns_add_u32 s{sT1}, s{sT1}, s{sT0}\ns_mul_i32 s{sT2}, s{sWave}, {128 * 384}\ns_add_u32 s{sOffP}, s{sT1}, s{sT2}")
        I(f"s_mul_i32 s{sLdsVS}, s{sWave}, 6144\ns_add_u32 s{sLdsVS}, s{sLdsVS}, {VS}")
        I(f"s_mov_b32 s{XO+2}, 2560\ns_mov_b32 s{XO+3}, 0x20000\ns_mul_i32 s{sT0}, s{sS}, 160\nv_lshlrev_b32 v7, 2, v0\nv_min_u32 v7, 156, v7")
        for srd, o in ((KA, sOffG), (VA, sOffG), (KB, sOffP), (VB, sOffP)): I(f"s_sub_u32 s{srd+2}, {KV_BYTES}, s{o}\ns_mov_b32 s{srd+3}, 0x20000")
        I(f"s_mov_b32 s{WS+2}, {WS_BYTES}\ns_mov_b32 s{WS+3}, 0x20000")
        I(f"s_mul_i32 s{sH1grp}, s{sH}, {H1_H}\ns_mul_i32 s{sT1}, s{sS}, {H1_S}\ns_add_u32 s{sH1own}, s{sH1grp}, s{sT1}" + (f"\ns_mul_i32 s{sT1}, s{sS}, 768\ns_add_u32 s{sH1c}, s{sH1grp}, s{sT1}" if COMPACT1 else ""))
        I(f"s_mul_i32 s{sH2grp}, s{sH}, {H2_H}\ns_add_u32 s{sH2grp}, s{sH2grp}, {H2}\ns_mul_i32 s{sT1}, s{sS}, {H2_S}\ns_add_u32 s{sH2own}, s{sH2grp}, s{sT1}")
        I(f"s_mul_i32 s{sH3grp}, s{sS}, {H3_S}\ns_add_u32 s{sH3grp}, s{sH3grp}, {H3}\ns_mul_i32 s{sT1}, s{sH}, {H3_H}\ns_add_u32 s{sH3own}, s{sH3grp}, s{sT1}")
        self.clear_prep([[("P", 0)], [("C", 0)], [("P", 4)], [("2", 0), ("3", 0)]])
        a.wait(lg=0)
        if self.c.get("diag"): I(f"v_mov_b32 v{vStamp}, 0\nv_writelane_b32 v{vStamp}, s96, 0"); self.nstamp = 1
        def srds(l):
            for srd, p, o in l: I(f"s_add_u32 s{srd}, s{p}, s{o}\ns_addc_u32 s{srd+1}, s{p+1}, 0")
        def small():
            I(f"s_mov_b32 s{WS}, s{pWS}\ns_mov_b32 s{WS+1}, s{pWS+1}\ns_mov_b32 s{XO}, s{pX}\ns_mov_b32 s{XO+1}, s{pX+1}")
            self.clear_issue("clr")
            if USE_HOT == 3: self.probe_store()
            I(f"buffer_load_dword v12, v7, {s4(XO)}, s{sT0} offen\nbuffer_load_dword v13, v7, {s4(XO)}, s{sT0} offen offset:1280")
        n0, n1 = self.c.get("I", (12, 24))
        srds([(KA, pKA, sOffG)])
        self.stream(min(n0, 12), paced=False)
        srds([(VA, pVA, sOffG), (KB, pKB, sOffP), (VB, pVB, sOffP)])
        self.stream_to(n0, paced=False)
        small()
        self.stream_to(n1, paced=False)
        if self.c.get("st0"):
            self.stamp("end")
            n = len(a.vm.ent)
            for k in (1, 3, 6, 9, 12, 15, 18, n): a.wait(vm=n - k); self.stamp("end")
        if self.c.get("cpf") == 1: self.code_prefetch("L_pf0", "L_pf9")
        I(f"v_mul_u32_u24 v10, 26, v0\nv_lshrrev_b32 v10, 8, v10\nv_mul_u32_u24 v11, 10, v10\nv_sub_u32 v11, v0, v11\nv_mul_u32_u24 v10, 1280, v10\nv_lshl_add_u32 v{vWo}, v11, 4, v10")
        I("v_and_b32 v10, 1, v0\nv_cmp_eq_u32 vcc, 1, v10\nv_mov_b32 v11, 0xffff\nv_mov_b32 v20, 0xffff0000\nv_cndmask_b32 v11, v11, v20, vcc\nv_bfe_u32 v10, v0, 1, 2")
        for j in range(4): I(f"v_cmp_eq_u32 vcc, {j}, v10\nv_cndmask_b32 v{vMask+j}, 0, v11, vcc")
        for m, lo, hi in ((mODD, 0xaaaaaaaa, 0xaaaaaaaa), (mRG1, 0xffff0000, 0), (mRG2, 0, 0xffff), (mRG3, 0, 0xffff0000), (mWOST, 0x5555, 0x5555), (mN10, 0x03ff03ff, 0x03ff03ff), (mBIT1, 0xcccccccc, 0xcccccccc), (mL63, 0, 0x80000000)) + (((mQ13, 0x1fff1fff, 0x1fff1fff),) if COMPACT1 else ()):
            I(f"s_mov_b32 s{m}, {lo:#x}\ns_mov_b32 s{m+1}, {hi:#x}")
        I(f"s_cmp_eq_u32 s{sWave}, 3\ns_cselect_b64 {sp(mW3)}, -1, 0\ns_min_u32 s{sW2}, s{sWave}, 2")
        if H2_S == 384:
            I(f"s_mul_i32 s{sT0}, s{sS}, -368\ns_add_u32 s{sT0}, s{sT0}, 3072\ns_lshl_b32 s{sPub2}, s{sWave}, 7\ns_cmp_eq_u32 s{sWave}, 3\ns_cselect_b32 s{sPub2}, s{sT0}, s{sPub2}")
            I(f"s_mov_b32 s{mPub2}, 0x55555555\ns_cselect_b32 s{mPub2+1}, 0, s{mPub2}\ns_cselect_b32 s{mPub2}, 0x55, s{mPub2}")
        if self.c.get("nost3"): I(f"s_cmp_lt_u32 s{sWave}, 3\ns_cselect_b32 s{mWOST+1}, 0x5555, 0\ns_cselect_b32 s{mWOST}, 0x5555, 0")
        if H3_H == 160: I(f"s_cmp_lt_u32 s{sWave}, 2\ns_cselect_b32 s{mWOST+1}, 0x5555, 0")
        I(f"s_getreg_b32 s{sXcc}, hwreg(HW_REG_XCC_ID, 0, 4)\ns_add_u32 s{sXcc}, s{sXcc}, 1")
        for r, m, base in ((sXROWw, 160, XROW), (sYw, 320, Y), (sQw, 96, QB)): I(f"s_mul_i32 s{r}, s{sWave}, {m}\ns_add_u32 s{r}, s{r}, {base}")
        I(f"v_add_u32 v10, s{sXROWw}, v7\nv_add_u32 v11, {ONES}, v7\nv_mov_b32 v20, 0x3f803f80")
        I("ds_write_b32 v11, v20\nds_write_b32 v10, v12\nds_write_b32 v10, v13 offset:640")
        I(f"s_mov_b32 s{XO}, s{pOUT}\ns_mov_b32 s{XO+1}, s{pOUT+1}")
        if COMPACT1: I(f"s_mov_b32 s{mPub1}, -1\ns_cmp_eq_u32 s{sWave}, 0\ns_cselect_b32 s{mPub1+1}, 0xfffff, 0\ns_or_b32 s{mPub1+1}, s{mPub1+1}, 0xffff")
    def clear_prep(self, jobs):
        I = self.a.I
        I("v_mov_b32 v16, -1\nv_mov_b32 v17, -1\nv_mov_b32 v18, -1\nv_mov_b32 v19, -1\nv_lshlrev_b32 v14, 4, v0")
        def seg(k, inst, hi):
            if k == "P" and c1(inst): return sH1c, inst * H1_I, (0x1ffff if hi else -1)
            if k in "PC": return h1(inst)[0], h1(inst)[2] + (1024 if k == "C" else 0), -1
            if k == "2": return h2(inst)[0], h2(inst)[2] - 512 * hi, (0x1ffffff if H2_S == 384 else -1)
            return h3(inst)[0], h3(inst)[2] - 512 * hi, (0x3ff if H3_H == 160 else 0xffff if self.c.get('clr256') else 0xfff)
        for w, job in enumerate(jobs):
            lo = seg(*job[0], 0); hi = seg(*job[-1], 1)
            for (r, o, m), dst, md in ((lo, sT1, sClr), (hi, sT2, sClr + 1)):
                if w == 0: I(f"s_add_u32 s{dst}, s{r}, {o & 0xffffffff}\ns_mov_b32 s{md}, {m}")
                else: I(f"s_add_u32 s{sOff}, s{r}, {o & 0xffffffff}\ns_cmp_eq_u32 s{sWave}, {w}\ns_cselect_b32 s{dst}, s{sOff}, s{dst}\ns_cselect_b32 s{md}, {m}, s{md}")
        self.off_val = None
        I(f"v_mov_b32 v15, s{sT1}\nv_mov_b32 v20, s{sT2}\nv_cmp_lt_u32 vcc, 31, v0\nv_cndmask_b32 v15, v15, v20, vcc\nv_add_u32 v15, v15, v14")
        if any(k == "P" and c1(i) for job in jobs for k, i in job):
            I(f"s_mov_b32 s{sT1}, 0\ns_mov_b32 s{sT2}, 0")
            for w, job in enumerate(jobs):
                if job[0][0] == "P" and c1(job[0][1]): I(f"s_cmp_eq_u32 s{sWave}, {w}\ns_cselect_b32 s{sT2}, 0x10000, s{sT2}")
            self.off_val = None; self.a.no_inject += 1
            I(f"s_mul_i32 s{sOff}, s{sS}, -752\ns_add_u32 s{sOff}, s{sOff}, {6144 - 768}\nv_add_u32 v20, s{sOff}, v15\nv_cndmask_b32 v15, v15, v20, {sp(sT1)}")
            self.a.no_inject -= 1
        if H2_S == 384 and any(k == "2" for job in jobs for k, _ in job):
            I(f"s_mov_b32 s{sT1}, 0\ns_mov_b32 s{sT2}, 0")
            for w, job in enumerate(jobs):
                for (k, _), dst in ((job[0], sT1), (job[-1], sT2)):
                    if k == "2": I(f"s_cmp_eq_u32 s{sWave}, {w}\ns_cselect_b32 s{dst}, 0x1000000, s{dst}")
            self.off_val = None; self.a.no_inject += 1
            I(f"s_mul_i32 s{sOff}, s{sS}, -368\ns_add_u32 s{sOff}, s{sOff}, {3072 - 384}\nv_add_u32 v20, s{sOff}, v15\nv_cndmask_b32 v15, v15, v20, {sp(sT1)}")
            self.a.no_inject -= 1
    def clear_issue(self, tag, local_ok=False):
        I = self.a.I
        I(f"s_mov_b64 exec, {sp(sClr)}")
        self.publish(f"buffer_store_dwordx4 v[16:19], v15, {s4(WS)}, 0 offen {{pol}}", local_ok, tag=tag)
        I("s_mov_b64 exec, -1")
    def tlb_touch(self):
        a = self.a; I = a.I
        ent = []
        for p, o, span in ((pWQA, sWqRow, 20 * 12288), (pKA, sOffG, 12288), (pVA, sOffG, 12288), (pWOA, sWoRow, 48 * 1280), (pWQB, sWqRow, 20 * 12288),
                           (pKB, sOffP, 49152), (pWOB, sWoRow, 48 * 1280), (pVB, sOffP, 49152)):
            for b in range(2 if o in (sOffG, sOffP) else 1): ent.append((p, o, b * BSTR))
        if self.c["tlb"] > 1:
            ent += [(pWS, None, 0), (pWS, None, 2 << 20), (pWS, None, 4 << 20), (pDBG, None, 0), (pOUT, None, 0)]
        for i, (p, o, c) in enumerate(ent):
            if o is None: I(f"s_add_u32 s{sT1}, s{p}, {c}\ns_addc_u32 s{sT2}, s{p+1}, 0")
            else:
                I(f"s_add_u32 s{sT1}, s{p}, s{o}\ns_addc_u32 s{sT2}, s{p+1}, 0")
                if c: I(f"s_add_u32 s{sT1}, s{sT1}, {c}\ns_addc_u32 s{sT2}, s{sT2}, 0")
            if i == 0: I(f"v_mov_b32 v14, s{sT1}\nv_mov_b32 v15, s{sT2}")
            else: I(f"v_writelane_b32 v14, s{sT1}, {i}\nv_writelane_b32 v15, s{sT2}, {i}")
        I(f"s_mov_b64 exec, {(1 << len(ent)) - 1}\nglobal_load_dword v250, v[14:15], off nt\ns_mov_b64 exec, -1")
    def code_prefetch(self, lo, hi):
        a = self.a; I = a.I
        l = a.label("Lp")
        I(f"s_getpc_b64 {sp(sT1)}"); a.raw(f"{l}:")
        I(f"s_add_u32 s{sT1}, s{sT1}, {lo}-{l}\ns_addc_u32 s{sT2}, s{sT2}, 0")
        I(f"s_lshr_b32 s{sT0}, s{sWG}, 3\ns_lshl_b32 s{sT0}, s{sT0}, 2\ns_add_u32 s{sT0}, s{sT0}, s{sWave}\ns_lshl_b32 s{sT0}, s{sT0}, 13")
        I(f"v_lshl_add_u32 v30, v0, 7, s{sT0}\nv_cmp_gt_u32 vcc, {hi}-{lo}, v30\ns_mov_b32 m0, {JUNK}")
        I("s_and_b64 exec, vcc, -1"); a.skip_begin("s_cbranch_execz")
        I(f"global_load_lds_dword v30, {sp(sT1)}")
        a.skip_end()
        I("s_mov_b64 exec, -1")
    def probe_store(self):
        a = self.a; I = a.I
        I(f"s_add_u32 s{sX1own}, s{WS}, {(8 << 20) - 1}\ns_and_b32 s{sX1own}, s{sX1own}, 0xffe00000\ns_sub_u32 s{sX1own}, s{sX1own}, s{WS}")
        I(f"s_lshr_b32 s{sT1}, s{sWG}, 4\ns_lshl_b32 s{sT1}, s{sT1}, 14\ns_bfe_u32 s{sT2}, s{sWG}, 0x10003\ns_lshl_b32 s{sT2}, s{sT2}, 12\ns_add_u32 s{sT1}, s{sT1}, s{sT2}")
        I(f"s_and_b32 s{sT2}, s{sWG}, 7\ns_lshl_b32 s{sT2}, s{sT2}, 7\ns_add_u32 s{sT1}, s{sT1}, s{sT2}\ns_add_u32 s{sT1}, s{sT1}, {X3 + 3072}\ns_add_u32 s{sX3g1}, s{sX1own}, s{sT1}")
        I(f"s_lshr_b32 s{sT1}, s{sWG}, 6\ns_lshl_b32 s{sT1}, s{sT1}, 14\ns_and_b32 s{sT2}, s{sWG}, 63\ns_lshl_b32 s{sT2}, s{sT2}, 7\ns_add_u32 s{sT1}, s{sT1}, s{sT2}\ns_add_u32 s{sT1}, s{sT1}, {XP}\ns_add_u32 s{sX1own}, s{sX1own}, s{sT1}")
        I(f"s_cmp_ge_u32 s{sWG}, {self.c.get('NV', 32)}\ns_cselect_b32 s{sT1}, 1, s{sWave}\ns_cmp_lg_u32 s{sT1}, 0"); a.skip_begin("s_cbranch_scc1")
        I(f"v_and_b32 v15, 8, v0\nv_lshlrev_b32 v15, 10, v15\nv_add_u32 v15, s{sX1own}, v15\nv_mov_b32 v20, s{sX3g1}\nv_cmp_lt_u32 vcc, 15, v0\nv_cndmask_b32 v15, v15, v20, vcc")
        I(f"v_and_b32 v20, 7, v0\nv_lshl_add_u32 v15, v20, 4, v15\ns_mov_b64 exec, 0xffffff")
        I(f"buffer_store_dwordx4 v[16:19], v15, {s4(WS)}, 0 offen sc1", tag="prb")
        I("s_mov_b64 exec, -1")
        a.skip_end()
    def arrive(self):
        a = self.a; I = a.I
        I(f"s_cmp_lg_u32 s{sWave}, 0"); a.skip_begin("s_cbranch_scc1")
        src = sXcc
        if USE_HOT == 3:
            NV = self.c.get("NV", 32)
            I(f"s_mov_b32 s{sT2}, s{sXcc}\ns_cmp_ge_u32 s{sWG}, {NV}"); a.skip_begin("s_cbranch_scc1")
            a.wait_tag("prb")
            I(f"s_load_dword s{sT1}, {sp(WS)}, s{sX3g1}"); a.wait(lg=0)
            I(f"s_add_u32 s{sT0}, s{sX1own}, 8192\ns_memtime s[0:1]"); a.wait(lg=0)
            I(f"s_load_dword s{sT1}, {sp(WS)}, s{sX1own}"); a.wait(lg=0)
            I(f"s_memtime {sp(sX3g0)}"); a.wait(lg=0)
            I(f"s_load_dword s{sT1}, {sp(WS)}, s{sT0}"); a.wait(lg=0)
            I(f"s_memtime {sp(sX1grp)}"); a.wait(lg=0)
            I(f"s_sub_u32 s0, s{sX3g0}, s0\ns_sub_u32 s1, s{sX1grp}, s{sX3g0}\ns_cmp_gt_u32 s0, s1\ns_cselect_b32 s{sT0}, 0x80, 0")
            I(f"s_sub_u32 s{sT1}, s{sXcc}, 1\ns_and_b32 s{sT1}, s{sT1}, 4\ns_lshl_b32 s{sT1}, s{sT1}, 5\ns_xor_b32 s{sT0}, s{sT0}, s{sT1}\ns_or_b32 s{sT2}, s{sT0}, s{sXcc}")
            a.skip_end()
            src = sT2
        I(f"s_and_b32 s{sT0}, s{sWG}, 3\ns_lshl_b32 s{sT0}, s{sT0}, 3\ns_lshl_b32 s{sT0}, s{src}, s{sT0}\ns_and_b32 s{sT1}, s{sWG}, 0xfc")
        I(f"v_mov_b32 v8, s{sT1}\nv_mov_b32 v9, s{sT0}\ns_mov_b64 exec, 1")
        I(f"global_atomic_add v8, v9, {sp(pDBG)} sc1\ns_mov_b64 exec, -1")
        a.skip_end()
    def handshake(self, between):
        a = self.a; I = a.I
        I("v_lshlrev_b32 v7, 2, v0")
        ld = f"global_load_dword v8, v7, {sp(pDBG)} sc1"
        I(ld); last = len(a.vm.ent) - 1
        between()
        n = a.vm.need(last)
        if n is not None: a.wait(vm=n)
        chk = a.label("Lc"); rt = a.label("Lr")
        a.raw(f"{chk}:"); a.no_inject += 1
        I("v_subrev_u32 v9, 0x01010101, v8\nv_not_b32 v10, v8\nv_and_b32 v9, v9, v10\nv_and_b32 v9, 0x80808080, v9\nv_cmp_ne_u32 vcc, 0, v9")
        I(f"s_cbranch_vccnz {rt}")
        self.retry_block(rt, chk, [ld]); a.no_inject -= 1
        if USE_HOT: self.sides()
        I(f"s_and_b32 s{sT0}, s{sWG}, 3\ns_lshl_b32 s{sT0}, s{sT0}, 3\nv_lshrrev_b32 v8, s{sT0}, v8\nv_and_b32 v8, 0xff, v8")
        I(f"s_bfe_u32 s{sT0}, s{sWG}, 0x30002\nv_and_b32 v9, 7, v0\nv_cmp_eq_u32 {sp(sT1)}, s{sT0}, v9\nv_cmp_ne_u32 vcc, s{sXcc}, v8")
        I(f"s_and_b64 vcc, vcc, {sp(sT1)}\ns_cmp_eq_u64 vcc, 0\ns_cselect_b32 s{sLocal}, 1, 0")
    def sides(self):
        a = self.a; I = a.I; a.no_inject += 1
        if USE_HOT == 3:
            I(f"s_mov_b32 s{sOffW}, 0")
            for k in range(4):
                I(f"v_bfe_u32 v9, v8, {8 * k + 7}, 1\nv_cmp_ne_u32 vcc, 0, v9\ns_bcnt1_i32_b64 s{sT0}, vcc\ns_add_u32 s{sOffW}, s{sOffW}, s{sT0}")
            I("v_and_b32 v8, 0x7f7f7f7f, v8")
        if USE_HOT == 2: I(f"s_mov_b32 s{sT1}, 0\ns_mov_b32 s{sT2}, 0x01010101")
        else:
            I(f"v_readlane_b32 s{sT1}, v8, 0\nv_readlane_b32 s{sT2}, v8, 1\nv_mov_b32 v9, s{sT1}\nv_mov_b32 v10, s{sT2}\nv_cndmask_b32 v9, v9, v10, {sp(mODD)}\nv_cmp_ne_u32 vcc, v8, v9")
            I(f"s_and_b32 s{sT0}, s{sWG}, 7\ns_lshl_b32 s{sT0}, s{sT0}, 3\ns_lshr_b64 s[0:1], {sp(sT1)}, s{sT0}\ns_and_b32 s0, s0, 0xff\ns_cmp_eq_u32 s0, s{sXcc}\ns_cselect_b64 vcc, vcc, -1")
            I(f"s_sub_u32 s{sT1}, s{sT1}, 0x01010101\ns_sub_u32 s{sT2}, s{sT2}, 0x01010101\ns_lshr_b32 s{sT1}, s{sT1}, 2\ns_lshr_b32 s{sT2}, s{sT2}, 2\ns_and_b32 s{sT1}, s{sT1}, 0x01010101\ns_and_b32 s{sT2}, s{sT2}, 0x01010101")
            I(f"s_xor_b32 s{sT0}, s{sT1}, s{sT2}\ns_cmp_eq_u32 s{sT0}, 0x01010101\ns_cselect_b32 s{sLocal}, 1, 0\ns_cmp_eq_u64 vcc, 0\ns_cselect_b32 s{sLocal}, s{sLocal}, 0")
            if USE_HOT == 3: I(f"s_cmp_gt_u32 s{sOffW}, {self.c.get('NV', 32) // 2}\ns_cselect_b32 s{sT0}, 0x01010101, 0\ns_xor_b32 s{sT1}, s{sT1}, s{sT0}\ns_xor_b32 s{sT2}, s{sT2}, s{sT0}")
            if self.c.get("pol"): I(f"s_xor_b32 s{sT1}, s{sT1}, 0x01010101\ns_xor_b32 s{sT2}, s{sT2}, 0x01010101")
            I(f"s_cmp_lg_u32 s{sLocal}, 0\ns_cselect_b32 s{sT1}, s{sT1}, 0\ns_cselect_b32 s{sT2}, s{sT2}, 0x01010101")
        I(f"s_mov_b64 s[40:41], {sp(sT1)}")
        def side(dst, k): I(f"s_lshr_b64 s[0:1], {sp(sT1)}, s{k}\ns_and_b32 s{dst}, s0, 1\ns_lshl_b32 s{dst}, s{dst}, 13")
        I(f"s_add_u32 s{sOffP}, s{WS}, {(8 << 20) - 1}\ns_and_b32 s{sOffP}, s{sOffP}, 0xffe00000\ns_sub_u32 s{sOffP}, s{sOffP}, s{WS}")
        I(f"s_and_b32 s{sT0}, s{sWG}, 7\ns_lshl_b32 s{sT0}, s{sT0}, 3"); side(sOffG, sT0)
        I(f"s_add_u32 s{sOffG}, s{sOffG}, s{sOffP}")
        I(f"s_and_b32 s{sT0}, s{sH}, 15\ns_lshl_b32 s{sX1grp}, s{sT0}, 14\ns_add_u32 s{sX1grp}, s{sX1grp}, s{sOffG}\ns_lshl_b32 s0, s{sS}, 10\ns_add_u32 s{sX1own}, s{sX1grp}, s0")
        I(f"s_lshr_b32 s0, s{sT0}, 1\ns_lshl_b32 s0, s0, 14\ns_and_b32 s1, s{sT0}, 1\ns_lshl_b32 s1, s1, 12\ns_add_u32 s0, s0, s1\ns_add_u32 s0, s0, {X2}\ns_add_u32 s{sX2grp}, s0, s{sOffG}\ns_mul_i32 s0, s{sS}, {H2_S}\ns_add_u32 s{sX2own}, s{sX2grp}, s0")
        I(f"s_lshr_b32 s0, s{sS}, 1\ns_lshl_b32 s0, s0, 14\ns_and_b32 s1, s{sS}, 1\ns_lshl_b32 s1, s1, 12\ns_add_u32 s0, s0, s1\ns_add_u32 s{sOffW}, s0, {X3}")
        I(f"s_mul_i32 s0, s{sT0}, {H3_H}\ns_add_u32 s0, s0, s{sOffW}\ns_add_u32 s{sX3own}, s0, s{sOffG}\ns_add_u32 s{sOffW}, s{sOffW}, s{sOffP}")
        for j, dst in enumerate((sX3g0, sX3g1)):
            I(f"s_lshl_b32 s{sT0}, s{sWave}, 4\ns_add_u32 s{sT0}, s{sT0}, {8 * j}"); side(dst, sT0)
            I(f"s_lshl_b32 s0, s{sWave}, 1\ns_add_u32 s0, s0, {j}\ns_and_b32 s0, s0, 3\ns_mul_i32 s0, s0, {4 * H3_H}\ns_add_u32 s{dst}, s{dst}, s0\ns_add_u32 s{dst}, s{dst}, s{sOffW}")
        a.no_inject -= 1
    WQB = [(24, 28, 32), (34, 38, 42), (44, 48, 52)]
    def wq_pre(self, ty):
        a = self.a; I = a.I
        I(f"v_bfe_u32 v7, v0, 2, 2\nv_lshrrev_b32 v9, 4, v0\nv_lshl_add_u32 v8, v9, 3, v7\nv_lshl_add_u32 v7, v9, 2, v7")
        I(f"v_and_b32 v9, 3, v0\nv_lshlrev_b32 v9, 3, v9\ns_mul_i32 s{sT0}, s{sWave}, 96\ns_add_u32 s{sT0}, s{sT0}, {WQ[ty]}\nv_add_u32 v9, s{sT0}, v9")
        I(f"s_movk_i32 s{sT0}, 384\nv_mad_u32_u24 v8, v8, s{sT0}, v9\nv_mad_u32_u24 v7, v7, s{sT0}, v9")
        for T, (b0, b1, b2) in enumerate(self.WQB):
            for t, r in ((0, b0), (1, b1)):
                I(f"ds_read_b64_tr_b16 {v2(r)}, v8 offset:{12288 * t + 32 * T}\nds_read_b64_tr_b16 {v2(r+2)}, v8 offset:{12288 * t + 1536 + 32 * T}")
            I(f"ds_read_b64_tr_b16 {v2(b2)}, v7 offset:{24576 + 32 * T}")
    def wq_addr(self, b, L):
        I = self.a.I
        I(f"v_mov_b32 v22, s{sXROWw}\nv_mov_b32 v23, {ONES - 640 * b}")
        I(f"v_cndmask_b32 v23, v22, v23, {sp(mODD)}\nv_lshrrev_b32 v21, 4, v0\nv_lshl_add_u32 v22, v21, 4, v23\nv_lshl_add_u32 v23, v21, 3, v23")
    def wq_main(self, b, L, local_ok=True, hoisted=False, hoist=False):
        a = self.a; a.comment(f"---- row {b} layer {L}: q projection partial"); I = a.I; inst = 4 * b + L; needC = inst < 2
        if not hoisted: self.wq_addr(b, L)
        I(f"ds_read_b128 v[12:15], v22 offset:{640 * b}\nds_read_b128 v[16:19], v22 offset:{640 * b + 64}\nds_read_b64 v[20:21], v23 offset:{640 * b + 128}")
        if c1(inst):
            I(f"s_mul_i32 s{sT0}, s{sWave}, 192\nv_lshl_add_u32 v7, v0, 2, s{sT0}\ns_mul_i32 s{sT0}, s{sS}, -752\ns_add_u32 s{sT0}, s{sT0}, {6144 - 192}\nv_lshl_add_u32 v23, v0, 2, s{sT0}")
            I(f"v_cndmask_b32 v7, v7, v23, {sp(mRG3)}\ns_add_u32 s{sOffP}, s{sH1c}, {inst * H1_I}")
        else: I(f"s_lshl_b32 s{sT0}, s{sWave}, 8\nv_lshl_add_u32 v7, v0, 2, s{sT0}\ns_add_u32 s{sOffP}, s{h1(inst)[0]}, {h1(inst)[2]}")
        if hoist: self.qg_addr(b, L)
        D = [8, 24, 28]
        for T, (b0, b1, b2) in enumerate(self.WQB):
            I(f"v_mfma_f32_16x16x32_bf16 {v4(D[T])}, v[12:15], {v4(b0)}, 0")
            I(f"v_mfma_f32_16x16x32_bf16 {v4(D[T])}, v[16:19], {v4(b1)}, {v4(D[T])}")
        I("v_mfma_f32_16x16x32_bf16 v[34:37], v[12:15], v[12:15], 0\nv_mfma_f32_16x16x32_bf16 v[34:37], v[16:19], v[16:19], v[34:37]")
        for T, (b0, b1, b2) in enumerate(self.WQB):
            I(f"v_mfma_f32_16x16x16_bf16 {v4(D[T])}, v[20:21], {v2(b2)}, {v4(D[T])}")
        I("v_mfma_f32_16x16x16_bf16 v[34:37], v[20:21], v[20:21], v[34:37]")
        for r in range(2 if needC else 1):
            I(f"v_cndmask_b32 v{22+r}, v{8+r}, v{24+r}, {sp(mRG1)}\nv_cndmask_b32 v{22+r}, v{22+r}, v{28+r}, {sp(mRG2)}\nv_cndmask_b32 v{22+r}, v{22+r}, v34, {sp(mRG3)}\nv_min_u32 v{22+r}, -2, v{22+r}")
            if c1(inst): I(f"s_mov_b64 exec, {sp(mPub1)}")
            self.publish(f"buffer_store_dword v{22+r}, v7, {s4(WS)}, s{sOffP} offen offset:{1024 * r} {{pol}}", local_ok)
            if c1(inst): I("s_mov_b64 exec, -1")
    def qg_addr(self, b, L):
        I = self.a.I
        if c1(4 * b + L):
            I(f"v_and_b32 v23, 15, v0\nv_lshrrev_b32 v54, 4, v0\nv_mul_u32_u24 v54, 768, v54\nv_lshl_add_u32 v54, v23, 4, v54\ns_mul_i32 s{sT0}, s{sWave}, 192\nv_add_u32 v54, s{sT0}, v54")
            I(f"s_add_u32 s{sOffG}, s{sH1grp}, {(4 * b + L) * H1_I}")
            return
        I(f"v_and_b32 v23, 15, v0\nv_lshrrev_b32 v54, 4, v0\nv_mul_u32_u24 v54, {h1(4 * b + L)[3]}, v54\nv_lshl_add_u32 v54, v23, 4, v54\ns_lshl_b32 s{sT0}, s{sWave}, 8")
        I(f"s_add_u32 s{sOffG}, s{h1(4 * b + L)[1]}, s{sT0}\ns_add_u32 s{sOffG}, s{sOffG}, {h1(4 * b + L)[2]}\ns_add_u32 s{sOffG2}, s{sOffG}, {4 * h1(4 * b + L)[3]}")
    def qg(self, b, L, between=None, hoisted=False, after=None, tail=False):
        a = self.a; a.comment(f"---- row {b} layer {L}: gather q partials, LayerNorm scale"); I = a.I; inst = 4 * b + L; needC = inst < 2; ty = L & 1
        if not hoisted: self.qg_addr(b, L)
        loads = [f"buffer_load_dwordx4 v[12:15], v54, {s4(WS)}, s{sOffG} offen sc1", f"buffer_load_dwordx4 v[16:19], v54, {s4(WS)}, s{sOffG2} offen sc1"]
        cc = c1(inst)
        if cc: loads = [f"buffer_load_dwordx4 v[12:15], v54, {s4(WS)}, s{sOffG} offen sc1", f"buffer_load_dwordx4 v[16:19], v36, {s4(WS)}, s{sOffG} offen sc1"]
        def addr2():
            I(f"v_add_u32 v36, 3072, v54\nv_and_b32 v37, 48, v0\nv_add_u32 v37, 6144, v37\ns_mov_b32 vcc_lo, 0x10001000\ns_mov_b32 vcc_hi, 0x10001000")
            I("v_cndmask_b32 v54, v54, v37, vcc\nv_add_u32 v37, 64, v37\nv_cndmask_b32 v36, v36, v37, vcc")
        if needC: loads += [f"buffer_load_dwordx4 v[20:23], v54, {s4(WS)}, s{sOffG} offen offset:1024 sc1", f"buffer_load_dwordx4 v[24:27], v54, {s4(WS)}, s{sOffG2} offen offset:1024 sc1"]
        def pre():
            I(f"v_and_b32 v32, 15, v0\nv_lshrrev_b32 v33, 4, v0\nv_and_b32 v34, 1, v33\nv_lshlrev_b32 v34, 1, v34\nv_lshrrev_b32 v28, 1, v33\nv_or_b32 v34, v34, v28\nv_lshl_add_u32 v34, v32, 2, v34")
            I(f"v_lshl_add_u32 v34, v34, 1, s{sQw}\nv_lshl_add_u32 v29, v0, 2, s{sCTw}")
            if not needC: I(f"ds_read_b32 v20, v29 offset:{1024 * ty}")
            self.q_addr(b)
            I(f"v_mov_b32 v35, {f32(1 / (640 * SCALE))}\nv_mov_b32 v32, {f32(1 / (640 * SCALE * SCALE))}\nv_mov_b32 v33, {f32(1e-5 / (SCALE * SCALE))}")
        first = hoisted and self.c.get('first', 3) & 2
        if cc: addr2()
        if first: pre()
        def shadow():
            if not first: pre()
            if tail and self.c.get("tq", 0): self.tail_addr(b, L)
            if tail and L == 2 and self.c.get("v2", 1):
                I(f"v_lshl_add_u32 v37, v0, 4, s{sLdsVS}")
                for c in range(3): I(f"ds_read_b128 {v4(vU + 2 + 4 * c)}, v37 offset:{1024 * c}")
            if between: between()
        self.gather(loads, range(12, 28 if needC else 20), 28, between=shadow, sleep=self.lsleep(), emask=sp(mQ13) if cc else None, vmask=cc)
        if after: after()
        def red(r):
            I(f"v_pk_add_f32 {v2(r)}, {v2(r)}, {v2(r+4)}\nv_pk_add_f32 {v2(r+2)}, {v2(r+2)}, {v2(r+6)}")
            I(f"v_permlane32_swap_b32 v{r}, v{r+1}\nv_permlane32_swap_b32 v{r+2}, v{r+3}\nv_add_f32 v{r}, v{r}, v{r+1}\nv_add_f32 v{r+2}, v{r+2}, v{r+3}")
            I(f"v_permlane16_swap_b32 v{r}, v{r+2}\nv_add_f32 v{r}, v{r}, v{r+2}")
        red(12)
        I(f"v_readlane_b32 s{sT0}, v12, 12\nv_readlane_b32 s{sT1}, v12, 44")
        if needC: red(20); I(f"v_mul_f32 v20, {f32(SCALE)}, v20\nds_write_b32 v29, v20 offset:{1024 * ty}")
        I(f"s_mov_b32 exec_lo, 0x0fff0fff\ns_mov_b32 exec_hi, 0x0fff0fff")
        I(f"v_mul_f32 v15, s{sT1}, v35\nv_fma_f32 v14, s{sT0}, v32, v33\nv_fma_f32 v14, -v15, v15, v14\nv_max_f32 v14, v33, v14\nv_rsq_f32 v14, v14")
        I(f"v_fma_f32 v12, -v15, v20, v12\nv_mul_f32 v12, v12, v14\nv_cvt_pk_bf16_f32 v12, v12, v12")
        I(f"ds_write_b16 v34, v12 offset:{384 * b}\ns_mov_b64 exec, -1")
        a.barrier()
    def tail_addr(self, b, L):
        I = self.a.I; inst = 4 * b + L
        I(f"v_and_b32 v50, 15, v0\nv_lshlrev_b32 v50, 5, v50\nv_and_b32 v51, 16, v0\nv_add3_u32 v50, v50, v51, s{sATTw}\nv_mov_b32 v51, s{sSTATw}")
        self.wo_addr(b, L)
        I(f"v_mov_b32 v9, {STAT}\nv_lshl_add_u32 v10, v0, 2, s{sCOMBw}")
        if H2_S == 384: I(f"v_lshl_add_u32 v11, v0, 1, s{sPub2}\ns_add_u32 s{sOffP}, s{h2(inst)[0]}, {h2(inst)[2]}")
        else: I(f"s_lshl_b32 s{sT0}, s{sWave}, 7\nv_lshl_add_u32 v11, v0, 1, s{sT0}\ns_add_u32 s{sOffP}, s{h2(inst)[0]}, {h2(inst)[2]}")
    def q_addr(self, b):
        self.a.I(f"v_and_b32 v30, 1, v0\nv_lshrrev_b32 v31, 4, v0\nv_lshlrev_b32 v31, 5, v31\nv_lshl_add_u32 v30, v30, 4, v31\nv_add_u32 v30, {QB + 384 * b}, v30")
    def att(self, b, L, hook1=None, hook2=None, hookm=None, pre_bar=None, guard=False, hoist=False, qaddr=False):
        a = self.a; a.comment(f"---- row {b} layer {L}: attention"); I = a.I; ty = L & 1; G = 16 if ty else 4; Kn = "KB" if ty else "KA"; Vn = "VB" if ty else "VA"
        vM, vL = 52, 53
        if not qaddr: self.q_addr(b)
        for t in range(3): I(f"ds_read_b128 {v4(vQ + 4 * t)}, v30 offset:{128 * t}")
        def lds_v(g):
            a.wait_tag(("VS", b, g))
            I(f"v_lshl_add_u32 v54, v0, 4, s{sLdsVS}")
            for c in range(3): I(f"ds_read_b128 {v4(vU + 2 + 4 * c)}, v54 offset:{(g - 2) * 3072 + 1024 * c}")
        early = (not ty) and L == 2
        if early and not self.c.get('v2', 1): lds_v(2)
        if not (qaddr and self.c.get("tq", 0)):
            if self.c.get("fill", 1):
                if self.c.get("touch", 4) == 4 and L >= 2 and (b, L) != (0, 3): a.queue(lambda: self.touch_fill(b, L))
                a.queue(lambda: self.tail_addr(b, L)); a.drain(self.c.get("fill0", 8))
            else: self.tail_addr(b, L)
        def D(g): return vACC + 4 * (g % 3)
        dm = "row_mask:0xf"; NP = G // 2
        order = list(range(G)) if ty else ([2, 0, 1, 3] if early else [0, 1, 2, 3])
        at = {g: i for i, g in enumerate(order)}
        U = lambda g: vU + at[g] // 2
        bank = lambda g, hi: (1 << (at[g] & 1)) << (2 * hi)
        spread = []; got = {}
        for g in range(G + 2):
            K = SLOT[(Kn, g)] if g < G else None
            if K: self.check_slot(Kn, b, g)
            e = g - 2
            if K: I(f"v_mfma_f32_16x16x32_bf16 {v4(D(g))}, {K[0]}, {v4(vQ)}, 0")
            if spread and K: I(spread.pop(0))
            if g == 1 and self.c.get("fa"): self.fs("g1")
            if K: a.drain(2)
            if K: I(f"v_mfma_f32_16x16x32_bf16 {v4(D(g))}, {K[1]}, {v4(vQ+4)}, {v4(D(g))}")
            if K and e < 0: a.drain(2)
            if 0 <= e < G: I(f"v_add_f32_dpp v{U(e)}, v{D(e)}, v{D(e)+1} quad_perm:[0,0,2,2] {dm} bank_mask:{bank(e, 0):#x}")
            if K: I(f"v_mfma_f32_16x16x32_bf16 {v4(D(g))}, {K[2]}, {v4(vQ+8)}, {v4(D(g))}")
            if g == G + 1 and NP > 3: I(f"v_max3_f32 v{vM}, v{vU}, v{vU+1}, v{vU+2}\nv_max3_f32 v{vM}, v{vM}, v{vU+3}, v{vU+4}")
            if K and e < 0: a.drain(2)
            if hook1 and g < G: hook1(g)
            if 0 <= e < G: I(f"v_add_f32_dpp v{U(e)}, v{D(e)+2}, v{D(e)+3} quad_perm:[0,0,2,2] {dm} bank_mask:{bank(e, 1):#x}")
            if 0 <= e < G:
                got[U(e)] = got.get(U(e), 0) + 1
                if got[U(e)] == 2: spread.append(f"v_mov_b32_dpp v{U(e)}, v{U(e)} quad_perm:[1,1,3,3] {dm} bank_mask:0xf")
        a.fill = spread + a.fill
        if self.c.get("fa"): self.fs("p1")
        if hookm: hookm()
        if NP > 3: I(f"v_max3_f32 v{vM}, v{vM}, v{vU+5}, v{vU+6}\nv_max_f32 v{vM}, v{vM}, v{vU+7}")
        else: I(f"v_max_f32 v{vM}, v{vU}, v{vU+1}")
        red = ("row_ror:8 row_mask:0xf", "row_ror:4 row_mask:0xf", "row_bcast:15 row_mask:0xa", "row_bcast:31 row_mask:0xc")
        for x in red: I(f"v_max_f32_dpp v{vM}, v{vM}, v{vM} {x} bank_mask:0xf")
        I(f"v_readlane_b32 s{sM}, v{vM}, 63")
        def prob(p): return [f"v_subrev_f32 v{vU+p}, s{sM}, v{vU+p}", f"v_exp_f32 v{vU+p}, v{vU+p}",
                             f"v_mov_b32 v{vL}, v{vU+p}" if p == 0 else f"v_add_f32 v{vL}, v{vL}, v{vU+p}",
                             f"v_cvt_pk_bf16_f32 v{vU+p}, v{vU+p}, v{vU+p}"]
        def diag(i, j):
            d = vQ + 4 * (i & 1) + j; u = vU + i // 2
            if (j >> 1) == (i & 1): I(f"v_and_b32 v{d}, v{u}, v{vMask + j}")
            else: I(f"v_and_b32_dpp v{d}, v{u}, v{vMask + j} {'row_shl:4' if i & 1 else 'row_shr:4'} {dm} bank_mask:0xf bound_ctrl:0")
        a.drain()
        p0 = prob(0); p1 = prob(1)
        for t in (p0[0], p0[1], p1[0], p0[2], p0[3], p1[1]): I(t)
        pend = p1[2:]
        for j in (0, 1, 2, 3): diag(0, j)
        I(f"v_mov_b32 v{vM}, s{sM}\nds_write_b32 v51, v{vM}") if not guard else None
        if guard: a.barrier(); I(f"v_mov_b32 v{vM}, s{sM}\nds_write_b32 v51, v{vM}")
        if self.c.get("fa"): self.fs("p2start")
        lred = []
        for i, g in enumerate(order):
            self.check_slot(Vn, b, g)
            if (Vn, g) in SLOT: V = SLOT[(Vn, g)]
            else:
                if not early: lds_v(g)
                V = [v4(vU + 2 + 4 * c) for c in range(3)]
            A = v4(vQ + 4 * (i & 1))
            nx = i + 1 < G
            if (i & 1) == 1 and i // 2 + 2 < NP: assert not pend; pend = prob(i // 2 + 2)
            if i == G - 2: assert not pend; lred = [f"v_add_f32_dpp v{vL}, v{vL}, v{vL} {x} bank_mask:0xf" for x in red]
            for c in range(3):
                acc = v4(vACC + 4 * c)
                I(f"v_mfma_f32_16x16x32_bf16 {acc}, {A}, {V[c]}, {acc if i else 0}")
                if nx and c < 2: diag(i + 1, 2 * c + 0 if (i + 1) & 1 == 0 else (2 * c + 2) % 4); diag(i + 1, 2 * c + 1 if (i + 1) & 1 == 0 else (2 * c + 3) % 4)
                if pend and c == 2: I(pend.pop(0)); I(pend.pop(0))
                if lred: I(lred.pop(0))
                if i == G - 1 and c == 1: I(f"s_mov_b64 exec, {sp(mL63)}\nds_write_b32 v51, v{vL} offset:16\ns_mov_b64 exec, -1")
            if early and g == 2: lds_v(3)
            if hook2: hook2(i)
        if self.c.get("fa"): self.fs("p2end")
        for c, (lo, hi) in enumerate(((0xffffffff, 0), (0x00ff00ff, 0xff00ff00), (0, 0xffffffff))):
            I(f"s_mov_b32 exec_lo, {lo:#x}\ns_mov_b32 exec_hi, {hi:#x}\nds_write_b128 v50, {v4(vACC + 4 * c)} offset:{512 * c}")
        I("s_mov_b64 exec, -1")
        if pre_bar: pre_bar()
        self.fs("att_end")
        a.barrier()
        self.combine(b, L)
        self.fs("pub2")
    def combine(self, b, L):
        a = self.a; I = a.I; inst = 4 * b + L; a.comment("merge the four waves' partials and publish")
        I("ds_read_b128 v[44:47], v9\nds_read_b128 v[48:51], v9 offset:16")
        for i in range(0, 8, 2): I(f"ds_read2st64_b32 {v2(12 + i)}, v10 offset0:{3 * i} offset1:{3 * i + 3}")
        I("v_max3_f32 v52, v44, v45, v46\nv_max_f32 v52, v52, v47")
        for w in range(4): I(f"v_sub_f32 v{44+w}, v{44+w}, v52")
        for w in range(4): I(f"v_exp_f32 v{44+w}, v{44+w}")
        for w in range(4): I(f"v_add_f32 v{12 + 2 * w}, v{12 + 2 * w}, v{13 + 2 * w}")
        I("v_mul_f32 v20, v44, v12\nv_fmac_f32 v20, v45, v14\nv_fmac_f32 v20, v46, v16\nv_fmac_f32 v20, v47, v18")
        I("v_mul_f32 v53, v44, v48\nv_fmac_f32 v53, v45, v49")
        I("v_mov_b32_dpp v21, v20 quad_perm:[1,1,3,3] row_mask:0xf bank_mask:0xf")
        I("v_fmac_f32 v53, v46, v50\nv_fmac_f32 v53, v47, v51\nv_cvt_pk_bf16_f32 v20, v20, v21")
        I(f"v_cndmask_b32 v52, v52, v53, {sp(mBIT1)}\nv_cndmask_b32 v20, v20, v52, {sp(mW3)}\nv_min_u32 v20, -2, v20")
        I(f"s_mov_b64 exec, {sp(mPub2)}" if H2_S == 384 else f"s_not_b64 exec, {sp(mODD)}")
        self.publish(f"buffer_store_dword v20, v11, {s4(WS)}, s{sOffP} offen {{pol}}", True)
        I("s_mov_b64 exec, -1")
    def wo_addr(self, b, L):
        I = self.a.I
        I(f"v_bfe_u32 v8, v0, 1, 3\nv_lshrrev_b32 v9, 4, v0\nv_and_b32 v7, 1, v0\nv_lshl_add_u32 v7, v9, 1, v7\nv_lshlrev_b32 v7, 4, v7\ns_movk_i32 s{sT0}, {H2_S}\nv_mad_u32_u24 v7, v8, s{sT0}, v7")
        I(f"v_lshl_add_u32 v8, v9, 1, v8\nv_and_b32 v8, 7, v8\nv_mul_u32_u24 v8, {16 if H2_S == 384 else H2_S}, v8\ns_add_u32 s{sOffW}, s{h2(4 * b + L)[1]}, {h2(4 * b + L)[2]}")
    def wo(self, b, L, between=None, hoisted=False, hoist=False, after=None):
        a = self.a; a.comment(f"---- row {b} layer {L}: gather attention partials, output projection partial"); I = a.I; inst = 4 * b + L; ty = L & 1
        if not hoisted: self.wo_addr(b, L)
        loads = [f"buffer_load_dwordx2 v[52:53], v8, {s4(WS)}, s{sOffW} offen offset:{3072 if H2_S == 384 else 384} sc1"]
        loads += [f"buffer_load_dwordx4 {v4(12 + 4 * t)}, v7, {s4(WS)}, s{sOffW} offen offset:{128 * t} sc1" for t in range(3)]
        S = [24, 28, 32, 36, 40, 44]
        def rd(kk, reg, tile):
            o = 10240 * (kk >> 1) + 1280 * (kk & 1) + 32 * tile
            I(f"ds_read_b64_tr_b16 {v2(reg)}, v10 offset:{o}\nds_read_b64_tr_b16 {v2(reg + 2)}, v10 offset:{o + 640}")
        def pre():
            I(f"v_bfe_u32 v10, v0, 2, 2\nv_and_b32 v11, 48, v0\nv_add_u32 v10, v10, v11\nv_mul_u32_u24 v10, 160, v10\nv_and_b32 v11, 3, v0\nv_lshl_add_u32 v10, v11, 3, v10")
            I(f"s_lshl_b32 s{sT0}, s{sW2}, 6\ns_add_u32 s{sT1}, s{sT0}, {WO[ty]}\nv_add_u32 v10, s{sT1}, v10")
            for kk in range(6): rd(kk, S[kk], 0)
            I(f"v_and_b32 v11, 15, v0\nv_lshlrev_b32 v11, 1, v11\nv_and_b32 v9, 32, v0\nv_add3_u32 v11, v11, v9, s{sT0}\ns_add_u32 s{sOffP}, s{h3(inst)[0]}, {h3(inst)[2]}")
            if hoist: self.yg_addr()
            if between: between()
        D0, D1 = 48, 24
        mt = lambda D, t, B, first: f"v_mfma_f32_16x16x32_bf16 {v4(D)}, {v4(12 + 4 * t)}, {v4(B)}, {0 if first else v4(D)}"
        def mm(*k): I(mt(*k))
        self.gather(loads, [52, 53] + list(range(12, 24)), 9, between=pre, sleep=self.lsleep(), first=hoisted and self.c.get('first', 3) & 1,
                    spec=[mt(D0, 0, S[0], True), mt(D0, 1, S[2], False), mt(D0, 2, S[4], False)])
        if after: after()
        dpp = lambda op, d, x, ctl: I(f"{op}_dpp v{d}, v{x}, v{x} {ctl} row_mask:0xf bank_mask:0xf")
        def fold(out):
            I(f"v_add_f32 v{D0}, v{D0}, v{D1 + 1}\nv_add_f32 v{D0 + 2}, v{D0 + 2}, v{D1 + 3}\nv_mul_f32 v{out}, v7, v{D0}\nv_fmac_f32 v{out}, v8, v{D0 + 2}")
        dpp("v_max_f32", 9, 52, "row_ror:8")
        mm(D1, 0, S[1], True); rd(0, S[2], 1); dpp("v_max_f32", 9, 9, "row_ror:4")
        mm(D1, 1, S[3], False); rd(2, S[4], 1); dpp("v_max_f32", 9, 9, "row_ror:2")
        mm(D1, 2, S[5], False); I("v_sub_f32 v52, v52, v9\nv_exp_f32 v52, v52"); rd(4, S[1], 1); I("v_mul_f32 v53, v52, v53")
        rd(1, S[3], 1); dpp("v_add_f32", 53, 53, "row_ror:8")
        rd(3, S[5], 1); dpp("v_add_f32", 53, 53, "row_ror:4")
        I(f"v_add_f32 v{D0}, v{D0}, v{D1 + 1}\nv_add_f32 v{D0 + 2}, v{D0 + 2}, v{D1 + 3}")
        dpp("v_add_f32", 53, 53, "row_ror:2")
        I(f"v_mov_b32 v7, v{D0}\nv_mov_b32 v8, v{D0 + 2}\nv_rcp_f32 v53, v53")
        mm(D0, 0, S[2], True); rd(5, S[2], 1)
        I("v_mul_f32 v9, v52, v53")
        mm(D0, 1, S[4], False); mm(D0, 2, S[1], False)
        I("v_mul_f32_dpp v52, v9, v7 row_newbcast:0 row_mask:0xf bank_mask:0xf")
        mm(D1, 0, S[3], True)
        I("v_mov_b32_dpp v7, v9 row_newbcast:0 row_mask:0xf bank_mask:0xf")
        mm(D1, 1, S[5], False)
        I("v_fmac_f32_dpp v52, v9, v8 row_newbcast:2 row_mask:0xf bank_mask:0xf")
        mm(D1, 2, S[2], False)
        I("v_mov_b32_dpp v8, v9 row_newbcast:2 row_mask:0xf bank_mask:0xf")
        fold(53)
        I("v_permlane32_swap_b32 v52, v53\nv_add_f32 v52, v52, v53\nv_mov_b32 v53, v52\nv_permlane16_swap_b32 v52, v53\nv_add_f32 v52, v52, v53")
        I("v_mov_b32_dpp v53, v52 quad_perm:[1,1,3,3] row_mask:0xf bank_mask:0xf\nv_cvt_pk_bf16_f32 v52, v52, v53\nv_min_u32 v52, -2, v52")
        I(f"s_mov_b64 exec, {sp(mWOST)}")
        self.publish(f"buffer_store_dword v52, v11, {s4(WS)}, s{sOffP} offen {{pol}}", False)
        I("s_mov_b64 exec, -1")
    def yg_addr(self):
        self.a.I(f"v_lshrrev_b32 v54, 4, v0\nv_mul_u32_u24 v54, {H3_H}, v54\nv_and_b32 v9, 15, v0\nv_lshl_add_u32 v54, v9, 4, v54")
    def yg_pre(self, b, L):
        I = self.a.I
        if h3(4 * b + L)[1] is None: I(f"s_add_u32 s{sOffG}, s{sX3g0}, {h3(4 * b + L)[2]}\ns_add_u32 s{sOffG2}, s{sX3g1}, {h3(4 * b + L)[2]}")
        else: I(f"s_mul_i32 s{sT0}, s{sWave}, {8 * H3_H}\ns_add_u32 s{sOffG}, s{sH3grp}, s{sT0}\ns_add_u32 s{sOffG}, s{sOffG}, {(4 * b + L) * H3_I}\ns_add_u32 s{sOffG2}, s{sOffG}, {4 * H3_H}")
        for j in range(4): I(f"v_and_b32 v{16 + j}, 0x3f803f80, v{vMask + j}")
        for j in range(8): I(f"v_mov_b32 v{8 + j}, 0")
    def yg(self, b, L, between=None, pre_bar=None, hoisted=False, after=None):
        a = self.a; a.comment(f"---- row {b} layer {L}: gather output partials, residual"); I = a.I; inst = 4 * b + L; Yb = Y + YSZ * b
        if not hoisted: self.yg_addr(); self.yg_pre(b, L)
        loads = [f"buffer_load_dwordx4 {v4(8 + 4 * j)}, v54, {s4(WS)}, s{(sOffG, sOffG2)[j]} offen sc1" for j in range(2)]
        self.gather(loads, range(8, 16), 7, between=between, emask=sp(mN10),
                    spec=["v_mfma_f32_16x16x32_bf16 v[20:23], v[16:19], v[8:11], 0", "v_mfma_f32_16x16x32_bf16 v[20:23], v[16:19], v[12:15], v[20:23]"])
        if after: after()
        I(f"v_and_b32 v7, 15, v0\nv_lshlrev_b32 v7, 5, v7\nv_and_b32 v54, 16, v0\nv_add3_u32 v7, v7, v54, s{sYw}")
        I(f"s_mov_b32 exec_lo, s{mN10}\ns_mov_b32 exec_hi, 0\nds_write_b128 v7, v[20:23] offset:{YSZ * b}\ns_mov_b64 exec, -1")
        I(f"v_lshl_add_u32 v7, v0, 2, s{sXROWw}\nds_read_b32 v54, v7 offset:{640 * b}")
        I(f"v_lshlrev_b32 v14, 3, v0\nv_add_u32 v14, {Yb}, v14")
        if L < 3: self.wq_addr(b, L + 1)
        if pre_bar: pre_bar()
        a.barrier()
        I("s_mov_b32 exec_hi, 0xff")
        I("ds_read2_b64 v[8:11], v14 offset0:0 offset1:40\nds_read2_b64 v[12:15], v14 offset0:80 offset1:120")
        I("v_lshlrev_b32 v16, 16, v54\nv_and_b32 v17, 0xffff0000, v54")
        I("v_pk_add_f32 v[8:9], v[8:9], v[10:11]\nv_pk_add_f32 v[12:13], v[12:13], v[14:15]\nv_pk_add_f32 v[8:9], v[8:9], v[12:13]")
        I("v_cvt_pk_bf16_f32 v8, v8, v9\nv_and_b32 v9, 0xffff0000, v8\nv_lshlrev_b32 v8, 16, v8\nv_pk_add_f32 v[8:9], v[8:9], v[16:17]\nv_cvt_pk_bf16_f32 v8, v8, v9")
        if L < 3: I(f"ds_write_b32 v7, v8 offset:{640 * b}")
        else:
            I(f"s_cmp_lg_u32 s{sWave}, 0"); a.skip_begin("s_cbranch_scc1")
            I(f"s_mul_i32 s{sT0}, s{sS}, 160\nv_lshlrev_b32 v7, 2, v0")
            I(f"buffer_store_dword v8, v7, {s4(XO)}, s{sT0} offen offset:{1280 * b}")
            a.skip_end()
        I("s_mov_b64 exec, -1")
    def fin_pre(self, b):
        a = self.a; I = a.I; inst = 4 * b + 3
        self.yg_addr(b, 3) if False else None
        for j in range(4): I(f"v_and_b32 v{16 + j}, 0x3f803f80, v{vMask + j}")
        I(f"v_and_b32 v9, 15, v0\nv_lshlrev_b32 v9, 4, v9\nv_bfe_u32 v10, v0, 4, 1\nv_lshl_add_u32 v9, v10, 3, v9\nv_add_u32 v10, {XROW + 640 * b}, v9\nds_read_b64 v[10:11], v10")
        for k in range(8):
            if h3(inst)[1] is None:
                if k == 0: I(f"s_and_b32 s0, s40, 1\ns_lshl_b32 s0, s0, 13\ns_sub_u32 s12, s{sX3g0}, s0\ns_add_u32 s12, s12, {h3(inst)[2]}")
                I(f"s_bfe_u32 s0, s{40 + (k >> 2)}, {0x10000 + 8 * (k & 3):#x}\ns_lshl_b32 s0, s0, 13\ns_add_u32 s0, s0, {(k & 3) * 4 * H3_H}\ns_add_u32 s{4 + k}, s12, s0")
            else: I(f"s_add_u32 s{4 + k}, s{sH3grp}, {h3(inst)[2] + k * 4 * H3_H}")
        I(f"v_lshlrev_b32 v12, 16, v10\nv_and_b32 v13, 0xffff0000, v10\nv_lshlrev_b32 v14, 16, v11\nv_and_b32 v15, 0xffff0000, v11\ns_mul_i32 s{sT0}, s{sS}, 160")
    def fin(self, b):
        a = self.a; I = a.I; a.comment(f"---- row {b}: gather output partials, residual, store")
        loads = [f"buffer_load_dwordx4 {v4(60 + 4 * k)}, v54, {s4(WS)}, s{4 + k} offen sc1" for k in range(8)]
        self.gather(loads, range(60, 92), 7, emask=sp(mN10), vmask=True,
                    spec=[f"v_mfma_f32_16x16x32_bf16 v[20:23], v[16:19], {v4(60 + 4 * k)}, {'v[20:23]' if k else 0}" for k in range(8)])
        I(f"s_mov_b32 exec_lo, s{mN10}\ns_mov_b32 exec_hi, 0")
        I("v_cvt_pk_bf16_f32 v20, v20, v21\nv_cvt_pk_bf16_f32 v22, v22, v23\nv_and_b32 v21, 0xffff0000, v20\nv_lshlrev_b32 v20, 16, v20\nv_and_b32 v23, 0xffff0000, v22\nv_lshlrev_b32 v22, 16, v22")
        I("v_pk_add_f32 v[20:21], v[20:21], v[12:13]\nv_pk_add_f32 v[22:23], v[22:23], v[14:15]\nv_cvt_pk_bf16_f32 v20, v20, v21\nv_cvt_pk_bf16_f32 v21, v22, v23")
        I(f"buffer_store_dwordx2 v[20:21], v9, {s4(XO)}, s{sT0} offen offset:{1280 * b}\ns_mov_b64 exec, -1")
    def touch(self, b, L, lvl=1):
        if self.c.get("touch", 4) == 4 or self.c.get("touch") < lvl: return
        a = self.a; I = a.I; m = self.c.get("tm", 2)
        I(f"s_mov_b32 m0, {JUNK}\ns_mov_b64 exec, 3")
        if m & 1:
            I(f"v_mov_b32 v31, s{sPub2}\ns_add_u32 s{sT1}, s{h2(4 * b + L)[0]}, {h2(4 * b + L)[2]}")
            I(f"buffer_load_dword v31, {s4(WS)}, s{sT1} offen sc1 lds")
        if L < 3 and m & 2:
            I(f"s_lshl_b32 s{sT0}, s{sWave}, 8\nv_lshl_add_u32 v31, v0, 7, s{sT0}\ns_add_u32 s{sT1}, s{h1(4 * b + L + 1)[0]}, {h1(4 * b + L + 1)[2]}")
            I(f"buffer_load_dword v31, {s4(WS)}, s{sT1} offen sc1 lds")
        I("s_mov_b64 exec, -1")
    def touch_fill(self, b, L):
        I = self.a.I; m = self.c.get("tm", 2)
        if m & 1:
            I(f"s_add_u32 s{sT1}, s{h2(4 * b + L)[0]}, {h2(4 * b + L)[2]}\nv_mov_b32 v54, s{sPub2}")
            I(f"s_mov_b32 m0, {JUNK} | buffer_load_dword v54, {s4(WS)}, s{sT1} offen sc1 lds")
        if L < 3 and m & 2:
            I(f"s_lshl_b32 s{sT0}, s{sWave}, 8\nv_and_b32 v54, 1, v0\nv_lshl_add_u32 v54, v54, 7, s{sT0}\ns_add_u32 s{sT1}, s{h1(4 * b + L + 1)[0]}, {h1(4 * b + L + 1)[2]}")
            I(f"s_mov_b32 m0, {JUNK} | buffer_load_dword v54, {s4(WS)}, s{sT1} offen sc1 lds")
    def chain_idle(self, b, L, burst=(0, 0, 0), sh=(0, 0, 0, 0), pf=(0, 0, 0)):
        a = self.a; U = lambda n: (lambda: self.stream(n, paced=False))
        if self.c.get("skip3", 1):
            a.I(f"s_cmp_eq_u32 s{sWave}, 3"); a.skip_begin("s_cbranch_scc1")
            self.wo(b, L, hoisted=True)
            a.skip_end()
            self.yg_addr()
            self.stream(sh[0] + sh[1], paced=False)
            self.pfreg = 7; self.prefetch(pf[0])
        else:
            self.wo(b, L, between=U(burst[0]), hoisted=True, hoist=True, after=U(sh[0]))
            self.stream(sh[1], paced=False)
        self.stamp(f"wo{b}{L}")
        self.fs("pub3")
        late = self.c.get("late", 2)
        if L == 3:
            a.I(f"s_cmp_eq_u32 s{sH}, 1\ns_cbranch_scc1 L_out0")
            a.I(f"s_cmp_lg_u32 s{sH}, 0\ns_cbranch_scc1 L_fin")
            self.page()
            if self.c.get("fin1", 1):
                if not self.c.get("finl", 1): self.fin_pre(1)
                a.wait_tag("pub"); a.barrier()
                a.I(f"s_cmp_lg_u32 s{sWave}, 0\ns_cbranch_scc1 L_fin")
                if self.c.get("finl", 1): self.fin_pre(1)
                self.fin(1)
                return
        dfr = self.deferred; self.deferred = []
        pub = a.vm.last_tag("pub")
        for jobs in dfr: self.clear_prep(jobs); self.clear_issue("clr3")
        if L < 3 and not late: self.wq_pre((L + 1) & 1)
        if late < 2: self.yg_pre(b, L)
        a.wait_tag("pub"); a.barrier()
        if L < 3 and late: self.wq_pre((L + 1) & 1)
        if late >= 2: self.yg_pre(b, L)
        self.yg(b, L, between=lambda: (self.stream(burst[1], paced=False), self.page() if L < 3 else None), hoisted=True, after=lambda: (self.stream(sh[2], paced=False), self.prefetch(pf[1])), pre_bar=(lambda: a.wait_tag("clr3")) if dfr else None)
        self.fs("xrow")
        if L == 3: return
        self.wq_main(b, L + 1, hoisted=True, hoist=True)
        self.fs("pub1")
        self.stamp(f"wq{b}{L+1}")
        self.qg(b, L + 1, between=U(burst[2]), hoisted=True, tail=True, after=lambda: (self.touch(b, L + 1) if self.c.get("touch", 4) != 3 or (b, L) == (0, 1) else None, self.stream(sh[3], paced=False), self.prefetch(pf[2])))
        self.stamp(f"qg{b}{L+1}")
    def build(self):
        a = self.a; c = self.c; W = self.W; WE = c.get("WE", W); HE = c.get("HE", 4); PG = c.get("PG", 0)
        self.off_val = None
        for x in c.get("order", "kwv"):
            if x == "w": self.add_w("wqA", pWQA, "q", 0)
            else:
                for g in range(4): self.add_kv("KA" if x == "k" else "VA", 0, g)
        self.add_w("woA", pWOA, "o", 0); self.add_w("wqB", pWQB, "q", 1)
        for g in range(16): self.add_kv("KB", 0, g)
        wl = c.get("wolate", 0)
        if not wl: self.add_w("woB", pWOB, "o", 1)
        for g in range(16): self.add_kv("VB", 0, g)
        if wl: self.add_w("woB", pWOB, "o", 1, late=True)
        p1 = len(self.items)
        for g in range(4): self.add_kv("KA", 1, g)
        for g in range(4): self.add_kv("VA", 1, g)
        p2 = len(self.items)
        for g in range(16): self.add_kv("KB", 1, g)
        for g in range(16): self.add_kv("VB", 1, g)
        st = self.stream_to; S = lambda n: (lambda: self.stream(n))
        self.limit = p1; a.nobar = c.get('nobar', 0)
        self.setup()
        if c.get("inject", 1): a.inject = self.injector
        if c.get("streamonly"):
            self.limit = 10**9; self.npage = 0; self.hot = []; self.inl = False; self.boost = 0; a.inject = None
            for upto in c["streamonly"]:
                if isinstance(upto, tuple): st(upto[0], W=upto[1])
                else: st(upto)
                self.stamp("end")
            a.wait(vm=0); self.stamp("end")
            return self.finish()
        P = c.get("P1", dict(arr=30, hs=44, qg0=44, wo=80, yg=106, qg1=130))
        for _ in range(c.get("pad", 0)): a.I("s_nop 0")
        a.raw("L_pf0:")
        self.stamp("setup")
        a.wait_tag("clr"); a.barrier()
        self.arrive()
        st(max(P["arr"], self.index_after("wqA") + 4))
        self.stamp("arr")
        a.wait_tag("wqA"); a.barrier()
        self.wq_pre(0); self.wq_main(0, 0, local_ok=False)
        self.stream(c.get("wqgap", 4))
        self.wq_pre(0); self.wq_main(1, 0, local_ok=False)
        self.stamp("wq")
        st(P["hs"]); self.handshake(S(W))
        for r, m, base in ((sCTw, 256, CT), (sATTw, 1536, ATT), (sSTATw, 4, STAT), (sCOMBw, 256, ATT)):
            a.I(f"s_mul_i32 s{r}, s{sWave}, {m}\ns_add_u32 s{r}, s{r}, {base}")
        P_ = lambda i: [("P", i)]
        now = [[P_(1), [("C", 1)], P_(2), [("2", 1), ("3", 1)]], [[("3", 2), ("3", 3)], [("3", 4), ("3", 5)], [("3", 6), ("3", 7)], [("3", 6), ("3", 7)]]]
        self.deferred = [[P_(3), P_(5), P_(6), P_(7)], [[("2", 2), ("2", 3)], [("2", 4), ("2", 5)], [("2", 6), ("2", 7)], [("2", 6), ("2", 7)]]]
        if not c.get("defer", 1): now += self.deferred; self.deferred = []
        for jobs in now:
            self.clear_prep(jobs); self.clear_issue("clr2"); self.stream(1)
        self.stamp("hs")
        st(P["qg0"]); self.qg(0, 0, between=S(W))
        self.stamp()
        self.att(0, 0, pre_bar=lambda: (st(self.index_after("woA")), a.wait_tag("woA"), a.wait_tag("clr2")))
        self.stamp()
        self.qg(1, 0, between=S(W))
        self.stamp("qg10")
        st(P["wo"]); self.wo(0, 0, between=S(W))
        self.stamp("wo00")
        st(P["yg"]); self.yg(0, 0, between=S(W), pre_bar=lambda: a.wait_tag("wqB"))
        self.stamp("yg00")
        self.wq_pre(1); self.wq_main(0, 1, hoisted=True)
        self.stream(3, paced=False); self.warm([0, 1, 2, "R"])
        if c.get("cpf") == 2: self.code_prefetch("L_pf1", "L_pf2")
        st(P["qg1"]); self.touch(0, 1, 2) if c.get('touch') == 2 else None; self.qg(0, 1, tail=True, between=lambda: self.stream(min(WE, p1 - self.pos), W=WE))
        a.raw("L_pf1:")
        self.stamp()
        st_ = 64 << c.get("pfs", 6)
        self.pfq = [(KA, o) for o in range(0, 12288, st_)] + [(VA, o) for o in range(0, 12288, st_)] + [(KB, o) for o in range(0, 49152, st_)]
        self.pfreg = 54
        vb0 = self.index_after(("VB", 0, 0)) - 3
        assert self.pos >= vb0 + 3
        if wl: assert self.pos <= p1 - 8
        self.att(0, 1, hook1=lambda g: self.stream(min(1, p1 - self.pos), W=WE) if g % HE == HE - 1 else None,
                 hook2=lambda i: (st(min(p1, vb0 + 3 * (i + 2) + WE - 3), W=WE), self.page() if i == PG else None, self.prefetch(c.get("pf0", 0)) if i == c.get("pfi", 11) else None), pre_bar=lambda: st(p1, W=WE) if wl else a.wait_tag("woB"), hoist=True, qaddr=True)
        if wl: a.wait_tag("woB"); a.barrier()
        assert self.pos == p1
        a.inject = None; self.limit = p2
        self.stamp("p1end")
        self.chain_idle(0, 1, pf=c.get("pf1", (0, 0, 0)))
        bu = c.get("burst", (6, 0, 0, 0)); sh = c.get("sh", (0, 9, 3, 6))
        self.att(0, 2, hookm=lambda: self.stream(bu[0], paced=False), hoist=True, qaddr=True)
        self.stamp("att02")
        self.pfq = [x for x in self.pfq if x[0] == KB]
        self.chain_idle(0, 2, burst=bu[1:], sh=sh, pf=c.get("pf2", (0, 0, 0)))
        self.stamp("p2beg")
        self.limit = len(self.items)
        n0 = c.get("n0", 9); h2 = c.get("h2", 2); q0 = self.pos
        def hook03(g):
            self.stream(max(0, min(3, q0 + n0 - self.pos, p2 + 3 * g + 3 - self.pos)), paced=False)
        self.att(0, 3, hook1=hook03, hook2=lambda i: self.stream(1, paced=False) if i % h2 == h2 - 1 else None, qaddr=True)
        self.stamp("att03")
        a.raw("L_pf2:")
        P = c.get("P2", dict(att=8, wo=34, yg=62, qg=80))
        if c.get("inject", 1): a.inject = self.injector
        st(p2 + P.get("att", 0))
        self.att(1, 0, guard=True, hook2=lambda i: self.stream(2))
        self.stamp("att10")
        st(p2 + P["wo"]); self.stamp("a"); self.wo(1, 0, between=S(W)); self.stamp("wo10"); self.wo(0, 3, between=S(W)); self.stamp("wo03")
        st(p2 + P["yg"]); self.stamp("b"); self.yg(1, 0, between=S(W)); self.stamp("yg10")
        self.wq_pre(1); self.wq_main(1, 1, hoisted=True)
        self.stream(3, paced=False); self.warm([3, 4, 5, 6])
        if c.get("cpf") == 2: self.code_prefetch("L_pf3", "L_pf9")
        st(p2 + P["qg"]); self.stamp("c"); self.touch(1, 1, 2) if c.get('touch') == 2 else None; self.qg(1, 1, tail=True, between=lambda: self.stream(WE, W=WE))
        a.raw("L_pf3:")
        self.stamp("qg11")
        vb1 = p2 + 48
        self.att(1, 1, hook1=lambda g: self.stream(1, W=WE) if g % HE == HE - 1 else None,
                 hook2=lambda i: (st(min(len(self.items), vb1 + 3 * (i + 2) + WE - 3), W=WE), self.page() if i == PG else None), hoist=True, qaddr=True)
        assert self.pos == len(self.items)
        a.inject = None
        self.stamp("p2end")
        self.chain_idle(1, 1)
        self.fine_on = c.get("fine") == 1
        self.fs("q_ready")
        self.att(1, 2, hoist=True, qaddr=True)
        self.stamp("att12")
        self.chain_idle(1, 2)
        self.fs("q_ready")
        if c.get("fine") == 2: self.fine_on = True; self.fs("q_ready")
        self.att(1, 3, hoist=True, qaddr=True)
        self.stamp("att13")
        self.chain_idle(1, 3)
        a.I("s_branch L_fin"); a.raw("L_out0:"); a.I("s_nop 7"); a.wait(vm=0, lg=0)
        if c.get("fin1", 1):
            a.I(f"s_cmp_lg_u32 s{sWave}, 0\ns_cbranch_scc1 L_fin")
            self.fin_pre(0); self.fin(0)
        else: self.yg(0, 3)
        a.raw("L_fin:"); a.I("s_nop 7")
        if c.get("hold"):
            a.raw("L_hold:"); a.I(f"s_memrealtime s[38:39]"); a.wait(lg=0)
            a.I(f"s_sub_u32 s38, s38, s{98 if c.get('holdat') else sST}\ns_cmp_lt_u32 s38, {c['hold']}\ns_cbranch_scc1 L_hold")
        self.fs("end")
        self.stamp("end")
        return self.finish()
    def finish(self):
        a = self.a; c = self.c
        if c.get("fine"):
            a.wait(lg=0)
            for i in range(self.nfine): a.I(f"v_writelane_b32 v{vStamp}, s{FS[i]}, {i}")
            print("fine stamps:", self.fnames)
        if c.get("diag"):
            a.I("s_sleep 100")
            a.I(f"v_writelane_b32 v{vStamp}, s{sRetry}, 62\nv_writelane_b32 v{vStamp}, s{sLocal}, 63")
            a.I(f"s_lshl_b32 s{sT0}, s{sWG}, 10\ns_lshl_b32 s{sT1}, s{sWave}, 8\ns_add_u32 s{sT0}, s{sT0}, s{sT1}\ns_add_u32 s{sT0}, s{sT0}, {DIAG}\nv_lshlrev_b32 v7, 2, v0")
            a.I(f"buffer_store_dword v{vStamp}, v7, {s4(WS)}, s{sT0} offen")
        if c.get("diag") and not c.get("fine"): print("stamps:", " ".join(self.snames))
        a.raw("L_end:"); a.raw("  s_endpgm")
        if c.get("pages", 1): self.hot = [f".p2align {c.get('hotal', 12)}\nLstR:\n  s_setpc_b64 {sp(sRet)}"] + self.hot
        a.tail = self.hot + a.tail
        a.tail.append("L_pf9:\n  s_endpgm")
        body = a.text()
        return (HEAD + f"; @launch grid=(256,1,1) block=(256,1,1) lds={LDS_BYTES}\n" + DOC
                + f'.amdgcn_target "amdgcn-amd-amdhsa--gfx950"\n.text\n.globl {NAME}\n.p2align 8\n.type {NAME},@function\n{NAME}:\n'
                + body + f'.section .rodata,"a"\n.p2align 6\n.amdhsa_kernel {NAME}\n  .amdhsa_next_free_vgpr 512\n  .amdhsa_next_free_sgpr 102\n'
                + "  .amdhsa_accum_offset 256\n  .amdhsa_group_segment_fixed_size 0\n  .amdhsa_kernarg_size 104\n  .amdhsa_user_sgpr_count 2\n"
                + "  .amdhsa_user_sgpr_kernarg_segment_ptr 1\n  .amdhsa_system_sgpr_workgroup_id_x 1\n.end_amdhsa_kernel\n")

def generate(cfg):
    global COMPACT1; COMPACT1 = cfg.get('c1', 0)
    global H1_I, H1_H, H1_S, H2, H2_I, H2_H, H2_S, H3, H3_I, H3_S, H3_H
    H1_S = cfg.get("H1S", 2048); H1_H = cfg.get("H1H", 8 * H1_S); H1_I = 32 * H1_H
    H2_S = cfg.get("H2S", 384); H2_H = cfg.get("H2H", 8 * H2_S if H2_S != 384 else 4096); H2_I = 32 * H2_H; H2 = cfg.get("H2B", 8 * H1_I); assert H2 >= 8 * H1_I
    H3_H = cfg.get("H3H", 192); H3_S = cfg.get("H3S", 32 * H3_H); H3_I = cfg.get("H3I", max(8 * H3_S, 32 * H3_H)); H3 = cfg.get("H3B", H2 + 8 * H2_I); assert H3 >= H2 + 8 * H2_I
    global USE_HOT; USE_HOT = cfg.get("hot", 3)
    assert H3 + 8 * H3_I <= (6 << 20) and not (USE_HOT and COMPACT1) and H3_H <= (192 if USE_HOT == 3 else 256)
    return Gen(cfg).build()
if __name__ == "__main__":
    cfg = eval(sys.argv[2]) if len(sys.argv) > 2 else {}
    open(sys.argv[1], "w").write(generate(cfg))
```

```python
import sys, math
from dsl import Asm

NAME = "interleave_layers__sliding_block_cached__gqa_block_cached__decode_kernel"
HEAD = open("interleave_layers__sliding_block_cached__gqa_block_cached__decode.s.ref").read().split("; Override")[0]

KV_BYTES = 2 * 32 * 4096 * 384
BSTR = 32 * 4096 * 384
HSTR = 4096 * 384
W_BYTES = 640 * 6144 * 2
WS_BYTES = 434115584
H1_I, H1_H, H1_S = 524288, 16384, 2048
H2 = 8 * H1_I; H2_I, H2_H, H2_S = 131072, 4096, 512
H3 = H2 + 8 * H2_I; H3_I, H3_S, H3_H = 65536, 8192, 256
DIAG = 64 << 20
WQ = (0, 61440); WO = (30720, 92160)
VS = 122880
EX = 147456
ATT = EX; STAT = EX + 6144; Y = EX + 6208; YSZ = 1280; XROW = Y + 2 * YSZ; ONES = XROW + 1280; QB = ONES + 160; CT = QB + 768
JUNK = CT + 2048
LDS_BYTES = JUNK + 256
assert LDS_BYTES <= 163840
sWG, sWave = 2, 3
KA, VA, KB, VB, WS, WT, XO = 4, 8, 12, 16, 20, 24, 28
pX, pKA, pVA, pWQA, pWOA, pKB, pVB, pWQB, pWOB, pOUT, pDBG, pWS = 32, 34, 36, 38, 40, 44, 46, 48, 50, 52, 54, 56
sH, sS, sLocal, sOff, sRetry, sT0, sT1, sT2 = 58, 59, 60, 61, 62, 63, 64, 65
sH1own, sH1grp, sH2own, sH2grp, sH3own, sH3grp, sOffG, sOffP = 66, 67, 68, 69, 70, 71, 72, 73
mODD, mHI8, mHI32, mWOST, mRG1, mRG2, mRG3, m60 = 74, 76, 78, 80, 82, 84, 86, 88
sXcc, sWqRow, sWoRow, sLdsW, sLdsVS = 90, 91, 92, 93, 94
sST = 0; m40 = 98; mBIT1 = 100; mW3 = 42; mN10 = 32; sW2 = 95; sOffG2 = 35; sClr = 0; sM = 34; sOffW = 76; sRet = 78; sX1own, sX1grp, sX2own, sX2grp, sX3own, sX3g0, sX3g1 = 77, 98, 99, 52, 53, 96, 97; sPub2 = 44; sXROWw, sYw, sQw, sCTw, sATTw, sSTATw, sCOMBw = 45, 56, 57, 38, 39, 54, 55; sH1c = 77; mQ13 = 98; mPub1 = 52; mPub2 = 46; mL63 = 36
FS = [50, 24, 26, 88, 90, 92]
def sp(n): return f"s[{n}:{n+1}]"
def s4(n): return f"s[{n}:{n+3}]"
def v2(n): return f"v[{n}:{n+1}]"
def v4(n): return f"v[{n}:{n+3}]"
vLane, vKoff, vVoff, vMask = 0, 1, 2, 3
vQ, vACC, vU = 12, 24, 36
vStamp = 55
QUADS = [f"a[{i}:{i+3}]" for i in range(0, 256, 4)] + [f"v[{i}:{i+3}]" for i in range(56, 256, 4)]
SLOT = {}
_names = [("KA", i) for i in range(4)] + [("VA", 0), ("VA", 1)] + [("KB", i) for i in range(16)] + [("VB", i) for i in range(16)]
for i, n in enumerate(_names): SLOT[n] = QUADS[3 * i:3 * i + 3]
assert SLOT[("VB", 15)][2] == "v[252:255]"
vWq0, vWq1, vWo = 252, 253, 254
SCALE = 192 ** -0.5 * math.log2(math.e)
import struct
def f32(x): return "0x%08x" % struct.unpack("<I", struct.pack("<f", x))[0]

DOC = "; Four decode layers (A, B, A, B) in one persistent launch, one workgroup per CU (4 waves x 512 registers, 157 KiB LDS).\n;  workgroup w: head h = 4*(w&7) + ((w>>3)&3), slice s = w>>5. It owns 1/8 of head h's cache positions for both batch rows,\n;  Speed only: code runs in 4 KiB pages entered under a wait (the instruction prefetch stops at page ends; a return stub at\n"

HOT1 = {2: 0, 3: 1, 6: 2, 7: 3}; HOT2 = {1: 0, 2: 1, 5: 2, 6: 3, 7: 4}
X2 = 1 << 20; X3 = X2 + 5 * 131072; XP = X3 + 5 * 65536
USE_HOT = True
def h1(inst): return (sX1own, sX1grp, HOT1[inst] * 262144, 1024) if USE_HOT and inst in HOT1 else (sH1own, sH1grp, inst * H1_I, H1_S)
def h2(inst): return (sX2own, sX2grp, HOT2[inst] * 131072) if USE_HOT and inst in HOT2 else (sH2own, sH2grp, inst * H2_I)
def h3(inst): return (sX3own, None, HOT2[inst] * 65536) if USE_HOT and inst in HOT2 else (sH3own, sH3grp, inst * H3_I)
def c1(inst): return COMPACT1 and inst >= 2

class Gen:
    def __init__(self, cfg):
        self.c = cfg; self.a = Asm(); self.items = []; self.pos = 0; self.nstamp = 0
        self.W = cfg.get("W", 9); self.limit = 10**9; self.npage = 0; self.hot = []; self.inl = False; self.boost = 0; self.last_cyc = 0; self.fine_on = False; self.nfine = 0; self.fnames = []; self.snames = ['start']
    def add_w(self, name, ptr, kind, ty, late=False):
        pol = self.c.get("wpol", "nt")
        def mk(k):
            def f():
                a = self.a
                if k == 0:
                    off = sWqRow if kind == "q" else sWoRow
                    a.I(f"s_add_u32 s{WT}, s{ptr}, s{off}\ns_addc_u32 s{WT+1}, s{ptr+1}, 0\ns_sub_u32 s{WT+2}, {W_BYTES}, s{off}")
                    if late: a.I("v_mul_u32_u24 v54, 26, v0\nv_lshrrev_b32 v54, 8, v54\nv_mul_u32_u24 v54, 1120, v54\nv_lshl_add_u32 v54, v0, 4, v54")
                base = (WQ if kind == "q" else WO)[ty]
                a.I(f"s_add_u32 m0, s{sLdsW}, {base + 960 * k}")
                if kind == "q": so = 5 * (k // 2) * 12288; vr = vWq1 if k & 1 else vWq0
                else: so = 6 * k * 1280; vr = 54 if late else vWo
                a.I(f"s_mov_b32 s{sOff}, {so}\ns_mov_b64 exec, {sp(m60)}")
                a.I(f"buffer_load_dwordx4 v{vr}, {s4(WT)}, s{sOff} offen {pol} lds", tag=name)
                a.I("s_mov_b64 exec, -1")
            return f
        self.items += [(name, mk(k)) for k in range(8)]
    def add_kv(self, name, b, g):
        srd = {"KA": KA, "VA": VA, "KB": KB, "VB": VB}[name]
        isK = name[0] == "K"; vo = vKoff if isK else vVoff; step = 128 if isK else 256
        pol = self.c.get("kvpol", "nt")
        def mk(c):
            def f():
                a = self.a
                if (name, g) in SLOT:
                    rot = self.c.get("rot", 1) and name[1] == "B"
                    if rot and (name, b, g, c) == ("KB", 0, 0, 0):
                        m = self.c.get("rot", 1)
                        if m == 1: a.I(f"s_and_b32 s48, s{sS}, 3\ns_lshl_b32 s49, s{sWave}, 2\ns_or_b32 s48, s48, s49")
                        if m == 2: a.I(f"s_lshl_b32 s48, s{sWave}, 2")
                        if m == 3: a.I(f"s_and_b32 s48, s{sS}, 3\ns_lshl_b32 s48, s48, 2")
                        if m == 4: a.I(f"s_and_b32 s48, s{sWave}, 1\ns_lshl_b32 s48, s48, 3")
                    if c == 0 or self.off_val != (name, b, g):
                        if rot: a.I(f"s_xor_b32 s{sOff}, s48, {g}\ns_mul_i32 s{sOff}, s{sOff}, 3072" + (f"\ns_add_u32 s{sOff}, s{sOff}, {BSTR}" if b else ""))
                        else: a.I(f"s_mov_b32 s{sOff}, {b * BSTR + g * 3072}")
                    self.off_val = (name, b, g)
                    a.I(f"buffer_load_dwordx4 {SLOT[(name, g)][c]}, v{vo}, {s4(srd)}, s{sOff} offen offset:{step * c} {pol}")
                else:
                    self.off_val = None
                    a.I(f"s_add_u32 m0, s{sLdsVS}, {(g - 2) * 3072 + 1024 * c}\ns_mov_b32 s{sOff}, {b * BSTR + g * 3072 + step * c}")
                    a.I(f"buffer_load_dwordx4 v{vo}, {s4(srd)}, s{sOff} offen {pol} lds", tag=("VS", b, g))
            return f
        self.items += [((name, b, g), mk(c)) for c in range(3)]
    def stream(self, n, paced=True, W=None):
        for _ in range(n):
            if self.pos >= len(self.items): return
            assert self.pos < self.limit, (self.pos, self.limit)
            if paced: self.a.pace((W or self.W) + (self.c.get("B", 0) if self.pos < self.boost else 0))
            sv = self.a._in_inject; self.a._in_inject = True
            self.items[self.pos][1](); self.pos += 1; self.last_cyc = self.a.cyc
            if self.c.get("diag") == 3 and self.pos % 5 == 0 and self.pos > 10: self.stamp("pos")
            self.a._in_inject = sv
    def prefetch(self, n):
        a = self.a
        for _ in range(n):
            if not self.pfq: return
            srd, off = self.pfq.pop(0)
            a.I(f"v_lshlrev_b32 v{self.pfreg}, {self.c.get('pfs', 6)}, v0\ns_mov_b32 m0, {JUNK}\ns_mov_b32 s{sOff}, {BSTR + off}")
            a.I(f"buffer_load_dword v{self.pfreg}, {s4(srd)}, s{sOff} offen {self.c.get('pfpol', '')} lds")
            self.off_val = None
    def injector(self):
        a = self.a
        if self.pos < self.limit and a.cyc - self.last_cyc >= self.c.get("T", 330) and a.vm.outstanding() < self.W + self.c.get("XW", 4) + (self.c.get("B", 0) if self.pos < self.boost else 0):
            self.stream(1, paced=False)
    def stream_to(self, upto, **k): self.stream(max(0, upto - self.pos), **k)
    def index_after(self, name):
        return max(i for i, it in enumerate(self.items) if it[0] == name) + 1
    def fs(self, name):
        if not self.fine_on or self.nfine >= len(FS): return
        self.fcount = getattr(self, "fcount", 0) + 1
        if self.fcount <= self.c.get("fskip", 0): return
        self.a.I(f"{'s_memrealtime' if self.c.get('rt') else 's_memtime'} {sp(FS[self.nfine])}"); self.nfine += 1; self.fnames.append(name)
    def page(self):
        if not self.c.get("pages", 1): return
        k = self.npage; self.npage += 1
        self.a.I(f"s_branch Lpg{k}"); self.a.raw(f".p2align 12\nLst{k}:\n  s_setpc_b64 {sp(sRet)}\nLpg{k}:")
    def warm(self, ks):
        if not (self.c.get("pages", 1) and self.c.get("warm", 1)): return
        a = self.a
        a.I(f"s_cmp_lg_u32 s{sWave}, 3"); a.skip_begin("s_cbranch_scc1")
        for k in ks: a.I(f"s_call_b64 {sp(sRet)}, Lst{k}")
        a.skip_end()
    def check_slot(self, name, b, g):
        assert self.index_after((name, b, g)) <= self.pos, ("not issued", name, b, g, self.pos)
        if b == 0: assert self.index_after((name, 1, g)) - 3 >= self.pos, ("overwritten", name, g)
    def stamp(self, name=''):
        if self.c.get("marks"): self.a.raw(f"M_{name}_{len(self.snames)}:")
        if self.c.get("holdat") == name:
            self.a.I("s_memrealtime s[98:99]"); self.a.wait(lg=0)
        self.snames.append(f'{name}@{self.pos}')
        if not self.c.get("diag") or self.c.get("fine"): return
        if self.c["diag"] == 3 and name not in ("pos", "end"): self.snames.pop(); return
        if self.c["diag"] == 2 and name not in self.c.get("only", ("p1end", "p2beg", "p2end", "end")): self.snames.pop(); return
        a = self.a
        a.I(f"s_memrealtime {sp(sST)}"); a.wait(lg=0)
        a.I(f"v_writelane_b32 v{vStamp}, s{sST if not self.c.get('rcount') else sRetry}, {self.nstamp}"); self.nstamp += 1
    def publish(self, text, local_ok, tag="pub"):
        a = self.a
        if local_ok and self.c.get("local", True):
            a.I(f"s_cmp_lg_u32 s{sLocal}, 0")
            a.either(text.format(pol=""), text.format(pol="sc1"), tag=tag)
        else: a.I(text.format(pol="sc1"), tag=tag); self.boost = self.pos + self.c.get("KB", 14)
    def gather(self, loads, regs, tmp, between=None, emask=None, sleep=None, first=False, spec=(), vmask=False):
        a = self.a
        if first and between: between(); between = None
        if emask: loads = [f"s_mov_b64 exec, {emask}"] + loads + ["s_mov_b64 exec, -1"]
        for t in loads: a.I(t, tag="gat")
        last = len(a.vm.ent) - 1
        if emask or self.c.get("BG"): self.boost = self.pos + self.c.get("KB", 14)
        if between: between()
        self.fs("issued")
        n = a.vm.need(last)
        if n is not None: a.wait(vm=n)
        chk = a.label("Lc"); rt = a.label("Lr")
        a.raw(f"{chk}:"); a.no_inject += 1
        r = list(regs); ops = []
        ops.append(f"v_max3_u32 v{tmp}, v{r[0]}, v{r[1]}, v{r[2]}"); r = r[3:]
        while len(r) >= 2: ops.append(f"v_max3_u32 v{tmp}, v{tmp}, v{r[0]}, v{r[1]}"); r = r[2:]
        if r: ops.append(f"v_max_u32 v{tmp}, v{tmp}, v{r[0]}")
        ops.append(f"v_cmp_eq_u32 vcc, -1, v{tmp}")
        spec = list(spec)
        k = -(-len(ops) // max(1, len(spec)))
        while ops or spec:
            if spec: a.I(spec.pop(0))
            for t in ops[:k]: a.I(t)
            ops = ops[k:]
        if vmask: a.I(f"s_and_b64 vcc, vcc, {emask}")
        self.inl = self.c.get("inl", 0) and not a.inject
        if not (self.c.get("novalid") and a.inject): a.I(f"s_cbranch_vccz {rt}k" if self.inl else f"s_cbranch_vccnz {rt}")
        if self.c.get("narrow", 3) & (2 if emask else 1):
            loads = ["s_mov_b64 exec, vcc"] + [t for t in loads if not t.startswith("s_mov")] + ["s_mov_b64 exec, -1"]
        self.retry_block(rt, chk, loads, sleep); a.no_inject -= 1
        self.fs("valid")
    def lsleep(self): return None if self.a.inject else self.c.get('lsleep', 0)
    def retry_block(self, rt, chk, loads, sleep=None):
        a = self.a
        if sleep is None: sleep = self.c.get("sleep", 0)
        blk = ([f"  s_sleep {sleep}"] if sleep else []) + ["  " + t for t in loads]
        blk += [f"  s_add_u32 s{sRetry}, s{sRetry}, 1", f"  s_cmp_gt_u32 s{sRetry}, {self.c.get('spin', 400000)}", "  s_cbranch_scc1 L_end",
                "  s_waitcnt vmcnt(0)", f"  s_branch {chk}"]
        if self.inl: a.out += blk + [f"{rt}k:"]
        elif a.inject: a.tail += [f"{rt}:"] + blk
        else: self.hot += [f"{rt}:"] + blk
        self.inl = False
    def setup(self):
        a = self.a; I = a.I
        I(f"s_cmp_ge_u32 s{sWG}, 256\ns_cbranch_scc1 L_end")
        I(f"s_load_dwordx16 s[32:47], s[0:1], 0\ns_load_dwordx8 s[48:55], s[0:1], 64\ns_load_dwordx2 s[56:57], s[0:1], 96")
        if self.c.get("diag") or self.c.get("hold"): I(f"s_memrealtime s[96:97]")
        I(f"v_lshrrev_b32 v8, 6, v0\nv_and_b32 v0, 63, v0\nv_readfirstlane_b32 s{sWave}, v8")
        I(f"s_and_b32 s{sT0}, s{sWG}, 7\ns_lshl_b32 s{sT0}, s{sT0}, 2\ns_lshr_b32 s{sT1}, s{sWG}, 3\ns_and_b32 s{sT1}, s{sT1}, 3\ns_add_u32 s{sH}, s{sT0}, s{sT1}\ns_lshr_b32 s{sS}, s{sWG}, 5")
        I(f"v_mul_u32_u24 v8, 43, v0\nv_lshrrev_b32 v8, 10, v8\nv_mul_u32_u24 v9, 24, v8\nv_sub_u32 v9, v0, v9\nv_mul_u32_u24 v8, 0x3000, v8\nv_lshl_add_u32 v{vWq0}, v9, 4, v8")
        I(f"v_add_u32 v10, 60, v0\nv_mul_u32_u24 v8, 43, v10\nv_lshrrev_b32 v8, 10, v8\nv_mul_u32_u24 v9, 24, v8\nv_sub_u32 v9, v10, v9\nv_mul_u32_u24 v8, 0x3000, v8\nv_lshl_add_u32 v{vWq1}, v9, 4, v8")
        I(f"s_mul_i32 s{sT0}, s{sS}, {80 * 12288}\ns_mul_i32 s{sT1}, s{sWave}, {20 * 12288}\ns_add_u32 s{sT0}, s{sT0}, s{sT1}\ns_mul_i32 s{sT1}, s{sH}, 384\ns_add_u32 s{sWqRow}, s{sT0}, s{sT1}")
        I(f"s_mul_i32 s{sT0}, s{sH}, {192 * 1280}\ns_mul_i32 s{sT1}, s{sWave}, {48 * 1280}\ns_add_u32 s{sT0}, s{sT0}, s{sT1}\ns_mul_i32 s{sT1}, s{sS}, 160\ns_add_u32 s{sWoRow}, s{sT0}, s{sT1}")
        I(f"s_mul_i32 s{sLdsW}, s{sWave}, 7680\ns_mov_b32 s{m60}, -1\ns_mov_b32 s{m60+1}, 0x0fffffff\ns_mov_b32 s{WT+3}, 0x20000\ns_mov_b32 s{sRetry}, 0")
        I(f"v_and_b32 v8, 15, v0\nv_lshrrev_b32 v9, 4, v0")
        I(f"v_lshrrev_b32 v10, 1, v8\nv_mul_u32_u24 v10, 384, v10\nv_and_b32 v11, 1, v8\nv_lshl_add_u32 v11, v9, 1, v11\nv_lshl_add_u32 v{vKoff}, v11, 4, v10")
        I(f"v_mul_u32_u24 v10, 768, v9\nv_lshl_add_u32 v{vVoff}, v8, 4, v10")
        I(f"s_mul_i32 s{sT0}, s{sH}, {HSTR}\ns_mul_i32 s{sT1}, s{sS}, {128 * 384}\ns_add_u32 s{sT1}, s{sT1}, s{sT0}\ns_mul_i32 s{sT2}, s{sWave}, {32 * 384}\ns_add_u32 s{sT1}, s{sT1}, s{sT2}\ns_add_u32 s{sOffG}, s{sT1}, {3072 * 384}")
        I(f"s_mul_i32 s{sT1}, s{sS}, {512 * 384}\ns_add_u32 s{sT1}, s{sT1}, s{sT0}\ns_mul_i32 s{sT2}, s{sWave}, {128 * 384}\ns_add_u32 s{sOffP}, s{sT1}, s{sT2}")
        I(f"s_mul_i32 s{sLdsVS}, s{sWave}, 6144\ns_add_u32 s{sLdsVS}, s{sLdsVS}, {VS}")
        I(f"s_mov_b32 s{XO+2}, 2560\ns_mov_b32 s{XO+3}, 0x20000\ns_mul_i32 s{sT0}, s{sS}, 160\nv_lshlrev_b32 v7, 2, v0\nv_min_u32 v7, 156, v7")
        for srd, o in ((KA, sOffG), (VA, sOffG), (KB, sOffP), (VB, sOffP)): I(f"s_sub_u32 s{srd+2}, {KV_BYTES}, s{o}\ns_mov_b32 s{srd+3}, 0x20000")
        I(f"s_mov_b32 s{WS+2}, {WS_BYTES}\ns_mov_b32 s{WS+3}, 0x20000")
        I(f"s_mul_i32 s{sH1grp}, s{sH}, {H1_H}\ns_mul_i32 s{sT1}, s{sS}, {H1_S}\ns_add_u32 s{sH1own}, s{sH1grp}, s{sT1}" + (f"\ns_mul_i32 s{sT1}, s{sS}, 768\ns_add_u32 s{sH1c}, s{sH1grp}, s{sT1}" if COMPACT1 else ""))
        I(f"s_mul_i32 s{sH2grp}, s{sH}, {H2_H}\ns_add_u32 s{sH2grp}, s{sH2grp}, {H2}\ns_mul_i32 s{sT1}, s{sS}, {H2_S}\ns_add_u32 s{sH2own}, s{sH2grp}, s{sT1}")
        I(f"s_mul_i32 s{sH3grp}, s{sS}, {H3_S}\ns_add_u32 s{sH3grp}, s{sH3grp}, {H3}\ns_mul_i32 s{sT1}, s{sH}, {H3_H}\ns_add_u32 s{sH3own}, s{sH3grp}, s{sT1}")
        self.clear_prep([[("P", 0)], [("C", 0)], [("P", 4)], [("2", 0), ("3", 0)]])
        a.wait(lg=0)
        if self.c.get("diag"): I(f"v_mov_b32 v{vStamp}, 0\nv_writelane_b32 v{vStamp}, s96, 0"); self.nstamp = 1
        def srds(l):
            for srd, p, o in l: I(f"s_add_u32 s{srd}, s{p}, s{o}\ns_addc_u32 s{srd+1}, s{p+1}, 0")
        def small():
            I(f"s_mov_b32 s{WS}, s{pWS}\ns_mov_b32 s{WS+1}, s{pWS+1}\ns_mov_b32 s{XO}, s{pX}\ns_mov_b32 s{XO+1}, s{pX+1}")
            self.clear_issue("clr")
            if USE_HOT == 3: self.probe_store()
            I(f"buffer_load_dword v12, v7, {s4(XO)}, s{sT0} offen\nbuffer_load_dword v13, v7, {s4(XO)}, s{sT0} offen offset:1280")
        n0, n1 = self.c.get("I", (12, 24))
        srds([(KA, pKA, sOffG)])
        self.stream(min(n0, 12), paced=False)
        srds([(VA, pVA, sOffG), (KB, pKB, sOffP), (VB, pVB, sOffP)])
        self.stream_to(n0, paced=False)
        small()
        self.stream_to(n1, paced=False)
        if self.c.get("st0"):
            self.stamp("end")
            n = len(a.vm.ent)
            for k in (1, 3, 6, 9, 12, 15, 18, n): a.wait(vm=n - k); self.stamp("end")
        if self.c.get("cpf") == 1: self.code_prefetch("L_pf0", "L_pf9")
        I(f"v_mul_u32_u24 v10, 26, v0\nv_lshrrev_b32 v10, 8, v10\nv_mul_u32_u24 v11, 10, v10\nv_sub_u32 v11, v0, v11\nv_mul_u32_u24 v10, 1280, v10\nv_lshl_add_u32 v{vWo}, v11, 4, v10")
        I("v_and_b32 v10, 1, v0\nv_cmp_eq_u32 vcc, 1, v10\nv_mov_b32 v11, 0xffff\nv_mov_b32 v20, 0xffff0000\nv_cndmask_b32 v11, v11, v20, vcc\nv_bfe_u32 v10, v0, 1, 2")
        for j in range(4): I(f"v_cmp_eq_u32 vcc, {j}, v10\nv_cndmask_b32 v{vMask+j}, 0, v11, vcc")
        for m, lo, hi in ((mODD, 0xaaaaaaaa, 0xaaaaaaaa), (mRG1, 0xffff0000, 0), (mRG2, 0, 0xffff), (mRG3, 0, 0xffff0000), (mWOST, 0x5555, 0x5555), (mN10, 0x03ff03ff, 0x03ff03ff), (mBIT1, 0xcccccccc, 0xcccccccc), (mL63, 0, 0x80000000)) + (((mQ13, 0x1fff1fff, 0x1fff1fff),) if COMPACT1 else ()):
            I(f"s_mov_b32 s{m}, {lo:#x}\ns_mov_b32 s{m+1}, {hi:#x}")
        I(f"s_cmp_eq_u32 s{sWave}, 3\ns_cselect_b64 {sp(mW3)}, -1, 0\ns_min_u32 s{sW2}, s{sWave}, 2")
        if H2_S == 384:
            I(f"s_mul_i32 s{sT0}, s{sS}, -368\ns_add_u32 s{sT0}, s{sT0}, 3072\ns_lshl_b32 s{sPub2}, s{sWave}, 7\ns_cmp_eq_u32 s{sWave}, 3\ns_cselect_b32 s{sPub2}, s{sT0}, s{sPub2}")
            I(f"s_mov_b32 s{mPub2}, 0x55555555\ns_cselect_b32 s{mPub2+1}, 0, s{mPub2}\ns_cselect_b32 s{mPub2}, 0x55, s{mPub2}")
        if self.c.get("nost3"): I(f"s_cmp_lt_u32 s{sWave}, 3\ns_cselect_b32 s{mWOST+1}, 0x5555, 0\ns_cselect_b32 s{mWOST}, 0x5555, 0")
        if H3_H == 160: I(f"s_cmp_lt_u32 s{sWave}, 2\ns_cselect_b32 s{mWOST+1}, 0x5555, 0")
        I(f"s_getreg_b32 s{sXcc}, hwreg(HW_REG_XCC_ID, 0, 4)\ns_add_u32 s{sXcc}, s{sXcc}, 1")
        for r, m, base in ((sXROWw, 160, XROW), (sYw, 320, Y), (sQw, 96, QB)): I(f"s_mul_i32 s{r}, s{sWave}, {m}\ns_add_u32 s{r}, s{r}, {base}")
        I(f"v_add_u32 v10, s{sXROWw}, v7\nv_add_u32 v11, {ONES}, v7\nv_mov_b32 v20, 0x3f803f80")
        I("ds_write_b32 v11, v20\nds_write_b32 v10, v12\nds_write_b32 v10, v13 offset:640")
        I(f"s_mov_b32 s{XO}, s{pOUT}\ns_mov_b32 s{XO+1}, s{pOUT+1}")
        if COMPACT1: I(f"s_mov_b32 s{mPub1}, -1\ns_cmp_eq_u32 s{sWave}, 0\ns_cselect_b32 s{mPub1+1}, 0xfffff, 0\ns_or_b32 s{mPub1+1}, s{mPub1+1}, 0xffff")
    def clear_prep(self, jobs):
        I = self.a.I
        I("v_mov_b32 v16, -1\nv_mov_b32 v17, -1\nv_mov_b32 v18, -1\nv_mov_b32 v19, -1\nv_lshlrev_b32 v14, 4, v0")
        def seg(k, inst, hi):
            if k == "P" and c1(inst): return sH1c, inst * H1_I, (0x1ffff if hi else -1)
            if k in "PC": return h1(inst)[0], h1(inst)[2] + (1024 if k == "C" else 0), -1
            if k == "2": return h2(inst)[0], h2(inst)[2] - 512 * hi, (0x1ffffff if H2_S == 384 else -1)
            return h3(inst)[0], h3(inst)[2] - 512 * hi, (0x3ff if H3_H == 160 else 0xffff if self.c.get('clr256') else 0xfff)
        for w, job in enumerate(jobs):
            lo = seg(*job[0], 0); hi = seg(*job[-1], 1)
            for (r, o, m), dst, md in ((lo, sT1, sClr), (hi, sT2, sClr + 1)):
                if w == 0: I(f"s_add_u32 s{dst}, s{r}, {o & 0xffffffff}\ns_mov_b32 s{md}, {m}")
                else: I(f"s_add_u32 s{sOff}, s{r}, {o & 0xffffffff}\ns_cmp_eq_u32 s{sWave}, {w}\ns_cselect_b32 s{dst}, s{sOff}, s{dst}\ns_cselect_b32 s{md}, {m}, s{md}")
        self.off_val = None
        I(f"v_mov_b32 v15, s{sT1}\nv_mov_b32 v20, s{sT2}\nv_cmp_lt_u32 vcc, 31, v0\nv_cndmask_b32 v15, v15, v20, vcc\nv_add_u32 v15, v15, v14")
        if any(k == "P" and c1(i) for job in jobs for k, i in job):
            I(f"s_mov_b32 s{sT1}, 0\ns_mov_b32 s{sT2}, 0")
            for w, job in enumerate(jobs):
                if job[0][0] == "P" and c1(job[0][1]): I(f"s_cmp_eq_u32 s{sWave}, {w}\ns_cselect_b32 s{sT2}, 0x10000, s{sT2}")
            self.off_val = None; self.a.no_inject += 1
            I(f"s_mul_i32 s{sOff}, s{sS}, -752\ns_add_u32 s{sOff}, s{sOff}, {6144 - 768}\nv_add_u32 v20, s{sOff}, v15\nv_cndmask_b32 v15, v15, v20, {sp(sT1)}")
            self.a.no_inject -= 1
        if H2_S == 384 and any(k == "2" for job in jobs for k, _ in job):
            I(f"s_mov_b32 s{sT1}, 0\ns_mov_b32 s{sT2}, 0")
            for w, job in enumerate(jobs):
                for (k, _), dst in ((job[0], sT1), (job[-1], sT2)):
                    if k == "2": I(f"s_cmp_eq_u32 s{sWave}, {w}\ns_cselect_b32 s{dst}, 0x1000000, s{dst}")
            self.off_val = None; self.a.no_inject += 1
            I(f"s_mul_i32 s{sOff}, s{sS}, -368\ns_add_u32 s{sOff}, s{sOff}, {3072 - 384}\nv_add_u32 v20, s{sOff}, v15\nv_cndmask_b32 v15, v15, v20, {sp(sT1)}")
            self.a.no_inject -= 1
    def clear_issue(self, tag, local_ok=False):
        I = self.a.I
        I(f"s_mov_b64 exec, {sp(sClr)}")
        self.publish(f"buffer_store_dwordx4 v[16:19], v15, {s4(WS)}, 0 offen {{pol}}", local_ok, tag=tag)
        I("s_mov_b64 exec, -1")
    def tlb_touch(self):
        a = self.a; I = a.I
        ent = []
        for p, o, span in ((pWQA, sWqRow, 20 * 12288), (pKA, sOffG, 12288), (pVA, sOffG, 12288), (pWOA, sWoRow, 48 * 1280), (pWQB, sWqRow, 20 * 12288),
                           (pKB, sOffP, 49152), (pWOB, sWoRow, 48 * 1280), (pVB, sOffP, 49152)):
            for b in range(2 if o in (sOffG, sOffP) else 1): ent.append((p, o, b * BSTR))
        if self.c["tlb"] > 1:
            ent += [(pWS, None, 0), (pWS, None, 2 << 20), (pWS, None, 4 << 20), (pDBG, None, 0), (pOUT, None, 0)]
        for i, (p, o, c) in enumerate(ent):
            if o is None: I(f"s_add_u32 s{sT1}, s{p}, {c}\ns_addc_u32 s{sT2}, s{p+1}, 0")
            else:
                I(f"s_add_u32 s{sT1}, s{p}, s{o}\ns_addc_u32 s{sT2}, s{p+1}, 0")
                if c: I(f"s_add_u32 s{sT1}, s{sT1}, {c}\ns_addc_u32 s{sT2}, s{sT2}, 0")
            if i == 0: I(f"v_mov_b32 v14, s{sT1}\nv_mov_b32 v15, s{sT2}")
            else: I(f"v_writelane_b32 v14, s{sT1}, {i}\nv_writelane_b32 v15, s{sT2}, {i}")
        I(f"s_mov_b64 exec, {(1 << len(ent)) - 1}\nglobal_load_dword v250, v[14:15], off nt\ns_mov_b64 exec, -1")
    def code_prefetch(self, lo, hi):
        a = self.a; I = a.I
        l = a.label("Lp")
        I(f"s_getpc_b64 {sp(sT1)}"); a.raw(f"{l}:")
        I(f"s_add_u32 s{sT1}, s{sT1}, {lo}-{l}\ns_addc_u32 s{sT2}, s{sT2}, 0")
        I(f"s_lshr_b32 s{sT0}, s{sWG}, 3\ns_lshl_b32 s{sT0}, s{sT0}, 2\ns_add_u32 s{sT0}, s{sT0}, s{sWave}\ns_lshl_b32 s{sT0}, s{sT0}, 13")
        I(f"v_lshl_add_u32 v30, v0, 7, s{sT0}\nv_cmp_gt_u32 vcc, {hi}-{lo}, v30\ns_mov_b32 m0, {JUNK}")
        I("s_and_b64 exec, vcc, -1"); a.skip_begin("s_cbranch_execz")
        I(f"global_load_lds_dword v30, {sp(sT1)}")
        a.skip_end()
        I("s_mov_b64 exec, -1")
    def probe_store(self):
        a = self.a; I = a.I
        I(f"s_add_u32 s{sX1own}, s{WS}, {(8 << 20) - 1}\ns_and_b32 s{sX1own}, s{sX1own}, 0xffe00000\ns_sub_u32 s{sX1own}, s{sX1own}, s{WS}")
        I(f"s_lshr_b32 s{sT1}, s{sWG}, 4\ns_lshl_b32 s{sT1}, s{sT1}, 14\ns_bfe_u32 s{sT2}, s{sWG}, 0x10003\ns_lshl_b32 s{sT2}, s{sT2}, 12\ns_add_u32 s{sT1}, s{sT1}, s{sT2}")
        I(f"s_and_b32 s{sT2}, s{sWG}, 7\ns_lshl_b32 s{sT2}, s{sT2}, 7\ns_add_u32 s{sT1}, s{sT1}, s{sT2}\ns_add_u32 s{sT1}, s{sT1}, {X3 + 3072}\ns_add_u32 s{sX3g1}, s{sX1own}, s{sT1}")
        I(f"s_lshr_b32 s{sT1}, s{sWG}, 6\ns_lshl_b32 s{sT1}, s{sT1}, 14\ns_and_b32 s{sT2}, s{sWG}, 63\ns_lshl_b32 s{sT2}, s{sT2}, 7\ns_add_u32 s{sT1}, s{sT1}, s{sT2}\ns_add_u32 s{sT1}, s{sT1}, {XP}\ns_add_u32 s{sX1own}, s{sX1own}, s{sT1}")
        I(f"s_cmp_ge_u32 s{sWG}, {self.c.get('NV', 32)}\ns_cselect_b32 s{sT1}, 1, s{sWave}\ns_cmp_lg_u32 s{sT1}, 0"); a.skip_begin("s_cbranch_scc1")
        I(f"v_and_b32 v15, 8, v0\nv_lshlrev_b32 v15, 10, v15\nv_add_u32 v15, s{sX1own}, v15\nv_mov_b32 v20, s{sX3g1}\nv_cmp_lt_u32 vcc, 15, v0\nv_cndmask_b32 v15, v15, v20, vcc")
        I(f"v_and_b32 v20, 7, v0\nv_lshl_add_u32 v15, v20, 4, v15\ns_mov_b64 exec, 0xffffff")
        I(f"buffer_store_dwordx4 v[16:19], v15, {s4(WS)}, 0 offen sc1", tag="prb")
        I("s_mov_b64 exec, -1")
        a.skip_end()
    def arrive(self):
        a = self.a; I = a.I
        I(f"s_cmp_lg_u32 s{sWave}, 0"); a.skip_begin("s_cbranch_scc1")
        src = sXcc
        if USE_HOT == 3:
            NV = self.c.get("NV", 32)
            I(f"s_mov_b32 s{sT2}, s{sXcc}\ns_cmp_ge_u32 s{sWG}, {NV}"); a.skip_begin("s_cbranch_scc1")
            a.wait_tag("prb")
            I(f"s_load_dword s{sT1}, {sp(WS)}, s{sX3g1}"); a.wait(lg=0)
            I(f"s_add_u32 s{sT0}, s{sX1own}, 8192\ns_memtime s[0:1]"); a.wait(lg=0)
            I(f"s_load_dword s{sT1}, {sp(WS)}, s{sX1own}"); a.wait(lg=0)
            I(f"s_memtime {sp(sX3g0)}"); a.wait(lg=0)
            I(f"s_load_dword s{sT1}, {sp(WS)}, s{sT0}"); a.wait(lg=0)
            I(f"s_memtime {sp(sX1grp)}"); a.wait(lg=0)
            I(f"s_sub_u32 s0, s{sX3g0}, s0\ns_sub_u32 s1, s{sX1grp}, s{sX3g0}\ns_cmp_gt_u32 s0, s1\ns_cselect_b32 s{sT0}, 0x80, 0")
            I(f"s_sub_u32 s{sT1}, s{sXcc}, 1\ns_and_b32 s{sT1}, s{sT1}, 4\ns_lshl_b32 s{sT1}, s{sT1}, 5\ns_xor_b32 s{sT0}, s{sT0}, s{sT1}\ns_or_b32 s{sT2}, s{sT0}, s{sXcc}")
            a.skip_end()
            src = sT2
        I(f"s_and_b32 s{sT0}, s{sWG}, 3\ns_lshl_b32 s{sT0}, s{sT0}, 3\ns_lshl_b32 s{sT0}, s{src}, s{sT0}\ns_and_b32 s{sT1}, s{sWG}, 0xfc")
        I(f"v_mov_b32 v8, s{sT1}\nv_mov_b32 v9, s{sT0}\ns_mov_b64 exec, 1")
        I(f"global_atomic_add v8, v9, {sp(pDBG)} sc1\ns_mov_b64 exec, -1")
        a.skip_end()
    def handshake(self, between):
        a = self.a; I = a.I
        I("v_lshlrev_b32 v7, 2, v0")
        ld = f"global_load_dword v8, v7, {sp(pDBG)} sc1"
        I(ld); last = len(a.vm.ent) - 1
        between()
        n = a.vm.need(last)
        if n is not None: a.wait(vm=n)
        chk = a.label("Lc"); rt = a.label("Lr")
        a.raw(f"{chk}:"); a.no_inject += 1
        I("v_subrev_u32 v9, 0x01010101, v8\nv_not_b32 v10, v8\nv_and_b32 v9, v9, v10\nv_and_b32 v9, 0x80808080, v9\nv_cmp_ne_u32 vcc, 0, v9")
        I(f"s_cbranch_vccnz {rt}")
        self.retry_block(rt, chk, [ld]); a.no_inject -= 1
        if USE_HOT: self.sides()
        I(f"s_and_b32 s{sT0}, s{sWG}, 3\ns_lshl_b32 s{sT0}, s{sT0}, 3\nv_lshrrev_b32 v8, s{sT0}, v8\nv_and_b32 v8, 0xff, v8")
        I(f"s_bfe_u32 s{sT0}, s{sWG}, 0x30002\nv_and_b32 v9, 7, v0\nv_cmp_eq_u32 {sp(sT1)}, s{sT0}, v9\nv_cmp_ne_u32 vcc, s{sXcc}, v8")
        I(f"s_and_b64 vcc, vcc, {sp(sT1)}\ns_cmp_eq_u64 vcc, 0\ns_cselect_b32 s{sLocal}, 1, 0")
    def sides(self):
        a = self.a; I = a.I; a.no_inject += 1
        if USE_HOT == 3:
            I(f"s_mov_b32 s{sOffW}, 0")
            for k in range(4):
                I(f"v_bfe_u32 v9, v8, {8 * k + 7}, 1\nv_cmp_ne_u32 vcc, 0, v9\ns_bcnt1_i32_b64 s{sT0}, vcc\ns_add_u32 s{sOffW}, s{sOffW}, s{sT0}")
            I("v_and_b32 v8, 0x7f7f7f7f, v8")
        if USE_HOT == 2: I(f"s_mov_b32 s{sT1}, 0\ns_mov_b32 s{sT2}, 0x01010101")
        else:
            I(f"v_readlane_b32 s{sT1}, v8, 0\nv_readlane_b32 s{sT2}, v8, 1\nv_mov_b32 v9, s{sT1}\nv_mov_b32 v10, s{sT2}\nv_cndmask_b32 v9, v9, v10, {sp(mODD)}\nv_cmp_ne_u32 vcc, v8, v9")
            I(f"s_and_b32 s{sT0}, s{sWG}, 7\ns_lshl_b32 s{sT0}, s{sT0}, 3\ns_lshr_b64 s[0:1], {sp(sT1)}, s{sT0}\ns_and_b32 s0, s0, 0xff\ns_cmp_eq_u32 s0, s{sXcc}\ns_cselect_b64 vcc, vcc, -1")
            I(f"s_sub_u32 s{sT1}, s{sT1}, 0x01010101\ns_sub_u32 s{sT2}, s{sT2}, 0x01010101\ns_lshr_b32 s{sT1}, s{sT1}, 2\ns_lshr_b32 s{sT2}, s{sT2}, 2\ns_and_b32 s{sT1}, s{sT1}, 0x01010101\ns_and_b32 s{sT2}, s{sT2}, 0x01010101")
            I(f"s_xor_b32 s{sT0}, s{sT1}, s{sT2}\ns_cmp_eq_u32 s{sT0}, 0x01010101\ns_cselect_b32 s{sLocal}, 1, 0\ns_cmp_eq_u64 vcc, 0\ns_cselect_b32 s{sLocal}, s{sLocal}, 0")
            if USE_HOT == 3: I(f"s_cmp_gt_u32 s{sOffW}, {self.c.get('NV', 32) // 2}\ns_cselect_b32 s{sT0}, 0x01010101, 0\ns_xor_b32 s{sT1}, s{sT1}, s{sT0}\ns_xor_b32 s{sT2}, s{sT2}, s{sT0}")
            if self.c.get("pol"): I(f"s_xor_b32 s{sT1}, s{sT1}, 0x01010101\ns_xor_b32 s{sT2}, s{sT2}, 0x01010101")
            I(f"s_cmp_lg_u32 s{sLocal}, 0\ns_cselect_b32 s{sT1}, s{sT1}, 0\ns_cselect_b32 s{sT2}, s{sT2}, 0x01010101")
        I(f"s_mov_b64 s[40:41], {sp(sT1)}")
        def side(dst, k): I(f"s_lshr_b64 s[0:1], {sp(sT1)}, s{k}\ns_and_b32 s{dst}, s0, 1\ns_lshl_b32 s{dst}, s{dst}, 13")
        I(f"s_add_u32 s{sOffP}, s{WS}, {(8 << 20) - 1}\ns_and_b32 s{sOffP}, s{sOffP}, 0xffe00000\ns_sub_u32 s{sOffP}, s{sOffP}, s{WS}")
        I(f"s_and_b32 s{sT0}, s{sWG}, 7\ns_lshl_b32 s{sT0}, s{sT0}, 3"); side(sOffG, sT0)
        I(f"s_add_u32 s{sOffG}, s{sOffG}, s{sOffP}")
        I(f"s_and_b32 s{sT0}, s{sH}, 15\ns_lshl_b32 s{sX1grp}, s{sT0}, 14\ns_add_u32 s{sX1grp}, s{sX1grp}, s{sOffG}\ns_lshl_b32 s0, s{sS}, 10\ns_add_u32 s{sX1own}, s{sX1grp}, s0")
        I(f"s_lshr_b32 s0, s{sT0}, 1\ns_lshl_b32 s0, s0, 14\ns_and_b32 s1, s{sT0}, 1\ns_lshl_b32 s1, s1, 12\ns_add_u32 s0, s0, s1\ns_add_u32 s0, s0, {X2}\ns_add_u32 s{sX2grp}, s0, s{sOffG}\ns_mul_i32 s0, s{sS}, {H2_S}\ns_add_u32 s{sX2own}, s{sX2grp}, s0")
        I(f"s_lshr_b32 s0, s{sS}, 1\ns_lshl_b32 s0, s0, 14\ns_and_b32 s1, s{sS}, 1\ns_lshl_b32 s1, s1, 12\ns_add_u32 s0, s0, s1\ns_add_u32 s{sOffW}, s0, {X3}")
        I(f"s_mul_i32 s0, s{sT0}, {H3_H}\ns_add_u32 s0, s0, s{sOffW}\ns_add_u32 s{sX3own}, s0, s{sOffG}\ns_add_u32 s{sOffW}, s{sOffW}, s{sOffP}")
        for j, dst in enumerate((sX3g0, sX3g1)):
            I(f"s_lshl_b32 s{sT0}, s{sWave}, 4\ns_add_u32 s{sT0}, s{sT0}, {8 * j}"); side(dst, sT0)
            I(f"s_lshl_b32 s0, s{sWave}, 1\ns_add_u32 s0, s0, {j}\ns_and_b32 s0, s0, 3\ns_mul_i32 s0, s0, {4 * H3_H}\ns_add_u32 s{dst}, s{dst}, s0\ns_add_u32 s{dst}, s{dst}, s{sOffW}")
        a.no_inject -= 1
    WQB = [(24, 28, 32), (34, 38, 42), (44, 48, 52)]
    def wq_pre(self, ty):
        a = self.a; I = a.I
        I(f"v_bfe_u32 v7, v0, 2, 2\nv_lshrrev_b32 v9, 4, v0\nv_lshl_add_u32 v8, v9, 3, v7\nv_lshl_add_u32 v7, v9, 2, v7")
        I(f"v_and_b32 v9, 3, v0\nv_lshlrev_b32 v9, 3, v9\ns_mul_i32 s{sT0}, s{sWave}, 96\ns_add_u32 s{sT0}, s{sT0}, {WQ[ty]}\nv_add_u32 v9, s{sT0}, v9")
        I(f"s_movk_i32 s{sT0}, 384\nv_mad_u32_u24 v8, v8, s{sT0}, v9\nv_mad_u32_u24 v7, v7, s{sT0}, v9")
        for T, (b0, b1, b2) in enumerate(self.WQB):
            for t, r in ((0, b0), (1, b1)):
                I(f"ds_read_b64_tr_b16 {v2(r)}, v8 offset:{12288 * t + 32 * T}\nds_read_b64_tr_b16 {v2(r+2)}, v8 offset:{12288 * t + 1536 + 32 * T}")
            I(f"ds_read_b64_tr_b16 {v2(b2)}, v7 offset:{24576 + 32 * T}")
    def wq_addr(self, b, L):
        I = self.a.I
        I(f"v_mov_b32 v22, s{sXROWw}\nv_mov_b32 v23, {ONES - 640 * b}")
        I(f"v_cndmask_b32 v23, v22, v23, {sp(mODD)}\nv_lshrrev_b32 v21, 4, v0\nv_lshl_add_u32 v22, v21, 4, v23\nv_lshl_add_u32 v23, v21, 3, v23")
    def wq_main(self, b, L, local_ok=True, hoisted=False, hoist=False):
        a = self.a; a.comment(f"---- row {b} layer {L}: q projection partial"); I = a.I; inst = 4 * b + L; needC = inst < 2
        if not hoisted: self.wq_addr(b, L)
        I(f"ds_read_b128 v[12:15], v22 offset:{640 * b}\nds_read_b128 v[16:19], v22 offset:{640 * b + 64}\nds_read_b64 v[20:21], v23 offset:{640 * b + 128}")
        if c1(inst):
            I(f"s_mul_i32 s{sT0}, s{sWave}, 192\nv_lshl_add_u32 v7, v0, 2, s{sT0}\ns_mul_i32 s{sT0}, s{sS}, -752\ns_add_u32 s{sT0}, s{sT0}, {6144 - 192}\nv_lshl_add_u32 v23, v0, 2, s{sT0}")
            I(f"v_cndmask_b32 v7, v7, v23, {sp(mRG3)}\ns_add_u32 s{sOffP}, s{sH1c}, {inst * H1_I}")
        else: I(f"s_lshl_b32 s{sT0}, s{sWave}, 8\nv_lshl_add_u32 v7, v0, 2, s{sT0}\ns_add_u32 s{sOffP}, s{h1(inst)[0]}, {h1(inst)[2]}")
        if hoist: self.qg_addr(b, L)
        D = [8, 24, 28]
        for T, (b0, b1, b2) in enumerate(self.WQB):
            I(f"v_mfma_f32_16x16x32_bf16 {v4(D[T])}, v[12:15], {v4(b0)}, 0")
            I(f"v_mfma_f32_16x16x32_bf16 {v4(D[T])}, v[16:19], {v4(b1)}, {v4(D[T])}")
        I("v_mfma_f32_16x16x32_bf16 v[34:37], v[12:15], v[12:15], 0\nv_mfma_f32_16x16x32_bf16 v[34:37], v[16:19], v[16:19], v[34:37]")
        for T, (b0, b1, b2) in enumerate(self.WQB):
            I(f"v_mfma_f32_16x16x16_bf16 {v4(D[T])}, v[20:21], {v2(b2)}, {v4(D[T])}")
        I("v_mfma_f32_16x16x16_bf16 v[34:37], v[20:21], v[20:21], v[34:37]")
        for r in range(2 if needC else 1):
            I(f"v_cndmask_b32 v{22+r}, v{8+r}, v{24+r}, {sp(mRG1)}\nv_cndmask_b32 v{22+r}, v{22+r}, v{28+r}, {sp(mRG2)}\nv_cndmask_b32 v{22+r}, v{22+r}, v34, {sp(mRG3)}\nv_min_u32 v{22+r}, -2, v{22+r}")
            if c1(inst): I(f"s_mov_b64 exec, {sp(mPub1)}")
            self.publish(f"buffer_store_dword v{22+r}, v7, {s4(WS)}, s{sOffP} offen offset:{1024 * r} {{pol}}", local_ok)
            if c1(inst): I("s_mov_b64 exec, -1")
    def qg_addr(self, b, L):
        I = self.a.I
        if c1(4 * b + L):
            I(f"v_and_b32 v23, 15, v0\nv_lshrrev_b32 v54, 4, v0\nv_mul_u32_u24 v54, 768, v54\nv_lshl_add_u32 v54, v23, 4, v54\ns_mul_i32 s{sT0}, s{sWave}, 192\nv_add_u32 v54, s{sT0}, v54")
            I(f"s_add_u32 s{sOffG}, s{sH1grp}, {(4 * b + L) * H1_I}")
            return
        I(f"v_and_b32 v23, 15, v0\nv_lshrrev_b32 v54, 4, v0\nv_mul_u32_u24 v54, {h1(4 * b + L)[3]}, v54\nv_lshl_add_u32 v54, v23, 4, v54\ns_lshl_b32 s{sT0}, s{sWave}, 8")
        I(f"s_add_u32 s{sOffG}, s{h1(4 * b + L)[1]}, s{sT0}\ns_add_u32 s{sOffG}, s{sOffG}, {h1(4 * b + L)[2]}\ns_add_u32 s{sOffG2}, s{sOffG}, {4 * h1(4 * b + L)[3]}")
    def qg(self, b, L, between=None, hoisted=False, after=None, tail=False):
        a = self.a; a.comment(f"---- row {b} layer {L}: gather q partials, LayerNorm scale"); I = a.I; inst = 4 * b + L; needC = inst < 2; ty = L & 1
        if not hoisted: self.qg_addr(b, L)
        loads = [f"buffer_load_dwordx4 v[12:15], v54, {s4(WS)}, s{sOffG} offen sc1", f"buffer_load_dwordx4 v[16:19], v54, {s4(WS)}, s{sOffG2} offen sc1"]
        cc = c1(inst)
        if cc: loads = [f"buffer_load_dwordx4 v[12:15], v54, {s4(WS)}, s{sOffG} offen sc1", f"buffer_load_dwordx4 v[16:19], v36, {s4(WS)}, s{sOffG} offen sc1"]
        def addr2():
            I(f"v_add_u32 v36, 3072, v54\nv_and_b32 v37, 48, v0\nv_add_u32 v37, 6144, v37\ns_mov_b32 vcc_lo, 0x10001000\ns_mov_b32 vcc_hi, 0x10001000")
            I("v_cndmask_b32 v54, v54, v37, vcc\nv_add_u32 v37, 64, v37\nv_cndmask_b32 v36, v36, v37, vcc")
        if needC: loads += [f"buffer_load_dwordx4 v[20:23], v54, {s4(WS)}, s{sOffG} offen offset:1024 sc1", f"buffer_load_dwordx4 v[24:27], v54, {s4(WS)}, s{sOffG2} offen offset:1024 sc1"]
        def pre():
            I(f"v_and_b32 v32, 15, v0\nv_lshrrev_b32 v33, 4, v0\nv_and_b32 v34, 1, v33\nv_lshlrev_b32 v34, 1, v34\nv_lshrrev_b32 v28, 1, v33\nv_or_b32 v34, v34, v28\nv_lshl_add_u32 v34, v32, 2, v34")
            I(f"v_lshl_add_u32 v34, v34, 1, s{sQw}\nv_lshl_add_u32 v29, v0, 2, s{sCTw}")
            if not needC: I(f"ds_read_b32 v20, v29 offset:{1024 * ty}")
            self.q_addr(b)
            I(f"v_mov_b32 v35, {f32(1 / (640 * SCALE))}\nv_mov_b32 v32, {f32(1 / (640 * SCALE * SCALE))}\nv_mov_b32 v33, {f32(1e-5 / (SCALE * SCALE))}")
        first = hoisted and self.c.get('first', 3) & 2
        if cc: addr2()
        if first: pre()
        def shadow():
            if not first: pre()
            if tail and self.c.get("tq", 0): self.tail_addr(b, L)
            if tail and L == 2 and self.c.get("v2", 1):
                I(f"v_lshl_add_u32 v37, v0, 4, s{sLdsVS}")
                for c in range(3): I(f"ds_read_b128 {v4(vU + 2 + 4 * c)}, v37 offset:{1024 * c}")
            if between: between()
        self.gather(loads, range(12, 28 if needC else 20), 28, between=shadow, sleep=self.lsleep(), emask=sp(mQ13) if cc else None, vmask=cc)
        if after: after()
        def red(r):
            I(f"v_pk_add_f32 {v2(r)}, {v2(r)}, {v2(r+4)}\nv_pk_add_f32 {v2(r+2)}, {v2(r+2)}, {v2(r+6)}")
            I(f"v_permlane32_swap_b32 v{r}, v{r+1}\nv_permlane32_swap_b32 v{r+2}, v{r+3}\nv_add_f32 v{r}, v{r}, v{r+1}\nv_add_f32 v{r+2}, v{r+2}, v{r+3}")
            I(f"v_permlane16_swap_b32 v{r}, v{r+2}\nv_add_f32 v{r}, v{r}, v{r+2}")
        red(12)
        I(f"v_readlane_b32 s{sT0}, v12, 12\nv_readlane_b32 s{sT1}, v12, 44")
        if needC: red(20); I(f"v_mul_f32 v20, {f32(SCALE)}, v20\nds_write_b32 v29, v20 offset:{1024 * ty}")
        I(f"s_mov_b32 exec_lo, 0x0fff0fff\ns_mov_b32 exec_hi, 0x0fff0fff")
        I(f"v_mul_f32 v15, s{sT1}, v35\nv_fma_f32 v14, s{sT0}, v32, v33\nv_fma_f32 v14, -v15, v15, v14\nv_max_f32 v14, v33, v14\nv_rsq_f32 v14, v14")
        I(f"v_fma_f32 v12, -v15, v20, v12\nv_mul_f32 v12, v12, v14\nv_cvt_pk_bf16_f32 v12, v12, v12")
        I(f"ds_write_b16 v34, v12 offset:{384 * b}\ns_mov_b64 exec, -1")
        a.barrier()
    def tail_addr(self, b, L):
        I = self.a.I; inst = 4 * b + L
        I(f"v_and_b32 v50, 15, v0\nv_lshlrev_b32 v50, 5, v50\nv_and_b32 v51, 16, v0\nv_add3_u32 v50, v50, v51, s{sATTw}\nv_mov_b32 v51, s{sSTATw}")
        self.wo_addr(b, L)
        I(f"v_mov_b32 v9, {STAT}\nv_lshl_add_u32 v10, v0, 2, s{sCOMBw}")
        if H2_S == 384: I(f"v_lshl_add_u32 v11, v0, 1, s{sPub2}\ns_add_u32 s{sOffP}, s{h2(inst)[0]}, {h2(inst)[2]}")
        else: I(f"s_lshl_b32 s{sT0}, s{sWave}, 7\nv_lshl_add_u32 v11, v0, 1, s{sT0}\ns_add_u32 s{sOffP}, s{h2(inst)[0]}, {h2(inst)[2]}")
    def q_addr(self, b):
        self.a.I(f"v_and_b32 v30, 1, v0\nv_lshrrev_b32 v31, 4, v0\nv_lshlrev_b32 v31, 5, v31\nv_lshl_add_u32 v30, v30, 4, v31\nv_add_u32 v30, {QB + 384 * b}, v30")
    def att(self, b, L, hook1=None, hook2=None, hookm=None, pre_bar=None, guard=False, hoist=False, qaddr=False):
        a = self.a; a.comment(f"---- row {b} layer {L}: attention"); I = a.I; ty = L & 1; G = 16 if ty else 4; Kn = "KB" if ty else "KA"; Vn = "VB" if ty else "VA"
        vM, vL = 52, 53
        if not qaddr: self.q_addr(b)
        for t in range(3): I(f"ds_read_b128 {v4(vQ + 4 * t)}, v30 offset:{128 * t}")
        def lds_v(g):
            a.wait_tag(("VS", b, g))
            I(f"v_lshl_add_u32 v54, v0, 4, s{sLdsVS}")
            for c in range(3): I(f"ds_read_b128 {v4(vU + 2 + 4 * c)}, v54 offset:{(g - 2) * 3072 + 1024 * c}")
        early = (not ty) and L == 2
        if early and not self.c.get('v2', 1): lds_v(2)
        if not (qaddr and self.c.get("tq", 0)):
            if self.c.get("fill", 1):
                if self.c.get("touch", 4) == 4 and L >= 2 and (b, L) != (0, 3): a.queue(lambda: self.touch_fill(b, L))
                a.queue(lambda: self.tail_addr(b, L)); a.drain(self.c.get("fill0", 8))
            else: self.tail_addr(b, L)
        def D(g): return vACC + 4 * (g % 3)
        dm = "row_mask:0xf"; NP = G // 2
        order = list(range(G)) if ty else ([2, 0, 1, 3] if early else [0, 1, 2, 3])
        at = {g: i for i, g in enumerate(order)}
        U = lambda g: vU + at[g] // 2
        bank = lambda g, hi: (1 << (at[g] & 1)) << (2 * hi)
        spread = []; got = {}
        for g in range(G + 2):
            K = SLOT[(Kn, g)] if g < G else None
            if K: self.check_slot(Kn, b, g)
            e = g - 2
            if K: I(f"v_mfma_f32_16x16x32_bf16 {v4(D(g))}, {K[0]}, {v4(vQ)}, 0")
            if spread and K: I(spread.pop(0))
            if g == 1 and self.c.get("fa"): self.fs("g1")
            if K: a.drain(2)
            if K: I(f"v_mfma_f32_16x16x32_bf16 {v4(D(g))}, {K[1]}, {v4(vQ+4)}, {v4(D(g))}")
            if K and e < 0: a.drain(2)
            if 0 <= e < G: I(f"v_add_f32_dpp v{U(e)}, v{D(e)}, v{D(e)+1} quad_perm:[0,0,2,2] {dm} bank_mask:{bank(e, 0):#x}")
            if K: I(f"v_mfma_f32_16x16x32_bf16 {v4(D(g))}, {K[2]}, {v4(vQ+8)}, {v4(D(g))}")
            if g == G + 1 and NP > 3: I(f"v_max3_f32 v{vM}, v{vU}, v{vU+1}, v{vU+2}\nv_max3_f32 v{vM}, v{vM}, v{vU+3}, v{vU+4}")
            if K and e < 0: a.drain(2)
            if hook1 and g < G: hook1(g)
            if 0 <= e < G: I(f"v_add_f32_dpp v{U(e)}, v{D(e)+2}, v{D(e)+3} quad_perm:[0,0,2,2] {dm} bank_mask:{bank(e, 1):#x}")
            if 0 <= e < G:
                got[U(e)] = got.get(U(e), 0) + 1
                if got[U(e)] == 2: spread.append(f"v_mov_b32_dpp v{U(e)}, v{U(e)} quad_perm:[1,1,3,3] {dm} bank_mask:0xf")
        a.fill = spread + a.fill
        if self.c.get("fa"): self.fs("p1")
        if hookm: hookm()
        if NP > 3: I(f"v_max3_f32 v{vM}, v{vM}, v{vU+5}, v{vU+6}\nv_max_f32 v{vM}, v{vM}, v{vU+7}")
        else: I(f"v_max_f32 v{vM}, v{vU}, v{vU+1}")
        red = ("row_ror:8 row_mask:0xf", "row_ror:4 row_mask:0xf", "row_bcast:15 row_mask:0xa", "row_bcast:31 row_mask:0xc")
        for x in red: I(f"v_max_f32_dpp v{vM}, v{vM}, v{vM} {x} bank_mask:0xf")
        I(f"v_readlane_b32 s{sM}, v{vM}, 63")
        def prob(p): return [f"v_subrev_f32 v{vU+p}, s{sM}, v{vU+p}", f"v_exp_f32 v{vU+p}, v{vU+p}",
                             f"v_mov_b32 v{vL}, v{vU+p}" if p == 0 else f"v_add_f32 v{vL}, v{vL}, v{vU+p}",
                             f"v_cvt_pk_bf16_f32 v{vU+p}, v{vU+p}, v{vU+p}"]
        def diag(i, j):
            d = vQ + 4 * (i & 1) + j; u = vU + i // 2
            if (j >> 1) == (i & 1): I(f"v_and_b32 v{d}, v{u}, v{vMask + j}")
            else: I(f"v_and_b32_dpp v{d}, v{u}, v{vMask + j} {'row_shl:4' if i & 1 else 'row_shr:4'} {dm} bank_mask:0xf bound_ctrl:0")
        a.drain()
        p0 = prob(0); p1 = prob(1)
        for t in (p0[0], p0[1], p1[0], p0[2], p0[3], p1[1]): I(t)
        pend = p1[2:]
        for j in (0, 1, 2, 3): diag(0, j)
        I(f"v_mov_b32 v{vM}, s{sM}\nds_write_b32 v51, v{vM}") if not guard else None
        if guard: a.barrier(); I(f"v_mov_b32 v{vM}, s{sM}\nds_write_b32 v51, v{vM}")
        if self.c.get("fa"): self.fs("p2start")
        lred = []
        for i, g in enumerate(order):
            self.check_slot(Vn, b, g)
            if (Vn, g) in SLOT: V = SLOT[(Vn, g)]
            else:
                if not early: lds_v(g)
                V = [v4(vU + 2 + 4 * c) for c in range(3)]
            A = v4(vQ + 4 * (i & 1))
            nx = i + 1 < G
            if (i & 1) == 1 and i // 2 + 2 < NP: assert not pend; pend = prob(i // 2 + 2)
            if i == G - 2: assert not pend; lred = [f"v_add_f32_dpp v{vL}, v{vL}, v{vL} {x} bank_mask:0xf" for x in red]
            for c in range(3):
                acc = v4(vACC + 4 * c)
                I(f"v_mfma_f32_16x16x32_bf16 {acc}, {A}, {V[c]}, {acc if i else 0}")
                if nx and c < 2: diag(i + 1, 2 * c + 0 if (i + 1) & 1 == 0 else (2 * c + 2) % 4); diag(i + 1, 2 * c + 1 if (i + 1) & 1 == 0 else (2 * c + 3) % 4)
                if pend and c == 2: I(pend.pop(0)); I(pend.pop(0))
                if lred: I(lred.pop(0))
                if i == G - 1 and c == 1: I(f"s_mov_b64 exec, {sp(mL63)}\nds_write_b32 v51, v{vL} offset:16\ns_mov_b64 exec, -1")
            if early and g == 2: lds_v(3)
            if hook2: hook2(i)
        if self.c.get("fa"): self.fs("p2end")
        for c, (lo, hi) in enumerate(((0xffffffff, 0), (0x00ff00ff, 0xff00ff00), (0, 0xffffffff))):
            I(f"s_mov_b32 exec_lo, {lo:#x}\ns_mov_b32 exec_hi, {hi:#x}\nds_write_b128 v50, {v4(vACC + 4 * c)} offset:{512 * c}")
        I("s_mov_b64 exec, -1")
        if pre_bar: pre_bar()
        self.fs("att_end")
        a.barrier()
        self.combine(b, L)
        self.fs("pub2")
    def combine(self, b, L):
        a = self.a; I = a.I; inst = 4 * b + L; a.comment("merge the four waves' partials and publish")
        I("ds_read_b128 v[44:47], v9\nds_read_b128 v[48:51], v9 offset:16")
        for i in range(0, 8, 2): I(f"ds_read2st64_b32 {v2(12 + i)}, v10 offset0:{3 * i} offset1:{3 * i + 3}")
        I("v_max3_f32 v52, v44, v45, v46\nv_max_f32 v52, v52, v47")
        for w in range(4): I(f"v_sub_f32 v{44+w}, v{44+w}, v52")
        for w in range(4): I(f"v_exp_f32 v{44+w}, v{44+w}")
        for w in range(4): I(f"v_add_f32 v{12 + 2 * w}, v{12 + 2 * w}, v{13 + 2 * w}")
        I("v_mul_f32 v20, v44, v12\nv_fmac_f32 v20, v45, v14\nv_fmac_f32 v20, v46, v16\nv_fmac_f32 v20, v47, v18")
        I("v_mul_f32 v53, v44, v48\nv_fmac_f32 v53, v45, v49")
        I("v_mov_b32_dpp v21, v20 quad_perm:[1,1,3,3] row_mask:0xf bank_mask:0xf")
        I("v_fmac_f32 v53, v46, v50\nv_fmac_f32 v53, v47, v51\nv_cvt_pk_bf16_f32 v20, v20, v21")
        I(f"v_cndmask_b32 v52, v52, v53, {sp(mBIT1)}\nv_cndmask_b32 v20, v20, v52, {sp(mW3)}\nv_min_u32 v20, -2, v20")
        I(f"s_mov_b64 exec, {sp(mPub2)}" if H2_S == 384 else f"s_not_b64 exec, {sp(mODD)}")
        self.publish(f"buffer_store_dword v20, v11, {s4(WS)}, s{sOffP} offen {{pol}}", True)
        I("s_mov_b64 exec, -1")
    def wo_addr(self, b, L):
        I = self.a.I
        I(f"v_bfe_u32 v8, v0, 1, 3\nv_lshrrev_b32 v9, 4, v0\nv_and_b32 v7, 1, v0\nv_lshl_add_u32 v7, v9, 1, v7\nv_lshlrev_b32 v7, 4, v7\ns_movk_i32 s{sT0}, {H2_S}\nv_mad_u32_u24 v7, v8, s{sT0}, v7")
        I(f"v_lshl_add_u32 v8, v9, 1, v8\nv_and_b32 v8, 7, v8\nv_mul_u32_u24 v8, {16 if H2_S == 384 else H2_S}, v8\ns_add_u32 s{sOffW}, s{h2(4 * b + L)[1]}, {h2(4 * b + L)[2]}")
    def wo(self, b, L, between=None, hoisted=False, hoist=False, after=None):
        a = self.a; a.comment(f"---- row {b} layer {L}: gather attention partials, output projection partial"); I = a.I; inst = 4 * b + L; ty = L & 1
        if not hoisted: self.wo_addr(b, L)
        loads = [f"buffer_load_dwordx2 v[52:53], v8, {s4(WS)}, s{sOffW} offen offset:{3072 if H2_S == 384 else 384} sc1"]
        loads += [f"buffer_load_dwordx4 {v4(12 + 4 * t)}, v7, {s4(WS)}, s{sOffW} offen offset:{128 * t} sc1" for t in range(3)]
        S = [24, 28, 32, 36, 40, 44]
        def rd(kk, reg, tile):
            o = 10240 * (kk >> 1) + 1280 * (kk & 1) + 32 * tile
            I(f"ds_read_b64_tr_b16 {v2(reg)}, v10 offset:{o}\nds_read_b64_tr_b16 {v2(reg + 2)}, v10 offset:{o + 640}")
        def pre():
            I(f"v_bfe_u32 v10, v0, 2, 2\nv_and_b32 v11, 48, v0\nv_add_u32 v10, v10, v11\nv_mul_u32_u24 v10, 160, v10\nv_and_b32 v11, 3, v0\nv_lshl_add_u32 v10, v11, 3, v10")
            I(f"s_lshl_b32 s{sT0}, s{sW2}, 6\ns_add_u32 s{sT1}, s{sT0}, {WO[ty]}\nv_add_u32 v10, s{sT1}, v10")
            for kk in range(6): rd(kk, S[kk], 0)
            I(f"v_and_b32 v11, 15, v0\nv_lshlrev_b32 v11, 1, v11\nv_and_b32 v9, 32, v0\nv_add3_u32 v11, v11, v9, s{sT0}\ns_add_u32 s{sOffP}, s{h3(inst)[0]}, {h3(inst)[2]}")
            if hoist: self.yg_addr()
            if between: between()
        D0, D1 = 48, 24
        mt = lambda D, t, B, first: f"v_mfma_f32_16x16x32_bf16 {v4(D)}, {v4(12 + 4 * t)}, {v4(B)}, {0 if first else v4(D)}"
        def mm(*k): I(mt(*k))
        self.gather(loads, [52, 53] + list(range(12, 24)), 9, between=pre, sleep=self.lsleep(), first=hoisted and self.c.get('first', 3) & 1,
                    spec=[mt(D0, 0, S[0], True), mt(D0, 1, S[2], False), mt(D0, 2, S[4], False)])
        if after: after()
        dpp = lambda op, d, x, ctl: I(f"{op}_dpp v{d}, v{x}, v{x} {ctl} row_mask:0xf bank_mask:0xf")
        def fold(out):
            I(f"v_add_f32 v{D0}, v{D0}, v{D1 + 1}\nv_add_f32 v{D0 + 2}, v{D0 + 2}, v{D1 + 3}\nv_mul_f32 v{out}, v7, v{D0}\nv_fmac_f32 v{out}, v8, v{D0 + 2}")
        dpp("v_max_f32", 9, 52, "row_ror:8")
        mm(D1, 0, S[1], True); rd(0, S[2], 1); dpp("v_max_f32", 9, 9, "row_ror:4")
        mm(D1, 1, S[3], False); rd(2, S[4], 1); dpp("v_max_f32", 9, 9, "row_ror:2")
        mm(D1, 2, S[5], False); I("v_sub_f32 v52, v52, v9\nv_exp_f32 v52, v52"); rd(4, S[1], 1); I("v_mul_f32 v53, v52, v53")
        rd(1, S[3], 1); dpp("v_add_f32", 53, 53, "row_ror:8")
        rd(3, S[5], 1); dpp("v_add_f32", 53, 53, "row_ror:4")
        I(f"v_add_f32 v{D0}, v{D0}, v{D1 + 1}\nv_add_f32 v{D0 + 2}, v{D0 + 2}, v{D1 + 3}")
        dpp("v_add_f32", 53, 53, "row_ror:2")
        I(f"v_mov_b32 v7, v{D0}\nv_mov_b32 v8, v{D0 + 2}\nv_rcp_f32 v53, v53")
        mm(D0, 0, S[2], True); rd(5, S[2], 1)
        I("v_mul_f32 v9, v52, v53")
        mm(D0, 1, S[4], False); mm(D0, 2, S[1], False)
        I("v_mul_f32_dpp v52, v9, v7 row_newbcast:0 row_mask:0xf bank_mask:0xf")
        mm(D1, 0, S[3], True)
        I("v_mov_b32_dpp v7, v9 row_newbcast:0 row_mask:0xf bank_mask:0xf")
        mm(D1, 1, S[5], False)
        I("v_fmac_f32_dpp v52, v9, v8 row_newbcast:2 row_mask:0xf bank_mask:0xf")
        mm(D1, 2, S[2], False)
        I("v_mov_b32_dpp v8, v9 row_newbcast:2 row_mask:0xf bank_mask:0xf")
        fold(53)
        I("v_permlane32_swap_b32 v52, v53\nv_add_f32 v52, v52, v53\nv_mov_b32 v53, v52\nv_permlane16_swap_b32 v52, v53\nv_add_f32 v52, v52, v53")
        I("v_mov_b32_dpp v53, v52 quad_perm:[1,1,3,3] row_mask:0xf bank_mask:0xf\nv_cvt_pk_bf16_f32 v52, v52, v53\nv_min_u32 v52, -2, v52")
        I(f"s_mov_b64 exec, {sp(mWOST)}")
        self.publish(f"buffer_store_dword v52, v11, {s4(WS)}, s{sOffP} offen {{pol}}", False)
        I("s_mov_b64 exec, -1")
    def yg_addr(self):
        self.a.I(f"v_lshrrev_b32 v54, 4, v0\nv_mul_u32_u24 v54, {H3_H}, v54\nv_and_b32 v9, 15, v0\nv_lshl_add_u32 v54, v9, 4, v54")
    def yg_pre(self, b, L):
        I = self.a.I
        if h3(4 * b + L)[1] is None: I(f"s_add_u32 s{sOffG}, s{sX3g0}, {h3(4 * b + L)[2]}\ns_add_u32 s{sOffG2}, s{sX3g1}, {h3(4 * b + L)[2]}")
        else: I(f"s_mul_i32 s{sT0}, s{sWave}, {8 * H3_H}\ns_add_u32 s{sOffG}, s{sH3grp}, s{sT0}\ns_add_u32 s{sOffG}, s{sOffG}, {(4 * b + L) * H3_I}\ns_add_u32 s{sOffG2}, s{sOffG}, {4 * H3_H}")
        for j in range(4): I(f"v_and_b32 v{16 + j}, 0x3f803f80, v{vMask + j}")
        for j in range(8): I(f"v_mov_b32 v{8 + j}, 0")
    def yg(self, b, L, between=None, pre_bar=None, hoisted=False, after=None):
        a = self.a; a.comment(f"---- row {b} layer {L}: gather output partials, residual"); I = a.I; inst = 4 * b + L; Yb = Y + YSZ * b
        if not hoisted: self.yg_addr(); self.yg_pre(b, L)
        loads = [f"buffer_load_dwordx4 {v4(8 + 4 * j)}, v54, {s4(WS)}, s{(sOffG, sOffG2)[j]} offen sc1" for j in range(2)]
        self.gather(loads, range(8, 16), 7, between=between, emask=sp(mN10),
                    spec=["v_mfma_f32_16x16x32_bf16 v[20:23], v[16:19], v[8:11], 0", "v_mfma_f32_16x16x32_bf16 v[20:23], v[16:19], v[12:15], v[20:23]"])
        if after: after()
        I(f"v_and_b32 v7, 15, v0\nv_lshlrev_b32 v7, 5, v7\nv_and_b32 v54, 16, v0\nv_add3_u32 v7, v7, v54, s{sYw}")
        I(f"s_mov_b32 exec_lo, s{mN10}\ns_mov_b32 exec_hi, 0\nds_write_b128 v7, v[20:23] offset:{YSZ * b}\ns_mov_b64 exec, -1")
        I(f"v_lshl_add_u32 v7, v0, 2, s{sXROWw}\nds_read_b32 v54, v7 offset:{640 * b}")
        I(f"v_lshlrev_b32 v14, 3, v0\nv_add_u32 v14, {Yb}, v14")
        if L < 3: self.wq_addr(b, L + 1)
        if pre_bar: pre_bar()
        a.barrier()
        I("s_mov_b32 exec_hi, 0xff")
        I("ds_read2_b64 v[8:11], v14 offset0:0 offset1:40\nds_read2_b64 v[12:15], v14 offset0:80 offset1:120")
        I("v_lshlrev_b32 v16, 16, v54\nv_and_b32 v17, 0xffff0000, v54")
        I("v_pk_add_f32 v[8:9], v[8:9], v[10:11]\nv_pk_add_f32 v[12:13], v[12:13], v[14:15]\nv_pk_add_f32 v[8:9], v[8:9], v[12:13]")
        I("v_cvt_pk_bf16_f32 v8, v8, v9\nv_and_b32 v9, 0xffff0000, v8\nv_lshlrev_b32 v8, 16, v8\nv_pk_add_f32 v[8:9], v[8:9], v[16:17]\nv_cvt_pk_bf16_f32 v8, v8, v9")
        if L < 3: I(f"ds_write_b32 v7, v8 offset:{640 * b}")
        else:
            I(f"s_cmp_lg_u32 s{sWave}, 0"); a.skip_begin("s_cbranch_scc1")
            I(f"s_mul_i32 s{sT0}, s{sS}, 160\nv_lshlrev_b32 v7, 2, v0")
            I(f"buffer_store_dword v8, v7, {s4(XO)}, s{sT0} offen offset:{1280 * b}")
            a.skip_end()
        I("s_mov_b64 exec, -1")
    def fin_pre(self, b):
        a = self.a; I = a.I; inst = 4 * b + 3
        self.yg_addr(b, 3) if False else None
        for j in range(4): I(f"v_and_b32 v{16 + j}, 0x3f803f80, v{vMask + j}")
        I(f"v_and_b32 v9, 15, v0\nv_lshlrev_b32 v9, 4, v9\nv_bfe_u32 v10, v0, 4, 1\nv_lshl_add_u32 v9, v10, 3, v9\nv_add_u32 v10, {XROW + 640 * b}, v9\nds_read_b64 v[10:11], v10")
        for k in range(8):
            if h3(inst)[1] is None:
                if k == 0: I(f"s_and_b32 s0, s40, 1\ns_lshl_b32 s0, s0, 13\ns_sub_u32 s12, s{sX3g0}, s0\ns_add_u32 s12, s12, {h3(inst)[2]}")
                I(f"s_bfe_u32 s0, s{40 + (k >> 2)}, {0x10000 + 8 * (k & 3):#x}\ns_lshl_b32 s0, s0, 13\ns_add_u32 s0, s0, {(k & 3) * 4 * H3_H}\ns_add_u32 s{4 + k}, s12, s0")
            else: I(f"s_add_u32 s{4 + k}, s{sH3grp}, {h3(inst)[2] + k * 4 * H3_H}")
        I(f"v_lshlrev_b32 v12, 16, v10\nv_and_b32 v13, 0xffff0000, v10\nv_lshlrev_b32 v14, 16, v11\nv_and_b32 v15, 0xffff0000, v11\ns_mul_i32 s{sT0}, s{sS}, 160")
    def fin(self, b):
        a = self.a; I = a.I; a.comment(f"---- row {b}: gather output partials, residual, store")
        loads = [f"buffer_load_dwordx4 {v4(60 + 4 * k)}, v54, {s4(WS)}, s{4 + k} offen sc1" for k in range(8)]
        self.gather(loads, range(60, 92), 7, emask=sp(mN10), vmask=True,
                    spec=[f"v_mfma_f32_16x16x32_bf16 v[20:23], v[16:19], {v4(60 + 4 * k)}, {'v[20:23]' if k else 0}" for k in range(8)])
        I(f"s_mov_b32 exec_lo, s{mN10}\ns_mov_b32 exec_hi, 0")
        I("v_cvt_pk_bf16_f32 v20, v20, v21\nv_cvt_pk_bf16_f32 v22, v22, v23\nv_and_b32 v21, 0xffff0000, v20\nv_lshlrev_b32 v20, 16, v20\nv_and_b32 v23, 0xffff0000, v22\nv_lshlrev_b32 v22, 16, v22")
        I("v_pk_add_f32 v[20:21], v[20:21], v[12:13]\nv_pk_add_f32 v[22:23], v[22:23], v[14:15]\nv_cvt_pk_bf16_f32 v20, v20, v21\nv_cvt_pk_bf16_f32 v21, v22, v23")
        I(f"buffer_store_dwordx2 v[20:21], v9, {s4(XO)}, s{sT0} offen offset:{1280 * b}\ns_mov_b64 exec, -1")
    def touch(self, b, L, lvl=1):
        if self.c.get("touch", 4) == 4 or self.c.get("touch") < lvl: return
        a = self.a; I = a.I; m = self.c.get("tm", 3)
        I(f"s_mov_b32 m0, {JUNK}\ns_mov_b64 exec, 3")
        if m & 1:
            I(f"v_mov_b32 v31, s{sPub2}\ns_add_u32 s{sT1}, s{h2(4 * b + L)[0]}, {h2(4 * b + L)[2]}")
            I(f"buffer_load_dword v31, {s4(WS)}, s{sT1} offen sc1 lds")
        if L < 3 and m & 2:
            I(f"s_lshl_b32 s{sT0}, s{sWave}, 8\nv_lshl_add_u32 v31, v0, 7, s{sT0}\ns_add_u32 s{sT1}, s{h1(4 * b + L + 1)[0]}, {h1(4 * b + L + 1)[2]}")
            I(f"buffer_load_dword v31, {s4(WS)}, s{sT1} offen sc1 lds")
        I("s_mov_b64 exec, -1")
    def touch_fill(self, b, L):
        I = self.a.I; m = self.c.get("tm", 3)
        if m & 1:
            I(f"s_add_u32 s{sT1}, s{h2(4 * b + L)[0]}, {h2(4 * b + L)[2]}\nv_mov_b32 v54, s{sPub2}")
            I(f"s_mov_b32 m0, {JUNK} | buffer_load_dword v54, {s4(WS)}, s{sT1} offen sc1 lds")
        if L < 3 and m & 2:
            I(f"s_lshl_b32 s{sT0}, s{sWave}, 8\nv_and_b32 v54, 1, v0\nv_lshl_add_u32 v54, v54, 7, s{sT0}\ns_add_u32 s{sT1}, s{h1(4 * b + L + 1)[0]}, {h1(4 * b + L + 1)[2]}")
            I(f"s_mov_b32 m0, {JUNK} | buffer_load_dword v54, {s4(WS)}, s{sT1} offen sc1 lds")
    def chain_idle(self, b, L, burst=(0, 0, 0), sh=(0, 0, 0, 0), pf=(0, 0, 0)):
        a = self.a; U = lambda n: (lambda: self.stream(n, paced=False))
        if self.c.get("skip3", 1):
            a.I(f"s_cmp_eq_u32 s{sWave}, 3"); a.skip_begin("s_cbranch_scc1")
            self.wo(b, L, hoisted=True)
            a.skip_end()
            self.yg_addr()
            self.stream(sh[0] + sh[1], paced=False)
            self.pfreg = 7; self.prefetch(pf[0])
        else:
            self.wo(b, L, between=U(burst[0]), hoisted=True, hoist=True, after=U(sh[0]))
            self.stream(sh[1], paced=False)
        self.stamp(f"wo{b}{L}")
        self.fs("pub3")
        late = self.c.get("late", 2)
        if L == 3:
            a.I(f"s_cmp_eq_u32 s{sH}, 1\ns_cbranch_scc1 L_out0")
            a.I(f"s_cmp_lg_u32 s{sH}, 0\ns_cbranch_scc1 L_fin")
            self.page()
            if self.c.get("fin1", 1):
                if not self.c.get("finl", 1): self.fin_pre(1)
                a.wait_tag("pub"); a.barrier()
                a.I(f"s_cmp_lg_u32 s{sWave}, 0\ns_cbranch_scc1 L_fin")
                if self.c.get("finl", 1): self.fin_pre(1)
                self.fin(1)
                return
        dfr = self.deferred; self.deferred = []
        pub = a.vm.last_tag("pub")
        for jobs in dfr: self.clear_prep(jobs); self.clear_issue("clr3")
        if L < 3 and not late: self.wq_pre((L + 1) & 1)
        if late < 2: self.yg_pre(b, L)
        a.wait_tag("pub"); a.barrier()
        if L < 3 and late: self.wq_pre((L + 1) & 1)
        if late >= 2: self.yg_pre(b, L)
        self.yg(b, L, between=lambda: (self.stream(burst[1], paced=False), self.page() if L < 3 else None), hoisted=True, after=lambda: (self.stream(sh[2], paced=False), self.prefetch(pf[1])), pre_bar=(lambda: a.wait_tag("clr3")) if dfr else None)
        self.fs("xrow")
        if L == 3: return
        self.wq_main(b, L + 1, hoisted=True, hoist=True)
        self.fs("pub1")
        self.stamp(f"wq{b}{L+1}")
        self.qg(b, L + 1, between=U(burst[2]), hoisted=True, tail=True, after=lambda: (self.touch(b, L + 1) if self.c.get("touch", 4) != 3 or (b, L) == (0, 1) else None, self.stream(sh[3], paced=False), self.prefetch(pf[2])))
        self.stamp(f"qg{b}{L+1}")
    def build(self):
        a = self.a; c = self.c; W = self.W; WE = c.get("WE", W); HE = c.get("HE", 4); PG = c.get("PG", 0)
        self.off_val = None
        for x in c.get("order", "kwv"):
            if x == "w": self.add_w("wqA", pWQA, "q", 0)
            else:
                for g in range(4): self.add_kv("KA" if x == "k" else "VA", 0, g)
        self.add_w("woA", pWOA, "o", 0); self.add_w("wqB", pWQB, "q", 1)
        for g in range(16): self.add_kv("KB", 0, g)
        wl = c.get("wolate", 0)
        if not wl: self.add_w("woB", pWOB, "o", 1)
        for g in range(16): self.add_kv("VB", 0, g)
        if wl: self.add_w("woB", pWOB, "o", 1, late=True)
        p1 = len(self.items)
        for g in range(4): self.add_kv("KA", 1, g)
        for g in range(4): self.add_kv("VA", 1, g)
        p2 = len(self.items)
        for g in range(16): self.add_kv("KB", 1, g)
        for g in range(16): self.add_kv("VB", 1, g)
        st = self.stream_to; S = lambda n: (lambda: self.stream(n))
        self.limit = p1; a.nobar = c.get('nobar', 0)
        self.setup()
        if c.get("inject", 1): a.inject = self.injector
        if c.get("streamonly"):
            self.limit = 10**9; self.npage = 0; self.hot = []; self.inl = False; self.boost = 0; a.inject = None
            for upto in c["streamonly"]:
                if isinstance(upto, tuple): st(upto[0], W=upto[1])
                else: st(upto)
                self.stamp("end")
            a.wait(vm=0); self.stamp("end")
            return self.finish()
        P = c.get("P1", dict(arr=30, hs=44, qg0=44, wo=80, yg=106, qg1=130))
        for _ in range(c.get("pad", 0)): a.I("s_nop 0")
        a.raw("L_pf0:")
        self.stamp("setup")
        a.wait_tag("clr"); a.barrier()
        self.arrive()
        st(max(P["arr"], self.index_after("wqA") + 4))
        self.stamp("arr")
        a.wait_tag("wqA"); a.barrier()
        self.wq_pre(0); self.wq_main(0, 0, local_ok=False)
        self.stream(c.get("wqgap", 4))
        self.wq_pre(0); self.wq_main(1, 0, local_ok=False)
        self.stamp("wq")
        st(P["hs"]); self.handshake(S(W))
        for r, m, base in ((sCTw, 256, CT), (sATTw, 1536, ATT), (sSTATw, 4, STAT), (sCOMBw, 256, ATT)):
            a.I(f"s_mul_i32 s{r}, s{sWave}, {m}\ns_add_u32 s{r}, s{r}, {base}")
        P_ = lambda i: [("P", i)]
        now = [[P_(1), [("C", 1)], P_(2), [("2", 1), ("3", 1)]], [[("3", 2), ("3", 3)], [("3", 4), ("3", 5)], [("3", 6), ("3", 7)], [("3", 6), ("3", 7)]]]
        self.deferred = [[P_(3), P_(5), P_(6), P_(7)], [[("2", 2), ("2", 3)], [("2", 4), ("2", 5)], [("2", 6), ("2", 7)], [("2", 6), ("2", 7)]]]
        if not c.get("defer", 1): now += self.deferred; self.deferred = []
        for jobs in now:
            self.clear_prep(jobs); self.clear_issue("clr2"); self.stream(1)
        self.stamp("hs")
        st(P["qg0"]); self.qg(0, 0, between=S(W))
        self.stamp()
        self.att(0, 0, pre_bar=lambda: (st(self.index_after("woA")), a.wait_tag("woA"), a.wait_tag("clr2")))
        self.stamp()
        self.qg(1, 0, between=S(W))
        self.stamp("qg10")
        st(P["wo"]); self.wo(0, 0, between=S(W))
        self.stamp("wo00")
        st(P["yg"]); self.yg(0, 0, between=S(W), pre_bar=lambda: a.wait_tag("wqB"))
        self.stamp("yg00")
        self.wq_pre(1); self.wq_main(0, 1, hoisted=True)
        self.stream(3, paced=False); self.warm([0, 1, 2, "R"])
        if c.get("cpf") == 2: self.code_prefetch("L_pf1", "L_pf2")
        st(P["qg1"]); self.touch(0, 1, 2) if c.get('touch') == 2 else None; self.qg(0, 1, tail=True, between=lambda: self.stream(min(WE, p1 - self.pos), W=WE))
        a.raw("L_pf1:")
        self.stamp()
        st_ = 64 << c.get("pfs", 6)
        self.pfq = [(KA, o) for o in range(0, 12288, st_)] + [(VA, o) for o in range(0, 12288, st_)] + [(KB, o) for o in range(0, 49152, st_)]
        self.pfreg = 54
        vb0 = self.index_after(("VB", 0, 0)) - 3
        assert self.pos >= vb0 + 3
        if wl: assert self.pos <= p1 - 8
        self.att(0, 1, hook1=lambda g: self.stream(min(1, p1 - self.pos), W=WE) if g % HE == HE - 1 else None,
                 hook2=lambda i: (st(min(p1, vb0 + 3 * (i + 2) + WE - 3), W=WE), self.page() if i == PG else None, self.prefetch(c.get("pf0", 0)) if i == c.get("pfi", 11) else None), pre_bar=lambda: st(p1, W=WE) if wl else a.wait_tag("woB"), hoist=True, qaddr=True)
        if wl: a.wait_tag("woB"); a.barrier()
        assert self.pos == p1
        a.inject = None; self.limit = p2
        self.stamp("p1end")
        self.chain_idle(0, 1, pf=c.get("pf1", (0, 0, 0)))
        bu = c.get("burst", (6, 0, 0, 0)); sh = c.get("sh", (0, 9, 3, 6))
        self.att(0, 2, hookm=lambda: self.stream(bu[0], paced=False), hoist=True, qaddr=True)
        self.stamp("att02")
        self.pfq = [x for x in self.pfq if x[0] == KB]
        self.chain_idle(0, 2, burst=bu[1:], sh=sh, pf=c.get("pf2", (0, 0, 0)))
        self.stamp("p2beg")
        self.limit = len(self.items)
        n0 = c.get("n0", 9); h2 = c.get("h2", 2); q0 = self.pos
        def hook03(g):
            self.stream(max(0, min(3, q0 + n0 - self.pos, p2 + 3 * g + 3 - self.pos)), paced=False)
        self.att(0, 3, hook1=hook03, hook2=lambda i: self.stream(1, paced=False) if i % h2 == h2 - 1 else None, qaddr=True)
        self.stamp("att03")
        a.raw("L_pf2:")
        P = c.get("P2", dict(att=8, wo=34, yg=62, qg=80))
        if c.get("inject", 1): a.inject = self.injector
        st(p2 + P.get("att", 0))
        self.att(1, 0, guard=True, hook2=lambda i: self.stream(2))
        self.stamp("att10")
        st(p2 + P["wo"]); self.stamp("a"); self.wo(1, 0, between=S(W)); self.stamp("wo10"); self.wo(0, 3, between=S(W)); self.stamp("wo03")
        st(p2 + P["yg"]); self.stamp("b"); self.yg(1, 0, between=S(W)); self.stamp("yg10")
        self.wq_pre(1); self.wq_main(1, 1, hoisted=True)
        self.stream(3, paced=False); self.warm([3, 4, 5, 6])
        if c.get("cpf") == 2: self.code_prefetch("L_pf3", "L_pf9")
        st(p2 + P["qg"]); self.stamp("c"); self.touch(1, 1, 2) if c.get('touch') == 2 else None; self.qg(1, 1, tail=True, between=lambda: self.stream(WE, W=WE))
        a.raw("L_pf3:")
        self.stamp("qg11")
        vb1 = p2 + 48
        self.att(1, 1, hook1=lambda g: self.stream(1, W=WE) if g % HE == HE - 1 else None,
                 hook2=lambda i: (st(min(len(self.items), vb1 + 3 * (i + 2) + WE - 3), W=WE), self.page() if i == PG else None), hoist=True, qaddr=True)
        assert self.pos == len(self.items)
        a.inject = None
        self.stamp("p2end")
        self.chain_idle(1, 1)
        self.fine_on = c.get("fine") == 1
        self.fs("q_ready")
        self.att(1, 2, hoist=True, qaddr=True)
        self.stamp("att12")
        self.chain_idle(1, 2)
        self.fs("q_ready")
        if c.get("fine") == 2: self.fine_on = True; self.fs("q_ready")
        self.att(1, 3, hoist=True, qaddr=True)
        self.stamp("att13")
        self.chain_idle(1, 3)
        a.I("s_branch L_fin"); a.raw("L_out0:"); a.I("s_nop 7"); a.wait(vm=0, lg=0)
        if c.get("fin1", 1):
            a.I(f"s_cmp_lg_u32 s{sWave}, 0\ns_cbranch_scc1 L_fin")
            self.fin_pre(0); self.fin(0)
        else: self.yg(0, 3)
        a.raw("L_fin:"); a.I("s_nop 7")
        if c.get("hold"):
            a.raw("L_hold:"); a.I(f"s_memrealtime s[38:39]"); a.wait(lg=0)
            a.I(f"s_sub_u32 s38, s38, s{98 if c.get('holdat') else sST}\ns_cmp_lt_u32 s38, {c['hold']}\ns_cbranch_scc1 L_hold")
        self.fs("end")
        self.stamp("end")
        return self.finish()
    def finish(self):
        a = self.a; c = self.c
        if c.get("fine"):
            a.wait(lg=0)
            for i in range(self.nfine): a.I(f"v_writelane_b32 v{vStamp}, s{FS[i]}, {i}")
            print("fine stamps:", self.fnames)
        if c.get("diag"):
            a.I("s_sleep 100")
            a.I(f"v_writelane_b32 v{vStamp}, s{sRetry}, 62\nv_writelane_b32 v{vStamp}, s{sLocal}, 63")
            a.I(f"s_lshl_b32 s{sT0}, s{sWG}, 10\ns_lshl_b32 s{sT1}, s{sWave}, 8\ns_add_u32 s{sT0}, s{sT0}, s{sT1}\ns_add_u32 s{sT0}, s{sT0}, {DIAG}\nv_lshlrev_b32 v7, 2, v0")
            a.I(f"buffer_store_dword v{vStamp}, v7, {s4(WS)}, s{sT0} offen")
        if c.get("diag") and not c.get("fine"): print("stamps:", " ".join(self.snames))
        a.raw("L_end:"); a.raw("  s_endpgm")
        if c.get("pages", 1): self.hot = [f".p2align {c.get('hotal', 12)}\nLstR:\n  s_setpc_b64 {sp(sRet)}"] + self.hot
        a.tail = self.hot + a.tail
        a.tail.append("L_pf9:\n  s_endpgm")
        body = a.text()
        return (HEAD + f"; @launch grid=(256,1,1) block=(256,1,1) lds={LDS_BYTES}\n" + DOC
                + f'.amdgcn_target "amdgcn-amd-amdhsa--gfx950"\n.text\n.globl {NAME}\n.p2align 8\n.type {NAME},@function\n{NAME}:\n'
                + body + f'.section .rodata,"a"\n.p2align 6\n.amdhsa_kernel {NAME}\n  .amdhsa_next_free_vgpr 512\n  .amdhsa_next_free_sgpr 102\n'
                + "  .amdhsa_accum_offset 256\n  .amdhsa_group_segment_fixed_size 0\n  .amdhsa_kernarg_size 104\n  .amdhsa_user_sgpr_count 2\n"
                + "  .amdhsa_user_sgpr_kernarg_segment_ptr 1\n  .amdhsa_system_sgpr_workgroup_id_x 1\n.end_amdhsa_kernel\n")

def generate(cfg):
    global COMPACT1; COMPACT1 = cfg.get('c1', 0)
    global H1_I, H1_H, H1_S, H2, H2_I, H2_H, H2_S, H3, H3_I, H3_S, H3_H
    H1_S = cfg.get("H1S", 2048); H1_H = cfg.get("H1H", 8 * H1_S); H1_I = 32 * H1_H
    H2_S = cfg.get("H2S", 384); H2_H = cfg.get("H2H", 8 * H2_S if H2_S != 384 else 4096); H2_I = 32 * H2_H; H2 = cfg.get("H2B", 8 * H1_I); assert H2 >= 8 * H1_I
    H3_H = cfg.get("H3H", 192); H3_S = cfg.get("H3S", 32 * H3_H); H3_I = cfg.get("H3I", max(8 * H3_S, 32 * H3_H)); H3 = cfg.get("H3B", H2 + 8 * H2_I); assert H3 >= H2 + 8 * H2_I
    global USE_HOT; USE_HOT = cfg.get("hot", 0)
    assert H3 + 8 * H3_I <= (6 << 20) and not (USE_HOT and COMPACT1) and H3_H <= (192 if USE_HOT == 3 else 256)
    return Gen(cfg).build()
if __name__ == "__main__":
    cfg = eval(sys.argv[2]) if len(sys.argv) > 2 else {}
    open(sys.argv[1], "w").write(generate(cfg))
```

```python
import sys, math
from dsl import Asm

NAME = "interleave_layers__sliding_block_cached__gqa_block_cached__decode_kernel"
HEAD = open("interleave_layers__sliding_block_cached__gqa_block_cached__decode.s.ref").read().split("; Override")[0]

KV_BYTES = 2 * 32 * 4096 * 384
BSTR = 32 * 4096 * 384
HSTR = 4096 * 384
W_BYTES = 640 * 6144 * 2
WS_BYTES = 434115584
H1_I, H1_H, H1_S = 524288, 16384, 2048
H2 = 8 * H1_I; H2_I, H2_H, H2_S = 131072, 4096, 512
H3 = H2 + 8 * H2_I; H3_I, H3_S, H3_H = 65536, 8192, 256
DIAG = 64 << 20
WQ = (0, 61440); WO = (30720, 92160)
VS = 122880
EX = 147456
ATT = EX; STAT = EX + 6144; Y = EX + 6208; YSZ = 1280; XROW = Y + 2 * YSZ; ONES = XROW + 1280; QB = ONES + 160; CT = QB + 768
JUNK = CT + 2048
LDS_BYTES = JUNK + 256
assert LDS_BYTES <= 163840
sWG, sWave = 2, 3
KA, VA, KB, VB, WS, WT, XO = 4, 8, 12, 16, 20, 24, 28
pX, pKA, pVA, pWQA, pWOA, pKB, pVB, pWQB, pWOB, pOUT, pDBG, pWS = 32, 34, 36, 38, 40, 44, 46, 48, 50, 52, 54, 56
sH, sS, sLocal, sOff, sRetry, sT0, sT1, sT2 = 58, 59, 60, 61, 62, 63, 64, 65
sH1own, sH1grp, sH2own, sH2grp, sH3own, sH3grp, sOffG, sOffP = 66, 67, 68, 69, 70, 71, 72, 73
mODD, mHI8, mHI32, mWOST, mRG1, mRG2, mRG3, m60 = 74, 76, 78, 80, 82, 84, 86, 88
sXcc, sWqRow, sWoRow, sLdsW, sLdsVS = 90, 91, 92, 93, 94
sST = 0; m40 = 98; mBIT1 = 100; mW3 = 42; mN10 = 32; sW2 = 95; sOffG2 = 35; sClr = 0; sM = 34; sOffW = 76; sRet = 78; sX1own, sX1grp, sX2own, sX2grp, sX3own, sX3g0, sX3g1 = 77, 98, 99, 52, 53, 96, 97; sPub2 = 44; sH1gw = 96; sXROWw, sYw, sQw, sCTw, sATTw, sSTATw, sCOMBw = 45, 56, 57, 38, 39, 54, 55; sH1c = 77; mQ13 = 98; mPub1 = 52; mPub2 = 46; mL63 = 36
FS = [50, 24, 26, 88, 90, 92]
def sp(n): return f"s[{n}:{n+1}]"
def s4(n): return f"s[{n}:{n+3}]"
def v2(n): return f"v[{n}:{n+1}]"
def v4(n): return f"v[{n}:{n+3}]"
vLane, vKoff, vVoff, vMask = 0, 1, 2, 3
vQ, vACC, vU = 12, 24, 36
vStamp = 55
QUADS = [f"a[{i}:{i+3}]" for i in range(0, 256, 4)] + [f"v[{i}:{i+3}]" for i in range(56, 256, 4)]
SLOT = {}
_names = [("KA", i) for i in range(4)] + [("VA", 0), ("VA", 1)] + [("KB", i) for i in range(16)] + [("VB", i) for i in range(16)]
for i, n in enumerate(_names): SLOT[n] = QUADS[3 * i:3 * i + 3]
assert SLOT[("VB", 15)][2] == "v[252:255]"
vWq0, vWq1, vWo = 252, 253, 254
SCALE = 192 ** -0.5 * math.log2(math.e)
import struct
def f32(x): return "0x%08x" % struct.unpack("<I", struct.pack("<f", x))[0]

DOC = "; Four decode layers (A, B, A, B) in one persistent launch, one workgroup per CU (4 waves x 512 registers, 157 KiB LDS).\n;  workgroup w: head h = 4*(w&7) + ((w>>3)&3), slice s = w>>5. It owns 1/8 of head h's cache positions for both batch rows,\n;  Speed only: code runs in 4 KiB pages entered under a wait (the instruction prefetch stops at page ends; a return stub at\n"

HOT1 = {2: 0, 3: 1, 6: 2, 7: 3}; HOT2 = {1: 0, 2: 1, 5: 2, 6: 3, 7: 4}
X2 = 1 << 20; X3 = X2 + 5 * 131072; XP = X3 + 5 * 65536
USE_HOT = True
def h1(inst): return (sX1own, sX1grp, HOT1[inst] * 262144, 1024) if USE_HOT and inst in HOT1 else (sH1own, sH1grp, inst * H1_I, H1_S)
def h2(inst): return (sX2own, sX2grp, HOT2[inst] * 131072) if USE_HOT and inst in HOT2 else (sH2own, sH2grp, inst * H2_I)
def h3(inst): return (sX3own, None, HOT2[inst] * 65536) if USE_HOT and inst in HOT2 else (sH3own, sH3grp, inst * H3_I)
def c1(inst): return COMPACT1 and inst >= 2

class Gen:
    def __init__(self, cfg):
        self.c = cfg; self.a = Asm(); self.items = []; self.pos = 0; self.nstamp = 0
        self.W = cfg.get("W", 9); self.limit = 10**9; self.npage = 0; self.hot = []; self.inl = False; self.boost = 0; self.last_cyc = 0; self.fine_on = False; self.nfine = 0; self.fnames = []; self.snames = ['start']
    def add_w(self, name, ptr, kind, ty, late=False):
        pol = self.c.get("wpol", "nt")
        def mk(k):
            def f():
                a = self.a
                if k == 0:
                    off = sWqRow if kind == "q" else sWoRow
                    a.I(f"s_add_u32 s{WT}, s{ptr}, s{off}\ns_addc_u32 s{WT+1}, s{ptr+1}, 0\ns_sub_u32 s{WT+2}, {W_BYTES}, s{off}")
                    if late: a.I("v_mul_u32_u24 v54, 26, v0\nv_lshrrev_b32 v54, 8, v54\nv_mul_u32_u24 v54, 1120, v54\nv_lshl_add_u32 v54, v0, 4, v54")
                base = (WQ if kind == "q" else WO)[ty]
                a.I(f"s_add_u32 m0, s{sLdsW}, {base + 960 * k}")
                if kind == "q": so = 5 * (k // 2) * 12288; vr = vWq1 if k & 1 else vWq0
                else: so = 6 * k * 1280; vr = 54 if late else vWo
                a.I(f"s_mov_b32 s{sOff}, {so}\ns_mov_b64 exec, {sp(m60)}")
                a.I(f"buffer_load_dwordx4 v{vr}, {s4(WT)}, s{sOff} offen {pol} lds", tag=name)
                a.I("s_mov_b64 exec, -1")
            return f
        self.items += [(name, mk(k)) for k in range(8)]
    def add_kv(self, name, b, g):
        srd = {"KA": KA, "VA": VA, "KB": KB, "VB": VB}[name]
        isK = name[0] == "K"; vo = vKoff if isK else vVoff; step = 128 if isK else 256
        pol = self.c.get("kvpol", "nt")
        def mk(c):
            def f():
                a = self.a
                if (name, g) in SLOT:
                    rot = self.c.get("rot", 1) and name[1] == "B"
                    if rot and (name, b, g, c) == ("KB", 0, 0, 0):
                        m = self.c.get("rot", 1)
                        if m == 1: a.I(f"s_and_b32 s48, s{sS}, 3\ns_lshl_b32 s49, s{sWave}, 2\ns_or_b32 s48, s48, s49")
                        if m == 2: a.I(f"s_lshl_b32 s48, s{sWave}, 2")
                        if m == 3: a.I(f"s_and_b32 s48, s{sS}, 3\ns_lshl_b32 s48, s48, 2")
                        if m == 4: a.I(f"s_and_b32 s48, s{sWave}, 1\ns_lshl_b32 s48, s48, 3")
                    if c == 0 or self.off_val != (name, b, g):
                        if rot: a.I(f"s_xor_b32 s{sOff}, s48, {g}\ns_mul_i32 s{sOff}, s{sOff}, 3072" + (f"\ns_add_u32 s{sOff}, s{sOff}, {BSTR}" if b else ""))
                        else: a.I(f"s_mov_b32 s{sOff}, {b * BSTR + g * 3072}")
                    self.off_val = (name, b, g)
                    a.I(f"buffer_load_dwordx4 {SLOT[(name, g)][c]}, v{vo}, {s4(srd)}, s{sOff} offen offset:{step * c} {pol}")
                else:
                    self.off_val = None
                    a.I(f"s_add_u32 m0, s{sLdsVS}, {(g - 2) * 3072 + 1024 * c}\ns_mov_b32 s{sOff}, {b * BSTR + g * 3072 + step * c}")
                    a.I(f"buffer_load_dwordx4 v{vo}, {s4(srd)}, s{sOff} offen {pol} lds", tag=("VS", b, g))
            return f
        self.items += [((name, b, g), mk(c)) for c in range(3)]
    def stream(self, n, paced=True, W=None):
        for _ in range(n):
            if self.pos >= len(self.items): return
            assert self.pos < self.limit, (self.pos, self.limit)
            if paced: self.a.pace((W or self.W) + (self.c.get("B", 0) if self.pos < self.boost else 0))
            sv = self.a._in_inject; self.a._in_inject = True
            self.items[self.pos][1](); self.pos += 1; self.last_cyc = self.a.cyc
            if self.c.get("diag") == 3 and self.pos % 5 == 0 and self.pos > 10: self.stamp("pos")
            self.a._in_inject = sv
    def prefetch(self, n):
        a = self.a
        for _ in range(n):
            if not self.pfq: return
            srd, off = self.pfq.pop(0)
            a.I(f"v_lshlrev_b32 v{self.pfreg}, {self.c.get('pfs', 6)}, v0\ns_mov_b32 m0, {JUNK}\ns_mov_b32 s{sOff}, {BSTR + off}")
            a.I(f"buffer_load_dword v{self.pfreg}, {s4(srd)}, s{sOff} offen {self.c.get('pfpol', '')} lds")
            self.off_val = None
    def injector(self):
        a = self.a
        if self.pos < self.limit and a.cyc - self.last_cyc >= self.c.get("T", 330) and a.vm.outstanding() < self.W + self.c.get("XW", 4) + (self.c.get("B", 0) if self.pos < self.boost else 0):
            self.stream(1, paced=False)
    def stream_to(self, upto, **k): self.stream(max(0, upto - self.pos), **k)
    def index_after(self, name):
        return max(i for i, it in enumerate(self.items) if it[0] == name) + 1
    def fs(self, name):
        if not self.fine_on or self.nfine >= len(FS): return
        self.fcount = getattr(self, "fcount", 0) + 1
        if self.fcount <= self.c.get("fskip", 0): return
        self.a.I(f"{'s_memrealtime' if self.c.get('rt') else 's_memtime'} {sp(FS[self.nfine])}"); self.nfine += 1; self.fnames.append(name)
    def page(self):
        if not self.c.get("pages", 1): return
        k = self.npage; self.npage += 1
        self.a.I(f"s_branch Lpg{k}"); self.a.raw(f".p2align 12\nLst{k}:\n  s_setpc_b64 {sp(sRet)}\nLpg{k}:")
    def warm(self, ks):
        if not (self.c.get("pages", 1) and self.c.get("warm", 1)): return
        a = self.a
        a.I(f"s_cmp_lg_u32 s{sWave}, 3"); a.skip_begin("s_cbranch_scc1")
        for k in ks: a.I(f"s_call_b64 {sp(sRet)}, Lst{k}")
        a.skip_end()
    def check_slot(self, name, b, g):
        assert self.index_after((name, b, g)) <= self.pos, ("not issued", name, b, g, self.pos)
        if b == 0: assert self.index_after((name, 1, g)) - 3 >= self.pos, ("overwritten", name, g)
    def stamp(self, name=''):
        if self.c.get("marks"): self.a.raw(f"M_{name}_{len(self.snames)}:")
        if self.c.get("holdat") == name:
            self.a.I("s_memrealtime s[98:99]"); self.a.wait(lg=0)
        self.snames.append(f'{name}@{self.pos}')
        if not self.c.get("diag") or self.c.get("fine"): return
        if self.c["diag"] == 3 and name not in ("pos", "end"): self.snames.pop(); return
        if self.c["diag"] == 2 and name not in self.c.get("only", ("p1end", "p2beg", "p2end", "end")): self.snames.pop(); return
        a = self.a
        a.I(f"s_memrealtime {sp(sST)}"); a.wait(lg=0)
        a.I(f"v_writelane_b32 v{vStamp}, s{sST if not self.c.get('rcount') else sRetry}, {self.nstamp}"); self.nstamp += 1
    def publish(self, text, local_ok, tag="pub", cmp=True):
        a = self.a
        if local_ok and self.c.get("local", True):
            if cmp: a.I(f"s_cmp_lg_u32 s{sLocal}, 0")
            a.either(text.format(pol=""), text.format(pol="sc1"), tag=tag)
        else: a.I(text.format(pol="sc1"), tag=tag); self.boost = self.pos + self.c.get("KB", 14)
    def gather(self, loads, regs, tmp, between=None, emask=None, sleep=None, first=False, spec=(), vmask=False):
        a = self.a
        if first and between: between(); between = None
        if emask: loads = [f"s_mov_b64 exec, {emask}"] + loads + ["s_mov_b64 exec, -1"]
        for t in loads: a.I(t, tag="gat")
        last = len(a.vm.ent) - 1
        if emask or self.c.get("BG"): self.boost = self.pos + self.c.get("KB", 14)
        if between: between()
        self.fs("issued")
        n = a.vm.need(last)
        if n is not None: a.wait(vm=n)
        chk = a.label("Lc"); rt = a.label("Lr")
        a.raw(f"{chk}:"); a.no_inject += 1
        r = list(regs); ops = []
        ops.append(f"v_max3_u32 v{tmp}, v{r[0]}, v{r[1]}, v{r[2]}"); r = r[3:]
        while len(r) >= 2: ops.append(f"v_max3_u32 v{tmp}, v{tmp}, v{r[0]}, v{r[1]}"); r = r[2:]
        if r: ops.append(f"v_max_u32 v{tmp}, v{tmp}, v{r[0]}")
        ops.append(f"v_cmp_eq_u32 vcc, -1, v{tmp}")
        spec = list(spec)
        k = -(-len(ops) // max(1, len(spec)))
        while ops or spec:
            if spec: a.I(spec.pop(0))
            for t in ops[:k]: a.I(t)
            ops = ops[k:]
        if vmask: a.I(f"s_and_b64 vcc, vcc, {emask}")
        self.inl = self.c.get("inl", 0) and not a.inject
        if not (self.c.get("novalid") and a.inject): a.I(f"s_cbranch_vccz {rt}k" if self.inl else f"s_cbranch_vccnz {rt}")
        if self.c.get("narrow", 3) & (2 if emask else 1):
            loads = ["s_mov_b64 exec, vcc"] + [t for t in loads if not t.startswith("s_mov")] + ["s_mov_b64 exec, -1"]
        self.retry_block(rt, chk, loads, sleep); a.no_inject -= 1
        self.fs("valid")
    def lsleep(self): return None if self.a.inject else self.c.get('lsleep', 0)
    def retry_block(self, rt, chk, loads, sleep=None):
        a = self.a
        if sleep is None: sleep = self.c.get("sleep", 0)
        blk = ([f"  s_sleep {sleep}"] if sleep else []) + ["  " + t for t in loads]
        blk += [f"  s_add_u32 s{sRetry}, s{sRetry}, 1", f"  s_cmp_gt_u32 s{sRetry}, {self.c.get('spin', 2000000)}", "  s_cbranch_scc1 L_end",
                "  s_waitcnt vmcnt(0)", f"  s_branch {chk}"]
        if self.inl: a.out += blk + [f"{rt}k:"]
        elif a.inject: a.tail += [f"{rt}:"] + blk
        else: self.hot += [f"{rt}:"] + blk
        self.inl = False
    def setup(self):
        a = self.a; I = a.I
        I(f"s_cmp_ge_u32 s{sWG}, 256\ns_cbranch_scc1 L_end")
        I(f"s_load_dwordx16 s[32:47], s[0:1], 0\ns_load_dwordx8 s[48:55], s[0:1], 64\ns_load_dwordx2 s[56:57], s[0:1], 96")
        if self.c.get("diag") or self.c.get("hold"): I(f"s_memrealtime s[96:97]")
        I(f"v_lshrrev_b32 v8, 6, v0\nv_and_b32 v0, 63, v0\nv_readfirstlane_b32 s{sWave}, v8")
        I(f"s_and_b32 s{sT0}, s{sWG}, 7\ns_lshl_b32 s{sT0}, s{sT0}, 2\ns_lshr_b32 s{sT1}, s{sWG}, 3\ns_and_b32 s{sT1}, s{sT1}, 3\ns_add_u32 s{sH}, s{sT0}, s{sT1}\ns_lshr_b32 s{sS}, s{sWG}, 5")
        I(f"v_mul_u32_u24 v8, 43, v0\nv_lshrrev_b32 v8, 10, v8\nv_mul_u32_u24 v9, 24, v8\nv_sub_u32 v9, v0, v9\nv_mul_u32_u24 v8, 0x3000, v8\nv_lshl_add_u32 v{vWq0}, v9, 4, v8")
        I(f"v_add_u32 v10, 60, v0\nv_mul_u32_u24 v8, 43, v10\nv_lshrrev_b32 v8, 10, v8\nv_mul_u32_u24 v9, 24, v8\nv_sub_u32 v9, v10, v9\nv_mul_u32_u24 v8, 0x3000, v8\nv_lshl_add_u32 v{vWq1}, v9, 4, v8")
        I(f"s_mul_i32 s{sT0}, s{sS}, {80 * 12288}\ns_mul_i32 s{sT1}, s{sWave}, {20 * 12288}\ns_add_u32 s{sT0}, s{sT0}, s{sT1}\ns_mul_i32 s{sT1}, s{sH}, 384\ns_add_u32 s{sWqRow}, s{sT0}, s{sT1}")
        I(f"s_mul_i32 s{sT0}, s{sH}, {192 * 1280}\ns_mul_i32 s{sT1}, s{sWave}, {48 * 1280}\ns_add_u32 s{sT0}, s{sT0}, s{sT1}\ns_mul_i32 s{sT1}, s{sS}, 160\ns_add_u32 s{sWoRow}, s{sT0}, s{sT1}")
        I(f"s_mul_i32 s{sLdsW}, s{sWave}, 7680\ns_mov_b32 s{m60}, -1\ns_mov_b32 s{m60+1}, 0x0fffffff\ns_mov_b32 s{WT+3}, 0x20000\ns_mov_b32 s{sRetry}, 0")
        I(f"v_and_b32 v8, 15, v0\nv_lshrrev_b32 v9, 4, v0")
        I(f"v_lshrrev_b32 v10, 1, v8\nv_mul_u32_u24 v10, 384, v10\nv_and_b32 v11, 1, v8\nv_lshl_add_u32 v11, v9, 1, v11\nv_lshl_add_u32 v{vKoff}, v11, 4, v10")
        I(f"v_mul_u32_u24 v10, 768, v9\nv_lshl_add_u32 v{vVoff}, v8, 4, v10")
        I(f"s_mul_i32 s{sT0}, s{sH}, {HSTR}\ns_mul_i32 s{sT1}, s{sS}, {128 * 384}\ns_add_u32 s{sT1}, s{sT1}, s{sT0}\ns_mul_i32 s{sT2}, s{sWave}, {32 * 384}\ns_add_u32 s{sT1}, s{sT1}, s{sT2}\ns_add_u32 s{sOffG}, s{sT1}, {3072 * 384}")
        I(f"s_mul_i32 s{sT1}, s{sS}, {512 * 384}\ns_add_u32 s{sT1}, s{sT1}, s{sT0}\ns_mul_i32 s{sT2}, s{sWave}, {128 * 384}\ns_add_u32 s{sOffP}, s{sT1}, s{sT2}")
        I(f"s_mul_i32 s{sLdsVS}, s{sWave}, 6144\ns_add_u32 s{sLdsVS}, s{sLdsVS}, {VS}")
        I(f"s_mov_b32 s{XO+2}, 2560\ns_mov_b32 s{XO+3}, 0x20000\ns_mul_i32 s{sT0}, s{sS}, 160\nv_lshlrev_b32 v7, 2, v0\nv_min_u32 v7, 156, v7")
        for srd, o in ((KA, sOffG), (VA, sOffG), (KB, sOffP), (VB, sOffP)): I(f"s_sub_u32 s{srd+2}, {KV_BYTES}, s{o}\ns_mov_b32 s{srd+3}, 0x20000")
        I(f"s_mov_b32 s{WS+2}, {WS_BYTES}\ns_mov_b32 s{WS+3}, 0x20000")
        I(f"s_mul_i32 s{sH1grp}, s{sH}, {H1_H}\ns_mul_i32 s{sT1}, s{sS}, {H1_S}\ns_add_u32 s{sH1own}, s{sH1grp}, s{sT1}" + (f"\ns_mul_i32 s{sT1}, s{sS}, 768\ns_add_u32 s{sH1c}, s{sH1grp}, s{sT1}" if COMPACT1 else ""))
        I(f"s_mul_i32 s{sH2grp}, s{sH}, {H2_H}\ns_add_u32 s{sH2grp}, s{sH2grp}, {H2}\ns_mul_i32 s{sT1}, s{sS}, {H2_S}\ns_add_u32 s{sH2own}, s{sH2grp}, s{sT1}")
        I(f"s_mul_i32 s{sH3grp}, s{sS}, {H3_S}\ns_add_u32 s{sH3grp}, s{sH3grp}, {H3}\ns_mul_i32 s{sT1}, s{sH}, {H3_H}\ns_add_u32 s{sH3own}, s{sH3grp}, s{sT1}")
        self.clear_prep([[("P", 0)], [("C", 0)], [("P", 4)], [("2", 0), ("3", 0)]])
        a.wait(lg=0)
        if self.c.get("diag"): I(f"v_mov_b32 v{vStamp}, 0\nv_writelane_b32 v{vStamp}, s96, 0"); self.nstamp = 1
        def srds(l):
            for srd, p, o in l: I(f"s_add_u32 s{srd}, s{p}, s{o}\ns_addc_u32 s{srd+1}, s{p+1}, 0")
        def small():
            I(f"s_mov_b32 s{WS}, s{pWS}\ns_mov_b32 s{WS+1}, s{pWS+1}\ns_mov_b32 s{XO}, s{pX}\ns_mov_b32 s{XO+1}, s{pX+1}")
            self.clear_issue("clr")
            if USE_HOT == 3: self.probe_store()
            I(f"buffer_load_dword v12, v7, {s4(XO)}, s{sT0} offen\nbuffer_load_dword v13, v7, {s4(XO)}, s{sT0} offen offset:1280")
        n0, n1 = self.c.get("I", (12, 24))
        srds([(KA, pKA, sOffG)])
        self.stream(min(n0, 12), paced=False)
        srds([(VA, pVA, sOffG), (KB, pKB, sOffP), (VB, pVB, sOffP)])
        self.stream_to(n0, paced=False)
        small()
        self.stream_to(n1, paced=False)
        if self.c.get("st0"):
            self.stamp("end")
            n = len(a.vm.ent)
            for k in (1, 3, 6, 9, 12, 15, 18, n): a.wait(vm=n - k); self.stamp("end")
        if self.c.get("cpf") == 1: self.code_prefetch("L_pf0", "L_pf9")
        I(f"v_mul_u32_u24 v10, 26, v0\nv_lshrrev_b32 v10, 8, v10\nv_mul_u32_u24 v11, 10, v10\nv_sub_u32 v11, v0, v11\nv_mul_u32_u24 v10, 1280, v10\nv_lshl_add_u32 v{vWo}, v11, 4, v10")
        I("v_and_b32 v10, 1, v0\nv_cmp_eq_u32 vcc, 1, v10\nv_mov_b32 v11, 0xffff\nv_mov_b32 v20, 0xffff0000\nv_cndmask_b32 v11, v11, v20, vcc\nv_bfe_u32 v10, v0, 1, 2")
        for j in range(4): I(f"v_cmp_eq_u32 vcc, {j}, v10\nv_cndmask_b32 v{vMask+j}, 0, v11, vcc")
        for m, lo, hi in ((mODD, 0xaaaaaaaa, 0xaaaaaaaa), (mRG1, 0xffff0000, 0), (mRG2, 0, 0xffff), (mRG3, 0, 0xffff0000), (mWOST, 0x5555, 0x5555), (mN10, 0x03ff03ff, 0x03ff03ff), (mBIT1, 0xcccccccc, 0xcccccccc), (mL63, 0, 0x80000000), (m40, 0xffffffff, 0xff)) + (((mQ13, 0x1fff1fff, 0x1fff1fff),) if COMPACT1 else ()):
            I(f"s_mov_b32 s{m}, {lo:#x}\ns_mov_b32 s{m+1}, {hi:#x}")
        I(f"s_cmp_eq_u32 s{sWave}, 3\ns_cselect_b64 {sp(mW3)}, -1, 0\ns_min_u32 s{sW2}, s{sWave}, 2\ns_lshl_b32 s{sW2}, s{sW2}, 6")
        if H2_S == 384:
            I(f"s_mul_i32 s{sT0}, s{sS}, -368\ns_add_u32 s{sT0}, s{sT0}, 3072\ns_lshl_b32 s{sPub2}, s{sWave}, 7\ns_cmp_eq_u32 s{sWave}, 3\ns_cselect_b32 s{sPub2}, s{sT0}, s{sPub2}")
            I(f"s_mov_b32 s{mPub2}, 0x55555555\ns_cselect_b32 s{mPub2+1}, 0, s{mPub2}\ns_cselect_b32 s{mPub2}, 0x55, s{mPub2}")
        if self.c.get("nost3"): I(f"s_cmp_lt_u32 s{sWave}, 3\ns_cselect_b32 s{mWOST+1}, 0x5555, 0\ns_cselect_b32 s{mWOST}, 0x5555, 0")
        if H3_H == 160: I(f"s_cmp_lt_u32 s{sWave}, 2\ns_cselect_b32 s{mWOST+1}, 0x5555, 0")
        I(f"s_getreg_b32 s{sXcc}, hwreg(HW_REG_XCC_ID, 0, 4)\ns_add_u32 s{sXcc}, s{sXcc}, 1")
        for r, m, base in ((sXROWw, 160, XROW), (sYw, 320, Y), (sQw, 96, QB)): I(f"s_mul_i32 s{r}, s{sWave}, {m}\ns_add_u32 s{r}, s{r}, {base}")
        I(f"v_add_u32 v10, s{sXROWw}, v7\nv_add_u32 v11, {ONES}, v7\nv_mov_b32 v20, 0x3f803f80")
        I("ds_write_b32 v11, v20\nds_write_b32 v10, v12\nds_write_b32 v10, v13 offset:640")
        I(f"s_mov_b32 s{XO}, s{pOUT}\ns_mov_b32 s{XO+1}, s{pOUT+1}")
        if COMPACT1: I(f"s_mov_b32 s{mPub1}, -1\ns_cmp_eq_u32 s{sWave}, 0\ns_cselect_b32 s{mPub1+1}, 0xfffff, 0\ns_or_b32 s{mPub1+1}, s{mPub1+1}, 0xffff")
    def clear_prep(self, jobs):
        I = self.a.I
        I("v_mov_b32 v16, -1\nv_mov_b32 v17, -1\nv_mov_b32 v18, -1\nv_mov_b32 v19, -1\nv_lshlrev_b32 v14, 4, v0")
        def seg(k, inst, hi):
            if k == "P" and c1(inst): return sH1c, inst * H1_I, (0x1ffff if hi else -1)
            if k in "PC": return h1(inst)[0], h1(inst)[2] + (1024 if k == "C" else 0), -1
            if k == "2": return h2(inst)[0], h2(inst)[2] - 512 * hi, (0x1ffffff if H2_S == 384 else -1)
            return h3(inst)[0], h3(inst)[2] - 512 * hi, (0x3ff if H3_H == 160 else 0xffff if self.c.get('clr256') else 0xfff)
        for w, job in enumerate(jobs):
            lo = seg(*job[0], 0); hi = seg(*job[-1], 1)
            for (r, o, m), dst, md in ((lo, sT1, sClr), (hi, sT2, sClr + 1)):
                if w == 0: I(f"s_add_u32 s{dst}, s{r}, {o & 0xffffffff}\ns_mov_b32 s{md}, {m}")
                else: I(f"s_add_u32 s{sOff}, s{r}, {o & 0xffffffff}\ns_cmp_eq_u32 s{sWave}, {w}\ns_cselect_b32 s{dst}, s{sOff}, s{dst}\ns_cselect_b32 s{md}, {m}, s{md}")
        self.off_val = None
        I(f"v_mov_b32 v15, s{sT1}\nv_mov_b32 v20, s{sT2}\nv_cmp_lt_u32 vcc, 31, v0\nv_cndmask_b32 v15, v15, v20, vcc\nv_add_u32 v15, v15, v14")
        if any(k == "P" and c1(i) for job in jobs for k, i in job):
            I(f"s_mov_b32 s{sT1}, 0\ns_mov_b32 s{sT2}, 0")
            for w, job in enumerate(jobs):
                if job[0][0] == "P" and c1(job[0][1]): I(f"s_cmp_eq_u32 s{sWave}, {w}\ns_cselect_b32 s{sT2}, 0x10000, s{sT2}")
            self.off_val = None; self.a.no_inject += 1
            I(f"s_mul_i32 s{sOff}, s{sS}, -752\ns_add_u32 s{sOff}, s{sOff}, {6144 - 768}\nv_add_u32 v20, s{sOff}, v15\nv_cndmask_b32 v15, v15, v20, {sp(sT1)}")
            self.a.no_inject -= 1
        if H2_S == 384 and any(k == "2" for job in jobs for k, _ in job):
            I(f"s_mov_b32 s{sT1}, 0\ns_mov_b32 s{sT2}, 0")
            for w, job in enumerate(jobs):
                for (k, _), dst in ((job[0], sT1), (job[-1], sT2)):
                    if k == "2": I(f"s_cmp_eq_u32 s{sWave}, {w}\ns_cselect_b32 s{dst}, 0x1000000, s{dst}")
            self.off_val = None; self.a.no_inject += 1
            I(f"s_mul_i32 s{sOff}, s{sS}, -368\ns_add_u32 s{sOff}, s{sOff}, {3072 - 384}\nv_add_u32 v20, s{sOff}, v15\nv_cndmask_b32 v15, v15, v20, {sp(sT1)}")
            self.a.no_inject -= 1
    def clear_issue(self, tag, local_ok=False):
        I = self.a.I
        I(f"s_mov_b64 exec, {sp(sClr)}")
        self.publish(f"buffer_store_dwordx4 v[16:19], v15, {s4(WS)}, 0 offen {{pol}}", local_ok, tag=tag)
        I("s_mov_b64 exec, -1")
    def tlb_touch(self):
        a = self.a; I = a.I
        ent = []
        for p, o, span in ((pWQA, sWqRow, 20 * 12288), (pKA, sOffG, 12288), (pVA, sOffG, 12288), (pWOA, sWoRow, 48 * 1280), (pWQB, sWqRow, 20 * 12288),
                           (pKB, sOffP, 49152), (pWOB, sWoRow, 48 * 1280), (pVB, sOffP, 49152)):
            for b in range(2 if o in (sOffG, sOffP) else 1): ent.append((p, o, b * BSTR))
        if self.c["tlb"] > 1:
            ent += [(pWS, None, 0), (pWS, None, 2 << 20), (pWS, None, 4 << 20), (pDBG, None, 0), (pOUT, None, 0)]
        for i, (p, o, c) in enumerate(ent):
            if o is None: I(f"s_add_u32 s{sT1}, s{p}, {c}\ns_addc_u32 s{sT2}, s{p+1}, 0")
            else:
                I(f"s_add_u32 s{sT1}, s{p}, s{o}\ns_addc_u32 s{sT2}, s{p+1}, 0")
                if c: I(f"s_add_u32 s{sT1}, s{sT1}, {c}\ns_addc_u32 s{sT2}, s{sT2}, 0")
            if i == 0: I(f"v_mov_b32 v14, s{sT1}\nv_mov_b32 v15, s{sT2}")
            else: I(f"v_writelane_b32 v14, s{sT1}, {i}\nv_writelane_b32 v15, s{sT2}, {i}")
        I(f"s_mov_b64 exec, {(1 << len(ent)) - 1}\nglobal_load_dword v250, v[14:15], off nt\ns_mov_b64 exec, -1")
    def code_prefetch(self, lo, hi):
        a = self.a; I = a.I
        l = a.label("Lp")
        I(f"s_getpc_b64 {sp(sT1)}"); a.raw(f"{l}:")
        I(f"s_add_u32 s{sT1}, s{sT1}, {lo}-{l}\ns_addc_u32 s{sT2}, s{sT2}, 0")
        I(f"s_lshr_b32 s{sT0}, s{sWG}, 3\ns_lshl_b32 s{sT0}, s{sT0}, 2\ns_add_u32 s{sT0}, s{sT0}, s{sWave}\ns_lshl_b32 s{sT0}, s{sT0}, 13")
        I(f"v_lshl_add_u32 v30, v0, 7, s{sT0}\nv_cmp_gt_u32 vcc, {hi}-{lo}, v30\ns_mov_b32 m0, {JUNK}")
        I("s_and_b64 exec, vcc, -1"); a.skip_begin("s_cbranch_execz")
        I(f"global_load_lds_dword v30, {sp(sT1)}")
        a.skip_end()
        I("s_mov_b64 exec, -1")
    def probe_store(self):
        a = self.a; I = a.I
        I(f"s_add_u32 s{sX1own}, s{WS}, {(8 << 20) - 1}\ns_and_b32 s{sX1own}, s{sX1own}, 0xffe00000\ns_sub_u32 s{sX1own}, s{sX1own}, s{WS}")
        I(f"s_lshr_b32 s{sT1}, s{sWG}, 4\ns_lshl_b32 s{sT1}, s{sT1}, 14\ns_bfe_u32 s{sT2}, s{sWG}, 0x10003\ns_lshl_b32 s{sT2}, s{sT2}, 12\ns_add_u32 s{sT1}, s{sT1}, s{sT2}")
        I(f"s_and_b32 s{sT2}, s{sWG}, 7\ns_lshl_b32 s{sT2}, s{sT2}, 7\ns_add_u32 s{sT1}, s{sT1}, s{sT2}\ns_add_u32 s{sT1}, s{sT1}, {X3 + 3072}\ns_add_u32 s{sX3g1}, s{sX1own}, s{sT1}")
        I(f"s_lshr_b32 s{sT1}, s{sWG}, 6\ns_lshl_b32 s{sT1}, s{sT1}, 14\ns_and_b32 s{sT2}, s{sWG}, 63\ns_lshl_b32 s{sT2}, s{sT2}, 7\ns_add_u32 s{sT1}, s{sT1}, s{sT2}\ns_add_u32 s{sT1}, s{sT1}, {XP}\ns_add_u32 s{sX1own}, s{sX1own}, s{sT1}")
        I(f"s_cmp_ge_u32 s{sWG}, {self.c.get('NV', 32)}\ns_cselect_b32 s{sT1}, 1, s{sWave}\ns_cmp_lg_u32 s{sT1}, 0"); a.skip_begin("s_cbranch_scc1")
        I(f"v_and_b32 v15, 8, v0\nv_lshlrev_b32 v15, 10, v15\nv_add_u32 v15, s{sX1own}, v15\nv_mov_b32 v20, s{sX3g1}\nv_cmp_lt_u32 vcc, 15, v0\nv_cndmask_b32 v15, v15, v20, vcc")
        I(f"v_and_b32 v20, 7, v0\nv_lshl_add_u32 v15, v20, 4, v15\ns_mov_b64 exec, 0xffffff")
        I(f"buffer_store_dwordx4 v[16:19], v15, {s4(WS)}, 0 offen sc1", tag="prb")
        I("s_mov_b64 exec, -1")
        a.skip_end()
    def arrive(self):
        a = self.a; I = a.I
        I(f"s_cmp_lg_u32 s{sWave}, 0"); a.skip_begin("s_cbranch_scc1")
        src = sXcc
        if USE_HOT == 3:
            NV = self.c.get("NV", 32)
            I(f"s_mov_b32 s{sT2}, s{sXcc}\ns_cmp_ge_u32 s{sWG}, {NV}"); a.skip_begin("s_cbranch_scc1")
            a.wait_tag("prb")
            I(f"s_load_dword s{sT1}, {sp(WS)}, s{sX3g1}"); a.wait(lg=0)
            I(f"s_add_u32 s{sT0}, s{sX1own}, 8192\ns_memtime s[0:1]"); a.wait(lg=0)
            I(f"s_load_dword s{sT1}, {sp(WS)}, s{sX1own}"); a.wait(lg=0)
            I(f"s_memtime {sp(sX3g0)}"); a.wait(lg=0)
            I(f"s_load_dword s{sT1}, {sp(WS)}, s{sT0}"); a.wait(lg=0)
            I(f"s_memtime {sp(sX1grp)}"); a.wait(lg=0)
            I(f"s_sub_u32 s0, s{sX3g0}, s0\ns_sub_u32 s1, s{sX1grp}, s{sX3g0}\ns_cmp_gt_u32 s0, s1\ns_cselect_b32 s{sT0}, 0x80, 0")
            I(f"s_sub_u32 s{sT1}, s{sXcc}, 1\ns_and_b32 s{sT1}, s{sT1}, 4\ns_lshl_b32 s{sT1}, s{sT1}, 5\ns_xor_b32 s{sT0}, s{sT0}, s{sT1}\ns_or_b32 s{sT2}, s{sT0}, s{sXcc}")
            a.skip_end()
            src = sT2
        I(f"s_and_b32 s{sT0}, s{sWG}, 3\ns_lshl_b32 s{sT0}, s{sT0}, 3\ns_lshl_b32 s{sT0}, s{src}, s{sT0}\ns_and_b32 s{sT1}, s{sWG}, 0xfc")
        I(f"v_mov_b32 v8, s{sT1}\nv_mov_b32 v9, s{sT0}\ns_mov_b64 exec, 1")
        I(f"global_atomic_add v8, v9, {sp(pDBG)} sc1\ns_mov_b64 exec, -1")
        a.skip_end()
    def handshake(self, between):
        a = self.a; I = a.I
        I("v_lshlrev_b32 v7, 2, v0")
        ld = f"global_load_dword v8, v7, {sp(pDBG)} sc1"
        I(ld); last = len(a.vm.ent) - 1
        between()
        n = a.vm.need(last)
        if n is not None: a.wait(vm=n)
        chk = a.label("Lc"); rt = a.label("Lr")
        a.raw(f"{chk}:"); a.no_inject += 1
        I("v_subrev_u32 v9, 0x01010101, v8\nv_not_b32 v10, v8\nv_and_b32 v9, v9, v10\nv_and_b32 v9, 0x80808080, v9\nv_cmp_ne_u32 vcc, 0, v9")
        I(f"s_cbranch_vccnz {rt}")
        self.retry_block(rt, chk, [ld]); a.no_inject -= 1
        if USE_HOT: self.sides()
        I(f"s_and_b32 s{sT0}, s{sWG}, 3\ns_lshl_b32 s{sT0}, s{sT0}, 3\nv_lshrrev_b32 v8, s{sT0}, v8\nv_and_b32 v8, 0xff, v8")
        I(f"s_bfe_u32 s{sT0}, s{sWG}, 0x30002\nv_and_b32 v9, 7, v0\nv_cmp_eq_u32 {sp(sT1)}, s{sT0}, v9\nv_cmp_ne_u32 vcc, s{sXcc}, v8")
        I(f"s_and_b64 vcc, vcc, {sp(sT1)}\ns_cmp_eq_u64 vcc, 0\ns_cselect_b32 s{sLocal}, 1, 0")
    def sides(self):
        a = self.a; I = a.I; a.no_inject += 1
        if USE_HOT == 3:
            I(f"s_mov_b32 s{sOffW}, 0")
            for k in range(4):
                I(f"v_bfe_u32 v9, v8, {8 * k + 7}, 1\nv_cmp_ne_u32 vcc, 0, v9\ns_bcnt1_i32_b64 s{sT0}, vcc\ns_add_u32 s{sOffW}, s{sOffW}, s{sT0}")
            I("v_and_b32 v8, 0x7f7f7f7f, v8")
        if USE_HOT == 2: I(f"s_mov_b32 s{sT1}, 0\ns_mov_b32 s{sT2}, 0x01010101")
        else:
            I(f"v_readlane_b32 s{sT1}, v8, 0\nv_readlane_b32 s{sT2}, v8, 1\nv_mov_b32 v9, s{sT1}\nv_mov_b32 v10, s{sT2}\nv_cndmask_b32 v9, v9, v10, {sp(mODD)}\nv_cmp_ne_u32 vcc, v8, v9")
            I(f"s_and_b32 s{sT0}, s{sWG}, 7\ns_lshl_b32 s{sT0}, s{sT0}, 3\ns_lshr_b64 s[0:1], {sp(sT1)}, s{sT0}\ns_and_b32 s0, s0, 0xff\ns_cmp_eq_u32 s0, s{sXcc}\ns_cselect_b64 vcc, vcc, -1")
            I(f"s_sub_u32 s{sT1}, s{sT1}, 0x01010101\ns_sub_u32 s{sT2}, s{sT2}, 0x01010101\ns_lshr_b32 s{sT1}, s{sT1}, 2\ns_lshr_b32 s{sT2}, s{sT2}, 2\ns_and_b32 s{sT1}, s{sT1}, 0x01010101\ns_and_b32 s{sT2}, s{sT2}, 0x01010101")
            I(f"s_xor_b32 s{sT0}, s{sT1}, s{sT2}\ns_cmp_eq_u32 s{sT0}, 0x01010101\ns_cselect_b32 s{sLocal}, 1, 0\ns_cmp_eq_u64 vcc, 0\ns_cselect_b32 s{sLocal}, s{sLocal}, 0")
            if USE_HOT == 3: I(f"s_cmp_gt_u32 s{sOffW}, {self.c.get('NV', 32) // 2}\ns_cselect_b32 s{sT0}, 0x01010101, 0\ns_xor_b32 s{sT1}, s{sT1}, s{sT0}\ns_xor_b32 s{sT2}, s{sT2}, s{sT0}")
            if self.c.get("pol"): I(f"s_xor_b32 s{sT1}, s{sT1}, 0x01010101\ns_xor_b32 s{sT2}, s{sT2}, 0x01010101")
            I(f"s_cmp_lg_u32 s{sLocal}, 0\ns_cselect_b32 s{sT1}, s{sT1}, 0\ns_cselect_b32 s{sT2}, s{sT2}, 0x01010101")
        I(f"s_mov_b64 s[40:41], {sp(sT1)}")
        def side(dst, k): I(f"s_lshr_b64 s[0:1], {sp(sT1)}, s{k}\ns_and_b32 s{dst}, s0, 1\ns_lshl_b32 s{dst}, s{dst}, 13")
        I(f"s_add_u32 s{sOffP}, s{WS}, {(8 << 20) - 1}\ns_and_b32 s{sOffP}, s{sOffP}, 0xffe00000\ns_sub_u32 s{sOffP}, s{sOffP}, s{WS}")
        I(f"s_and_b32 s{sT0}, s{sWG}, 7\ns_lshl_b32 s{sT0}, s{sT0}, 3"); side(sOffG, sT0)
        I(f"s_add_u32 s{sOffG}, s{sOffG}, s{sOffP}")
        I(f"s_and_b32 s{sT0}, s{sH}, 15\ns_lshl_b32 s{sX1grp}, s{sT0}, 14\ns_add_u32 s{sX1grp}, s{sX1grp}, s{sOffG}\ns_lshl_b32 s0, s{sS}, 10\ns_add_u32 s{sX1own}, s{sX1grp}, s0")
        I(f"s_lshr_b32 s0, s{sT0}, 1\ns_lshl_b32 s0, s0, 14\ns_and_b32 s1, s{sT0}, 1\ns_lshl_b32 s1, s1, 12\ns_add_u32 s0, s0, s1\ns_add_u32 s0, s0, {X2}\ns_add_u32 s{sX2grp}, s0, s{sOffG}\ns_mul_i32 s0, s{sS}, {H2_S}\ns_add_u32 s{sX2own}, s{sX2grp}, s0")
        I(f"s_lshr_b32 s0, s{sS}, 1\ns_lshl_b32 s0, s0, 14\ns_and_b32 s1, s{sS}, 1\ns_lshl_b32 s1, s1, 12\ns_add_u32 s0, s0, s1\ns_add_u32 s{sOffW}, s0, {X3}")
        I(f"s_mul_i32 s0, s{sT0}, {H3_H}\ns_add_u32 s0, s0, s{sOffW}\ns_add_u32 s{sX3own}, s0, s{sOffG}\ns_add_u32 s{sOffW}, s{sOffW}, s{sOffP}")
        for j, dst in enumerate((sX3g0, sX3g1)):
            I(f"s_lshl_b32 s{sT0}, s{sWave}, 4\ns_add_u32 s{sT0}, s{sT0}, {8 * j}"); side(dst, sT0)
            I(f"s_lshl_b32 s0, s{sWave}, 1\ns_add_u32 s0, s0, {j}\ns_and_b32 s0, s0, 3\ns_mul_i32 s0, s0, {4 * H3_H}\ns_add_u32 s{dst}, s{dst}, s0\ns_add_u32 s{dst}, s{dst}, s{sOffW}")
        a.no_inject -= 1
    WQB = [(24, 28, 32), (34, 38, 42), (44, 48, 52)]
    def wq_pre(self, ty):
        a = self.a; I = a.I
        I(f"v_bfe_u32 v7, v0, 2, 2\nv_lshrrev_b32 v9, 4, v0\nv_lshl_add_u32 v8, v9, 3, v7\nv_lshl_add_u32 v7, v9, 2, v7")
        I(f"v_and_b32 v9, 3, v0\nv_lshlrev_b32 v9, 3, v9\ns_mul_i32 s{sT0}, s{sWave}, 96\ns_add_u32 s{sT0}, s{sT0}, {WQ[ty]}\nv_add_u32 v9, s{sT0}, v9")
        I(f"s_movk_i32 s{sT0}, 384\nv_mad_u32_u24 v8, v8, s{sT0}, v9\nv_mad_u32_u24 v7, v7, s{sT0}, v9")
        for T, (b0, b1, b2) in enumerate(self.WQB):
            for t, r in ((0, b0), (1, b1)):
                I(f"ds_read_b64_tr_b16 {v2(r)}, v8 offset:{12288 * t + 32 * T}\nds_read_b64_tr_b16 {v2(r+2)}, v8 offset:{12288 * t + 1536 + 32 * T}")
            I(f"ds_read_b64_tr_b16 {v2(b2)}, v7 offset:{24576 + 32 * T}")
    def wq_addr(self, b, L):
        I = self.a.I
        I(f"v_mov_b32 v22, s{sXROWw}\nv_mov_b32 v23, {ONES - 640 * b}")
        I(f"v_cndmask_b32 v23, v22, v23, {sp(mODD)}\nv_lshrrev_b32 v21, 4, v0\nv_lshl_add_u32 v22, v21, 4, v23\nv_lshl_add_u32 v23, v21, 3, v23")
    def wq_main(self, b, L, local_ok=True, hoisted=False, hoist=False):
        a = self.a; a.comment(f"---- row {b} layer {L}: q projection partial"); I = a.I; inst = 4 * b + L; needC = inst < 2
        if not hoisted: self.wq_addr(b, L)
        I(f"ds_read_b128 v[12:15], v22 offset:{640 * b}\nds_read_b128 v[16:19], v22 offset:{640 * b + 64}\nds_read_b64 v[20:21], v23 offset:{640 * b + 128}")
        if c1(inst):
            I(f"s_mul_i32 s{sT0}, s{sWave}, 192\nv_lshl_add_u32 v7, v0, 2, s{sT0}\ns_mul_i32 s{sT0}, s{sS}, -752\ns_add_u32 s{sT0}, s{sT0}, {6144 - 192}\nv_lshl_add_u32 v23, v0, 2, s{sT0}")
            I(f"v_cndmask_b32 v7, v7, v23, {sp(mRG3)}\ns_add_u32 s{sOffP}, s{sH1c}, {inst * H1_I}")
        elif inst in (0, 4): I(f"s_lshl_b32 s{sT0}, s{sWave}, 8\nv_lshl_add_u32 v7, v0, 2, s{sT0}\ns_add_u32 s{sOffP}, s{h1(inst)[0]}, {h1(inst)[2]}")
        else: I(f"v_lshl_add_u32 v7, v0, 2, s{sCOMBw}\ns_add_u32 s{sOffP}, s{h1(inst)[0]}, {h1(inst)[2] - ATT}")
        if hoist: self.qg_addr(b, L)
        D = [8, 24, 28]
        vs = hoist and not needC and self.c.get("vstat", 1)
        ops = []
        if vs:
            I(f"v_cndmask_b32 v22, 0, v8, {sp(m40)}\nv_lshlrev_b32 v23, 16, v22\nv_and_b32 v22, 0xffff0000, v22\nv_mul_f32 v9, v22, v22\nv_fmac_f32 v9, v23, v23\nv_add_f32 v23, v22, v23\nv_mov_b32 v22, v9")
            for x in ("row_ror:8 row_mask:0xf", "row_ror:4 row_mask:0xf", "row_ror:2 row_mask:0xf", "row_ror:1 row_mask:0xf", "row_bcast:15 row_mask:0xa", "row_bcast:31 row_mask:0xc"):
                ops.append(f"v_add_f32_dpp v23, v23, v23 {x} bank_mask:0xf\nv_add_f32_dpp v22, v22, v22 {x} bank_mask:0xf")
            ops.append(f"v_cndmask_b32 v23, v22, v23, {sp(mODD)}")
        def mf(t):
            I(t)
            if ops: I(ops.pop(0))
        for T, (b0, b1, b2) in enumerate(self.WQB):
            mf(f"v_mfma_f32_16x16x32_bf16 {v4(D[T])}, v[12:15], {v4(b0)}, 0")
            mf(f"v_mfma_f32_16x16x32_bf16 {v4(D[T])}, v[16:19], {v4(b1)}, {v4(D[T])}")
        if not vs: I("v_mfma_f32_16x16x32_bf16 v[34:37], v[12:15], v[12:15], 0\nv_mfma_f32_16x16x32_bf16 v[34:37], v[16:19], v[16:19], v[34:37]")
        for T, (b0, b1, b2) in enumerate(self.WQB):
            mf(f"v_mfma_f32_16x16x16_bf16 {v4(D[T])}, v[20:21], {v2(b2)}, {v4(D[T])}")
        if not vs: I("v_mfma_f32_16x16x16_bf16 v[34:37], v[20:21], v[20:21], v[34:37]")
        if vs:
            I(f"s_cmp_lg_u32 s{sLocal}, 0\nv_cndmask_b32 v22, v8, v23, {sp(mRG3)}\nv_cndmask_b32 v22, v22, v24, {sp(mRG1)}\nv_cndmask_b32 v22, v22, v28, {sp(mRG2)}\nv_min_u32 v22, -2, v22")
            self.publish(f"buffer_store_dword v22, v7, {s4(WS)}, s{sOffP} offen {{pol}}", local_ok, cmp=False)
            return
        for r in range(2 if needC else 1):
            I(f"v_cndmask_b32 v{22+r}, v{8+r}, v{24+r}, {sp(mRG1)}\nv_cndmask_b32 v{22+r}, v{22+r}, v{28+r}, {sp(mRG2)}\nv_cndmask_b32 v{22+r}, v{22+r}, v34, {sp(mRG3)}\nv_min_u32 v{22+r}, -2, v{22+r}")
            if c1(inst): I(f"s_mov_b64 exec, {sp(mPub1)}")
            self.publish(f"buffer_store_dword v{22+r}, v7, {s4(WS)}, s{sOffP} offen offset:{1024 * r} {{pol}}", local_ok)
            if c1(inst): I("s_mov_b64 exec, -1")
    def qg_addr(self, b, L):
        I = self.a.I
        if c1(4 * b + L):
            I(f"v_and_b32 v23, 15, v0\nv_lshrrev_b32 v54, 4, v0\nv_mul_u32_u24 v54, 768, v54\nv_lshl_add_u32 v54, v23, 4, v54\ns_mul_i32 s{sT0}, s{sWave}, 192\nv_add_u32 v54, s{sT0}, v54")
            I(f"s_add_u32 s{sOffG}, s{sH1grp}, {(4 * b + L) * H1_I}")
            return
        I(f"v_and_b32 v23, 15, v0\nv_lshrrev_b32 v54, 4, v0\nv_mul_u32_u24 v54, {h1(4 * b + L)[3]}, v54\nv_lshl_add_u32 v54, v23, 4, v54")
        I(f"s_add_u32 s{sOffG}, s{sH1gw}, {h1(4 * b + L)[2]}\ns_add_u32 s{sOffG2}, s{sOffG}, {4 * h1(4 * b + L)[3]}")
    def qg(self, b, L, between=None, hoisted=False, after=None, tail=False):
        a = self.a; a.comment(f"---- row {b} layer {L}: gather q partials, LayerNorm scale"); I = a.I; inst = 4 * b + L; needC = inst < 2; ty = L & 1
        if not hoisted: self.qg_addr(b, L)
        loads = [f"buffer_load_dwordx4 v[12:15], v54, {s4(WS)}, s{sOffG} offen sc1", f"buffer_load_dwordx4 v[16:19], v54, {s4(WS)}, s{sOffG2} offen sc1"]
        cc = c1(inst)
        if cc: loads = [f"buffer_load_dwordx4 v[12:15], v54, {s4(WS)}, s{sOffG} offen sc1", f"buffer_load_dwordx4 v[16:19], v36, {s4(WS)}, s{sOffG} offen sc1"]
        def addr2():
            I(f"v_add_u32 v36, 3072, v54\nv_and_b32 v37, 48, v0\nv_add_u32 v37, 6144, v37\ns_mov_b32 vcc_lo, 0x10001000\ns_mov_b32 vcc_hi, 0x10001000")
            I("v_cndmask_b32 v54, v54, v37, vcc\nv_add_u32 v37, 64, v37\nv_cndmask_b32 v36, v36, v37, vcc")
        if needC: loads += [f"buffer_load_dwordx4 v[20:23], v54, {s4(WS)}, s{sOffG} offen offset:1024 sc1", f"buffer_load_dwordx4 v[24:27], v54, {s4(WS)}, s{sOffG2} offen offset:1024 sc1"]
        def pre():
            I(f"v_and_b32 v32, 15, v0\nv_lshrrev_b32 v33, 4, v0\nv_and_b32 v34, 1, v33\nv_lshlrev_b32 v34, 1, v34\nv_lshrrev_b32 v28, 1, v33\nv_or_b32 v34, v34, v28\nv_lshl_add_u32 v34, v32, 2, v34")
            I(f"v_lshl_add_u32 v34, v34, 1, s{sQw}\nv_lshl_add_u32 v29, v0, 2, s{sCTw}")
            if not needC: I(f"ds_read_b32 v20, v29 offset:{1024 * ty}")
            self.q_addr(b)
            I(f"v_mov_b32 v35, {f32(1 / (640 * SCALE))}\nv_mov_b32 v32, {f32(1 / (640 * SCALE * SCALE))}\nv_mov_b32 v33, {f32(1e-5 / (SCALE * SCALE))}")
        first = hoisted and self.c.get('first', 3) & 2
        if cc: addr2()
        if first: pre()
        def shadow():
            if not first: pre()
            if tail and self.c.get("tq", 0): self.tail_addr(b, L)
            if tail and L == 2 and self.c.get("v2", 1):
                I(f"v_lshl_add_u32 v37, v0, 4, s{sLdsVS}")
                for c in range(3): I(f"ds_read_b128 {v4(vU + 2 + 4 * c)}, v37 offset:{1024 * c}")
            if between: between()
        self.gather(loads, range(12, 28 if needC else 20), 28, between=shadow, sleep=self.lsleep(), emask=sp(mQ13) if cc else None, vmask=cc)
        if after: after()
        def red(r):
            I(f"v_pk_add_f32 {v2(r)}, {v2(r)}, {v2(r+4)}\nv_pk_add_f32 {v2(r+2)}, {v2(r+2)}, {v2(r+6)}")
            I(f"v_permlane32_swap_b32 v{r}, v{r+1}\nv_permlane32_swap_b32 v{r+2}, v{r+3}\nv_add_f32 v{r}, v{r}, v{r+1}\nv_add_f32 v{r+2}, v{r+2}, v{r+3}")
            I(f"v_permlane16_swap_b32 v{r}, v{r+2}\nv_add_f32 v{r}, v{r}, v{r+2}")
        red(12)
        I(f"v_readlane_b32 s{sT0}, v12, 12\nv_readlane_b32 s{sT1}, v12, 44")
        if needC: red(20); I(f"v_mul_f32 v20, {f32(SCALE)}, v20\nds_write_b32 v29, v20 offset:{1024 * ty}")
        I(f"s_mov_b32 exec_lo, 0x0fff0fff\ns_mov_b32 exec_hi, 0x0fff0fff")
        I(f"v_mul_f32 v15, s{sT1}, v35\nv_fma_f32 v14, s{sT0}, v32, v33\nv_fma_f32 v14, -v15, v15, v14\nv_max_f32 v14, v33, v14\nv_rsq_f32 v14, v14")
        I(f"v_fma_f32 v12, -v15, v20, v12\nv_mul_f32 v12, v12, v14\nv_cvt_pk_bf16_f32 v12, v12, v12")
        I(f"ds_write_b16 v34, v12 offset:{384 * b}\ns_mov_b64 exec, -1")
        a.barrier()
    def tail_addr(self, b, L):
        I = self.a.I; inst = 4 * b + L
        I(f"v_and_b32 v50, 15, v0\nv_lshlrev_b32 v50, 5, v50\nv_and_b32 v51, 16, v0\nv_add3_u32 v50, v50, v51, s{sATTw}\nv_mov_b32 v51, s{sSTATw}")
        self.wo_addr(b, L)
        I(f"v_mov_b32 v9, {STAT}\nv_lshl_add_u32 v10, v0, 2, s{sCOMBw}")
        if H2_S == 384: I(f"v_lshl_add_u32 v11, v0, 1, s{sPub2}\ns_add_u32 s{sOffP}, s{h2(inst)[0]}, {h2(inst)[2]}")
        else: I(f"s_lshl_b32 s{sT0}, s{sWave}, 7\nv_lshl_add_u32 v11, v0, 1, s{sT0}\ns_add_u32 s{sOffP}, s{h2(inst)[0]}, {h2(inst)[2]}")
    def q_addr(self, b):
        self.a.I(f"v_and_b32 v30, 1, v0\nv_lshrrev_b32 v31, 4, v0\nv_lshlrev_b32 v31, 5, v31\nv_lshl_add_u32 v30, v30, 4, v31\nv_add_u32 v30, {QB + 384 * b}, v30")
    def att(self, b, L, hook1=None, hook2=None, hookm=None, pre_bar=None, guard=False, hoist=False, qaddr=False):
        a = self.a; a.comment(f"---- row {b} layer {L}: attention"); I = a.I; ty = L & 1; G = 16 if ty else 4; Kn = "KB" if ty else "KA"; Vn = "VB" if ty else "VA"
        vM, vL = 52, 53
        if not qaddr: self.q_addr(b)
        for t in range(3): I(f"ds_read_b128 {v4(vQ + 4 * t)}, v30 offset:{128 * t}")
        def lds_v(g):
            a.wait_tag(("VS", b, g))
            I(f"v_lshl_add_u32 v54, v0, 4, s{sLdsVS}")
            for c in range(3): I(f"ds_read_b128 {v4(vU + 2 + 4 * c)}, v54 offset:{(g - 2) * 3072 + 1024 * c}")
        early = (not ty) and L == 2
        if early and not self.c.get('v2', 1): lds_v(2)
        if not (qaddr and self.c.get("tq", 0)):
            if self.c.get("fill", 1):
                if self.c.get("touch", 4) == 4 and L >= 2 and (b, L) != (0, 3): a.queue(lambda: self.touch_fill(b, L))
                a.queue(lambda: self.tail_addr(b, L)); a.drain(self.c.get("fill0", 8))
            else: self.tail_addr(b, L)
        def D(g): return vACC + 4 * (g % 3)
        dm = "row_mask:0xf"; NP = G // 2
        order = list(range(G)) if ty else ([2, 0, 1, 3] if early else [0, 1, 2, 3])
        at = {g: i for i, g in enumerate(order)}
        U = lambda g: vU + at[g] // 2
        bank = lambda g, hi: (1 << (at[g] & 1)) << (2 * hi)
        spread = []; got = {}
        for g in range(G + 2):
            K = SLOT[(Kn, g)] if g < G else None
            if K: self.check_slot(Kn, b, g)
            e = g - 2
            if K: I(f"v_mfma_f32_16x16x32_bf16 {v4(D(g))}, {K[0]}, {v4(vQ)}, 0")
            if spread and K: I(spread.pop(0))
            if g == 1 and self.c.get("fa"): self.fs("g1")
            if K: a.drain(2)
            if K: I(f"v_mfma_f32_16x16x32_bf16 {v4(D(g))}, {K[1]}, {v4(vQ+4)}, {v4(D(g))}")
            if K and e < 0: a.drain(2)
            if 0 <= e < G: I(f"v_add_f32_dpp v{U(e)}, v{D(e)}, v{D(e)+1} quad_perm:[0,0,2,2] {dm} bank_mask:{bank(e, 0):#x}")
            if K: I(f"v_mfma_f32_16x16x32_bf16 {v4(D(g))}, {K[2]}, {v4(vQ+8)}, {v4(D(g))}")
            if g == G + 1 and NP > 3: I(f"v_max3_f32 v{vM}, v{vU}, v{vU+1}, v{vU+2}\nv_max3_f32 v{vM}, v{vM}, v{vU+3}, v{vU+4}")
            if K and e < 0: a.drain(2)
            if hook1 and g < G: hook1(g)
            if 0 <= e < G: I(f"v_add_f32_dpp v{U(e)}, v{D(e)+2}, v{D(e)+3} quad_perm:[0,0,2,2] {dm} bank_mask:{bank(e, 1):#x}")
            if 0 <= e < G:
                got[U(e)] = got.get(U(e), 0) + 1
                if got[U(e)] == 2: spread.append(f"v_mov_b32_dpp v{U(e)}, v{U(e)} quad_perm:[1,1,3,3] {dm} bank_mask:0xf")
        a.fill = spread + a.fill
        if self.c.get("fa"): self.fs("p1")
        if hookm: hookm()
        if NP > 3: I(f"v_max3_f32 v{vM}, v{vM}, v{vU+5}, v{vU+6}\nv_max_f32 v{vM}, v{vM}, v{vU+7}")
        else: I(f"v_max_f32 v{vM}, v{vU}, v{vU+1}")
        red = ("row_ror:8 row_mask:0xf", "row_ror:4 row_mask:0xf", "row_bcast:15 row_mask:0xa", "row_bcast:31 row_mask:0xc")
        for x in red: I(f"v_max_f32_dpp v{vM}, v{vM}, v{vM} {x} bank_mask:0xf")
        I(f"v_readlane_b32 s{sM}, v{vM}, 63")
        def prob(p): return [f"v_subrev_f32 v{vU+p}, s{sM}, v{vU+p}", f"v_exp_f32 v{vU+p}, v{vU+p}",
                             f"v_mov_b32 v{vL}, v{vU+p}" if p == 0 else f"v_add_f32 v{vL}, v{vL}, v{vU+p}",
                             f"v_cvt_pk_bf16_f32 v{vU+p}, v{vU+p}, v{vU+p}"]
        def diag(i, j):
            d = vQ + 4 * (i & 1) + j; u = vU + i // 2
            if (j >> 1) == (i & 1): I(f"v_and_b32 v{d}, v{u}, v{vMask + j}")
            else: I(f"v_and_b32_dpp v{d}, v{u}, v{vMask + j} {'row_shl:4' if i & 1 else 'row_shr:4'} {dm} bank_mask:0xf bound_ctrl:0")
        a.drain()
        p0 = prob(0); p1 = prob(1)
        for t in (p0[0], p0[1], p1[0], p0[2], p0[3], p1[1]): I(t)
        pend = p1[2:]
        for j in (0, 1, 2, 3): diag(0, j)
        I(f"v_mov_b32 v{vM}, s{sM}\nds_write_b32 v51, v{vM}") if not guard else None
        if guard: a.barrier(); I(f"v_mov_b32 v{vM}, s{sM}\nds_write_b32 v51, v{vM}")
        if self.c.get("fa"): self.fs("p2start")
        lred = []
        for i, g in enumerate(order):
            self.check_slot(Vn, b, g)
            if (Vn, g) in SLOT: V = SLOT[(Vn, g)]
            else:
                if not early: lds_v(g)
                V = [v4(vU + 2 + 4 * c) for c in range(3)]
            A = v4(vQ + 4 * (i & 1))
            nx = i + 1 < G
            if (i & 1) == 1 and i // 2 + 2 < NP: assert not pend; pend = prob(i // 2 + 2)
            if i == G - 2: assert not pend; lred = [f"v_add_f32_dpp v{vL}, v{vL}, v{vL} {x} bank_mask:0xf" for x in red]
            for c in range(3):
                acc = v4(vACC + 4 * c)
                I(f"v_mfma_f32_16x16x32_bf16 {acc}, {A}, {V[c]}, {acc if i else 0}")
                if nx and c < 2: diag(i + 1, 2 * c + 0 if (i + 1) & 1 == 0 else (2 * c + 2) % 4); diag(i + 1, 2 * c + 1 if (i + 1) & 1 == 0 else (2 * c + 3) % 4)
                if pend and c == 2: I(pend.pop(0)); I(pend.pop(0))
                if lred: I(lred.pop(0))
                if i == G - 1 and c == 1: I(f"s_mov_b64 exec, {sp(mL63)}\nds_write_b32 v51, v{vL} offset:16\ns_mov_b64 exec, -1")
            if early and g == 2: lds_v(3)
            if hook2: hook2(i)
        if self.c.get("fa"): self.fs("p2end")
        for c, (lo, hi) in enumerate(((0xffffffff, 0), (0x00ff00ff, 0xff00ff00), (0, 0xffffffff))):
            I(f"s_mov_b32 exec_lo, {lo:#x}\ns_mov_b32 exec_hi, {hi:#x}\nds_write_b128 v50, {v4(vACC + 4 * c)} offset:{512 * c}")
        I("s_mov_b64 exec, -1")
        if pre_bar: pre_bar()
        self.fs("att_end")
        a.barrier()
        self.combine(b, L)
        self.fs("pub2")
    def combine(self, b, L):
        a = self.a; I = a.I; inst = 4 * b + L; a.comment("merge the four waves' partials and publish")
        I("ds_read_b128 v[44:47], v9\nds_read_b128 v[48:51], v9 offset:16")
        for i in range(0, 8, 2): I(f"ds_read2st64_b32 {v2(12 + i)}, v10 offset0:{3 * i} offset1:{3 * i + 3}")
        I("v_max3_f32 v52, v44, v45, v46\nv_max_f32 v52, v52, v47")
        for w in range(4): I(f"v_sub_f32 v{44+w}, v{44+w}, v52")
        for w in range(4): I(f"v_exp_f32 v{44+w}, v{44+w}")
        for w in range(4): I(f"v_add_f32 v{12 + 2 * w}, v{12 + 2 * w}, v{13 + 2 * w}")
        I("v_mul_f32 v20, v44, v12\nv_fmac_f32 v20, v45, v14\nv_fmac_f32 v20, v46, v16\nv_fmac_f32 v20, v47, v18")
        I("v_mul_f32 v53, v44, v48\nv_fmac_f32 v53, v45, v49")
        I("v_mov_b32_dpp v21, v20 quad_perm:[1,1,3,3] row_mask:0xf bank_mask:0xf")
        I("v_fmac_f32 v53, v46, v50\nv_fmac_f32 v53, v47, v51\nv_cvt_pk_bf16_f32 v20, v20, v21")
        I(f"v_cndmask_b32 v52, v52, v53, {sp(mBIT1)}\nv_cndmask_b32 v20, v20, v52, {sp(mW3)}\nv_min_u32 v20, -2, v20")
        I(f"s_mov_b64 exec, {sp(mPub2)}" if H2_S == 384 else f"s_not_b64 exec, {sp(mODD)}")
        self.publish(f"buffer_store_dword v20, v11, {s4(WS)}, s{sOffP} offen {{pol}}", True)
        I("s_mov_b64 exec, -1")
    def wo_addr(self, b, L):
        I = self.a.I
        I(f"v_bfe_u32 v8, v0, 1, 3\nv_lshrrev_b32 v9, 4, v0\nv_and_b32 v7, 1, v0\nv_lshl_add_u32 v7, v9, 1, v7\nv_lshlrev_b32 v7, 4, v7\ns_movk_i32 s{sT0}, {H2_S}\nv_mad_u32_u24 v7, v8, s{sT0}, v7")
        I(f"v_lshl_add_u32 v8, v9, 1, v8\nv_and_b32 v8, 7, v8\nv_mul_u32_u24 v8, {16 if H2_S == 384 else H2_S}, v8\ns_add_u32 s{sOffW}, s{h2(4 * b + L)[1]}, {h2(4 * b + L)[2]}")
    def wo(self, b, L, between=None, hoisted=False, hoist=False, after=None):
        a = self.a; a.comment(f"---- row {b} layer {L}: gather attention partials, output projection partial"); I = a.I; inst = 4 * b + L; ty = L & 1
        if not hoisted: self.wo_addr(b, L)
        loads = [f"buffer_load_dwordx2 v[52:53], v8, {s4(WS)}, s{sOffW} offen offset:{3072 if H2_S == 384 else 384} sc1"]
        loads += [f"buffer_load_dwordx4 {v4(12 + 4 * t)}, v7, {s4(WS)}, s{sOffW} offen offset:{128 * t} sc1" for t in range(3)]
        S = [24, 28, 32, 36, 40, 44]
        def rd(kk, reg, tile):
            o = 10240 * (kk >> 1) + 1280 * (kk & 1) + 32 * tile
            I(f"ds_read_b64_tr_b16 {v2(reg)}, v10 offset:{o}\nds_read_b64_tr_b16 {v2(reg + 2)}, v10 offset:{o + 640}")
        def pre():
            I(f"v_bfe_u32 v10, v0, 2, 2\nv_and_b32 v11, 48, v0\nv_add_u32 v10, v10, v11\nv_mul_u32_u24 v10, 160, v10\nv_and_b32 v11, 3, v0\nv_lshl_add_u32 v10, v11, 3, v10")
            I(f"s_add_u32 s{sT1}, s{sW2}, {WO[ty]}\nv_add_u32 v10, s{sT1}, v10")
            for kk in range(6): rd(kk, S[kk], 0)
            I(f"v_and_b32 v11, 15, v0\nv_lshlrev_b32 v11, 1, v11\nv_and_b32 v9, 32, v0\nv_add3_u32 v11, v11, v9, s{sW2}\ns_add_u32 s{sOffP}, s{h3(inst)[0]}, {h3(inst)[2]}")
            if hoist: self.yg_addr()
            if between: between()
        D0, D1 = 48, 24
        mt = lambda D, t, B, first: f"v_mfma_f32_16x16x32_bf16 {v4(D)}, {v4(12 + 4 * t)}, {v4(B)}, {0 if first else v4(D)}"
        def mm(*k): I(mt(*k))
        self.gather(loads, [52, 53] + list(range(12, 24)), 9, between=pre, sleep=self.lsleep(), first=hoisted and self.c.get('first', 3) & 1,
                    spec=[mt(D0, 0, S[0], True), mt(D0, 1, S[2], False), mt(D0, 2, S[4], False)])
        if after: after()
        dpp = lambda op, d, x, ctl: I(f"{op}_dpp v{d}, v{x}, v{x} {ctl} row_mask:0xf bank_mask:0xf")
        def fold(out):
            I(f"v_add_f32 v{D0}, v{D0}, v{D1 + 1}\nv_add_f32 v{D0 + 2}, v{D0 + 2}, v{D1 + 3}\nv_mul_f32 v{out}, v7, v{D0}\nv_fmac_f32 v{out}, v8, v{D0 + 2}")
        dpp("v_max_f32", 9, 52, "row_ror:8")
        mm(D1, 0, S[1], True); rd(0, S[2], 1); dpp("v_max_f32", 9, 9, "row_ror:4")
        mm(D1, 1, S[3], False); rd(2, S[4], 1); dpp("v_max_f32", 9, 9, "row_ror:2")
        mm(D1, 2, S[5], False); I("v_sub_f32 v52, v52, v9\nv_exp_f32 v52, v52"); rd(4, S[1], 1); I("v_mul_f32 v53, v52, v53")
        rd(1, S[3], 1); dpp("v_add_f32", 53, 53, "row_ror:8")
        rd(3, S[5], 1); dpp("v_add_f32", 53, 53, "row_ror:4")
        I(f"v_add_f32 v{D0}, v{D0}, v{D1 + 1}\nv_add_f32 v{D0 + 2}, v{D0 + 2}, v{D1 + 3}")
        dpp("v_add_f32", 53, 53, "row_ror:2")
        I(f"v_mov_b32 v7, v{D0}\nv_mov_b32 v8, v{D0 + 2}\nv_rcp_f32 v53, v53")
        mm(D0, 0, S[2], True); rd(5, S[2], 1)
        I("v_mul_f32 v9, v52, v53")
        mm(D0, 1, S[4], False); mm(D0, 2, S[1], False)
        I("v_mul_f32_dpp v52, v9, v7 row_newbcast:0 row_mask:0xf bank_mask:0xf")
        mm(D1, 0, S[3], True)
        I("v_mov_b32_dpp v7, v9 row_newbcast:0 row_mask:0xf bank_mask:0xf")
        mm(D1, 1, S[5], False)
        I("v_fmac_f32_dpp v52, v9, v8 row_newbcast:2 row_mask:0xf bank_mask:0xf")
        mm(D1, 2, S[2], False)
        I("v_mov_b32_dpp v8, v9 row_newbcast:2 row_mask:0xf bank_mask:0xf")
        fold(53)
        I("v_permlane32_swap_b32 v52, v53\nv_add_f32 v52, v52, v53\nv_mov_b32 v53, v52\nv_permlane16_swap_b32 v52, v53\nv_add_f32 v52, v52, v53")
        I("v_mov_b32_dpp v53, v52 quad_perm:[1,1,3,3] row_mask:0xf bank_mask:0xf\nv_cvt_pk_bf16_f32 v52, v52, v53\nv_min_u32 v52, -2, v52")
        I(f"s_mov_b64 exec, {sp(mWOST)}")
        self.publish(f"buffer_store_dword v52, v11, {s4(WS)}, s{sOffP} offen {{pol}}", False)
        I("s_mov_b64 exec, -1")
    def yg_addr(self):
        self.a.I(f"v_lshrrev_b32 v54, 4, v0\nv_mul_u32_u24 v54, {H3_H}, v54\nv_and_b32 v9, 15, v0\nv_lshl_add_u32 v54, v9, 4, v54")
    def yg_pre(self, b, L):
        I = self.a.I
        if h3(4 * b + L)[1] is None: I(f"s_add_u32 s{sOffG}, s{sX3g0}, {h3(4 * b + L)[2]}\ns_add_u32 s{sOffG2}, s{sX3g1}, {h3(4 * b + L)[2]}")
        else: I(f"s_mul_i32 s{sT0}, s{sWave}, {8 * H3_H}\ns_add_u32 s{sOffG}, s{sH3grp}, s{sT0}\ns_add_u32 s{sOffG}, s{sOffG}, {(4 * b + L) * H3_I}\ns_add_u32 s{sOffG2}, s{sOffG}, {4 * H3_H}")
        for j in range(4): I(f"v_and_b32 v{16 + j}, 0x3f803f80, v{vMask + j}")
        for j in range(8): I(f"v_mov_b32 v{8 + j}, 0")
    def yg(self, b, L, between=None, pre_bar=None, hoisted=False, after=None):
        a = self.a; a.comment(f"---- row {b} layer {L}: gather output partials, residual"); I = a.I; inst = 4 * b + L; Yb = Y + YSZ * b
        if not hoisted: self.yg_addr(); self.yg_pre(b, L)
        loads = [f"buffer_load_dwordx4 {v4(8 + 4 * j)}, v54, {s4(WS)}, s{(sOffG, sOffG2)[j]} offen sc1" for j in range(2)]
        self.gather(loads, range(8, 16), 7, between=between, emask=sp(mN10),
                    spec=["v_mfma_f32_16x16x32_bf16 v[20:23], v[16:19], v[8:11], 0", "v_mfma_f32_16x16x32_bf16 v[20:23], v[16:19], v[12:15], v[20:23]"])
        if after: after()
        I(f"v_and_b32 v7, 15, v0\nv_lshlrev_b32 v7, 5, v7\nv_and_b32 v54, 16, v0\nv_add3_u32 v7, v7, v54, s{sYw}")
        I(f"s_mov_b32 exec_lo, s{mN10}\ns_mov_b32 exec_hi, 0\nds_write_b128 v7, v[20:23] offset:{YSZ * b}\ns_mov_b64 exec, -1")
        I(f"v_lshl_add_u32 v7, v0, 2, s{sXROWw}\nds_read_b32 v54, v7 offset:{640 * b}")
        I(f"v_lshlrev_b32 v14, 3, v0\nv_add_u32 v14, {Yb}, v14")
        if L < 3: self.wq_addr(b, L + 1)
        if pre_bar: pre_bar()
        a.barrier()
        I("s_mov_b32 exec_hi, 0xff")
        I("ds_read2_b64 v[8:11], v14 offset0:0 offset1:40\nds_read2_b64 v[12:15], v14 offset0:80 offset1:120")
        I("v_lshlrev_b32 v16, 16, v54\nv_and_b32 v17, 0xffff0000, v54")
        I("v_pk_add_f32 v[8:9], v[8:9], v[10:11]\nv_pk_add_f32 v[12:13], v[12:13], v[14:15]\nv_pk_add_f32 v[8:9], v[8:9], v[12:13]")
        I("v_cvt_pk_bf16_f32 v8, v8, v9\nv_and_b32 v9, 0xffff0000, v8\nv_lshlrev_b32 v8, 16, v8\nv_pk_add_f32 v[8:9], v[8:9], v[16:17]\nv_cvt_pk_bf16_f32 v8, v8, v9")
        if L < 3: I(f"ds_write_b32 v7, v8 offset:{640 * b}")
        else:
            I(f"s_cmp_lg_u32 s{sWave}, 0"); a.skip_begin("s_cbranch_scc1")
            I(f"s_mul_i32 s{sT0}, s{sS}, 160\nv_lshlrev_b32 v7, 2, v0")
            I(f"buffer_store_dword v8, v7, {s4(XO)}, s{sT0} offen offset:{1280 * b}")
            a.skip_end()
        I("s_mov_b64 exec, -1")
    def fin_pre(self, b):
        a = self.a; I = a.I; inst = 4 * b + 3
        self.yg_addr(b, 3) if False else None
        for j in range(4): I(f"v_and_b32 v{16 + j}, 0x3f803f80, v{vMask + j}")
        I(f"v_and_b32 v9, 15, v0\nv_lshlrev_b32 v9, 4, v9\nv_bfe_u32 v10, v0, 4, 1\nv_lshl_add_u32 v9, v10, 3, v9\nv_add_u32 v10, {XROW + 640 * b}, v9\nds_read_b64 v[10:11], v10")
        for k in range(8):
            if h3(inst)[1] is None:
                if k == 0: I(f"s_and_b32 s0, s40, 1\ns_lshl_b32 s0, s0, 13\ns_sub_u32 s12, s{sX3g0}, s0\ns_add_u32 s12, s12, {h3(inst)[2]}")
                I(f"s_bfe_u32 s0, s{40 + (k >> 2)}, {0x10000 + 8 * (k & 3):#x}\ns_lshl_b32 s0, s0, 13\ns_add_u32 s0, s0, {(k & 3) * 4 * H3_H}\ns_add_u32 s{4 + k}, s12, s0")
            else: I(f"s_add_u32 s{4 + k}, s{sH3grp}, {h3(inst)[2] + k * 4 * H3_H}")
        I(f"v_lshlrev_b32 v12, 16, v10\nv_and_b32 v13, 0xffff0000, v10\nv_lshlrev_b32 v14, 16, v11\nv_and_b32 v15, 0xffff0000, v11\ns_mul_i32 s{sT0}, s{sS}, 160")
    def fin(self, b):
        a = self.a; I = a.I; a.comment(f"---- row {b}: gather output partials, residual, store")
        loads = [f"buffer_load_dwordx4 {v4(60 + 4 * k)}, v54, {s4(WS)}, s{4 + k} offen sc1" for k in range(8)]
        self.gather(loads, range(60, 92), 7, emask=sp(mN10), vmask=True,
                    spec=[f"v_mfma_f32_16x16x32_bf16 v[20:23], v[16:19], {v4(60 + 4 * k)}, {'v[20:23]' if k else 0}" for k in range(8)])
        I(f"s_mov_b32 exec_lo, s{mN10}\ns_mov_b32 exec_hi, 0")
        I("v_cvt_pk_bf16_f32 v20, v20, v21\nv_cvt_pk_bf16_f32 v22, v22, v23\nv_and_b32 v21, 0xffff0000, v20\nv_lshlrev_b32 v20, 16, v20\nv_and_b32 v23, 0xffff0000, v22\nv_lshlrev_b32 v22, 16, v22")
        I("v_pk_add_f32 v[20:21], v[20:21], v[12:13]\nv_pk_add_f32 v[22:23], v[22:23], v[14:15]\nv_cvt_pk_bf16_f32 v20, v20, v21\nv_cvt_pk_bf16_f32 v21, v22, v23")
        I(f"buffer_store_dwordx2 v[20:21], v9, {s4(XO)}, s{sT0} offen offset:{1280 * b}\ns_mov_b64 exec, -1")
    def touch(self, b, L, lvl=1):
        if self.c.get("touch", 4) == 4 or self.c.get("touch") < lvl: return
        a = self.a; I = a.I; m = self.c.get("tm", 3)
        I(f"s_mov_b32 m0, {JUNK}\ns_mov_b64 exec, 3")
        if m & 1:
            I(f"v_mov_b32 v31, s{sPub2}\ns_add_u32 s{sT1}, s{h2(4 * b + L)[0]}, {h2(4 * b + L)[2]}")
            I(f"buffer_load_dword v31, {s4(WS)}, s{sT1} offen sc1 lds")
        if L < 3 and m & 2:
            I(f"s_lshl_b32 s{sT0}, s{sWave}, 8\nv_lshl_add_u32 v31, v0, 7, s{sT0}\ns_add_u32 s{sT1}, s{h1(4 * b + L + 1)[0]}, {h1(4 * b + L + 1)[2]}")
            I(f"buffer_load_dword v31, {s4(WS)}, s{sT1} offen sc1 lds")
        I("s_mov_b64 exec, -1")
    def touch_fill(self, b, L):
        I = self.a.I; m = self.c.get("tm", 3)
        if m & 1:
            I(f"s_add_u32 s{sT1}, s{h2(4 * b + L)[0]}, {h2(4 * b + L)[2]}\nv_mov_b32 v54, s{sPub2}")
            I(f"s_mov_b32 m0, {JUNK} | buffer_load_dword v54, {s4(WS)}, s{sT1} offen sc1 lds")
        if L < 3 and m & 2:
            I(f"s_lshl_b32 s{sT0}, s{sWave}, 8\nv_and_b32 v54, 1, v0\nv_lshl_add_u32 v54, v54, 7, s{sT0}\ns_add_u32 s{sT1}, s{h1(4 * b + L + 1)[0]}, {h1(4 * b + L + 1)[2]}")
            I(f"s_mov_b32 m0, {JUNK} | buffer_load_dword v54, {s4(WS)}, s{sT1} offen sc1 lds")
    def chain_idle(self, b, L, burst=(0, 0, 0), sh=(0, 0, 0, 0), pf=(0, 0, 0)):
        a = self.a; U = lambda n: (lambda: self.stream(n, paced=False))
        if self.c.get("skip3", 1):
            a.I(f"s_cmp_eq_u32 s{sWave}, 3"); a.skip_begin("s_cbranch_scc1")
            self.wo(b, L, hoisted=True)
            a.skip_end()
            self.yg_addr()
            self.stream(sh[0] + sh[1], paced=False)
            self.pfreg = 7; self.prefetch(pf[0])
        else:
            self.wo(b, L, between=U(burst[0]), hoisted=True, hoist=True, after=U(sh[0]))
            self.stream(sh[1], paced=False)
        self.stamp(f"wo{b}{L}")
        self.fs("pub3")
        late = self.c.get("late", 2)
        if L == 3:
            a.I(f"s_cmp_eq_u32 s{sH}, 1\ns_cbranch_scc1 L_out0")
            a.I(f"s_cmp_lg_u32 s{sH}, 0\ns_cbranch_scc1 L_fin")
            self.page()
            if self.c.get("fin1", 1):
                if not self.c.get("finl", 1): self.fin_pre(1)
                a.wait_tag("pub"); a.barrier()
                a.I(f"s_cmp_lg_u32 s{sWave}, 0\ns_cbranch_scc1 L_fin")
                if self.c.get("finl", 1): self.fin_pre(1)
                self.fin(1)
                return
        dfr = self.deferred; self.deferred = []
        pub = a.vm.last_tag("pub")
        for jobs in dfr: self.clear_prep(jobs); self.clear_issue("clr3")
        if L < 3 and not late: self.wq_pre((L + 1) & 1)
        if late < 2: self.yg_pre(b, L)
        a.wait_tag("pub"); a.barrier()
        if L < 3 and late: self.wq_pre((L + 1) & 1)
        if late >= 2: self.yg_pre(b, L)
        self.yg(b, L, between=lambda: (self.stream(burst[1], paced=False), self.page() if L < 3 else None), hoisted=True, after=lambda: (self.stream(sh[2], paced=False), self.prefetch(pf[1])), pre_bar=(lambda: a.wait_tag("clr3")) if dfr else None)
        self.fs("xrow")
        if L == 3: return
        self.wq_main(b, L + 1, hoisted=True, hoist=True)
        self.fs("pub1")
        self.stamp(f"wq{b}{L+1}")
        self.qg(b, L + 1, between=U(burst[2]), hoisted=True, tail=True, after=lambda: (self.touch(b, L + 1) if self.c.get("touch", 4) != 3 or (b, L) == (0, 1) else None, self.stream(sh[3], paced=False), self.prefetch(pf[2])))
        self.stamp(f"qg{b}{L+1}")
    def build(self):
        a = self.a; c = self.c; W = self.W; WE = c.get("WE", W); HE = c.get("HE", 4); PG = c.get("PG", 0)
        self.off_val = None
        for x in c.get("order", "kwv"):
            if x == "w": self.add_w("wqA", pWQA, "q", 0)
            else:
                for g in range(4): self.add_kv("KA" if x == "k" else "VA", 0, g)
        self.add_w("woA", pWOA, "o", 0); self.add_w("wqB", pWQB, "q", 1)
        for g in range(16): self.add_kv("KB", 0, g)
        wl = c.get("wolate", 0)
        if not wl: self.add_w("woB", pWOB, "o", 1)
        for g in range(16): self.add_kv("VB", 0, g)
        if wl: self.add_w("woB", pWOB, "o", 1, late=True)
        p1 = len(self.items)
        for g in range(4): self.add_kv("KA", 1, g)
        for g in range(4): self.add_kv("VA", 1, g)
        p2 = len(self.items)
        for g in range(16): self.add_kv("KB", 1, g)
        for g in range(16): self.add_kv("VB", 1, g)
        st = self.stream_to; S = lambda n: (lambda: self.stream(n))
        self.limit = p1; a.nobar = c.get('nobar', 0)
        self.setup()
        if c.get("inject", 1): a.inject = self.injector
        if c.get("streamonly"):
            self.limit = 10**9; self.npage = 0; self.hot = []; self.inl = False; self.boost = 0; a.inject = None
            for upto in c["streamonly"]:
                if isinstance(upto, tuple): st(upto[0], W=upto[1])
                else: st(upto)
                self.stamp("end")
            a.wait(vm=0); self.stamp("end")
            return self.finish()
        P = c.get("P1", dict(arr=30, hs=44, qg0=44, wo=80, yg=106, qg1=130))
        for _ in range(c.get("pad", 0)): a.I("s_nop 0")
        a.raw("L_pf0:")
        self.stamp("setup")
        a.wait_tag("clr"); a.barrier()
        self.arrive()
        st(max(P["arr"], self.index_after("wqA") + 4))
        self.stamp("arr")
        a.wait_tag("wqA"); a.barrier()
        self.wq_pre(0); self.wq_main(0, 0, local_ok=False)
        self.stream(c.get("wqgap", 4))
        self.wq_pre(0); self.wq_main(1, 0, local_ok=False)
        self.stamp("wq")
        st(P["hs"]); self.handshake(S(W))
        for r, m, base in ((sCTw, 256, CT), (sATTw, 1536, ATT), (sSTATw, 4, STAT), (sCOMBw, 256, ATT)):
            a.I(f"s_mul_i32 s{r}, s{sWave}, {m}\ns_add_u32 s{r}, s{r}, {base}")
        a.I(f"s_lshl_b32 s{sH1gw}, s{sWave}, 8\ns_add_u32 s{sH1gw}, s{sH1gw}, s{sH1grp}")
        P_ = lambda i: [("P", i)]
        now = [[P_(1), [("C", 1)], P_(2), [("2", 1), ("3", 1)]], [[("3", 2), ("3", 3)], [("3", 4), ("3", 5)], [("3", 6), ("3", 7)], [("3", 6), ("3", 7)]]]
        self.deferred = [[P_(3), P_(5), P_(6), P_(7)], [[("2", 2), ("2", 3)], [("2", 4), ("2", 5)], [("2", 6), ("2", 7)], [("2", 6), ("2", 7)]]]
        if not c.get("defer", 1): now += self.deferred; self.deferred = []
        for jobs in now:
            self.clear_prep(jobs); self.clear_issue("clr2"); self.stream(1)
        self.stamp("hs")
        st(P["qg0"]); self.qg(0, 0, between=S(W))
        self.stamp()
        self.att(0, 0, pre_bar=lambda: (st(self.index_after("woA")), a.wait_tag("woA"), a.wait_tag("clr2")))
        self.stamp()
        self.qg(1, 0, between=S(W))
        self.stamp("qg10")
        st(P["wo"]); self.wo(0, 0, between=S(W))
        self.stamp("wo00")
        st(P["yg"]); self.yg(0, 0, between=S(W), pre_bar=lambda: a.wait_tag("wqB"))
        self.stamp("yg00")
        self.wq_pre(1); self.wq_main(0, 1, hoisted=True)
        self.stream(3, paced=False); self.warm([0, 1, 2, "R"])
        if c.get("cpf") == 2: self.code_prefetch("L_pf1", "L_pf2")
        st(P["qg1"]); self.touch(0, 1, 2) if c.get('touch') == 2 else None; self.qg(0, 1, tail=True, between=lambda: self.stream(min(WE, p1 - self.pos), W=WE))
        a.raw("L_pf1:")
        self.stamp()
        st_ = 64 << c.get("pfs", 6)
        self.pfq = [(KA, o) for o in range(0, 12288, st_)] + [(VA, o) for o in range(0, 12288, st_)] + [(KB, o) for o in range(0, 49152, st_)]
        self.pfreg = 54
        vb0 = self.index_after(("VB", 0, 0)) - 3
        assert self.pos >= vb0 + 3
        if wl: assert self.pos <= p1 - 8
        self.att(0, 1, hook1=lambda g: self.stream(min(1, p1 - self.pos), W=WE) if g % HE == HE - 1 else None,
                 hook2=lambda i: (st(min(p1, vb0 + 3 * (i + 2) + WE - 3), W=WE), self.page() if i == PG else None, self.prefetch(c.get("pf0", 0)) if i == c.get("pfi", 11) else None), pre_bar=lambda: st(p1, W=WE) if wl else a.wait_tag("woB"), hoist=True, qaddr=True)
        if wl: a.wait_tag("woB"); a.barrier()
        assert self.pos == p1
        a.inject = None; self.limit = p2
        self.stamp("p1end")
        self.chain_idle(0, 1, pf=c.get("pf1", (0, 0, 0)))
        bu = c.get("burst", (6, 0, 0, 0)); sh = c.get("sh", (0, 9, 3, 6))
        self.att(0, 2, hookm=lambda: self.stream(bu[0], paced=False), hoist=True, qaddr=True)
        self.stamp("att02")
        self.pfq = [x for x in self.pfq if x[0] == KB]
        self.chain_idle(0, 2, burst=bu[1:], sh=sh, pf=c.get("pf2", (0, 0, 0)))
        self.stamp("p2beg")
        self.limit = len(self.items)
        n0 = c.get("n0", 9); h2 = c.get("h2", 2); q0 = self.pos
        def hook03(g):
            self.stream(max(0, min(3, q0 + n0 - self.pos, p2 + 3 * g + 3 - self.pos)), paced=False)
        self.att(0, 3, hook1=hook03, hook2=lambda i: self.stream(1, paced=False) if i % h2 == h2 - 1 else None, qaddr=True)
        self.stamp("att03")
        a.raw("L_pf2:")
        P = c.get("P2", dict(att=8, wo=34, yg=62, qg=80))
        if c.get("inject", 1): a.inject = self.injector
        st(p2 + P.get("att", 0))
        self.att(1, 0, guard=True, hook2=lambda i: self.stream(2))
        self.stamp("att10")
        st(p2 + P["wo"]); self.stamp("a"); self.wo(1, 0, between=S(W)); self.stamp("wo10"); self.wo(0, 3, between=S(W)); self.stamp("wo03")
        st(p2 + P["yg"]); self.stamp("b"); self.yg(1, 0, between=S(W)); self.stamp("yg10")
        self.wq_pre(1); self.wq_main(1, 1, hoisted=True)
        self.stream(3, paced=False); self.warm([3, 4, 5, 6])
        if c.get("cpf") == 2: self.code_prefetch("L_pf3", "L_pf9")
        st(p2 + P["qg"]); self.stamp("c"); self.touch(1, 1, 2) if c.get('touch') == 2 else None; self.qg(1, 1, tail=True, between=lambda: self.stream(WE, W=WE))
        a.raw("L_pf3:")
        self.stamp("qg11")
        vb1 = p2 + 48
        self.att(1, 1, hook1=lambda g: self.stream(1, W=WE) if g % HE == HE - 1 else None,
                 hook2=lambda i: (st(min(len(self.items), vb1 + 3 * (i + 2) + WE - 3), W=WE), self.page() if i == PG else None), hoist=True, qaddr=True)
        assert self.pos == len(self.items)
        a.inject = None
        self.stamp("p2end")
        self.chain_idle(1, 1)
        self.fine_on = c.get("fine") == 1
        self.fs("q_ready")
        self.att(1, 2, hoist=True, qaddr=True)
        self.stamp("att12")
        self.chain_idle(1, 2)
        self.fs("q_ready")
        if c.get("fine") == 2: self.fine_on = True; self.fs("q_ready")
        self.att(1, 3, hoist=True, qaddr=True)
        self.stamp("att13")
        self.chain_idle(1, 3)
        a.I("s_branch L_fin"); a.raw("L_out0:"); a.I("s_nop 7"); a.wait(vm=0, lg=0)
        if c.get("fin1", 1):
            a.I(f"s_cmp_lg_u32 s{sWave}, 0\ns_cbranch_scc1 L_fin")
            self.fin_pre(0); self.fin(0)
        else: self.yg(0, 3)
        a.raw("L_fin:"); a.I("s_nop 7")
        if c.get("hold"):
            a.raw("L_hold:"); a.I(f"s_memrealtime s[38:39]"); a.wait(lg=0)
            a.I(f"s_sub_u32 s38, s38, s{98 if c.get('holdat') else sST}\ns_cmp_lt_u32 s38, {c['hold']}\ns_cbranch_scc1 L_hold")
        self.fs("end")
        self.stamp("end")
        return self.finish()
    def finish(self):
        a = self.a; c = self.c
        if c.get("fine"):
            a.wait(lg=0)
            for i in range(self.nfine): a.I(f"v_writelane_b32 v{vStamp}, s{FS[i]}, {i}")
            print("fine stamps:", self.fnames)
        if c.get("diag"):
            a.I("s_sleep 100")
            a.I(f"v_writelane_b32 v{vStamp}, s{sRetry}, 62\nv_writelane_b32 v{vStamp}, s{sLocal}, 63")
            a.I(f"s_lshl_b32 s{sT0}, s{sWG}, 10\ns_lshl_b32 s{sT1}, s{sWave}, 8\ns_add_u32 s{sT0}, s{sT0}, s{sT1}\ns_add_u32 s{sT0}, s{sT0}, {DIAG}\nv_lshlrev_b32 v7, 2, v0")
            a.I(f"buffer_store_dword v{vStamp}, v7, {s4(WS)}, s{sT0} offen")
        if c.get("diag") and not c.get("fine"): print("stamps:", " ".join(self.snames))
        a.raw("L_end:"); a.raw("  s_endpgm")
        if c.get("pages", 1): self.hot = [f".p2align {c.get('hotal', 12)}\nLstR:\n  s_setpc_b64 {sp(sRet)}"] + self.hot
        a.tail = self.hot + a.tail
        a.tail.append("L_pf9:\n  s_endpgm")
        body = a.text()
        return (HEAD + f"; @launch grid=(256,1,1) block=(256,1,1) lds={LDS_BYTES}\n" + DOC
                + f'.amdgcn_target "amdgcn-amd-amdhsa--gfx950"\n.text\n.globl {NAME}\n.p2align 8\n.type {NAME},@function\n{NAME}:\n'
                + body + f'.section .rodata,"a"\n.p2align 6\n.amdhsa_kernel {NAME}\n  .amdhsa_next_free_vgpr 512\n  .amdhsa_next_free_sgpr 102\n'
                + "  .amdhsa_accum_offset 256\n  .amdhsa_group_segment_fixed_size 0\n  .amdhsa_kernarg_size 104\n  .amdhsa_user_sgpr_count 2\n"
                + "  .amdhsa_user_sgpr_kernarg_segment_ptr 1\n  .amdhsa_system_sgpr_workgroup_id_x 1\n.end_amdhsa_kernel\n")

def generate(cfg):
    global COMPACT1; COMPACT1 = cfg.get('c1', 0)
    global H1_I, H1_H, H1_S, H2, H2_I, H2_H, H2_S, H3, H3_I, H3_S, H3_H
    H1_S = cfg.get("H1S", 2048); H1_H = cfg.get("H1H", 8 * H1_S); H1_I = 32 * H1_H
    H2_S = cfg.get("H2S", 384); H2_H = cfg.get("H2H", 8 * H2_S if H2_S != 384 else 4096); H2_I = 32 * H2_H; H2 = cfg.get("H2B", 8 * H1_I); assert H2 >= 8 * H1_I
    H3_H = cfg.get("H3H", 192); H3_S = cfg.get("H3S", 32 * H3_H); H3_I = cfg.get("H3I", max(8 * H3_S, 32 * H3_H)); H3 = cfg.get("H3B", H2 + 8 * H2_I); assert H3 >= H2 + 8 * H2_I
    global USE_HOT; USE_HOT = cfg.get("hot", 0)
    assert H3 + 8 * H3_I <= (6 << 20) and not USE_HOT and not COMPACT1 and H3_H <= (192 if USE_HOT == 3 else 256)
    return Gen(cfg).build()
if __name__ == "__main__":
    cfg = eval(sys.argv[2]) if len(sys.argv) > 2 else {}
    open(sys.argv[1], "w").write(generate(cfg))
```
